```python
import torch

def _softmax(x, axis=-1):
    return torch.softmax(x, dim=axis)
def _gelu(x):
    return torch.nn.functional.gelu(x, approximate="tanh")
def _silu(x):
    return torch.nn.functional.silu(x)
def _sigmoid(x):
    return torch.sigmoid(x)
def _layernorm(x, axis=-1, eps=1e-5):
    m = x.mean(dim=axis, keepdim=True)
    v = x.var(dim=axis, keepdim=True, unbiased=False)
    return (x - m) / torch.sqrt(v + eps)
def _scatter_add(tgt, idx, src, axis=0):
    return tgt.clone().index_add_(axis, idx, src)
def _segment_sum(src, seg, n):
    out = torch.zeros((n,) + src.shape[1:], dtype=src.dtype)
    return out.index_add_(0, seg, src)
def _pad(x, pw):
    flat = tuple(v for pair in reversed(pw) for v in pair)
    return torch.nn.functional.pad(x, flat)

kernel_name = 'parallel_sum__ssm_conv_h3__dense_activation_squared_relu__prompt'

def setup_inputs():

    _w = (lambda a: (lambda t: t.to(torch.bfloat16) if t.is_floating_point() else t)(torch.as_tensor(a)))
    def _A_setup():
        B, S, D = 1, 2048, 512
        ks = 4
        return {
            "q": _w((lambda *s: torch.randn(*s, dtype=torch.bfloat16) * 0.05)(B, S, D)),
            "k": _w((lambda *s: torch.randn(*s, dtype=torch.bfloat16) * 0.8)(B, S, D)),
            "v": _w((lambda *s: torch.randn(*s, dtype=torch.bfloat16) * 0.8)(B, S, D)),
            "shift_k": _w((lambda *s: torch.randn(*s, dtype=torch.bfloat16) * 0.8)(D, ks) * 0.5),
            "ssm_k": _w((lambda *s: torch.randn(*s, dtype=torch.bfloat16) * 0.8)(D, S) * (1.0 / S ** 0.5)),
            "ssm_D": _w((lambda *s: torch.randn(*s, dtype=torch.bfloat16) * 0.8)(D)),
        }
    _A_in = _A_setup()

    def _B_setup():
        B, S, D, F = 1, 2048, 512, 1792
        return {
            "x": _w((lambda *s: torch.randn(*s, dtype=torch.bfloat16) * 0.05)(B, S, D)),
            "w1": _w((lambda *s: torch.randn(*s, dtype=torch.bfloat16) * 0.05)(D, F)),
            "b1": _w((lambda *s: torch.randn(*s, dtype=torch.bfloat16) * 0.2)(F)),
            "w2": _w((lambda *s: torch.randn(*s, dtype=torch.bfloat16) * 0.05)(F, D)),
            "b2": _w((lambda *s: torch.randn(*s, dtype=torch.bfloat16) * 1.6)(D)),
        }
    _B_in = _B_setup()

    return {
        "A_q": _A_in["q"],
        "A_k": _A_in["k"],
        "A_v": _A_in["v"],
        "A_shift_k": _A_in["shift_k"],
        "A_ssm_k": _A_in["ssm_k"],
        "A_ssm_D": _A_in["ssm_D"],
        "B_x": _B_in["x"],
        "B_w1": _B_in["w1"],
        "B_b1": _B_in["b1"],
        "B_w2": _B_in["w2"],
        "B_b2": _B_in["b2"],
    }

def reference(A_q, A_k, A_v, A_shift_k, A_ssm_k, A_ssm_D, B_x, B_w1, B_b1, B_w2, B_b2):
    def _A_ref(q, k, v, shift_k, ssm_k, ssm_D):
        B, S, D = q.shape
        ks = shift_k.shape[-1]
        k_pad = _pad(k, ((0, 0), (ks - 1, 0), (0, 0)))
        k_shift = torch.zeros_like(k)
        for t in range(ks):
            k_shift = k_shift + k_pad[:, t:t + S, :] * shift_k[:, ks - 1 - t][None, None, :]
        kv = k_shift * v
        L = 2 * S
        kv_pad = _pad(kv, ((0, 0), (0, S), (0, 0)))
        kf_pad = _pad(ssm_k, ((0, 0), (0, S)))
        kv_f = (lambda x, axes=(-2,-1): torch.fft.rfft2(x.float(), dim=axes))(kv_pad[:, None, :, :], axes=(1, 2))
        kf_f = (lambda x, axes=(-2,-1): torch.fft.rfft2(x.float(), dim=axes))(kf_pad[:, None, :], axes=(1, 2))
        kf_f = (lambda x, *d: x.permute(*d))(kf_f, 1, 2, 0)
        y_f = kv_f * kf_f[None, :, :, :]
        y = (lambda x, s, axes=(-2,-1): torch.fft.irfft2(x, s=s, dim=axes).to(torch.bfloat16))(y_f, (1, L), axes=(1, 2))[:, 0, :S, :]
        y = y + kv * ssm_D[None, None, :]
        return q * y

    def _B_ref(x, w1, b1, w2, b2):
        h = torch.einsum("bsd,df->bsf", x, w1) + b1
        zero = torch.zeros_like(h)
        r = torch.where(h > zero, h, zero)
        h = r * r
        out = torch.einsum("bsf,fd->bsd", h, w2) + b2
        return out

    x = A_q
    xn = _layernorm(x, axis=-1)
    return x + _A_ref(xn, A_k, A_v, A_shift_k, A_ssm_k, A_ssm_D) + _B_ref(xn, B_w1, B_b1, B_w2, B_b2)
```

```python
import re

_REG = re.compile(r'\b([vas])\[(\d+):(\d+)\]|\b([vas])(\d+)\b|\b(vcc|exec|m0|scc)\b')

def regs_of(tok):
    out = set()
    for m in _REG.finditer(tok):
        if m.group(1):
            for i in range(int(m.group(2)), int(m.group(3)) + 1): out.add(m.group(1) + str(i))
        elif m.group(4):
            out.add(m.group(4) + m.group(5))
        else:
            out.add(m.group(6))
    return out

TRANS = ('v_exp_f32', 'v_log_f32', 'v_rcp_f32', 'v_rsq_f32', 'v_sqrt_f32', 'v_sin_f32', 'v_cos_f32')

class Ins:
    __slots__ = ('txt', 'op', 'dst', 'src', 'kind', 'passes', 'srcC', 'srcAB', 'tag', 'dma', 'addr')
    def __init__(self, txt, tag=None):
        self.txt = txt; self.tag = tag
        t = txt.split(';')[0].strip()
        parts = t.split(None, 1)
        self.op = op = parts[0]
        ops = []
        if len(parts) > 1:
            cur = ''; depth = 0
            for ch in parts[1]:
                if ch == '[': depth += 1
                if ch == ']': depth -= 1
                if ch == ',' and depth == 0: ops.append(cur.strip()); cur = ''
                else: cur += ch
            ops.append(cur.strip())
        self.dst = set(); self.src = set(); self.passes = 0; self.srcC = set(); self.srcAB = set(); self.dma = False
        k = 'other'
        if op.endswith(':'): k = 'label'
        elif op.startswith('v_mfma'):
            k = 'mfma'
            self.dst = regs_of(ops[0]); self.srcAB = regs_of(ops[1]) | regs_of(ops[2]); self.srcC = regs_of(ops[3])
            self.src = self.srcAB | self.srcC
            self.passes = 8 if '32x32x16' in op else (4 if '16x16x32' in op else 16)
        elif op.startswith('buffer_load') or op.startswith('global_load'):
            k = 'vmem'
            if re.search(r'\blds\b', t.replace('lds=', '')) and op.startswith('buffer_load'):
                self.dma = True
                for o in ops: self.src |= regs_of(o)
                self.src.add('m0')
            else:
                self.dst = regs_of(ops[0])
                for o in ops[1:]: self.src |= regs_of(o)
        elif op.startswith('buffer_store') or op.startswith('global_store'):
            k = 'vmem'
            for o in ops: self.src |= regs_of(o)
        elif op.startswith('buffer_atomic') or op.startswith('global_atomic'):
            k = 'vmem'
            for o in ops: self.src |= regs_of(o)
            if 'sc0' in t: self.dst = regs_of(ops[0])
        elif op in ('buffer_inv', 'buffer_wbl2'):
            k = 'vmem'
        elif op.startswith('ds_read') or op.startswith('ds_bpermute') or op.startswith('ds_swizzle'):
            k = 'ds'
            self.dst = regs_of(ops[0])
            for o in ops[1:]: self.src |= regs_of(o)
        elif op.startswith('ds_'):
            k = 'ds'
            for o in ops: self.src |= regs_of(o)
        elif op.startswith('s_load') or op.startswith('s_memtime') or op.startswith('s_memrealtime'):
            k = 'smem'
            self.dst = regs_of(ops[0])
            for o in ops[1:]: self.src |= regs_of(o)
        elif op.startswith('s_'):
            k = 'salu'
            if op in ('s_waitcnt', 's_nop', 's_barrier', 's_endpgm', 's_branch', 's_sleep', 's_setprio') or op.startswith('s_cbranch'):
                if op.startswith('s_cbranch_vcc'): self.src.add('vcc')
                if op.startswith('s_cbranch_exec'): self.src.add('exec')
            elif op.startswith('s_cmp') or op.startswith('s_bitcmp'):
                for o in ops: self.src |= regs_of(o)
            else:
                self.dst = regs_of(ops[0])
                for o in ops[1:]: self.src |= regs_of(o)
                if 'saveexec' in op: self.dst.add('exec'); self.src.add('exec')
                if op in ('s_addk_i32', 's_mulk_i32'): self.src |= self.dst
        elif op.startswith('v_'):
            k = 'valu'
            if op.startswith('v_cmp'):
                self.dst = regs_of(ops[0])
                for o in ops[1:]: self.src |= regs_of(o)
            elif op.startswith('v_permlane') and 'swap' in op:
                self.dst = regs_of(ops[0]) | regs_of(ops[1]); self.src = set(self.dst)
            elif op.startswith('v_add_co') or op.startswith('v_sub_co') or op.startswith('v_addc_co') or op.startswith('v_mad_u64'):
                self.dst = regs_of(ops[0]) | regs_of(ops[1])
                for o in ops[2:]: self.src |= regs_of(o)
            else:
                self.dst = regs_of(ops[0])
                for o in ops[1:]: self.src |= regs_of(o)
                if op.startswith('v_fmac') or op.startswith('v_dot2c') or op.startswith('v_writelane') or 'dpp' in t or 'UNUSED_PRESERVE' in t:
                    self.src |= self.dst
                if op.startswith('v_cndmask') and len(ops) == 3: self.src.add('vcc')
        self.kind = k

    def nstates(self):
        if self.op == 's_nop':
            return int(self.txt.split()[1], 0) + 1
        if self.kind == 'label': return 0
        return 1

class Prog:
    def __init__(self, auto=True):
        self.out = []
        self.vm = []
        self.lg = []
        self.auto = auto
        self.nnop = 0
    def raw(self, txt):
        self.out.append(Ins(txt))
    def label(self, name):
        self.out.append(Ins(name + ':'))
    def comment(self, c):
        pass
    def _wait(self, vm=None, lg=None):
        s = 's_waitcnt'
        if vm is not None:
            vm = min(vm, 63)
            s += ' vmcnt(%d)' % vm
            if len(self.vm) > vm: self.vm = self.vm[len(self.vm) - vm:] if vm > 0 else []
        if lg is not None:
            lg = min(lg, 15)
            s += ' lgkmcnt(%d)' % lg
            if len(self.lg) > lg: self.lg = self.lg[len(self.lg) - lg:] if lg > 0 else []
        self.out.append(Ins(s))
    def wait(self, vm=None, lg=None):
        self._wait(vm, lg)
    def wait_tag(self, tag):
        idx = [i for i, o in enumerate(self.vm) if o.tag == tag]
        if idx: self._wait(vm=len(self.vm) - 1 - max(idx))
    def wait_lg_tag(self, tag):
        idx = [i for i, o in enumerate(self.lg) if o.tag == tag]
        if idx:
            if any(o.kind == 'smem' for o in self.lg): self._wait(lg=0)
            else: self._wait(lg=len(self.lg) - 1 - max(idx))
    def _hazard(self, ins):
        need = 0; dist = 0
        for p in reversed(self.out):
            if dist >= 20: break
            req = 0
            if p.kind == 'valu':
                w = p.dst
                vw = {r for r in w if r[0] in 'va' and r not in ('vcc',)}
                sw = {r for r in w if r[0] == 's' or r == 'vcc'}
                if ins.kind == 'mfma' and vw & ins.src: req = max(req, 2)
                if ins.kind == 'valu':
                    if sw & ins.src: req = max(req, 2)
                    if (ins.op.startswith('v_readlane') or ins.op.startswith('v_readfirstlane')) and vw & ins.src: req = max(req, 1)
                    if (ins.op.startswith('v_readlane') or ins.op.startswith('v_writelane')) and sw & ins.src: req = max(req, 4)
                    if 'dpp' in ins.txt and vw & ins.src: req = max(req, 2)
                    if ins.op.startswith('v_permlane') and vw & ins.src: req = max(req, 2)
                    if p.op in TRANS and (vw & ins.src): req = max(req, 1)
                    if ('sdwa' in p.txt or 'op_sel' in p.txt) and (vw & (ins.src | ins.dst)): req = max(req, 1)
                if ins.kind == 'vmem' and sw & ins.src: req = max(req, 5)
                if ins.kind in ('salu', 'smem') and sw & ins.src: req = max(req, 2)
                if 'exec' in w and ins.kind in ('valu', 'mfma'): req = max(req, 5)
            elif p.kind == 'mfma':
                big = {2: 5, 4: 8, 8: 12, 16: 20}[p.passes]
                ov = {2: 4, 4: 6, 8: 10, 16: 18}[p.passes]
                war = {2: 1, 4: 3, 8: 7, 16: 15}[p.passes]
                if ins.kind == 'mfma':
                    if p.dst & ins.srcAB: req = max(req, big)
                    if p.dst & ins.srcC and not (p.dst == ins.srcC and p.passes == ins.passes): req = max(req, ov)
                    if p.dst & ins.dst and not (p.dst == ins.dst): req = max(req, ov)
                elif ins.kind in ('valu', 'vmem', 'ds'):
                    if p.dst & (ins.src | ins.dst): req = max(req, big)
                    if ins.kind == 'valu' and (p.srcC & ins.dst): req = max(req, war)
            elif p.kind == 'salu':
                if 'm0' in p.dst and (ins.dma or ins.op in ('s_sendmsg',)): req = max(req, 1)
                if 'exec' in p.dst and ins.kind == 'mfma': req = max(req, 4)
            elif p.kind == 'vmem':
                if ('store' in p.op or 'atomic' in p.op) and ('x4' in p.op or 'x3' in p.op):
                    data = p.src
                    if ins.kind == 'valu' and (ins.dst & data): req = max(req, 2)
                    elif ins.dst & data: req = max(req, 1)
            need = max(need, req - dist)
            dist += p.nstates()
        return need
    def emit(self, txt, tag=None):
        for line in txt.strip().split('\n'):
            line = line.strip()
            if not line or line.startswith(';'): continue
            self._emit1(line, tag)
    __call__ = emit
    def _emit1(self, line, tag):
        ins = Ins(line, tag)
        if ins.kind == 'label':
            self.out.append(ins); return
        if ins.op == 's_waitcnt':
            vm = re.search(r'vmcnt\((\d+)\)', line); lg = re.search(r'lgkmcnt\((\d+)\)', line)
            self._wait(int(vm.group(1)) if vm else None, int(lg.group(1)) if lg else None); return
        if self.auto:
            touch = ins.src | ins.dst
            wv = None
            for i, o in enumerate(self.vm):
                if o.dst & touch: wv = len(self.vm) - 1 - i
            wl = None
            for i, o in enumerate(self.lg):
                if o.dst & touch:
                    wl = 0 if any(x.kind == 'smem' for x in self.lg) else len(self.lg) - 1 - i
            if wv is not None or wl is not None: self._wait(wv, wl)
        n = self._hazard(ins)
        if n > 0:
            self.nnop += n
            while n > 0:
                m = min(n, 16); self.out.append(Ins('s_nop %d' % (m - 1))); n -= m
        self.out.append(ins)
        if ins.kind == 'vmem':
            self.vm.append(ins)
            if len(self.vm) > 63:
                raise RuntimeError('more than 63 vmem ops outstanding')
        elif ins.kind in ('ds', 'smem'):
            self.lg.append(ins)
            if ins.kind == 'smem' and ('x2' in ins.op or 'x4' in ins.op or 'x8' in ins.op or 'x16' in ins.op or 'mem' in ins.op):
                pass
    def text(self):
        return '\n'.join(('' if i.kind == 'label' else '  ') + i.txt for i in self.out) + '\n'

def interleave(main, fill, per):
    out = []; acc = 0.0; j = 0
    for m in main:
        out.append(m); acc += per
        while acc >= 1.0 and j < len(fill):
            out.append(fill[j]); j += 1; acc -= 1.0
    out.extend(fill[j:])
    return out

class Regs:
    def __init__(self, kind, lo, hi):
        self.kind = kind; self.next = lo; self.hi = hi; self.names = {}
    def alloc(self, n=1, align=1, name=None):
        a = (self.next + align - 1) // align * align
        if a + n > self.hi: raise RuntimeError('out of %s regs (want %d at %d, hi %d)' % (self.kind, n, a, self.hi))
        self.next = a + n
        if name: self.names[name] = (a, n)
        return a
    def mark(self): return self.next
    def release(self, m): self.next = m
def vr(a, n=1, k='v'):
    return '%s%d' % (k, a) if n == 1 else '%s[%d:%d]' % (k, a, a + n - 1)
def sr(a, n=1): return vr(a, n, 's')
def ar(a, n=1): return vr(a, n, 'a')
```

```python
from asmlib import *
S, D, F = 2048, 512, 1792
WS_HF  = 0
SZ_HF  = 64 * 112 * 1024
WS_KVT = 0x800000
SZ_KVT = 512 * 4096
WS_ZT  = 0xA00000
SZ_ZT  = 512 * 4096
WS_ST  = 0xC00000
SZ_ST  = 2048 * 8
WS_CSP = 0xC10000
SZ_CSP = 16 * 1792 * 4
P_Q, P_K, P_V, P_SK, P_SSM, P_DD, P_BX, P_W1 = 4, 6, 8, 10, 12, 14, 16, 18
P_B1, P_W2, P_B2, P_OUT, P_DBG, P_WS = 20, 22, 24, 26, 28, 30

def load_kernargs(p):
    p("s_load_dwordx16 s[4:19], s[0:1], 0")
    p("s_load_dwordx8 s[20:27], s[0:1], 64")
    p("s_load_dwordx4 s[28:31], s[0:1], 96")

def srd(p, dst, ptr, size, off=0):
    if off:
        p("s_add_u32 s%d, s%d, 0x%x" % (dst, ptr, off))
        p("s_addc_u32 s%d, s%d, 0" % (dst + 1, ptr + 1))
    else:
        p("s_mov_b32 s%d, s%d" % (dst, ptr))
        p("s_mov_b32 s%d, s%d" % (dst + 1, ptr + 1))
    p("s_mov_b32 s%d, 0x%x" % (dst + 2, size))
    p("s_mov_b32 s%d, 0x20000" % (dst + 3))

def kernel_text(name, body):
    return ".globl %s\n.p2align 8\n.type %s,@function\n%s:\n%s" % (name, name, name, body)

def kernel_desc(name, vgpr, accum, sgpr=102):
    return (".p2align 6\n.amdhsa_kernel %s\n  .amdhsa_next_free_vgpr %d\n  .amdhsa_next_free_sgpr %d\n  .amdhsa_accum_offset %d\n"
            "  .amdhsa_group_segment_fixed_size 0\n  .amdhsa_kernarg_size 112\n  .amdhsa_user_sgpr_count 2\n"
            "  .amdhsa_user_sgpr_kernarg_segment_ptr 1\n  .amdhsa_system_sgpr_workgroup_id_x 1\n"
            "  .amdhsa_float_denorm_mode_32 3\n"
            ".end_amdhsa_kernel\n") % (name, vgpr, sgpr, accum)
```

```python
from common import *

def gen_k0(name):
    p = Prog()
    sJ, sR, sW, sT0, sT1, sT2, sT3 = 33, 34, 35, 36, 37, 38, 39
    K_, V_, SK_, Q_, W1_, KVT_, ST_, CSP_ = 40, 44, 48, 52, 56, 60, 64, 68
    p("s_cmp_ge_u32 s2, 256")
    p("s_cbranch_scc1 %s_end" % name)
    load_kernargs(p)
    p("v_and_b32 v1, 63, v0")
    p("v_lshrrev_b32 v2, 6, v0")
    p("s_and_b32 s%d, s2, 7" % sJ)
    p("s_lshr_b32 s%d, s2, 3" % sR)
    p("v_readfirstlane_b32 s%d, v2" % sW)
    p("s_waitcnt lgkmcnt(0)")
    srd(p, K_, P_K, S * D * 2); srd(p, V_, P_V, S * D * 2); srd(p, SK_, P_SK, D * 8)
    srd(p, Q_, P_Q, S * D * 2); srd(p, W1_, P_W1, D * F * 2)
    srd(p, KVT_, P_WS, SZ_KVT, WS_KVT); srd(p, ST_, P_WS, SZ_ST, WS_ST); srd(p, CSP_, P_WS, SZ_CSP, WS_CSP)
    vL, vC, vRR = 1, 3, 4
    p("v_and_b32 v%d, 7, v1" % vC)
    p("v_lshrrev_b32 v%d, 3, v1" % vRR)
    p("s_lshl_b32 s%d, s%d, 6" % (sT0, sR))
    p("s_lshl_b32 s%d, s%d, 4" % (sT1, sW))
    p("s_add_u32 s%d, s%d, s%d" % (sT0, sT0, sT1))
    p("s_lshl_b32 s%d, s%d, 10" % (sT0, sT0))
    p("s_lshl_b32 s%d, s%d, 7" % (sT1, sJ))
    p("s_add_u32 s%d, s%d, s%d" % (sT0, sT0, sT1))
    vA = 5
    p("v_lshlrev_b32 v%d, 11, v%d" % (vA, vRR))
    p("v_lshl_add_u32 v%d, v%d, 4, v%d" % (vA, vC, vA))
    p("v_add_u32 v%d, s%d, v%d" % (vA, sT0, vA))
    KR = 16
    VR = 36
    SKR = 44
    for i in range(5):
        p("v_add_u32 v%d, %d, v%d" % (6 + i, (i - 3) * 1024, vA))
    for i in range(5):
        p("buffer_load_dwordx4 %s, v%d, s[%d:%d], 0 offen" % (vr(KR + 4 * i, 4), 6 + i, K_, K_ + 3))
    p("buffer_load_dwordx4 %s, v%d, s[%d:%d], 0 offen" % (vr(VR, 4), vA, V_, V_ + 3))
    p("buffer_load_dwordx4 %s, v%d, s[%d:%d], 0 offen offset:1024" % (vr(VR + 4, 4), vA, V_, V_ + 3))
    p("s_lshl_b32 s%d, s%d, 9" % (sT1, sJ))
    p("v_lshlrev_b32 v11, 6, v%d" % vC)
    p("v_add_u32 v11, s%d, v11" % sT1)
    for i in range(4):
        p("buffer_load_dwordx4 %s, v11, s[%d:%d], 0 offen offset:%d" % (vr(SKR + 4 * i, 4), SK_, SK_ + 3, 16 * i))
    p("s_lshr_b32 s%d, s%d, 1" % (sT0, sJ))
    p("s_lshl_b32 s%d, s%d, 9" % (sT0, sT0))
    p("s_and_b32 s%d, s%d, 1" % (sT1, sJ))
    p("s_lshl_b32 s%d, s%d, 5" % (sT1, sT1))
    p("s_add_u32 s%d, s%d, s%d" % (sT1, sT1, sR))
    p("s_lshl_b32 s%d, s%d, 3" % (sT1, sT1))
    p("s_add_u32 s%d, s%d, s%d" % (sT0, sT0, sT1))
    p("s_lshl_b32 s%d, s%d, 1" % (sT1, sW))
    sROW = 72
    p("s_add_u32 s%d, s%d, s%d" % (sROW, sT0, sT1))
    p("s_lshl_b32 s%d, s%d, 10" % (sT0, sROW))
    p("v_lshlrev_b32 v12, 4, v1")
    XR = 60
    p("buffer_load_dwordx4 %s, v12, s[%d:%d], s%d offen" % (vr(XR, 4), Q_, Q_ + 3, sT0))
    p("buffer_load_dwordx4 %s, v12, s[%d:%d], s%d offen offset:1024" % (vr(XR + 4, 4), Q_, Q_ + 3, sT0))
    sDR, sFT = 73, 74
    p("s_mul_i32 s%d, s%d, 37" % (sT0, sR))
    p("s_lshr_b32 s%d, s%d, 8" % (sT0, sT0))
    p("s_mul_i32 s%d, s%d, 7" % (sT1, sT0))
    p("s_sub_u32 s%d, s%d, s%d" % (sT1, sR, sT1))
    p("s_lshr_b32 s%d, s%d, 1" % (sT2, sJ))
    p("s_lshl_b32 s%d, s%d, 2" % (sT2, sT2))
    p("s_add_u32 s%d, s%d, s%d" % (sDR, sT2, sT0))
    p("s_and_b32 s%d, s%d, 1" % (sT2, sJ))
    p("s_mul_i32 s%d, s%d, 7" % (sT2, sT2))
    p("s_add_u32 s%d, s%d, s%d" % (sFT, sT2, sT1))
    p("s_lshl_b32 s%d, s%d, 5" % (sT0, sDR))
    p("s_lshl_b32 s%d, s%d, 3" % (sT1, sW))
    p("s_add_u32 s%d, s%d, s%d" % (sT0, sT0, sT1))
    p("s_mul_i32 s%d, s%d, 3584" % (sT0, sT0))
    p("s_lshl_b32 s%d, s%d, 8" % (sT1, sFT))
    p("s_add_u32 s%d, s%d, s%d" % (sT0, sT0, sT1))
    p("v_lshrrev_b32 v13, 4, v1")
    p("v_mul_u32_u24 v13, 3584, v13")
    p("v_and_b32 v14, 15, v1")
    p("v_lshl_add_u32 v13, v14, 4, v13")
    CR = 68
    p("buffer_load_dwordx4 %s, v13, s[%d:%d], s%d offen" % (vr(CR, 4), W1_, W1_ + 3, sT0))
    p("s_add_u32 s%d, s%d, %d" % (sT1, sT0, 4 * 3584))
    p("buffer_load_dwordx4 %s, v13, s[%d:%d], s%d offen" % (vr(CR + 4, 4), W1_, W1_ + 3, sT1))
    T = 80
    RES = 100
    def unpack(dst, src, half):
        if half == 0: p("v_lshlrev_b32 v%d, 16, v%d" % (dst, src))
        else: p("v_and_b32 v%d, 0xffff0000, v%d" % (dst, src))
    for e in range(8):
        dw, hf = e >> 1, e & 1
        for i in range(5): unpack(T + i, KR + 4 * i + dw, hf)
        unpack(T + 5, VR + dw, hf); unpack(T + 6, VR + 4 + dw, hf)
        unpack(T + 7, SKR + 2 * e, 0); unpack(T + 8, SKR + 2 * e, 1)
        unpack(T + 9, SKR + 2 * e + 1, 0); unpack(T + 10, SKR + 2 * e + 1, 1)
        p("v_mul_f32 v%d, v%d, v%d" % (T + 11, T + 3, T + 7))
        p("v_mul_f32 v%d, v%d, v%d" % (T + 12, T + 4, T + 7))
        p("v_fmac_f32 v%d, v%d, v%d" % (T + 11, T + 2, T + 8))
        p("v_fmac_f32 v%d, v%d, v%d" % (T + 12, T + 3, T + 8))
        p("v_fmac_f32 v%d, v%d, v%d" % (T + 11, T + 1, T + 9))
        p("v_fmac_f32 v%d, v%d, v%d" % (T + 12, T + 2, T + 9))
        p("v_fmac_f32 v%d, v%d, v%d" % (T + 11, T + 0, T + 10))
        p("v_fmac_f32 v%d, v%d, v%d" % (T + 12, T + 1, T + 10))
        p("v_mul_f32 v%d, v%d, v%d" % (T + 11, T + 11, T + 5))
        p("v_mul_f32 v%d, v%d, v%d" % (T + 12, T + 12, T + 6))
        p("v_cvt_pk_bf16_f32 v%d, v%d, v%d" % (RES + e, T + 12, T + 11))
    p("s_lshl_b32 s%d, s%d, 3" % (sT0, sW))
    p("s_sub_u32 s%d, 31, s%d" % (sT0, sT0))
    p("v_sub_u32 v15, s%d, v%d" % (sT0, vRR))
    p("v_lshrrev_b32 v6, 2, v15")
    p("v_xor_b32 v6, v6, v%d" % vC)
    p("v_and_b32 v15, 3, v15")
    p("v_lshlrev_b32 v15, 2, v15")
    p("v_lshl_add_u32 v15, v6, 4, v15")
    p("v_lshl_add_u32 v15, v%d, 10, v15" % vC)
    for e in range(8):
        p("ds_write_b32 v15, v%d offset:%d" % (RES + e, e * 128))
    ON = 75
    p("s_mov_b32 s%d, 0x3f803f80" % ON)
    for rr in range(2):
        sS, sQ = T + 2 * rr, T + 2 * rr + 1
        p("v_mov_b32 v%d, 0" % sS); p("v_mov_b32 v%d, 0" % sQ)
    for i in range(4):
        for rr in range(2):
            sS, sQ = T + 2 * rr, T + 2 * rr + 1
            p("v_dot2_f32_bf16 v%d, v%d, s%d, v%d" % (sS, XR + 4 * rr + i, ON, sS))
            p("v_dot2_f32_bf16 v%d, v%d, v%d, v%d" % (sQ, XR + 4 * rr + i, XR + 4 * rr + i, sQ))
    for ctrl in ("row_shr:1 row_mask:0xf", "row_shr:2 row_mask:0xf", "row_shr:4 row_mask:0xf", "row_shr:8 row_mask:0xf",
                 "row_bcast:15 row_mask:0xa", "row_bcast:31 row_mask:0xc"):
        for q in range(4):
            p("v_add_f32_dpp v%d, v%d, v%d %s bank_mask:0xf" % (T + q, T + q, T + q, ctrl))
    for rr in range(2):
        sS, sQ = T + 2 * rr, T + 2 * rr + 1
        p("v_mul_f32 v%d, 0x3b000000, v%d" % (sS, sS))
        p("v_mul_f32 v%d, 0x3b000000, v%d" % (sQ, sQ))
        p("v_fma_f32 v%d, -v%d, v%d, v%d" % (sQ, sS, sS, sQ))
        p("v_max_f32 v%d, 0, v%d" % (sQ, sQ))
        p("v_add_f32 v%d, 0x3727c5ac, v%d" % (sQ, sQ))
        p("v_rsq_f32 v%d, v%d" % (sQ, sQ))
    p("s_lshl_b32 s%d, s%d, 3" % (sT0, sROW))
    p("v_mov_b32 v6, s%d" % sT0)
    p("s_mov_b64 s[76:77], exec")
    p("s_mov_b32 exec_lo, 0")
    p("s_mov_b32 exec_hi, 0x80000000")
    p("buffer_store_dwordx4 %s, v6, s[%d:%d], 0 offen" % (vr(T, 4), ST_, ST_ + 3))
    p("s_mov_b64 exec, s[76:77]")
    U = T + 8
    for i in range(4):
        for hf in range(2):
            unpack(U + 2 * i + hf, CR + i, hf)
            unpack(U + 8, CR + 4 + i, hf)
            p("v_add_f32 v%d, v%d, v%d" % (U + 2 * i + hf, U + 2 * i + hf, U + 8))
    p("v_lshrrev_b32 v6, 4, v1")
    p("s_lshl_b32 s%d, s%d, 2" % (sT0, sW))
    p("v_add_u32 v6, s%d, v6" % sT0)
    p("v_lshlrev_b32 v6, 9, v6")
    p("v_lshl_add_u32 v6, v14, 5, v6")
    p("ds_write_b128 v6, %s offset:8192" % vr(U, 4))
    p("ds_write_b128 v6, %s offset:8208" % vr(U + 4, 4))
    p.wait(lg=0)
    p("s_barrier")
    p("s_lshl_b32 s%d, s%d, 4" % (sT0, sW))
    p("v_add_u32 v6, s%d, v%d" % (sT0, vRR))
    p("v_lshlrev_b32 v7, 7, v6")
    p("v_lshl_add_u32 v7, v%d, 4, v7" % vC)
    p("ds_read_b128 v[16:19], v7")
    p("ds_read_b128 v[20:23], v7 offset:1024")
    p("s_lshl_b32 s%d, s%d, 18" % (sT0, sJ))
    p("s_lshl_b32 s%d, s%d, 7" % (sT1, sR))
    p("s_sub_u32 s%d, s%d, s%d" % (sT0, sT0, sT1))
    p("s_add_u32 s%d, s%d, 3968" % (sT0, sT0))
    p("s_lshl_b32 s%d, s%d, 1" % (sT1, sW))
    p("v_lshlrev_b32 v8, 12, v6")
    p("v_xor_b32 v9, s%d, v%d" % (sT1, vC))
    p("v_lshl_add_u32 v9, v9, 4, v8")
    p("s_add_u32 s%d, s%d, 1" % (sT1, sT1))
    p("v_xor_b32 v10, s%d, v%d" % (sT1, vC))
    p("v_lshl_add_u32 v10, v10, 4, v8")
    p("v_add_u32 v10, 0x8000, v10")
    p("buffer_store_dwordx4 v[16:19], v9, s[%d:%d], s%d offen" % (KVT_, KVT_ + 3, sT0))
    p("buffer_store_dwordx4 v[20:23], v10, s[%d:%d], s%d offen" % (KVT_, KVT_ + 3, sT0))
    p("s_cmp_ge_u32 s%d, 28" % sR)
    p("s_cbranch_scc1 %s_end" % name)
    p("s_cmp_ge_u32 s%d, 2" % sW)
    p("s_cbranch_scc1 %s_end" % name)
    p("v_lshlrev_b32 v6, 2, v0")
    for i in range(16):
        p("ds_read_b32 v%d, v6 offset:%d" % (24 + i, 8192 + i * 512))
    for i in range(1, 16):
        p("v_add_f32 v24, v24, v%d" % (24 + i))
    p("s_mul_i32 s%d, s%d, %d" % (sT0, sDR, 1792 * 4))
    p("s_lshl_b32 s%d, s%d, 9" % (sT1, sFT))
    p("s_add_u32 s%d, s%d, s%d" % (sT0, sT0, sT1))
    p("buffer_store_dword v24, v6, s[%d:%d], s%d offen" % (CSP_, CSP_ + 3, sT0))
    p.label("%s_end" % name)
    p("s_endpgm")
    return p.text(), 128, 128
```

```python
from common import *

def unpack(p, dst, src, half):
    if half == 0: p("v_lshlrev_b32 v%d, 16, v%d" % (dst, src))
    else: p("v_and_b32 v%d, 0xffff0000, v%d" % (dst, src))

def gen_g1(p, name, sJ, sR, sW):
    sT0, sT1, sT2, sRB, sFT, sXo, sWo, sM = 36, 37, 38, 39, 72, 73, 74, 75
    Q_, W1_, B1_, ST_, CSP_, HF_ = 40, 44, 48, 52, 56, 60
    srd(p, Q_, P_Q, S * D * 2); srd(p, W1_, P_W1, D * F * 2); srd(p, B1_, P_B1, F * 2)
    srd(p, ST_, P_WS, SZ_ST, WS_ST); srd(p, CSP_, P_WS, SZ_CSP, WS_CSP); srd(p, HF_, P_WS, SZ_HF, WS_HF)
    p("s_mul_i32 s%d, s%d, 37" % (sT0, sR)); p("s_lshr_b32 s%d, s%d, 8" % (sT0, sT0))
    p("s_mul_i32 s%d, s%d, 7" % (sT1, sT0)); p("s_sub_u32 s%d, s%d, s%d" % (sT1, sR, sT1))
    p("s_lshr_b32 s%d, s%d, 1" % (sT2, sJ)); p("s_lshl_b32 s%d, s%d, 2" % (sT2, sT2))
    p("s_add_u32 s%d, s%d, s%d" % (sRB, sT2, sT0))
    p("s_and_b32 s%d, s%d, 1" % (sT2, sJ)); p("s_mul_i32 s%d, s%d, 7" % (sT2, sT2))
    p("s_add_u32 s%d, s%d, s%d" % (sFT, sT2, sT1))
    vX = 2
    vWd = 6
    p("v_lshrrev_b32 v10, 3, v1")
    p("v_and_b32 v11, 7, v1")
    p("v_lshrrev_b32 v12, 1, v10")
    for ii in range(4):
        p("v_add_u32 v13, %d, v12" % (4 * (ii & 1)))
        p("v_xor_b32 v13, v13, v11")
        p("v_lshlrev_b32 v13, 4, v13")
        p("v_lshl_add_u32 v13, v10, 10, v13")
        p("v_add_u32 v%d, %d, v13" % (vX + ii, ii * 8192))
    p("v_lshrrev_b32 v10, 4, v1")
    p("v_and_b32 v11, 15, v1")
    p("v_lshlrev_b32 v12, 2, v10")
    p("v_xor_b32 v12, v12, v11")
    p("v_lshlrev_b32 v12, 4, v12")
    p("v_mul_u32_u24 v13, 3584, v10")
    p("v_add_u32 v13, v13, v12")
    for ii in range(4):
        p("v_add_u32 v%d, %d, v13" % (vWd + ii, ii * 4 * 3584))
    p("s_lshl_b32 s%d, s%d, 17" % (sXo, sRB))
    p("s_lshl_b32 s%d, s%d, 15" % (sT0, sW))
    p("s_add_u32 s%d, s%d, s%d" % (sXo, sXo, sT0))
    p("s_mul_i32 s%d, s%d, %d" % (sWo, sW, 16 * 3584))
    p("s_lshl_b32 s%d, s%d, 8" % (sT0, sFT))
    p("s_add_u32 s%d, s%d, s%d" % (sWo, sWo, sT0))
    p("s_lshl_b32 s%d, s%d, 12" % (sM, sW))
    def dma_stage(s):
        out = []
        slot = s % 4
        for ii in range(4):
            out.append(("s_add_u32 m0, s%d, %d" % (sM, slot * 32768 + ii * 1024), None))
            out.append(("buffer_load_dwordx4 v%d, s[%d:%d], s%d offen lds" % (vX + ii, Q_, Q_ + 3, sXo), "st%d" % s))
        for ii in range(4):
            out.append(("s_add_u32 m0, s%d, %d" % (sM, slot * 32768 + 16384 + ii * 1024), None))
            out.append(("buffer_load_dwordx4 v%d, s[%d:%d], s%d offen lds" % (vWd + ii, W1_, W1_ + 3, sWo), "st%d" % s))
        out.append(("s_add_u32 s%d, s%d, 128" % (sXo, sXo), None))
        out.append(("s_add_u32 s%d, s%d, %d" % (sWo, sWo, 64 * 3584), None))
        return out
    for s in range(3):
        for t, tag in dma_stage(s): p(t, tag)
    vCS = 128
    p("v_and_b32 v10, 127, v0")
    p("v_lshlrev_b32 v11, 2, v10")
    p("s_lshl_b32 s%d, s%d, 9" % (sT0, sFT))
    for i in range(16):
        p("buffer_load_dword v%d, v11, s[%d:%d], s%d offen" % (vCS + i, CSP_, CSP_ + 3, sT0), "tab")
        if i < 15: p("s_add_u32 s%d, s%d, %d" % (sT0, sT0, 1792 * 4))
    p("v_lshlrev_b32 v12, 1, v10")
    p("s_lshl_b32 s%d, s%d, 8" % (sT0, sFT))
    p("buffer_load_ushort v%d, v12, s[%d:%d], s%d offen" % (vCS + 16, B1_, B1_ + 3, sT0), "tab")
    vST = 180
    p("s_lshr_b32 s%d, s%d, 1" % (sT1, sW))
    p("s_lshl_b32 s%d, s%d, 6" % (sT1, sT1))
    p("s_lshl_b32 s%d, s%d, 7" % (sT0, sRB))
    p("s_add_u32 s%d, s%d, s%d" % (sT0, sT0, sT1))
    p("s_lshl_b32 s%d, s%d, 3" % (sT0, sT0))
    p("v_and_b32 v12, 31, v1")
    p("v_lshlrev_b32 v12, 3, v12")
    p("buffer_load_dwordx2 %s, v12, s[%d:%d], s%d offen" % (vr(vST, 2), ST_, ST_ + 3, sT0), "tab")
    p("buffer_load_dwordx2 %s, v12, s[%d:%d], s%d offen offset:256" % (vr(vST + 2, 2), ST_, ST_ + 3, sT0), "tab")
    vXA = 16
    vWA = 24
    p("v_and_b32 v10, 31, v1")
    p("v_lshrrev_b32 v11, 5, v1")
    p("v_lshrrev_b32 v12, 1, v10"); p("v_and_b32 v12, 7, v12")
    p("v_xor_b32 v12, v12, v11")
    p("s_lshr_b32 s%d, s%d, 1" % (sT1, sW)); p("s_lshl_b32 s%d, s%d, 13" % (sT1, sT1))
    p("v_lshlrev_b32 v13, 7, v10"); p("v_add_u32 v13, s%d, v13" % sT1)
    for jj in range(4):
        p("v_xor_b32 v14, %d, v12" % (2 * jj))
        p("v_lshl_add_u32 v%d, v14, 4, v13" % (vXA + jj))
        p("v_add_u32 v%d, 0x10000, v%d" % (vXA + 4 + jj, vXA + jj))
    p("v_and_b32 v10, 15, v1")
    p("v_lshrrev_b32 v11, 4, v1")
    p("v_lshrrev_b32 v12, 1, v11")
    p("v_and_b32 v11, 1, v11")
    p("v_lshrrev_b32 v13, 2, v10")
    p("v_lshl_add_u32 v12, v12, 3, v13")
    p("v_lshlrev_b32 v12, 8, v12")
    p("v_and_b32 v14, 1, v10"); p("v_lshl_add_u32 v12, v14, 3, v12")
    p("v_add_u32 v12, 16384, v12")
    p("v_and_b32 v14, 3, v10"); p("v_lshrrev_b32 v14, 1, v14")
    p("v_lshl_add_u32 v14, v11, 1, v14")
    p("s_and_b32 s%d, s%d, 1" % (sT1, sW)); p("s_lshl_b32 s%d, s%d, 3" % (sT1, sT1))
    p("v_add_u32 v14, s%d, v14" % sT1)
    p("v_lshlrev_b32 v13, 2, v13")
    for fb in range(2):
        p("v_add_u32 v15, %d, v14" % (4 * fb))
        p("v_xor_b32 v15, v15, v13")
        p("v_lshl_add_u32 v%d, v15, 4, v12" % (vWA + fb))
        p("v_add_u32 v%d, 0x10000, v%d" % (vWA + 2 + fb, vWA + fb))
    ACC = 64
    for i in range(64): p("v_mov_b32 v%d, 0" % (ACC + i))
    FR = 32
    def reads(g):
        s, jj = g // 4, g % 4
        slot = s % 4; hi = slot >= 2; so = (slot & 1) * 32768
        f = FR + 16 * (g & 1); out = []
        for fb in range(2):
            for rr in range(2):
                out.append("ds_read_b64_tr_b16 %s, v%d offset:%d" % (vr(f + 4 * fb + 2 * rr, 2), vWA + fb + (2 if hi else 0), so + jj * 4096 + rr * 1024))
        for tb in range(2):
            out.append("ds_read_b128 %s, v%d offset:%d" % (vr(f + 8 + 4 * tb, 4), vXA + jj + (4 if hi else 0), so + tb * 4096))
        return out
    def mfmas(g):
        f = FR + 16 * (g & 1); out = []
        for fb in range(2):
            for tb in range(2):
                a = ACC + 16 * (2 * fb + tb)
                out.append("v_mfma_f32_32x32x16_bf16 %s, %s, %s, %s" % (vr(a, 16), vr(f + 4 * fb, 4), vr(f + 8 + 4 * tb, 4), vr(a, 16)))
        return out
    for s in range(8):
        p.wait_tag("st%d" % s)
        p("s_barrier")
        dm = dma_stage(s + 3) if s + 3 < 8 else []
        di = 0
        for jj in range(4):
            g = 4 * s + jj
            for t in reads(g): p(t)
            if g > 0:
                for t in mfmas(g - 1):
                    p(t)
                    for _ in range(2):
                        if di < len(dm): p(*dm[di]); di += 1
        while di < len(dm): p(*dm[di]); di += 1
        if s == 3:
            p.wait_tag("tab")
            for i in range(1, 16): p("v_add_f32 v%d, v%d, v%d" % (vCS, vCS, vCS + i))
            p("v_lshlrev_b32 v%d, 16, v%d" % (vCS + 16, vCS + 16))
            p("v_and_b32 v10, 127, v0"); p("v_lshlrev_b32 v10, 2, v10")
            p("v_add_u32 v10, 0x20000, v10")
            p("ds_write_b32 v10, v%d" % vCS)
            p("ds_write_b32 v10, v%d offset:512" % (vCS + 16))
    for t in mfmas(31): p(t)
    TBL = 128
    p("v_lshrrev_b32 v10, 5, v1")
    p("v_lshlrev_b32 v10, 4, v10")
    p("s_and_b32 s%d, s%d, 1" % (sT1, sW)); p("s_lshl_b32 s%d, s%d, 8" % (sT1, sT1))
    p("v_add_u32 v10, s%d, v10" % sT1)
    p("v_add_u32 v10, 0x20000, v10")
    p("s_lshr_b32 s%d, s%d, 1" % (sT1, sW))
    p("s_lshl_b32 s%d, s%d, 1" % (sT1, sT1))
    p("s_lshl_b32 s%d, s%d, 2" % (sT0, sRB))
    p("s_add_u32 s%d, s%d, s%d" % (sT0, sT0, sT1))
    p("s_mul_i32 s%d, s%d, 112" % (sT0, sT0))
    p("s_lshl_b32 s%d, s%d, 3" % (sT1, sFT))
    p("s_add_u32 s%d, s%d, s%d" % (sT0, sT0, sT1))
    p("s_and_b32 s%d, s%d, 1" % (sT1, sW)); p("s_lshl_b32 s%d, s%d, 2" % (sT1, sT1))
    p("s_add_u32 s%d, s%d, s%d" % (sT0, sT0, sT1))
    p("s_lshl_b32 s%d, s%d, 10" % (sT0, sT0))
    p("v_lshlrev_b32 v11, 4, v1")
    p("v_add_u32 v12, %d, v11" % (112 * 1024))
    for tb in range(2):
        p("v_mul_f32 v%d, v%d, v%d" % (vST + 2 * tb, vST + 2 * tb, vST + 2 * tb + 1))
    for fb in range(2):
        for rq in range(4):
            p("ds_read_b128 %s, v10 offset:%d" % (vr(TBL + 4 * rq, 4), fb * 128 + rq * 32))
            p("ds_read_b128 %s, v10 offset:%d" % (vr(TBL + 16 + 4 * rq, 4), 512 + fb * 128 + rq * 32))
        for tb in range(2):
            a = ACC + 16 * (2 * fb + tb); mu, rs = vST + 2 * tb, vST + 2 * tb + 1
            PK = 160 + 8 * tb
            for r_ in range(16):
                t = 176 + (r_ & 3)
                p("v_fma_f32 v%d, -v%d, v%d, v%d" % (t, mu, TBL + r_, TBL + 16 + r_))
                p("v_fma_f32 v%d, v%d, v%d, v%d" % (t, a + r_, rs, t))
                p("v_max_f32 v%d, 0, v%d" % (t, t))
                p("v_mul_f32 v%d, v%d, v%d" % (t, t, t))
                if r_ & 1:
                    p("v_cvt_pk_bf16_f32 v%d, v%d, v%d" % (PK + (r_ >> 1), t - 1, t))
            for q in range(2):
                p("buffer_store_dwordx4 %s, v%d, s[%d:%d], s%d offen offset:%d" % (vr(PK + 4 * q, 4), 11 + tb, HF_, HF_ + 3, sT0, (2 * fb + q) * 1024))

def gen_conv(p, name, sJ, sR, sW):
    sT0, sT1, sT2, sCH, sC2, sCB = 36, 37, 38, 39, 72, 73
    KVT_, SSM_, DD_, ZT_ = 40, 44, 48, 52
    srd(p, KVT_, P_WS, SZ_KVT, WS_KVT); srd(p, SSM_, P_SSM, D * S * 2); srd(p, DD_, P_DD, D * 2); srd(p, ZT_, P_WS, SZ_ZT, WS_ZT)
    p("s_lshr_b32 s%d, s%d, 1" % (sT0, sW))
    p("s_and_b32 s%d, s%d, 1" % (sC2, sW))
    p("s_lshl_b32 s%d, s%d, 6" % (sCH, sJ))
    p("s_lshl_b32 s%d, s%d, 1" % (sT1, sR))
    p("s_add_u32 s%d, s%d, s%d" % (sCH, sCH, sT1))
    p("s_add_u32 s%d, s%d, s%d" % (sCH, sCH, sT0))
    p("s_mul_i32 s%d, s%d, 21248" % (sCB, sT0))
    p("s_add_u32 s%d, s%d, 256" % (sCB, sCB))
    p("s_lshl_b32 s%d, s%d, 12" % (sT0, sCH))
    p("s_lshl_b32 s%d, s%d, 11" % (sT1, sC2))
    p("s_add_u32 s%d, s%d, s%d" % (sT0, sT0, sT1))
    p("v_lshlrev_b32 v2, 4, v1")
    R = 16
    for sg in range(2):
        for k in range(3):
            p("buffer_load_dwordx4 %s, v2, s[%d:%d], s%d offen offset:%d" % (vr(R + 12 * sg + 4 * k, 4), KVT_, KVT_ + 3, sT0, sg * 1024 + 4 * k))
    for sg in range(2):
        p("s_add_u32 s%d, s%d, s%d" % (sT2, sCB, sT1))
        p("s_add_u32 m0, s%d, %d" % (sT2, 16640 + 512 + sg * 1024))
        p("s_add_u32 s%d, s%d, %d" % (sT2, sT0, sg * 1024))
        p("buffer_load_dwordx4 v2, s[%d:%d], s%d offen lds" % (SSM_, SSM_ + 3, sT2), "kk")
    vDD = 3
    p("v_mov_b32 v4, 0")
    p("s_lshl_b32 s%d, s%d, 1" % (sT2, sCH))
    p("buffer_load_ushort v%d, v4, s[%d:%d], s%d offen" % (vDD, DD_, DD_ + 3, sT2))
    for i in range(4): p("v_mov_b32 v%d, 0" % (8 + i))
    p("v_lshrrev_b32 v5, 1, v1"); p("v_mul_u32_u24 v5, 4160, v5")
    p("v_and_b32 v6, 1, v1"); p("v_lshl_add_u32 v5, v6, 4, v5")
    p("v_add_u32 v5, 4096, v5")
    p("v_add_u32 v6, 16640, v2")
    p("s_cmp_eq_u32 s%d, 0" % sC2)
    p("s_cselect_b32 s74, 0xff, -1")
    p("s_cbranch_scc1 %s_z0" % name)
    p("v_mov_b32 v5, v6")
    p.label("%s_z0" % name)
    p("v_add_u32 v5, s%d, v5" % sCB)
    p("s_mov_b64 s[76:77], exec")
    p("s_mov_b32 exec_lo, s74")
    p("s_mov_b32 exec_hi, 0")
    p("ds_write_b128 v5, v[8:11]")
    p("s_mov_b64 exec, s[76:77]")
    p("s_lshl_b32 s75, s%d, 31" % sC2)
    p("s_mov_b32 s74, 0")
    last = R + 12
    for rg in (last + 7, last + 10, last + 11):
        p("v_cndmask_b32 v%d, v%d, v8, s[74:75]" % (rg, rg))
    p("s_lshl_b32 s%d, s%d, 11" % (sT1, sC2))
    p("s_add_u32 s%d, s%d, s%d" % (sT1, sT1, sCB))
    p("v_add_u32 v5, s%d, v2" % sT1)
    for sg in range(2):
        r0, r1, r2 = R + 12 * sg, R + 12 * sg + 4, R + 12 * sg + 8
        c1, c3 = 40 + 8 * sg, 44 + 8 * sg
        for i in range(4): p("v_alignbit_b32 v%d, v%d, v%d, 16" % (c1 + i, r1 + i, r0 + i))
        for i in range(4): p("v_alignbit_b32 v%d, v%d, v%d, 16" % (c3 + i, r2 + i, r1 + i))
        p("ds_write_b128 v5, %s offset:%d" % (vr(r0, 4), sg * 1024))
        p("ds_write_b128 v5, %s offset:%d" % (vr(c1, 4), 4160 + sg * 1024))
        p("ds_write_b128 v5, %s offset:%d" % (vr(r1, 4), 2 * 4160 + sg * 1024))
        p("ds_write_b128 v5, %s offset:%d" % (vr(c3, 4), 3 * 4160 + sg * 1024))
    vA, vB = 12, 13
    p("v_and_b32 v6, 15, v1")
    p("v_lshrrev_b32 v7, 4, v1")
    p("v_sub_u32 v14, 3, v6"); p("v_and_b32 v14, 3, v14")
    p("v_mul_u32_u24 v15, 4158, v14")
    p("v_lshlrev_b32 v14, 1, v6"); p("v_sub_u32 v15, v15, v14")
    p("v_lshl_add_u32 v15, v7, 4, v15")
    p("s_lshl_b32 s%d, s%d, 8" % (sT1, sC2))
    p("s_sub_u32 s%d, s%d, s%d" % (sT1, sCB, sT1))
    p("s_add_u32 s%d, s%d, 30" % (sT2, sT1))
    p("v_add_u32 v%d, s%d, v15" % (vA, sT2))
    p("v_lshlrev_b32 v15, 5, v6"); p("v_lshl_add_u32 v15, v7, 4, v15")
    p("s_add_u32 s%d, s%d, %d" % (sT2, sT1, 16640 + 32))
    p("v_add_u32 v%d, s%d, v15" % (vB, sT2))
    ACC = 64
    for i in range(32): p("v_mov_b32 v%d, 0" % (ACC + i))
    p.wait(vm=0, lg=0)
    p("s_barrier")
    FA, FB = 96, 160
    def reads(rl):
        st = rl & 1; out = []
        for x in range(8):
            oa = 64 * (63 - rl - 8 * x)
            out.append("ds_read_b64 %s, v%d offset:%d" % (vr(FA + 32 * st + 4 * x, 2), vA, oa))
            out.append("ds_read_b64 %s, v%d offset:%d" % (vr(FA + 32 * st + 4 * x + 2, 2), vA, oa + 8))
            out.append("ds_read_b128 %s, v%d offset:%d" % (vr(FB + 32 * st + 4 * x, 4), vB, 64 * (7 - rl + 8 * x)))
        return out
    def mf(rl):
        st = rl & 1; out = []
        pairs = sorted([(a, b) for a in range(8) for b in range(8) if a + b <= 7], key=lambda ab: (max(ab), ab))
        for a, b in pairs:
            out.append("v_mfma_f32_16x16x32_bf16 %s, %s, %s, %s" % (vr(ACC + 4 * (a + b), 4), vr(FA + 32 * st + 4 * a, 4), vr(FB + 32 * st + 4 * b, 4), vr(ACC + 4 * (a + b), 4)))
        return out
    for t in reads(0): p(t)
    for rl in range(4):
        nxt = reads(rl + 1) if rl < 3 else []
        for t in interleave(mf(rl), nxt, 24.0 / 36): p(t)
    RB = 256 + 2 * 21248
    p("s_lshl_b32 s%d, s%d, 12" % (sT1, sW))
    p("v_add_u32 v5, s%d, v2" % sT1); p("v_add_u32 v5, %d, v5" % RB)
    p("s_xor_b32 s%d, s%d, 1" % (sT1, sW)); p("s_lshl_b32 s%d, s%d, 12" % (sT1, sT1))
    p("v_add_u32 v14, s%d, v2" % sT1); p("v_add_u32 v14, %d, v14" % RB)
    p("v_lshlrev_b32 v15, 5, v6"); p("v_lshl_add_u32 v15, v7, 3, v15")
    p("s_lshl_b32 s%d, s%d, 11" % (sT1, sC2))
    p("s_sub_u32 s%d, s%d, s%d" % (sT2, sCB, sT1))
    p("s_add_u32 s%d, s%d, %d" % (sT2, sT2, 4088 - 1536))
    p("v_sub_u32 v16, s%d, v15" % sT2)
    p("s_lshl_b32 s%d, s%d, 12" % (sT2, sCH))
    p("s_add_u32 s%d, s%d, s%d" % (sT2, sT2, sT1))
    p("v_lshlrev_b32 v%d, 16, v%d" % (vDD, vDD))
    vm0, lg0 = list(p.vm), list(p.lg)
    p("s_cmp_eq_u32 s%d, 0" % sC2)
    p("s_cbranch_scc0 %s_hi" % name)
    for variant in range(2):
        keep = ACC + 16 * variant; give = ACC + 16 * (1 - variant)
        if variant == 1:
            p("s_branch %s_done" % name)
            p.label("%s_hi" % name)
            p.vm, p.lg = list(vm0), list(lg0)
            p("s_nop 7"); p("s_nop 1")
        for q in range(4): p("ds_write_b128 v5, %s offset:%d" % (vr(give + 4 * q, 4), q * 1024))
        p.wait(lg=0)
        p("s_barrier")
        for q in range(4):
            p("ds_read_b128 %s, v14 offset:%d" % (vr(20 + 4 * q, 4), q * 1024))
            p("ds_read_b64 %s, v16 offset:%d" % (vr(36 + 2 * q, 2), (3 - q) * 512))
        for q in range(4):
            a = keep + 4 * q; u = 36 + 2 * q
            for c in range(4): p("v_add_f32 v%d, v%d, v%d" % (a + c, a + c, 20 + 4 * q + c))
            for c, (src, hf) in enumerate(((u + 1, 1), (u + 1, 0), (u, 1), (u, 0))):
                unpack(p, 44 + c, src, hf)
                p("v_fmac_f32 v%d, v%d, v%d" % (a + c, 44 + c, vDD))
            p("v_cvt_pk_bf16_f32 v%d, v%d, v%d" % (48 + 2 * q, a, a + 1))
            p("v_cvt_pk_bf16_f32 v%d, v%d, v%d" % (49 + 2 * q, a + 2, a + 3))
            p("buffer_store_dwordx2 %s, v15, s[%d:%d], s%d offen offset:%d" % (vr(48 + 2 * q, 2), ZT_, ZT_ + 3, sT2, q * 512))
    p.label("%s_done" % name)

def gen_k1(name):
    p = Prog()
    sJ, sR, sW = 33, 34, 35
    p("s_cmp_ge_u32 s2, 256")
    p("s_cbranch_scc1 %s_end" % name)
    load_kernargs(p)
    p("v_and_b32 v1, 63, v0")
    p("v_lshrrev_b32 v2, 6, v0")
    p("s_and_b32 s%d, s2, 7" % sJ)
    p("s_lshr_b32 s%d, s2, 3" % sR)
    p("v_readfirstlane_b32 s%d, v2" % sW)
    p("s_waitcnt lgkmcnt(0)")
    p("s_cmp_ge_u32 s%d, 28" % sR)
    p("s_cbranch_scc1 %s_conv" % name)
    gen_g1(p, name, sJ, sR, sW)
    p.wait(lg=0)
    p("s_barrier")
    p.label("%s_conv" % name)
    gen_conv(p, name + "_c", sJ, sR, sW)
    p.label("%s_end" % name)
    p("s_endpgm")
    return p.text(), 256, 256
```

```python
from common import *
from k1 import unpack

def gen_g2(p, name, sJ, sR, sW, DEPTH=8):
    sT0, sT1, sT2, sTok, sCh, sHo, sWo, sM = 36, 37, 38, 39, 72, 73, 74, 75
    HF_, W2_, Q_, ZT_, ST_, B2_, OUT_ = 40, 44, 48, 52, 56, 60, 64
    srd(p, HF_, P_WS, SZ_HF, WS_HF); srd(p, W2_, P_W2, F * D * 2); srd(p, Q_, P_Q, S * D * 2)
    srd(p, ZT_, P_WS, SZ_ZT, WS_ZT); srd(p, ST_, P_WS, SZ_ST, WS_ST); srd(p, B2_, P_B2, D * 2); srd(p, OUT_, P_OUT, S * D * 2)
    RING = DEPTH * 2048
    RED = 4 * RING
    XT = RED + 65536; ZTT = XT + 8192; OT = ZTT + 8192
    assert OT + 8192 <= 163840
    p("s_lshl_b32 s%d, s%d, 8" % (sTok, sJ))
    p("s_lshr_b32 s%d, s%d, 3" % (sT0, sR)); p("s_lshl_b32 s%d, s%d, 6" % (sT0, sT0))
    p("s_add_u32 s%d, s%d, s%d" % (sTok, sTok, sT0))
    p("s_and_b32 s%d, s%d, 7" % (sCh, sR)); p("s_lshl_b32 s%d, s%d, 6" % (sCh, sCh))
    p("s_lshr_b32 s%d, s%d, 5" % (sT0, sTok)); p("s_mul_i32 s%d, s%d, 112" % (sT0, sT0))
    p("s_mul_i32 s%d, s%d, 28" % (sT1, sW))
    p("s_add_u32 s%d, s%d, s%d" % (sT0, sT0, sT1)); p("s_lshl_b32 s%d, s%d, 10" % (sHo, sT0))
    p("s_lshl_b32 s%d, s%d, 14" % (sWo, sT1)); p("s_lshl_b32 s%d, s%d, 1" % (sT0, sCh))
    p("s_add_u32 s%d, s%d, s%d" % (sWo, sWo, sT0))
    p("s_mul_i32 s%d, s%d, %d" % (sM, sW, RING))
    vH0, vH1, vD0, vD1 = 2, 3, 4, 5
    p("v_lshlrev_b32 v%d, 4, v1" % vH0)
    p("v_add_u32 v%d, %d, v%d" % (vH1, 112 * 1024, vH0))
    p("v_lshrrev_b32 v10, 3, v1")
    p("v_and_b32 v11, 7, v1")
    p("v_lshrrev_b32 v12, 1, v10"); p("v_and_b32 v12, 1, v12"); p("v_lshlrev_b32 v12, 2, v12")
    p("v_xor_b32 v12, v12, v11")
    p("v_lshlrev_b32 v12, 4, v12")
    p("v_lshl_add_u32 v%d, v10, 10, v12" % vD0)
    p("v_add_u32 v%d, 8192, v%d" % (vD1, vD0))
    HB = 0
    def loads(s):
        slot = s % DEPTH; out = []
        out.append(("s_add_u32 m0, s%d, %d" % (sM, slot * 2048), None))
        out.append(("buffer_load_dwordx4 v%d, s[%d:%d], s%d offen lds" % (vD0, W2_, W2_ + 3, sWo), "s%d" % s))
        out.append(("s_add_u32 m0, s%d, %d" % (sM, slot * 2048 + 1024), None))
        out.append(("buffer_load_dwordx4 v%d, s[%d:%d], s%d offen lds" % (vD1, W2_, W2_ + 3, sWo), "s%d" % s))
        out.append(("buffer_load_dwordx4 %s, v%d, s[%d:%d], s%d offen" % (ar(HB + 8 * slot, 4), vH0, HF_, HF_ + 3, sHo), "s%d" % s))
        out.append(("buffer_load_dwordx4 %s, v%d, s[%d:%d], s%d offen" % (ar(HB + 8 * slot + 4, 4), vH1, HF_, HF_ + 3, sHo), "s%d" % s))
        out.append(("s_add_u32 s%d, s%d, 16384" % (sWo, sWo), None))
        out.append(("s_add_u32 s%d, s%d, 1024" % (sHo, sHo), None))
        return out
    for s in range(DEPTH):
        for t, tag in loads(s): p(t, tag)
    p("v_lshrrev_b32 v12, 1, v10")
    for ii in range(2):
        p("v_add_u32 v13, %d, v12" % (4 * ii))
        p("v_xor_b32 v13, v13, v11")
        p("v_lshlrev_b32 v13, 4, v13")
        p("v_lshl_add_u32 v%d, v10, 10, v13" % (6 + ii))
    p("s_lshl_b32 s%d, s%d, 4" % (sT0, sW)); p("s_add_u32 s%d, s%d, s%d" % (sT0, sT0, sTok))
    p("s_lshl_b32 s%d, s%d, 10" % (sT0, sT0)); p("s_lshl_b32 s%d, s%d, 1" % (sT1, sCh))
    sXO = 76
    p("s_add_u32 s%d, s%d, s%d" % (sXO, sT0, sT1))
    p("s_lshl_b32 s%d, s%d, 11" % (sT2, sW))
    for ii in range(2):
        p("s_add_u32 m0, s%d, %d" % (sT2, XT + ii * 1024))
        p("s_add_u32 s%d, s%d, %d" % (sT0, sXO, ii * 8192))
        p("buffer_load_dwordx4 v%d, s[%d:%d], s%d offen lds" % (6 + ii, Q_, Q_ + 3, sT0), "ep")
    p("v_lshrrev_b32 v12, 1, v10"); p("v_and_b32 v12, 1, v12"); p("v_lshlrev_b32 v12, 2, v12")
    p("v_xor_b32 v12, v12, v11"); p("v_lshlrev_b32 v12, 4, v12")
    p("v_lshl_add_u32 v8, v10, 12, v12")
    p("s_lshl_b32 s%d, s%d, 4" % (sT0, sW)); p("s_add_u32 s%d, s%d, s%d" % (sT0, sT0, sCh))
    p("s_lshl_b32 s%d, s%d, 12" % (sT0, sT0)); p("s_lshl_b32 s%d, s%d, 1" % (sT1, sTok))
    p("s_add_u32 s%d, s%d, s%d" % (sT0, sT0, sT1))
    for ii in range(2):
        p("s_add_u32 m0, s%d, %d" % (sT2, ZTT + ii * 1024))
        p("buffer_load_dwordx4 v8, s[%d:%d], s%d offen lds" % (ZT_, ZT_ + 3, sT0), "ep")
        if ii == 0: p("s_add_u32 s%d, s%d, %d" % (sT0, sT0, 8 * 4096))
    vST, vB2 = 16, 20
    p("s_lshr_b32 s%d, s%d, 1" % (sT0, sW)); p("s_lshl_b32 s%d, s%d, 5" % (sT0, sT0))
    p("s_add_u32 s%d, s%d, s%d" % (sT0, sT0, sTok)); p("s_lshl_b32 s%d, s%d, 3" % (sT0, sT0))
    p("v_and_b32 v12, 31, v1"); p("v_lshlrev_b32 v13, 3, v12")
    p("buffer_load_dwordx2 %s, v13, s[%d:%d], s%d offen" % (vr(vST, 2), ST_, ST_ + 3, sT0), "ep")
    p("s_and_b32 s%d, s%d, 1" % (sT0, sW)); p("s_lshl_b32 s%d, s%d, 5" % (sT0, sT0))
    p("s_add_u32 s%d, s%d, s%d" % (sT0, sT0, sCh)); p("s_lshl_b32 s%d, s%d, 1" % (sT0, sT0))
    p("v_lshrrev_b32 v13, 5, v1"); p("v_lshlrev_b32 v13, 5, v13")
    p("buffer_load_dwordx4 %s, v13, s[%d:%d], s%d offen" % (vr(vB2, 4), B2_, B2_ + 3, sT0), "ep")
    p("buffer_load_dwordx4 %s, v13, s[%d:%d], s%d offen offset:16" % (vr(vB2 + 4, 4), B2_, B2_ + 3, sT0), "ep")
    vA = 28
    p("v_and_b32 v10, 15, v1")
    p("v_lshrrev_b32 v11, 4, v1")
    p("v_lshrrev_b32 v12, 1, v11")
    p("v_and_b32 v11, 1, v11")
    p("v_lshrrev_b32 v13, 2, v10")
    p("v_lshl_add_u32 v12, v12, 2, v13")
    p("v_lshlrev_b32 v12, 7, v12")
    p("v_and_b32 v14, 3, v10")
    p("v_lshrrev_b32 v15, 1, v14"); p("v_lshl_add_u32 v12, v15, 3, v12")
    p("v_and_b32 v14, 1, v14"); p("v_lshl_add_u32 v14, v14, 1, v11")
    p("v_lshrrev_b32 v15, 3, v10"); p("v_lshlrev_b32 v15, 2, v15")
    p("v_add_u32 v12, s%d, v12" % sM)
    for cb in range(2):
        p("v_add_u32 v13, %d, v14" % (4 * cb))
        p("v_xor_b32 v13, v13, v15")
        p("v_lshl_add_u32 v%d, v13, 4, v12" % (vA + cb))
    ACC = 64
    for i in range(64): p("v_mov_b32 v%d, 0" % (ACC + i))
    FR = 32
    def reads(s):
        slot = s % DEPTH; f = FR + 8 * (s & 1); out = []
        for cb in range(2):
            for rr in range(2):
                out.append("ds_read_b64_tr_b16 %s, v%d offset:%d" % (vr(f + 4 * cb + 2 * rr, 2), vA + cb, slot * 2048 + rr * 1024))
        return out
    def mfmas(s):
        slot = s % DEPTH; f = FR + 8 * (s & 1); out = []
        for cb in range(2):
            for tb in range(2):
                a = ACC + 16 * (2 * tb + cb)
                out.append("v_mfma_f32_32x32x16_bf16 %s, %s, %s, %s" % (vr(a, 16), vr(f + 4 * cb, 4), ar(HB + 8 * slot + 4 * tb, 4), vr(a, 16)))
        return out
    NS = 28
    p.wait_tag("s0")
    for t in reads(0): p(t)
    for s in range(NS):
        if s + 1 < NS:
            p.wait_tag("s%d" % (s + 1))
            for t in reads(s + 1): p(t)
        for t in mfmas(s): p(t)
        if s + DEPTH < NS:
            for t, tag in loads(s + DEPTH): p(t, tag)
    p("s_lshl_b32 s%d, s%d, 14" % (sT0, sW))
    p("v_add_u32 v10, s%d, v%d" % (sT0, vH0)); p("v_add_u32 v10, %d, v10" % RED)
    for q in range(4):
        for rq in range(4):
            p("ds_write_b128 v10, %s offset:%d" % (vr(ACC + 16 * q + 4 * rq, 4), q * 4096 + rq * 1024))
    p.wait_tag("ep")
    p.wait(lg=0)
    p("s_barrier")
    p("s_lshl_b32 s%d, s%d, 12" % (sT0, sW))
    p("v_add_u32 v10, s%d, v%d" % (sT0, vH0)); p("v_add_u32 v10, %d, v10" % RED)
    for src in range(4):
        for rq in range(4):
            p("ds_read_b128 %s, v10 offset:%d" % (vr(ACC + 16 * src + 4 * rq, 4), src * 16384 + rq * 1024))
    XR, ZR = 128, 136
    p("v_and_b32 v11, 31, v1"); p("v_lshrrev_b32 v12, 5, v1")
    p("s_lshr_b32 s%d, s%d, 1" % (sT0, sW)); p("s_lshl_b32 s%d, s%d, 5" % (sT0, sT0))
    p("v_add_u32 v11, s%d, v11" % sT0)
    p("v_lshrrev_b32 v13, 1, v11"); p("v_and_b32 v13, 7, v13")
    p("s_and_b32 s%d, s%d, 1" % (sT1, sW)); p("s_lshl_b32 s%d, s%d, 2" % (sT1, sT1))
    p("v_lshlrev_b32 v12, 1, v12"); p("v_add_u32 v12, s%d, v12" % sT1)
    p("v_lshlrev_b32 v11, 7, v11")
    p("v_xor_b32 v14, v12, v13"); p("v_lshl_add_u32 v14, v14, 4, v11")
    p("v_add_u32 v12, 1, v12"); p("v_xor_b32 v15, v12, v13"); p("v_lshl_add_u32 v15, v15, 4, v11")
    p("v_add_u32 v6, %d, v14" % XT); p("v_add_u32 v7, %d, v15" % XT)
    p("ds_read_b128 %s, v6" % vr(XR, 4)); p("ds_read_b128 %s, v7" % vr(XR + 4, 4))
    p("v_and_b32 v10, 15, v1"); p("v_lshrrev_b32 v11, 4, v1")
    p("v_lshrrev_b32 v12, 1, v11"); p("v_and_b32 v11, 1, v11")
    p("v_lshrrev_b32 v13, 2, v10")
    p("v_lshl_add_u32 v12, v12, 4, v13")
    p("s_and_b32 s%d, s%d, 1" % (sT1, sW)); p("s_lshl_b32 s%d, s%d, 5" % (sT1, sT1))
    p("v_add_u32 v12, s%d, v12" % sT1)
    p("v_lshlrev_b32 v12, 7, v12")
    p("v_and_b32 v13, 1, v10"); p("v_lshl_add_u32 v12, v13, 3, v12")
    p("v_and_b32 v13, 3, v10"); p("v_lshrrev_b32 v13, 1, v13"); p("v_lshl_add_u32 v13, v11, 1, v13")
    p("s_lshr_b32 s%d, s%d, 1" % (sT1, sW)); p("s_lshl_b32 s%d, s%d, 2" % (sT1, sT1))
    p("v_add_u32 v13, s%d, v13" % sT1)
    p("v_lshrrev_b32 v8, 3, v10"); p("v_lshlrev_b32 v8, 2, v8")
    p("v_xor_b32 v13, v13, v8")
    p("v_lshl_add_u32 v12, v13, 4, v12"); p("v_add_u32 v12, %d, v12" % ZTT)
    for m in range(4):
        p("ds_read_b64_tr_b16 %s, v12 offset:%d" % (vr(ZR + 2 * m, 2), m * 512))
    for r_ in range(16):
        p("v_add_f32 v%d, v%d, v%d" % (ACC + r_, ACC + r_, ACC + 16 + r_))
        p("v_add_f32 v%d, v%d, v%d" % (ACC + 32 + r_, ACC + 32 + r_, ACC + 48 + r_))
        p("v_add_f32 v%d, v%d, v%d" % (ACC + r_, ACC + r_, ACC + 32 + r_))
    mu, rs = vST, vST + 1
    p("v_mul_f32 v%d, v%d, v%d" % (mu, mu, rs))
    PK = 144
    for r_ in range(16):
        x, z, b, t = 30, 31, 32, 33 + (r_ & 1)
        unpack(p, x, XR + (r_ >> 1), r_ & 1)
        unpack(p, z, ZR + (r_ >> 1), r_ & 1)
        unpack(p, b, vB2 + (r_ >> 1), r_ & 1)
        p("v_fma_f32 v%d, v%d, v%d, -v%d" % (t, x, rs, mu))
        p("v_fma_f32 v%d, v%d, v%d, v%d" % (t, t, z, x))
        p("v_add_f32 v%d, v%d, v%d" % (b, b, ACC + r_))
        p("v_add_f32 v%d, v%d, v%d" % (t, t, b))
        if r_ & 1: p("v_cvt_pk_bf16_f32 v%d, v33, v34" % (PK + (r_ >> 1)))
    p("v_add_u32 v6, %d, v14" % OT); p("v_add_u32 v7, %d, v15" % OT)
    p("ds_write_b128 v6, %s" % vr(PK, 4)); p("ds_write_b128 v7, %s" % vr(PK + 4, 4))
    p.wait(lg=0)
    p("s_barrier")
    p("s_lshl_b32 s%d, s%d, 11" % (sT2, sW))
    p("v_add_u32 v10, s%d, v%d" % (sT2, vH0)); p("v_add_u32 v10, %d, v10" % OT)
    p("ds_read_b128 v[16:19], v10"); p("ds_read_b128 v[20:23], v10 offset:1024")
    p("v_lshrrev_b32 v10, 3, v1"); p("v_and_b32 v11, 7, v1"); p("v_lshrrev_b32 v12, 1, v10")
    for ii in range(2):
        p("v_add_u32 v13, %d, v12" % (4 * ii))
        p("v_xor_b32 v13, v13, v11")
        p("v_lshlrev_b32 v13, 4, v13")
        p("v_lshl_add_u32 v%d, v10, 10, v13" % (6 + ii))
    p("v_add_u32 v7, 8192, v7")
    p("buffer_store_dwordx4 v[16:19], v6, s[%d:%d], s%d offen" % (OUT_, OUT_ + 3, sXO))
    p("buffer_store_dwordx4 v[20:23], v7, s[%d:%d], s%d offen" % (OUT_, OUT_ + 3, sXO))

def gen_k2(name):
    p = Prog()
    sJ, sR, sW = 33, 34, 35
    p("s_cmp_ge_u32 s2, 256")
    p("s_cbranch_scc1 %s_end" % name)
    load_kernargs(p)
    p("v_and_b32 v1, 63, v0")
    p("v_lshrrev_b32 v2, 6, v0")
    p("s_and_b32 s%d, s2, 7" % sJ)
    p("s_lshr_b32 s%d, s2, 3" % sR)
    p("v_readfirstlane_b32 s%d, v2" % sW)
    p("s_waitcnt lgkmcnt(0)")
    gen_g2(p, name, sJ, sR, sW)
    p.label("%s_end" % name)
    p("s_endpgm")
    return p.text(), 512, 256
```

```python
import sys
from common import *
import k0, k1, k2
NAME = "parallel_sum__ssm_conv_h3__dense_activation_squared_relu__prompt"
def header():
    ref = open('cdna_kernels/%s.s.ref' % NAME).read().split('\n')
    out = []
    for l in ref:
        if l.startswith('; @launch') or l.startswith('; Override') or l.startswith('; grid='): break
        out.append(l)
    return '\n'.join(out) + '\n'
def build_v1():
    ks = [("k0_kernel", k0.gen_k0, 16384 + 512), ("k1_kernel", k1.gen_k1, 133120), ("k2_kernel", k2.gen_k2, 155648)]
    txt = header()
    for n, g, lds in ks: txt += "; @launch kernel=%s grid=(256,1,1) block=(256,1,1) lds=%d\n" % (n, lds)
    txt += '.amdgcn_target "amdgcn-amd-amdhsa--gfx950"\n.text\n'
    descs = ''
    for n, g, lds in ks:
        body, vg, acc = g(n)
        txt += kernel_text(n, body)
        descs += kernel_desc(n, vg, acc)
    txt += '.section .rodata,"a"\n' + descs
    return txt
if __name__ == '__main__':
    out = sys.argv[1] if len(sys.argv) > 1 else 'cdna_kernels/%s.s' % NAME
    open(out, 'w').write(build_v1())
    print("wrote", out)
```

```python
from asmlib import *
S, D, F = 2048, 512, 1792
WS_HF  = 0
SZ_HF  = 64 * 112 * 1024
WS_KVT = 0x800000
SZ_KVT = 512 * 4096
WS_ZT  = 0xA00000
SZ_ZT  = 512 * 4096
WS_ST  = 0xC00000
SZ_ST  = 2048 * 8
WS_CSP = 0xC10000
SZ_CSP = 16 * 1792 * 4
P_Q, P_K, P_V, P_SK, P_SSM, P_DD, P_BX, P_W1 = 4, 6, 8, 10, 12, 14, 16, 18
P_B1, P_W2, P_B2, P_OUT, P_DBG, P_WS = 20, 22, 24, 26, 28, 30

def load_kernargs(p):
    p("s_load_dwordx16 s[4:19], s[0:1], 0")
    p("s_load_dwordx8 s[20:27], s[0:1], 64")
    p("s_load_dwordx4 s[28:31], s[0:1], 96")

def srd(p, dst, ptr, size, off=0):
    if off:
        p("s_add_u32 s%d, s%d, 0x%x" % (dst, ptr, off))
        p("s_addc_u32 s%d, s%d, 0" % (dst + 1, ptr + 1))
    else:
        p("s_mov_b32 s%d, s%d" % (dst, ptr))
        p("s_mov_b32 s%d, s%d" % (dst + 1, ptr + 1))
    p("s_mov_b32 s%d, 0x%x" % (dst + 2, size))
    p("s_mov_b32 s%d, 0x20000" % (dst + 3))

def kernel_text(name, body):
    return ".globl %s\n.p2align 8\n.type %s,@function\n%s:\n%s" % (name, name, name, body)

def kernel_desc(name, vgpr, accum, sgpr=102):
    return (".p2align 6\n.amdhsa_kernel %s\n  .amdhsa_next_free_vgpr %d\n  .amdhsa_next_free_sgpr %d\n  .amdhsa_accum_offset %d\n"
            "  .amdhsa_group_segment_fixed_size 0\n  .amdhsa_kernarg_size 112\n  .amdhsa_user_sgpr_count 2\n"
            "  .amdhsa_user_sgpr_kernarg_segment_ptr 1\n  .amdhsa_system_sgpr_workgroup_id_x 1\n"
            "  .amdhsa_float_denorm_mode_32 3\n"
            ".end_amdhsa_kernel\n") % (name, vgpr, sgpr, accum)

PROF = False
WS_PROF = 0xD00000
_stamp_n = [0]
def prof_reset(): _stamp_n[0] = 0
def stamp(p, real=False):
    import common
    if not common.PROF: return
    i = _stamp_n[0]; _stamp_n[0] += 1
    assert i < 10
    p("%s s[%d:%d]" % ("s_memrealtime" if real else "s_memtime", 80 + 2 * i, 81 + 2 * i))
    p.wait(lg=0)
def prof_flush(p, kidx, sW):
    import common
    if not common.PROF: return
    n = _stamp_n[0]
    srd(p, 4, P_WS, 0x40000, WS_PROF)
    p("s_lshl_b32 s78, s2, 2"); p("s_add_u32 s78, s78, s%d" % sW); p("s_lshl_b32 s78, s78, 6")
    p("s_add_u32 s78, s78, %d" % (kidx * 65536))
    p("v_mov_b32 v2, 0")
    for i in range(n):
        p("v_mov_b32 v3, s%d" % (80 + 2 * i))
        p("s_mov_b64 s[76:77], exec"); p("s_mov_b64 exec, 1")
        p("buffer_store_dword v3, v2, s[4:7], s78 offen offset:%d" % (4 * i))
        p("s_mov_b64 exec, s[76:77]")
```

```python
from common import *

def gen_k0(name):
    p = Prog()
    sJ, sR, sW, sT0, sT1, sT2, sT3 = 33, 34, 35, 36, 37, 38, 39
    K_, V_, SK_, Q_, W1_, KVT_, ST_, CSP_ = 40, 44, 48, 52, 56, 60, 64, 68
    p("s_cmp_ge_u32 s2, 256")
    p("s_cbranch_scc1 %s_end" % name)
    prof_reset(); stamp(p, True); stamp(p)
    load_kernargs(p)
    p("v_and_b32 v1, 63, v0")
    p("v_lshrrev_b32 v2, 6, v0")
    p("s_and_b32 s%d, s2, 7" % sJ)
    p("s_lshr_b32 s%d, s2, 3" % sR)
    p("v_readfirstlane_b32 s%d, v2" % sW)
    p("s_waitcnt lgkmcnt(0)")
    srd(p, K_, P_K, S * D * 2); srd(p, V_, P_V, S * D * 2); srd(p, SK_, P_SK, D * 8)
    srd(p, Q_, P_Q, S * D * 2); srd(p, W1_, P_W1, D * F * 2)
    srd(p, KVT_, P_WS, SZ_KVT, WS_KVT); srd(p, ST_, P_WS, SZ_ST, WS_ST); srd(p, CSP_, P_WS, SZ_CSP, WS_CSP)
    vL, vC, vRR = 1, 3, 4
    p("v_and_b32 v%d, 7, v1" % vC)
    p("v_lshrrev_b32 v%d, 3, v1" % vRR)
    p("s_lshl_b32 s%d, s%d, 6" % (sT0, sR))
    p("s_lshl_b32 s%d, s%d, 4" % (sT1, sW))
    p("s_add_u32 s%d, s%d, s%d" % (sT0, sT0, sT1))
    p("s_lshl_b32 s%d, s%d, 10" % (sT0, sT0))
    p("s_lshl_b32 s%d, s%d, 7" % (sT1, sJ))
    p("s_add_u32 s%d, s%d, s%d" % (sT0, sT0, sT1))
    vA = 5
    p("v_lshlrev_b32 v%d, 11, v%d" % (vA, vRR))
    p("v_lshl_add_u32 v%d, v%d, 4, v%d" % (vA, vC, vA))
    p("v_add_u32 v%d, s%d, v%d" % (vA, sT0, vA))
    KR = 16
    VR = 36
    SKR = 44
    for i in range(5):
        p("v_add_u32 v%d, %d, v%d" % (6 + i, (i - 3) * 1024, vA))
    for i in range(5):
        p("buffer_load_dwordx4 %s, v%d, s[%d:%d], 0 offen" % (vr(KR + 4 * i, 4), 6 + i, K_, K_ + 3))
    p("buffer_load_dwordx4 %s, v%d, s[%d:%d], 0 offen" % (vr(VR, 4), vA, V_, V_ + 3))
    p("buffer_load_dwordx4 %s, v%d, s[%d:%d], 0 offen offset:1024" % (vr(VR + 4, 4), vA, V_, V_ + 3))
    p("s_lshl_b32 s%d, s%d, 9" % (sT1, sJ))
    p("v_lshlrev_b32 v11, 6, v%d" % vC)
    p("v_add_u32 v11, s%d, v11" % sT1)
    for i in range(4):
        p("buffer_load_dwordx4 %s, v11, s[%d:%d], 0 offen offset:%d" % (vr(SKR + 4 * i, 4), SK_, SK_ + 3, 16 * i))
    p("s_lshr_b32 s%d, s%d, 1" % (sT0, sJ))
    p("s_lshl_b32 s%d, s%d, 9" % (sT0, sT0))
    p("s_and_b32 s%d, s%d, 1" % (sT1, sJ))
    p("s_lshl_b32 s%d, s%d, 5" % (sT1, sT1))
    p("s_add_u32 s%d, s%d, s%d" % (sT1, sT1, sR))
    p("s_lshl_b32 s%d, s%d, 3" % (sT1, sT1))
    p("s_add_u32 s%d, s%d, s%d" % (sT0, sT0, sT1))
    p("s_lshl_b32 s%d, s%d, 1" % (sT1, sW))
    sROW = 72
    p("s_add_u32 s%d, s%d, s%d" % (sROW, sT0, sT1))
    p("s_lshl_b32 s%d, s%d, 10" % (sT0, sROW))
    p("v_lshlrev_b32 v12, 4, v1")
    XR = 60
    p("buffer_load_dwordx4 %s, v12, s[%d:%d], s%d offen" % (vr(XR, 4), Q_, Q_ + 3, sT0))
    p("buffer_load_dwordx4 %s, v12, s[%d:%d], s%d offen offset:1024" % (vr(XR + 4, 4), Q_, Q_ + 3, sT0))
    sDR, sFT = 73, 74
    p("s_mul_i32 s%d, s%d, 37" % (sT0, sR))
    p("s_lshr_b32 s%d, s%d, 8" % (sT0, sT0))
    p("s_mul_i32 s%d, s%d, 7" % (sT1, sT0))
    p("s_sub_u32 s%d, s%d, s%d" % (sT1, sR, sT1))
    p("s_lshr_b32 s%d, s%d, 1" % (sT2, sJ))
    p("s_lshl_b32 s%d, s%d, 2" % (sT2, sT2))
    p("s_add_u32 s%d, s%d, s%d" % (sDR, sT2, sT0))
    p("s_and_b32 s%d, s%d, 1" % (sT2, sJ))
    p("s_mul_i32 s%d, s%d, 7" % (sT2, sT2))
    p("s_add_u32 s%d, s%d, s%d" % (sFT, sT2, sT1))
    p("s_lshl_b32 s%d, s%d, 5" % (sT0, sDR))
    p("s_lshl_b32 s%d, s%d, 3" % (sT1, sW))
    p("s_add_u32 s%d, s%d, s%d" % (sT0, sT0, sT1))
    p("s_mul_i32 s%d, s%d, 3584" % (sT0, sT0))
    p("s_lshl_b32 s%d, s%d, 8" % (sT1, sFT))
    p("s_add_u32 s%d, s%d, s%d" % (sT0, sT0, sT1))
    p("v_lshrrev_b32 v13, 4, v1")
    p("v_mul_u32_u24 v13, 3584, v13")
    p("v_and_b32 v14, 15, v1")
    p("v_lshl_add_u32 v13, v14, 4, v13")
    CR = 68
    p("buffer_load_dwordx4 %s, v13, s[%d:%d], s%d offen" % (vr(CR, 4), W1_, W1_ + 3, sT0))
    p("s_add_u32 s%d, s%d, %d" % (sT1, sT0, 4 * 3584))
    p("buffer_load_dwordx4 %s, v13, s[%d:%d], s%d offen" % (vr(CR + 4, 4), W1_, W1_ + 3, sT1))
    stamp(p)
    p.wait(vm=0) if __import__('common').PROF else None
    stamp(p)
    T = 80
    RES = 100
    def unpack(dst, src, half):
        if half == 0: p("v_lshlrev_b32 v%d, 16, v%d" % (dst, src))
        else: p("v_and_b32 v%d, 0xffff0000, v%d" % (dst, src))
    for e in range(8):
        dw, hf = e >> 1, e & 1
        for i in range(5): unpack(T + i, KR + 4 * i + dw, hf)
        unpack(T + 5, VR + dw, hf); unpack(T + 6, VR + 4 + dw, hf)
        unpack(T + 7, SKR + 2 * e, 0); unpack(T + 8, SKR + 2 * e, 1)
        unpack(T + 9, SKR + 2 * e + 1, 0); unpack(T + 10, SKR + 2 * e + 1, 1)
        p("v_mul_f32 v%d, v%d, v%d" % (T + 11, T + 3, T + 7))
        p("v_mul_f32 v%d, v%d, v%d" % (T + 12, T + 4, T + 7))
        p("v_fmac_f32 v%d, v%d, v%d" % (T + 11, T + 2, T + 8))
        p("v_fmac_f32 v%d, v%d, v%d" % (T + 12, T + 3, T + 8))
        p("v_fmac_f32 v%d, v%d, v%d" % (T + 11, T + 1, T + 9))
        p("v_fmac_f32 v%d, v%d, v%d" % (T + 12, T + 2, T + 9))
        p("v_fmac_f32 v%d, v%d, v%d" % (T + 11, T + 0, T + 10))
        p("v_fmac_f32 v%d, v%d, v%d" % (T + 12, T + 1, T + 10))
        p("v_mul_f32 v%d, v%d, v%d" % (T + 11, T + 11, T + 5))
        p("v_mul_f32 v%d, v%d, v%d" % (T + 12, T + 12, T + 6))
        p("v_cvt_pk_bf16_f32 v%d, v%d, v%d" % (RES + e, T + 12, T + 11))
    p("s_lshl_b32 s%d, s%d, 3" % (sT0, sW))
    p("s_sub_u32 s%d, 31, s%d" % (sT0, sT0))
    p("v_sub_u32 v15, s%d, v%d" % (sT0, vRR))
    p("v_lshrrev_b32 v6, 2, v15")
    p("v_xor_b32 v6, v6, v%d" % vC)
    p("v_and_b32 v15, 3, v15")
    p("v_lshlrev_b32 v15, 2, v15")
    p("v_lshl_add_u32 v15, v6, 4, v15")
    p("v_lshl_add_u32 v15, v%d, 10, v15" % vC)
    for e in range(8):
        p("ds_write_b32 v15, v%d offset:%d" % (RES + e, e * 128))
    ON = 75
    p("s_mov_b32 s%d, 0x3f803f80" % ON)
    for rr in range(2):
        sS, sQ = T + 2 * rr, T + 2 * rr + 1
        p("v_mov_b32 v%d, 0" % sS); p("v_mov_b32 v%d, 0" % sQ)
    for i in range(4):
        for rr in range(2):
            sS, sQ = T + 2 * rr, T + 2 * rr + 1
            p("v_dot2_f32_bf16 v%d, v%d, s%d, v%d" % (sS, XR + 4 * rr + i, ON, sS))
            p("v_dot2_f32_bf16 v%d, v%d, v%d, v%d" % (sQ, XR + 4 * rr + i, XR + 4 * rr + i, sQ))
    for ctrl in ("row_shr:1 row_mask:0xf", "row_shr:2 row_mask:0xf", "row_shr:4 row_mask:0xf", "row_shr:8 row_mask:0xf",
                 "row_bcast:15 row_mask:0xa", "row_bcast:31 row_mask:0xc"):
        for q in range(4):
            p("v_add_f32_dpp v%d, v%d, v%d %s bank_mask:0xf" % (T + q, T + q, T + q, ctrl))
    for rr in range(2):
        sS, sQ = T + 2 * rr, T + 2 * rr + 1
        p("v_mul_f32 v%d, 0x3b000000, v%d" % (sS, sS))
        p("v_mul_f32 v%d, 0x3b000000, v%d" % (sQ, sQ))
        p("v_fma_f32 v%d, -v%d, v%d, v%d" % (sQ, sS, sS, sQ))
        p("v_max_f32 v%d, 0, v%d" % (sQ, sQ))
        p("v_add_f32 v%d, 0x3727c5ac, v%d" % (sQ, sQ))
        p("v_rsq_f32 v%d, v%d" % (sQ, sQ))
    p("s_lshl_b32 s%d, s%d, 3" % (sT0, sROW))
    p("v_mov_b32 v6, s%d" % sT0)
    p("s_mov_b64 s[76:77], exec")
    p("s_mov_b32 exec_lo, 0")
    p("s_mov_b32 exec_hi, 0x80000000")
    p("buffer_store_dwordx4 %s, v6, s[%d:%d], 0 offen" % (vr(T, 4), ST_, ST_ + 3))
    p("s_mov_b64 exec, s[76:77]")
    U = T + 8
    for i in range(4):
        for hf in range(2):
            unpack(U + 2 * i + hf, CR + i, hf)
            unpack(U + 8, CR + 4 + i, hf)
            p("v_add_f32 v%d, v%d, v%d" % (U + 2 * i + hf, U + 2 * i + hf, U + 8))
    p("v_lshrrev_b32 v6, 4, v1")
    p("s_lshl_b32 s%d, s%d, 2" % (sT0, sW))
    p("v_add_u32 v6, s%d, v6" % sT0)
    p("v_lshlrev_b32 v6, 9, v6")
    p("v_lshl_add_u32 v6, v14, 5, v6")
    p("ds_write_b128 v6, %s offset:8192" % vr(U, 4))
    p("ds_write_b128 v6, %s offset:8208" % vr(U + 4, 4))
    p.wait(lg=0)
    p("s_barrier")
    p("s_lshl_b32 s%d, s%d, 4" % (sT0, sW))
    p("v_add_u32 v6, s%d, v%d" % (sT0, vRR))
    p("v_lshlrev_b32 v7, 7, v6")
    p("v_lshl_add_u32 v7, v%d, 4, v7" % vC)
    p("ds_read_b128 v[16:19], v7")
    p("ds_read_b128 v[20:23], v7 offset:1024")
    p("s_lshl_b32 s%d, s%d, 18" % (sT0, sJ))
    p("s_lshl_b32 s%d, s%d, 7" % (sT1, sR))
    p("s_sub_u32 s%d, s%d, s%d" % (sT0, sT0, sT1))
    p("s_add_u32 s%d, s%d, 3968" % (sT0, sT0))
    p("s_lshl_b32 s%d, s%d, 1" % (sT1, sW))
    p("v_lshlrev_b32 v8, 12, v6")
    p("v_xor_b32 v9, s%d, v%d" % (sT1, vC))
    p("v_lshl_add_u32 v9, v9, 4, v8")
    p("s_add_u32 s%d, s%d, 1" % (sT1, sT1))
    p("v_xor_b32 v10, s%d, v%d" % (sT1, vC))
    p("v_lshl_add_u32 v10, v10, 4, v8")
    p("v_add_u32 v10, 0x8000, v10")
    p("buffer_store_dwordx4 v[16:19], v9, s[%d:%d], s%d offen" % (KVT_, KVT_ + 3, sT0))
    p("buffer_store_dwordx4 v[20:23], v10, s[%d:%d], s%d offen" % (KVT_, KVT_ + 3, sT0))
    stamp(p)
    p.wait(vm=0) if __import__('common').PROF else None
    stamp(p); stamp(p, True)
    prof_flush(p, 0, sW)
    p("s_cmp_ge_u32 s%d, 28" % sR)
    p("s_cbranch_scc1 %s_end" % name)
    p("s_cmp_ge_u32 s%d, 2" % sW)
    p("s_cbranch_scc1 %s_end" % name)
    p("v_lshlrev_b32 v6, 2, v0")
    for i in range(16):
        p("ds_read_b32 v%d, v6 offset:%d" % (24 + i, 8192 + i * 512))
    for i in range(1, 16):
        p("v_add_f32 v24, v24, v%d" % (24 + i))
    p("s_mul_i32 s%d, s%d, %d" % (sT0, sDR, 1792 * 4))
    p("s_lshl_b32 s%d, s%d, 9" % (sT1, sFT))
    p("s_add_u32 s%d, s%d, s%d" % (sT0, sT0, sT1))
    p("buffer_store_dword v24, v6, s[%d:%d], s%d offen" % (CSP_, CSP_ + 3, sT0))
    p.label("%s_end" % name)
    p("s_endpgm")
    return p.text(), 128, 128
```

```python
from common import *

def unpack(p, dst, src, half):
    if half == 0: p("v_lshlrev_b32 v%d, 16, v%d" % (dst, src))
    else: p("v_and_b32 v%d, 0xffff0000, v%d" % (dst, src))

def gen_g1(p, name, sJ, sR, sW):
    sT0, sT1, sT2, sRB, sFT, sXo, sWo, sM = 36, 37, 38, 39, 72, 73, 74, 75
    Q_, W1_, B1_, ST_, CSP_, HF_ = 40, 44, 48, 52, 56, 60
    srd(p, Q_, P_Q, S * D * 2); srd(p, W1_, P_W1, D * F * 2); srd(p, B1_, P_B1, F * 2)
    srd(p, ST_, P_WS, SZ_ST, WS_ST); srd(p, CSP_, P_WS, SZ_CSP, WS_CSP); srd(p, HF_, P_WS, SZ_HF, WS_HF)
    p("s_mul_i32 s%d, s%d, 37" % (sT0, sR)); p("s_lshr_b32 s%d, s%d, 8" % (sT0, sT0))
    p("s_mul_i32 s%d, s%d, 7" % (sT1, sT0)); p("s_sub_u32 s%d, s%d, s%d" % (sT1, sR, sT1))
    p("s_lshr_b32 s%d, s%d, 1" % (sT2, sJ)); p("s_lshl_b32 s%d, s%d, 2" % (sT2, sT2))
    p("s_add_u32 s%d, s%d, s%d" % (sRB, sT2, sT0))
    p("s_and_b32 s%d, s%d, 1" % (sT2, sJ)); p("s_mul_i32 s%d, s%d, 7" % (sT2, sT2))
    p("s_add_u32 s%d, s%d, s%d" % (sFT, sT2, sT1))
    vX = 2
    vWd = 6
    p("v_lshrrev_b32 v10, 3, v1")
    p("v_and_b32 v11, 7, v1")
    p("v_lshrrev_b32 v12, 1, v10")
    for ii in range(4):
        p("v_add_u32 v13, %d, v12" % (4 * (ii & 1)))
        p("v_xor_b32 v13, v13, v11")
        p("v_lshlrev_b32 v13, 4, v13")
        p("v_lshl_add_u32 v13, v10, 10, v13")
        p("v_add_u32 v%d, %d, v13" % (vX + ii, ii * 8192))
    p("v_lshrrev_b32 v10, 4, v1")
    p("v_and_b32 v11, 15, v1")
    p("v_lshlrev_b32 v12, 2, v10")
    p("v_xor_b32 v12, v12, v11")
    p("v_lshlrev_b32 v12, 4, v12")
    p("v_mul_u32_u24 v13, 3584, v10")
    p("v_add_u32 v13, v13, v12")
    for ii in range(4):
        p("v_add_u32 v%d, %d, v13" % (vWd + ii, ii * 4 * 3584))
    p("s_lshl_b32 s%d, s%d, 17" % (sXo, sRB))
    p("s_lshl_b32 s%d, s%d, 15" % (sT0, sW))
    p("s_add_u32 s%d, s%d, s%d" % (sXo, sXo, sT0))
    p("s_mul_i32 s%d, s%d, %d" % (sWo, sW, 16 * 3584))
    p("s_lshl_b32 s%d, s%d, 8" % (sT0, sFT))
    p("s_add_u32 s%d, s%d, s%d" % (sWo, sWo, sT0))
    p("s_lshl_b32 s%d, s%d, 12" % (sM, sW))
    def dma_stage(s):
        out = []
        slot = s % 4
        for ii in range(4):
            out.append(("s_add_u32 m0, s%d, %d" % (sM, slot * 32768 + ii * 1024), None))
            out.append(("buffer_load_dwordx4 v%d, s[%d:%d], s%d offen lds" % (vX + ii, Q_, Q_ + 3, sXo), "st%d" % s))
        for ii in range(4):
            out.append(("s_add_u32 m0, s%d, %d" % (sM, slot * 32768 + 16384 + ii * 1024), None))
            out.append(("buffer_load_dwordx4 v%d, s[%d:%d], s%d offen lds" % (vWd + ii, W1_, W1_ + 3, sWo), "st%d" % s))
        out.append(("s_add_u32 s%d, s%d, 128" % (sXo, sXo), None))
        out.append(("s_add_u32 s%d, s%d, %d" % (sWo, sWo, 64 * 3584), None))
        return out
    for s in range(3):
        for t, tag in dma_stage(s): p(t, tag)
    vCS = 128
    p("v_and_b32 v10, 127, v0")
    p("v_lshlrev_b32 v11, 2, v10")
    p("s_lshl_b32 s%d, s%d, 9" % (sT0, sFT))
    for i in range(16):
        p("buffer_load_dword v%d, v11, s[%d:%d], s%d offen" % (vCS + i, CSP_, CSP_ + 3, sT0), "tab")
        if i < 15: p("s_add_u32 s%d, s%d, %d" % (sT0, sT0, 1792 * 4))
    p("v_lshlrev_b32 v12, 1, v10")
    p("s_lshl_b32 s%d, s%d, 8" % (sT0, sFT))
    p("buffer_load_ushort v%d, v12, s[%d:%d], s%d offen" % (vCS + 16, B1_, B1_ + 3, sT0), "tab")
    vST = 180
    p("s_lshr_b32 s%d, s%d, 1" % (sT1, sW))
    p("s_lshl_b32 s%d, s%d, 6" % (sT1, sT1))
    p("s_lshl_b32 s%d, s%d, 7" % (sT0, sRB))
    p("s_add_u32 s%d, s%d, s%d" % (sT0, sT0, sT1))
    p("s_lshl_b32 s%d, s%d, 3" % (sT0, sT0))
    p("v_and_b32 v12, 31, v1")
    p("v_lshlrev_b32 v12, 3, v12")
    p("buffer_load_dwordx2 %s, v12, s[%d:%d], s%d offen" % (vr(vST, 2), ST_, ST_ + 3, sT0), "tab")
    p("buffer_load_dwordx2 %s, v12, s[%d:%d], s%d offen offset:256" % (vr(vST + 2, 2), ST_, ST_ + 3, sT0), "tab")
    vXA = 16
    vWA = 24
    p("v_and_b32 v10, 31, v1")
    p("v_lshrrev_b32 v11, 5, v1")
    p("v_lshrrev_b32 v12, 1, v10"); p("v_and_b32 v12, 7, v12")
    p("v_xor_b32 v12, v12, v11")
    p("s_lshr_b32 s%d, s%d, 1" % (sT1, sW)); p("s_lshl_b32 s%d, s%d, 13" % (sT1, sT1))
    p("v_lshlrev_b32 v13, 7, v10"); p("v_add_u32 v13, s%d, v13" % sT1)
    for jj in range(4):
        p("v_xor_b32 v14, %d, v12" % (2 * jj))
        p("v_lshl_add_u32 v%d, v14, 4, v13" % (vXA + jj))
        p("v_add_u32 v%d, 0x10000, v%d" % (vXA + 4 + jj, vXA + jj))
    p("v_and_b32 v10, 15, v1")
    p("v_lshrrev_b32 v11, 4, v1")
    p("v_lshrrev_b32 v12, 1, v11")
    p("v_and_b32 v11, 1, v11")
    p("v_lshrrev_b32 v13, 2, v10")
    p("v_lshl_add_u32 v12, v12, 3, v13")
    p("v_lshlrev_b32 v12, 8, v12")
    p("v_and_b32 v14, 1, v10"); p("v_lshl_add_u32 v12, v14, 3, v12")
    p("v_add_u32 v12, 16384, v12")
    p("v_and_b32 v14, 3, v10"); p("v_lshrrev_b32 v14, 1, v14")
    p("v_lshl_add_u32 v14, v11, 1, v14")
    p("s_and_b32 s%d, s%d, 1" % (sT1, sW)); p("s_lshl_b32 s%d, s%d, 3" % (sT1, sT1))
    p("v_add_u32 v14, s%d, v14" % sT1)
    p("v_lshlrev_b32 v13, 2, v13")
    for fb in range(2):
        p("v_add_u32 v15, %d, v14" % (4 * fb))
        p("v_xor_b32 v15, v15, v13")
        p("v_lshl_add_u32 v%d, v15, 4, v12" % (vWA + fb))
        p("v_add_u32 v%d, 0x10000, v%d" % (vWA + 2 + fb, vWA + fb))
    ACC = 64
    for i in range(64): p("v_mov_b32 v%d, 0" % (ACC + i))
    FR = 32
    def reads(g):
        s, jj = g // 4, g % 4
        slot = s % 4; hi = slot >= 2; so = (slot & 1) * 32768
        f = FR + 16 * (g & 1); out = []
        for fb in range(2):
            for rr in range(2):
                out.append("ds_read_b64_tr_b16 %s, v%d offset:%d" % (vr(f + 4 * fb + 2 * rr, 2), vWA + fb + (2 if hi else 0), so + jj * 4096 + rr * 1024))
        for tb in range(2):
            out.append("ds_read_b128 %s, v%d offset:%d" % (vr(f + 8 + 4 * tb, 4), vXA + jj + (4 if hi else 0), so + tb * 4096))
        return out
    def mfmas(g):
        f = FR + 16 * (g & 1); out = []
        for fb in range(2):
            for tb in range(2):
                a = ACC + 16 * (2 * fb + tb)
                out.append("v_mfma_f32_32x32x16_bf16 %s, %s, %s, %s" % (vr(a, 16), vr(f + 4 * fb, 4), vr(f + 8 + 4 * tb, 4), vr(a, 16)))
        return out
    for s in range(8):
        p.wait_tag("st%d" % s)
        p("s_barrier")
        if s in (0, 1, 4): stamp(p)
        dm = dma_stage(s + 3) if s + 3 < 8 else []
        di = 0
        for jj in range(4):
            g = 4 * s + jj
            for t in reads(g): p(t)
            if g > 0:
                for t in mfmas(g - 1):
                    p(t)
                    for _ in range(2):
                        if di < len(dm): p(*dm[di]); di += 1
        while di < len(dm): p(*dm[di]); di += 1
        if s == 3:
            p.wait_tag("tab")
            for i in range(1, 16): p("v_add_f32 v%d, v%d, v%d" % (vCS, vCS, vCS + i))
            p("v_lshlrev_b32 v%d, 16, v%d" % (vCS + 16, vCS + 16))
            p("v_and_b32 v10, 127, v0"); p("v_lshlrev_b32 v10, 2, v10")
            p("v_add_u32 v10, 0x20000, v10")
            p("ds_write_b32 v10, v%d" % vCS)
            p("ds_write_b32 v10, v%d offset:512" % (vCS + 16))
    for t in mfmas(31): p(t)
    stamp(p)
    TBL = 128
    p("v_lshrrev_b32 v10, 5, v1")
    p("v_lshlrev_b32 v10, 4, v10")
    p("s_and_b32 s%d, s%d, 1" % (sT1, sW)); p("s_lshl_b32 s%d, s%d, 8" % (sT1, sT1))
    p("v_add_u32 v10, s%d, v10" % sT1)
    p("v_add_u32 v10, 0x20000, v10")
    p("s_lshr_b32 s%d, s%d, 1" % (sT1, sW))
    p("s_lshl_b32 s%d, s%d, 1" % (sT1, sT1))
    p("s_lshl_b32 s%d, s%d, 2" % (sT0, sRB))
    p("s_add_u32 s%d, s%d, s%d" % (sT0, sT0, sT1))
    p("s_mul_i32 s%d, s%d, 112" % (sT0, sT0))
    p("s_lshl_b32 s%d, s%d, 3" % (sT1, sFT))
    p("s_add_u32 s%d, s%d, s%d" % (sT0, sT0, sT1))
    p("s_and_b32 s%d, s%d, 1" % (sT1, sW)); p("s_lshl_b32 s%d, s%d, 2" % (sT1, sT1))
    p("s_add_u32 s%d, s%d, s%d" % (sT0, sT0, sT1))
    p("s_lshl_b32 s%d, s%d, 10" % (sT0, sT0))
    p("v_lshlrev_b32 v11, 4, v1")
    p("v_add_u32 v12, %d, v11" % (112 * 1024))
    for tb in range(2):
        p("v_mul_f32 v%d, v%d, v%d" % (vST + 2 * tb, vST + 2 * tb, vST + 2 * tb + 1))
    for fb in range(2):
        for rq in range(4):
            p("ds_read_b128 %s, v10 offset:%d" % (vr(TBL + 4 * rq, 4), fb * 128 + rq * 32))
            p("ds_read_b128 %s, v10 offset:%d" % (vr(TBL + 16 + 4 * rq, 4), 512 + fb * 128 + rq * 32))
        for tb in range(2):
            a = ACC + 16 * (2 * fb + tb); mu, rs = vST + 2 * tb, vST + 2 * tb + 1
            PK = 160 + 8 * tb
            for r_ in range(16):
                t = 176 + (r_ & 3)
                p("v_fma_f32 v%d, -v%d, v%d, v%d" % (t, mu, TBL + r_, TBL + 16 + r_))
                p("v_fma_f32 v%d, v%d, v%d, v%d" % (t, a + r_, rs, t))
                p("v_max_f32 v%d, 0, v%d" % (t, t))
                p("v_mul_f32 v%d, v%d, v%d" % (t, t, t))
                if r_ & 1:
                    p("v_cvt_pk_bf16_f32 v%d, v%d, v%d" % (PK + (r_ >> 1), t - 1, t))
            for q in range(2):
                p("buffer_store_dwordx4 %s, v%d, s[%d:%d], s%d offen offset:%d" % (vr(PK + 4 * q, 4), 11 + tb, HF_, HF_ + 3, sT0, (2 * fb + q) * 1024))

def gen_conv(p, name, sJ, sR, sW):
    sT0, sT1, sT2, sCH, sC2, sCB = 36, 37, 38, 39, 72, 73
    KVT_, SSM_, DD_, ZT_ = 40, 44, 48, 52
    srd(p, KVT_, P_WS, SZ_KVT, WS_KVT); srd(p, SSM_, P_SSM, D * S * 2); srd(p, DD_, P_DD, D * 2); srd(p, ZT_, P_WS, SZ_ZT, WS_ZT)
    p("s_lshr_b32 s%d, s%d, 1" % (sT0, sW))
    p("s_and_b32 s%d, s%d, 1" % (sC2, sW))
    p("s_lshl_b32 s%d, s%d, 6" % (sCH, sJ))
    p("s_lshl_b32 s%d, s%d, 1" % (sT1, sR))
    p("s_add_u32 s%d, s%d, s%d" % (sCH, sCH, sT1))
    p("s_add_u32 s%d, s%d, s%d" % (sCH, sCH, sT0))
    p("s_mul_i32 s%d, s%d, 21248" % (sCB, sT0))
    p("s_add_u32 s%d, s%d, 256" % (sCB, sCB))
    p("s_lshl_b32 s%d, s%d, 12" % (sT0, sCH))
    p("s_lshl_b32 s%d, s%d, 11" % (sT1, sC2))
    p("s_add_u32 s%d, s%d, s%d" % (sT0, sT0, sT1))
    p("v_lshlrev_b32 v2, 4, v1")
    R = 16
    for sg in range(2):
        for k in range(3):
            p("buffer_load_dwordx4 %s, v2, s[%d:%d], s%d offen offset:%d" % (vr(R + 12 * sg + 4 * k, 4), KVT_, KVT_ + 3, sT0, sg * 1024 + 4 * k))
    for sg in range(2):
        p("s_add_u32 s%d, s%d, s%d" % (sT2, sCB, sT1))
        p("s_add_u32 m0, s%d, %d" % (sT2, 16640 + 512 + sg * 1024))
        p("s_add_u32 s%d, s%d, %d" % (sT2, sT0, sg * 1024))
        p("buffer_load_dwordx4 v2, s[%d:%d], s%d offen lds" % (SSM_, SSM_ + 3, sT2), "kk")
    vDD = 3
    p("v_mov_b32 v4, 0")
    p("s_lshl_b32 s%d, s%d, 1" % (sT2, sCH))
    p("buffer_load_ushort v%d, v4, s[%d:%d], s%d offen" % (vDD, DD_, DD_ + 3, sT2))
    for i in range(4): p("v_mov_b32 v%d, 0" % (8 + i))
    p("v_lshrrev_b32 v5, 1, v1"); p("v_mul_u32_u24 v5, 4160, v5")
    p("v_and_b32 v6, 1, v1"); p("v_lshl_add_u32 v5, v6, 4, v5")
    p("v_add_u32 v5, 4096, v5")
    p("v_add_u32 v6, 16640, v2")
    p("s_cmp_eq_u32 s%d, 0" % sC2)
    p("s_cselect_b32 s74, 0xff, -1")
    p("s_cbranch_scc1 %s_z0" % name)
    p("v_mov_b32 v5, v6")
    p.label("%s_z0" % name)
    p("v_add_u32 v5, s%d, v5" % sCB)
    p("s_mov_b64 s[76:77], exec")
    p("s_mov_b32 exec_lo, s74")
    p("s_mov_b32 exec_hi, 0")
    p("ds_write_b128 v5, v[8:11]")
    p("s_mov_b64 exec, s[76:77]")
    p("s_lshl_b32 s75, s%d, 31" % sC2)
    p("s_mov_b32 s74, 0")
    last = R + 12
    for rg in (last + 7, last + 10, last + 11):
        p("v_cndmask_b32 v%d, v%d, v8, s[74:75]" % (rg, rg))
    p("s_lshl_b32 s%d, s%d, 11" % (sT1, sC2))
    p("s_add_u32 s%d, s%d, s%d" % (sT1, sT1, sCB))
    p("v_add_u32 v5, s%d, v2" % sT1)
    for sg in range(2):
        r0, r1, r2 = R + 12 * sg, R + 12 * sg + 4, R + 12 * sg + 8
        c1, c3 = 40 + 8 * sg, 44 + 8 * sg
        for i in range(4): p("v_alignbit_b32 v%d, v%d, v%d, 16" % (c1 + i, r1 + i, r0 + i))
        for i in range(4): p("v_alignbit_b32 v%d, v%d, v%d, 16" % (c3 + i, r2 + i, r1 + i))
        p("ds_write_b128 v5, %s offset:%d" % (vr(r0, 4), sg * 1024))
        p("ds_write_b128 v5, %s offset:%d" % (vr(c1, 4), 4160 + sg * 1024))
        p("ds_write_b128 v5, %s offset:%d" % (vr(r1, 4), 2 * 4160 + sg * 1024))
        p("ds_write_b128 v5, %s offset:%d" % (vr(c3, 4), 3 * 4160 + sg * 1024))
    vA, vB = 12, 13
    p("v_and_b32 v6, 15, v1")
    p("v_lshrrev_b32 v7, 4, v1")
    p("v_sub_u32 v14, 3, v6"); p("v_and_b32 v14, 3, v14")
    p("v_mul_u32_u24 v15, 4158, v14")
    p("v_lshlrev_b32 v14, 1, v6"); p("v_sub_u32 v15, v15, v14")
    p("v_lshl_add_u32 v15, v7, 4, v15")
    p("s_lshl_b32 s%d, s%d, 8" % (sT1, sC2))
    p("s_sub_u32 s%d, s%d, s%d" % (sT1, sCB, sT1))
    p("s_add_u32 s%d, s%d, 30" % (sT2, sT1))
    p("v_add_u32 v%d, s%d, v15" % (vA, sT2))
    p("v_lshlrev_b32 v15, 5, v6"); p("v_lshl_add_u32 v15, v7, 4, v15")
    p("s_add_u32 s%d, s%d, %d" % (sT2, sT1, 16640 + 32))
    p("v_add_u32 v%d, s%d, v15" % (vB, sT2))
    ACC = 64
    for i in range(32): p("v_mov_b32 v%d, 0" % (ACC + i))
    p.wait(vm=0, lg=0)
    p("s_barrier")
    stamp(p)
    FA, FB = 96, 160
    def reads(rl):
        st = rl & 1; out = []
        for x in range(8):
            oa = 64 * (63 - rl - 8 * x)
            out.append("ds_read_b64 %s, v%d offset:%d" % (vr(FA + 32 * st + 4 * x, 2), vA, oa))
            out.append("ds_read_b64 %s, v%d offset:%d" % (vr(FA + 32 * st + 4 * x + 2, 2), vA, oa + 8))
            out.append("ds_read_b128 %s, v%d offset:%d" % (vr(FB + 32 * st + 4 * x, 4), vB, 64 * (7 - rl + 8 * x)))
        return out
    def mf(rl):
        st = rl & 1; out = []
        pairs = sorted([(a, b) for a in range(8) for b in range(8) if a + b <= 7], key=lambda ab: (max(ab), ab))
        for a, b in pairs:
            out.append("v_mfma_f32_16x16x32_bf16 %s, %s, %s, %s" % (vr(ACC + 4 * (a + b), 4), vr(FA + 32 * st + 4 * a, 4), vr(FB + 32 * st + 4 * b, 4), vr(ACC + 4 * (a + b), 4)))
        return out
    for t in reads(0): p(t)
    for rl in range(4):
        nxt = reads(rl + 1) if rl < 3 else []
        for t in interleave(mf(rl), nxt, 24.0 / 36): p(t)
    RB = 256 + 2 * 21248
    p("s_lshl_b32 s%d, s%d, 12" % (sT1, sW))
    p("v_add_u32 v5, s%d, v2" % sT1); p("v_add_u32 v5, %d, v5" % RB)
    p("s_xor_b32 s%d, s%d, 1" % (sT1, sW)); p("s_lshl_b32 s%d, s%d, 12" % (sT1, sT1))
    p("v_add_u32 v14, s%d, v2" % sT1); p("v_add_u32 v14, %d, v14" % RB)
    p("v_lshlrev_b32 v15, 5, v6"); p("v_lshl_add_u32 v15, v7, 3, v15")
    p("s_lshl_b32 s%d, s%d, 11" % (sT1, sC2))
    p("s_sub_u32 s%d, s%d, s%d" % (sT2, sCB, sT1))
    p("s_add_u32 s%d, s%d, %d" % (sT2, sT2, 4088 - 1536))
    p("v_sub_u32 v16, s%d, v15" % sT2)
    p("s_lshl_b32 s%d, s%d, 12" % (sT2, sCH))
    p("s_add_u32 s%d, s%d, s%d" % (sT2, sT2, sT1))
    p("v_lshlrev_b32 v%d, 16, v%d" % (vDD, vDD))
    vm0, lg0 = list(p.vm), list(p.lg)
    p("s_cmp_eq_u32 s%d, 0" % sC2)
    p("s_cbranch_scc0 %s_hi" % name)
    for variant in range(2):
        keep = ACC + 16 * variant; give = ACC + 16 * (1 - variant)
        if variant == 1:
            p("s_branch %s_done" % name)
            p.label("%s_hi" % name)
            p.vm, p.lg = list(vm0), list(lg0)
            p("s_nop 7"); p("s_nop 1")
        for q in range(4): p("ds_write_b128 v5, %s offset:%d" % (vr(give + 4 * q, 4), q * 1024))
        p.wait(lg=0)
        p("s_barrier")
        for q in range(4):
            p("ds_read_b128 %s, v14 offset:%d" % (vr(20 + 4 * q, 4), q * 1024))
            p("ds_read_b64 %s, v16 offset:%d" % (vr(36 + 2 * q, 2), (3 - q) * 512))
        for q in range(4):
            a = keep + 4 * q; u = 36 + 2 * q
            for c in range(4): p("v_add_f32 v%d, v%d, v%d" % (a + c, a + c, 20 + 4 * q + c))
            for c, (src, hf) in enumerate(((u + 1, 1), (u + 1, 0), (u, 1), (u, 0))):
                unpack(p, 44 + c, src, hf)
                p("v_fmac_f32 v%d, v%d, v%d" % (a + c, 44 + c, vDD))
            p("v_cvt_pk_bf16_f32 v%d, v%d, v%d" % (48 + 2 * q, a, a + 1))
            p("v_cvt_pk_bf16_f32 v%d, v%d, v%d" % (49 + 2 * q, a + 2, a + 3))
            p("buffer_store_dwordx2 %s, v15, s[%d:%d], s%d offen offset:%d" % (vr(48 + 2 * q, 2), ZT_, ZT_ + 3, sT2, q * 512))
    p.label("%s_done" % name)

def gen_k1(name):
    p = Prog()
    sJ, sR, sW = 33, 34, 35
    p("s_cmp_ge_u32 s2, 256")
    p("s_cbranch_scc1 %s_end" % name)
    prof_reset(); stamp(p, True); stamp(p)
    load_kernargs(p)
    p("v_and_b32 v1, 63, v0")
    p("v_lshrrev_b32 v2, 6, v0")
    p("s_and_b32 s%d, s2, 7" % sJ)
    p("s_lshr_b32 s%d, s2, 3" % sR)
    p("v_readfirstlane_b32 s%d, v2" % sW)
    p("s_waitcnt lgkmcnt(0)")
    p("s_cmp_ge_u32 s%d, 28" % sR)
    p("s_cbranch_scc1 %s_conv" % name)
    gen_g1(p, name, sJ, sR, sW)
    p.wait(lg=0)
    p("s_barrier")
    p.label("%s_conv" % name)
    stamp(p)
    gen_conv(p, name + "_c", sJ, sR, sW)
    stamp(p); stamp(p, True)
    prof_flush(p, 1, sW)
    p.label("%s_end" % name)
    p("s_endpgm")
    return p.text(), 256, 256
```

```python
from common import *
from k1 import unpack

def gen_g2(p, name, sJ, sR, sW, DEPTH=8):
    sT0, sT1, sT2, sTok, sCh, sHo, sWo, sM = 36, 37, 38, 39, 72, 73, 74, 75
    HF_, W2_, Q_, ZT_, ST_, B2_, OUT_ = 40, 44, 48, 52, 56, 60, 64
    srd(p, HF_, P_WS, SZ_HF, WS_HF); srd(p, W2_, P_W2, F * D * 2); srd(p, Q_, P_Q, S * D * 2)
    srd(p, ZT_, P_WS, SZ_ZT, WS_ZT); srd(p, ST_, P_WS, SZ_ST, WS_ST); srd(p, B2_, P_B2, D * 2); srd(p, OUT_, P_OUT, S * D * 2)
    RING = DEPTH * 2048
    RED = 4 * RING
    XT = RED + 65536; ZTT = XT + 8192; OT = ZTT + 8192
    assert OT + 8192 <= 163840
    p("s_lshl_b32 s%d, s%d, 8" % (sTok, sJ))
    p("s_lshr_b32 s%d, s%d, 3" % (sT0, sR)); p("s_lshl_b32 s%d, s%d, 6" % (sT0, sT0))
    p("s_add_u32 s%d, s%d, s%d" % (sTok, sTok, sT0))
    p("s_and_b32 s%d, s%d, 7" % (sCh, sR)); p("s_lshl_b32 s%d, s%d, 6" % (sCh, sCh))
    p("s_lshr_b32 s%d, s%d, 5" % (sT0, sTok)); p("s_mul_i32 s%d, s%d, 112" % (sT0, sT0))
    p("s_mul_i32 s%d, s%d, 28" % (sT1, sW))
    p("s_add_u32 s%d, s%d, s%d" % (sT0, sT0, sT1)); p("s_lshl_b32 s%d, s%d, 10" % (sHo, sT0))
    p("s_lshl_b32 s%d, s%d, 14" % (sWo, sT1)); p("s_lshl_b32 s%d, s%d, 1" % (sT0, sCh))
    p("s_add_u32 s%d, s%d, s%d" % (sWo, sWo, sT0))
    p("s_mul_i32 s%d, s%d, %d" % (sM, sW, RING))
    vH0, vH1, vD0, vD1 = 2, 3, 4, 5
    p("v_lshlrev_b32 v%d, 4, v1" % vH0)
    p("v_add_u32 v%d, %d, v%d" % (vH1, 112 * 1024, vH0))
    p("v_lshrrev_b32 v10, 3, v1")
    p("v_and_b32 v11, 7, v1")
    p("v_lshrrev_b32 v12, 1, v10"); p("v_and_b32 v12, 1, v12"); p("v_lshlrev_b32 v12, 2, v12")
    p("v_xor_b32 v12, v12, v11")
    p("v_lshlrev_b32 v12, 4, v12")
    p("v_lshl_add_u32 v%d, v10, 10, v12" % vD0)
    p("v_add_u32 v%d, 8192, v%d" % (vD1, vD0))
    HB = 0
    def loads(s):
        slot = s % DEPTH; out = []
        out.append(("s_add_u32 m0, s%d, %d" % (sM, slot * 2048), None))
        out.append(("buffer_load_dwordx4 v%d, s[%d:%d], s%d offen lds" % (vD0, W2_, W2_ + 3, sWo), "s%d" % s))
        out.append(("s_add_u32 m0, s%d, %d" % (sM, slot * 2048 + 1024), None))
        out.append(("buffer_load_dwordx4 v%d, s[%d:%d], s%d offen lds" % (vD1, W2_, W2_ + 3, sWo), "s%d" % s))
        out.append(("buffer_load_dwordx4 %s, v%d, s[%d:%d], s%d offen" % (ar(HB + 8 * slot, 4), vH0, HF_, HF_ + 3, sHo), "s%d" % s))
        out.append(("buffer_load_dwordx4 %s, v%d, s[%d:%d], s%d offen" % (ar(HB + 8 * slot + 4, 4), vH1, HF_, HF_ + 3, sHo), "s%d" % s))
        out.append(("s_add_u32 s%d, s%d, 16384" % (sWo, sWo), None))
        out.append(("s_add_u32 s%d, s%d, 1024" % (sHo, sHo), None))
        return out
    for s in range(DEPTH):
        for t, tag in loads(s): p(t, tag)
    p("v_lshrrev_b32 v12, 1, v10")
    for ii in range(2):
        p("v_add_u32 v13, %d, v12" % (4 * ii))
        p("v_xor_b32 v13, v13, v11")
        p("v_lshlrev_b32 v13, 4, v13")
        p("v_lshl_add_u32 v%d, v10, 10, v13" % (6 + ii))
    p("s_lshl_b32 s%d, s%d, 4" % (sT0, sW)); p("s_add_u32 s%d, s%d, s%d" % (sT0, sT0, sTok))
    p("s_lshl_b32 s%d, s%d, 10" % (sT0, sT0)); p("s_lshl_b32 s%d, s%d, 1" % (sT1, sCh))
    sXO = 76
    p("s_add_u32 s%d, s%d, s%d" % (sXO, sT0, sT1))
    p("s_lshl_b32 s%d, s%d, 11" % (sT2, sW))
    for ii in range(2):
        p("s_add_u32 m0, s%d, %d" % (sT2, XT + ii * 1024))
        p("s_add_u32 s%d, s%d, %d" % (sT0, sXO, ii * 8192))
        p("buffer_load_dwordx4 v%d, s[%d:%d], s%d offen lds" % (6 + ii, Q_, Q_ + 3, sT0), "ep")
    p("v_lshrrev_b32 v12, 1, v10"); p("v_and_b32 v12, 1, v12"); p("v_lshlrev_b32 v12, 2, v12")
    p("v_xor_b32 v12, v12, v11"); p("v_lshlrev_b32 v12, 4, v12")
    p("v_lshl_add_u32 v8, v10, 12, v12")
    p("s_lshl_b32 s%d, s%d, 4" % (sT0, sW)); p("s_add_u32 s%d, s%d, s%d" % (sT0, sT0, sCh))
    p("s_lshl_b32 s%d, s%d, 12" % (sT0, sT0)); p("s_lshl_b32 s%d, s%d, 1" % (sT1, sTok))
    p("s_add_u32 s%d, s%d, s%d" % (sT0, sT0, sT1))
    for ii in range(2):
        p("s_add_u32 m0, s%d, %d" % (sT2, ZTT + ii * 1024))
        p("buffer_load_dwordx4 v8, s[%d:%d], s%d offen lds" % (ZT_, ZT_ + 3, sT0), "ep")
        if ii == 0: p("s_add_u32 s%d, s%d, %d" % (sT0, sT0, 8 * 4096))
    vST, vB2 = 16, 20
    p("s_lshr_b32 s%d, s%d, 1" % (sT0, sW)); p("s_lshl_b32 s%d, s%d, 5" % (sT0, sT0))
    p("s_add_u32 s%d, s%d, s%d" % (sT0, sT0, sTok)); p("s_lshl_b32 s%d, s%d, 3" % (sT0, sT0))
    p("v_and_b32 v12, 31, v1"); p("v_lshlrev_b32 v13, 3, v12")
    p("buffer_load_dwordx2 %s, v13, s[%d:%d], s%d offen" % (vr(vST, 2), ST_, ST_ + 3, sT0), "ep")
    p("s_and_b32 s%d, s%d, 1" % (sT0, sW)); p("s_lshl_b32 s%d, s%d, 5" % (sT0, sT0))
    p("s_add_u32 s%d, s%d, s%d" % (sT0, sT0, sCh)); p("s_lshl_b32 s%d, s%d, 1" % (sT0, sT0))
    p("v_lshrrev_b32 v13, 5, v1"); p("v_lshlrev_b32 v13, 5, v13")
    p("buffer_load_dwordx4 %s, v13, s[%d:%d], s%d offen" % (vr(vB2, 4), B2_, B2_ + 3, sT0), "ep")
    p("buffer_load_dwordx4 %s, v13, s[%d:%d], s%d offen offset:16" % (vr(vB2 + 4, 4), B2_, B2_ + 3, sT0), "ep")
    vA = 28
    p("v_and_b32 v10, 15, v1")
    p("v_lshrrev_b32 v11, 4, v1")
    p("v_lshrrev_b32 v12, 1, v11")
    p("v_and_b32 v11, 1, v11")
    p("v_lshrrev_b32 v13, 2, v10")
    p("v_lshl_add_u32 v12, v12, 2, v13")
    p("v_lshlrev_b32 v12, 7, v12")
    p("v_and_b32 v14, 3, v10")
    p("v_lshrrev_b32 v15, 1, v14"); p("v_lshl_add_u32 v12, v15, 3, v12")
    p("v_and_b32 v14, 1, v14"); p("v_lshl_add_u32 v14, v14, 1, v11")
    p("v_lshrrev_b32 v15, 3, v10"); p("v_lshlrev_b32 v15, 2, v15")
    p("v_add_u32 v12, s%d, v12" % sM)
    for cb in range(2):
        p("v_add_u32 v13, %d, v14" % (4 * cb))
        p("v_xor_b32 v13, v13, v15")
        p("v_lshl_add_u32 v%d, v13, 4, v12" % (vA + cb))
    ACC = 64
    for i in range(64): p("v_mov_b32 v%d, 0" % (ACC + i))
    FR = 32
    def reads(s):
        slot = s % DEPTH; f = FR + 8 * (s & 1); out = []
        for cb in range(2):
            for rr in range(2):
                out.append("ds_read_b64_tr_b16 %s, v%d offset:%d" % (vr(f + 4 * cb + 2 * rr, 2), vA + cb, slot * 2048 + rr * 1024))
        return out
    def mfmas(s):
        slot = s % DEPTH; f = FR + 8 * (s & 1); out = []
        for cb in range(2):
            for tb in range(2):
                a = ACC + 16 * (2 * tb + cb)
                out.append("v_mfma_f32_32x32x16_bf16 %s, %s, %s, %s" % (vr(a, 16), vr(f + 4 * cb, 4), ar(HB + 8 * slot + 4 * tb, 4), vr(a, 16)))
        return out
    NS = 28
    stamp(p)
    p.wait_tag("s0")
    stamp(p)
    for t in reads(0): p(t)
    for s in range(NS):
        if s + 1 < NS:
            p.wait_tag("s%d" % (s + 1))
            for t in reads(s + 1): p(t)
        for t in mfmas(s): p(t)
        if s + DEPTH < NS:
            for t, tag in loads(s + DEPTH): p(t, tag)
    stamp(p)
    p("s_lshl_b32 s%d, s%d, 14" % (sT0, sW))
    p("v_add_u32 v10, s%d, v%d" % (sT0, vH0)); p("v_add_u32 v10, %d, v10" % RED)
    for q in range(4):
        for rq in range(4):
            p("ds_write_b128 v10, %s offset:%d" % (vr(ACC + 16 * q + 4 * rq, 4), q * 4096 + rq * 1024))
    p.wait_tag("ep")
    p.wait(lg=0)
    p("s_barrier")
    p("s_lshl_b32 s%d, s%d, 12" % (sT0, sW))
    p("v_add_u32 v10, s%d, v%d" % (sT0, vH0)); p("v_add_u32 v10, %d, v10" % RED)
    for src in range(4):
        for rq in range(4):
            p("ds_read_b128 %s, v10 offset:%d" % (vr(ACC + 16 * src + 4 * rq, 4), src * 16384 + rq * 1024))
    XR, ZR = 128, 136
    p("v_and_b32 v11, 31, v1"); p("v_lshrrev_b32 v12, 5, v1")
    p("s_lshr_b32 s%d, s%d, 1" % (sT0, sW)); p("s_lshl_b32 s%d, s%d, 5" % (sT0, sT0))
    p("v_add_u32 v11, s%d, v11" % sT0)
    p("v_lshrrev_b32 v13, 1, v11"); p("v_and_b32 v13, 7, v13")
    p("s_and_b32 s%d, s%d, 1" % (sT1, sW)); p("s_lshl_b32 s%d, s%d, 2" % (sT1, sT1))
    p("v_lshlrev_b32 v12, 1, v12"); p("v_add_u32 v12, s%d, v12" % sT1)
    p("v_lshlrev_b32 v11, 7, v11")
    p("v_xor_b32 v14, v12, v13"); p("v_lshl_add_u32 v14, v14, 4, v11")
    p("v_add_u32 v12, 1, v12"); p("v_xor_b32 v15, v12, v13"); p("v_lshl_add_u32 v15, v15, 4, v11")
    p("v_add_u32 v6, %d, v14" % XT); p("v_add_u32 v7, %d, v15" % XT)
    p("ds_read_b128 %s, v6" % vr(XR, 4)); p("ds_read_b128 %s, v7" % vr(XR + 4, 4))
    p("v_and_b32 v10, 15, v1"); p("v_lshrrev_b32 v11, 4, v1")
    p("v_lshrrev_b32 v12, 1, v11"); p("v_and_b32 v11, 1, v11")
    p("v_lshrrev_b32 v13, 2, v10")
    p("v_lshl_add_u32 v12, v12, 4, v13")
    p("s_and_b32 s%d, s%d, 1" % (sT1, sW)); p("s_lshl_b32 s%d, s%d, 5" % (sT1, sT1))
    p("v_add_u32 v12, s%d, v12" % sT1)
    p("v_lshlrev_b32 v12, 7, v12")
    p("v_and_b32 v13, 1, v10"); p("v_lshl_add_u32 v12, v13, 3, v12")
    p("v_and_b32 v13, 3, v10"); p("v_lshrrev_b32 v13, 1, v13"); p("v_lshl_add_u32 v13, v11, 1, v13")
    p("s_lshr_b32 s%d, s%d, 1" % (sT1, sW)); p("s_lshl_b32 s%d, s%d, 2" % (sT1, sT1))
    p("v_add_u32 v13, s%d, v13" % sT1)
    p("v_lshrrev_b32 v8, 3, v10"); p("v_lshlrev_b32 v8, 2, v8")
    p("v_xor_b32 v13, v13, v8")
    p("v_lshl_add_u32 v12, v13, 4, v12"); p("v_add_u32 v12, %d, v12" % ZTT)
    for m in range(4):
        p("ds_read_b64_tr_b16 %s, v12 offset:%d" % (vr(ZR + 2 * m, 2), m * 512))
    for r_ in range(16):
        p("v_add_f32 v%d, v%d, v%d" % (ACC + r_, ACC + r_, ACC + 16 + r_))
        p("v_add_f32 v%d, v%d, v%d" % (ACC + 32 + r_, ACC + 32 + r_, ACC + 48 + r_))
        p("v_add_f32 v%d, v%d, v%d" % (ACC + r_, ACC + r_, ACC + 32 + r_))
    mu, rs = vST, vST + 1
    p("v_mul_f32 v%d, v%d, v%d" % (mu, mu, rs))
    PK = 144
    for r_ in range(16):
        x, z, b, t = 30, 31, 32, 33 + (r_ & 1)
        unpack(p, x, XR + (r_ >> 1), r_ & 1)
        unpack(p, z, ZR + (r_ >> 1), r_ & 1)
        unpack(p, b, vB2 + (r_ >> 1), r_ & 1)
        p("v_fma_f32 v%d, v%d, v%d, -v%d" % (t, x, rs, mu))
        p("v_fma_f32 v%d, v%d, v%d, v%d" % (t, t, z, x))
        p("v_add_f32 v%d, v%d, v%d" % (b, b, ACC + r_))
        p("v_add_f32 v%d, v%d, v%d" % (t, t, b))
        if r_ & 1: p("v_cvt_pk_bf16_f32 v%d, v33, v34" % (PK + (r_ >> 1)))
    p("v_add_u32 v6, %d, v14" % OT); p("v_add_u32 v7, %d, v15" % OT)
    p("ds_write_b128 v6, %s" % vr(PK, 4)); p("ds_write_b128 v7, %s" % vr(PK + 4, 4))
    p.wait(lg=0)
    p("s_barrier")
    p("s_lshl_b32 s%d, s%d, 11" % (sT2, sW))
    p("v_add_u32 v10, s%d, v%d" % (sT2, vH0)); p("v_add_u32 v10, %d, v10" % OT)
    p("ds_read_b128 v[16:19], v10"); p("ds_read_b128 v[20:23], v10 offset:1024")
    p("v_lshrrev_b32 v10, 3, v1"); p("v_and_b32 v11, 7, v1"); p("v_lshrrev_b32 v12, 1, v10")
    for ii in range(2):
        p("v_add_u32 v13, %d, v12" % (4 * ii))
        p("v_xor_b32 v13, v13, v11")
        p("v_lshlrev_b32 v13, 4, v13")
        p("v_lshl_add_u32 v%d, v10, 10, v13" % (6 + ii))
    p("v_add_u32 v7, 8192, v7")
    p("buffer_store_dwordx4 v[16:19], v6, s[%d:%d], s%d offen" % (OUT_, OUT_ + 3, sXO))
    p("buffer_store_dwordx4 v[20:23], v7, s[%d:%d], s%d offen" % (OUT_, OUT_ + 3, sXO))

def gen_k2(name):
    p = Prog()
    sJ, sR, sW = 33, 34, 35
    p("s_cmp_ge_u32 s2, 256")
    p("s_cbranch_scc1 %s_end" % name)
    prof_reset(); stamp(p, True); stamp(p)
    load_kernargs(p)
    p("v_and_b32 v1, 63, v0")
    p("v_lshrrev_b32 v2, 6, v0")
    p("s_and_b32 s%d, s2, 7" % sJ)
    p("s_lshr_b32 s%d, s2, 3" % sR)
    p("v_readfirstlane_b32 s%d, v2" % sW)
    p("s_waitcnt lgkmcnt(0)")
    gen_g2(p, name, sJ, sR, sW)
    stamp(p)
    p.wait(vm=0) if __import__('common').PROF else None
    stamp(p); stamp(p, True)
    prof_flush(p, 2, sW)
    p.label("%s_end" % name)
    p("s_endpgm")
    return p.text(), 512, 256
```

```python
import sys
from common import *
import k0, k1, k2
NAME = "parallel_sum__ssm_conv_h3__dense_activation_squared_relu__prompt"
def header():
    ref = open('cdna_kernels/%s.s.ref' % NAME).read().split('\n')
    out = []
    for l in ref:
        if l.startswith('; @launch') or l.startswith('; Override') or l.startswith('; grid='): break
        out.append(l)
    return '\n'.join(out) + '\n'
def gen_empty(name):
    return '  s_endpgm\n', 8, 8
def build_v1(extra=0):
    ks = [("k0_kernel", k0.gen_k0, 16384 + 512), ("k1_kernel", k1.gen_k1, 133120), ("k2_kernel", k2.gen_k2, 155648)]
    for i in range(extra): ks.append(('e%d_kernel' % i, gen_empty, 0))
    txt = header()
    for n, g, lds in ks: txt += "; @launch kernel=%s grid=(256,1,1) block=(256,1,1) lds=%d\n" % (n, lds)
    txt += '.amdgcn_target "amdgcn-amd-amdhsa--gfx950"\n.text\n'
    descs = ''
    for n, g, lds in ks:
        body, vg, acc = g(n)
        txt += kernel_text(n, body)
        descs += kernel_desc(n, vg, acc)
    txt += '.section .rodata,"a"\n' + descs
    return txt
if __name__ == '__main__':
    import common
    if '--prof' in sys.argv: common.PROF = True; sys.argv.remove('--prof')
    out = sys.argv[1] if len(sys.argv) > 1 else 'cdna_kernels/%s.s' % NAME
    extra = int(__import__('os').environ.get('EXTRA', '0'))
    open(out, 'w').write(build_v1(extra))
    print("wrote", out)
```

```python
from asmlib import *
S, D, F = 2048, 512, 1792
WS_HF  = 0
SZ_HF  = 64 * 112 * 1024
WS_KVT = 0x800000
SZ_KVT = 512 * 4096
WS_ZT  = 0xA00000
SZ_ZT  = 512 * 4096
WS_ST  = 0xC00000
SZ_ST  = 2048 * 8
WS_CSP = 0xC10000
SZ_CSP = 16 * 1792 * 4
P_Q, P_K, P_V, P_SK, P_SSM, P_DD, P_BX, P_W1 = 4, 6, 8, 10, 12, 14, 16, 18
P_B1, P_W2, P_B2, P_OUT, P_DBG, P_WS = 20, 22, 24, 26, 28, 30

def load_kernargs(p):
    p("s_load_dwordx16 s[4:19], s[0:1], 0")
    p("s_load_dwordx8 s[20:27], s[0:1], 64")
    p("s_load_dwordx4 s[28:31], s[0:1], 96")

def srd(p, dst, ptr, size, off=0):
    if off:
        p("s_add_u32 s%d, s%d, 0x%x" % (dst, ptr, off))
        p("s_addc_u32 s%d, s%d, 0" % (dst + 1, ptr + 1))
    else:
        p("s_mov_b32 s%d, s%d" % (dst, ptr))
        p("s_mov_b32 s%d, s%d" % (dst + 1, ptr + 1))
    p("s_mov_b32 s%d, 0x%x" % (dst + 2, size))
    p("s_mov_b32 s%d, 0x20000" % (dst + 3))

def kernel_text(name, body):
    return ".globl %s\n.p2align 8\n.type %s,@function\n%s:\n%s" % (name, name, name, body)

def kernel_desc(name, vgpr, accum, sgpr=102):
    return (".p2align 6\n.amdhsa_kernel %s\n  .amdhsa_next_free_vgpr %d\n  .amdhsa_next_free_sgpr %d\n  .amdhsa_accum_offset %d\n"
            "  .amdhsa_group_segment_fixed_size 0\n  .amdhsa_kernarg_size 112\n  .amdhsa_user_sgpr_count 2\n"
            "  .amdhsa_user_sgpr_kernarg_segment_ptr 1\n  .amdhsa_system_sgpr_workgroup_id_x 1\n"
            "  .amdhsa_float_denorm_mode_32 3\n"
            ".end_amdhsa_kernel\n") % (name, vgpr, sgpr, accum)

PROF = False
WS_PROF = 0xD00000
WS_FLAG = 0xE00000
FL_FS, FL_FC, FL_FK, FL_FH, FL_FZ, FL_W = 0, 4096, 8192, 16384, 24576, 32768
SZ_FLAG = 32768 + 128
_stamp_n = [0]
_stamp_names = []
def prof_reset():
    _stamp_n[0] = 0; del _stamp_names[:]
def stamp(p, name='', real=False):
    import common
    if not common.PROF: return
    i = _stamp_n[0]; _stamp_n[0] += 1; _stamp_names.append(name)
    assert i < 64
    p("%s s[100:101]" % ("s_memrealtime" if real else "s_memtime"))
    p.wait(lg=0)
    p("v_writelane_b32 v255, s100, %d" % i)
def prof_flush(p, sW):
    import common
    if not common.PROF: return
    srd(p, 4, P_WS, 0x40000, WS_PROF)
    p("s_lshl_b32 s78, s2, 2"); p("s_add_u32 s78, s78, s%d" % sW); p("s_lshl_b32 s78, s78, 8")
    p("v_lshlrev_b32 v2, 2, v1")
    p("buffer_store_dword v255, v2, s[4:7], s78 offen")
```

```python
from common import *
import common

sN, sJ, sR, sW = 32, 33, 34, 35
sT0, sT1, sT2, sT3 = 36, 37, 38, 39
FL_ = 96
SC = " sc1"

def unpack(p, dst, src, half):
    if half == 0: p("v_lshlrev_b32 v%d, 16, v%d" % (dst, src))
    else: p("v_and_b32 v%d, 0xffff0000, v%d" % (dst, src))

_uid = [0]
def flag_store(p, sOff):
    p("v_mov_b32 v252, s%d" % sN)
    p("v_mov_b32 v253, 0")
    p("s_mov_b64 exec, 1")
    p("buffer_store_dword v252, v253, s[%d:%d], s%d offen sc1" % (FL_, FL_ + 3, sOff), "flag")
    p("s_mov_b64 exec, -1")

def poll_issue(p, vdst, vaddr, sOff, tag):
    p("buffer_load_dword v%d, v%d, s[%d:%d], s%d offen sc1" % (vdst, vaddr, FL_, FL_ + 3, sOff), tag)

def poll_check(p, regs, vaddrs, sOffs):
    _uid[0] += 1; u = _uid[0]
    def cmp():
        p("v_cmp_ne_u32 vcc, s%d, v%d" % (sN, regs[0]))
        for r in regs[1:]:
            p("v_cmp_ne_u32 s[76:77], s%d, v%d" % (sN, r))
            p("s_nop 1")
            p("s_or_b64 vcc, vcc, s[76:77]")
        p("s_nop 4")
    cmp()
    p("s_cbranch_vccz Lp%d_ok" % u)
    saved = list(p.vm)
    p("s_mov_b32 s79, 0")
    p.label("Lp%d_loop" % u)
    p("s_sleep 2")
    for r, a, o in zip(regs, vaddrs, sOffs):
        p("buffer_load_dword v%d, v%d, s[%d:%d], s%d offen sc1" % (r, a, FL_, FL_ + 3, o))
    p.wait(vm=0)
    cmp()
    p("s_cbranch_vccz Lp%d_ok" % u)
    p("s_add_u32 s79, s79, 1")
    p("s_cmp_lt_u32 s79, 0x40000")
    p("s_cbranch_scc1 Lp%d_loop" % u)
    p.label("Lp%d_ok" % u)
    p.vm = saved

def get_nonce(p):
    DB_ = 40
    srd(p, DB_, P_DBG, 256)
    p("v_mov_b32 v253, 0")
    p.label("Lnonce")
    p("buffer_load_dwordx2 v[250:251], v253, s[%d:%d], 0 offen sc1" % (DB_, DB_ + 3))
    p.wait(vm=0)
    p("v_readfirstlane_b32 s%d, v251" % sT0)
    p("v_readfirstlane_b32 s%d, v250" % sN)
    p("s_cmp_eq_u32 s%d, 0" % sT0)
    p("s_cbranch_scc0 Lnonce_ok")
    p("s_sleep 2")
    p("s_branch Lnonce")
    p.label("Lnonce_ok")

def side_path_begin(p):
    return (list(p.vm), list(p.lg))
def side_path_end(p, st):
    p.vm, p.lg = list(st[0]), list(st[1])

def nonce_issue(p):
    p("v_mov_b32 v253, 0")
    p("buffer_load_dwordx2 v[250:251], v253, s[92:95], 0 offen sc1", "nonce")

def nonce_check(p):
    _uid[0] += 1; u = _uid[0]
    p("v_readfirstlane_b32 s%d, v251" % sT0)
    p("v_readfirstlane_b32 s%d, v250" % sN)
    p("s_cmp_eq_u32 s%d, 0" % sT0)
    p("s_cbranch_scc0 Ln%d_ok" % u)
    saved = list(p.vm)
    p("s_mov_b32 s79, 0")
    p.label("Ln%d_loop" % u)
    p("s_sleep 2")
    p("buffer_load_dwordx2 v[250:251], v253, s[92:95], 0 offen sc1")
    p.wait(vm=0)
    p("v_readfirstlane_b32 s%d, v251" % sT0)
    p("v_readfirstlane_b32 s%d, v250" % sN)
    p("s_add_u32 s79, s79, 1")
    p("s_cmp_lg_u32 s%d, 0" % sT0)
    p("s_cbranch_scc1 Ln%d_ok" % u)
    p("s_cmp_lt_u32 s79, 0x40000")
    p("s_cbranch_scc1 Ln%d_loop" % u)
    p.label("Ln%d_ok" % u)
    p.vm = saved

P_LDS, CSB_LDS, TAB_LDS = 131072, 139264, 59392
sROW, sDR, sFT0 = 72, 73, 74
def p_loads(p):
    K_, V_, SK_, Q_, W1_ = 40, 44, 48, 52, 56
    srd(p, K_, P_K, S * D * 2); srd(p, V_, P_V, S * D * 2); srd(p, SK_, P_SK, D * 8)
    srd(p, Q_, P_Q, S * D * 2); srd(p, W1_, P_W1, D * F * 2)
    vC, vRR, vA = 3, 4, 5
    p("v_and_b32 v%d, 7, v1" % vC)
    p("v_lshrrev_b32 v%d, 3, v1" % vRR)
    p("s_lshl_b32 s%d, s%d, 6" % (sT0, sR)); p("s_lshl_b32 s%d, s%d, 4" % (sT1, sW))
    p("s_add_u32 s%d, s%d, s%d" % (sT0, sT0, sT1)); p("s_lshl_b32 s%d, s%d, 10" % (sT0, sT0))
    p("s_lshl_b32 s%d, s%d, 7" % (sT1, sJ)); p("s_add_u32 s%d, s%d, s%d" % (sT0, sT0, sT1))
    p("v_lshlrev_b32 v%d, 11, v%d" % (vA, vRR))
    p("v_lshl_add_u32 v%d, v%d, 4, v%d" % (vA, vC, vA))
    p("v_add_u32 v%d, s%d, v%d" % (vA, sT0, vA))
    KR, VR, SKR, XR, CR = 16, 36, 44, 60, 68
    for i in range(5): p("v_add_u32 v%d, %d, v%d" % (6 + i, (i - 3) * 1024, vA))
    for i in range(5): p("buffer_load_dwordx4 %s, v%d, s[%d:%d], 0 offen" % (vr(KR + 4 * i, 4), 6 + i, K_, K_ + 3))
    p("buffer_load_dwordx4 %s, v%d, s[%d:%d], 0 offen" % (vr(VR, 4), vA, V_, V_ + 3))
    p("buffer_load_dwordx4 %s, v%d, s[%d:%d], 0 offen offset:1024" % (vr(VR + 4, 4), vA, V_, V_ + 3))
    p("s_lshr_b32 s%d, s%d, 1" % (sT0, sJ)); p("s_lshl_b32 s%d, s%d, 9" % (sT0, sT0))
    p("s_and_b32 s%d, s%d, 1" % (sT1, sJ)); p("s_lshl_b32 s%d, s%d, 5" % (sT1, sT1))
    p("s_add_u32 s%d, s%d, s%d" % (sT1, sT1, sR)); p("s_lshl_b32 s%d, s%d, 3" % (sT1, sT1))
    p("s_add_u32 s%d, s%d, s%d" % (sT0, sT0, sT1)); p("s_lshl_b32 s%d, s%d, 1" % (sT1, sW))
    p("s_add_u32 s%d, s%d, s%d" % (sROW, sT0, sT1))
    p("s_lshl_b32 s%d, s%d, 10" % (sT0, sROW))
    p("v_lshlrev_b32 v12, 4, v1")
    p("buffer_load_dwordx4 %s, v12, s[%d:%d], s%d offen" % (vr(XR, 4), Q_, Q_ + 3, sT0))
    p("buffer_load_dwordx4 %s, v12, s[%d:%d], s%d offen offset:1024" % (vr(XR + 4, 4), Q_, Q_ + 3, sT0))
    p("s_mul_i32 s%d, s%d, 37" % (sT0, sR)); p("s_lshr_b32 s%d, s%d, 8" % (sT0, sT0))
    p("s_mul_i32 s%d, s%d, 7" % (sT1, sT0)); p("s_sub_u32 s%d, s%d, s%d" % (sT1, sR, sT1))
    p("s_lshr_b32 s%d, s%d, 1" % (sT2, sJ)); p("s_lshl_b32 s%d, s%d, 2" % (sT2, sT2))
    p("s_add_u32 s%d, s%d, s%d" % (sDR, sT2, sT0))
    p("s_and_b32 s%d, s%d, 1" % (sT2, sJ)); p("s_mul_i32 s%d, s%d, 7" % (sT2, sT2))
    p("s_add_u32 s%d, s%d, s%d" % (sFT0, sT2, sT1))
    p("s_lshl_b32 s%d, s%d, 5" % (sT0, sDR)); p("s_lshl_b32 s%d, s%d, 3" % (sT1, sW))
    p("s_add_u32 s%d, s%d, s%d" % (sT0, sT0, sT1)); p("s_mul_i32 s%d, s%d, 3584" % (sT0, sT0))
    p("s_lshl_b32 s%d, s%d, 8" % (sT1, sFT0)); p("s_add_u32 s%d, s%d, s%d" % (sT0, sT0, sT1))
    p("v_lshrrev_b32 v13, 4, v1"); p("v_mul_u32_u24 v13, 3584, v13")
    p("v_and_b32 v14, 15, v1"); p("v_lshl_add_u32 v13, v14, 4, v13")
    p("buffer_load_dwordx4 %s, v13, s[%d:%d], s%d offen" % (vr(CR, 4), W1_, W1_ + 3, sT0))
    p("s_add_u32 s%d, s%d, %d" % (sT1, sT0, 4 * 3584))
    p("buffer_load_dwordx4 %s, v13, s[%d:%d], s%d offen" % (vr(CR + 4, 4), W1_, W1_ + 3, sT1))
    p("s_lshl_b32 s%d, s%d, 9" % (sT1, sJ))
    p("v_lshlrev_b32 v11, 6, v%d" % vC); p("v_add_u32 v11, s%d, v11" % sT1)
    for i in range(4):
        p("buffer_load_dwordx4 %s, v11, s[%d:%d], 0 offen offset:%d" % (vr(SKR + 4 * i, 4), SK_, SK_ + 3, 16 * i))

def p_compute(p):
    KVT_, ST_, CSP_ = 60, 64, 68
    srd(p, KVT_, P_WS, SZ_KVT, WS_KVT); srd(p, ST_, P_WS, SZ_ST, WS_ST); srd(p, CSP_, P_WS, SZ_CSP, WS_CSP)
    vC, vRR = 3, 4
    KR, VR, SKR, XR, CR = 16, 36, 44, 60, 68
    T, RES = 80, 100
    for rr in range(2):
        p("v_mov_b32 v%d, 0" % (T + 2 * rr)); p("v_mov_b32 v%d, 0" % (T + 2 * rr + 1))
    p("s_mov_b32 s75, 0x3f803f80")
    for i in range(4):
        for rr in range(2):
            sS, sQ = T + 2 * rr, T + 2 * rr + 1
            p("v_dot2_f32_bf16 v%d, v%d, s75, v%d" % (sS, XR + 4 * rr + i, sS))
            p("v_dot2_f32_bf16 v%d, v%d, v%d, v%d" % (sQ, XR + 4 * rr + i, XR + 4 * rr + i, sQ))
    for ctrl in ("row_shr:1 row_mask:0xf", "row_shr:2 row_mask:0xf", "row_shr:4 row_mask:0xf", "row_shr:8 row_mask:0xf",
                 "row_bcast:15 row_mask:0xa", "row_bcast:31 row_mask:0xc"):
        for q in range(4):
            p("v_add_f32_dpp v%d, v%d, v%d %s bank_mask:0xf" % (T + q, T + q, T + q, ctrl))
    for rr in range(2):
        sS, sQ = T + 2 * rr, T + 2 * rr + 1
        p("v_mul_f32 v%d, 0x3b000000, v%d" % (sS, sS)); p("v_mul_f32 v%d, 0x3b000000, v%d" % (sQ, sQ))
        p("v_fma_f32 v%d, -v%d, v%d, v%d" % (sQ, sS, sS, sQ))
        p("v_max_f32 v%d, 0, v%d" % (sQ, sQ))
        p("v_add_f32 v%d, 0x3727c5ac, v%d" % (sQ, sQ))
        p("v_rsq_f32 v%d, v%d" % (sQ, sQ))
    p("s_lshl_b32 s%d, s%d, 3" % (sT0, sROW))
    p("v_mov_b32 v6, s%d" % sT0)
    p("s_mov_b32 exec_lo, 0"); p("s_mov_b32 exec_hi, 0x80000000")
    p("buffer_store_dwordx4 %s, v6, s[%d:%d], 0 offen sc1" % (vr(T, 4), ST_, ST_ + 3), "pst")
    p("s_mov_b64 exec, -1")
    U = T + 8
    for i in range(4):
        for hf in range(2):
            unpack(p, U + 2 * i + hf, CR + i, hf); unpack(p, U + 8, CR + 4 + i, hf)
            p("v_add_f32 v%d, v%d, v%d" % (U + 2 * i + hf, U + 2 * i + hf, U + 8))
    p("v_lshrrev_b32 v6, 4, v1"); p("s_lshl_b32 s%d, s%d, 2" % (sT0, sW))
    p("v_add_u32 v6, s%d, v6" % sT0); p("v_lshlrev_b32 v6, 9, v6"); p("v_lshl_add_u32 v6, v14, 5, v6")
    p("v_add_u32 v6, %d, v6" % CSB_LDS)
    p("ds_write_b128 v6, %s" % vr(U, 4)); p("ds_write_b128 v6, %s offset:16" % vr(U + 4, 4))
    for e in range(8):
        dw, hf = e >> 1, e & 1
        for i in range(5): unpack(p, T + i, KR + 4 * i + dw, hf)
        unpack(p, T + 5, VR + dw, hf); unpack(p, T + 6, VR + 4 + dw, hf)
        unpack(p, T + 7, SKR + 2 * e, 0); unpack(p, T + 8, SKR + 2 * e, 1)
        unpack(p, T + 9, SKR + 2 * e + 1, 0); unpack(p, T + 10, SKR + 2 * e + 1, 1)
        p("v_mul_f32 v%d, v%d, v%d" % (T + 11, T + 3, T + 7)); p("v_mul_f32 v%d, v%d, v%d" % (T + 12, T + 4, T + 7))
        p("v_fmac_f32 v%d, v%d, v%d" % (T + 11, T + 2, T + 8)); p("v_fmac_f32 v%d, v%d, v%d" % (T + 12, T + 3, T + 8))
        p("v_fmac_f32 v%d, v%d, v%d" % (T + 11, T + 1, T + 9)); p("v_fmac_f32 v%d, v%d, v%d" % (T + 12, T + 2, T + 9))
        p("v_fmac_f32 v%d, v%d, v%d" % (T + 11, T + 0, T + 10)); p("v_fmac_f32 v%d, v%d, v%d" % (T + 12, T + 1, T + 10))
        p("v_mul_f32 v%d, v%d, v%d" % (T + 11, T + 11, T + 5)); p("v_mul_f32 v%d, v%d, v%d" % (T + 12, T + 12, T + 6))
        p("v_cvt_pk_bf16_f32 v%d, v%d, v%d" % (RES + e, T + 12, T + 11))
    p("s_lshl_b32 s%d, s%d, 3" % (sT0, sW)); p("s_sub_u32 s%d, 31, s%d" % (sT0, sT0))
    p("v_sub_u32 v15, s%d, v%d" % (sT0, vRR))
    p("v_lshrrev_b32 v6, 2, v15"); p("v_xor_b32 v6, v6, v%d" % vC)
    p("v_and_b32 v15, 3, v15"); p("v_lshlrev_b32 v15, 2, v15")
    p("v_lshl_add_u32 v15, v6, 4, v15"); p("v_lshl_add_u32 v15, v%d, 10, v15" % vC)
    p("v_add_u32 v15, %d, v15" % P_LDS)
    for e in range(8): p("ds_write_b32 v15, v%d offset:%d" % (RES + e, e * 128))
    p.wait(lg=0)
    p("s_barrier")
    p("s_lshl_b32 s%d, s%d, 4" % (sT0, sW))
    p("v_add_u32 v6, s%d, v%d" % (sT0, vRR))
    p("v_lshlrev_b32 v7, 7, v6"); p("v_lshl_add_u32 v7, v%d, 4, v7" % vC); p("v_add_u32 v7, %d, v7" % P_LDS)
    p("ds_read_b128 v[16:19], v7"); p("ds_read_b128 v[20:23], v7 offset:1024")
    p("v_and_b32 v11, 127, v0"); p("v_lshlrev_b32 v11, 2, v11"); p("v_add_u32 v12, %d, v11" % CSB_LDS)
    for i in range(16): p("ds_read_b32 v%d, v12 offset:%d" % (24 + i, i * 512))
    p("s_lshl_b32 s%d, s%d, 18" % (sT0, sJ)); p("s_lshl_b32 s%d, s%d, 7" % (sT1, sR))
    p("s_sub_u32 s%d, s%d, s%d" % (sT0, sT0, sT1)); p("s_add_u32 s%d, s%d, 3968" % (sT0, sT0))
    p("s_lshl_b32 s%d, s%d, 1" % (sT1, sW))
    p("v_lshlrev_b32 v8, 12, v6")
    p("v_xor_b32 v9, s%d, v%d" % (sT1, vC)); p("v_lshl_add_u32 v9, v9, 4, v8")
    p("s_add_u32 s%d, s%d, 1" % (sT1, sT1))
    p("v_xor_b32 v10, s%d, v%d" % (sT1, vC)); p("v_lshl_add_u32 v10, v10, 4, v8"); p("v_add_u32 v10, 0x8000, v10")
    p("buffer_store_dwordx4 v[16:19], v9, s[%d:%d], s%d offen sc1" % (KVT_, KVT_ + 3, sT0), "pst")
    p("buffer_store_dwordx4 v[20:23], v10, s[%d:%d], s%d offen sc1" % (KVT_, KVT_ + 3, sT0), "pst")
    for i in range(1, 16): p("v_add_f32 v24, v24, v%d" % (24 + i))
    p("s_mul_i32 s%d, s%d, %d" % (sT0, sDR, 1792 * 4)); p("s_lshl_b32 s%d, s%d, 9" % (sT1, sFT0))
    p("s_add_u32 s%d, s%d, s%d" % (sT0, sT0, sT1))
    p("s_cmp_lt_u32 s%d, 28" % sR); p("s_cselect_b32 s%d, s%d, 0x7f000000" % (sT0, sT0))
    p("s_cmp_lt_u32 s%d, 2" % sW); p("s_cselect_b32 s%d, s%d, 0x7f000000" % (sT0, sT0))
    p("buffer_store_dword v24, v11, s[%d:%d], s%d offen sc1" % (CSP_, CSP_ + 3, sT0), "pst")

def p_publish(p):
    p("s_lshr_b32 s%d, s%d, 1" % (sT0, sJ)); p("s_lshl_b32 s%d, s%d, 2" % (sT0, sT0))
    p("s_and_b32 s%d, s%d, 1" % (sT1, sJ)); p("s_lshl_b32 s%d, s%d, 1" % (sT1, sT1))
    p("s_add_u32 s%d, s%d, s%d" % (sT0, sT0, sT1)); p("s_lshr_b32 s%d, s%d, 4" % (sT1, sR))
    p("s_add_u32 s%d, s%d, s%d" % (sT0, sT0, sT1)); p("s_lshl_b32 s%d, s%d, 8" % (sT0, sT0))
    p("s_and_b32 s%d, s%d, 15" % (sT1, sR)); p("s_lshl_b32 s%d, s%d, 2" % (sT1, sT1))
    p("s_add_u32 s%d, s%d, s%d" % (sT1, sT1, sW)); p("s_lshl_b32 s%d, s%d, 2" % (sT1, sT1))
    p("s_add_u32 s%d, s%d, s%d" % (sT0, sT0, sT1))
    if FL_FS: p("s_add_u32 s%d, s%d, %d" % (sT0, sT0, FL_FS))
    flag_store(p, sT0)
    p("s_lshl_b32 s%d, s%d, 2" % (sT0, sJ)); p("s_add_u32 s%d, s%d, s%d" % (sT0, sT0, sW))
    p("s_lshl_b32 s%d, s%d, 5" % (sT0, sT0)); p("s_add_u32 s%d, s%d, s%d" % (sT0, sT0, sR))
    p("s_lshl_b32 s%d, s%d, 2" % (sT0, sT0)); p("s_add_u32 s%d, s%d, %d" % (sT0, sT0, FL_FK))
    flag_store(p, sT0)
    p("s_lshl_b32 s%d, s%d, 5" % (sT0, sFT0)); p("s_lshl_b32 s%d, s%d, 1" % (sT1, sDR))
    p("s_add_u32 s%d, s%d, s%d" % (sT0, sT0, sT1)); p("s_add_u32 s%d, s%d, s%d" % (sT0, sT0, sW))
    p("s_lshl_b32 s%d, s%d, 2" % (sT0, sT0)); p("s_add_u32 s%d, s%d, %d" % (sT0, sT0, FL_FC))
    p("s_cmp_lt_u32 s%d, 28" % sR); p("s_cselect_b32 s%d, s%d, 0x7f000000" % (sT0, sT0))
    p("s_cmp_lt_u32 s%d, 2" % sW); p("s_cselect_b32 s%d, s%d, 0x7f000000" % (sT0, sT0))
    flag_store(p, sT0)

sRB, sFT = sDR, sFT0
sXo, sWo, sM = 80, 81, 82
GQ_, GW1_ = 52, 56
vX, vWd, vXA, vWA = 200, 204, 208, 216
def g1_dma_setup(p):
    p("v_lshrrev_b32 v10, 3, v1"); p("v_and_b32 v11, 7, v1"); p("v_lshrrev_b32 v12, 1, v10")
    for ii in range(4):
        p("v_add_u32 v13, %d, v12" % (4 * (ii & 1))); p("v_xor_b32 v13, v13, v11")
        p("v_lshlrev_b32 v13, 4, v13"); p("v_lshl_add_u32 v13, v10, 10, v13")
        p("v_add_u32 v%d, %d, v13" % (vX + ii, ii * 8192))
    p("v_lshrrev_b32 v10, 4, v1"); p("v_and_b32 v11, 15, v1"); p("v_lshlrev_b32 v12, 2, v10")
    p("v_xor_b32 v12, v12, v11"); p("v_lshlrev_b32 v12, 4, v12")
    p("v_mul_u32_u24 v13, 3584, v10"); p("v_add_u32 v13, v13, v12")
    for ii in range(4): p("v_add_u32 v%d, %d, v13" % (vWd + ii, ii * 4 * 3584))
    p("s_lshl_b32 s%d, s%d, 17" % (sXo, sRB)); p("s_lshl_b32 s%d, s%d, 15" % (sT0, sW))
    p("s_add_u32 s%d, s%d, s%d" % (sXo, sXo, sT0))
    p("s_mul_i32 s%d, s%d, %d" % (sWo, sW, 16 * 3584)); p("s_lshl_b32 s%d, s%d, 8" % (sT0, sFT))
    p("s_add_u32 s%d, s%d, s%d" % (sWo, sWo, sT0))
    p("s_lshl_b32 s%d, s%d, 12" % (sM, sW))
def g1_dma_stage(s):
    out = []; slot = s % 4
    for ii in range(4):
        out.append(("s_add_u32 m0, s%d, %d" % (sM, slot * 32768 + ii * 1024), None))
        out.append(("buffer_load_dwordx4 v%d, s[%d:%d], s%d offen lds" % (vX + ii, GQ_, GQ_ + 3, sXo), "st%d" % s))
    for ii in range(4):
        out.append(("s_add_u32 m0, s%d, %d" % (sM, slot * 32768 + 16384 + ii * 1024), None))
        out.append(("buffer_load_dwordx4 v%d, s[%d:%d], s%d offen lds" % (vWd + ii, GW1_, GW1_ + 3, sWo), "st%d" % s))
    out.append(("s_add_u32 s%d, s%d, 128" % (sXo, sXo), None))
    out.append(("s_add_u32 s%d, s%d, %d" % (sWo, sWo, 64 * 3584), None))
    return out

G1_ACC = 64
vCS, vST = 128, 180
vPK = 184
vPA = 185
def g1_main(p):
    B1_, ST_, CSP_ = 40, 64, 68
    srd(p, B1_, P_B1, F * 2)
    p("v_and_b32 v10, 31, v1"); p("v_lshrrev_b32 v11, 5, v1")
    p("v_lshrrev_b32 v12, 1, v10"); p("v_and_b32 v12, 7, v12"); p("v_xor_b32 v12, v12, v11")
    p("s_lshr_b32 s%d, s%d, 1" % (sT1, sW)); p("s_lshl_b32 s%d, s%d, 13" % (sT1, sT1))
    p("v_lshlrev_b32 v13, 7, v10"); p("v_add_u32 v13, s%d, v13" % sT1)
    for jj in range(4):
        p("v_xor_b32 v14, %d, v12" % (2 * jj))
        p("v_lshl_add_u32 v%d, v14, 4, v13" % (vXA + jj))
        p("v_add_u32 v%d, 0x10000, v%d" % (vXA + 4 + jj, vXA + jj))
    p("v_and_b32 v10, 15, v1"); p("v_lshrrev_b32 v11, 4, v1"); p("v_lshrrev_b32 v12, 1, v11")
    p("v_and_b32 v11, 1, v11"); p("v_lshrrev_b32 v13, 2, v10")
    p("v_lshl_add_u32 v12, v12, 3, v13"); p("v_lshlrev_b32 v12, 8, v12")
    p("v_and_b32 v14, 1, v10"); p("v_lshl_add_u32 v12, v14, 3, v12"); p("v_add_u32 v12, 16384, v12")
    p("v_and_b32 v14, 3, v10"); p("v_lshrrev_b32 v14, 1, v14"); p("v_lshl_add_u32 v14, v11, 1, v14")
    p("s_and_b32 s%d, s%d, 1" % (sT1, sW)); p("s_lshl_b32 s%d, s%d, 3" % (sT1, sT1))
    p("v_add_u32 v14, s%d, v14" % sT1); p("v_lshlrev_b32 v13, 2, v13")
    for fb in range(2):
        p("v_add_u32 v15, %d, v14" % (4 * fb)); p("v_xor_b32 v15, v15, v13")
        p("v_lshl_add_u32 v%d, v15, 4, v12" % (vWA + fb))
        p("v_add_u32 v%d, 0x10000, v%d" % (vWA + 2 + fb, vWA + fb))
    ACC = G1_ACC
    for i in range(64): p("v_mov_b32 v%d, 0" % (ACC + i))
    FR = 32
    def reads(g):
        s, jj = g // 4, g % 4
        slot = s % 4; hi = slot >= 2; so = (slot & 1) * 32768
        f = FR + 16 * (g & 1); out = []
        for fb in range(2):
            for rr in range(2):
                out.append("ds_read_b64_tr_b16 %s, v%d offset:%d" % (vr(f + 4 * fb + 2 * rr, 2), vWA + fb + (2 if hi else 0), so + jj * 4096 + rr * 1024))
        for tb in range(2):
            out.append("ds_read_b128 %s, v%d offset:%d" % (vr(f + 8 + 4 * tb, 4), vXA + jj + (4 if hi else 0), so + tb * 4096))
        return out
    def mfmas(g):
        f = FR + 16 * (g & 1); out = []
        for fb in range(2):
            for tb in range(2):
                a = ACC + 16 * (2 * fb + tb)
                out.append("v_mfma_f32_32x32x16_bf16 %s, %s, %s, %s" % (vr(a, 16), vr(f + 4 * fb, 4), vr(f + 8 + 4 * tb, 4), vr(a, 16)))
        return out
    vF1, vF2 = 186, 187
    for s in range(8):
        if s == 2:
            p.wait_tag("nonce")
        elif s == 6:
            p.wait(vm=0)
        else:
            p.wait_tag("st%d" % s)
        p("s_barrier")
        if s in (0, 2, 4, 6): stamp(p, "g1_st%d" % s)
        if s == 2:
            nonce_check(p)
            p_publish(p)
        if s == 5:
            p("v_lshlrev_b32 v%d, 2, v1" % vPA)
            p("v_min_u32 v%d, 124, v%d" % (vPA + 3, vPA))
            p("s_lshl_b32 s83, s%d, 8" % sRB)
            if FL_FS: p("s_add_u32 s83, s83, %d" % FL_FS)
            p("s_lshl_b32 s84, s%d, 7" % sFT); p("s_add_u32 s84, s84, %d" % FL_FC)
            poll_issue(p, vF1, vPA, 83, "poll"); poll_issue(p, vF2, vPA + 3, 84, "poll")
            fk_addr(p)
            poll_issue(p, vPK, vPA + 3, 85, "poll")
        if s == 6:
            poll_check(p, [vF1, vF2], [vPA, vPA + 3], [83, 84])
            p("v_and_b32 v10, 127, v0"); p("v_lshlrev_b32 v11, 2, v10")
            p("s_lshl_b32 s%d, s%d, 9" % (sT0, sFT))
            for i in range(16):
                p("buffer_load_dword v%d, v11, s[%d:%d], s%d offen sc1" % (vCS + i, CSP_, CSP_ + 3, sT0), "tab")
                if i < 15: p("s_add_u32 s%d, s%d, %d" % (sT0, sT0, 1792 * 4))
            p("v_lshlrev_b32 v12, 1, v10"); p("s_lshl_b32 s%d, s%d, 8" % (sT0, sFT))
            p("buffer_load_ushort v%d, v12, s[%d:%d], s%d offen" % (vCS + 16, B1_, B1_ + 3, sT0), "tab")
            p("s_lshr_b32 s%d, s%d, 1" % (sT1, sW)); p("s_lshl_b32 s%d, s%d, 6" % (sT1, sT1))
            p("s_lshl_b32 s%d, s%d, 7" % (sT0, sRB)); p("s_add_u32 s%d, s%d, s%d" % (sT0, sT0, sT1))
            p("s_lshl_b32 s%d, s%d, 3" % (sT0, sT0))
            p("v_and_b32 v12, 31, v1"); p("v_lshlrev_b32 v12, 3, v12")
            p("buffer_load_dwordx2 %s, v12, s[%d:%d], s%d offen sc1" % (vr(vST, 2), ST_, ST_ + 3, sT0), "tab")
            p("buffer_load_dwordx2 %s, v12, s[%d:%d], s%d offen offset:256 sc1" % (vr(vST + 2, 2), ST_, ST_ + 3, sT0), "tab")
        dm = g1_dma_stage(s + 3) if s + 3 < 8 else []
        di = 0
        for jj in range(4):
            g = 4 * s + jj
            for t in reads(g): p(t)
            if g > 0:
                for t in mfmas(g - 1):
                    p(t)
                    for _ in range(2):
                        if di < len(dm): p(*dm[di]); di += 1
        while di < len(dm): p(*dm[di]); di += 1
    for t in mfmas(31): p(t)
    p.wait_tag("tab")
    for i in range(1, 16): p("v_add_f32 v%d, v%d, v%d" % (vCS, vCS, vCS + i))
    p("v_lshlrev_b32 v%d, 16, v%d" % (vCS + 16, vCS + 16))
    p("v_and_b32 v10, 127, v0"); p("v_lshlrev_b32 v10, 2, v10"); p("v_add_u32 v10, %d, v10" % TAB_LDS)
    p("ds_write_b32 v10, v%d" % vCS); p("ds_write_b32 v10, v%d offset:512" % (vCS + 16))
    p.wait(vm=0, lg=0)
    p("s_barrier")

def fk_addr(p):
    p("s_lshl_b32 s85, s%d, 2" % sJ); p("s_lshr_b32 s%d, s%d, 3" % (sT0, sR))
    p("s_add_u32 s85, s85, s%d" % sT0); p("s_lshl_b32 s85, s85, 7"); p("s_add_u32 s85, s85, %d" % FL_FK)

def g1_epilogue(p):
    HF_ = 44
    srd(p, HF_, P_WS, SZ_HF, WS_HF)
    ACC = G1_ACC; TBL = 128
    p("v_lshrrev_b32 v10, 5, v1"); p("v_lshlrev_b32 v10, 4, v10")
    p("s_and_b32 s%d, s%d, 1" % (sT1, sW)); p("s_lshl_b32 s%d, s%d, 8" % (sT1, sT1))
    p("v_add_u32 v10, s%d, v10" % sT1); p("v_add_u32 v10, %d, v10" % TAB_LDS)
    p("s_lshr_b32 s%d, s%d, 1" % (sT1, sW)); p("s_lshl_b32 s%d, s%d, 1" % (sT1, sT1))
    p("s_lshl_b32 s%d, s%d, 2" % (sT0, sRB)); p("s_add_u32 s%d, s%d, s%d" % (sT0, sT0, sT1))
    p("s_mul_i32 s%d, s%d, 112" % (sT0, sT0)); p("s_lshl_b32 s%d, s%d, 3" % (sT1, sFT))
    p("s_add_u32 s%d, s%d, s%d" % (sT0, sT0, sT1))
    p("s_and_b32 s%d, s%d, 1" % (sT1, sW)); p("s_lshl_b32 s%d, s%d, 2" % (sT1, sT1))
    p("s_add_u32 s%d, s%d, s%d" % (sT0, sT0, sT1)); p("s_lshl_b32 s%d, s%d, 10" % (sT0, sT0))
    p("v_lshlrev_b32 v11, 4, v1"); p("v_add_u32 v12, %d, v11" % (112 * 1024))
    for tb in range(2): p("v_mul_f32 v%d, v%d, v%d" % (vST + 2 * tb, vST + 2 * tb, vST + 2 * tb + 1))
    for fb in range(2):
        for rq in range(4):
            p("ds_read_b128 %s, v10 offset:%d" % (vr(TBL + 4 * rq, 4), fb * 128 + rq * 32))
            p("ds_read_b128 %s, v10 offset:%d" % (vr(TBL + 16 + 4 * rq, 4), 512 + fb * 128 + rq * 32))
        for tb in range(2):
            a = ACC + 16 * (2 * fb + tb); mu, rs = vST + 2 * tb, vST + 2 * tb + 1
            PK = 160 + 8 * tb
            for r_ in range(0, 16, 2):
                t0, t1 = 176 + (r_ & 2), 177 + (r_ & 2)
                p("v_fma_f32 v%d, -v%d, v%d, v%d" % (t0, mu, TBL + r_, TBL + 16 + r_))
                p("v_fma_f32 v%d, -v%d, v%d, v%d" % (t1, mu, TBL + r_ + 1, TBL + 17 + r_))
                p("v_fma_f32 v%d, v%d, v%d, v%d" % (t0, a + r_, rs, t0))
                p("v_fma_f32 v%d, v%d, v%d, v%d" % (t1, a + r_ + 1, rs, t1))
                p("v_max_f32 v%d, 0, v%d" % (t0, t0)); p("v_max_f32 v%d, 0, v%d" % (t1, t1))
                p("v_pk_mul_f32 %s, %s, %s" % (vr(t0, 2), vr(t0, 2), vr(t0, 2)))
                p("v_cvt_pk_bf16_f32 v%d, v%d, v%d" % (PK + (r_ >> 1), t0, t1))
            for q in range(2):
                p("buffer_store_dwordx4 %s, v%d, s[%d:%d], s%d offen offset:%d sc1" % (vr(PK + 4 * q, 4), 11 + tb, HF_, HF_ + 3, sT0, (2 * fb + q) * 1024), "hst")

def h_publish(p):
    p("s_lshl_b32 s%d, s%d, 1" % (sT0, sRB)); p("s_lshr_b32 s%d, s%d, 1" % (sT1, sW))
    p("s_add_u32 s%d, s%d, s%d" % (sT0, sT0, sT1)); p("s_lshl_b32 s%d, s%d, 5" % (sT0, sT0))
    p("s_lshl_b32 s%d, s%d, 1" % (sT1, sFT)); p("s_add_u32 s%d, s%d, s%d" % (sT0, sT0, sT1))
    p("s_and_b32 s%d, s%d, 1" % (sT1, sW)); p("s_add_u32 s%d, s%d, s%d" % (sT0, sT0, sT1))
    p("s_lshl_b32 s%d, s%d, 2" % (sT0, sT0)); p("s_add_u32 s%d, s%d, %d" % (sT0, sT0, FL_FH))
    flag_store(p, sT0)

sCH, sC2, sCB = 86, 87, 88
KVT2_, SSM_, DD_, ZT_ = 48, 52, 56, 60
CV_R = 16
vDD = 3
def conv_loads(p):
    srd(p, KVT2_, P_WS, SZ_KVT, WS_KVT); srd(p, SSM_, P_SSM, D * S * 2); srd(p, DD_, P_DD, D * 2); srd(p, ZT_, P_WS, SZ_ZT, WS_ZT)
    p("s_lshr_b32 s%d, s%d, 1" % (sT0, sW)); p("s_and_b32 s%d, s%d, 1" % (sC2, sW))
    p("s_lshl_b32 s%d, s%d, 6" % (sCH, sJ)); p("s_lshl_b32 s%d, s%d, 1" % (sT1, sR))
    p("s_add_u32 s%d, s%d, s%d" % (sCH, sCH, sT1)); p("s_add_u32 s%d, s%d, s%d" % (sCH, sCH, sT0))
    p("s_mul_i32 s%d, s%d, 21248" % (sCB, sT0)); p("s_add_u32 s%d, s%d, 256" % (sCB, sCB))
    p("s_lshl_b32 s%d, s%d, 12" % (sT0, sCH)); p("s_lshl_b32 s%d, s%d, 11" % (sT1, sC2))
    p("s_add_u32 s%d, s%d, s%d" % (sT0, sT0, sT1))
    p("v_lshlrev_b32 v2, 4, v1")
    R = CV_R
    for sg in range(2):
        for k in range(3):
            p("buffer_load_dwordx4 %s, v2, s[%d:%d], s%d offen offset:%d sc1" % (vr(R + 12 * sg + 4 * k, 4), KVT2_, KVT2_ + 3, sT0, sg * 1024 + 4 * k), "cv")
    for sg in range(2):
        p("s_add_u32 s%d, s%d, s%d" % (sT2, sCB, sT1))
        p("s_add_u32 m0, s%d, %d" % (sT2, 16640 + 512 + sg * 1024))
        p("s_add_u32 s%d, s%d, %d" % (sT2, sT0, sg * 1024))
        p("buffer_load_dwordx4 v2, s[%d:%d], s%d offen lds" % (SSM_, SSM_ + 3, sT2), "cv")
    p("v_mov_b32 v4, 0"); p("s_lshl_b32 s%d, s%d, 1" % (sT2, sCH))
    p("buffer_load_ushort v%d, v4, s[%d:%d], s%d offen" % (vDD, DD_, DD_ + 3, sT2), "cv")

def conv_fill(p):
    R = CV_R
    for i in range(4): p("v_mov_b32 v%d, 0" % (8 + i))
    p("v_lshrrev_b32 v5, 1, v1"); p("v_mul_u32_u24 v5, 4160, v5")
    p("v_and_b32 v6, 1, v1"); p("v_lshl_add_u32 v5, v6, 4, v5"); p("v_add_u32 v5, 4096, v5")
    p("v_add_u32 v6, 16640, v2")
    p("s_cmp_eq_u32 s%d, 0" % sC2)
    p("s_cselect_b32 s76, 0xff, -1")
    p("s_cselect_b64 vcc, -1, 0")
    p("v_cndmask_b32 v5, v6, v5, vcc")
    p("v_add_u32 v5, s%d, v5" % sCB)
    p("s_mov_b32 exec_lo, s76"); p("s_mov_b32 exec_hi, 0")
    p("ds_write_b128 v5, v[8:11]")
    p("s_mov_b64 exec, -1")
    p("s_lshl_b32 s77, s%d, 31" % sC2); p("s_mov_b32 s76, 0")
    last = R + 12
    for rg in (last + 7, last + 10, last + 11): p("v_cndmask_b32 v%d, v%d, v8, s[76:77]" % (rg, rg))
    p("s_lshl_b32 s%d, s%d, 11" % (sT1, sC2)); p("s_add_u32 s%d, s%d, s%d" % (sT1, sT1, sCB))
    p("v_add_u32 v5, s%d, v2" % sT1)
    for sg in range(2):
        r0, r1, r2 = R + 12 * sg, R + 12 * sg + 4, R + 12 * sg + 8
        c1, c3 = 40 + 8 * sg, 44 + 8 * sg
        p("ds_write_b128 v5, %s offset:%d" % (vr(r0, 4), sg * 1024))
        p("ds_write_b128 v5, %s offset:%d" % (vr(r1, 4), 2 * 4160 + sg * 1024))
        for i in range(4): p("v_alignbit_b32 v%d, v%d, v%d, 16" % (c1 + i, r1 + i, r0 + i))
        for i in range(4): p("v_alignbit_b32 v%d, v%d, v%d, 16" % (c3 + i, r2 + i, r1 + i))
        p("ds_write_b128 v5, %s offset:%d" % (vr(c1, 4), 4160 + sg * 1024))
        p("ds_write_b128 v5, %s offset:%d" % (vr(c3, 4), 3 * 4160 + sg * 1024))

def conv_main(p, extra_by_class):
    vA, vB = 12, 13
    p("v_and_b32 v6, 15, v1"); p("v_lshrrev_b32 v7, 4, v1")
    p("v_sub_u32 v14, 3, v6"); p("v_and_b32 v14, 3, v14")
    p("v_mul_u32_u24 v15, 4158, v14")
    p("v_lshlrev_b32 v14, 1, v6"); p("v_sub_u32 v15, v15, v14"); p("v_lshl_add_u32 v15, v7, 4, v15")
    p("s_lshl_b32 s%d, s%d, 8" % (sT1, sC2)); p("s_sub_u32 s%d, s%d, s%d" % (sT1, sCB, sT1))
    p("s_add_u32 s%d, s%d, 30" % (sT2, sT1)); p("v_add_u32 v%d, s%d, v15" % (vA, sT2))
    p("v_lshlrev_b32 v15, 5, v6"); p("v_lshl_add_u32 v15, v7, 4, v15")
    p("s_add_u32 s%d, s%d, %d" % (sT2, sT1, 16640 + 32)); p("v_add_u32 v%d, s%d, v15" % (vB, sT2))
    ACC = 64
    for i in range(32): p("v_mov_b32 v%d, 0" % (ACC + i))
    p.wait(lg=0)
    p("s_barrier")
    stamp(p, "conv_filled")
    FA, FB = 96, 160
    def reads(rl):
        st = rl & 1; out = []
        for x in range(8):
            oa = 64 * (63 - rl - 8 * x)
            out.append(("ds_read_b64 %s, v%d offset:%d" % (vr(FA + 32 * st + 4 * x, 2), vA, oa), None))
            out.append(("ds_read_b64 %s, v%d offset:%d" % (vr(FA + 32 * st + 4 * x + 2, 2), vA, oa + 8), None))
            out.append(("ds_read_b128 %s, v%d offset:%d" % (vr(FB + 32 * st + 4 * x, 4), vB, 64 * (7 - rl + 8 * x)), None))
        return out
    def mf(rl):
        st = rl & 1; out = []
        pairs = sorted([(a, b) for a in range(8) for b in range(8) if a + b <= 7], key=lambda ab: (max(ab), ab))
        for a, b in pairs:
            out.append(("v_mfma_f32_16x16x32_bf16 %s, %s, %s, %s" % (vr(ACC + 4 * (a + b), 4), vr(FA + 32 * st + 4 * a, 4), vr(FB + 32 * st + 4 * b, 4), vr(ACC + 4 * (a + b), 4)), None))
        return out
    for t in reads(0): p(*t)
    for rl in range(4):
        pre, fill = extra_by_class[rl]
        pre(p)
        nxt = (reads(rl + 1) if rl < 3 else [])
        merged = interleave(nxt, fill, len(fill) / max(1.0, float(len(nxt)))) if nxt else list(fill)
        for t in interleave(mf(rl), merged, len(merged) / 36.0): p(*t)
    stamp(p, "conv_mma_done")

def conv_finish(p, name):
    ACC = 64
    RB = 256 + 2 * 21248
    p("s_lshl_b32 s%d, s%d, 12" % (sT1, sW))
    p("v_add_u32 v5, s%d, v2" % sT1); p("v_add_u32 v5, %d, v5" % RB)
    p("s_xor_b32 s%d, s%d, 1" % (sT1, sW)); p("s_lshl_b32 s%d, s%d, 12" % (sT1, sT1))
    p("v_add_u32 v14, s%d, v2" % sT1); p("v_add_u32 v14, %d, v14" % RB)
    p("v_lshlrev_b32 v15, 5, v6"); p("v_lshl_add_u32 v15, v7, 3, v15")
    p("s_lshl_b32 s%d, s%d, 11" % (sT1, sC2)); p("s_sub_u32 s%d, s%d, s%d" % (sT2, sCB, sT1))
    p("s_add_u32 s%d, s%d, %d" % (sT2, sT2, 4088 - 1536)); p("v_sub_u32 v16, s%d, v15" % sT2)
    p("s_lshl_b32 s%d, s%d, 12" % (sT2, sCH)); p("s_add_u32 s%d, s%d, s%d" % (sT2, sT2, sT1))
    p("v_lshlrev_b32 v%d, 16, v%d" % (vDD, vDD))
    st = side_path_begin(p)
    p("s_cmp_eq_u32 s%d, 0" % sC2)
    p("s_cbranch_scc0 %s_hi" % name)
    for variant in range(2):
        keep = ACC + 16 * variant; give = ACC + 16 * (1 - variant)
        if variant == 1:
            p("s_branch %s_cdone" % name)
            end_state = side_path_begin(p)
            p.label("%s_hi" % name)
            side_path_end(p, st)
            p("s_nop 7")
        for q in range(4): p("ds_write_b128 v5, %s offset:%d" % (vr(give + 4 * q, 4), q * 1024))
        for q in range(4): p("ds_read_b64 %s, v16 offset:%d" % (vr(36 + 2 * q, 2), (3 - q) * 512))
        for q in range(4):
            a_ = keep + 4 * q; u = 36 + 2 * q
            for c, (src, hf) in enumerate(((u + 1, 1), (u + 1, 0), (u, 1), (u, 0))):
                unpack(p, 44 + (c & 1), src, hf)
                p("v_fmac_f32 v%d, v%d, v%d" % (a_ + c, 44 + (c & 1), vDD))
        p.wait(lg=0)
        p("s_barrier")
        for q in range(4): p("ds_read_b128 %s, v14 offset:%d" % (vr(20 + 4 * q, 4), q * 1024))
        for q in range(4):
            a_ = keep + 4 * q
            for c in range(4): p("v_add_f32 v%d, v%d, v%d" % (a_ + c, a_ + c, 20 + 4 * q + c))
            p("v_cvt_pk_bf16_f32 v%d, v%d, v%d" % (48 + 2 * q, a_, a_ + 1))
            p("v_cvt_pk_bf16_f32 v%d, v%d, v%d" % (49 + 2 * q, a_ + 2, a_ + 3))
            p("buffer_store_dwordx2 %s, v15, s[%d:%d], s%d offen offset:%d sc1" % (vr(48 + 2 * q, 2), ZT_, ZT_ + 3, sT2, q * 512), "zst")
    p.label("%s_cdone" % name)

def z_publish(p):
    p("s_lshl_b32 s%d, s%d, 7" % (sT0, sJ)); p("s_lshl_b32 s%d, s%d, 2" % (sT1, sR))
    p("s_add_u32 s%d, s%d, s%d" % (sT0, sT0, sT1)); p("s_add_u32 s%d, s%d, s%d" % (sT0, sT0, sW))
    p("s_lshl_b32 s%d, s%d, 2" % (sT0, sT0)); p("s_add_u32 s%d, s%d, %d" % (sT0, sT0, FL_FZ))
    flag_store(p, sT0)

DEPTH_W, DEPTH_H = 12, 12
RING = DEPTH_W * 2048
RING0 = 65536
RED, XT, ZTT = 0, 49152, 57344
sTok, sCh, sHo, sWo2, sM2, sXO = 89, 90, 91, 80, 81, 82
HF2_, W2_, Q2_, ZT2_, ST2_, B2_, OUT_ = 40, 68, 48, 52, 56, 64, 44
vH0, vH1, vD0, vD1 = 240, 241, 242, 243
NS = 28
def g2_setup(p):
    srd(p, W2_, P_W2, F * D * 2)
    p("s_lshl_b32 s%d, s%d, 8" % (sTok, sJ))
    p("s_lshr_b32 s%d, s%d, 3" % (sT0, sR)); p("s_lshl_b32 s%d, s%d, 6" % (sT0, sT0))
    p("s_add_u32 s%d, s%d, s%d" % (sTok, sTok, sT0))
    p("s_and_b32 s%d, s%d, 7" % (sCh, sR)); p("s_lshl_b32 s%d, s%d, 6" % (sCh, sCh))
    p("s_lshr_b32 s%d, s%d, 5" % (sT0, sTok)); p("s_mul_i32 s%d, s%d, 112" % (sT0, sT0))
    p("s_mul_i32 s%d, s%d, 28" % (sT1, sW))
    p("s_add_u32 s%d, s%d, s%d" % (sT0, sT0, sT1)); p("s_lshl_b32 s%d, s%d, 10" % (sHo, sT0))
    p("s_lshl_b32 s%d, s%d, 14" % (sWo2, sT1)); p("s_lshl_b32 s%d, s%d, 1" % (sT0, sCh))
    p("s_add_u32 s%d, s%d, s%d" % (sWo2, sWo2, sT0))
    p("s_mul_i32 s%d, s%d, %d" % (sM2, sW, RING)); p("s_add_u32 s%d, s%d, %d" % (sM2, sM2, RING0))
    p("v_lshlrev_b32 v%d, 4, v1" % vH0)
    p("v_add_u32 v%d, %d, v%d" % (vH1, 112 * 1024, vH0))
    p("v_lshrrev_b32 v244, 3, v1"); p("v_and_b32 v245, 7, v1")
    p("v_lshrrev_b32 v246, 1, v244"); p("v_and_b32 v246, 1, v246"); p("v_lshlrev_b32 v246, 2, v246")
    p("v_xor_b32 v246, v246, v245"); p("v_lshlrev_b32 v246, 4, v246")
    p("v_lshl_add_u32 v%d, v244, 10, v246" % vD0)
    p("v_add_u32 v%d, 8192, v%d" % (vD1, vD0))
def w2_dma(s):
    slot = s % DEPTH_W
    return [("s_add_u32 m0, s%d, %d" % (sM2, slot * 2048), None),
            ("buffer_load_dwordx4 v%d, s[%d:%d], s%d offen lds" % (vD0, W2_, W2_ + 3, sWo2), "w%d" % s),
            ("s_add_u32 m0, s%d, %d" % (sM2, slot * 2048 + 1024), None),
            ("buffer_load_dwordx4 v%d, s[%d:%d], s%d offen lds" % (vD1, W2_, W2_ + 3, sWo2), "w%d" % s),
            ("s_add_u32 s%d, s%d, 16384" % (sWo2, sWo2), None)]
def h_loads(s):
    slot = s % DEPTH_H
    return [("buffer_load_dwordx4 %s, v%d, s[%d:%d], s%d offen sc1" % (ar(8 * slot, 4), vH0, HF2_, HF2_ + 3, sHo), "h%d" % s),
            ("buffer_load_dwordx4 %s, v%d, s[%d:%d], s%d offen sc1" % (ar(8 * slot + 4, 4), vH1, HF2_, HF2_ + 3, sHo), "h%d" % s),
            ("s_add_u32 s%d, s%d, 1024" % (sHo, sHo), None)]
vFH, vFHA = 247, 248
def fh_poll_issue(p):
    p("v_lshlrev_b32 v%d, 2, v1" % vFHA); p("v_min_u32 v%d, 108, v%d" % (vFHA, vFHA))
    p("s_lshr_b32 s83, s%d, 6" % sTok); p("s_lshl_b32 s83, s83, 7"); p("s_add_u32 s83, s83, %d" % FL_FH)
    poll_issue(p, vFH, vFHA, 83, "fh")

def g2_h_start(p):
    srd(p, HF2_, P_WS, SZ_HF, WS_HF)
    p.wait_tag("fh")
    poll_check(p, [vFH], [vFHA], [83])
    stamp(p, "g2_h_ready")
    for s in range(DEPTH_H):
        for t in h_loads(s): p(*t)

def g2_main(p):
    srd(p, Q2_, P_Q, S * D * 2)
    srd(p, ZT2_, P_WS, SZ_ZT, WS_ZT); srd(p, ST2_, P_WS, SZ_ST, WS_ST); srd(p, B2_, P_B2, D * 2); srd(p, OUT_, P_OUT, S * D * 2)
    p.wait(lg=0)
    p("s_barrier")
    p("v_lshrrev_b32 v10, 3, v1"); p("v_and_b32 v11, 7, v1"); p("v_lshrrev_b32 v12, 1, v10")
    for ii in range(2):
        p("v_add_u32 v13, %d, v12" % (4 * ii)); p("v_xor_b32 v13, v13, v11")
        p("v_lshlrev_b32 v13, 4, v13"); p("v_lshl_add_u32 v%d, v10, 10, v13" % (6 + ii))
    p("s_lshl_b32 s%d, s%d, 4" % (sT0, sW)); p("s_add_u32 s%d, s%d, s%d" % (sT0, sT0, sTok))
    p("s_lshl_b32 s%d, s%d, 10" % (sT0, sT0)); p("s_lshl_b32 s%d, s%d, 1" % (sT1, sCh))
    p("s_add_u32 s%d, s%d, s%d" % (sXO, sT0, sT1))
    p("s_lshl_b32 s%d, s%d, 11" % (sT2, sW))
    for ii in range(2):
        p("s_add_u32 m0, s%d, %d" % (sT2, XT + ii * 1024)); p("s_add_u32 s%d, s%d, %d" % (sT0, sXO, ii * 8192))
        p("buffer_load_dwordx4 v%d, s[%d:%d], s%d offen lds" % (6 + ii, Q2_, Q2_ + 3, sT0), "ep")
    vST2, vB2 = 16, 20
    p("s_lshr_b32 s%d, s%d, 1" % (sT0, sW)); p("s_lshl_b32 s%d, s%d, 5" % (sT0, sT0))
    p("s_add_u32 s%d, s%d, s%d" % (sT0, sT0, sTok)); p("s_lshl_b32 s%d, s%d, 3" % (sT0, sT0))
    p("v_and_b32 v12, 31, v1"); p("v_lshlrev_b32 v13, 3, v12")
    p("buffer_load_dwordx2 %s, v13, s[%d:%d], s%d offen sc1" % (vr(vST2, 2), ST2_, ST2_ + 3, sT0), "ep")
    p("s_and_b32 s%d, s%d, 1" % (sT0, sW)); p("s_lshl_b32 s%d, s%d, 5" % (sT0, sT0))
    p("s_add_u32 s%d, s%d, s%d" % (sT0, sT0, sCh)); p("s_lshl_b32 s%d, s%d, 1" % (sT0, sT0))
    p("v_lshrrev_b32 v13, 5, v1"); p("v_lshlrev_b32 v13, 5, v13")
    p("buffer_load_dwordx4 %s, v13, s[%d:%d], s%d offen" % (vr(vB2, 4), B2_, B2_ + 3, sT0), "ep")
    p("buffer_load_dwordx4 %s, v13, s[%d:%d], s%d offen offset:16" % (vr(vB2 + 4, 4), B2_, B2_ + 3, sT0), "ep")
    vA = 28
    p("v_and_b32 v10, 15, v1"); p("v_lshrrev_b32 v11, 4, v1"); p("v_lshrrev_b32 v12, 1, v11"); p("v_and_b32 v11, 1, v11")
    p("v_lshrrev_b32 v13, 2, v10"); p("v_lshl_add_u32 v12, v12, 2, v13"); p("v_lshlrev_b32 v12, 7, v12")
    p("v_and_b32 v14, 3, v10"); p("v_lshrrev_b32 v15, 1, v14"); p("v_lshl_add_u32 v12, v15, 3, v12")
    p("v_and_b32 v14, 1, v14"); p("v_lshl_add_u32 v14, v14, 1, v11")
    p("v_lshrrev_b32 v15, 3, v10"); p("v_lshlrev_b32 v15, 2, v15")
    p("v_add_u32 v12, s%d, v12" % sM2)
    for cb in range(2):
        p("v_add_u32 v13, %d, v14" % (4 * cb)); p("v_xor_b32 v13, v13, v15")
        p("v_lshl_add_u32 v%d, v13, 4, v12" % (vA + cb))
    ACC = 64
    for i in range(64): p("v_mov_b32 v%d, 0" % (ACC + i))
    FR = 32
    def reads(s):
        slot = s % DEPTH_W; f = FR + 8 * (s & 1); out = []
        for cb in range(2):
            for rr in range(2):
                out.append("ds_read_b64_tr_b16 %s, v%d offset:%d" % (vr(f + 4 * cb + 2 * rr, 2), vA + cb, slot * 2048 + rr * 1024))
        return out
    def mfmas(s):
        slot = s % DEPTH_H; f = FR + 8 * (s & 1); out = []
        for cb in range(2):
            for tb in range(2):
                a = ACC + 16 * (2 * tb + cb)
                out.append("v_mfma_f32_32x32x16_bf16 %s, %s, %s, %s" % (vr(a, 16), vr(f + 4 * cb, 4), ar(8 * slot + 4 * tb, 4), vr(a, 16)))
        return out
    vFZ = 48
    p.wait_tag("w0")
    for t in reads(0): p(t)
    for s in range(NS):
        if s + 1 < NS:
            p.wait_tag("w%d" % (s + 1))
            for t in reads(s + 1): p(t)
        if s == 0: stamp(p, "g2_first")
        for t in mfmas(s): p(t)
        if s + DEPTH_W < NS:
            for t in w2_dma(s + DEPTH_W): p(*t)
        if s + DEPTH_H < NS:
            for t in h_loads(s + DEPTH_H): p(*t)
        if s == 4:
            p.wait_tag("zst")
            z_publish(p)
        if s == 12:
            p("v_lshlrev_b32 v%d, 2, v1" % (vFZ + 2)); p("v_add_u32 v%d, 256, v%d" % (vFZ + 3, vFZ + 2))
            p("s_lshr_b32 s84, s%d, 6" % sCh); p("s_lshl_b32 s84, s84, 9"); p("s_add_u32 s84, s84, %d" % FL_FZ)
            poll_issue(p, vFZ, vFZ + 2, 84, "fz"); poll_issue(p, vFZ + 1, vFZ + 3, 84, "fz")
        if s == 18:
            p.wait_tag("fz")
            poll_check(p, [vFZ, vFZ + 1], [vFZ + 2, vFZ + 3], [84, 84])
            p("v_lshrrev_b32 v10, 3, v1"); p("v_and_b32 v11, 7, v1")
            p("v_lshlrev_b32 v12, 4, v11"); p("v_lshl_add_u32 v8, v10, 12, v12")
            p("s_lshl_b32 s%d, s%d, 4" % (sT0, sW)); p("s_add_u32 s%d, s%d, s%d" % (sT0, sT0, sCh))
            p("s_lshl_b32 s%d, s%d, 12" % (sT0, sT0)); p("s_lshl_b32 s%d, s%d, 1" % (sT1, sTok))
            p("s_add_u32 s%d, s%d, s%d" % (sT0, sT0, sT1))
            p("buffer_load_dwordx4 %s, v8, s[%d:%d], s%d offen sc1" % (vr(52, 4), ZT2_, ZT2_ + 3, sT0), "z")
            p("s_add_u32 s%d, s%d, %d" % (sT0, sT0, 8 * 4096))
            p("buffer_load_dwordx4 %s, v8, s[%d:%d], s%d offen sc1" % (vr(56, 4), ZT2_, ZT2_ + 3, sT0), "z")
        if s == 24:
            p("v_lshrrev_b32 v10, 3, v1"); p("v_and_b32 v11, 7, v1")
            p("v_lshrrev_b32 v12, 1, v10"); p("v_and_b32 v12, 1, v12"); p("v_lshlrev_b32 v12, 2, v12")
            p("v_xor_b32 v12, v12, v11"); p("v_lshlrev_b32 v12, 4, v12"); p("v_lshl_add_u32 v12, v10, 7, v12")
            p("s_lshl_b32 s%d, s%d, 11" % (sT2, sW)); p("s_add_u32 s%d, s%d, %d" % (sT2, sT2, ZTT))
            p("v_add_u32 v12, s%d, v12" % sT2)
            p("ds_write_b128 v12, %s" % vr(52, 4)); p("ds_write_b128 v12, %s offset:1024" % vr(56, 4))
    stamp(p, "g2_mma_done")

def g2_epilogue(p, name):
    ACC = 64; vST2, vB2 = 16, 20
    OWN = 176
    st = side_path_begin(p)
    for w in range(4):
        if w < 3:
            p("s_cmp_eq_u32 s%d, %d" % (sW, w))
            p("s_cbranch_scc0 %s_rw%d" % (name, w + 1))
        side_path_end(p, st)
        p("s_nop 7"); p("s_nop 3")
        for rel in range(1, 4):
            q = w ^ rel
            for rq in range(4):
                p("ds_write_b128 v%d, %s offset:%d" % (vH0, vr(ACC + 16 * q + 4 * rq, 4), RED + q * 12288 + (rel - 1) * 4096 + rq * 1024))
        for i in range(16): p("v_mov_b32 v%d, v%d" % (OWN + i, ACC + 16 * w + i))
        if w < 3:
            p("s_branch %s_rwd" % name)
            p.label("%s_rw%d" % (name, w + 1))
    p.label("%s_rwd" % name)
    XR, ZR = 128, 136
    p("v_and_b32 v11, 31, v1"); p("v_lshrrev_b32 v12, 5, v1")
    p("s_lshr_b32 s%d, s%d, 1" % (sT0, sW)); p("s_lshl_b32 s%d, s%d, 5" % (sT0, sT0))
    p("v_add_u32 v11, s%d, v11" % sT0)
    p("v_lshrrev_b32 v13, 1, v11"); p("v_and_b32 v13, 7, v13")
    p("s_and_b32 s%d, s%d, 1" % (sT1, sW)); p("s_lshl_b32 s%d, s%d, 2" % (sT1, sT1))
    p("v_lshlrev_b32 v12, 1, v12"); p("v_add_u32 v12, s%d, v12" % sT1)
    p("v_lshlrev_b32 v11, 7, v11")
    p("v_xor_b32 v14, v12, v13"); p("v_lshl_add_u32 v14, v14, 4, v11")
    p("v_add_u32 v12, 1, v12"); p("v_xor_b32 v15, v12, v13"); p("v_lshl_add_u32 v15, v15, 4, v11")
    p("v_add_u32 v6, %d, v14" % XT); p("v_add_u32 v7, %d, v15" % XT)
    p("v_and_b32 v10, 15, v1"); p("v_lshrrev_b32 v11, 4, v1"); p("v_lshrrev_b32 v12, 1, v11"); p("v_and_b32 v11, 1, v11")
    p("v_lshrrev_b32 v13, 2, v10"); p("v_lshl_add_u32 v12, v12, 4, v13")
    p("s_and_b32 s%d, s%d, 1" % (sT1, sW)); p("s_lshl_b32 s%d, s%d, 5" % (sT1, sT1))
    p("v_add_u32 v12, s%d, v12" % sT1); p("v_lshlrev_b32 v12, 7, v12")
    p("v_and_b32 v13, 1, v10"); p("v_lshl_add_u32 v12, v13, 3, v12")
    p("v_and_b32 v13, 3, v10"); p("v_lshrrev_b32 v13, 1, v13"); p("v_lshl_add_u32 v13, v11, 1, v13")
    p("s_lshr_b32 s%d, s%d, 1" % (sT1, sW)); p("s_lshl_b32 s%d, s%d, 2" % (sT1, sT1))
    p("v_add_u32 v13, s%d, v13" % sT1)
    p("v_lshrrev_b32 v8, 3, v10"); p("v_lshlrev_b32 v8, 2, v8"); p("v_xor_b32 v13, v13, v8")
    p("v_lshl_add_u32 v12, v13, 4, v12"); p("v_add_u32 v12, %d, v12" % ZTT)
    p("s_mul_i32 s%d, s%d, 12288" % (sT0, sW)); p("v_add_u32 v10, s%d, v%d" % (sT0, vH0))
    mu, rs = vST2, vST2 + 1
    p.wait_tag("ep")
    p("v_mul_f32 v%d, v%d, v%d" % (mu, mu, rs))
    p.wait(lg=0)
    p("s_barrier")
    stamp(p, "g2_red_bar")
    p("ds_read_b128 %s, v6" % vr(XR, 4)); p("ds_read_b128 %s, v7" % vr(XR + 4, 4))
    for m in range(4): p("ds_read_b64_tr_b16 %s, v12 offset:%d" % (vr(ZR + 2 * m, 2), m * 512))
    for sl in range(3):
        for rq in range(4):
            p("ds_read_b128 %s, v10 offset:%d" % (vr(ACC + 16 * sl + 4 * rq, 4), RED + sl * 4096 + rq * 1024))
    Y = 144
    for r_ in range(16):
        x, z, b = 30, 31, 32
        unpack(p, x, XR + (r_ >> 1), r_ & 1); unpack(p, z, ZR + (r_ >> 1), r_ & 1); unpack(p, b, vB2 + (r_ >> 1), r_ & 1)
        p("v_fma_f32 v%d, v%d, v%d, -v%d" % (Y + r_, x, rs, mu))
        p("v_add_f32 v%d, v%d, v%d" % (b, b, x))
        p("v_add_f32 v%d, v%d, v%d" % (b, b, OWN + r_))
        p("v_fma_f32 v%d, v%d, v%d, v%d" % (Y + r_, Y + r_, z, b))
    PK = 160
    for r_ in range(16):
        p("v_add_f32 v%d, v%d, v%d" % (ACC + r_, ACC + r_, ACC + 16 + r_))
        p("v_add_f32 v%d, v%d, v%d" % (Y + r_, Y + r_, ACC + 32 + r_))
        p("v_add_f32 v%d, v%d, v%d" % (Y + r_, Y + r_, ACC + r_))
        if r_ & 1: p("v_cvt_pk_bf16_f32 v%d, v%d, v%d" % (PK + (r_ >> 1), Y + r_ - 1, Y + r_))
    p("ds_write_b128 v6, %s" % vr(PK, 4)); p("ds_write_b128 v7, %s" % vr(PK + 4, 4))
    p("v_lshrrev_b32 v10, 3, v1"); p("v_and_b32 v11, 7, v1"); p("v_lshrrev_b32 v12, 1, v10")
    for ii in range(2):
        p("v_add_u32 v13, %d, v12" % (4 * ii)); p("v_xor_b32 v13, v13, v11")
        p("v_lshlrev_b32 v13, 4, v13"); p("v_lshl_add_u32 v%d, v10, 10, v13" % (8 + ii))
    p("v_add_u32 v9, 8192, v9")
    p("s_lshl_b32 s%d, s%d, 11" % (sT2, sW))
    p("v_add_u32 v10, s%d, v%d" % (sT2, vH0)); p("v_add_u32 v10, %d, v10" % XT)
    p.wait(lg=0)
    p("s_barrier")
    p("ds_read_b128 v[16:19], v10"); p("ds_read_b128 v[20:23], v10 offset:1024")
    p("buffer_store_dwordx4 v[16:19], v8, s[%d:%d], s%d offen" % (OUT_, OUT_ + 3, sXO))
    p("buffer_store_dwordx4 v[20:23], v9, s[%d:%d], s%d offen" % (OUT_, OUT_ + 3, sXO))

def gen_fused(name):
    p = Prog()
    prof_reset()
    p("s_cmp_ge_u32 s2, 256")
    p("s_cbranch_scc1 %s_end" % name)
    stamp(p, "rt0", True); stamp(p, "t0")
    load_kernargs(p)
    p("v_and_b32 v1, 63, v0"); p("v_lshrrev_b32 v2, 6, v0")
    p("s_and_b32 s%d, s2, 7" % sJ); p("s_lshr_b32 s%d, s2, 3" % sR)
    p("v_readfirstlane_b32 s%d, v2" % sW)
    p("s_waitcnt lgkmcnt(0)")
    srd(p, FL_, P_WS, SZ_FLAG, WS_FLAG)
    srd(p, 92, P_DBG, 256)
    p("v_mov_b32 v253, 0")
    p("s_lshl_b32 s%d, s2, 2" % sT0); p("s_add_u32 s78, s%d, s%d" % (sT0, sW))
    p("s_cmp_eq_u32 s78, %d" % (255 * 4))
    p("s_cbranch_scc0 %s_n0" % name)
    st = side_path_begin(p)
    p("s_mov_b32 s%d, %d" % (sT0, FL_W))
    p("buffer_load_dword v249, v253, s[%d:%d], s%d offen sc1" % (FL_, FL_ + 3, sT0))
    side_path_end(p, st)
    p.label("%s_n0" % name)
    p_loads(p)
    after_loads = side_path_begin(p)
    p("s_cmp_ge_u32 s%d, 28" % sR)
    p("s_cbranch_scc1 %s_spare" % name)
    g1_dma_setup(p)
    for s_ in range(3):
        for t, tag in g1_dma_stage(s_): p(t, tag)
    stamp(p, "issued")
    p_compute(p)
    stamp(p, "p_done")
    nonce_issue(p)
    g1_main(p)
    stamp(p, "g1_mma_done")
    p.label("%s_cprep" % name)
    p.vm = []; p.lg = []
    poll_check(p, [vPK], [vPA + 3], [85])
    conv_loads(p)
    p("s_cmp_ge_u32 s%d, 28" % sR)
    p("s_cbranch_scc0 %s_ep1" % name)
    st = side_path_begin(p)
    p.wait(vm=0)
    p("s_branch %s_cfill" % name)
    side_path_end(p, st)
    p.label("%s_ep1" % name)
    g1_epilogue(p)
    p.wait_tag("cv")
    p.label("%s_cfill" % name)
    stamp(p, "g1_epi_done")
    g2_setup(p)
    conv_fill(p)
    def pre_none(p): pass
    def pre_hpub(p):
        p.wait_tag("hst")
        p("s_cmp_ge_u32 s%d, 28" % sR)
        p("s_cbranch_scc1 %s_nohp" % name)
        st = side_path_begin(p)
        h_publish(p)
        side_path_end(p, st)
        p.label("%s_nohp" % name)
    def pre_fh(p): fh_poll_issue(p)
    w2 = [w2_dma(s_) for s_ in range(DEPTH_W)]
    flat = lambda l: [x for y in l for x in y]
    conv_main(p, [(pre_none, flat(w2[0:4])), (pre_hpub, flat(w2[4:8])), (pre_none, flat(w2[8:12])), (pre_fh, [])])
    g2_h_start(p)
    conv_finish(p, name)
    stamp(p, "conv_done")
    g2_main(p)
    g2_epilogue(p, name)
    stamp(p, "end")
    if common.PROF: p.wait(vm=0)
    stamp(p, "end_acked"); stamp(p, "rt1", True)
    prof_flush(p, sW)
    p("s_endpgm")
    p.label("%s_spare" % name)
    side_path_end(p, after_loads)
    p("s_cmp_eq_u32 s78, %d" % (255 * 4))
    p("s_cbranch_scc0 %s_n1" % name)
    st = side_path_begin(p)
    p.wait(vm=len(p.vm))
    p("s_mov_b32 s%d, 0x9E3779B1" % sT1); p("s_mov_b32 s%d, %d" % (sT0, FL_W))
    p("v_mul_lo_u32 v250, v249, s%d" % sT1); p("v_add_u32 v250, 0x7F4A7C15, v250"); p("v_mov_b32 v251, 1")
    p("s_mov_b64 exec, 1")
    p("buffer_store_dwordx2 v[250:251], v253, s[92:95], 0 offen sc1")
    p("buffer_store_dword v250, v253, s[%d:%d], s%d offen sc1" % (FL_, FL_ + 3, sT0))
    p("s_mov_b64 exec, -1")
    side_path_end(p, st)
    p.label("%s_n1" % name)
    p_compute(p)
    nonce_issue(p)
    p.wait(vm=0)
    nonce_check(p)
    p_publish(p)
    p("v_lshlrev_b32 v%d, 2, v1" % vPA); p("v_min_u32 v%d, 124, v%d" % (vPA + 3, vPA))
    fk_addr(p)
    poll_issue(p, vPK, vPA + 3, 85, "poll")
    p.wait(vm=0, lg=0)
    p("s_branch %s_cprep" % name)
    p.label("%s_end" % name)
    p("s_endpgm")
    return p.text(), 512, 256
```

```python
import sys
from common import *
import k0, k1, k2
NAME = "parallel_sum__ssm_conv_h3__dense_activation_squared_relu__prompt"
def header():
    ref = open('cdna_kernels/%s.s.ref' % NAME).read().split('\n')
    out = []
    for l in ref:
        if l.startswith('; @launch') or l.startswith('; Override') or l.startswith('; grid='): break
        out.append(l)
    return '\n'.join(out) + '\n'
def gen_empty(name):
    return '  s_endpgm\n', 8, 8
def build_v1(extra=0):
    ks = [("k0_kernel", k0.gen_k0, 16384 + 512), ("k1_kernel", k1.gen_k1, 133120), ("k2_kernel", k2.gen_k2, 155648)]
    for i in range(extra): ks.append(('e%d_kernel' % i, gen_empty, 0))
    txt = header()
    for n, g, lds in ks: txt += "; @launch kernel=%s grid=(256,1,1) block=(256,1,1) lds=%d\n" % (n, lds)
    txt += '.amdgcn_target "amdgcn-amd-amdhsa--gfx950"\n.text\n'
    descs = ''
    for n, g, lds in ks:
        body, vg, acc = g(n)
        txt += kernel_text(n, body)
        descs += kernel_desc(n, vg, acc)
    txt += '.section .rodata,"a"\n' + descs
    return txt
def build_fused():
    import fused
    n = NAME + "_kernel"
    body, vg, acc = fused.gen_fused("fz")
    txt = header() + "; @launch grid=(256,1,1) block=(256,1,1) lds=163840\n"
    txt += '.amdgcn_target "amdgcn-amd-amdhsa--gfx950"\n.text\n' + kernel_text(n, body)
    txt += '.section .rodata,"a"\n' + kernel_desc(n, vg, acc)
    return txt
if __name__ == '__main__':
    import common
    if '--profdbg' in sys.argv:
        common.PROF = True; common.PROF_DBG = 1; sys.argv.remove('--profdbg')
        common.PROF_ONLY = ['rt0', 't0', 'issued', 'p_done', 'g1_st0', 'g1_mma_done', 'g1_epi_done', 'conv_done', 'g2_first', 'g2_mma_done', 'end_acked', 'rt1']
    if '--prof' in sys.argv: common.PROF = True; sys.argv.remove('--prof')
    out = sys.argv[1] if len(sys.argv) > 1 else 'cdna_kernels/%s.s' % NAME
    extra = int(__import__('os').environ.get('EXTRA', '0'))
    open(out, 'w').write(build_v1(extra) if 'V1' in __import__('os').environ else build_fused())
    if common.PROF:
        import json; json.dump(common._stamp_names, open(out + '.names', 'w'))
    print("wrote", out)
```

```python
from asmlib import *
S, D, F = 2048, 512, 1792
WS_HF  = 0
SZ_HF  = 64 * 112 * 1024
WS_KVT = 0x800000
SZ_KVT = 512 * 4096
WS_ZT  = 0xA00000
SZ_ZT  = 512 * 4096
WS_ST  = 0xC00000
SZ_ST  = 2048 * 8
WS_CSP = 0xC10000
SZ_CSP = 16 * 1792 * 4
P_Q, P_K, P_V, P_SK, P_SSM, P_DD, P_BX, P_W1 = 4, 6, 8, 10, 12, 14, 16, 18
P_B1, P_W2, P_B2, P_OUT, P_DBG, P_WS = 20, 22, 24, 26, 28, 30

def load_kernargs(p):
    p("s_load_dwordx16 s[4:19], s[0:1], 0")
    p("s_load_dwordx8 s[20:27], s[0:1], 64")
    p("s_load_dwordx4 s[28:31], s[0:1], 96")

def srd(p, dst, ptr, size, off=0):
    if off:
        p("s_add_u32 s%d, s%d, 0x%x" % (dst, ptr, off))
        p("s_addc_u32 s%d, s%d, 0" % (dst + 1, ptr + 1))
    else:
        p("s_mov_b32 s%d, s%d" % (dst, ptr))
        p("s_mov_b32 s%d, s%d" % (dst + 1, ptr + 1))
    p("s_mov_b32 s%d, 0x%x" % (dst + 2, size))
    p("s_mov_b32 s%d, 0x20000" % (dst + 3))

def kernel_text(name, body):
    return ".globl %s\n.p2align 8\n.type %s,@function\n%s:\n%s" % (name, name, name, body)

def kernel_desc(name, vgpr, accum, sgpr=102):
    return (".p2align 6\n.amdhsa_kernel %s\n  .amdhsa_next_free_vgpr %d\n  .amdhsa_next_free_sgpr %d\n  .amdhsa_accum_offset %d\n"
            "  .amdhsa_group_segment_fixed_size 0\n  .amdhsa_kernarg_size 112\n  .amdhsa_user_sgpr_count 2\n"
            "  .amdhsa_user_sgpr_kernarg_segment_ptr 1\n  .amdhsa_system_sgpr_workgroup_id_x 1\n"
            "  .amdhsa_float_denorm_mode_32 3\n"
            ".end_amdhsa_kernel\n") % (name, vgpr, sgpr, accum)

PROF = False
PROF_ONLY = None
PROF_DBG = False
WS_PROF = 0xD00000
WS_FLAG = 0xE00000
FL_FS, FL_FC, FL_FK, FL_FH, FL_FZ, FL_W = 0, 4096, 8192, 16384, 24576, 32768
SZ_FLAG = 32768 + 128
_stamp_n = [0]
_stamp_names = []
def prof_reset():
    _stamp_n[0] = 0; del _stamp_names[:]
def stamp(p, name='', real=False):
    import common
    if not common.PROF: return
    if common.PROF_ONLY is not None and name not in common.PROF_ONLY: return
    i = _stamp_n[0]; _stamp_n[0] += 1; _stamp_names.append(name)
    assert i < 64
    p("%s s[100:101]" % ("s_memrealtime" if real else "s_memtime"))
    p.wait(lg=0)
    p("v_writelane_b32 v255, s100, %d" % i)
def prof_flush(p, sW):
    import common
    if not common.PROF: return
    if common.PROF_DBG:
        p("s_lshl_b32 s78, s2, 2"); p("s_add_u32 s78, s78, s%d" % sW)
        p("s_cmp_eq_u32 s78, %d" % ((common.PROF_DBG - 1) * 4))
        p("s_cselect_b32 s78, 16, 0x7f000000")
        p("v_lshlrev_b32 v2, 2, v1")
        p("buffer_store_dword v255, v2, s[92:95], s78 offen")
        return
    srd(p, 4, P_WS, 0x40000, WS_PROF)
    p("s_lshl_b32 s78, s2, 2"); p("s_add_u32 s78, s78, s%d" % sW); p("s_lshl_b32 s78, s78, 8")
    p("v_lshlrev_b32 v2, 2, v1")
    p("buffer_store_dword v255, v2, s[4:7], s78 offen")
```

```python
import re

_REG = re.compile(r'\b([vas])\[(\d+):(\d+)\]|\b([vas])(\d+)\b|\b(vcc|exec|m0|scc)(?:_lo|_hi)?\b')

def regs_of(tok):
    out = set()
    for m in _REG.finditer(tok):
        if m.group(1):
            for i in range(int(m.group(2)), int(m.group(3)) + 1): out.add(m.group(1) + str(i))
        elif m.group(4):
            out.add(m.group(4) + m.group(5))
        else:
            out.add(m.group(6))
    return out

TRANS = ('v_exp_f32', 'v_log_f32', 'v_rcp_f32', 'v_rsq_f32', 'v_sqrt_f32', 'v_sin_f32', 'v_cos_f32')

class Ins:
    __slots__ = ('txt', 'op', 'dst', 'src', 'kind', 'passes', 'srcC', 'srcAB', 'tag', 'dma', 'addr')
    def __init__(self, txt, tag=None):
        self.txt = txt; self.tag = tag
        t = txt.split(';')[0].strip()
        parts = t.split(None, 1)
        self.op = op = parts[0]
        ops = []
        if len(parts) > 1:
            cur = ''; depth = 0
            for ch in parts[1]:
                if ch == '[': depth += 1
                if ch == ']': depth -= 1
                if ch == ',' and depth == 0: ops.append(cur.strip()); cur = ''
                else: cur += ch
            ops.append(cur.strip())
        self.dst = set(); self.src = set(); self.passes = 0; self.srcC = set(); self.srcAB = set(); self.dma = False
        k = 'other'
        if op.endswith(':'): k = 'label'
        elif op.startswith('v_mfma'):
            k = 'mfma'
            self.dst = regs_of(ops[0]); self.srcAB = regs_of(ops[1]) | regs_of(ops[2]); self.srcC = regs_of(ops[3])
            self.src = self.srcAB | self.srcC
            self.passes = 8 if '32x32x16' in op else (4 if '16x16x32' in op else 16)
        elif op.startswith('buffer_load') or op.startswith('global_load'):
            k = 'vmem'
            if re.search(r'\blds\b', t.replace('lds=', '')) and op.startswith('buffer_load'):
                self.dma = True
                for o in ops: self.src |= regs_of(o)
                self.src.add('m0')
            else:
                self.dst = regs_of(ops[0])
                for o in ops[1:]: self.src |= regs_of(o)
        elif op.startswith('buffer_store') or op.startswith('global_store'):
            k = 'vmem'
            for o in ops: self.src |= regs_of(o)
        elif op.startswith('buffer_atomic') or op.startswith('global_atomic'):
            k = 'vmem'
            for o in ops: self.src |= regs_of(o)
            if 'sc0' in t: self.dst = regs_of(ops[0])
        elif op in ('buffer_inv', 'buffer_wbl2'):
            k = 'vmem'
        elif op.startswith('ds_read') or op.startswith('ds_bpermute') or op.startswith('ds_swizzle') or '_rtn_' in op:
            k = 'ds'
            self.dst = regs_of(ops[0])
            for o in ops[1:]: self.src |= regs_of(o)
        elif op.startswith('ds_'):
            k = 'ds'
            for o in ops: self.src |= regs_of(o)
        elif op.startswith('s_load') or op.startswith('s_memtime') or op.startswith('s_memrealtime'):
            k = 'smem'
            self.dst = regs_of(ops[0])
            for o in ops[1:]: self.src |= regs_of(o)
        elif op.startswith('s_'):
            k = 'salu'
            if op in ('s_waitcnt', 's_nop', 's_barrier', 's_endpgm', 's_branch', 's_sleep', 's_setprio') or op.startswith('s_cbranch'):
                if op.startswith('s_cbranch_vcc'): self.src.add('vcc')
                if op.startswith('s_cbranch_exec'): self.src.add('exec')
            elif op.startswith('s_cmp') or op.startswith('s_bitcmp'):
                for o in ops: self.src |= regs_of(o)
            else:
                self.dst = regs_of(ops[0])
                for o in ops[1:]: self.src |= regs_of(o)
                if 'saveexec' in op: self.dst.add('exec'); self.src.add('exec')
                if op in ('s_addk_i32', 's_mulk_i32'): self.src |= self.dst
        elif op.startswith('v_'):
            k = 'valu'
            if op.startswith('v_cmp'):
                self.dst = regs_of(ops[0])
                for o in ops[1:]: self.src |= regs_of(o)
            elif op.startswith('v_permlane') and 'swap' in op:
                self.dst = regs_of(ops[0]) | regs_of(ops[1]); self.src = set(self.dst)
            elif op.startswith('v_add_co') or op.startswith('v_sub_co') or op.startswith('v_addc_co') or op.startswith('v_mad_u64'):
                self.dst = regs_of(ops[0]) | regs_of(ops[1])
                for o in ops[2:]: self.src |= regs_of(o)
            else:
                self.dst = regs_of(ops[0])
                for o in ops[1:]: self.src |= regs_of(o)
                if op.startswith('v_fmac') or op.startswith('v_dot2c') or op.startswith('v_writelane') or 'dpp' in t or 'UNUSED_PRESERVE' in t:
                    self.src |= self.dst
                if op.startswith('v_cndmask') and len(ops) == 3: self.src.add('vcc')
        self.kind = k

    def nstates(self):
        if self.op == 's_nop':
            return int(self.txt.split()[1], 0) + 1
        if self.kind == 'label': return 0
        return 1

class Prog:
    def __init__(self, auto=True):
        self.out = []
        self.vm = []
        self.lg = []
        self.auto = auto
        self.nnop = 0
    def raw(self, txt):
        self.out.append(Ins(txt))
    def label(self, name):
        self.out.append(Ins(name + ':'))
    def comment(self, c):
        pass
    def _wait(self, vm=None, lg=None):
        s = 's_waitcnt'
        if vm is not None:
            vm = min(vm, 63)
            s += ' vmcnt(%d)' % vm
            if len(self.vm) > vm: self.vm = self.vm[len(self.vm) - vm:] if vm > 0 else []
        if lg is not None:
            lg = min(lg, 15)
            s += ' lgkmcnt(%d)' % lg
            if len(self.lg) > lg: self.lg = self.lg[len(self.lg) - lg:] if lg > 0 else []
        self.out.append(Ins(s))
    def wait(self, vm=None, lg=None):
        self._wait(vm, lg)
    def wait_tag(self, tag):
        idx = [i for i, o in enumerate(self.vm) if o.tag == tag]
        if idx: self._wait(vm=len(self.vm) - 1 - max(idx))
    def wait_lg_tag(self, tag):
        idx = [i for i, o in enumerate(self.lg) if o.tag == tag]
        if idx:
            if any(o.kind == 'smem' for o in self.lg): self._wait(lg=0)
            else: self._wait(lg=len(self.lg) - 1 - max(idx))
    def _hazard(self, ins):
        need = 0; dist = 0
        for p in reversed(self.out):
            if dist >= 20: break
            req = 0
            if p.kind == 'valu':
                w = p.dst
                vw = {r for r in w if r[0] in 'va' and r not in ('vcc',)}
                sw = {r for r in w if r[0] == 's' or r == 'vcc'}
                if ins.kind == 'mfma' and vw & ins.src: req = max(req, 2)
                if ins.kind == 'valu':
                    if sw & ins.src: req = max(req, 2)
                    if (ins.op.startswith('v_readlane') or ins.op.startswith('v_readfirstlane')) and vw & ins.src: req = max(req, 1)
                    if (ins.op.startswith('v_readlane') or ins.op.startswith('v_writelane')) and sw & ins.src: req = max(req, 4)
                    if 'dpp' in ins.txt and vw & ins.src: req = max(req, 2)
                    if ins.op.startswith('v_permlane') and vw & ins.src: req = max(req, 2)
                    if p.op in TRANS and (vw & ins.src): req = max(req, 1)
                    if ('sdwa' in p.txt or 'op_sel' in p.txt) and (vw & (ins.src | ins.dst)): req = max(req, 1)
                if p.op.startswith('v_dot'):
                    if vw & (ins.src | ins.dst):
                        same_c = False
                        if ins.op == p.op:
                            ops = [o.strip() for o in ins.txt.split(None, 1)[1].split(',')]
                            ab = regs_of(ops[1]) | regs_of(ops[2])
                            same_c = not (vw & ab)
                        if not same_c: req = max(req, 3)
                if p.op.startswith('v_dot') and ins.kind in ('ds', 'vmem', 'mfma') and (vw & ins.src): req = max(req, 3)
                if ins.kind == 'vmem' and sw & ins.src: req = max(req, 5)
                if ins.kind in ('salu', 'smem') and sw & ins.src: req = max(req, 2)
                if 'exec' in w and ins.kind in ('valu', 'mfma'): req = max(req, 5)
            elif p.kind == 'mfma':
                big = {2: 5, 4: 8, 8: 12, 16: 20}[p.passes]
                ov = {2: 4, 4: 6, 8: 10, 16: 18}[p.passes]
                war = {2: 1, 4: 3, 8: 7, 16: 15}[p.passes]
                if ins.kind == 'mfma':
                    if p.dst & ins.srcAB: req = max(req, big)
                    if p.dst & ins.srcC and not (p.dst == ins.srcC and p.passes == ins.passes): req = max(req, ov)
                    if p.dst & ins.dst and not (p.dst == ins.dst): req = max(req, ov)
                elif ins.kind in ('valu', 'vmem', 'ds'):
                    if p.dst & (ins.src | ins.dst): req = max(req, big)
                    if ins.kind == 'valu' and (p.srcC & ins.dst): req = max(req, war)
            elif p.kind == 'salu':
                if 'm0' in p.dst and (ins.dma or ins.op in ('s_sendmsg',)): req = max(req, 1)
                if 'exec' in p.dst and ins.kind == 'mfma': req = max(req, 4)
            elif p.kind == 'vmem':
                if ('store' in p.op or 'atomic' in p.op) and ('x4' in p.op or 'x3' in p.op):
                    data = p.src
                    if ins.kind == 'valu' and (ins.dst & data): req = max(req, 2)
                    elif ins.dst & data: req = max(req, 1)
            need = max(need, req - dist)
            dist += p.nstates()
        return need
    def emit(self, txt, tag=None):
        for line in txt.strip().split('\n'):
            line = line.strip()
            if not line or line.startswith(';'): continue
            self._emit1(line, tag)
    __call__ = emit
    def _emit1(self, line, tag):
        ins = Ins(line, tag)
        if ins.kind == 'label':
            self.out.append(ins); return
        if ins.op == 's_waitcnt':
            vm = re.search(r'vmcnt\((\d+)\)', line); lg = re.search(r'lgkmcnt\((\d+)\)', line)
            self._wait(int(vm.group(1)) if vm else None, int(lg.group(1)) if lg else None); return
        if self.auto:
            touch = ins.src | ins.dst
            wv = None
            for i, o in enumerate(self.vm):
                if o.dst & touch: wv = len(self.vm) - 1 - i
            wl = None
            for i, o in enumerate(self.lg):
                if o.dst & touch:
                    wl = 0 if any(x.kind == 'smem' for x in self.lg) else len(self.lg) - 1 - i
            if wv is not None or wl is not None: self._wait(wv, wl)
        n = self._hazard(ins)
        if n > 0:
            self.nnop += n
            while n > 0:
                m = min(n, 16); self.out.append(Ins('s_nop %d' % (m - 1))); n -= m
        self.out.append(ins)
        if ins.kind == 'vmem':
            self.vm.append(ins)
            if len(self.vm) > 63:
                raise RuntimeError('more than 63 vmem ops outstanding')
        elif ins.kind in ('ds', 'smem'):
            self.lg.append(ins)
            if ins.kind == 'smem' and ('x2' in ins.op or 'x4' in ins.op or 'x8' in ins.op or 'x16' in ins.op or 'mem' in ins.op):
                pass
    def text(self):
        return '\n'.join(('' if i.kind == 'label' else '  ') + i.txt for i in self.out) + '\n'

def interleave(main, fill, per):
    out = []; acc = 0.0; j = 0
    for m in main:
        out.append(m); acc += per
        while acc >= 1.0 and j < len(fill):
            out.append(fill[j]); j += 1; acc -= 1.0
    out.extend(fill[j:])
    return out

class Regs:
    def __init__(self, kind, lo, hi):
        self.kind = kind; self.next = lo; self.hi = hi; self.names = {}
    def alloc(self, n=1, align=1, name=None):
        a = (self.next + align - 1) // align * align
        if a + n > self.hi: raise RuntimeError('out of %s regs (want %d at %d, hi %d)' % (self.kind, n, a, self.hi))
        self.next = a + n
        if name: self.names[name] = (a, n)
        return a
    def mark(self): return self.next
    def release(self, m): self.next = m
def vr(a, n=1, k='v'):
    return '%s%d' % (k, a) if n == 1 else '%s[%d:%d]' % (k, a, a + n - 1)
def sr(a, n=1): return vr(a, n, 's')
def ar(a, n=1): return vr(a, n, 'a')
```

```python
from asmlib import *
S, D, F = 2048, 512, 1792
WS_HF  = 0
SZ_HF  = 64 * 112 * 1024
WS_KVT = 0x800000
SZ_KVT = 512 * 4096
WS_ZT  = 0xA00000
SZ_ZT  = 512 * 4096
WS_ST  = 0xC60000
SZ_ST  = 2048 * 16
WS_CSP = 0xC10000
SZ_CSP = 16 * 1792 * 8
P_Q, P_K, P_V, P_SK, P_SSM, P_DD, P_BX, P_W1 = 4, 6, 8, 10, 12, 14, 16, 18
P_B1, P_W2, P_B2, P_OUT, P_DBG, P_WS = 20, 22, 24, 26, 28, 30

def load_kernargs(p):
    p("s_load_dwordx16 s[4:19], s[0:1], 0")
    p("s_load_dwordx8 s[20:27], s[0:1], 64")
    p("s_load_dwordx4 s[28:31], s[0:1], 96")

def srd(p, dst, ptr, size, off=0):
    if off:
        p("s_add_u32 s%d, s%d, 0x%x" % (dst, ptr, off))
        p("s_addc_u32 s%d, s%d, 0" % (dst + 1, ptr + 1))
    else:
        p("s_mov_b32 s%d, s%d" % (dst, ptr))
        p("s_mov_b32 s%d, s%d" % (dst + 1, ptr + 1))
    p("s_mov_b32 s%d, 0x%x" % (dst + 2, size))
    p("s_mov_b32 s%d, 0x20000" % (dst + 3))

def kernel_text(name, body):
    return ".globl %s\n.p2align 8\n.type %s,@function\n%s:\n%s" % (name, name, name, body)

def kernel_desc(name, vgpr, accum, sgpr=102):
    return (".p2align 6\n.amdhsa_kernel %s\n  .amdhsa_next_free_vgpr %d\n  .amdhsa_next_free_sgpr %d\n  .amdhsa_accum_offset %d\n"
            "  .amdhsa_group_segment_fixed_size 0\n  .amdhsa_kernarg_size 112\n  .amdhsa_user_sgpr_count 2\n"
            "  .amdhsa_user_sgpr_kernarg_segment_ptr 1\n  .amdhsa_system_sgpr_workgroup_id_x 1\n"
            "  .amdhsa_float_denorm_mode_32 3\n"
            ".end_amdhsa_kernel\n") % (name, vgpr, sgpr, accum)

PROF = False
PROF_ONLY = None
PROF_RT = False
PROF_DBG = False
WS_PROF = 0xD00000
WS_FLAG = 0xE00000
FL_FK, FL_FH, FL_FZ = 0, 0x8000, 0x28000
SZ_FLAG = 0x48000
_stamp_n = [0]
_stamp_names = []
def prof_reset():
    _stamp_n[0] = 0; del _stamp_names[:]
def stamp(p, name='', real=False):
    import common
    if not common.PROF: return
    if common.PROF_ONLY is not None and name not in common.PROF_ONLY: return
    i = _stamp_n[0]; _stamp_n[0] += 1; _stamp_names.append(name)
    assert i < 64
    p("%s s[100:101]" % ("s_memrealtime" if (real or common.PROF_RT) else "s_memtime"))
    p.wait(lg=0)
    p("v_writelane_b32 v255, s100, %d" % i)
def prof_flush(p, sW):
    import common
    if not common.PROF: return
    if common.PROF_DBG:
        p("s_lshl_b32 s78, s2, 2"); p("s_add_u32 s78, s78, s%d" % sW)
        p("s_cmp_eq_u32 s78, %d" % ((common.PROF_DBG - 1) * 4))
        p("s_cselect_b32 s78, 16, 0x7f000000")
        p("v_lshlrev_b32 v2, 2, v1")
        p("buffer_store_dword v255, v2, s[92:95], s78 offen")
        return
    srd(p, 4, P_WS, 0x40000, WS_PROF)
    p("s_lshl_b32 s78, s2, 2"); p("s_add_u32 s78, s78, s%d" % sW); p("s_lshl_b32 s78, s78, 8")
    p("v_lshlrev_b32 v2, 2, v1")
    p("buffer_store_dword v255, v2, s[4:7], s78 offen")
```

```python
from common import *
import common
from fused import (sN, sJ, sR, sW, sT0, sT1, sT2, sT3, FL_, unpack, flag_store, poll_issue, poll_check,
                   side_path_begin, side_path_end, nonce_issue, nonce_check, _uid)
OPT = dict(touch=1, w2touch=1, htouch=1, nt=0, stash=1, depth_h=8)
def nt(): return " nt" if OPT["nt"] else ""

class Rec:
    def __init__(self): self.items = []; self.grp = None
    def __call__(self, txt, tag=None): (self.grp if self.grp is not None else self.items).append((txt, tag))
    def call(self, fn): (self.grp if self.grp is not None else self.items).append((fn, None))
    def begin(self): self.grp = []
    def end(self): self.items.append(self.grp); self.grp = None
def begin(p):
    if isinstance(p, Rec): p.begin()
def end(p):
    if isinstance(p, Rec): p.end()
def emit(p, items):
    for it in items:
        if isinstance(it, list): emit(p, it)
        elif callable(it[0]): it[0](p)
        else: p(it[0], it[1])
def rec(fn, *a):
    r = Rec(); fn(r, *a); return r.items

P_LDS, CSB_LDS, SK_LDS = 131072, 139264, 147456
TAB_LDS, CSQ_LDS = 59392, 60416
RING0, RING = 65536, 12 * 2048
RED, XT, ZTT = 0, 49152, 57344
sROW, sRB, sFT = 72, 73, 74
sXo, sWo, sM = 80, 81, 82
sCH, sC2, sCB = 86, 87, 88
sTok, sCh, sHo = 89, 90, 91
sWA, sM2, sXO = 80, 81, 82
K_, V_, SK_, GQ_, GW1_ = 40, 44, 48, 52, 56
KVT_, ST_, CSP_ = 60, 64, 68

KR, VR, SKR, XR, CR = 16, 36, 44, 128, 136
vC, vRR = 3, 4
def p_loads(p):
    srd(p, K_, P_K, S * D * 2); srd(p, V_, P_V, S * D * 2); srd(p, SK_, P_SK, D * 8)
    vA = 5
    p("s_lshl_b32 s%d, s%d, 9" % (sT1, sJ))
    p("v_and_b32 v11, 31, v1"); p("v_lshlrev_b32 v11, 4, v11")
    p("buffer_load_dwordx4 %s, v11, s[%d:%d], s%d offen" % (vr(SKR, 4), SK_, SK_ + 3, sT1))
    p("v_and_b32 v%d, 7, v1" % vC); p("v_lshrrev_b32 v%d, 3, v1" % vRR)
    p("s_lshl_b32 s%d, s%d, 6" % (sT0, sR)); p("s_lshl_b32 s%d, s%d, 4" % (sT1, sW))
    p("s_add_u32 s%d, s%d, s%d" % (sT0, sT0, sT1)); p("s_lshl_b32 s%d, s%d, 10" % (sT0, sT0))
    p("s_lshl_b32 s%d, s%d, 7" % (sT1, sJ)); p("s_add_u32 s%d, s%d, s%d" % (sT0, sT0, sT1))
    p("v_lshlrev_b32 v%d, 11, v%d" % (vA, vRR)); p("v_lshl_add_u32 v%d, v%d, 4, v%d" % (vA, vC, vA))
    p("v_add_u32 v%d, s%d, v%d" % (vA, sT0, vA))
    for i in range(5): p("v_add_u32 v%d, %d, v%d" % (6 + i, (i - 3) * 1024, vA))
    for i in range(5): p("buffer_load_dwordx4 %s, v%d, s[%d:%d], 0 offen%s" % (vr(KR + 4 * i, 4), 6 + i, K_, K_ + 3, nt()))
    p("buffer_load_dwordx4 %s, v%d, s[%d:%d], 0 offen%s" % (vr(VR, 4), vA, V_, V_ + 3, nt()))
    p("buffer_load_dwordx4 %s, v%d, s[%d:%d], 0 offen offset:1024%s" % (vr(VR + 4, 4), vA, V_, V_ + 3, nt()))
    srd(p, GQ_, P_Q, S * D * 2); srd(p, GW1_, P_W1, D * F * 2)
    p("s_mul_i32 s%d, s%d, 37" % (sT0, sR)); p("s_lshr_b32 s%d, s%d, 8" % (sT0, sT0))
    p("s_mul_i32 s%d, s%d, 7" % (sT1, sT0)); p("s_sub_u32 s%d, s%d, s%d" % (sT1, sR, sT1))
    p("s_lshr_b32 s%d, s%d, 1" % (sT2, sJ)); p("s_lshl_b32 s%d, s%d, 2" % (sT2, sT2))
    p("s_add_u32 s%d, s%d, s%d" % (sRB, sT2, sT0))
    p("s_and_b32 s%d, s%d, 1" % (sT2, sJ)); p("s_mul_i32 s%d, s%d, 7" % (sT2, sT2))
    p("s_add_u32 s%d, s%d, s%d" % (sFT, sT2, sT1))
    p("s_lshr_b32 s%d, s%d, 1" % (sT0, sJ)); p("s_lshl_b32 s%d, s%d, 9" % (sT0, sT0))
    p("s_and_b32 s%d, s%d, 1" % (sT1, sJ)); p("s_lshl_b32 s%d, s%d, 5" % (sT1, sT1))
    p("s_add_u32 s%d, s%d, s%d" % (sT1, sT1, sR)); p("s_lshl_b32 s%d, s%d, 3" % (sT1, sT1))
    p("s_add_u32 s%d, s%d, s%d" % (sT0, sT0, sT1)); p("s_lshl_b32 s%d, s%d, 1" % (sT1, sW))
    p("s_add_u32 s%d, s%d, s%d" % (sROW, sT0, sT1)); p("s_lshl_b32 s%d, s%d, 10" % (sT0, sROW))
    p("v_lshlrev_b32 v12, 4, v1")
    p("buffer_load_dwordx4 %s, v12, s[%d:%d], s%d offen" % (vr(XR, 4), GQ_, GQ_ + 3, sT0), "px")
    p("buffer_load_dwordx4 %s, v12, s[%d:%d], s%d offen offset:1024" % (vr(XR + 4, 4), GQ_, GQ_ + 3, sT0), "px")
    p("s_lshl_b32 s%d, s%d, 5" % (sT0, sRB)); p("s_lshl_b32 s%d, s%d, 3" % (sT1, sW))
    p("s_add_u32 s%d, s%d, s%d" % (sT0, sT0, sT1)); p("s_mul_i32 s%d, s%d, 3584" % (sT0, sT0))
    p("s_lshl_b32 s%d, s%d, 8" % (sT1, sFT)); p("s_add_u32 s%d, s%d, s%d" % (sT0, sT0, sT1))
    p("v_lshrrev_b32 v13, 4, v1"); p("v_mul_u32_u24 v13, 3584, v13")
    p("v_and_b32 v14, 15, v1"); p("v_lshl_add_u32 v13, v14, 4, v13")
    p("buffer_load_dwordx4 %s, v13, s[%d:%d], s%d offen" % (vr(CR, 4), GW1_, GW1_ + 3, sT0), "px")
    p("s_add_u32 s%d, s%d, %d" % (sT1, sT0, 4 * 3584))
    p("buffer_load_dwordx4 %s, v13, s[%d:%d], s%d offen" % (vr(CR + 4, 4), GW1_, GW1_ + 3, sT1), "px")

def touches_g1(p):
    if not OPT["touch"]: return
    p("s_lshl_b32 s%d, s%d, 2" % (sT2, sR)); p("s_add_u32 s%d, s%d, s%d" % (sT2, sT2, sW))
    p("v_lshlrev_b32 v9, 7, v1")
    p("s_lshr_b32 s%d, s%d, 1" % (sT0, sJ)); p("s_lshl_b32 s%d, s%d, 19" % (sT0, sT0))
    p("s_lshl_b32 s%d, s%d, 12" % (sT1, sT2)); p("s_add_u32 s%d, s%d, s%d" % (sT0, sT0, sT1))
    p("s_mov_b32 exec_hi, 0")
    p("buffer_load_dword v188, v9, s[%d:%d], s%d offen%s" % (GQ_, GQ_ + 3, sT0, nt()), "touch")
    p("s_mov_b64 exec, -1")
    p("v_mul_u32_u24 v10, 4682, v1"); p("v_lshrrev_b32 v10, 16, v10")
    p("v_mul_u32_u24 v11, 14, v10"); p("v_sub_u32 v11, v1, v11")
    p("v_mul_u32_u24 v10, 3584, v10"); p("v_lshl_add_u32 v10, v11, 7, v10")
    p("s_mul_i32 s%d, s%d, %d" % (sT0, sT2, 4 * 3584)); p("s_and_b32 s%d, s%d, 1" % (sT1, sJ))
    p("s_mul_i32 s%d, s%d, 1792" % (sT1, sT1)); p("s_add_u32 s%d, s%d, s%d" % (sT0, sT0, sT1))
    p("s_mov_b32 exec_hi, 0x00ffffff")
    p("buffer_load_dword v189, v10, s[%d:%d], s%d offen%s" % (GW1_, GW1_ + 3, sT0, nt()), "touch")
    p("s_mov_b64 exec, -1")

def touch_late(p):
    p("v_lshlrev_b32 v9, 7, v1")
    p("s_mov_b32 s8, s%d" % P_SSM); p("s_mov_b32 s9, s%d" % (P_SSM + 1)); p("s_mov_b32 s10, 0x%x" % (D * S * 2)); p("s_mov_b32 s11, 0x20000")
    p("s_lshl_b32 s%d, s%d, 6" % (sT0, sJ)); p("s_lshl_b32 s%d, s%d, 1" % (sT1, sR))
    p("s_add_u32 s%d, s%d, s%d" % (sT0, sT0, sT1)); p("s_lshl_b32 s%d, s%d, 12" % (sT0, sT0))
    p("s_lshl_b32 s%d, s%d, 11" % (sT1, sW)); p("s_add_u32 s%d, s%d, s%d" % (sT0, sT0, sT1))
    begin(p)
    p("s_mov_b64 exec, 0xffff")
    p("buffer_load_dword v190, v9, s[8:11], s%d offen%s" % (sT0, nt()), "touch2")
    p("s_mov_b64 exec, -1")
    end(p)
    if not OPT["w2touch"]: return
    p("s_mov_b32 s8, s%d" % P_W2); p("s_mov_b32 s9, s%d" % (P_W2 + 1)); p("s_mov_b32 s10, 0x%x" % (F * D * 2))
    p("s_lshl_b32 s%d, s%d, 2" % (sT2, sR)); p("s_add_u32 s%d, s%d, s%d" % (sT2, sT2, sW))
    p("s_mul_i32 s%d, s%d, 14336" % (sT2, sT2))
    p("buffer_load_dword v191, v9, s[8:11], s%d offen" % sT2, "touch2")
    p("s_add_u32 s%d, s%d, 8192" % (sT2, sT2))
    begin(p)
    p("s_mov_b32 exec_hi, 0xffff")
    p("buffer_load_dword v187, v9, s[8:11], s%d offen" % sT2, "touch2")
    p("s_mov_b64 exec, -1")
    end(p)

vKL, vKG0, vKG1 = 24, 25, 26
def kv_compute(p):
    RES, A = 100, 108
    p("s_lshl_b32 s%d, s%d, 9" % (sT0, sW)); p("s_add_u32 s%d, s%d, %d" % (sT0, sT0, SK_LDS))
    p("v_and_b32 v11, 31, v1"); p("v_lshlrev_b32 v11, 4, v11"); p("v_add_u32 v11, s%d, v11" % sT0)
    p("v_lshlrev_b32 v2, 6, v%d" % vC); p("v_add_u32 v2, s%d, v2" % sT0)
    p("ds_write_b128 v11, %s" % vr(SKR, 4))
    p("s_lshl_b32 s%d, s%d, 3" % (sT0, sW)); p("s_sub_u32 s%d, 31, s%d" % (sT0, sT0))
    p("v_sub_u32 v15, s%d, v%d" % (sT0, vRR))
    p("v_lshrrev_b32 v6, 2, v15"); p("v_xor_b32 v6, v6, v%d" % vC)
    p("v_and_b32 v15, 3, v15"); p("v_lshlrev_b32 v15, 2, v15")
    p("v_lshl_add_u32 v15, v6, 4, v15"); p("v_lshl_add_u32 v15, v%d, 10, v15" % vC)
    p("v_add_u32 v15, %d, v15" % P_LDS)
    p.wait(lg=0)
    for i in range(4): p("ds_read_b128 %s, v2 offset:%d" % (vr(SKR + 4 * i, 4), 16 * i))
    p("s_mov_b32 s76, 0x05040100"); p("s_mov_b32 s77, 0x07060302")
    for e in range(8):
        dw, hf = e >> 1, e & 1
        sel = 76 + hf
        K = lambda i: KR + 4 * i + dw
        a = A + 8 * (e & 1)
        p("v_perm_b32 v%d, v%d, v%d, s%d" % (a + 0, K(2), K(3), sel))
        p("v_perm_b32 v%d, v%d, v%d, s%d" % (a + 1, K(0), K(1), sel))
        p("v_perm_b32 v%d, v%d, v%d, s%d" % (a + 2, K(3), K(4), sel))
        p("v_perm_b32 v%d, v%d, v%d, s%d" % (a + 3, K(1), K(2), sel))
        p("v_dot2_f32_bf16 v%d, v%d, v%d, 0" % (a + 4, a + 0, SKR + 2 * e))
        p("v_dot2_f32_bf16 v%d, v%d, v%d, 0" % (a + 5, a + 2, SKR + 2 * e))
        unpack(p, a + 6, VR + dw, hf); unpack(p, a + 7, VR + 4 + dw, hf)
        p("v_dot2_f32_bf16 v%d, v%d, v%d, v%d" % (a + 4, a + 1, SKR + 2 * e + 1, a + 4))
        p("v_dot2_f32_bf16 v%d, v%d, v%d, v%d" % (a + 5, a + 3, SKR + 2 * e + 1, a + 5))
        if e > 0:
            b = A + 8 * ((e - 1) & 1)
            p("v_mul_f32 v%d, v%d, v%d" % (b + 4, b + 4, b + 6)); p("v_mul_f32 v%d, v%d, v%d" % (b + 5, b + 5, b + 7))
            p("v_cvt_pk_bf16_f32 v%d, v%d, v%d" % (RES + e - 1, b + 5, b + 4))
            p("ds_write_b32 v15, v%d offset:%d" % (RES + e - 1, (e - 1) * 128))
    b = A + 8
    p("s_lshl_b32 s%d, s%d, 4" % (sT0, sW)); p("v_add_u32 v6, s%d, v%d" % (sT0, vRR))
    p("v_mul_f32 v%d, v%d, v%d" % (b + 4, b + 4, b + 6)); p("v_mul_f32 v%d, v%d, v%d" % (b + 5, b + 5, b + 7))
    p("v_cvt_pk_bf16_f32 v%d, v%d, v%d" % (RES + 7, b + 5, b + 4))
    p("ds_write_b32 v15, v%d offset:%d" % (RES + 7, 7 * 128))
    p("v_lshlrev_b32 v7, 7, v6"); p("v_lshl_add_u32 v7, v%d, 4, v7" % vC); p("v_add_u32 v%d, %d, v7" % (vKL, P_LDS))
    p("v_lshlrev_b32 v8, 12, v6"); p("s_lshl_b32 s%d, s%d, 1" % (sT1, sW))
    p("v_xor_b32 v9, s%d, v%d" % (sT1, vC)); p("v_lshl_add_u32 v%d, v9, 4, v8" % vKG0)
    p("s_add_u32 s%d, s%d, 1" % (sT1, sT1))
    p("v_xor_b32 v10, s%d, v%d" % (sT1, vC)); p("v_lshl_add_u32 v10, v10, 4, v8"); p("v_add_u32 v%d, 0x8000, v10" % vKG1)
def kv_stores(p):
    p("ds_read_b128 v[16:19], v%d" % vKL); p("ds_read_b128 v[20:23], v%d offset:1024" % vKL)
    p("s_lshl_b32 s83, s%d, 18" % sJ); p("s_lshl_b32 s84, s%d, 7" % sR)
    p("s_sub_u32 s83, s83, s84"); p("s_add_u32 s83, s83, 3968")
    p("buffer_store_dwordx4 v[16:19], v%d, s[%d:%d], s83 offen sc1" % (vKG0, KVT_, KVT_ + 3), "kst")
    p("buffer_store_dwordx4 v[20:23], v%d, s[%d:%d], s83 offen sc1" % (vKG1, KVT_, KVT_ + 3), "kst")

T, U, CF = 144, 160, 168
def cs_partial(p):
    for i in range(4):
        for hf in range(2):
            unpack(p, U + 2 * i + hf, CR + i, hf); unpack(p, T + 8 + hf, CR + 4 + i, hf)
            p("v_add_f32 v%d, v%d, v%d" % (U + 2 * i + hf, U + 2 * i + hf, T + 8 + hf))
    p("v_lshrrev_b32 v%d, 4, v1" % (T + 8)); p("s_lshl_b32 s83, s%d, 2" % sW)
    p("v_add_u32 v%d, s83, v%d" % (T + 8, T + 8)); p("v_lshlrev_b32 v%d, 9, v%d" % (T + 8, T + 8))
    p("v_and_b32 v%d, 15, v1" % (T + 9)); p("v_lshl_add_u32 v%d, v%d, 5, v%d" % (T + 8, T + 9, T + 8))
    p("v_add_u32 v%d, %d, v%d" % (T + 8, CSB_LDS, T + 8))
    p("ds_write_b128 v%d, %s" % (T + 8, vr(U, 4))); p("ds_write_b128 v%d, %s offset:16" % (T + 8, vr(U + 4, 4)))
def cs_final(p):
    p("v_and_b32 v%d, 127, v0" % (T + 10)); p("v_lshlrev_b32 v%d, 2, v%d" % (T + 11, T + 10)); p("v_add_u32 v%d, %d, v%d" % (T + 11, CSB_LDS, T + 11))
    for i in range(16): p("ds_read_b32 v%d, v%d offset:%d" % (CF + i, T + 11, i * 512))
    p("s_mul_i32 s83, s%d, %d" % (sRB, 1792 * 8)); p("s_lshl_b32 s84, s%d, 10" % sFT); p("s_add_u32 s83, s83, s84")
    begin(p); p("s_cmp_lt_u32 s%d, 2" % sW); p("s_cselect_b32 s83, s83, 0x7f000000"); end(p)
    p("v_lshlrev_b32 v%d, 3, v%d" % (T + 10, T + 10))
    for st in (1, 2, 4, 8):
        for i in range(0, 16, 2 * st): p("v_add_f32 v%d, v%d, v%d" % (CF + i, CF + i, CF + i + st))
    p("v_mov_b32 v%d, s%d" % (CF + 1, sN))
    p("buffer_store_dwordx2 %s, v%d, s[%d:%d], s83 offen sc1" % (vr(CF, 2), T + 10, CSP_, CSP_ + 3), "pst")
def stats(p):
    for rr in range(2):
        sS, sQ = T + 4 * rr, T + 4 * rr + 1
        for i in range(4):
            unpack(p, U, XR + 4 * rr + i, 0); unpack(p, U + 1, XR + 4 * rr + i, 1)
            if i == 0:
                p("v_add_f32 v%d, v%d, v%d" % (sS, U, U + 1)); p("v_mul_f32 v%d, v%d, v%d" % (sQ, U, U))
            else:
                p("v_add_f32 v%d, v%d, v%d" % (sS, sS, U)); p("v_fmac_f32 v%d, v%d, v%d" % (sQ, U, U))
                p("v_add_f32 v%d, v%d, v%d" % (sS, sS, U + 1))
            p("v_fmac_f32 v%d, v%d, v%d" % (sQ, U + 1, U + 1))
    for ctrl in ("row_shr:1 row_mask:0xf", "row_shr:2 row_mask:0xf", "row_shr:4 row_mask:0xf", "row_shr:8 row_mask:0xf",
                 "row_bcast:15 row_mask:0xa", "row_bcast:31 row_mask:0xc"):
        for q in (T, T + 1, T + 4, T + 5):
            p("v_add_f32_dpp v%d, v%d, v%d %s bank_mask:0xf" % (q, q, q, ctrl))
    for rr in range(2):
        sS, sQ = T + 4 * rr, T + 4 * rr + 1
        p("v_mul_f32 v%d, 0x3b000000, v%d" % (sS, sS)); p("v_mul_f32 v%d, 0x3b000000, v%d" % (sQ, sQ))
    for rr in range(2):
        sS, sQ = T + 4 * rr, T + 4 * rr + 1
        p("v_fma_f32 v%d, -v%d, v%d, v%d" % (sQ, sS, sS, sQ))
    for rr in range(2): p("v_max_f32 v%d, 0, v%d" % (T + 4 * rr + 1, T + 4 * rr + 1))
    for rr in range(2): p("v_add_f32 v%d, 0x3727c5ac, v%d" % (T + 4 * rr + 1, T + 4 * rr + 1))
    for rr in range(2): p("v_rsq_f32 v%d, v%d" % (T + 4 * rr + 1, T + 4 * rr + 1))
    for q in (T + 2, T + 3, T + 6, T + 7): p("v_mov_b32 v%d, s%d" % (q, sN))
    p("s_lshl_b32 s83, s%d, 6" % sROW)
    begin(p)
    p("s_mov_b32 exec_lo, 0"); p("s_mov_b32 exec_hi, 0x80000000")
    p("buffer_store_dwordx4 %s, v253, s[%d:%d], s83 offen sc1" % (vr(T, 4), ST_, ST_ + 3), "pst")
    p("buffer_store_dwordx4 %s, v253, s[%d:%d], s83 offen offset:16 sc1" % (vr(T + 4, 4), ST_, ST_ + 3), "pst")
    p("s_mov_b64 exec, -1")
    end(p)
def fk_publish(p, name):
    p("s_cmp_eq_u32 s%d, 0" % sW)
    p("s_cbranch_scc0 %s_nofk" % name)
    st = side_path_begin(p)
    p("s_lshl_b32 s%d, s%d, 5" % (sT0, sJ)); p("s_add_u32 s%d, s%d, s%d" % (sT0, sT0, sR))
    p("s_lshl_b32 s%d, s%d, 7" % (sT0, sT0))
    if FL_FK: p("s_add_u32 s%d, s%d, %d" % (sT0, sT0, FL_FK))
    flag_store(p, sT0)
    side_path_end(p, st)
    p.label("%s_nofk" % name)
vPK, vPA = 184, 185
def fk_addr(p):
    p("v_min_u32 v%d, 31, v1" % vPA); p("v_lshlrev_b32 v%d, 7, v%d" % (vPA, vPA))
    p("s_lshl_b32 s85, s%d, 12" % sJ)
    if FL_FK: p("s_add_u32 s85, s85, %d" % FL_FK)

vX, vWd, vXA, vWA = 192, 196, 200, 208
G1_ACC = 64
vCS, vB1, vST = 128, 180, 212
B1_ = 40
def g1_dma_setup(p):
    p("v_lshrrev_b32 v10, 3, v1"); p("v_and_b32 v11, 7, v1"); p("v_lshrrev_b32 v12, 1, v10")
    for ii in range(4):
        p("v_add_u32 v13, %d, v12" % (4 * (ii & 1))); p("v_xor_b32 v13, v13, v11")
        p("v_lshlrev_b32 v13, 4, v13"); p("v_lshl_add_u32 v13, v10, 10, v13")
        p("v_add_u32 v%d, %d, v13" % (vX + ii, ii * 8192))
    p("v_lshrrev_b32 v10, 4, v1"); p("v_and_b32 v11, 15, v1"); p("v_lshlrev_b32 v12, 2, v10")
    p("v_xor_b32 v12, v12, v11"); p("v_lshlrev_b32 v12, 4, v12")
    p("v_mul_u32_u24 v13, 3584, v10"); p("v_add_u32 v13, v13, v12")
    for ii in range(4): p("v_add_u32 v%d, %d, v13" % (vWd + ii, ii * 4 * 3584))
    p("s_lshl_b32 s%d, s%d, 17" % (sXo, sRB)); p("s_lshl_b32 s%d, s%d, 15" % (sT0, sW))
    p("s_add_u32 s%d, s%d, s%d" % (sXo, sXo, sT0))
    p("s_mul_i32 s%d, s%d, %d" % (sWo, sW, 16 * 3584)); p("s_lshl_b32 s%d, s%d, 8" % (sT0, sFT))
    p("s_add_u32 s%d, s%d, s%d" % (sWo, sWo, sT0))
    p("s_lshl_b32 s%d, s%d, 12" % (sM, sW))
def g1_dma_stage(s):
    out = []; slot = s % 4
    for ii in range(4):
        out.append([("s_add_u32 m0, s%d, %d" % (sM, slot * 32768 + ii * 1024), None),
                    ("buffer_load_dwordx4 v%d, s[%d:%d], s%d offen lds" % (vX + ii, GQ_, GQ_ + 3, sXo), "st%d" % s)])
    for ii in range(4):
        out.append([("s_add_u32 m0, s%d, %d" % (sM, slot * 32768 + 16384 + ii * 1024), None),
                    ("buffer_load_dwordx4 v%d, s[%d:%d], s%d offen lds" % (vWd + ii, GW1_, GW1_ + 3, sWo), "st%d" % s)])
    out[-1] += [("s_add_u32 s%d, s%d, 128" % (sXo, sXo), None), ("s_add_u32 s%d, s%d, %d" % (sWo, sWo, 64 * 3584), None)]
    return out
def g1_lds_setup(p):
    p("v_and_b32 v10, 31, v1"); p("v_lshrrev_b32 v11, 5, v1")
    p("v_lshrrev_b32 v12, 1, v10"); p("v_and_b32 v12, 7, v12"); p("v_xor_b32 v12, v12, v11")
    p("s_lshr_b32 s%d, s%d, 1" % (sT1, sW)); p("s_lshl_b32 s%d, s%d, 13" % (sT1, sT1))
    p("v_lshlrev_b32 v13, 7, v10"); p("v_add_u32 v13, s%d, v13" % sT1)
    for jj in range(4):
        p("v_xor_b32 v14, %d, v12" % (2 * jj))
        p("v_lshl_add_u32 v%d, v14, 4, v13" % (vXA + jj))
        p("v_add_u32 v%d, 0x10000, v%d" % (vXA + 4 + jj, vXA + jj))
    p("v_and_b32 v10, 15, v1"); p("v_lshrrev_b32 v11, 4, v1"); p("v_lshrrev_b32 v12, 1, v11")
    p("v_and_b32 v11, 1, v11"); p("v_lshrrev_b32 v13, 2, v10")
    p("v_lshl_add_u32 v12, v12, 3, v13"); p("v_lshlrev_b32 v12, 8, v12")
    p("v_and_b32 v14, 1, v10"); p("v_lshl_add_u32 v12, v14, 3, v12"); p("v_add_u32 v12, 16384, v12")
    p("v_and_b32 v14, 3, v10"); p("v_lshrrev_b32 v14, 1, v14"); p("v_lshl_add_u32 v14, v11, 1, v14")
    p("s_and_b32 s%d, s%d, 1" % (sT1, sW)); p("s_lshl_b32 s%d, s%d, 3" % (sT1, sT1))
    p("v_add_u32 v14, s%d, v14" % sT1); p("v_lshlrev_b32 v13, 2, v13")
    for fb in range(2):
        p("v_add_u32 v15, %d, v14" % (4 * fb)); p("v_xor_b32 v15, v15, v13")
        p("v_lshl_add_u32 v%d, v15, 4, v12" % (vWA + fb))
        p("v_add_u32 v%d, 0x10000, v%d" % (vWA + 2 + fb, vWA + fb))

def tab_loads(p):
    p("v_lshlrev_b32 v10, 4, v1")
    p("s_lshl_b32 s83, s%d, 2" % sW); p("s_mul_i32 s83, s83, %d" % (1792 * 8)); p("s_lshl_b32 s84, s%d, 10" % sFT); p("s_add_u32 s83, s83, s84")
    for i in range(4):
        p("buffer_load_dwordx4 %s, v10, s[%d:%d], s83 offen sc1" % (vr(vCS + 4 * i, 4), CSP_, CSP_ + 3), "tab")
        if i < 3: p("s_add_u32 s83, s83, %d" % (1792 * 8))
    p("s_lshr_b32 s84, s%d, 1" % sW); p("s_lshl_b32 s84, s84, 6")
    p("s_lshl_b32 s83, s%d, 7" % sRB); p("s_add_u32 s83, s83, s84"); p("s_lshl_b32 s83, s83, 6")
    p("v_and_b32 v12, 30, v1"); p("v_lshlrev_b32 v12, 6, v12"); p("v_and_b32 v13, 1, v1"); p("v_lshl_add_u32 v12, v13, 4, v12")
    p("buffer_load_dwordx4 %s, v12, s[%d:%d], s83 offen sc1" % (vr(vST, 4), ST_, ST_ + 3), "tab")
    p("buffer_load_dwordx4 %s, v12, s[%d:%d], s83 offen offset:2048 sc1" % (vr(vST + 4, 4), ST_, ST_ + 3), "tab")
def tab_check(p):
    _uid[0] += 1; u = _uid[0]
    def cmp():
        tags = [vCS + 4 * i + 1 for i in range(4)] + [vCS + 4 * i + 3 for i in range(4)] + [vST + 2, vST + 6]
        p("v_min3_u32 v10, v%d, v%d, v%d" % tuple(tags[0:3])); p("v_max3_u32 v11, v%d, v%d, v%d" % tuple(tags[0:3]))
        for i in range(3, 9, 2):
            p("v_min3_u32 v10, v10, v%d, v%d" % (tags[i], tags[i + 1])); p("v_max3_u32 v11, v11, v%d, v%d" % (tags[i], tags[i + 1]))
        p("v_min_u32 v10, v10, v%d" % tags[9]); p("v_max_u32 v11, v11, v%d" % tags[9])
        p("v_cmp_ne_u32 vcc, s%d, v10" % sN); p("v_cmp_ne_u32 s[76:77], s%d, v11" % sN)
        p("s_or_b64 vcc, vcc, s[76:77]"); p("s_nop 4")
    cmp()
    p("s_cbranch_vccz Lt%d_ok" % u)
    saved = (list(p.vm), list(p.lg))
    p("s_mov_b32 s79, 0")
    p.label("Lt%d_loop" % u)
    p("s_sleep 2")
    tab_loads(p)
    p.wait(vm=0)
    cmp()
    p("s_cbranch_vccz Lt%d_ok" % u)
    p("s_add_u32 s79, s79, 1"); p("s_cmp_lt_u32 s79, 0x40000"); p("s_cbranch_scc1 Lt%d_loop" % u)
    p.label("Lt%d_ok" % u)
    p.vm, p.lg = saved
def tab_partial(p):
    p("v_add_f32 v%d, v%d, v%d" % (vCS, vCS, vCS + 4)); p("v_add_f32 v%d, v%d, v%d" % (vCS + 2, vCS + 2, vCS + 6))
    p("v_add_f32 v%d, v%d, v%d" % (vCS + 8, vCS + 8, vCS + 12)); p("v_add_f32 v%d, v%d, v%d" % (vCS + 10, vCS + 10, vCS + 14))
    p("v_add_f32 v%d, v%d, v%d" % (vCS, vCS, vCS + 8)); p("v_add_f32 v%d, v%d, v%d" % (vCS + 1, vCS + 2, vCS + 10))
    p("v_lshlrev_b32 v10, 3, v1"); p("s_lshl_b32 s83, s%d, 9" % sW); p("v_add_u32 v10, s83, v10"); p("v_add_u32 v10, %d, v10" % CSQ_LDS)
    p("ds_write_b64 v10, %s" % vr(vCS, 2))

def g1_main(p, fill):
    ACC = G1_ACC; FR = 32
    def reads(g):
        s, jj = g // 4, g % 4
        slot = s % 4; hi = slot >= 2; so = (slot & 1) * 32768
        f = FR + 16 * (g & 1); out = []
        for fb in range(2):
            for rr in range(2):
                out.append("ds_read_b64_tr_b16 %s, v%d offset:%d" % (vr(f + 4 * fb + 2 * rr, 2), vWA + fb + (2 if hi else 0), so + jj * 4096 + rr * 1024))
        for tb in range(2):
            out.append("ds_read_b128 %s, v%d offset:%d" % (vr(f + 8 + 4 * tb, 4), vXA + jj + (4 if hi else 0), so + tb * 4096))
        return out
    def mfmas(g):
        f = FR + 16 * (g & 1); out = []
        for fb in range(2):
            for tb in range(2):
                a = ACC + 16 * (2 * fb + tb)
                out.append("v_mfma_f32_32x32x16_bf16 %s, %s, %s, %s" % (vr(a, 16), vr(f + 4 * fb, 4), vr(f + 8 + 4 * tb, 4), "0" if g == 0 else vr(a, 16)))
        return out
    for s in range(8):
        prewait, pre, units = fill[s]
        p.wait_tag("st%d" % s)
        prewait(p)
        p("s_barrier")
        stamp(p, "g1_st%d" % s)
        pre(p)
        dm = g1_dma_stage(s + 3) if (s + 3 < 8 and s >= 1) else []
        if s == 0: dm = g1_dma_stage(3)
        nm = 16 if s > 0 else 12
        di = ui = k = 0
        for jj in range(4):
            g = 4 * s + jj
            rd = reads(g)
            if g == 0:
                for t in rd: p(t)
                continue
            for q, t in enumerate(mfmas(g - 1)):
                p(t)
                for r_ in rd[2 * q:2 * q + 2]: p(r_)
                k += 1
                while di < len(dm) and di * nm < k * len(dm):
                    emit(p, dm[di]); di += 1
                while ui < len(units) and ui * nm < k * len(units):
                    emit(p, [units[ui]]); ui += 1
        while di < len(dm): emit(p, dm[di]); di += 1
        while ui < len(units): emit(p, [units[ui]]); ui += 1
    for t in mfmas(31): p(t)

def g1_epilogue(p, extra):
    HF_ = 44
    srd(p, HF_, P_WS, SZ_HF, WS_HF)
    ACC = G1_ACC; TBL = 128
    p("v_lshrrev_b32 v10, 5, v1"); p("v_lshlrev_b32 v10, 4, v10")
    p("s_and_b32 s%d, s%d, 1" % (sT1, sW)); p("s_lshl_b32 s%d, s%d, 8" % (sT1, sT1))
    p("v_add_u32 v10, s%d, v10" % sT1); p("v_add_u32 v10, %d, v10" % TAB_LDS)
    for rq in range(4):
        p("ds_read_b128 %s, v10 offset:%d" % (vr(TBL + 4 * rq, 4), rq * 32))
        p("ds_read_b128 %s, v10 offset:%d" % (vr(TBL + 16 + 4 * rq, 4), 512 + rq * 32))
    p("s_lshr_b32 s%d, s%d, 1" % (sT1, sW)); p("s_lshl_b32 s%d, s%d, 1" % (sT1, sT1))
    p("s_lshl_b32 s%d, s%d, 2" % (sT0, sRB)); p("s_add_u32 s%d, s%d, s%d" % (sT0, sT0, sT1))
    p("s_mul_i32 s%d, s%d, 112" % (sT0, sT0)); p("s_lshl_b32 s%d, s%d, 3" % (sT1, sFT))
    p("s_add_u32 s%d, s%d, s%d" % (sT0, sT0, sT1))
    p("s_and_b32 s%d, s%d, 1" % (sT1, sW)); p("s_lshl_b32 s%d, s%d, 2" % (sT1, sT1))
    p("s_add_u32 s%d, s%d, s%d" % (sT0, sT0, sT1)); p("s_lshl_b32 s83, s%d, 10" % sT0)
    p("v_lshlrev_b32 v11, 4, v1"); p("v_add_u32 v12, %d, v11" % (112 * 1024))
    for tb in range(2): p("v_mul_f32 v%d, v%d, v%d" % (vST + 4 * tb, vST + 4 * tb, vST + 4 * tb + 1))
    main = []
    TB2 = 32
    for fb in range(2):
        tbl = TBL if fb == 0 else TB2
        for tb in range(2):
            a = ACC + 16 * (2 * fb + tb); mu = vST + 4 * tb
            PK = 160 + 8 * tb
            if fb == 0 and tb == 0:
                for rq in range(4):
                    main.append(("ds_read_b128 %s, v10 offset:%d" % (vr(TB2 + 4 * rq, 4), 128 + rq * 32), None))
                    main.append(("ds_read_b128 %s, v10 offset:%d" % (vr(TB2 + 16 + 4 * rq, 4), 512 + 128 + rq * 32), None))
            for r_ in range(0, 16, 4):
                t0, t1 = 176, 178
                for t, rr in ((t0, r_), (t1, r_ + 2)):
                    main.append(("v_pk_fma_f32 %s, %s, %s, %s op_sel_hi:[0,1,1] neg_lo:[1,0,0] neg_hi:[1,0,0]" % (vr(t, 2), vr(mu, 2), vr(tbl + rr, 2), vr(tbl + 16 + rr, 2)), None))
                for t, rr in ((t0, r_), (t1, r_ + 2)):
                    main.append(("v_pk_fma_f32 %s, %s, %s, %s op_sel:[0,1,0] op_sel_hi:[1,1,1]" % (vr(t, 2), vr(a + rr, 2), vr(mu, 2), vr(t, 2)), None))
                for t in (t0, t0 + 1, t1, t1 + 1): main.append(("v_max_f32 v%d, 0, v%d" % (t, t), None))
                for t in (t0, t1): main.append(("v_pk_mul_f32 %s, %s, %s" % (vr(t, 2), vr(t, 2), vr(t, 2)), None))
                for t, rr in ((t0, r_), (t1, r_ + 2)): main.append(("v_cvt_pk_bf16_f32 v%d, v%d, v%d" % (PK + (rr >> 1), t, t + 1), None))
            for q in range(2):
                main.append(("buffer_store_dwordx4 %s, v%d, s[%d:%d], s83 offen offset:%d sc1" % (vr(PK + 4 * q, 4), 11 + tb, HF_, HF_ + 3, (2 * fb + q) * 1024), "hst"))
    n = len(extra); k = 0
    for i, it in enumerate(main):
        emit(p, [it])
        while k < n and k * len(main) < (i + 1) * n:
            emit(p, [extra[k]]); k += 1

def h_publish(p):
    p("s_lshl_b32 s%d, s%d, 1" % (sT0, sRB)); p("s_lshr_b32 s%d, s%d, 1" % (sT1, sW))
    p("s_add_u32 s%d, s%d, s%d" % (sT0, sT0, sT1)); p("s_mul_i32 s%d, s%d, 28" % (sT0, sT0))
    p("s_lshl_b32 s%d, s%d, 1" % (sT1, sFT)); p("s_add_u32 s%d, s%d, s%d" % (sT0, sT0, sT1))
    p("s_and_b32 s%d, s%d, 1" % (sT1, sW)); p("s_add_u32 s%d, s%d, s%d" % (sT0, sT0, sT1))
    p("s_lshl_b32 s%d, s%d, 7" % (sT0, sT0)); p("s_add_u32 s%d, s%d, %d" % (sT0, sT0, FL_FH))
    flag_store(p, sT0)

KVT2_, SSM_, DD_, ZT_ = 48, 52, 56, 60
CV_R, vDD = 220, 254
def conv_loads(p):
    srd(p, KVT2_, P_WS, SZ_KVT, WS_KVT); srd(p, SSM_, P_SSM, D * S * 2); srd(p, DD_, P_DD, D * 2); srd(p, ZT_, P_WS, SZ_ZT, WS_ZT)
    p("s_lshr_b32 s%d, s%d, 1" % (sT0, sW)); p("s_and_b32 s%d, s%d, 1" % (sC2, sW))
    p("s_lshl_b32 s%d, s%d, 6" % (sCH, sJ)); p("s_lshl_b32 s%d, s%d, 1" % (sT1, sR))
    p("s_add_u32 s%d, s%d, s%d" % (sCH, sCH, sT1)); p("s_add_u32 s%d, s%d, s%d" % (sCH, sCH, sT0))
    p("s_mul_i32 s%d, s%d, 21248" % (sCB, sT0)); p("s_add_u32 s%d, s%d, 256" % (sCB, sCB))
    p("s_lshl_b32 s%d, s%d, 12" % (sT0, sCH)); p("s_lshl_b32 s%d, s%d, 11" % (sT1, sC2))
    p("s_add_u32 s%d, s%d, s%d" % (sT0, sT0, sT1))
    p("v_lshlrev_b32 v2, 4, v1")
    R = CV_R
    for sg in range(2):
        for k in range(3):
            p("buffer_load_dwordx4 %s, v2, s[%d:%d], s%d offen offset:%d sc1" % (vr(R + 12 * sg + 4 * k, 4), KVT2_, KVT2_ + 3, sT0, sg * 1024 + 4 * k), "cv")
    for sg in range(2):
        p("s_add_u32 s%d, s%d, s%d" % (sT2, sCB, sT1))
        p("s_add_u32 m0, s%d, %d" % (sT2, 16640 + 512 + sg * 1024))
        p("s_add_u32 s%d, s%d, %d" % (sT2, sT0, sg * 1024))
        p("buffer_load_dwordx4 v2, s[%d:%d], s%d offen lds" % (SSM_, SSM_ + 3, sT2), "cv")
    p("v_mov_b32 v4, 0"); p("s_lshl_b32 s%d, s%d, 1" % (sT2, sCH))
    p("buffer_load_ushort v%d, v4, s[%d:%d], s%d offen" % (vDD, DD_, DD_ + 3, sT2), "cv")
    for i in range(4): p("v_mov_b32 v%d, 0" % (16 + i))
    p("v_lshrrev_b32 v5, 1, v1"); p("v_mul_u32_u24 v5, 4160, v5")
    p("v_and_b32 v6, 1, v1"); p("v_lshl_add_u32 v5, v6, 4, v5"); p("v_add_u32 v5, 4096, v5")
    p("v_add_u32 v6, 16640, v2")
    p("s_cmp_eq_u32 s%d, 0" % sC2)
    p("s_cselect_b32 s76, 0xff, -1")
    p("s_cselect_b64 vcc, -1, 0")
    p("v_cndmask_b32 v5, v6, v5, vcc")
    p("v_add_u32 v5, s%d, v5" % sCB)
    p("s_mov_b32 exec_lo, s76"); p("s_mov_b32 exec_hi, 0")
    p("ds_write_b128 v5, v[16:19]")
    p("s_mov_b64 exec, -1")

def conv_fill(p):
    R = CV_R
    p("v_lshlrev_b32 v2, 4, v1"); p("v_mov_b32 v8, 0")
    p("s_lshl_b32 s77, s%d, 31" % sC2); p("s_mov_b32 s76, 0")
    last = R + 12
    for rg in (last + 7, last + 10, last + 11): p("v_cndmask_b32 v%d, v%d, v8, s[76:77]" % (rg, rg))
    p("s_lshl_b32 s%d, s%d, 11" % (sT1, sC2)); p("s_add_u32 s%d, s%d, s%d" % (sT1, sT1, sCB))
    p("v_add_u32 v5, s%d, v2" % sT1)
    for sg in range(2):
        r0, r1, r2 = R + 12 * sg, R + 12 * sg + 4, R + 12 * sg + 8
        c1, c3 = 40 + 8 * sg, 44 + 8 * sg
        p("ds_write_b128 v5, %s offset:%d" % (vr(r0, 4), sg * 1024))
        for i in range(4): p("v_alignbit_b32 v%d, v%d, v%d, 16" % (c1 + i, r1 + i, r0 + i))
        p("ds_write_b128 v5, %s offset:%d" % (vr(r1, 4), 2 * 4160 + sg * 1024))
        for i in range(4): p("v_alignbit_b32 v%d, v%d, v%d, 16" % (c3 + i, r2 + i, r1 + i))
        p("ds_write_b128 v5, %s offset:%d" % (vr(c1, 4), 4160 + sg * 1024))
        p("ds_write_b128 v5, %s offset:%d" % (vr(c3, 4), 3 * 4160 + sg * 1024))

def conv_main(p, extra_by_class):
    vA, vB = 12, 13
    p("v_and_b32 v6, 15, v1"); p("v_lshrrev_b32 v7, 4, v1")
    p("v_sub_u32 v14, 3, v6"); p("v_and_b32 v14, 3, v14")
    p("v_mul_u32_u24 v15, 4158, v14")
    p("v_lshlrev_b32 v14, 1, v6"); p("v_sub_u32 v15, v15, v14"); p("v_lshl_add_u32 v15, v7, 4, v15")
    p("s_lshl_b32 s%d, s%d, 8" % (sT1, sC2)); p("s_sub_u32 s%d, s%d, s%d" % (sT1, sCB, sT1))
    p("s_add_u32 s%d, s%d, 30" % (sT2, sT1)); p("v_add_u32 v%d, s%d, v15" % (vA, sT2))
    p("v_lshlrev_b32 v15, 5, v6"); p("v_lshl_add_u32 v15, v7, 4, v15")
    p("s_add_u32 s%d, s%d, %d" % (sT2, sT1, 16640 + 32)); p("v_add_u32 v%d, s%d, v15" % (vB, sT2))
    ACC = 64
    p.wait(lg=0)
    p("s_barrier")
    stamp(p, "conv_filled")
    FA, FB = 96, 160
    def reads(rl):
        st = rl & 1; out = []
        for x in range(8):
            oa = 64 * (63 - rl - 8 * x)
            out.append(("ds_read_b64 %s, v%d offset:%d" % (vr(FA + 32 * st + 4 * x, 2), vA, oa), None))
            out.append(("ds_read_b64 %s, v%d offset:%d" % (vr(FA + 32 * st + 4 * x + 2, 2), vA, oa + 8), None))
            out.append(("ds_read_b128 %s, v%d offset:%d" % (vr(FB + 32 * st + 4 * x, 4), vB, 64 * (7 - rl + 8 * x)), None))
        return out
    seen = set()
    def mf(rl):
        st = rl & 1; out = []
        pairs = sorted([(a, b) for a in range(8) for b in range(8) if a + b <= 7], key=lambda ab: (max(ab), ab))
        for a, b in pairs:
            c = vr(ACC + 4 * (a + b), 4)
            first = (a + b) not in seen; seen.add(a + b)
            out.append(("v_mfma_f32_16x16x32_bf16 %s, %s, %s, %s" % (c, vr(FA + 32 * st + 4 * a, 4), vr(FB + 32 * st + 4 * b, 4), "0" if first else c), None))
        return out
    for t in reads(0): p(*t)
    for rl in range(4):
        pre, fill = extra_by_class[rl]
        pre(p)
        nxt = (reads(rl + 1) if rl < 3 else [])
        m = mf(rl)
        ni = fi = 0
        for i, t in enumerate(m):
            p(*t)
            while ni < len(nxt) and ni * 30 < (i + 1) * len(nxt): p(*nxt[ni]); ni += 1
            while fi < len(fill) and fi * 36 < (i + 1) * len(fill): emit(p, [fill[fi]]); fi += 1
    stamp(p, "conv_mma_done")

def conv_finish(p, name):
    ACC = 64
    RB = 256 + 2 * 21248
    p("v_lshlrev_b32 v2, 4, v1")
    p("s_lshl_b32 s%d, s%d, 12" % (sT1, sW))
    p("v_add_u32 v5, s%d, v2" % sT1); p("v_add_u32 v5, %d, v5" % RB)
    p("s_xor_b32 s%d, s%d, 1" % (sT1, sW)); p("s_lshl_b32 s%d, s%d, 12" % (sT1, sT1))
    p("v_add_u32 v14, s%d, v2" % sT1); p("v_add_u32 v14, %d, v14" % RB)
    p("v_lshlrev_b32 v15, 5, v6"); p("v_lshl_add_u32 v15, v7, 3, v15")
    p("s_lshl_b32 s%d, s%d, 11" % (sT1, sC2)); p("s_sub_u32 s%d, s%d, s%d" % (sT2, sCB, sT1))
    p("s_add_u32 s%d, s%d, %d" % (sT2, sT2, 4088 - 1536)); p("v_sub_u32 v16, s%d, v15" % sT2)
    p("s_lshl_b32 s84, s%d, 12" % sCH); p("s_add_u32 s84, s84, s%d" % sT1)
    p("v_lshlrev_b32 v%d, 16, v%d" % (vDD, vDD))
    for q in range(4): p("ds_read_b64 %s, v16 offset:%d" % (vr(36 + 2 * q, 2), (3 - q) * 512))
    st = side_path_begin(p); hist = len(p.out)
    p("s_cmp_eq_u32 s%d, 0" % sC2)
    p("s_cbranch_scc0 %s_hi" % name)
    for variant in range(2):
        keep = ACC + 16 * variant; give = ACC + 16 * (1 - variant)
        if variant == 1:
            p("s_branch %s_cdone" % name)
            p.label("%s_hi" % name)
            side_path_end(p, st)
            p("s_nop 7")
        for q in range(4): p("ds_write_b128 v5, %s offset:%d" % (vr(give + 4 * q, 4), q * 1024))
        for q in range(4):
            a_ = keep + 4 * q; u = 36 + 2 * q
            for c, (src, hf) in enumerate(((u + 1, 1), (u + 1, 0), (u, 1), (u, 0))):
                unpack(p, 44 + (c & 1), src, hf)
                p("v_fmac_f32 v%d, v%d, v%d" % (a_ + c, 44 + (c & 1), vDD))
        p.wait(lg=0)
        p("s_barrier")
        for q in range(4): p("ds_read_b128 %s, v14 offset:%d" % (vr(20 + 4 * q, 4), q * 1024))
        for q in range(4):
            a_ = keep + 4 * q
            for c in range(4): p("v_add_f32 v%d, v%d, v%d" % (a_ + c, a_ + c, 20 + 4 * q + c))
            p("v_cvt_pk_bf16_f32 v%d, v%d, v%d" % (48 + 2 * q, a_, a_ + 1))
            p("v_cvt_pk_bf16_f32 v%d, v%d, v%d" % (49 + 2 * q, a_ + 2, a_ + 3))
    p.label("%s_cdone" % name)
def z_stores(p):
    for q in range(4):
        p("buffer_store_dwordx2 %s, v15, s[%d:%d], s84 offen offset:%d sc1" % (vr(48 + 2 * q, 2), ZT_, ZT_ + 3, q * 512), "zst")
def z_publish(p):
    p("s_lshl_b32 s%d, s%d, 7" % (sT0, sJ)); p("s_lshl_b32 s%d, s%d, 2" % (sT1, sR))
    p("s_add_u32 s%d, s%d, s%d" % (sT0, sT0, sT1)); p("s_add_u32 s%d, s%d, s%d" % (sT0, sT0, sW))
    p("s_lshl_b32 s%d, s%d, 7" % (sT0, sT0)); p("s_add_u32 s%d, s%d, %d" % (sT0, sT0, FL_FZ))
    flag_store(p, sT0)

HF2_, W2_, Q2_, ZT2_, ST2_, B2_, OUT_ = 40, 68, 48, 52, 56, 64, 44
vH0, vH1, vD0, vD1 = 244, 245, 246, 247
vFH, vFHA = 248, 249
vTRA = 250
sWS = 75
NS = 28
STASH0 = 0
HB = 128
def g2_setup(p):
    srd(p, W2_, P_W2, F * D * 2)
    p("s_lshl_b32 s%d, s%d, 8" % (sTok, sJ))
    p("s_lshr_b32 s%d, s%d, 3" % (sT0, sR)); p("s_lshl_b32 s%d, s%d, 6" % (sT0, sT0))
    p("s_add_u32 s%d, s%d, s%d" % (sTok, sTok, sT0))
    p("s_and_b32 s%d, s%d, 7" % (sCh, sR)); p("s_lshl_b32 s%d, s%d, 6" % (sCh, sCh))
    p("s_lshr_b32 s%d, s%d, 5" % (sT0, sTok)); p("s_mul_i32 s%d, s%d, 112" % (sT0, sT0))
    p("s_mul_i32 s%d, s%d, 28" % (sT1, sW))
    p("s_add_u32 s%d, s%d, s%d" % (sT0, sT0, sT1)); p("s_lshl_b32 s%d, s%d, 10" % (sHo, sT0))
    p("s_lshl_b32 s%d, s%d, 14" % (sWA, sT1)); p("s_lshl_b32 s%d, s%d, 1" % (sT0, sCh))
    p("s_add_u32 s%d, s%d, s%d" % (sWA, sWA, sT0))
    p("s_mul_i32 s%d, s%d, %d" % (sM2, sW, RING)); p("s_add_u32 s%d, s%d, %d" % (sM2, sM2, RING0))
    p("v_lshlrev_b32 v%d, 4, v1" % vH0)
    p("v_add_u32 v%d, %d, v%d" % (vH1, 112 * 1024, vH0))
    p("v_lshrrev_b32 v10, 3, v1"); p("v_and_b32 v11, 7, v1")
    p("v_lshrrev_b32 v12, 1, v10"); p("v_and_b32 v12, 1, v12"); p("v_lshlrev_b32 v12, 2, v12")
    p("v_xor_b32 v12, v12, v11"); p("v_lshlrev_b32 v12, 4, v12")
    p("v_lshl_add_u32 v%d, v10, 10, v12" % vD0)
    p("v_add_u32 v%d, 8192, v%d" % (vD1, vD0))
    p("v_and_b32 v10, 15, v1"); p("v_lshrrev_b32 v11, 4, v1"); p("v_lshrrev_b32 v12, 1, v11"); p("v_and_b32 v11, 1, v11")
    p("v_lshrrev_b32 v13, 2, v10"); p("v_lshl_add_u32 v12, v12, 2, v13"); p("v_lshlrev_b32 v12, 7, v12")
    p("v_and_b32 v14, 3, v10"); p("v_lshrrev_b32 v15, 1, v14"); p("v_lshl_add_u32 v12, v15, 3, v12")
    p("v_and_b32 v14, 1, v14"); p("v_lshl_add_u32 v14, v14, 1, v11")
    p("v_lshrrev_b32 v15, 3, v10"); p("v_lshlrev_b32 v15, 2, v15")
    p("v_add_u32 v12, s%d, v12" % sM2)
    for cb in range(2):
        p("v_add_u32 v13, %d, v14" % (4 * cb)); p("v_xor_b32 v13, v13, v15")
        p("v_lshl_add_u32 v%d, v13, 4, v12" % (vTRA + cb))
def w2_dma(step, slot):
    tag = "w%d" % step
    return [[("s_add_u32 s%d, s%d, %d" % (sWS, sWA, step * 16384), None),
             ("s_add_u32 m0, s%d, %d" % (sM2, slot * 2048), None),
             ("buffer_load_dwordx4 v%d, s[%d:%d], s%d offen lds" % (vD0, W2_, W2_ + 3, sWS), tag)],
            [("s_add_u32 s%d, s%d, %d" % (sWS, sWA, step * 16384), None),
             ("s_add_u32 m0, s%d, %d" % (sM2, slot * 2048 + 1024), None),
             ("buffer_load_dwordx4 v%d, s[%d:%d], s%d offen lds" % (vD1, W2_, W2_ + 3, sWS), tag)]]
def tr_reads(slot, dst, kind):
    out = []
    for cb in range(2):
        for rr in range(2):
            out.append(("ds_read_b64_tr_b16 %s, v%d offset:%d" % (vr(dst + 4 * cb + 2 * rr, 2, kind), vTRA + cb, slot * 2048 + rr * 1024), None))
    return out
def stash_reads(step, slot): return tr_reads(slot, STASH0 + 8 * (step - 12), 'a')
def h_loads(s):
    slot = s % OPT["depth_h"]
    return [("buffer_load_dwordx4 %s, v%d, s[%d:%d], s%d offen sc1" % (ar(HB + 8 * slot, 4), vH0, HF2_, HF2_ + 3, sHo), "h%d" % s),
            ("buffer_load_dwordx4 %s, v%d, s[%d:%d], s%d offen sc1" % (ar(HB + 8 * slot + 4, 4), vH1, HF2_, HF2_ + 3, sHo), "h%d" % s),
            ("s_add_u32 s%d, s%d, 1024" % (sHo, sHo), None)]
def fh_poll_issue(p):
    p("v_min_u32 v%d, 27, v1" % vFHA); p("v_lshlrev_b32 v%d, 7, v%d" % (vFHA, vFHA))
    p("s_lshr_b32 s83, s%d, 6" % sTok); p("s_mul_i32 s83, s83, %d" % (28 * 128)); p("s_add_u32 s83, s83, %d" % FL_FH)
    poll_issue(p, vFH, vFHA, 83, "fh")
def g2_h_start(p):
    DH = OPT["depth_h"]
    srd(p, HF2_, P_WS, SZ_HF, WS_HF)
    p.wait_tag("fh")
    poll_check(p, [vFH], [vFHA], [83])
    stamp(p, "g2_h_ready")
    for s in range(DH):
        for t in h_loads(s): p(*t)
    if OPT["htouch"]:
        n = (NS - DH) * 16 // 8
        p("s_and_b32 s%d, s%d, 7" % (sT0, sR)); p("s_mul_i32 s%d, s%d, %d" % (sT0, sT0, n))
        p("v_add_u32 v10, s%d, v1" % sT0)
        p("v_lshrrev_b32 v11, 4, v10"); p("v_and_b32 v12, 7, v10"); p("v_lshlrev_b32 v12, 7, v12")
        p("v_lshl_add_u32 v12, v11, 10, v12")
        p("v_bfe_u32 v11, v10, 3, 1"); p("v_mul_u32_u24 v11, %d, v11" % (112 * 1024)); p("v_add_u32 v12, v12, v11")
        if n > 32: p("s_mov_b32 exec_hi, 0x%x" % ((1 << (n - 32)) - 1))
        else: p("s_mov_b64 exec, 0x%x" % ((1 << n) - 1))
        p("buffer_load_dword v60, v12, s[%d:%d], s%d offen sc1" % (HF2_, HF2_ + 3, sHo), "touch3")
        p("s_mov_b64 exec, -1")

vST2, vB2 = 16, 20
def g2_main(p):
    DH = OPT["depth_h"]
    srd(p, Q2_, P_Q, S * D * 2)
    srd(p, ZT2_, P_WS, SZ_ZT, WS_ZT); srd(p, ST2_, P_WS, SZ_ST, WS_ST); srd(p, B2_, P_B2, D * 2); srd(p, OUT_, P_OUT, S * D * 2)
    p.wait(lg=0)
    p("s_barrier")
    ACC = 64; FR = 32
    def ep_loads(p):
        p("v_lshrrev_b32 v10, 3, v1"); p("v_and_b32 v11, 7, v1"); p("v_lshrrev_b32 v12, 1, v10")
        for ii in range(2):
            p("v_add_u32 v13, %d, v12" % (4 * ii)); p("v_xor_b32 v13, v13, v11")
            p("v_lshlrev_b32 v13, 4, v13"); p("v_lshl_add_u32 v%d, v10, 10, v13" % (6 + ii))
        p("s_lshl_b32 s%d, s%d, 4" % (sT0, sW)); p("s_add_u32 s%d, s%d, s%d" % (sT0, sT0, sTok))
        p("s_lshl_b32 s%d, s%d, 10" % (sT0, sT0)); p("s_lshl_b32 s%d, s%d, 1" % (sT1, sCh))
        p("s_add_u32 s%d, s%d, s%d" % (sXO, sT0, sT1))
        p("s_lshl_b32 s%d, s%d, 11" % (sT2, sW))
        for ii in range(2):
            p("s_add_u32 m0, s%d, %d" % (sT2, XT + ii * 1024)); p("s_add_u32 s%d, s%d, %d" % (sT0, sXO, ii * 8192))
            p("buffer_load_dwordx4 v%d, s[%d:%d], s%d offen lds" % (6 + ii, Q2_, Q2_ + 3, sT0), "ep")
        p("s_lshr_b32 s%d, s%d, 1" % (sT0, sW)); p("s_lshl_b32 s%d, s%d, 5" % (sT0, sT0))
        p("s_add_u32 s%d, s%d, s%d" % (sT0, sT0, sTok)); p("s_lshl_b32 s%d, s%d, 6" % (sT0, sT0))
        p("v_and_b32 v12, 30, v1"); p("v_lshlrev_b32 v12, 6, v12"); p("v_and_b32 v13, 1, v1"); p("v_lshl_add_u32 v13, v13, 4, v12")
        p("buffer_load_dwordx4 %s, v13, s[%d:%d], s%d offen sc1" % (vr(vST2, 4), ST2_, ST2_ + 3, sT0), "ep")
        p("s_and_b32 s%d, s%d, 1" % (sT0, sW)); p("s_lshl_b32 s%d, s%d, 5" % (sT0, sT0))
        p("s_add_u32 s%d, s%d, s%d" % (sT0, sT0, sCh)); p("s_lshl_b32 s%d, s%d, 1" % (sT0, sT0))
        p("v_lshrrev_b32 v13, 5, v1"); p("v_lshlrev_b32 v13, 5, v13")
        p("buffer_load_dwordx4 %s, v13, s[%d:%d], s%d offen" % (vr(vB2, 4), B2_, B2_ + 3, sT0), "ep")
        p("buffer_load_dwordx4 %s, v13, s[%d:%d], s%d offen offset:16" % (vr(vB2 + 4, 4), B2_, B2_ + 3, sT0), "ep")
    def reads(s): return [t for t, _ in tr_reads(s, FR + 8 * (s & 1), 'v')]
    def mfmas(s):
        slot = s % DH; out = []
        for cb in range(2):
            A = vr(FR + 8 * (s & 1) + 4 * cb, 4) if s < 12 else ar(STASH0 + 8 * (s - 12) + 4 * cb, 4)
            for tb in range(2):
                a = vr(ACC + 16 * (2 * tb + cb), 16)
                out.append("v_mfma_f32_32x32x16_bf16 %s, %s, %s, %s" % (a, A, ar(HB + 8 * slot + 4 * tb, 4), "0" if s == 0 else a))
        return out
    vFZ = 56
    p.wait_tag("w0")
    for t in reads(0): p(t)
    extras = {2: rec(ep_loads)}
    for s in range(NS):
        if s + 1 < 12:
            p.wait_tag("w%d" % (s + 1))
            for t in reads(s + 1): p(t)
        if s in (0, 7, 13, 20): stamp(p, "g2_s%d" % s)
        mf = mfmas(s)
        hl = h_loads(s + DH) if s + DH < NS else []
        ex = extras.get(s, [])
        q4 = (len(ex) + 3) // 4
        for i in range(4):
            p(mf[i])
            emit(p, ex[i * q4:(i + 1) * q4])
            if i == 2:
                for t in hl[0:1]: p(*t)
            if i == 3:
                for t in hl[1:3]: p(*t)
        if s == DH:
            p.wait_tag("zst")
            z_publish(p)
        if s == 13:
            p("v_lshlrev_b32 v%d, 7, v1" % (vFZ + 2)); p("v_add_u32 v%d, 8192, v%d" % (vFZ + 3, vFZ + 2))
            p("s_lshr_b32 s84, s%d, 6" % sCh); p("s_lshl_b32 s84, s84, 14"); p("s_add_u32 s84, s84, %d" % FL_FZ)
            poll_issue(p, vFZ, vFZ + 2, 84, "fz"); poll_issue(p, vFZ + 1, vFZ + 3, 84, "fz")
        if s == 21:
            p.wait_tag("fz")
            poll_check(p, [vFZ, vFZ + 1], [vFZ + 2, vFZ + 3], [84, 84])
            p("v_lshrrev_b32 v10, 3, v1"); p("v_and_b32 v11, 7, v1")
            p("v_lshlrev_b32 v12, 4, v11"); p("v_lshl_add_u32 v8, v10, 12, v12")
            p("s_lshl_b32 s%d, s%d, 4" % (sT0, sW)); p("s_add_u32 s%d, s%d, s%d" % (sT0, sT0, sCh))
            p("s_lshl_b32 s%d, s%d, 12" % (sT0, sT0)); p("s_lshl_b32 s%d, s%d, 1" % (sT1, sTok))
            p("s_add_u32 s%d, s%d, s%d" % (sT0, sT0, sT1))
            p("buffer_load_dwordx4 %s, v8, s[%d:%d], s%d offen sc1" % (vr(128, 4), ZT2_, ZT2_ + 3, sT0), "z")
            p("s_add_u32 s%d, s%d, %d" % (sT0, sT0, 8 * 4096))
            p("buffer_load_dwordx4 %s, v8, s[%d:%d], s%d offen sc1" % (vr(132, 4), ZT2_, ZT2_ + 3, sT0), "z")
    stamp(p, "g2_mma_done")

def g2_epilogue(p, name):
    ACC = 64; OWN = 176
    p("v_lshrrev_b32 v10, 3, v1"); p("v_and_b32 v11, 7, v1")
    p("v_lshrrev_b32 v12, 1, v10"); p("v_and_b32 v12, 1, v12"); p("v_lshlrev_b32 v12, 2, v12")
    p("v_xor_b32 v12, v12, v11"); p("v_lshlrev_b32 v12, 4, v12"); p("v_lshl_add_u32 v12, v10, 7, v12")
    p("s_lshl_b32 s%d, s%d, 11" % (sT2, sW)); p("s_add_u32 s%d, s%d, %d" % (sT2, sT2, ZTT))
    p("v_add_u32 v12, s%d, v12" % sT2)
    p("ds_write_b128 v12, %s" % vr(128, 4)); p("ds_write_b128 v12, %s offset:1024" % vr(132, 4))
    st = side_path_begin(p)
    for w in range(4):
        if w < 3:
            p("s_cmp_eq_u32 s%d, %d" % (sW, w))
            p("s_cbranch_scc0 %s_rw%d" % (name, w + 1))
        side_path_end(p, st)
        p("s_nop 7"); p("s_nop 3")
        for rel in range(1, 4):
            q = w ^ rel
            for rq in range(4):
                p("ds_write_b128 v%d, %s offset:%d" % (vH0, vr(ACC + 16 * q + 4 * rq, 4), RED + q * 12288 + (rel - 1) * 4096 + rq * 1024))
        for i in range(16): p("v_mov_b32 v%d, v%d" % (OWN + i, ACC + 16 * w + i))
        if w < 3:
            p("s_branch %s_rwd" % name)
            p.label("%s_rw%d" % (name, w + 1))
    p.label("%s_rwd" % name)
    XR_, ZR = 128, 136
    p("v_and_b32 v11, 31, v1"); p("v_lshrrev_b32 v12, 5, v1")
    p("s_lshr_b32 s%d, s%d, 1" % (sT0, sW)); p("s_lshl_b32 s%d, s%d, 5" % (sT0, sT0))
    p("v_add_u32 v11, s%d, v11" % sT0)
    p("v_lshrrev_b32 v13, 1, v11"); p("v_and_b32 v13, 7, v13")
    p("s_and_b32 s%d, s%d, 1" % (sT1, sW)); p("s_lshl_b32 s%d, s%d, 2" % (sT1, sT1))
    p("v_lshlrev_b32 v12, 1, v12"); p("v_add_u32 v12, s%d, v12" % sT1)
    p("v_lshlrev_b32 v11, 7, v11")
    p("v_xor_b32 v14, v12, v13"); p("v_lshl_add_u32 v14, v14, 4, v11")
    p("v_add_u32 v12, 1, v12"); p("v_xor_b32 v15, v12, v13"); p("v_lshl_add_u32 v15, v15, 4, v11")
    p("v_add_u32 v6, %d, v14" % XT); p("v_add_u32 v7, %d, v15" % XT)
    p("v_and_b32 v10, 15, v1"); p("v_lshrrev_b32 v11, 4, v1"); p("v_lshrrev_b32 v12, 1, v11"); p("v_and_b32 v11, 1, v11")
    p("v_lshrrev_b32 v13, 2, v10"); p("v_lshl_add_u32 v12, v12, 4, v13")
    p("s_and_b32 s%d, s%d, 1" % (sT1, sW)); p("s_lshl_b32 s%d, s%d, 5" % (sT1, sT1))
    p("v_add_u32 v12, s%d, v12" % sT1); p("v_lshlrev_b32 v12, 7, v12")
    p("v_and_b32 v13, 1, v10"); p("v_lshl_add_u32 v12, v13, 3, v12")
    p("v_and_b32 v13, 3, v10"); p("v_lshrrev_b32 v13, 1, v13"); p("v_lshl_add_u32 v13, v11, 1, v13")
    p("s_lshr_b32 s%d, s%d, 1" % (sT1, sW)); p("s_lshl_b32 s%d, s%d, 2" % (sT1, sT1))
    p("v_add_u32 v13, s%d, v13" % sT1)
    p("v_lshrrev_b32 v8, 3, v10"); p("v_lshlrev_b32 v8, 2, v8"); p("v_xor_b32 v13, v13, v8")
    p("v_lshl_add_u32 v12, v13, 4, v12"); p("v_add_u32 v12, %d, v12" % ZTT)
    p("s_mul_i32 s%d, s%d, 12288" % (sT0, sW)); p("v_add_u32 v10, s%d, v%d" % (sT0, vH0))
    mu, rs = vST2, vST2 + 1
    p.wait_tag("ep")
    p("v_mul_f32 v%d, v%d, v%d" % (mu, mu, rs))
    p.wait(lg=0)
    p("s_barrier")
    stamp(p, "g2_red_bar")
    p("ds_read_b128 %s, v6" % vr(XR_, 4)); p("ds_read_b128 %s, v7" % vr(XR_ + 4, 4))
    for m in range(4): p("ds_read_b64_tr_b16 %s, v12 offset:%d" % (vr(ZR + 2 * m, 2), m * 512))
    for sl in range(3):
        for rq in range(4):
            p("ds_read_b128 %s, v10 offset:%d" % (vr(ACC + 16 * sl + 4 * rq, 4), RED + sl * 4096 + rq * 1024))
    Y = 144
    for r_ in range(16):
        x, z, b = 30 + 3 * (r_ & 1), 31 + 3 * (r_ & 1), 32 + 3 * (r_ & 1)
        unpack(p, x, XR_ + (r_ >> 1), r_ & 1); unpack(p, z, ZR + (r_ >> 1), r_ & 1); unpack(p, b, vB2 + (r_ >> 1), r_ & 1)
        p("v_fma_f32 v%d, v%d, v%d, -v%d" % (Y + r_, x, rs, mu))
        p("v_add_f32 v%d, v%d, v%d" % (b, b, x))
        p("v_add_f32 v%d, v%d, v%d" % (b, b, OWN + r_))
        p("v_fma_f32 v%d, v%d, v%d, v%d" % (Y + r_, Y + r_, z, b))
    PK = 160
    for r_ in range(16):
        p("v_add_f32 v%d, v%d, v%d" % (ACC + r_, ACC + r_, ACC + 16 + r_))
        p("v_add_f32 v%d, v%d, v%d" % (Y + r_, Y + r_, ACC + 32 + r_))
        p("v_add_f32 v%d, v%d, v%d" % (Y + r_, Y + r_, ACC + r_))
        if r_ & 1: p("v_cvt_pk_bf16_f32 v%d, v%d, v%d" % (PK + (r_ >> 1), Y + r_ - 1, Y + r_))
    p("ds_write_b128 v6, %s" % vr(PK, 4)); p("ds_write_b128 v7, %s" % vr(PK + 4, 4))
    p("v_lshrrev_b32 v10, 3, v1"); p("v_and_b32 v11, 7, v1"); p("v_lshrrev_b32 v12, 1, v10")
    for ii in range(2):
        p("v_add_u32 v13, %d, v12" % (4 * ii)); p("v_xor_b32 v13, v13, v11")
        p("v_lshlrev_b32 v13, 4, v13"); p("v_lshl_add_u32 v%d, v10, 10, v13" % (8 + ii))
    p("v_add_u32 v9, 8192, v9")
    p("s_lshl_b32 s%d, s%d, 11" % (sT2, sW))
    p("v_add_u32 v10, s%d, v%d" % (sT2, vH0)); p("v_add_u32 v10, %d, v10" % XT)
    p.wait(lg=0)
    p("s_barrier")
    p("ds_read_b128 v[16:19], v10"); p("ds_read_b128 v[20:23], v10 offset:1024")
    p("buffer_store_dwordx4 v[16:19], v8, s[%d:%d], s%d offen" % (OUT_, OUT_ + 3, sXO))
    p("buffer_store_dwordx4 v[20:23], v9, s[%d:%d], s%d offen" % (OUT_, OUT_ + 3, sXO))

def flat(l): return [x for y in l for x in y]
def gen(name):
    p = Prog()
    prof_reset()
    p("s_cmp_ge_u32 s2, 256")
    p("s_cbranch_scc1 %s_end" % name)
    stamp(p, "rt0", True); stamp(p, "t0")
    p("s_memrealtime s[90:91]")
    load_kernargs(p)
    p("v_and_b32 v1, 63, v0"); p("v_lshrrev_b32 v2, 6, v0")
    p("s_and_b32 s%d, s2, 7" % sJ); p("s_lshr_b32 s%d, s2, 3" % sR)
    p("v_readfirstlane_b32 s%d, v2" % sW)
    p("v_mov_b32 v253, 0")
    p("s_waitcnt lgkmcnt(0)")
    srd(p, 92, P_DBG, 256)
    p("s_lshl_b32 s%d, s2, 2" % sT0); p("s_add_u32 s78, s%d, s%d" % (sT0, sW))
    p("s_cmp_eq_u32 s78, %d" % (255 * 4))
    p("s_cbranch_scc0 %s_n0" % name)
    st = side_path_begin(p)
    p("v_mov_b32 v250, s90"); p("v_mov_b32 v251, 1")
    p("s_mov_b64 exec, 1")
    p("buffer_store_dwordx2 v[250:251], v253, s[92:95], 0 offen sc1")
    p("s_mov_b64 exec, -1")
    side_path_end(p, st)
    p.label("%s_n0" % name)
    stamp(p, "karg")
    p_loads(p)
    stamp(p, "ploads")
    touches_g1(p)
    after_loads = side_path_begin(p)
    p("s_cmp_ge_u32 s%d, 28" % sR)
    p("s_cbranch_scc1 %s_spare" % name)
    g1_dma_setup(p)
    for s_ in range(3):
        for u in g1_dma_stage(s_): emit(p, u)
    stamp(p, "issued")
    def common_srds(p):
        srd(p, FL_, P_WS, SZ_FLAG, WS_FLAG); srd(p, KVT_, P_WS, SZ_KVT, WS_KVT); srd(p, ST_, P_WS, SZ_ST, WS_ST); srd(p, CSP_, P_WS, SZ_CSP, WS_CSP)
    common_srds(p)
    srd(p, B1_, P_B1, F * 2)
    g1_lds_setup(p)
    kv_compute(p)
    nonce_issue(p)
    stamp(p, "kv_done")
    none = lambda p: None
    lg0 = lambda p: p.wait(lg=0)
    def pre1(p):
        p.wait_tag("nonce"); nonce_check(p)
    st_items = rec(stats)
    h1 = len(st_items) * 2 // 5
    def b1_load(p):
        p("v_and_b32 v14, 127, v0"); p("v_lshlrev_b32 v14, 1, v14"); p("s_lshl_b32 s84, s%d, 8" % sFT)
        p("buffer_load_ushort v%d, v14, s[%d:%d], s84 offen" % (vB1, B1_, B1_ + 3), "tab")
    def pre7(p):
        p.wait_tag("tab"); tab_check(p); tab_partial(p)
        fk_addr(p); poll_issue(p, vPK, vPA, 85, "poll")
    fill = {0: (lg0, none, rec(kv_stores) + rec(cs_partial)),
            1: (lg0, pre1, rec(cs_final) + st_items[:h1]),
            2: (none, none, st_items[h1:]),
            3: (none, none, rec(touch_late)),
            4: (lambda p: p.wait_tag("kst"), lambda p: fk_publish(p, "g1"), []),
            5: (none, none, []),
            6: (none, none, rec(tab_loads) + rec(b1_load)),
            7: (none, pre7, [])}
    g1_main(p, fill)
    stamp(p, "g1_mfma_end")
    p("v_and_b32 v10, 127, v0"); p("v_lshlrev_b32 v10, 2, v10"); p("v_add_u32 v11, %d, v10" % CSQ_LDS); p("v_add_u32 v10, %d, v10" % TAB_LDS)
    g2_setup(p)
    p.wait(lg=0)
    p("s_barrier")
    p("v_and_b32 v10, 127, v0"); p("v_lshlrev_b32 v10, 2, v10"); p("v_add_u32 v11, %d, v10" % CSQ_LDS); p("v_add_u32 v10, %d, v10" % TAB_LDS)
    for i in range(4): p("ds_read_b32 v%d, v11 offset:%d" % (20 + i, i * 512))
    p("v_lshlrev_b32 v%d, 16, v%d" % (vB1, vB1))
    p("v_add_f32 v20, v20, v21"); p("v_add_f32 v22, v22, v23"); p("v_add_f32 v20, v20, v22")
    p("ds_write_b32 v10, v20"); p("ds_write_b32 v10, v%d offset:512" % vB1)
    poll_check(p, [vPK], [vPA], [85])
    conv_loads(p)
    p.wait(lg=0)
    p("s_barrier")
    stamp(p, "g1_mma_done")
    roundA = flat([w2_dma(12 + i, i) for i in range(12)])
    g1_epilogue(p, roundA)
    p.wait_tag("cv")
    p.label("%s_cfill" % name)
    stamp(p, "g1_epi_done")
    conv_fill(p)
    def c0(p): p.wait_tag("w17")
    def c1(p):
        p.wait_tag("hst"); p.wait_tag("w23")
        p("s_cmp_ge_u32 s%d, 28" % sR)
        p("s_cbranch_scc1 %s_nohp" % name)
        st = side_path_begin(p)
        h_publish(p)
        side_path_end(p, st)
        p.label("%s_nohp" % name)
        p.wait(lg=0)
        stamp(p, "h_pub")
    def c2(p): p.wait(lg=0)
    def c3(p): p.wait(lg=0); p.wait_tag("w27")
    f0 = flat([stash_reads(12 + i, i) for i in range(6)])
    f1 = interleave(flat([stash_reads(18 + i, 6 + i) for i in range(6)]), flat([w2_dma(24 + i, i) for i in range(4)] + [w2_dma(4 + i, 4 + i) for i in range(2)]), 0.5)
    f2 = flat([w2_dma(6 + i, 6 + i) for i in range(6)])
    f3 = flat([stash_reads(24 + i, i) for i in range(4)])
    conv_main(p, [(c0, f0), (c1, f1), (c2, f2), (c3, f3)])
    p.wait(lg=0)
    for u in flat([w2_dma(i, i) for i in range(4)]): emit(p, u)
    conv_finish(p, name)
    stamp(p, "conv_done")
    fh_poll_issue(p)
    g2_h_start(p)
    z_stores(p)
    g2_main(p)
    g2_epilogue(p, name)
    stamp(p, "end")
    if common.PROF: p.wait(vm=0)
    stamp(p, "end_acked"); stamp(p, "rt1", True)
    prof_flush(p, sW)
    p("s_endpgm")
    p.label("%s_spare" % name)
    side_path_end(p, after_loads)
    common_srds(p)
    kv_compute(p)
    nonce_issue(p)
    p.wait(lg=0)
    p("s_barrier")
    kv_stores(p)
    p.wait_tag("nonce"); nonce_check(p)
    stats(p)
    p.wait_tag("kst")
    p("s_barrier")
    fk_publish(p, "sp")
    touch_late(p)
    g2_setup(p)
    for u in roundA: emit(p, u)
    fk_addr(p)
    poll_issue(p, vPK, vPA, 85, "poll")
    p.wait(vm=0, lg=0)
    poll_check(p, [vPK], [vPA], [85])
    conv_loads(p)
    p.wait(vm=0)
    p("s_branch %s_cfill" % name)
    p.label("%s_end" % name)
    p("s_endpgm")
    return p.text(), 512, 256
```

```python
from common import *
import common
from fused import (sN, sJ, sR, sW, sT0, sT1, sT2, sT3, FL_, unpack, flag_store, poll_issue, poll_check,
                   side_path_begin, side_path_end, nonce_issue, nonce_check, _uid)
OPT = dict(touch=1, w2touch=1, htouch=1, nt=0, ntkv=0, depth_h=8)
def nt(): return " nt" if OPT["nt"] else ""
def ntkv(): return " nt" if (OPT["nt"] or OPT["ntkv"]) else ""

class Rec:
    def __init__(self): self.items = []; self.grp = None
    def __call__(self, txt, tag=None): (self.grp if self.grp is not None else self.items).append((txt, tag))
    def call(self, fn): (self.grp if self.grp is not None else self.items).append((fn, None))
    def begin(self): self.grp = []
    def end(self): self.items.append(self.grp); self.grp = None
def begin(p):
    if isinstance(p, Rec): p.begin()
def end(p):
    if isinstance(p, Rec): p.end()
def emit(p, items):
    for it in items:
        if isinstance(it, list): emit(p, it)
        elif callable(it[0]): it[0](p)
        else: p(it[0], it[1])
def rec(fn, *a):
    r = Rec(); fn(r, *a); return r.items

P_LDS, CSB_LDS, SK_LDS = 131072, 139264, 147456
TAB_LDS, CSQ_LDS = 59392, 60416
RING0, RING = 65536, 12 * 2048
RED, XT, ZTT = 0, 49152, 57344
sROW, sRB, sFT = 72, 73, 74
sXo, sWo, sM = 80, 81, 82
sCH, sC2, sCB = 86, 87, 88
sTok, sCh, sHo = 89, 90, 91
sWA, sM2, sXO = 80, 81, 82
K_, V_, SK_, GQ_, GW1_ = 40, 44, 48, 52, 56
KVT_, ST_, CSP_ = 60, 64, 68

KR, VR, SKR, XR, CR = 16, 36, 44, 128, 136
vC, vRR = 3, 4
def p_loads(p):
    srd(p, K_, P_K, S * D * 2); srd(p, V_, P_V, S * D * 2); srd(p, SK_, P_SK, D * 8)
    vA = 5
    p("s_lshl_b32 s%d, s%d, 9" % (sT1, sJ))
    p("v_and_b32 v11, 31, v1"); p("v_lshlrev_b32 v11, 4, v11")
    p("buffer_load_dwordx4 %s, v11, s[%d:%d], s%d offen" % (vr(SKR, 4), SK_, SK_ + 3, sT1))
    p("v_and_b32 v%d, 7, v1" % vC); p("v_lshrrev_b32 v%d, 3, v1" % vRR)
    p("s_lshl_b32 s%d, s%d, 6" % (sT0, sR)); p("s_lshl_b32 s%d, s%d, 4" % (sT1, sW))
    p("s_add_u32 s%d, s%d, s%d" % (sT0, sT0, sT1)); p("s_lshl_b32 s%d, s%d, 10" % (sT0, sT0))
    p("s_lshl_b32 s%d, s%d, 7" % (sT1, sJ)); p("s_add_u32 s%d, s%d, s%d" % (sT0, sT0, sT1))
    p("v_lshlrev_b32 v%d, 11, v%d" % (vA, vRR)); p("v_lshl_add_u32 v%d, v%d, 4, v%d" % (vA, vC, vA))
    p("v_add_u32 v%d, s%d, v%d" % (vA, sT0, vA))
    for i in range(5): p("v_add_u32 v%d, %d, v%d" % (6 + i, (i - 3) * 1024, vA))
    for i in range(5): p("buffer_load_dwordx4 %s, v%d, s[%d:%d], 0 offen%s" % (vr(KR + 4 * i, 4), 6 + i, K_, K_ + 3, ntkv()))
    p("buffer_load_dwordx4 %s, v%d, s[%d:%d], 0 offen%s" % (vr(VR, 4), vA, V_, V_ + 3, ntkv()))
    p("buffer_load_dwordx4 %s, v%d, s[%d:%d], 0 offen offset:1024%s" % (vr(VR + 4, 4), vA, V_, V_ + 3, ntkv()))
def tile_indices(p):
    srd(p, GQ_, P_Q, S * D * 2); srd(p, GW1_, P_W1, D * F * 2)
    p("s_mul_i32 s%d, s%d, 37" % (sT0, sR)); p("s_lshr_b32 s%d, s%d, 8" % (sT0, sT0))
    p("s_mul_i32 s%d, s%d, 7" % (sT1, sT0)); p("s_sub_u32 s%d, s%d, s%d" % (sT1, sR, sT1))
    p("s_lshr_b32 s%d, s%d, 1" % (sT2, sJ)); p("s_lshl_b32 s%d, s%d, 2" % (sT2, sT2))
    p("s_add_u32 s%d, s%d, s%d" % (sRB, sT2, sT0))
    p("s_and_b32 s%d, s%d, 1" % (sT2, sJ)); p("s_mul_i32 s%d, s%d, 7" % (sT2, sT2))
    p("s_add_u32 s%d, s%d, s%d" % (sFT, sT2, sT1))

def touches_g1(p):
    if not OPT["touch"]: return
    p("s_lshl_b32 s%d, s%d, 2" % (sT2, sR)); p("s_add_u32 s%d, s%d, s%d" % (sT2, sT2, sW))
    p("v_lshlrev_b32 v9, 7, v1")
    p("s_lshr_b32 s%d, s%d, 1" % (sT0, sJ)); p("s_lshl_b32 s%d, s%d, 19" % (sT0, sT0))
    p("s_lshl_b32 s%d, s%d, 12" % (sT1, sT2)); p("s_add_u32 s%d, s%d, s%d" % (sT0, sT0, sT1))
    p("s_mov_b32 exec_hi, 0")
    p("buffer_load_dword v188, v9, s[%d:%d], s%d offen%s" % (GQ_, GQ_ + 3, sT0, nt()), "touch")
    p("s_mov_b64 exec, -1")
    p("v_mul_u32_u24 v10, 4682, v1"); p("v_lshrrev_b32 v10, 16, v10")
    p("v_mul_u32_u24 v11, 14, v10"); p("v_sub_u32 v11, v1, v11")
    p("v_mul_u32_u24 v10, 3584, v10"); p("v_lshl_add_u32 v10, v11, 7, v10")
    p("s_mul_i32 s%d, s%d, %d" % (sT0, sT2, 4 * 3584)); p("s_and_b32 s%d, s%d, 1" % (sT1, sJ))
    p("s_mul_i32 s%d, s%d, 1792" % (sT1, sT1)); p("s_add_u32 s%d, s%d, s%d" % (sT0, sT0, sT1))
    p("s_mov_b32 exec_hi, 0x00ffffff")
    p("buffer_load_dword v189, v10, s[%d:%d], s%d offen%s" % (GW1_, GW1_ + 3, sT0, nt()), "touch")
    p("s_mov_b64 exec, -1")

def touch_late(p):
    p("v_lshlrev_b32 v9, 7, v1")
    p("s_mov_b32 s8, s%d" % P_SSM); p("s_mov_b32 s9, s%d" % (P_SSM + 1)); p("s_mov_b32 s10, 0x%x" % (D * S * 2)); p("s_mov_b32 s11, 0x20000")
    p("s_lshl_b32 s%d, s%d, 6" % (sT0, sJ)); p("s_lshl_b32 s%d, s%d, 1" % (sT1, sR))
    p("s_add_u32 s%d, s%d, s%d" % (sT0, sT0, sT1)); p("s_lshl_b32 s%d, s%d, 12" % (sT0, sT0))
    p("s_lshl_b32 s%d, s%d, 11" % (sT1, sW)); p("s_add_u32 s%d, s%d, s%d" % (sT0, sT0, sT1))
    begin(p)
    p("s_mov_b64 exec, 0xffff")
    p("buffer_load_dword v190, v9, s[8:11], s%d offen%s" % (sT0, ntkv()), "touch2")
    p("s_mov_b64 exec, -1")
    end(p)
    if not OPT["w2touch"]: return
    p("s_mov_b32 s8, s%d" % P_W2); p("s_mov_b32 s9, s%d" % (P_W2 + 1)); p("s_mov_b32 s10, 0x%x" % (F * D * 2))
    p("s_lshl_b32 s%d, s%d, 2" % (sT2, sR)); p("s_add_u32 s%d, s%d, s%d" % (sT2, sT2, sW))
    p("s_mul_i32 s%d, s%d, 14336" % (sT2, sT2))
    p("buffer_load_dword v191, v9, s[8:11], s%d offen" % sT2, "touch2")
    p("s_add_u32 s%d, s%d, 8192" % (sT2, sT2))
    begin(p)
    p("s_mov_b32 exec_hi, 0xffff")
    p("buffer_load_dword v187, v9, s[8:11], s%d offen" % sT2, "touch2")
    p("s_mov_b64 exec, -1")
    end(p)

vKL, vKG0, vKG1 = 24, 25, 26
def kv_compute(p):
    RES, A = 100, 108
    p("s_lshl_b32 s%d, s%d, 9" % (sT0, sW)); p("s_add_u32 s%d, s%d, %d" % (sT0, sT0, SK_LDS))
    p("v_and_b32 v11, 31, v1"); p("v_lshlrev_b32 v11, 4, v11"); p("v_add_u32 v11, s%d, v11" % sT0)
    p("v_lshlrev_b32 v2, 6, v%d" % vC); p("v_add_u32 v2, s%d, v2" % sT0)
    p("ds_write_b128 v11, %s" % vr(SKR, 4))
    p("s_lshl_b32 s%d, s%d, 3" % (sT0, sW)); p("s_sub_u32 s%d, 31, s%d" % (sT0, sT0))
    p("v_sub_u32 v15, s%d, v%d" % (sT0, vRR))
    p("v_lshrrev_b32 v6, 2, v15"); p("v_xor_b32 v6, v6, v%d" % vC)
    p("v_and_b32 v15, 3, v15"); p("v_lshlrev_b32 v15, 2, v15")
    p("v_lshl_add_u32 v15, v6, 4, v15"); p("v_lshl_add_u32 v15, v%d, 10, v15" % vC)
    p("v_add_u32 v15, %d, v15" % P_LDS)
    p.wait(lg=0)
    for i in range(4): p("ds_read_b128 %s, v2 offset:%d" % (vr(SKR + 4 * i, 4), 16 * i))
    p("s_mov_b32 s76, 0x05040100"); p("s_mov_b32 s77, 0x07060302")
    for e in range(8):
        dw, hf = e >> 1, e & 1
        sel = 76 + hf
        K = lambda i: KR + 4 * i + dw
        a = A + 8 * (e & 1)
        p("v_perm_b32 v%d, v%d, v%d, s%d" % (a + 0, K(2), K(3), sel))
        p("v_perm_b32 v%d, v%d, v%d, s%d" % (a + 1, K(0), K(1), sel))
        p("v_perm_b32 v%d, v%d, v%d, s%d" % (a + 2, K(3), K(4), sel))
        p("v_perm_b32 v%d, v%d, v%d, s%d" % (a + 3, K(1), K(2), sel))
        p("v_dot2_f32_bf16 v%d, v%d, v%d, 0" % (a + 4, a + 0, SKR + 2 * e))
        p("v_dot2_f32_bf16 v%d, v%d, v%d, 0" % (a + 5, a + 2, SKR + 2 * e))
        unpack(p, a + 6, VR + dw, hf); unpack(p, a + 7, VR + 4 + dw, hf)
        p("v_dot2_f32_bf16 v%d, v%d, v%d, v%d" % (a + 4, a + 1, SKR + 2 * e + 1, a + 4))
        p("v_dot2_f32_bf16 v%d, v%d, v%d, v%d" % (a + 5, a + 3, SKR + 2 * e + 1, a + 5))
        if e > 0:
            b = A + 8 * ((e - 1) & 1)
            p("v_mul_f32 v%d, v%d, v%d" % (b + 4, b + 4, b + 6)); p("v_mul_f32 v%d, v%d, v%d" % (b + 5, b + 5, b + 7))
            p("v_cvt_pk_bf16_f32 v%d, v%d, v%d" % (RES + e - 1, b + 5, b + 4))
            p("ds_write_b32 v15, v%d offset:%d" % (RES + e - 1, (e - 1) * 128))
    b = A + 8
    p("s_lshl_b32 s%d, s%d, 4" % (sT0, sW)); p("v_add_u32 v6, s%d, v%d" % (sT0, vRR))
    p("v_mul_f32 v%d, v%d, v%d" % (b + 4, b + 4, b + 6)); p("v_mul_f32 v%d, v%d, v%d" % (b + 5, b + 5, b + 7))
    p("v_cvt_pk_bf16_f32 v%d, v%d, v%d" % (RES + 7, b + 5, b + 4))
    p("ds_write_b32 v15, v%d offset:%d" % (RES + 7, 7 * 128))
    p("v_lshlrev_b32 v7, 7, v6"); p("v_lshl_add_u32 v7, v%d, 4, v7" % vC); p("v_add_u32 v%d, %d, v7" % (vKL, P_LDS))
    p("v_lshlrev_b32 v8, 12, v6"); p("s_lshl_b32 s%d, s%d, 1" % (sT1, sW))
    p("v_xor_b32 v9, s%d, v%d" % (sT1, vC)); p("v_lshl_add_u32 v%d, v9, 4, v8" % vKG0)
    p("s_add_u32 s%d, s%d, 1" % (sT1, sT1))
    p("v_xor_b32 v10, s%d, v%d" % (sT1, vC)); p("v_lshl_add_u32 v10, v10, 4, v8"); p("v_add_u32 v%d, 0x8000, v10" % vKG1)
def kv_stores(p):
    p("ds_read_b128 v[16:19], v%d" % vKL); p("ds_read_b128 v[20:23], v%d offset:1024" % vKL)
    p("s_lshl_b32 s83, s%d, 18" % sJ); p("s_lshl_b32 s84, s%d, 7" % sR)
    p("s_sub_u32 s83, s83, s84"); p("s_add_u32 s83, s83, 3968")
    p("buffer_store_dwordx4 v[16:19], v%d, s[%d:%d], s83 offen sc1" % (vKG0, KVT_, KVT_ + 3), "kst")
    p("buffer_store_dwordx4 v[20:23], v%d, s[%d:%d], s83 offen sc1" % (vKG1, KVT_, KVT_ + 3), "kst")

SX, SC_ = 128, 64
def sp_loads(p):
    p("s_sub_u32 s72, s%d, 28" % sR)
    p("s_lshr_b32 s%d, s%d, 1" % (sT0, sJ)); p("s_lshl_b32 s%d, s%d, 9" % (sT0, sT0))
    p("s_and_b32 s%d, s%d, 1" % (sT1, sJ)); p("s_lshl_b32 s%d, s%d, 2" % (sT1, sT1)); p("s_add_u32 s%d, s%d, s72" % (sT1, sT1))
    p("s_lshl_b32 s%d, s%d, 6" % (sT1, sT1)); p("s_add_u32 s%d, s%d, s%d" % (sT0, sT0, sT1))
    p("s_lshl_b32 s%d, s%d, 4" % (sT1, sW)); p("s_add_u32 s73, s%d, s%d" % (sT0, sT1))
    p("s_lshl_b32 s%d, s73, 10" % sT0)
    p("v_lshrrev_b32 v10, 3, v1"); p("v_and_b32 v11, 7, v1"); p("v_lshlrev_b32 v11, 4, v11"); p("v_lshl_add_u32 v10, v10, 10, v11")
    for g in range(2):
        for i in range(8):
            p("buffer_load_dwordx4 %s, v10, s[%d:%d], s%d offen offset:%d" % (vr(SX + 32 * g + 4 * i, 4), GQ_, GQ_ + 3, sT0, i * 128), "sx")
        if g == 0: p("s_add_u32 s%d, s%d, 8192" % (sT0, sT0))
    p("s_lshr_b32 s74, s%d, 1" % sJ); p("s_lshl_b32 s74, s74, 2"); p("s_add_u32 s74, s74, s72")
    p("s_lshl_b32 s%d, s74, 5" % sT0); p("s_lshl_b32 s%d, s%d, 3" % (sT1, sW)); p("s_add_u32 s%d, s%d, s%d" % (sT0, sT0, sT1))
    p("s_mul_i32 s%d, s%d, 3584" % (sT0, sT0)); p("s_and_b32 s%d, s%d, 1" % (sT1, sJ)); p("s_mul_i32 s%d, s%d, 1792" % (sT1, sT1))
    p("s_add_u32 s%d, s%d, s%d" % (sT0, sT0, sT1))
    p("v_lshlrev_b32 v12, 4, v1")
    for i in range(8):
        p("buffer_load_dwordx4 %s, v12, s[%d:%d], s%d offen" % (vr(SC_ + 8 * i, 4), GW1_, GW1_ + 3, sT0), "sc")
        p("buffer_load_dwordx4 %s, v12, s[%d:%d], s%d offen offset:1024" % (vr(SC_ + 8 * i + 4, 4), GW1_, GW1_ + 3, sT0), "sc")
        if i < 7: p("s_add_u32 s%d, s%d, 3584" % (sT0, sT0))
def sp_stats(p):
    T = 200
    p("s_mov_b32 s75, 0x3f803f80")
    for g in range(2):
        for h in range(2): p("v_mov_b32 v%d, 0" % (T + 4 * g + h)); p("v_mov_b32 v%d, 0" % (T + 8 + 2 * g + h))
    for i in range(8):
        for g in range(2):
            for d in range(4):
                r_ = SX + 32 * g + 4 * i + d
                aS, aQ = (T + 4 * g, T + 4 * g + 1) if d & 1 else (T + 8 + 2 * g, T + 9 + 2 * g)
                p("v_dot2_f32_bf16 v%d, v%d, s75, v%d" % (aS, r_, aS)); p("v_dot2_f32_bf16 v%d, v%d, v%d, v%d" % (aQ, r_, r_, aQ))
    for g in range(2):
        p("v_add_f32 v%d, v%d, v%d" % (T + 4 * g, T + 4 * g, T + 8 + 2 * g)); p("v_add_f32 v%d, v%d, v%d" % (T + 4 * g + 1, T + 4 * g + 1, T + 9 + 2 * g))
    for ctrl in ("quad_perm:[1,0,3,2] row_mask:0xf", "quad_perm:[2,3,0,1] row_mask:0xf", "row_half_mirror row_mask:0xf"):
        for q in (T, T + 1, T + 4, T + 5):
            p("v_add_f32_dpp v%d, v%d, v%d %s bank_mask:0xf" % (q, q, q, ctrl))
    for g in range(2):
        sS, sQ = T + 4 * g, T + 4 * g + 1
        p("v_mul_f32 v%d, 0x3b000000, v%d" % (sS, sS)); p("v_mul_f32 v%d, 0x3b000000, v%d" % (sQ, sQ))
    for g in range(2): p("v_fma_f32 v%d, -v%d, v%d, v%d" % (T + 4 * g + 1, T + 4 * g, T + 4 * g, T + 4 * g + 1))
    for g in range(2): p("v_max_f32 v%d, 0, v%d" % (T + 4 * g + 1, T + 4 * g + 1))
    for g in range(2): p("v_add_f32 v%d, 0x3727c5ac, v%d" % (T + 4 * g + 1, T + 4 * g + 1))
    for g in range(2): p("v_rsq_f32 v%d, v%d" % (T + 4 * g + 1, T + 4 * g + 1))
def sp_stats_store(p):
    T = 200
    for q in (T + 2, T + 3, T + 6, T + 7): p("v_mov_b32 v%d, s%d" % (q, sN))
    p("v_lshrrev_b32 v10, 3, v1"); p("v_lshlrev_b32 v10, 4, v10")
    p("s_lshl_b32 s%d, s73, 4" % sT0)
    p("s_mov_b32 exec_lo, 0x01010101"); p("s_mov_b32 exec_hi, 0x01010101")
    p("buffer_store_dwordx4 %s, v10, s[%d:%d], s%d offen sc1" % (vr(T, 4), ST_, ST_ + 3, sT0), "pst")
    p("buffer_store_dwordx4 %s, v10, s[%d:%d], s%d offen offset:128 sc1" % (vr(T + 4, 4), ST_, ST_ + 3, sT0), "pst")
    p("s_mov_b64 exec, -1")
SPC_LDS = 0
def sp_cs(p):
    A = 216
    p("s_mov_b32 s76, 0x00003f80"); p("s_mov_b32 s77, 0x3f800000")
    for i in range(8):
        for part in range(2):
            for d in range(4):
                r_ = SC_ + 8 * i + 4 * part + d; a = A + 8 * part + 2 * d
                p("v_dot2_f32_bf16 v%d, v%d, s76, %s" % (a, r_, "0" if i == 0 else "v%d" % a))
                p("v_dot2_f32_bf16 v%d, v%d, s77, %s" % (a + 1, r_, "0" if i == 0 else "v%d" % (a + 1)))
    p("v_lshlrev_b32 v10, 5, v1"); p("s_lshl_b32 s%d, s%d, 12" % (sT0, sW)); p("v_add_u32 v10, s%d, v10" % sT0)
    for part in range(2):
        p("ds_write_b128 v10, %s offset:%d" % (vr(A + 8 * part, 4), SPC_LDS + part * 2048))
        p("ds_write_b128 v10, %s offset:%d" % (vr(A + 8 * part + 4, 4), SPC_LDS + part * 2048 + 16))
def sp_cs_store(p):
    p("v_lshlrev_b32 v10, 4, v0")
    for w in range(4): p("ds_read_b128 %s, v10 offset:%d" % (vr(64 + 4 * w, 4), SPC_LDS + w * 4096))
    for c in range(4):
        p("v_add_f32 v%d, v%d, v%d" % (64 + c, 64 + c, 68 + c)); p("v_add_f32 v%d, v%d, v%d" % (72 + c, 72 + c, 76 + c))
    for c in range(4): p("v_add_f32 v%d, v%d, v%d" % (80 + 2 * c, 64 + c, 72 + c)); p("v_mov_b32 v%d, s%d" % (81 + 2 * c, sN))
    p("s_mul_i32 s%d, s74, %d" % (sT0, 1792 * 8)); p("s_and_b32 s%d, s%d, 1" % (sT1, sJ)); p("s_mul_i32 s%d, s%d, %d" % (sT1, sT1, 896 * 8))
    p("s_add_u32 s%d, s%d, s%d" % (sT0, sT0, sT1))
    p("v_lshlrev_b32 v11, 5, v0")
    p("v_cmp_gt_u32 vcc, 224, v0"); p("s_nop 1"); p("v_cndmask_b32 v11, v253, v11, vcc"); p("v_mov_b32 v12, 0x7f000000")
    p("v_cndmask_b32 v11, v12, v11, vcc")
    p("buffer_store_dwordx4 v[80:83], v11, s[%d:%d], s%d offen sc1" % (CSP_, CSP_ + 3, sT0), "pst")
    p("buffer_store_dwordx4 v[84:87], v11, s[%d:%d], s%d offen offset:16 sc1" % (CSP_, CSP_ + 3, sT0), "pst")
def fk_publish(p, name):
    p("s_cmp_eq_u32 s%d, 0" % sW)
    p("s_cbranch_scc0 %s_nofk" % name)
    st = side_path_begin(p)
    p("s_lshl_b32 s%d, s%d, 5" % (sT0, sJ)); p("s_add_u32 s%d, s%d, s%d" % (sT0, sT0, sR))
    p("s_lshl_b32 s%d, s%d, 7" % (sT0, sT0))
    if FL_FK: p("s_add_u32 s%d, s%d, %d" % (sT0, sT0, FL_FK))
    flag_store(p, sT0)
    side_path_end(p, st)
    p.label("%s_nofk" % name)
vPK, vPA = 184, 185
def fk_addr(p, all_waves=False):
    p("v_min_u32 v%d, 31, v1" % vPA); p("v_lshlrev_b32 v%d, 7, v%d" % (vPA, vPA))
    if not all_waves:
        p("s_min_u32 s85, s%d, 1" % sW); p("s_sub_u32 s85, 1, s85"); p("v_mul_u32_u24 v%d, s85, v%d" % (vPA, vPA))
    p("s_lshl_b32 s85, s%d, 12" % sJ)
    if FL_FK: p("s_add_u32 s85, s85, %d" % FL_FK)

vX, vWd, vXA, vWA = 192, 196, 200, 208
G1_ACC = 64
vCS, vB1, vST = 128, 180, 212
B1_ = 40
def g1_dma_setup(p):
    p("v_lshrrev_b32 v10, 3, v1"); p("v_and_b32 v11, 7, v1"); p("v_lshrrev_b32 v12, 1, v10")
    for ii in range(4):
        p("v_add_u32 v13, %d, v12" % (4 * (ii & 1))); p("v_xor_b32 v13, v13, v11")
        p("v_lshlrev_b32 v13, 4, v13"); p("v_lshl_add_u32 v13, v10, 10, v13")
        p("v_add_u32 v%d, %d, v13" % (vX + ii, ii * 8192))
    p("v_lshrrev_b32 v10, 4, v1"); p("v_and_b32 v11, 15, v1"); p("v_lshlrev_b32 v12, 2, v10")
    p("v_xor_b32 v12, v12, v11"); p("v_lshlrev_b32 v12, 4, v12")
    p("v_mul_u32_u24 v13, 3584, v10"); p("v_add_u32 v13, v13, v12")
    for ii in range(4): p("v_add_u32 v%d, %d, v13" % (vWd + ii, ii * 4 * 3584))
    p("s_lshl_b32 s%d, s%d, 17" % (sXo, sRB)); p("s_lshl_b32 s%d, s%d, 15" % (sT0, sW))
    p("s_add_u32 s%d, s%d, s%d" % (sXo, sXo, sT0))
    p("s_mul_i32 s%d, s%d, %d" % (sWo, sW, 16 * 3584)); p("s_lshl_b32 s%d, s%d, 8" % (sT0, sFT))
    p("s_add_u32 s%d, s%d, s%d" % (sWo, sWo, sT0))
    p("s_lshl_b32 s%d, s%d, 12" % (sM, sW))
def g1_dma_stage(s):
    out = []; slot = s % 4
    for ii in range(4):
        out.append([("s_add_u32 m0, s%d, %d" % (sM, slot * 32768 + ii * 1024), None),
                    ("buffer_load_dwordx4 v%d, s[%d:%d], s%d offen lds" % (vX + ii, GQ_, GQ_ + 3, sXo), "st%d" % s)])
    for ii in range(4):
        out.append([("s_add_u32 m0, s%d, %d" % (sM, slot * 32768 + 16384 + ii * 1024), None),
                    ("buffer_load_dwordx4 v%d, s[%d:%d], s%d offen lds" % (vWd + ii, GW1_, GW1_ + 3, sWo), "st%d" % s)])
    out[-1] += [("s_add_u32 s%d, s%d, 128" % (sXo, sXo), None), ("s_add_u32 s%d, s%d, %d" % (sWo, sWo, 64 * 3584), None)]
    return out
def g1_lds_setup(p):
    p("v_and_b32 v10, 31, v1"); p("v_lshrrev_b32 v11, 5, v1")
    p("v_lshrrev_b32 v12, 1, v10"); p("v_and_b32 v12, 7, v12"); p("v_xor_b32 v12, v12, v11")
    p("s_lshr_b32 s%d, s%d, 1" % (sT1, sW)); p("s_lshl_b32 s%d, s%d, 13" % (sT1, sT1))
    p("v_lshlrev_b32 v13, 7, v10"); p("v_add_u32 v13, s%d, v13" % sT1)
    for jj in range(4):
        p("v_xor_b32 v14, %d, v12" % (2 * jj))
        p("v_lshl_add_u32 v%d, v14, 4, v13" % (vXA + jj))
        p("v_add_u32 v%d, 0x10000, v%d" % (vXA + 4 + jj, vXA + jj))
    p("v_and_b32 v10, 15, v1"); p("v_lshrrev_b32 v11, 4, v1"); p("v_lshrrev_b32 v12, 1, v11")
    p("v_and_b32 v11, 1, v11"); p("v_lshrrev_b32 v13, 2, v10")
    p("v_lshl_add_u32 v12, v12, 3, v13"); p("v_lshlrev_b32 v12, 8, v12")
    p("v_and_b32 v14, 1, v10"); p("v_lshl_add_u32 v12, v14, 3, v12"); p("v_add_u32 v12, 16384, v12")
    p("v_and_b32 v14, 3, v10"); p("v_lshrrev_b32 v14, 1, v14"); p("v_lshl_add_u32 v14, v11, 1, v14")
    p("s_and_b32 s%d, s%d, 1" % (sT1, sW)); p("s_lshl_b32 s%d, s%d, 3" % (sT1, sT1))
    p("v_add_u32 v14, s%d, v14" % sT1); p("v_lshlrev_b32 v13, 2, v13")
    for fb in range(2):
        p("v_add_u32 v15, %d, v14" % (4 * fb)); p("v_xor_b32 v15, v15, v13")
        p("v_lshl_add_u32 v%d, v15, 4, v12" % (vWA + fb))
        p("v_add_u32 v%d, 0x10000, v%d" % (vWA + 2 + fb, vWA + fb))

def tab_loads(p):
    p("v_lshlrev_b32 v10, 4, v1")
    p("s_lshl_b32 s83, s%d, 2" % sW); p("s_mul_i32 s83, s83, %d" % (1792 * 8)); p("s_lshl_b32 s84, s%d, 10" % sFT); p("s_add_u32 s83, s83, s84")
    for i in range(4):
        p("buffer_load_dwordx4 %s, v10, s[%d:%d], s83 offen sc1" % (vr(vCS + 4 * i, 4), CSP_, CSP_ + 3), "tab")
        if i < 3: p("s_add_u32 s83, s83, %d" % (1792 * 8))
    p("s_lshr_b32 s84, s%d, 1" % sW); p("s_lshl_b32 s84, s84, 6")
    p("s_lshl_b32 s83, s%d, 7" % sRB); p("s_add_u32 s83, s83, s84"); p("s_lshl_b32 s83, s83, 4")
    p("v_and_b32 v12, 31, v1"); p("v_lshlrev_b32 v12, 4, v12")
    p("buffer_load_dwordx4 %s, v12, s[%d:%d], s83 offen sc1" % (vr(vST, 4), ST_, ST_ + 3), "tab")
    p("buffer_load_dwordx4 %s, v12, s[%d:%d], s83 offen offset:512 sc1" % (vr(vST + 4, 4), ST_, ST_ + 3), "tab")
def tab_check(p):
    _uid[0] += 1; u = _uid[0]
    def cmp():
        tags = [vCS + 4 * i + 1 for i in range(4)] + [vCS + 4 * i + 3 for i in range(4)] + [vST + 2, vST + 6]
        p("v_min3_u32 v10, v%d, v%d, v%d" % tuple(tags[0:3])); p("v_max3_u32 v11, v%d, v%d, v%d" % tuple(tags[0:3]))
        for i in range(3, 9, 2):
            p("v_min3_u32 v10, v10, v%d, v%d" % (tags[i], tags[i + 1])); p("v_max3_u32 v11, v11, v%d, v%d" % (tags[i], tags[i + 1]))
        p("v_min_u32 v10, v10, v%d" % tags[9]); p("v_max_u32 v11, v11, v%d" % tags[9])
        p("v_cmp_ne_u32 vcc, s%d, v10" % sN); p("v_cmp_ne_u32 s[76:77], s%d, v11" % sN)
        p("s_or_b64 vcc, vcc, s[76:77]"); p("s_nop 4")
    cmp()
    p("s_cbranch_vccz Lt%d_ok" % u)
    saved = (list(p.vm), list(p.lg))
    p("s_mov_b32 s79, 0")
    p.label("Lt%d_loop" % u)
    p("s_sleep 2")
    tab_loads(p)
    p.wait(vm=0)
    cmp()
    p("s_cbranch_vccz Lt%d_ok" % u)
    p("s_add_u32 s79, s79, 1"); p("s_cmp_lt_u32 s79, 0x40000"); p("s_cbranch_scc1 Lt%d_loop" % u)
    p.label("Lt%d_ok" % u)
    p.vm, p.lg = saved
def tab_partial(p):
    p("v_add_f32 v%d, v%d, v%d" % (vCS, vCS, vCS + 4)); p("v_add_f32 v%d, v%d, v%d" % (vCS + 2, vCS + 2, vCS + 6))
    p("v_add_f32 v%d, v%d, v%d" % (vCS + 8, vCS + 8, vCS + 12)); p("v_add_f32 v%d, v%d, v%d" % (vCS + 10, vCS + 10, vCS + 14))
    p("v_add_f32 v%d, v%d, v%d" % (vCS, vCS, vCS + 8)); p("v_add_f32 v%d, v%d, v%d" % (vCS + 1, vCS + 2, vCS + 10))
    p("v_lshlrev_b32 v10, 3, v1"); p("s_lshl_b32 s83, s%d, 9" % sW); p("v_add_u32 v10, s83, v10"); p("v_add_u32 v10, %d, v10" % CSQ_LDS)
    p("ds_write_b64 v10, %s" % vr(vCS, 2))

def g1_main(p, fill):
    ACC = G1_ACC; FR = 32
    def reads(g):
        s, jj = g // 4, g % 4
        slot = s % 4; hi = slot >= 2; so = (slot & 1) * 32768
        f = FR + 16 * (g & 1); out = []
        for fb in range(2):
            for rr in range(2):
                out.append("ds_read_b64_tr_b16 %s, v%d offset:%d" % (vr(f + 4 * fb + 2 * rr, 2), vWA + fb + (2 if hi else 0), so + jj * 4096 + rr * 1024))
        for tb in range(2):
            out.append("ds_read_b128 %s, v%d offset:%d" % (vr(f + 8 + 4 * tb, 4), vXA + jj + (4 if hi else 0), so + tb * 4096))
        return out
    def mfmas(g):
        f = FR + 16 * (g & 1); out = []
        for fb in range(2):
            for tb in range(2):
                a = ACC + 16 * (2 * fb + tb)
                out.append("v_mfma_f32_32x32x16_bf16 %s, %s, %s, %s" % (vr(a, 16), vr(f + 4 * fb, 4), vr(f + 8 + 4 * tb, 4), "0" if g == 0 else vr(a, 16)))
        return out
    for s in range(8):
        prewait, pre, units = fill[s]
        p.wait_tag("st%d" % s)
        prewait(p)
        p("s_barrier")
        stamp(p, "g1_st%d" % s)
        pre(p)
        dm = g1_dma_stage(s + 3) if (s + 3 < 8 and s >= 1) else []
        if s == 0: dm = g1_dma_stage(3)
        nm = 16 if s > 0 else 12
        di = ui = k = 0
        for jj in range(4):
            g = 4 * s + jj
            rd = reads(g)
            if g == 0:
                for t in rd: p(t)
                continue
            for q, t in enumerate(mfmas(g - 1)):
                p(t)
                for r_ in rd[2 * q:2 * q + 2]: p(r_)
                k += 1
                while di < len(dm) and di * nm < k * len(dm):
                    emit(p, dm[di]); di += 1
                while ui < len(units) and ui * nm < k * len(units):
                    emit(p, [units[ui]]); ui += 1
        while di < len(dm): emit(p, dm[di]); di += 1
        while ui < len(units): emit(p, [units[ui]]); ui += 1
    for t in mfmas(31): p(t)

def g1_epilogue(p, extra):
    HF_ = 44
    srd(p, HF_, P_WS, SZ_HF, WS_HF)
    ACC = G1_ACC; TBL = 128
    p("v_lshrrev_b32 v10, 5, v1"); p("v_lshlrev_b32 v10, 4, v10")
    p("s_and_b32 s%d, s%d, 1" % (sT1, sW)); p("s_lshl_b32 s%d, s%d, 8" % (sT1, sT1))
    p("v_add_u32 v10, s%d, v10" % sT1); p("v_add_u32 v10, %d, v10" % TAB_LDS)
    for rq in range(4):
        p("ds_read_b128 %s, v10 offset:%d" % (vr(TBL + 4 * rq, 4), rq * 32))
        p("ds_read_b128 %s, v10 offset:%d" % (vr(TBL + 16 + 4 * rq, 4), 512 + rq * 32))
    p("s_lshr_b32 s%d, s%d, 1" % (sT1, sW)); p("s_lshl_b32 s%d, s%d, 1" % (sT1, sT1))
    p("s_lshl_b32 s%d, s%d, 2" % (sT0, sRB)); p("s_add_u32 s%d, s%d, s%d" % (sT0, sT0, sT1))
    p("s_mul_i32 s%d, s%d, 112" % (sT0, sT0)); p("s_lshl_b32 s%d, s%d, 3" % (sT1, sFT))
    p("s_add_u32 s%d, s%d, s%d" % (sT0, sT0, sT1))
    p("s_and_b32 s%d, s%d, 1" % (sT1, sW)); p("s_lshl_b32 s%d, s%d, 2" % (sT1, sT1))
    p("s_add_u32 s%d, s%d, s%d" % (sT0, sT0, sT1)); p("s_lshl_b32 s83, s%d, 10" % sT0)
    p("v_lshlrev_b32 v11, 4, v1"); p("v_add_u32 v12, %d, v11" % (112 * 1024))
    for tb in range(2): p("v_mul_f32 v%d, v%d, v%d" % (vST + 4 * tb, vST + 4 * tb, vST + 4 * tb + 1))
    main = []
    TB2 = 32
    for fb in range(2):
        tbl = TBL if fb == 0 else TB2
        for tb in range(2):
            a = ACC + 16 * (2 * fb + tb); mu = vST + 4 * tb
            PK = 160 + 8 * tb
            if fb == 0 and tb == 0:
                for rq in range(4):
                    main.append(("ds_read_b128 %s, v10 offset:%d" % (vr(TB2 + 4 * rq, 4), 128 + rq * 32), None))
                    main.append(("ds_read_b128 %s, v10 offset:%d" % (vr(TB2 + 16 + 4 * rq, 4), 512 + 128 + rq * 32), None))
            for r_ in range(0, 16, 4):
                t0, t1 = 176, 178
                for t, rr in ((t0, r_), (t1, r_ + 2)):
                    main.append(("v_pk_fma_f32 %s, %s, %s, %s op_sel_hi:[0,1,1] neg_lo:[1,0,0] neg_hi:[1,0,0]" % (vr(t, 2), vr(mu, 2), vr(tbl + rr, 2), vr(tbl + 16 + rr, 2)), None))
                for t, rr in ((t0, r_), (t1, r_ + 2)):
                    main.append(("v_pk_fma_f32 %s, %s, %s, %s op_sel:[0,1,0] op_sel_hi:[1,1,1]" % (vr(t, 2), vr(a + rr, 2), vr(mu, 2), vr(t, 2)), None))
                for t in (t0, t0 + 1, t1, t1 + 1): main.append(("v_max_f32 v%d, 0, v%d" % (t, t), None))
                for t in (t0, t1): main.append(("v_pk_mul_f32 %s, %s, %s" % (vr(t, 2), vr(t, 2), vr(t, 2)), None))
                for t, rr in ((t0, r_), (t1, r_ + 2)): main.append(("v_cvt_pk_bf16_f32 v%d, v%d, v%d" % (PK + (rr >> 1), t, t + 1), None))
            for q in range(2):
                main.append(("buffer_store_dwordx4 %s, v%d, s[%d:%d], s83 offen offset:%d sc1" % (vr(PK + 4 * q, 4), 11 + tb, HF_, HF_ + 3, (2 * fb + q) * 1024), "hst"))
    n = len(extra); k = 0
    for i, it in enumerate(main):
        emit(p, [it])
        while k < n and k * len(main) < (i + 1) * n:
            emit(p, [extra[k]]); k += 1

def h_publish(p):
    p("s_lshl_b32 s%d, s%d, 1" % (sT0, sRB)); p("s_lshr_b32 s%d, s%d, 1" % (sT1, sW))
    p("s_add_u32 s%d, s%d, s%d" % (sT0, sT0, sT1)); p("s_mul_i32 s%d, s%d, 28" % (sT0, sT0))
    p("s_lshl_b32 s%d, s%d, 1" % (sT1, sFT)); p("s_add_u32 s%d, s%d, s%d" % (sT0, sT0, sT1))
    p("s_and_b32 s%d, s%d, 1" % (sT1, sW)); p("s_add_u32 s%d, s%d, s%d" % (sT0, sT0, sT1))
    p("s_lshl_b32 s%d, s%d, 7" % (sT0, sT0)); p("s_add_u32 s%d, s%d, %d" % (sT0, sT0, FL_FH))
    flag_store(p, sT0)

KVT2_, SSM_, DD_, ZT_ = 48, 52, 56, 60
CV_R, vDD = 220, 254
def conv_loads(p):
    srd(p, KVT2_, P_WS, SZ_KVT, WS_KVT); srd(p, SSM_, P_SSM, D * S * 2); srd(p, DD_, P_DD, D * 2); srd(p, ZT_, P_WS, SZ_ZT, WS_ZT)
    p("s_lshr_b32 s%d, s%d, 1" % (sT0, sW)); p("s_and_b32 s%d, s%d, 1" % (sC2, sW))
    p("s_lshl_b32 s%d, s%d, 6" % (sCH, sJ)); p("s_lshl_b32 s%d, s%d, 1" % (sT1, sR))
    p("s_add_u32 s%d, s%d, s%d" % (sCH, sCH, sT1)); p("s_add_u32 s%d, s%d, s%d" % (sCH, sCH, sT0))
    p("s_mul_i32 s%d, s%d, 21248" % (sCB, sT0)); p("s_add_u32 s%d, s%d, 256" % (sCB, sCB))
    p("s_lshl_b32 s%d, s%d, 12" % (sT0, sCH)); p("s_lshl_b32 s%d, s%d, 11" % (sT1, sC2))
    p("s_add_u32 s%d, s%d, s%d" % (sT0, sT0, sT1))
    p("v_lshlrev_b32 v2, 4, v1")
    R = CV_R
    for sg in range(2):
        for k in range(3):
            p("buffer_load_dwordx4 %s, v2, s[%d:%d], s%d offen offset:%d sc1" % (vr(R + 12 * sg + 4 * k, 4), KVT2_, KVT2_ + 3, sT0, sg * 1024 + 4 * k), "cv")
    for sg in range(2):
        p("s_add_u32 s%d, s%d, s%d" % (sT2, sCB, sT1))
        p("s_add_u32 m0, s%d, %d" % (sT2, 16640 + 512 + sg * 1024))
        p("s_add_u32 s%d, s%d, %d" % (sT2, sT0, sg * 1024))
        p("buffer_load_dwordx4 v2, s[%d:%d], s%d offen lds" % (SSM_, SSM_ + 3, sT2), "cv")
    p("v_mov_b32 v4, 0"); p("s_lshl_b32 s%d, s%d, 1" % (sT2, sCH))
    p("buffer_load_ushort v%d, v4, s[%d:%d], s%d offen" % (vDD, DD_, DD_ + 3, sT2), "cv")
    for i in range(4): p("v_mov_b32 v%d, 0" % (16 + i))
    p("v_lshrrev_b32 v5, 1, v1"); p("v_mul_u32_u24 v5, 4160, v5")
    p("v_and_b32 v6, 1, v1"); p("v_lshl_add_u32 v5, v6, 4, v5"); p("v_add_u32 v5, 4096, v5")
    p("v_add_u32 v6, 16640, v2")
    p("s_cmp_eq_u32 s%d, 0" % sC2)
    p("s_cselect_b32 s76, 0xff, -1")
    p("s_cselect_b64 vcc, -1, 0")
    p("v_cndmask_b32 v5, v6, v5, vcc")
    p("v_add_u32 v5, s%d, v5" % sCB)
    p("s_mov_b32 exec_lo, s76"); p("s_mov_b32 exec_hi, 0")
    p("ds_write_b128 v5, v[16:19]")
    p("s_mov_b64 exec, -1")

def conv_fill(p):
    R = CV_R
    p("v_lshlrev_b32 v2, 4, v1"); p("v_mov_b32 v8, 0")
    p("s_lshl_b32 s77, s%d, 31" % sC2); p("s_mov_b32 s76, 0")
    last = R + 12
    for rg in (last + 7, last + 10, last + 11): p("v_cndmask_b32 v%d, v%d, v8, s[76:77]" % (rg, rg))
    p("s_lshl_b32 s%d, s%d, 11" % (sT1, sC2)); p("s_add_u32 s%d, s%d, s%d" % (sT1, sT1, sCB))
    p("v_add_u32 v5, s%d, v2" % sT1)
    for sg in range(2):
        r0, r1, r2 = R + 12 * sg, R + 12 * sg + 4, R + 12 * sg + 8
        c1, c3 = 40 + 8 * sg, 44 + 8 * sg
        p("ds_write_b128 v5, %s offset:%d" % (vr(r0, 4), sg * 1024))
        for i in range(4): p("v_alignbit_b32 v%d, v%d, v%d, 16" % (c1 + i, r1 + i, r0 + i))
        p("ds_write_b128 v5, %s offset:%d" % (vr(r1, 4), 2 * 4160 + sg * 1024))
        for i in range(4): p("v_alignbit_b32 v%d, v%d, v%d, 16" % (c3 + i, r2 + i, r1 + i))
        p("ds_write_b128 v5, %s offset:%d" % (vr(c1, 4), 4160 + sg * 1024))
        p("ds_write_b128 v5, %s offset:%d" % (vr(c3, 4), 3 * 4160 + sg * 1024))

def conv_main(p, extra_by_class):
    vA, vB = 12, 13
    p("v_and_b32 v6, 15, v1"); p("v_lshrrev_b32 v7, 4, v1")
    p("v_sub_u32 v14, 3, v6"); p("v_and_b32 v14, 3, v14")
    p("v_mul_u32_u24 v15, 4158, v14")
    p("v_lshlrev_b32 v14, 1, v6"); p("v_sub_u32 v15, v15, v14"); p("v_lshl_add_u32 v15, v7, 4, v15")
    p("s_lshl_b32 s%d, s%d, 8" % (sT1, sC2)); p("s_sub_u32 s%d, s%d, s%d" % (sT1, sCB, sT1))
    p("s_add_u32 s%d, s%d, 30" % (sT2, sT1)); p("v_add_u32 v%d, s%d, v15" % (vA, sT2))
    p("v_lshlrev_b32 v15, 5, v6"); p("v_lshl_add_u32 v15, v7, 4, v15")
    p("s_add_u32 s%d, s%d, %d" % (sT2, sT1, 16640 + 32)); p("v_add_u32 v%d, s%d, v15" % (vB, sT2))
    ACC = 64
    p.wait(lg=0)
    p("s_barrier")
    stamp(p, "conv_filled")
    FA, FB = 96, 160
    def reads(rl):
        st = rl & 1; out = []
        for x in range(8):
            oa = 64 * (63 - rl - 8 * x)
            out.append(("ds_read_b64 %s, v%d offset:%d" % (vr(FA + 32 * st + 4 * x, 2), vA, oa), None))
            out.append(("ds_read_b64 %s, v%d offset:%d" % (vr(FA + 32 * st + 4 * x + 2, 2), vA, oa + 8), None))
            out.append(("ds_read_b128 %s, v%d offset:%d" % (vr(FB + 32 * st + 4 * x, 4), vB, 64 * (7 - rl + 8 * x)), None))
        return out
    seen = set()
    def mf(rl):
        st = rl & 1; out = []
        pairs = sorted([(a, b) for a in range(8) for b in range(8) if a + b <= 7], key=lambda ab: (max(ab), ab))
        for a, b in pairs:
            c = vr(ACC + 4 * (a + b), 4)
            first = (a + b) not in seen; seen.add(a + b)
            out.append(("v_mfma_f32_16x16x32_bf16 %s, %s, %s, %s" % (c, vr(FA + 32 * st + 4 * a, 4), vr(FB + 32 * st + 4 * b, 4), "0" if first else c), None))
        return out
    for t in reads(0): p(*t)
    for rl in range(4):
        pre, fill = extra_by_class[rl]
        pre(p)
        nxt = (reads(rl + 1) if rl < 3 else [])
        m = mf(rl)
        ni = fi = 0
        for i, t in enumerate(m):
            p(*t)
            while ni < len(nxt) and ni * 30 < (i + 1) * len(nxt): p(*nxt[ni]); ni += 1
            while fi < len(fill) and fi * 36 < (i + 1) * len(fill): emit(p, [fill[fi]]); fi += 1
    stamp(p, "conv_mma_done")

def conv_finish(p, name):
    ACC = 64
    RB = 256 + 2 * 21248
    p("v_lshlrev_b32 v2, 4, v1")
    p("s_lshl_b32 s%d, s%d, 12" % (sT1, sW))
    p("v_add_u32 v5, s%d, v2" % sT1); p("v_add_u32 v5, %d, v5" % RB)
    p("s_xor_b32 s%d, s%d, 1" % (sT1, sW)); p("s_lshl_b32 s%d, s%d, 12" % (sT1, sT1))
    p("v_add_u32 v14, s%d, v2" % sT1); p("v_add_u32 v14, %d, v14" % RB)
    p("v_lshlrev_b32 v15, 5, v6"); p("v_lshl_add_u32 v15, v7, 3, v15")
    p("s_lshl_b32 s%d, s%d, 11" % (sT1, sC2)); p("s_sub_u32 s%d, s%d, s%d" % (sT2, sCB, sT1))
    p("s_add_u32 s%d, s%d, %d" % (sT2, sT2, 4088 - 1536)); p("v_sub_u32 v16, s%d, v15" % sT2)
    p("s_lshl_b32 s84, s%d, 12" % sCH); p("s_add_u32 s84, s84, s%d" % sT1)
    p("v_lshlrev_b32 v%d, 16, v%d" % (vDD, vDD))
    for q in range(4): p("ds_read_b64 %s, v16 offset:%d" % (vr(36 + 2 * q, 2), (3 - q) * 512))
    st = side_path_begin(p); hist = len(p.out)
    p("s_cmp_eq_u32 s%d, 0" % sC2)
    p("s_cbranch_scc0 %s_hi" % name)
    for variant in range(2):
        keep = ACC + 16 * variant; give = ACC + 16 * (1 - variant)
        if variant == 1:
            p("s_branch %s_cdone" % name)
            p.label("%s_hi" % name)
            side_path_end(p, st)
            p("s_nop 7")
        for q in range(4): p("ds_write_b128 v5, %s offset:%d" % (vr(give + 4 * q, 4), q * 1024))
        for q in range(4):
            a_ = keep + 4 * q; u = 36 + 2 * q
            for c, (src, hf) in enumerate(((u + 1, 1), (u + 1, 0), (u, 1), (u, 0))):
                unpack(p, 44 + (c & 1), src, hf)
                p("v_fmac_f32 v%d, v%d, v%d" % (a_ + c, 44 + (c & 1), vDD))
        p.wait(lg=0)
        p("s_barrier")
        for q in range(4): p("ds_read_b128 %s, v14 offset:%d" % (vr(20 + 4 * q, 4), q * 1024))
        for q in range(4):
            a_ = keep + 4 * q
            for c in range(4): p("v_add_f32 v%d, v%d, v%d" % (a_ + c, a_ + c, 20 + 4 * q + c))
            p("v_cvt_pk_bf16_f32 v%d, v%d, v%d" % (48 + 2 * q, a_, a_ + 1))
            p("v_cvt_pk_bf16_f32 v%d, v%d, v%d" % (49 + 2 * q, a_ + 2, a_ + 3))
    p.label("%s_cdone" % name)
def z_stores(p):
    for q in range(4):
        p("buffer_store_dwordx2 %s, v15, s[%d:%d], s84 offen offset:%d sc1" % (vr(48 + 2 * q, 2), ZT_, ZT_ + 3, q * 512), "zst")
def z_publish(p):
    p("s_lshl_b32 s%d, s%d, 7" % (sT0, sJ)); p("s_lshl_b32 s%d, s%d, 2" % (sT1, sR))
    p("s_add_u32 s%d, s%d, s%d" % (sT0, sT0, sT1)); p("s_add_u32 s%d, s%d, s%d" % (sT0, sT0, sW))
    p("s_lshl_b32 s%d, s%d, 7" % (sT0, sT0)); p("s_add_u32 s%d, s%d, %d" % (sT0, sT0, FL_FZ))
    flag_store(p, sT0)

HF2_, W2_, Q2_, ZT2_, ST2_, B2_, OUT_ = 40, 68, 48, 52, 56, 64, 44
vH0, vH1, vD0, vD1 = 244, 245, 246, 247
vFH, vFHA = 248, 249
vTRA = 250
sWS = 75
NS = 28
STASH0 = 0
HB = 128
def g2_setup(p):
    srd(p, W2_, P_W2, F * D * 2)
    p("s_lshl_b32 s%d, s%d, 8" % (sTok, sJ))
    p("s_lshr_b32 s%d, s%d, 3" % (sT0, sR)); p("s_lshl_b32 s%d, s%d, 6" % (sT0, sT0))
    p("s_add_u32 s%d, s%d, s%d" % (sTok, sTok, sT0))
    p("s_and_b32 s%d, s%d, 7" % (sCh, sR)); p("s_lshl_b32 s%d, s%d, 6" % (sCh, sCh))
    p("s_lshr_b32 s%d, s%d, 5" % (sT0, sTok)); p("s_mul_i32 s%d, s%d, 112" % (sT0, sT0))
    p("s_mul_i32 s%d, s%d, 28" % (sT1, sW))
    p("s_add_u32 s%d, s%d, s%d" % (sT0, sT0, sT1)); p("s_lshl_b32 s%d, s%d, 10" % (sHo, sT0))
    p("s_lshl_b32 s%d, s%d, 14" % (sWA, sT1)); p("s_lshl_b32 s%d, s%d, 1" % (sT0, sCh))
    p("s_add_u32 s%d, s%d, s%d" % (sWA, sWA, sT0))
    p("s_mul_i32 s%d, s%d, %d" % (sM2, sW, RING)); p("s_add_u32 s%d, s%d, %d" % (sM2, sM2, RING0))
    p("v_lshlrev_b32 v%d, 4, v1" % vH0)
    p("v_add_u32 v%d, %d, v%d" % (vH1, 112 * 1024, vH0))
    p("v_lshrrev_b32 v10, 3, v1"); p("v_and_b32 v11, 7, v1")
    p("v_lshrrev_b32 v12, 1, v10"); p("v_and_b32 v12, 1, v12"); p("v_lshlrev_b32 v12, 2, v12")
    p("v_xor_b32 v12, v12, v11"); p("v_lshlrev_b32 v12, 4, v12")
    p("v_lshl_add_u32 v%d, v10, 10, v12" % vD0)
    p("v_add_u32 v%d, 8192, v%d" % (vD1, vD0))
    p("v_and_b32 v10, 15, v1"); p("v_lshrrev_b32 v11, 4, v1"); p("v_lshrrev_b32 v12, 1, v11"); p("v_and_b32 v11, 1, v11")
    p("v_lshrrev_b32 v13, 2, v10"); p("v_lshl_add_u32 v12, v12, 2, v13"); p("v_lshlrev_b32 v12, 7, v12")
    p("v_and_b32 v14, 3, v10"); p("v_lshrrev_b32 v15, 1, v14"); p("v_lshl_add_u32 v12, v15, 3, v12")
    p("v_and_b32 v14, 1, v14"); p("v_lshl_add_u32 v14, v14, 1, v11")
    p("v_lshrrev_b32 v15, 3, v10"); p("v_lshlrev_b32 v15, 2, v15")
    p("v_add_u32 v12, s%d, v12" % sM2)
    for cb in range(2):
        p("v_add_u32 v13, %d, v14" % (4 * cb)); p("v_xor_b32 v13, v13, v15")
        p("v_lshl_add_u32 v%d, v13, 4, v12" % (vTRA + cb))
def w2_dma(step, slot):
    tag = "w%d" % step
    return [[("s_add_u32 s%d, s%d, %d" % (sWS, sWA, step * 16384), None),
             ("s_add_u32 m0, s%d, %d" % (sM2, slot * 2048), None),
             ("buffer_load_dwordx4 v%d, s[%d:%d], s%d offen lds" % (vD0, W2_, W2_ + 3, sWS), tag)],
            [("s_add_u32 s%d, s%d, %d" % (sWS, sWA, step * 16384), None),
             ("s_add_u32 m0, s%d, %d" % (sM2, slot * 2048 + 1024), None),
             ("buffer_load_dwordx4 v%d, s[%d:%d], s%d offen lds" % (vD1, W2_, W2_ + 3, sWS), tag)]]
def tr_reads(slot, dst, kind):
    out = []
    for cb in range(2):
        for rr in range(2):
            out.append(("ds_read_b64_tr_b16 %s, v%d offset:%d" % (vr(dst + 4 * cb + 2 * rr, 2, kind), vTRA + cb, slot * 2048 + rr * 1024), None))
    return out
def stash_reads(step, slot): return tr_reads(slot, STASH0 + 8 * (step - 12), 'a')
def h_loads(s):
    slot = s % OPT["depth_h"]
    return [("buffer_load_dwordx4 %s, v%d, s[%d:%d], s%d offen sc1" % (ar(HB + 8 * slot, 4), vH0, HF2_, HF2_ + 3, sHo), "h%d" % s),
            ("buffer_load_dwordx4 %s, v%d, s[%d:%d], s%d offen sc1" % (ar(HB + 8 * slot + 4, 4), vH1, HF2_, HF2_ + 3, sHo), "h%d" % s),
            ("s_add_u32 s%d, s%d, 1024" % (sHo, sHo), None)]
def fh_poll_issue(p):
    p("v_min_u32 v%d, 6, v1" % vFHA); p("v_lshlrev_b32 v%d, 7, v%d" % (vFHA, vFHA))
    p("s_lshr_b32 s83, s%d, 6" % sTok); p("s_mul_i32 s83, s83, 28"); p("s_mul_i32 s%d, s%d, 7" % (sT0, sW)); p("s_add_u32 s83, s83, s%d" % sT0)
    p("s_lshl_b32 s83, s83, 7"); p("s_add_u32 s83, s83, %d" % FL_FH)
    poll_issue(p, vFH, vFHA, 83, "fh")
def g2_h_start(p):
    DH = OPT["depth_h"]
    srd(p, HF2_, P_WS, SZ_HF, WS_HF)
    p.wait_tag("fh")
    poll_check(p, [vFH], [vFHA], [83])
    stamp(p, "g2_h_ready")
    for s in range(DH):
        for t in h_loads(s): p(*t)
    if OPT["htouch"]:
        n = (NS - DH) * 16 // 8
        p("s_and_b32 s%d, s%d, 7" % (sT0, sR)); p("s_mul_i32 s%d, s%d, %d" % (sT0, sT0, n))
        p("v_add_u32 v10, s%d, v1" % sT0)
        p("v_lshrrev_b32 v11, 4, v10"); p("v_and_b32 v12, 7, v10"); p("v_lshlrev_b32 v12, 7, v12")
        p("v_lshl_add_u32 v12, v11, 10, v12")
        p("v_bfe_u32 v11, v10, 3, 1"); p("v_mul_u32_u24 v11, %d, v11" % (112 * 1024)); p("v_add_u32 v12, v12, v11")
        if n > 32: p("s_mov_b32 exec_hi, 0x%x" % ((1 << (n - 32)) - 1))
        else: p("s_mov_b64 exec, 0x%x" % ((1 << n) - 1))
        p("buffer_load_dword v60, v12, s[%d:%d], s%d offen sc1" % (HF2_, HF2_ + 3, sHo), "touch3")
        p("s_mov_b64 exec, -1")

vST2, vB2 = 16, 20
def g2_main(p):
    DH = OPT["depth_h"]
    srd(p, Q2_, P_Q, S * D * 2)
    srd(p, ZT2_, P_WS, SZ_ZT, WS_ZT); srd(p, ST2_, P_WS, SZ_ST, WS_ST); srd(p, B2_, P_B2, D * 2); srd(p, OUT_, P_OUT, S * D * 2)
    p.wait(lg=0)
    p("s_barrier")
    ACC = 64; FR = 32
    def ep_loads(p):
        p("v_lshrrev_b32 v10, 3, v1"); p("v_and_b32 v11, 7, v1"); p("v_lshrrev_b32 v12, 1, v10")
        for ii in range(2):
            p("v_add_u32 v13, %d, v12" % (4 * ii)); p("v_xor_b32 v13, v13, v11")
            p("v_lshlrev_b32 v13, 4, v13"); p("v_lshl_add_u32 v%d, v10, 10, v13" % (6 + ii))
        p("s_lshl_b32 s%d, s%d, 4" % (sT0, sW)); p("s_add_u32 s%d, s%d, s%d" % (sT0, sT0, sTok))
        p("s_lshl_b32 s%d, s%d, 10" % (sT0, sT0)); p("s_lshl_b32 s%d, s%d, 1" % (sT1, sCh))
        p("s_add_u32 s%d, s%d, s%d" % (sXO, sT0, sT1))
        p("s_lshl_b32 s%d, s%d, 11" % (sT2, sW))
        for ii in range(2):
            p("s_add_u32 m0, s%d, %d" % (sT2, XT + ii * 1024)); p("s_add_u32 s%d, s%d, %d" % (sT0, sXO, ii * 8192))
            p("buffer_load_dwordx4 v%d, s[%d:%d], s%d offen lds" % (6 + ii, Q2_, Q2_ + 3, sT0), "ep")
        p("s_lshr_b32 s%d, s%d, 1" % (sT0, sW)); p("s_lshl_b32 s%d, s%d, 5" % (sT0, sT0))
        p("s_add_u32 s%d, s%d, s%d" % (sT0, sT0, sTok)); p("s_lshl_b32 s%d, s%d, 4" % (sT0, sT0))
        p("v_and_b32 v13, 31, v1"); p("v_lshlrev_b32 v13, 4, v13")
        p("buffer_load_dwordx4 %s, v13, s[%d:%d], s%d offen sc1" % (vr(vST2, 4), ST2_, ST2_ + 3, sT0), "ep")
        p("s_and_b32 s%d, s%d, 1" % (sT0, sW)); p("s_lshl_b32 s%d, s%d, 5" % (sT0, sT0))
        p("s_add_u32 s%d, s%d, s%d" % (sT0, sT0, sCh)); p("s_lshl_b32 s%d, s%d, 1" % (sT0, sT0))
        p("v_lshrrev_b32 v13, 5, v1"); p("v_lshlrev_b32 v13, 5, v13")
        p("buffer_load_dwordx4 %s, v13, s[%d:%d], s%d offen" % (vr(vB2, 4), B2_, B2_ + 3, sT0), "ep")
        p("buffer_load_dwordx4 %s, v13, s[%d:%d], s%d offen offset:16" % (vr(vB2 + 4, 4), B2_, B2_ + 3, sT0), "ep")
    def reads(s): return [t for t, _ in tr_reads(s, FR + 8 * (s & 1), 'v')]
    def mfmas(s):
        slot = s % DH; out = []
        for cb in range(2):
            A = vr(FR + 8 * (s & 1) + 4 * cb, 4) if s < 12 else ar(STASH0 + 8 * (s - 12) + 4 * cb, 4)
            for tb in range(2):
                a = vr(ACC + 16 * (2 * tb + cb), 16)
                out.append("v_mfma_f32_32x32x16_bf16 %s, %s, %s, %s" % (a, A, ar(HB + 8 * slot + 4 * tb, 4), "0" if s == 0 else a))
        return out
    vFZ = 56
    p.wait_tag("w0")
    for t in reads(0): p(t)
    extras = {2: rec(ep_loads)}
    for s in range(NS):
        if s + 1 < 12:
            p.wait_tag("w%d" % (s + 1))
            for t in reads(s + 1): p(t)
        if s in (0, 7, 13, 20): stamp(p, "g2_s%d" % s)
        mf = mfmas(s)
        hl = h_loads(s + DH) if s + DH < NS else []
        ex = extras.get(s, [])
        q4 = (len(ex) + 3) // 4
        for i in range(4):
            p(mf[i])
            emit(p, ex[i * q4:(i + 1) * q4])
            if i == 2:
                for t in hl[0:1]: p(*t)
            if i == 3:
                for t in hl[1:3]: p(*t)
        if s == DH:
            p.wait_tag("zst")
            z_publish(p)
        if s == 13:
            p("v_min_u32 v%d, 31, v1" % (vFZ + 2)); p("v_lshlrev_b32 v%d, 7, v%d" % (vFZ + 2, vFZ + 2))
            p("s_lshr_b32 s84, s%d, 6" % sCh); p("s_lshl_b32 s84, s84, 2"); p("s_add_u32 s84, s84, s%d" % sW)
            p("s_lshl_b32 s84, s84, 12"); p("s_add_u32 s84, s84, %d" % FL_FZ)
            poll_issue(p, vFZ, vFZ + 2, 84, "fz")
        if s == 21:
            p.wait_tag("fz")
            poll_check(p, [vFZ], [vFZ + 2], [84])
            p("v_lshrrev_b32 v10, 3, v1"); p("v_and_b32 v11, 7, v1")
            p("v_lshlrev_b32 v12, 4, v11"); p("v_lshl_add_u32 v8, v10, 12, v12")
            p("s_lshl_b32 s%d, s%d, 4" % (sT0, sW)); p("s_add_u32 s%d, s%d, s%d" % (sT0, sT0, sCh))
            p("s_lshl_b32 s%d, s%d, 12" % (sT0, sT0)); p("s_lshl_b32 s%d, s%d, 1" % (sT1, sTok))
            p("s_add_u32 s%d, s%d, s%d" % (sT0, sT0, sT1))
            p("buffer_load_dwordx4 %s, v8, s[%d:%d], s%d offen sc1" % (vr(128, 4), ZT2_, ZT2_ + 3, sT0), "z")
            p("s_add_u32 s%d, s%d, %d" % (sT0, sT0, 8 * 4096))
            p("buffer_load_dwordx4 %s, v8, s[%d:%d], s%d offen sc1" % (vr(132, 4), ZT2_, ZT2_ + 3, sT0), "z")
    stamp(p, "g2_mma_done")

def g2_epilogue(p, name):
    ACC = 64; OWN = 176
    p("v_lshrrev_b32 v10, 3, v1"); p("v_and_b32 v11, 7, v1")
    p("v_lshrrev_b32 v12, 1, v10"); p("v_and_b32 v12, 1, v12"); p("v_lshlrev_b32 v12, 2, v12")
    p("v_xor_b32 v12, v12, v11"); p("v_lshlrev_b32 v12, 4, v12"); p("v_lshl_add_u32 v12, v10, 7, v12")
    p("s_lshl_b32 s%d, s%d, 11" % (sT2, sW)); p("s_add_u32 s%d, s%d, %d" % (sT2, sT2, ZTT))
    p("v_add_u32 v12, s%d, v12" % sT2)
    p("ds_write_b128 v12, %s" % vr(128, 4)); p("ds_write_b128 v12, %s offset:1024" % vr(132, 4))
    st = side_path_begin(p)
    for w in range(4):
        if w < 3:
            p("s_cmp_eq_u32 s%d, %d" % (sW, w))
            p("s_cbranch_scc0 %s_rw%d" % (name, w + 1))
        side_path_end(p, st)
        p("s_nop 7"); p("s_nop 3")
        for rel in range(1, 4):
            q = w ^ rel
            for rq in range(4):
                p("ds_write_b128 v%d, %s offset:%d" % (vH0, vr(ACC + 16 * q + 4 * rq, 4), RED + q * 12288 + (rel - 1) * 4096 + rq * 1024))
        for i in range(16): p("v_mov_b32 v%d, v%d" % (OWN + i, ACC + 16 * w + i))
        if w < 3:
            p("s_branch %s_rwd" % name)
            p.label("%s_rw%d" % (name, w + 1))
    p.label("%s_rwd" % name)
    XR_, ZR = 128, 136
    p("v_and_b32 v11, 31, v1"); p("v_lshrrev_b32 v12, 5, v1")
    p("s_lshr_b32 s%d, s%d, 1" % (sT0, sW)); p("s_lshl_b32 s%d, s%d, 5" % (sT0, sT0))
    p("v_add_u32 v11, s%d, v11" % sT0)
    p("v_lshrrev_b32 v13, 1, v11"); p("v_and_b32 v13, 7, v13")
    p("s_and_b32 s%d, s%d, 1" % (sT1, sW)); p("s_lshl_b32 s%d, s%d, 2" % (sT1, sT1))
    p("v_lshlrev_b32 v12, 1, v12"); p("v_add_u32 v12, s%d, v12" % sT1)
    p("v_lshlrev_b32 v11, 7, v11")
    p("v_xor_b32 v14, v12, v13"); p("v_lshl_add_u32 v14, v14, 4, v11")
    p("v_add_u32 v12, 1, v12"); p("v_xor_b32 v15, v12, v13"); p("v_lshl_add_u32 v15, v15, 4, v11")
    p("v_add_u32 v6, %d, v14" % XT); p("v_add_u32 v7, %d, v15" % XT)
    p("v_and_b32 v10, 15, v1"); p("v_lshrrev_b32 v11, 4, v1"); p("v_lshrrev_b32 v12, 1, v11"); p("v_and_b32 v11, 1, v11")
    p("v_lshrrev_b32 v13, 2, v10"); p("v_lshl_add_u32 v12, v12, 4, v13")
    p("s_and_b32 s%d, s%d, 1" % (sT1, sW)); p("s_lshl_b32 s%d, s%d, 5" % (sT1, sT1))
    p("v_add_u32 v12, s%d, v12" % sT1); p("v_lshlrev_b32 v12, 7, v12")
    p("v_and_b32 v13, 1, v10"); p("v_lshl_add_u32 v12, v13, 3, v12")
    p("v_and_b32 v13, 3, v10"); p("v_lshrrev_b32 v13, 1, v13"); p("v_lshl_add_u32 v13, v11, 1, v13")
    p("s_lshr_b32 s%d, s%d, 1" % (sT1, sW)); p("s_lshl_b32 s%d, s%d, 2" % (sT1, sT1))
    p("v_add_u32 v13, s%d, v13" % sT1)
    p("v_lshrrev_b32 v8, 3, v10"); p("v_lshlrev_b32 v8, 2, v8"); p("v_xor_b32 v13, v13, v8")
    p("v_lshl_add_u32 v12, v13, 4, v12"); p("v_add_u32 v12, %d, v12" % ZTT)
    p("s_mul_i32 s%d, s%d, 12288" % (sT0, sW)); p("v_add_u32 v10, s%d, v%d" % (sT0, vH0))
    mu, rs = vST2, vST2 + 1
    p.wait_tag("ep")
    p("v_mul_f32 v%d, v%d, v%d" % (mu, mu, rs))
    p.wait(lg=0)
    p("s_barrier")
    stamp(p, "g2_red_bar")
    p("ds_read_b128 %s, v6" % vr(XR_, 4)); p("ds_read_b128 %s, v7" % vr(XR_ + 4, 4))
    for m in range(4): p("ds_read_b64_tr_b16 %s, v12 offset:%d" % (vr(ZR + 2 * m, 2), m * 512))
    for sl in range(3):
        for rq in range(4):
            p("ds_read_b128 %s, v10 offset:%d" % (vr(ACC + 16 * sl + 4 * rq, 4), RED + sl * 4096 + rq * 1024))
    Y = 144
    for r_ in range(16):
        x, z, b = 30 + 3 * (r_ & 1), 31 + 3 * (r_ & 1), 32 + 3 * (r_ & 1)
        unpack(p, x, XR_ + (r_ >> 1), r_ & 1); unpack(p, z, ZR + (r_ >> 1), r_ & 1); unpack(p, b, vB2 + (r_ >> 1), r_ & 1)
        p("v_fma_f32 v%d, v%d, v%d, -v%d" % (Y + r_, x, rs, mu))
        p("v_add_f32 v%d, v%d, v%d" % (b, b, x))
        p("v_add_f32 v%d, v%d, v%d" % (b, b, OWN + r_))
        p("v_fma_f32 v%d, v%d, v%d, v%d" % (Y + r_, Y + r_, z, b))
    PK = 160
    for r_ in range(16):
        p("v_add_f32 v%d, v%d, v%d" % (ACC + r_, ACC + r_, ACC + 16 + r_))
        p("v_add_f32 v%d, v%d, v%d" % (Y + r_, Y + r_, ACC + 32 + r_))
        p("v_add_f32 v%d, v%d, v%d" % (Y + r_, Y + r_, ACC + r_))
        if r_ & 1: p("v_cvt_pk_bf16_f32 v%d, v%d, v%d" % (PK + (r_ >> 1), Y + r_ - 1, Y + r_))
    p("ds_write_b128 v6, %s" % vr(PK, 4)); p("ds_write_b128 v7, %s" % vr(PK + 4, 4))
    p("v_lshrrev_b32 v10, 3, v1"); p("v_and_b32 v11, 7, v1"); p("v_lshrrev_b32 v12, 1, v10")
    for ii in range(2):
        p("v_add_u32 v13, %d, v12" % (4 * ii)); p("v_xor_b32 v13, v13, v11")
        p("v_lshlrev_b32 v13, 4, v13"); p("v_lshl_add_u32 v%d, v10, 10, v13" % (8 + ii))
    p("v_add_u32 v9, 8192, v9")
    p("s_lshl_b32 s%d, s%d, 11" % (sT2, sW))
    p("v_add_u32 v10, s%d, v%d" % (sT2, vH0)); p("v_add_u32 v10, %d, v10" % XT)
    p.wait(lg=0)
    p("s_barrier")
    p("ds_read_b128 v[16:19], v10"); p("ds_read_b128 v[20:23], v10 offset:1024")
    p("buffer_store_dwordx4 v[16:19], v8, s[%d:%d], s%d offen" % (OUT_, OUT_ + 3, sXO))
    p("buffer_store_dwordx4 v[20:23], v9, s[%d:%d], s%d offen" % (OUT_, OUT_ + 3, sXO))

def flat(l): return [x for y in l for x in y]
def gen(name):
    p = Prog()
    prof_reset()
    p("s_cmp_ge_u32 s2, 256")
    p("s_cbranch_scc1 %s_end" % name)
    stamp(p, "rt0", True); stamp(p, "t0")
    p("s_memrealtime s[90:91]")
    load_kernargs(p)
    p("v_and_b32 v1, 63, v0"); p("v_lshrrev_b32 v2, 6, v0")
    p("s_and_b32 s%d, s2, 7" % sJ); p("s_lshr_b32 s%d, s2, 3" % sR)
    p("v_readfirstlane_b32 s%d, v2" % sW)
    p("v_mov_b32 v253, 0")
    p("s_waitcnt lgkmcnt(0)")
    srd(p, 92, P_DBG, 256)
    p("s_lshl_b32 s%d, s2, 2" % sT0); p("s_add_u32 s78, s%d, s%d" % (sT0, sW))
    p("s_cmp_eq_u32 s78, %d" % (255 * 4))
    p("s_cbranch_scc0 %s_n0" % name)
    st = side_path_begin(p)
    p("v_mov_b32 v250, s90"); p("v_mov_b32 v251, 1")
    p("s_mov_b64 exec, 1")
    p("buffer_store_dwordx2 v[250:251], v253, s[92:95], 0 offen sc1")
    p("s_mov_b64 exec, -1")
    side_path_end(p, st)
    p.label("%s_n0" % name)
    stamp(p, "karg")
    p_loads(p)
    tile_indices(p)
    touches_g1(p)
    after_loads = side_path_begin(p)
    p("s_cmp_ge_u32 s%d, 28" % sR)
    p("s_cbranch_scc1 %s_spare" % name)
    g1_dma_setup(p)
    for s_ in range(3):
        for u in g1_dma_stage(s_): emit(p, u)
    stamp(p, "issued")
    def common_srds(p):
        srd(p, FL_, P_WS, SZ_FLAG, WS_FLAG); srd(p, KVT_, P_WS, SZ_KVT, WS_KVT); srd(p, ST_, P_WS, SZ_ST, WS_ST); srd(p, CSP_, P_WS, SZ_CSP, WS_CSP)
    common_srds(p)
    srd(p, B1_, P_B1, F * 2)
    g1_lds_setup(p)
    kv_compute(p)
    stamp(p, "kv_done")
    none = lambda p: None
    lg0 = lambda p: p.wait(lg=0)
    def pre4(p):
        nonce_check(p); fk_publish(p, "g1")
    def b1_load(p):
        p("v_and_b32 v14, 127, v0"); p("v_lshlrev_b32 v14, 1, v14"); p("s_lshl_b32 s84, s%d, 8" % sFT)
        p("buffer_load_ushort v%d, v14, s[%d:%d], s84 offen" % (vB1, B1_, B1_ + 3), "tab")
    def pre7(p):
        p.wait_tag("tab"); tab_check(p); tab_partial(p)
        fk_check_w0(p)
    def fk_issue(p):
        fk_addr(p); poll_issue(p, vPK, vPA, 85, "tab")
    def fk_check_w0(p):
        p("s_cmp_eq_u32 s%d, 0" % sW)
        p("s_cbranch_scc0 %s_nofkp" % name)
        st = side_path_begin(p)
        poll_check(p, [vPK], [vPA], [85])
        side_path_end(p, st)
        p.label("%s_nofkp" % name)
    fill = {0: (lg0, none, rec(kv_stores) + rec(nonce_issue)),
            1: (none, none, []),
            2: (none, none, []),
            3: (none, none, []),
            4: (lambda p: p.wait_tag("nonce"), pre4, []),
            5: (none, none, rec(tab_loads) + rec(b1_load) + rec(fk_issue)),
            6: (none, none, rec(touch_late)),
            7: (none, pre7, [])}
    g1_main(p, fill)
    stamp(p, "g1_mfma_end")
    p("v_and_b32 v10, 127, v0"); p("v_lshlrev_b32 v10, 2, v10"); p("v_add_u32 v11, %d, v10" % CSQ_LDS); p("v_add_u32 v10, %d, v10" % TAB_LDS)
    g2_setup(p)
    p.wait(lg=0)
    p("s_barrier")
    p("v_and_b32 v10, 127, v0"); p("v_lshlrev_b32 v10, 2, v10"); p("v_add_u32 v11, %d, v10" % CSQ_LDS); p("v_add_u32 v10, %d, v10" % TAB_LDS)
    for i in range(4): p("ds_read_b32 v%d, v11 offset:%d" % (20 + i, i * 512))
    p("v_lshlrev_b32 v%d, 16, v%d" % (vB1, vB1))
    p("v_add_f32 v20, v20, v21"); p("v_add_f32 v22, v22, v23"); p("v_add_f32 v20, v20, v22")
    p("ds_write_b32 v10, v20"); p("ds_write_b32 v10, v%d offset:512" % vB1)
    p.wait(lg=0)
    p("s_barrier")
    conv_loads(p)
    stamp(p, "g1_mma_done")
    roundA = flat([w2_dma(12 + i, i) for i in range(12)])
    g1_epilogue(p, roundA)
    p.wait_tag("cv")
    p.label("%s_cfill" % name)
    stamp(p, "g1_epi_done")
    conv_fill(p)
    def c0(p): p.wait_tag("w17")
    def c1(p):
        p.wait_tag("hst"); p.wait_tag("w23")
        p("s_cmp_ge_u32 s%d, 28" % sR)
        p("s_cbranch_scc1 %s_nohp" % name)
        st = side_path_begin(p)
        h_publish(p)
        side_path_end(p, st)
        p.label("%s_nohp" % name)
        p.wait(lg=0)
        stamp(p, "h_pub")
    def c2(p): p.wait(lg=0)
    def c3(p): p.wait(lg=0); p.wait_tag("w27")
    f0 = flat([stash_reads(12 + i, i) for i in range(6)])
    f1 = interleave(flat([stash_reads(18 + i, 6 + i) for i in range(6)]), flat([w2_dma(24 + i, i) for i in range(4)] + [w2_dma(4 + i, 4 + i) for i in range(2)]), 0.5)
    f2 = flat([w2_dma(6 + i, 6 + i) for i in range(6)])
    f3 = flat([stash_reads(24 + i, i) for i in range(4)])
    conv_main(p, [(c0, f0), (c1, f1), (c2, f2), (c3, f3)])
    p.wait(lg=0)
    for u in flat([w2_dma(i, i) for i in range(4)]): emit(p, u)
    conv_finish(p, name)
    stamp(p, "conv_done")
    fh_poll_issue(p)
    g2_h_start(p)
    z_stores(p)
    g2_main(p)
    g2_epilogue(p, name)
    stamp(p, "end")
    if common.PROF: p.wait(vm=0)
    stamp(p, "end_acked"); stamp(p, "rt1", True)
    prof_flush(p, sW)
    p("s_endpgm")
    p.label("%s_spare" % name)
    side_path_end(p, after_loads)
    sp_loads(p)
    common_srds(p)
    nonce_issue(p)
    sp_stats(p)
    sp_cs(p)
    p.wait_tag("nonce"); nonce_check(p)
    sp_stats_store(p)
    p.wait(lg=0)
    p("s_barrier")
    sp_cs_store(p)
    kv_compute(p)
    p.wait(lg=0)
    p("s_barrier")
    kv_stores(p)
    p.wait_tag("kst")
    p("s_barrier")
    fk_publish(p, "sp")
    touch_late(p)
    g2_setup(p)
    for u in roundA: emit(p, u)
    fk_addr(p, True)
    poll_issue(p, vPK, vPA, 85, "poll")
    p.wait(vm=0, lg=0)
    poll_check(p, [vPK], [vPA], [85])
    conv_loads(p)
    p.wait(vm=0)
    p("s_branch %s_cfill" % name)
    p.label("%s_end" % name)
    p("s_endpgm")
    return p.text(), 512, 256
```

```python
from common import *
import common
from fused import (sN, sJ, sR, sW, sT0, sT1, sT2, sT3, FL_, unpack, flag_store, poll_issue, poll_check,
                   side_path_begin, side_path_end, nonce_issue, nonce_check, _uid)
OPT = dict(touch=0, htouch=0, nt=0, ntkv=0, depth_h=8, w2touch=1)
def nt(): return " nt" if OPT["nt"] else ""
def ntkv(): return " nt" if (OPT["nt"] or OPT["ntkv"]) else ""

class Rec:
    def __init__(self): self.items = []; self.grp = None
    def __call__(self, txt, tag=None): (self.grp if self.grp is not None else self.items).append((txt, tag))
    def call(self, fn): (self.grp if self.grp is not None else self.items).append((fn, None))
    def wait(self, vm=None, lg=None): self.call(lambda p: p.wait(vm, lg))
    def wait_tag(self, tag): self.call(lambda p: p.wait_tag(tag))
    def begin(self): self.grp = []
    def end(self): self.items.append(self.grp); self.grp = None
def begin(p):
    if isinstance(p, Rec): p.begin()
def end(p):
    if isinstance(p, Rec): p.end()
def emit(p, items):
    for it in items:
        if isinstance(it, list): emit(p, it)
        elif callable(it[0]): it[0](p)
        else: p(it[0], it[1])
_srd0 = srd
def srd(p, dst, ptr, size, off=0):
    begin(p); _srd0(p, dst, ptr, size, off); end(p)
def rec(fn, *a):
    r = Rec(); fn(r, *a); return r.items

P_LDS, SK_LDS = 131072, 139264
TAB_LDS, CSQ_LDS = 157440, 158464
CV0 = 98304
RB_LDS = CV0 + 256 + 2 * 21248
XT, ZTT, RED = 98304, 106496, 114688
sROW, sRB, sFT = 72, 73, 74
sXo, sWo, sM = 80, 81, 82
sCH, sC2, sCB = 86, 87, 88
sTok, sCh, sHo = 89, 90, 91
sWA, sM2, sXO = 16, 17, 6
K_, V_, SK_, GQ_, GW1_ = 40, 44, 48, 52, 56
KVT_, ST_, CSP_ = 60, 64, 68

KR, VR, SKR, XR, CR = 16, 36, 44, 128, 136
vC, vRR = 3, 4
def p_loads(p):
    srd(p, K_, P_K, S * D * 2); srd(p, V_, P_V, S * D * 2); srd(p, SK_, P_SK, D * 8)
    vA = 5
    p("s_lshl_b32 s%d, s%d, 9" % (sT1, sJ))
    p("v_and_b32 v11, 31, v1"); p("v_lshlrev_b32 v11, 4, v11")
    p("buffer_load_dwordx4 %s, v11, s[%d:%d], s%d offen" % (vr(SKR, 4), SK_, SK_ + 3, sT1))
    p("v_and_b32 v%d, 7, v1" % vC); p("v_lshrrev_b32 v%d, 3, v1" % vRR)
    p("s_lshl_b32 s%d, s%d, 6" % (sT0, sR)); p("s_lshl_b32 s%d, s%d, 4" % (sT1, sW))
    p("s_add_u32 s%d, s%d, s%d" % (sT0, sT0, sT1)); p("s_lshl_b32 s%d, s%d, 10" % (sT0, sT0))
    p("s_lshl_b32 s%d, s%d, 7" % (sT1, sJ)); p("s_add_u32 s%d, s%d, s%d" % (sT0, sT0, sT1))
    p("v_lshlrev_b32 v%d, 11, v%d" % (vA, vRR)); p("v_lshl_add_u32 v%d, v%d, 4, v%d" % (vA, vC, vA))
    p("v_add_u32 v%d, s%d, v%d" % (vA, sT0, vA))
    for i in range(5): p("v_add_u32 v%d, %d, v%d" % (6 + i, (i - 3) * 1024, vA))
    for i in range(5): p("buffer_load_dwordx4 %s, v%d, s[%d:%d], 0 offen%s" % (vr(KR + 4 * i, 4), 6 + i, K_, K_ + 3, ntkv()))
    p("buffer_load_dwordx4 %s, v%d, s[%d:%d], 0 offen%s" % (vr(VR, 4), vA, V_, V_ + 3, ntkv()))
    p("buffer_load_dwordx4 %s, v%d, s[%d:%d], 0 offen offset:1024%s" % (vr(VR + 4, 4), vA, V_, V_ + 3, ntkv()))
def tile_indices(p):
    srd(p, GQ_, P_Q, S * D * 2); srd(p, GW1_, P_W1, D * F * 2)
    p("s_mul_i32 s%d, s%d, 37" % (sT0, sR)); p("s_lshr_b32 s%d, s%d, 8" % (sT0, sT0))
    p("s_mul_i32 s%d, s%d, 7" % (sT1, sT0)); p("s_sub_u32 s%d, s%d, s%d" % (sT1, sR, sT1))
    p("s_lshr_b32 s%d, s%d, 1" % (sT2, sJ)); p("s_lshl_b32 s%d, s%d, 2" % (sT2, sT2))
    p("s_add_u32 s%d, s%d, s%d" % (sRB, sT2, sT0))
    p("s_and_b32 s%d, s%d, 1" % (sT2, sJ)); p("s_mul_i32 s%d, s%d, 7" % (sT2, sT2))
    p("s_add_u32 s%d, s%d, s%d" % (sFT, sT2, sT1))

def touches_g1(p):
    if not OPT["touch"]: return
    p("s_lshl_b32 s%d, s%d, 2" % (sT2, sR)); p("s_add_u32 s%d, s%d, s%d" % (sT2, sT2, sW))
    p("v_lshlrev_b32 v9, 7, v1")
    p("s_lshr_b32 s%d, s%d, 1" % (sT0, sJ)); p("s_lshl_b32 s%d, s%d, 19" % (sT0, sT0))
    p("s_lshl_b32 s%d, s%d, 12" % (sT1, sT2)); p("s_add_u32 s%d, s%d, s%d" % (sT0, sT0, sT1))
    p("s_mov_b32 exec_hi, 0")
    p("buffer_load_dword v188, v9, s[%d:%d], s%d offen%s" % (GQ_, GQ_ + 3, sT0, nt()), "touch")
    p("s_mov_b64 exec, -1")
    p("v_mul_u32_u24 v10, 4682, v1"); p("v_lshrrev_b32 v10, 16, v10")
    p("v_mul_u32_u24 v11, 14, v10"); p("v_sub_u32 v11, v1, v11")
    p("v_mul_u32_u24 v10, 3584, v10"); p("v_lshl_add_u32 v10, v11, 7, v10")
    p("s_mul_i32 s%d, s%d, %d" % (sT0, sT2, 4 * 3584)); p("s_and_b32 s%d, s%d, 1" % (sT1, sJ))
    p("s_mul_i32 s%d, s%d, 1792" % (sT1, sT1)); p("s_add_u32 s%d, s%d, s%d" % (sT0, sT0, sT1))
    p("s_mov_b32 exec_hi, 0x00ffffff")
    p("buffer_load_dword v189, v10, s[%d:%d], s%d offen%s" % (GW1_, GW1_ + 3, sT0, nt()), "touch")
    p("s_mov_b64 exec, -1")

def w2_touch(p):
    p("v_lshlrev_b32 v9, 7, v1")
    p("s_lshl_b32 s83, s%d, 2" % sR); p("s_add_u32 s83, s83, s%d" % sW); p("s_mul_i32 s83, s83, 14336")
    p("buffer_load_dword v190, v9, s[8:11], s83 offen", "touch2")
    p("s_add_u32 s83, s83, 8192")
    begin(p)
    p("s_mov_b32 exec_hi, 0xffff")
    p("buffer_load_dword v191, v9, s[8:11], s83 offen", "touch2")
    p("s_mov_b64 exec, -1")
    end(p)

vKL, vKG0, vKG1 = 24, 25, 26
def kv_compute(p):
    RES, A = 100, 108
    p("s_lshl_b32 s%d, s%d, 9" % (sT0, sW)); p("s_add_u32 s%d, s%d, %d" % (sT0, sT0, SK_LDS))
    p("v_and_b32 v11, 31, v1"); p("v_lshlrev_b32 v11, 4, v11"); p("v_add_u32 v11, s%d, v11" % sT0)
    p("v_lshlrev_b32 v2, 6, v%d" % vC); p("v_add_u32 v2, s%d, v2" % sT0)
    p("ds_write_b128 v11, %s" % vr(SKR, 4))
    p("s_lshl_b32 s%d, s%d, 3" % (sT0, sW)); p("s_sub_u32 s%d, 31, s%d" % (sT0, sT0))
    p("v_sub_u32 v15, s%d, v%d" % (sT0, vRR))
    p("v_lshrrev_b32 v6, 2, v15"); p("v_xor_b32 v6, v6, v%d" % vC)
    p("v_and_b32 v15, 3, v15"); p("v_lshlrev_b32 v15, 2, v15")
    p("v_lshl_add_u32 v15, v6, 4, v15"); p("v_lshl_add_u32 v15, v%d, 10, v15" % vC)
    p("v_add_u32 v15, %d, v15" % P_LDS)
    p.wait(lg=0)
    for i in range(4): p("ds_read_b128 %s, v2 offset:%d" % (vr(SKR + 4 * i, 4), 16 * i))
    p("s_mov_b32 s76, 0x05040100"); p("s_mov_b32 s77, 0x07060302")
    for e in range(8):
        dw, hf = e >> 1, e & 1
        sel = 76 + hf
        K = lambda i: KR + 4 * i + dw
        a = A + 8 * (e & 1)
        p("v_perm_b32 v%d, v%d, v%d, s%d" % (a + 0, K(2), K(3), sel))
        p("v_perm_b32 v%d, v%d, v%d, s%d" % (a + 1, K(0), K(1), sel))
        p("v_perm_b32 v%d, v%d, v%d, s%d" % (a + 2, K(3), K(4), sel))
        p("v_perm_b32 v%d, v%d, v%d, s%d" % (a + 3, K(1), K(2), sel))
        p("v_dot2_f32_bf16 v%d, v%d, v%d, 0" % (a + 4, a + 0, SKR + 2 * e))
        p("v_dot2_f32_bf16 v%d, v%d, v%d, 0" % (a + 5, a + 2, SKR + 2 * e))
        unpack(p, a + 6, VR + dw, hf); unpack(p, a + 7, VR + 4 + dw, hf)
        p("v_dot2_f32_bf16 v%d, v%d, v%d, v%d" % (a + 4, a + 1, SKR + 2 * e + 1, a + 4))
        p("v_dot2_f32_bf16 v%d, v%d, v%d, v%d" % (a + 5, a + 3, SKR + 2 * e + 1, a + 5))
        if e > 0:
            b = A + 8 * ((e - 1) & 1)
            p("v_mul_f32 v%d, v%d, v%d" % (b + 4, b + 4, b + 6)); p("v_mul_f32 v%d, v%d, v%d" % (b + 5, b + 5, b + 7))
            p("v_cvt_pk_bf16_f32 v%d, v%d, v%d" % (RES + e - 1, b + 5, b + 4))
            p("ds_write_b32 v15, v%d offset:%d" % (RES + e - 1, (e - 1) * 128))
    b = A + 8
    p("s_lshl_b32 s%d, s%d, 4" % (sT0, sW)); p("v_add_u32 v6, s%d, v%d" % (sT0, vRR))
    p("v_mul_f32 v%d, v%d, v%d" % (b + 4, b + 4, b + 6)); p("v_mul_f32 v%d, v%d, v%d" % (b + 5, b + 5, b + 7))
    p("v_cvt_pk_bf16_f32 v%d, v%d, v%d" % (RES + 7, b + 5, b + 4))
    p("ds_write_b32 v15, v%d offset:%d" % (RES + 7, 7 * 128))
    p("v_lshlrev_b32 v7, 7, v6"); p("v_lshl_add_u32 v7, v%d, 4, v7" % vC); p("v_add_u32 v%d, %d, v7" % (vKL, P_LDS))
    p("v_lshlrev_b32 v8, 12, v6"); p("s_lshl_b32 s%d, s%d, 1" % (sT1, sW))
    p("v_xor_b32 v9, s%d, v%d" % (sT1, vC)); p("v_lshl_add_u32 v%d, v9, 4, v8" % vKG0)
    p("s_add_u32 s%d, s%d, 1" % (sT1, sT1))
    p("v_xor_b32 v10, s%d, v%d" % (sT1, vC)); p("v_lshl_add_u32 v10, v10, 4, v8"); p("v_add_u32 v%d, 0x8000, v10" % vKG1)
def kv_stores(p):
    p("ds_read_b128 v[16:19], v%d" % vKL); p("ds_read_b128 v[20:23], v%d offset:1024" % vKL)
    p("s_lshl_b32 s83, s%d, 18" % sJ); p("s_lshl_b32 s84, s%d, 7" % sR)
    p("s_sub_u32 s83, s83, s84"); p("s_add_u32 s83, s83, 3968")
    p("buffer_store_dwordx4 v[16:19], v%d, s[%d:%d], s83 offen sc1" % (vKG0, KVT_, KVT_ + 3), "kst")
    p("buffer_store_dwordx4 v[20:23], v%d, s[%d:%d], s83 offen sc1" % (vKG1, KVT_, KVT_ + 3), "kst")

SX, SC_ = 128, 64
def sp_loads(p):
    p("s_sub_u32 s72, s%d, 28" % sR)
    p("s_lshr_b32 s%d, s%d, 1" % (sT0, sJ)); p("s_lshl_b32 s%d, s%d, 9" % (sT0, sT0))
    p("s_and_b32 s%d, s%d, 1" % (sT1, sJ)); p("s_lshl_b32 s%d, s%d, 2" % (sT1, sT1)); p("s_add_u32 s%d, s%d, s72" % (sT1, sT1))
    p("s_lshl_b32 s%d, s%d, 6" % (sT1, sT1)); p("s_add_u32 s%d, s%d, s%d" % (sT0, sT0, sT1))
    p("s_lshl_b32 s%d, s%d, 4" % (sT1, sW)); p("s_add_u32 s73, s%d, s%d" % (sT0, sT1))
    p("s_lshl_b32 s%d, s73, 10" % sT0)
    p("v_lshrrev_b32 v10, 3, v1"); p("v_and_b32 v11, 7, v1"); p("v_lshlrev_b32 v11, 4, v11"); p("v_lshl_add_u32 v10, v10, 10, v11")
    for g in range(2):
        for i in range(8):
            p("buffer_load_dwordx4 %s, v10, s[%d:%d], s%d offen offset:%d" % (vr(SX + 32 * g + 4 * i, 4), GQ_, GQ_ + 3, sT0, i * 128), "sx")
        if g == 0: p("s_add_u32 s%d, s%d, 8192" % (sT0, sT0))
    p("s_lshr_b32 s74, s%d, 1" % sJ); p("s_lshl_b32 s74, s74, 2"); p("s_add_u32 s74, s74, s72")
    p("s_lshl_b32 s%d, s74, 5" % sT0); p("s_lshl_b32 s%d, s%d, 3" % (sT1, sW)); p("s_add_u32 s%d, s%d, s%d" % (sT0, sT0, sT1))
    p("s_mul_i32 s%d, s%d, 3584" % (sT0, sT0)); p("s_and_b32 s%d, s%d, 1" % (sT1, sJ)); p("s_mul_i32 s%d, s%d, 1792" % (sT1, sT1))
    p("s_add_u32 s%d, s%d, s%d" % (sT0, sT0, sT1))
    p("v_lshlrev_b32 v12, 4, v1")
    for i in range(8):
        p("buffer_load_dwordx4 %s, v12, s[%d:%d], s%d offen" % (vr(SC_ + 8 * i, 4), GW1_, GW1_ + 3, sT0), "sc")
        p("buffer_load_dwordx4 %s, v12, s[%d:%d], s%d offen offset:1024" % (vr(SC_ + 8 * i + 4, 4), GW1_, GW1_ + 3, sT0), "sc")
        if i < 7: p("s_add_u32 s%d, s%d, 3584" % (sT0, sT0))
def sp_stats(p):
    T = 200
    p("s_mov_b32 s75, 0x3f803f80")
    for g in range(2):
        for h in range(2): p("v_mov_b32 v%d, 0" % (T + 4 * g + h)); p("v_mov_b32 v%d, 0" % (T + 8 + 2 * g + h))
    for i in range(8):
        for g in range(2):
            for d in range(4):
                r_ = SX + 32 * g + 4 * i + d
                aS, aQ = (T + 4 * g, T + 4 * g + 1) if d & 1 else (T + 8 + 2 * g, T + 9 + 2 * g)
                p("v_dot2_f32_bf16 v%d, v%d, s75, v%d" % (aS, r_, aS)); p("v_dot2_f32_bf16 v%d, v%d, v%d, v%d" % (aQ, r_, r_, aQ))
    for g in range(2):
        p("v_add_f32 v%d, v%d, v%d" % (T + 4 * g, T + 4 * g, T + 8 + 2 * g)); p("v_add_f32 v%d, v%d, v%d" % (T + 4 * g + 1, T + 4 * g + 1, T + 9 + 2 * g))
    for ctrl in ("quad_perm:[1,0,3,2] row_mask:0xf", "quad_perm:[2,3,0,1] row_mask:0xf", "row_half_mirror row_mask:0xf"):
        for q in (T, T + 1, T + 4, T + 5):
            p("v_add_f32_dpp v%d, v%d, v%d %s bank_mask:0xf" % (q, q, q, ctrl))
    for g in range(2):
        sS, sQ = T + 4 * g, T + 4 * g + 1
        p("v_mul_f32 v%d, 0x3b000000, v%d" % (sS, sS)); p("v_mul_f32 v%d, 0x3b000000, v%d" % (sQ, sQ))
    for g in range(2): p("v_fma_f32 v%d, -v%d, v%d, v%d" % (T + 4 * g + 1, T + 4 * g, T + 4 * g, T + 4 * g + 1))
    for g in range(2): p("v_max_f32 v%d, 0, v%d" % (T + 4 * g + 1, T + 4 * g + 1))
    for g in range(2): p("v_add_f32 v%d, 0x3727c5ac, v%d" % (T + 4 * g + 1, T + 4 * g + 1))
    for g in range(2): p("v_rsq_f32 v%d, v%d" % (T + 4 * g + 1, T + 4 * g + 1))
def sp_stats_store(p):
    T = 200
    for q in (T + 2, T + 3, T + 6, T + 7): p("v_mov_b32 v%d, s%d" % (q, sN))
    p("v_lshrrev_b32 v10, 3, v1"); p("v_lshlrev_b32 v10, 4, v10")
    p("s_lshl_b32 s%d, s73, 4" % sT0)
    p("s_mov_b32 exec_lo, 0x01010101"); p("s_mov_b32 exec_hi, 0x01010101")
    p("buffer_store_dwordx4 %s, v10, s[%d:%d], s%d offen sc1" % (vr(T, 4), ST_, ST_ + 3, sT0), "pst")
    p("buffer_store_dwordx4 %s, v10, s[%d:%d], s%d offen offset:128 sc1" % (vr(T + 4, 4), ST_, ST_ + 3, sT0), "pst")
    p("s_mov_b64 exec, -1")
SPC_LDS = 0
def sp_cs(p):
    A = 216
    p("s_mov_b32 s76, 0x00003f80"); p("s_mov_b32 s77, 0x3f800000")
    for i in range(8):
        for part in range(2):
            for d in range(4):
                r_ = SC_ + 8 * i + 4 * part + d; a = A + 8 * part + 2 * d
                p("v_dot2_f32_bf16 v%d, v%d, s76, %s" % (a, r_, "0" if i == 0 else "v%d" % a))
                p("v_dot2_f32_bf16 v%d, v%d, s77, %s" % (a + 1, r_, "0" if i == 0 else "v%d" % (a + 1)))
    p("v_lshlrev_b32 v10, 5, v1"); p("s_lshl_b32 s%d, s%d, 12" % (sT0, sW)); p("v_add_u32 v10, s%d, v10" % sT0)
    for part in range(2):
        p("ds_write_b128 v10, %s offset:%d" % (vr(A + 8 * part, 4), SPC_LDS + part * 2048))
        p("ds_write_b128 v10, %s offset:%d" % (vr(A + 8 * part + 4, 4), SPC_LDS + part * 2048 + 16))
def sp_cs_store(p):
    p("v_lshlrev_b32 v10, 4, v0")
    for w in range(4): p("ds_read_b128 %s, v10 offset:%d" % (vr(64 + 4 * w, 4), SPC_LDS + w * 4096))
    for c in range(4):
        p("v_add_f32 v%d, v%d, v%d" % (64 + c, 64 + c, 68 + c)); p("v_add_f32 v%d, v%d, v%d" % (72 + c, 72 + c, 76 + c))
    for c in range(4): p("v_add_f32 v%d, v%d, v%d" % (80 + 2 * c, 64 + c, 72 + c)); p("v_mov_b32 v%d, s%d" % (81 + 2 * c, sN))
    p("s_mul_i32 s%d, s74, %d" % (sT0, 1792 * 8)); p("s_and_b32 s%d, s%d, 1" % (sT1, sJ)); p("s_mul_i32 s%d, s%d, %d" % (sT1, sT1, 896 * 8))
    p("s_add_u32 s%d, s%d, s%d" % (sT0, sT0, sT1))
    p("v_lshlrev_b32 v11, 5, v0")
    p("v_cmp_gt_u32 vcc, 224, v0"); p("s_nop 1"); p("v_cndmask_b32 v11, v253, v11, vcc"); p("v_mov_b32 v12, 0x7f000000")
    p("v_cndmask_b32 v11, v12, v11, vcc")
    p("buffer_store_dwordx4 v[80:83], v11, s[%d:%d], s%d offen sc1" % (CSP_, CSP_ + 3, sT0), "pst")
    p("buffer_store_dwordx4 v[84:87], v11, s[%d:%d], s%d offen offset:16 sc1" % (CSP_, CSP_ + 3, sT0), "pst")
def fk_publish(p, name):
    p("s_cmp_eq_u32 s%d, 0" % sW)
    p("s_cbranch_scc0 %s_nofk" % name)
    st = side_path_begin(p)
    p("s_lshl_b32 s%d, s%d, 5" % (sT0, sJ)); p("s_add_u32 s%d, s%d, s%d" % (sT0, sT0, sR))
    p("s_lshl_b32 s%d, s%d, 7" % (sT0, sT0))
    if FL_FK: p("s_add_u32 s%d, s%d, %d" % (sT0, sT0, FL_FK))
    flag_store(p, sT0)
    side_path_end(p, st)
    p.label("%s_nofk" % name)
vPK, vPA = 184, 185
def fk_addr(p, all_waves=False):
    p("v_min_u32 v%d, 31, v1" % vPA); p("v_lshlrev_b32 v%d, 7, v%d" % (vPA, vPA))
    if not all_waves:
        p("s_min_u32 s85, s%d, 1" % sW); p("s_sub_u32 s85, 1, s85"); p("v_mul_u32_u24 v%d, s85, v%d" % (vPA, vPA))
    p("s_lshl_b32 s85, s%d, 12" % sJ)
    if FL_FK: p("s_add_u32 s85, s85, %d" % FL_FK)

vX, vWd, vXA, vWA = 192, 196, 200, 208
G1_ACC = 64
vCS, vB1, vST = 128, 180, 212
B1_ = 40
def g1_dma_setup(p):
    p("v_lshrrev_b32 v10, 3, v1"); p("v_and_b32 v11, 7, v1"); p("v_lshrrev_b32 v12, 1, v10")
    for ii in range(4):
        p("v_add_u32 v13, %d, v12" % (4 * (ii & 1))); p("v_xor_b32 v13, v13, v11")
        p("v_lshlrev_b32 v13, 4, v13"); p("v_lshl_add_u32 v13, v10, 10, v13")
        p("v_add_u32 v%d, %d, v13" % (vX + ii, ii * 8192))
    p("v_lshrrev_b32 v10, 4, v1"); p("v_and_b32 v11, 15, v1"); p("v_lshlrev_b32 v12, 2, v10")
    p("v_xor_b32 v12, v12, v11"); p("v_lshlrev_b32 v12, 4, v12")
    p("v_mul_u32_u24 v13, 3584, v10"); p("v_add_u32 v13, v13, v12")
    for ii in range(4): p("v_add_u32 v%d, %d, v13" % (vWd + ii, ii * 4 * 3584))
    p("s_lshl_b32 s%d, s%d, 17" % (sXo, sRB)); p("s_lshl_b32 s%d, s%d, 15" % (sT0, sW))
    p("s_add_u32 s%d, s%d, s%d" % (sXo, sXo, sT0))
    p("s_mul_i32 s%d, s%d, %d" % (sWo, sW, 16 * 3584)); p("s_lshl_b32 s%d, s%d, 8" % (sT0, sFT))
    p("s_add_u32 s%d, s%d, s%d" % (sWo, sWo, sT0))
    p("s_lshl_b32 s%d, s%d, 12" % (sM, sW))
def g1_dma_stage(s):
    out = []; slot = s % 4
    for ii in range(4):
        out.append([("s_add_u32 m0, s%d, %d" % (sM, slot * 32768 + ii * 1024), None),
                    ("buffer_load_dwordx4 v%d, s[%d:%d], s%d offen lds" % (vX + ii, GQ_, GQ_ + 3, sXo), "st%d" % s)])
    for ii in range(4):
        out.append([("s_add_u32 m0, s%d, %d" % (sM, slot * 32768 + 16384 + ii * 1024), None),
                    ("buffer_load_dwordx4 v%d, s[%d:%d], s%d offen lds" % (vWd + ii, GW1_, GW1_ + 3, sWo), "st%d" % s)])
    out[-1] += [("s_add_u32 s%d, s%d, 128" % (sXo, sXo), None), ("s_add_u32 s%d, s%d, %d" % (sWo, sWo, 64 * 3584), None)]
    return out
def g1_lds_setup(p):
    p("v_and_b32 v10, 31, v1"); p("v_lshrrev_b32 v11, 5, v1")
    p("v_lshrrev_b32 v12, 1, v10"); p("v_and_b32 v12, 7, v12"); p("v_xor_b32 v12, v12, v11")
    p("s_lshr_b32 s%d, s%d, 1" % (sT1, sW)); p("s_lshl_b32 s%d, s%d, 13" % (sT1, sT1))
    p("v_lshlrev_b32 v13, 7, v10"); p("v_add_u32 v13, s%d, v13" % sT1)
    for jj in range(4):
        p("v_xor_b32 v14, %d, v12" % (2 * jj))
        p("v_lshl_add_u32 v%d, v14, 4, v13" % (vXA + jj))
        p("v_add_u32 v%d, 0x10000, v%d" % (vXA + 4 + jj, vXA + jj))
    p("v_and_b32 v10, 15, v1"); p("v_lshrrev_b32 v11, 4, v1"); p("v_lshrrev_b32 v12, 1, v11")
    p("v_and_b32 v11, 1, v11"); p("v_lshrrev_b32 v13, 2, v10")
    p("v_lshl_add_u32 v12, v12, 3, v13"); p("v_lshlrev_b32 v12, 8, v12")
    p("v_and_b32 v14, 1, v10"); p("v_lshl_add_u32 v12, v14, 3, v12"); p("v_add_u32 v12, 16384, v12")
    p("v_and_b32 v14, 3, v10"); p("v_lshrrev_b32 v14, 1, v14"); p("v_lshl_add_u32 v14, v11, 1, v14")
    p("s_and_b32 s%d, s%d, 1" % (sT1, sW)); p("s_lshl_b32 s%d, s%d, 3" % (sT1, sT1))
    p("v_add_u32 v14, s%d, v14" % sT1); p("v_lshlrev_b32 v13, 2, v13")
    for fb in range(2):
        p("v_add_u32 v15, %d, v14" % (4 * fb)); p("v_xor_b32 v15, v15, v13")
        p("v_lshl_add_u32 v%d, v15, 4, v12" % (vWA + fb))
        p("v_add_u32 v%d, 0x10000, v%d" % (vWA + 2 + fb, vWA + fb))

def tab_loads(p):
    p("v_lshlrev_b32 v10, 4, v1")
    p("s_lshl_b32 s83, s%d, 2" % sW); p("s_mul_i32 s83, s83, %d" % (1792 * 8)); p("s_lshl_b32 s84, s%d, 10" % sFT); p("s_add_u32 s83, s83, s84")
    for i in range(4):
        p("buffer_load_dwordx4 %s, v10, s[%d:%d], s83 offen sc1" % (vr(vCS + 4 * i, 4), CSP_, CSP_ + 3), "tab")
        if i < 3: p("s_add_u32 s83, s83, %d" % (1792 * 8))
    p("s_lshr_b32 s84, s%d, 1" % sW); p("s_lshl_b32 s84, s84, 6")
    p("s_lshl_b32 s83, s%d, 7" % sRB); p("s_add_u32 s83, s83, s84"); p("s_lshl_b32 s83, s83, 4")
    p("v_and_b32 v12, 31, v1"); p("v_lshlrev_b32 v12, 4, v12")
    p("buffer_load_dwordx4 %s, v12, s[%d:%d], s83 offen sc1" % (vr(vST, 4), ST_, ST_ + 3), "tab")
    p("buffer_load_dwordx4 %s, v12, s[%d:%d], s83 offen offset:512 sc1" % (vr(vST + 4, 4), ST_, ST_ + 3), "tab")
def tab_check(p):
    _uid[0] += 1; u = _uid[0]
    def cmp():
        tags = [vCS + 4 * i + 1 for i in range(4)] + [vCS + 4 * i + 3 for i in range(4)] + [vST + 2, vST + 6]
        p("v_min3_u32 v10, v%d, v%d, v%d" % tuple(tags[0:3])); p("v_max3_u32 v11, v%d, v%d, v%d" % tuple(tags[0:3]))
        for i in range(3, 9, 2):
            p("v_min3_u32 v10, v10, v%d, v%d" % (tags[i], tags[i + 1])); p("v_max3_u32 v11, v11, v%d, v%d" % (tags[i], tags[i + 1]))
        p("v_min_u32 v10, v10, v%d" % tags[9]); p("v_max_u32 v11, v11, v%d" % tags[9])
        p("v_cmp_ne_u32 vcc, s%d, v10" % sN); p("v_cmp_ne_u32 s[76:77], s%d, v11" % sN)
        p("s_or_b64 vcc, vcc, s[76:77]"); p("s_nop 4")
    cmp()
    p("s_cbranch_vccz Lt%d_ok" % u)
    saved = (list(p.vm), list(p.lg))
    p("s_mov_b32 s79, 0")
    p.label("Lt%d_loop" % u)
    p("s_sleep 2")
    tab_loads(p)
    p.wait(vm=0)
    cmp()
    p("s_cbranch_vccz Lt%d_ok" % u)
    p("s_add_u32 s79, s79, 1"); p("s_cmp_lt_u32 s79, 0x40000"); p("s_cbranch_scc1 Lt%d_loop" % u)
    p.label("Lt%d_ok" % u)
    p.vm, p.lg = saved
def tab_partial(p):
    p("v_add_f32 v%d, v%d, v%d" % (vCS, vCS, vCS + 4)); p("v_add_f32 v%d, v%d, v%d" % (vCS + 2, vCS + 2, vCS + 6))
    p("v_add_f32 v%d, v%d, v%d" % (vCS + 8, vCS + 8, vCS + 12)); p("v_add_f32 v%d, v%d, v%d" % (vCS + 10, vCS + 10, vCS + 14))
    p("v_add_f32 v%d, v%d, v%d" % (vCS, vCS, vCS + 8)); p("v_add_f32 v%d, v%d, v%d" % (vCS + 1, vCS + 2, vCS + 10))
    p("v_lshlrev_b32 v10, 3, v1"); p("s_lshl_b32 s83, s%d, 9" % sW); p("v_add_u32 v10, s83, v10"); p("v_add_u32 v10, %d, v10" % CSQ_LDS)
    p("ds_write_b64 v10, %s" % vr(vCS, 2))

def g1_main(p, fill):
    ACC = G1_ACC; FR = 32
    def reads(g):
        s, jj = g // 4, g % 4
        slot = s % 4; hi = slot >= 2; so = (slot & 1) * 32768
        f = FR + 16 * (g & 1); out = []
        for fb in range(2):
            for rr in range(2):
                out.append("ds_read_b64_tr_b16 %s, v%d offset:%d" % (vr(f + 4 * fb + 2 * rr, 2), vWA + fb + (2 if hi else 0), so + jj * 4096 + rr * 1024))
        for tb in range(2):
            out.append("ds_read_b128 %s, v%d offset:%d" % (vr(f + 8 + 4 * tb, 4), vXA + jj + (4 if hi else 0), so + tb * 4096))
        return out
    def mfmas(g):
        f = FR + 16 * (g & 1); out = []
        for fb in range(2):
            for tb in range(2):
                a = ACC + 16 * (2 * fb + tb)
                out.append("v_mfma_f32_32x32x16_bf16 %s, %s, %s, %s" % (vr(a, 16), vr(f + 4 * fb, 4), vr(f + 8 + 4 * tb, 4), "0" if g == 0 else vr(a, 16)))
        return out
    for s in range(8):
        prewait, pre, units = fill[s]
        p.wait_tag("st%d" % s)
        prewait(p)
        p("s_barrier")
        stamp(p, "g1_st%d" % s)
        pre(p)
        dm = g1_dma_stage(s + 3) if (s + 3 < 8 and s >= 1) else []
        if s == 0: dm = g1_dma_stage(3)
        nm = 16 if s > 0 else 12
        di = ui = k = 0
        for jj in range(4):
            g = 4 * s + jj
            rd = reads(g)
            if g == 0:
                for t in rd: p(t)
                continue
            for q, t in enumerate(mfmas(g - 1)):
                p(t)
                for r_ in rd[2 * q:2 * q + 2]: p(r_)
                k += 1
                while di < len(dm) and di * nm < k * len(dm):
                    emit(p, dm[di]); di += 1
                while ui < len(units) and ui * nm < k * len(units):
                    emit(p, [units[ui]]); ui += 1
        while di < len(dm): emit(p, dm[di]); di += 1
        while ui < len(units): emit(p, [units[ui]]); ui += 1
    for t in mfmas(31): p(t)

def g1_epilogue(p, extra):
    HF_ = 44
    srd(p, HF_, P_WS, SZ_HF, WS_HF)
    ACC = G1_ACC; TBL = 128
    p("v_lshrrev_b32 v10, 5, v1"); p("v_lshlrev_b32 v10, 4, v10")
    p("s_and_b32 s%d, s%d, 1" % (sT1, sW)); p("s_lshl_b32 s%d, s%d, 8" % (sT1, sT1))
    p("v_add_u32 v10, s%d, v10" % sT1); p("v_add_u32 v10, %d, v10" % TAB_LDS)
    for rq in range(4):
        p("ds_read_b128 %s, v10 offset:%d" % (vr(TBL + 4 * rq, 4), rq * 32))
        p("ds_read_b128 %s, v10 offset:%d" % (vr(TBL + 16 + 4 * rq, 4), 512 + rq * 32))
    p("s_lshr_b32 s%d, s%d, 1" % (sT1, sW)); p("s_lshl_b32 s%d, s%d, 1" % (sT1, sT1))
    p("s_lshl_b32 s%d, s%d, 2" % (sT0, sRB)); p("s_add_u32 s%d, s%d, s%d" % (sT0, sT0, sT1))
    p("s_mul_i32 s%d, s%d, 112" % (sT0, sT0)); p("s_lshl_b32 s%d, s%d, 3" % (sT1, sFT))
    p("s_add_u32 s%d, s%d, s%d" % (sT0, sT0, sT1))
    p("s_and_b32 s%d, s%d, 1" % (sT1, sW)); p("s_lshl_b32 s%d, s%d, 2" % (sT1, sT1))
    p("s_add_u32 s%d, s%d, s%d" % (sT0, sT0, sT1)); p("s_lshl_b32 s83, s%d, 10" % sT0)
    p("v_lshlrev_b32 v11, 4, v1"); p("v_add_u32 v12, %d, v11" % (112 * 1024))
    for tb in range(2): p("v_mul_f32 v%d, v%d, v%d" % (vST + 4 * tb, vST + 4 * tb, vST + 4 * tb + 1))
    main = []
    TB2 = 32
    for fb in range(2):
        tbl = TBL if fb == 0 else TB2
        for tb in range(2):
            a = ACC + 16 * (2 * fb + tb); mu = vST + 4 * tb
            PK = 160 + 8 * tb
            if fb == 0 and tb == 0:
                for rq in range(4):
                    main.append(("ds_read_b128 %s, v10 offset:%d" % (vr(TB2 + 4 * rq, 4), 128 + rq * 32), None))
                    main.append(("ds_read_b128 %s, v10 offset:%d" % (vr(TB2 + 16 + 4 * rq, 4), 512 + 128 + rq * 32), None))
            for r_ in range(0, 16, 4):
                t0, t1 = 176, 178
                for t, rr in ((t0, r_), (t1, r_ + 2)):
                    main.append(("v_pk_fma_f32 %s, %s, %s, %s op_sel_hi:[0,1,1] neg_lo:[1,0,0] neg_hi:[1,0,0]" % (vr(t, 2), vr(mu, 2), vr(tbl + rr, 2), vr(tbl + 16 + rr, 2)), None))
                for t, rr in ((t0, r_), (t1, r_ + 2)):
                    main.append(("v_pk_fma_f32 %s, %s, %s, %s op_sel:[0,1,0] op_sel_hi:[1,1,1]" % (vr(t, 2), vr(a + rr, 2), vr(mu, 2), vr(t, 2)), None))
                for t in (t0, t0 + 1, t1, t1 + 1): main.append(("v_max_f32 v%d, 0, v%d" % (t, t), None))
                for t in (t0, t1): main.append(("v_pk_mul_f32 %s, %s, %s" % (vr(t, 2), vr(t, 2), vr(t, 2)), None))
                for t, rr in ((t0, r_), (t1, r_ + 2)): main.append(("v_cvt_pk_bf16_f32 v%d, v%d, v%d" % (PK + (rr >> 1), t, t + 1), None))
            for q in range(2):
                main.append(("buffer_store_dwordx4 %s, v%d, s[%d:%d], s83 offen offset:%d sc1" % (vr(PK + 4 * q, 4), 11 + tb, HF_, HF_ + 3, (2 * fb + q) * 1024), "hst"))
    n = len(extra); k = 0
    for i, it in enumerate(main):
        emit(p, [it])
        while k < n and k * len(main) < (i + 1) * n:
            emit(p, [extra[k]]); k += 1

def h_publish(p):
    p("s_lshl_b32 s%d, s%d, 1" % (sT0, sRB)); p("s_lshr_b32 s%d, s%d, 1" % (sT1, sW))
    p("s_add_u32 s%d, s%d, s%d" % (sT0, sT0, sT1)); p("s_mul_i32 s%d, s%d, 28" % (sT0, sT0))
    p("s_lshl_b32 s%d, s%d, 1" % (sT1, sFT)); p("s_add_u32 s%d, s%d, s%d" % (sT0, sT0, sT1))
    p("s_and_b32 s%d, s%d, 1" % (sT1, sW)); p("s_add_u32 s%d, s%d, s%d" % (sT0, sT0, sT1))
    p("s_lshl_b32 s%d, s%d, 7" % (sT0, sT0)); p("s_add_u32 s%d, s%d, %d" % (sT0, sT0, FL_FH))
    flag_store(p, sT0)

KVT2_, SSM_, DD_, ZT_ = 48, 52, 56, 60
CV_R, vDD = 220, 254
def conv_setup(p):
    srd(p, KVT2_, P_WS, SZ_KVT, WS_KVT); srd(p, SSM_, P_SSM, D * S * 2); srd(p, DD_, P_DD, D * 2); srd(p, ZT_, P_WS, SZ_ZT, WS_ZT)
    p("s_lshr_b32 s%d, s%d, 1" % (sT0, sW)); p("s_and_b32 s%d, s%d, 1" % (sC2, sW))
    p("s_lshl_b32 s%d, s%d, 6" % (sCH, sJ)); p("s_lshl_b32 s%d, s%d, 1" % (sT1, sR))
    p("s_add_u32 s%d, s%d, s%d" % (sCH, sCH, sT1)); p("s_add_u32 s%d, s%d, s%d" % (sCH, sCH, sT0))
    p("s_mul_i32 s%d, s%d, 21248" % (sCB, sT0)); p("s_add_u32 s%d, s%d, %d" % (sCB, sCB, CV0 + 256))
def conv_loads_regs(p):
    p("s_lshl_b32 s83, s%d, 12" % sCH); p("s_lshl_b32 s84, s%d, 11" % sC2); p("s_add_u32 s83, s83, s84")
    p("v_lshlrev_b32 v2, 4, v1")
    R = CV_R
    for sg in range(2):
        for k in range(3):
            p("buffer_load_dwordx4 %s, v2, s[%d:%d], s83 offen offset:%d sc1" % (vr(R + 12 * sg + 4 * k, 4), KVT2_, KVT2_ + 3, sg * 1024 + 4 * k), "cv")
    p("v_mov_b32 v4, 0"); p("s_lshl_b32 s84, s%d, 1" % sCH)
    p("buffer_load_ushort v%d, v4, s[%d:%d], s84 offen" % (vDD, DD_, DD_ + 3), "cv")
def conv_loads_lds(p):
    p("s_lshl_b32 s%d, s%d, 12" % (sT0, sCH)); p("s_lshl_b32 s%d, s%d, 11" % (sT1, sC2))
    p("s_add_u32 s%d, s%d, s%d" % (sT0, sT0, sT1))
    p("v_lshlrev_b32 v2, 4, v1")
    for sg in range(2):
        p("s_add_u32 s%d, s%d, s%d" % (sT2, sCB, sT1))
        p("s_add_u32 m0, s%d, %d" % (sT2, 16640 + 512 + sg * 1024))
        p("s_add_u32 s%d, s%d, %d" % (sT2, sT0, sg * 1024))
        p("buffer_load_dwordx4 v2, s[%d:%d], s%d offen lds" % (SSM_, SSM_ + 3, sT2), "cv")
    for i in range(4): p("v_mov_b32 v%d, 0" % (16 + i))
    p("v_lshrrev_b32 v5, 1, v1"); p("v_mul_u32_u24 v5, 4160, v5")
    p("v_and_b32 v6, 1, v1"); p("v_lshl_add_u32 v5, v6, 4, v5"); p("v_add_u32 v5, 4096, v5")
    p("v_add_u32 v6, 16640, v2")
    p("s_cmp_eq_u32 s%d, 0" % sC2)
    p("s_cselect_b32 s76, 0xff, -1")
    p("s_cselect_b64 vcc, -1, 0")
    p("v_cndmask_b32 v5, v6, v5, vcc")
    p("v_add_u32 v5, s%d, v5" % sCB)
    p("s_mov_b32 exec_lo, s76"); p("s_mov_b32 exec_hi, 0")
    p("ds_write_b128 v5, v[16:19]")
    p("s_mov_b64 exec, -1")

def conv_fill(p):
    R = CV_R
    p("v_lshlrev_b32 v2, 4, v1"); p("v_mov_b32 v8, 0")
    p("s_lshl_b32 s77, s%d, 31" % sC2); p("s_mov_b32 s76, 0")
    last = R + 12
    for rg in (last + 7, last + 10, last + 11): p("v_cndmask_b32 v%d, v%d, v8, s[76:77]" % (rg, rg))
    p("s_lshl_b32 s%d, s%d, 11" % (sT1, sC2)); p("s_add_u32 s%d, s%d, s%d" % (sT1, sT1, sCB))
    p("v_add_u32 v5, s%d, v2" % sT1)
    for sg in range(2):
        r0, r1, r2 = R + 12 * sg, R + 12 * sg + 4, R + 12 * sg + 8
        c1, c3 = 40 + 8 * sg, 44 + 8 * sg
        p("ds_write_b128 v5, %s offset:%d" % (vr(r0, 4), sg * 1024))
        for i in range(4): p("v_alignbit_b32 v%d, v%d, v%d, 16" % (c1 + i, r1 + i, r0 + i))
        p("ds_write_b128 v5, %s offset:%d" % (vr(r1, 4), 2 * 4160 + sg * 1024))
        for i in range(4): p("v_alignbit_b32 v%d, v%d, v%d, 16" % (c3 + i, r2 + i, r1 + i))
        p("ds_write_b128 v5, %s offset:%d" % (vr(c1, 4), 4160 + sg * 1024))
        p("ds_write_b128 v5, %s offset:%d" % (vr(c3, 4), 3 * 4160 + sg * 1024))

def conv_main(p, extra_by_class):
    vA, vB = 12, 13
    p("v_and_b32 v6, 15, v1"); p("v_lshrrev_b32 v7, 4, v1")
    p("v_sub_u32 v14, 3, v6"); p("v_and_b32 v14, 3, v14")
    p("v_mul_u32_u24 v15, 4158, v14")
    p("v_lshlrev_b32 v14, 1, v6"); p("v_sub_u32 v15, v15, v14"); p("v_lshl_add_u32 v15, v7, 4, v15")
    p("s_lshl_b32 s%d, s%d, 8" % (sT1, sC2)); p("s_sub_u32 s%d, s%d, s%d" % (sT1, sCB, sT1))
    p("s_add_u32 s%d, s%d, 30" % (sT2, sT1)); p("v_add_u32 v%d, s%d, v15" % (vA, sT2))
    p("v_lshlrev_b32 v15, 5, v6"); p("v_lshl_add_u32 v15, v7, 4, v15")
    p("s_add_u32 s%d, s%d, %d" % (sT2, sT1, 16640 + 32)); p("v_add_u32 v%d, s%d, v15" % (vB, sT2))
    ACC = 64
    p.wait(lg=0)
    p("s_barrier")
    stamp(p, "conv_filled")
    FA, FB = 96, 160
    def reads(rl):
        st = rl & 1; out = []
        for x in range(8):
            oa = 64 * (63 - rl - 8 * x)
            out.append(("ds_read_b64 %s, v%d offset:%d" % (vr(FA + 32 * st + 4 * x, 2), vA, oa), None))
            out.append(("ds_read_b64 %s, v%d offset:%d" % (vr(FA + 32 * st + 4 * x + 2, 2), vA, oa + 8), None))
            out.append(("ds_read_b128 %s, v%d offset:%d" % (vr(FB + 32 * st + 4 * x, 4), vB, 64 * (7 - rl + 8 * x)), None))
        return out
    seen = set()
    def mf(rl):
        st = rl & 1; out = []
        pairs = sorted([(a, b) for a in range(8) for b in range(8) if a + b <= 7], key=lambda ab: (max(ab), ab))
        for a, b in pairs:
            c = vr(ACC + 4 * (a + b), 4)
            first = (a + b) not in seen; seen.add(a + b)
            out.append(("v_mfma_f32_16x16x32_bf16 %s, %s, %s, %s" % (c, vr(FA + 32 * st + 4 * a, 4), vr(FB + 32 * st + 4 * b, 4), "0" if first else c), None))
        return out
    for t in reads(0): p(*t)
    for rl in range(4):
        pre, fill = extra_by_class[rl]
        pre(p)
        nxt = (reads(rl + 1) if rl < 3 else [])
        m = mf(rl)
        ni = fi = 0
        for i, t in enumerate(m):
            p(*t)
            while ni < len(nxt) and ni * 30 < (i + 1) * len(nxt): p(*nxt[ni]); ni += 1
            while fi < len(fill) and fi * 36 < (i + 1) * len(fill): emit(p, [fill[fi]]); fi += 1
    stamp(p, "conv_mma_done")

def conv_finish(p, name, extra):
    ACC = 64
    RB = RB_LDS
    p("v_lshlrev_b32 v2, 4, v1")
    p("s_lshl_b32 s%d, s%d, 12" % (sT1, sW))
    p("v_add_u32 v5, s%d, v2" % sT1); p("v_add_u32 v5, %d, v5" % RB)
    p("s_xor_b32 s%d, s%d, 1" % (sT1, sW)); p("s_lshl_b32 s%d, s%d, 12" % (sT1, sT1))
    p("v_add_u32 v14, s%d, v2" % sT1); p("v_add_u32 v14, %d, v14" % RB)
    p("v_lshlrev_b32 v15, 5, v6"); p("v_lshl_add_u32 v15, v7, 3, v15")
    p("s_lshl_b32 s%d, s%d, 11" % (sT1, sC2)); p("s_sub_u32 s%d, s%d, s%d" % (sT2, sCB, sT1))
    p("s_add_u32 s%d, s%d, %d" % (sT2, sT2, 4088 - 1536)); p("v_sub_u32 v16, s%d, v15" % sT2)
    p("s_lshl_b32 s84, s%d, 12" % sCH); p("s_add_u32 s84, s84, s%d" % sT1)
    p("v_lshlrev_b32 v%d, 16, v%d" % (vDD, vDD))
    for q in range(4): p("ds_read_b64 %s, v16 offset:%d" % (vr(36 + 2 * q, 2), (3 - q) * 512))
    n1 = len(extra) // 2
    emit(p, extra[:n1])
    st = side_path_begin(p); hist = len(p.out)
    p("s_cmp_eq_u32 s%d, 0" % sC2)
    p("s_cbranch_scc0 %s_hi" % name)
    for variant in range(2):
        keep = ACC + 16 * variant; give = ACC + 16 * (1 - variant)
        if variant == 1:
            p("s_branch %s_cdone" % name)
            p.label("%s_hi" % name)
            side_path_end(p, st)
            p("s_nop 7")
        for q in range(4): p("ds_write_b128 v5, %s offset:%d" % (vr(give + 4 * q, 4), q * 1024))
        for q in range(4):
            a_ = keep + 4 * q; u = 36 + 2 * q
            for c, (src, hf) in enumerate(((u + 1, 1), (u + 1, 0), (u, 1), (u, 0))):
                unpack(p, 44 + (c & 1), src, hf)
                p("v_fmac_f32 v%d, v%d, v%d" % (a_ + c, 44 + (c & 1), vDD))
        p.wait(lg=0)
        p("s_barrier")
        for q in range(4): p("ds_read_b128 %s, v14 offset:%d" % (vr(20 + 4 * q, 4), q * 1024))
        for q in range(4):
            a_ = keep + 4 * q
            for c in range(4): p("v_add_f32 v%d, v%d, v%d" % (a_ + c, a_ + c, 20 + 4 * q + c))
            p("v_cvt_pk_bf16_f32 v%d, v%d, v%d" % (48 + 2 * q, a_, a_ + 1))
            p("v_cvt_pk_bf16_f32 v%d, v%d, v%d" % (49 + 2 * q, a_ + 2, a_ + 3))
    p.label("%s_cdone" % name)
    emit(p, extra[n1:])
def z_stores(p):
    for q in range(4):
        p("buffer_store_dwordx2 %s, v15, s[%d:%d], s84 offen offset:%d sc1" % (vr(48 + 2 * q, 2), ZT_, ZT_ + 3, q * 512), "zst")
def z_publish(p):
    p("s_lshl_b32 s%d, s%d, 7" % (sT0, sJ)); p("s_lshl_b32 s%d, s%d, 2" % (sT1, sR))
    p("s_add_u32 s%d, s%d, s%d" % (sT0, sT0, sT1)); p("s_add_u32 s%d, s%d, s%d" % (sT0, sT0, sW))
    p("s_lshl_b32 s%d, s%d, 7" % (sT0, sT0)); p("s_add_u32 s%d, s%d, %d" % (sT0, sT0, FL_FZ))
    flag_store(p, sT0)

HF2_, W2_, Q2_, ZT2_, ST2_, B2_, OUT_ = 40, 8, 48, 52, 56, 64, 44
vH0, vH1, vD0, vD1 = 244, 245, 246, 247
vFH, vFHA = 248, 249
vTRA = 60
sWS = 75
NS = 28
STASH0 = 0
HB = 128
def g2_setup(p):
    srd(p, W2_, P_W2, F * D * 2)
    p("s_lshl_b32 s%d, s%d, 8" % (sTok, sJ))
    p("s_lshr_b32 s%d, s%d, 3" % (sT0, sR)); p("s_lshl_b32 s%d, s%d, 6" % (sT0, sT0))
    p("s_add_u32 s%d, s%d, s%d" % (sTok, sTok, sT0))
    p("s_add_u32 s%d, s%d, %d" % (sCh, sR, OPT.get("cbrot", 0))); p("s_and_b32 s%d, s%d, 7" % (sCh, sCh)); p("s_lshl_b32 s%d, s%d, 6" % (sCh, sCh))
    p("s_lshr_b32 s%d, s%d, 5" % (sT0, sTok)); p("s_mul_i32 s%d, s%d, 112" % (sT0, sT0))
    p("s_mul_i32 s%d, s%d, 28" % (sT1, sW))
    p("s_add_u32 s%d, s%d, s%d" % (sT0, sT0, sT1)); p("s_lshl_b32 s%d, s%d, 10" % (sHo, sT0))
    p("s_lshl_b32 s%d, s%d, 14" % (sWA, sT1)); p("s_lshl_b32 s%d, s%d, 1" % (sT0, sCh))
    p("s_add_u32 s%d, s%d, s%d" % (sWA, sWA, sT0))
    p("s_lshl_b32 s%d, s%d, 11" % (sM2, sW))
    p("v_lshlrev_b32 v%d, 4, v1" % vH0)
    p("v_add_u32 v%d, %d, v%d" % (vH1, 112 * 1024, vH0))
    p("v_lshrrev_b32 v10, 3, v1"); p("v_and_b32 v11, 7, v1")
    p("v_lshrrev_b32 v12, 1, v10"); p("v_and_b32 v12, 1, v12"); p("v_lshlrev_b32 v12, 2, v12")
    p("v_xor_b32 v12, v12, v11"); p("v_lshlrev_b32 v12, 4, v12")
    p("v_lshl_add_u32 v%d, v10, 10, v12" % vD0)
    p("v_add_u32 v%d, 8192, v%d" % (vD1, vD0))
def g2_setup_tr(p):
    p("v_and_b32 v10, 15, v1"); p("v_lshrrev_b32 v11, 4, v1"); p("v_lshrrev_b32 v12, 1, v11"); p("v_and_b32 v11, 1, v11")
    p("v_lshrrev_b32 v13, 2, v10"); p("v_lshl_add_u32 v12, v12, 2, v13"); p("v_lshlrev_b32 v12, 7, v12")
    p("v_and_b32 v14, 3, v10"); p("v_lshrrev_b32 v15, 1, v14"); p("v_lshl_add_u32 v12, v15, 3, v12")
    p("v_and_b32 v14, 1, v14"); p("v_lshl_add_u32 v14, v14, 1, v11")
    p("v_lshrrev_b32 v15, 3, v10"); p("v_lshlrev_b32 v15, 2, v15")
    p("v_add_u32 v12, s%d, v12" % sM2)
    for cb in range(2):
        p("v_add_u32 v13, %d, v14" % (4 * cb)); p("v_xor_b32 v13, v13, v15")
        p("v_lshl_add_u32 v%d, v13, 4, v12" % (vTRA + cb))
        p("v_add_u32 v%d, 0x10000, v%d" % (vTRA + 2 + cb, vTRA + cb))
def w2_dma(step, slot):
    tag = "w%d" % step
    return [[("s_add_u32 s%d, s%d, %d" % (sWS, sWA, step * 16384), None),
             ("s_add_u32 m0, s%d, %d" % (sM2, slot * 8192), None),
             ("buffer_load_dwordx4 v%d, s[%d:%d], s%d offen lds" % (vD0, W2_, W2_ + 3, sWS), tag)],
            [("s_add_u32 s%d, s%d, %d" % (sWS, sWA, step * 16384), None),
             ("s_add_u32 m0, s%d, %d" % (sM2, slot * 8192 + 1024), None),
             ("buffer_load_dwordx4 v%d, s[%d:%d], s%d offen lds" % (vD1, W2_, W2_ + 3, sWS), tag)]]
def tr_reads(slot, dst, kind):
    out = []
    for cb in range(2):
        for rr in range(2):
            hi = slot >= 8
            out.append(("ds_read_b64_tr_b16 %s, v%d offset:%d" % (vr(dst + 4 * cb + 2 * rr, 2, kind), vTRA + cb + (2 if hi else 0), (slot - 8 * hi) * 8192 + rr * 1024), None))
    return out
def stash_reads(step, slot): return tr_reads(slot, STASH0 + 8 * (step - 12), 'a')
def h_loads(s):
    slot = s % OPT["depth_h"]
    return [("buffer_load_dwordx4 %s, v%d, s[%d:%d], s%d offen sc1" % (ar(HB + 8 * slot, 4), vH0, HF2_, HF2_ + 3, sHo), "h%d" % s),
            ("buffer_load_dwordx4 %s, v%d, s[%d:%d], s%d offen sc1" % (ar(HB + 8 * slot + 4, 4), vH1, HF2_, HF2_ + 3, sHo), "h%d" % s),
            ("s_add_u32 s%d, s%d, 1024" % (sHo, sHo), None)]
def fh_poll_issue(p):
    p("v_min_u32 v%d, 6, v1" % vFHA); p("v_lshlrev_b32 v%d, 7, v%d" % (vFHA, vFHA))
    p("s_lshr_b32 s83, s%d, 6" % sTok); p("s_mul_i32 s83, s83, 28"); p("s_mul_i32 s%d, s%d, 7" % (sT0, sW)); p("s_add_u32 s83, s83, s%d" % sT0)
    p("s_lshl_b32 s83, s83, 7"); p("s_add_u32 s83, s83, %d" % FL_FH)
    poll_issue(p, vFH, vFHA, 83, "fh")
def g2_h_start(p):
    DH = OPT["depth_h"]
    srd(p, HF2_, P_WS, SZ_HF, WS_HF)
    p.wait_tag("fh")
    poll_check(p, [vFH], [vFHA], [83])
    stamp(p, "g2_h_ready")
    for s in range(OPT.get("h_first", 2)):
        for t in h_loads(s): p(*t)
    if OPT["htouch"]:
        n = (NS - DH) * 16 // 8
        p("s_and_b32 s%d, s%d, 7" % (sT0, sR)); p("s_mul_i32 s%d, s%d, %d" % (sT0, sT0, n))
        p("v_add_u32 v10, s%d, v1" % sT0)
        p("v_lshrrev_b32 v11, 4, v10"); p("v_and_b32 v12, 7, v10"); p("v_lshlrev_b32 v12, 7, v12")
        p("v_lshl_add_u32 v12, v11, 10, v12")
        p("v_bfe_u32 v11, v10, 3, 1"); p("v_mul_u32_u24 v11, %d, v11" % (112 * 1024)); p("v_add_u32 v12, v12, v11")
        if n > 32: p("s_mov_b32 exec_hi, 0x%x" % ((1 << (n - 32)) - 1))
        else: p("s_mov_b64 exec, 0x%x" % ((1 << n) - 1))
        p("buffer_load_dword v59, v12, s[%d:%d], s%d offen sc1" % (HF2_, HF2_ + 3, sHo), "touch3")
        p("s_mov_b64 exec, -1")

vST2, vB2 = 16, 20
vY, vOWN = 144, 176
vXq, vZq, vRED, vOUT = 6, 7, 8, 9
def g2_main(p, name):
    DH = OPT["depth_h"]
    ACC = 64; FR = 32
    def ep_setup(p):
        srd(p, Q2_, P_Q, S * D * 2)
        srd(p, ZT2_, P_WS, SZ_ZT, WS_ZT); srd(p, ST2_, P_WS, SZ_ST, WS_ST); srd(p, B2_, P_B2, D * 2); srd(p, OUT_, P_OUT, S * D * 2)
    def ep_loads(p):
        p("v_lshrrev_b32 v10, 2, v1"); p("v_and_b32 v11, 3, v1")
        p("v_lshrrev_b32 v12, 2, v10"); p("v_xor_b32 v12, v12, v11")
        p("v_lshlrev_b32 v12, 4, v12"); p("v_lshl_add_u32 v13, v10, 10, v12")
        p("s_lshr_b32 s%d, s%d, 1" % (sT0, sW)); p("s_lshl_b32 s%d, s%d, 5" % (sT0, sT0)); p("s_add_u32 s%d, s%d, s%d" % (sT0, sT0, sTok))
        p("s_and_b32 s%d, s%d, 1" % (sT1, sW)); p("s_lshl_b32 s%d, s%d, 5" % (sT1, sT1)); p("s_add_u32 s%d, s%d, s%d" % (sT1, sT1, sCh))
        p("s_lshl_b32 s%d, s%d, 10" % (sXO, sT0)); p("s_lshl_b32 s%d, s%d, 1" % (sT2, sT1)); p("s_add_u32 s%d, s%d, s%d" % (sXO, sXO, sT2))
        p("s_lshl_b32 s%d, s%d, 11" % (sT3, sW))
        p("s_add_u32 m0, s%d, %d" % (sT3, XT))
        p("buffer_load_dwordx4 v13, s[%d:%d], s%d offen lds" % (Q2_, Q2_ + 3, sXO), "ep")
        p("s_add_u32 s7, s%d, 16384" % sXO)
        p("s_add_u32 m0, s%d, %d" % (sT3, XT + 1024))
        p("buffer_load_dwordx4 v13, s[%d:%d], s7 offen lds" % (Q2_, Q2_ + 3), "ep")
        p("s_lshl_b32 s%d, s%d, 4" % (sT0, sT0))
        p("v_and_b32 v14, 31, v1"); p("v_lshlrev_b32 v15, 4, v14")
        p("buffer_load_dwordx4 %s, v15, s[%d:%d], s%d offen sc1" % (vr(vST2, 4), ST2_, ST2_ + 3, sT0), "ep")
        p("v_lshrrev_b32 v15, 5, v1"); p("v_lshlrev_b32 v12, 5, v15")
        p("buffer_load_dwordx4 %s, v12, s[%d:%d], s%d offen" % (vr(vB2, 4), B2_, B2_ + 3, sT2), "ep")
        p("buffer_load_dwordx4 %s, v12, s[%d:%d], s%d offen offset:16" % (vr(vB2 + 4, 4), B2_, B2_ + 3, sT2), "ep")
        p("v_lshrrev_b32 v12, 2, v14"); p("v_and_b32 v12, 3, v12")
        p("v_lshlrev_b32 v15, 1, v15"); p("v_xor_b32 v15, v15, v12")
        p("v_lshlrev_b32 v15, 4, v15"); p("v_lshl_add_u32 v15, v14, 6, v15")
        p("v_add_u32 v15, s%d, v15" % sT3); p("v_add_u32 v%d, %d, v15" % (vXq, XT))
        p("v_lshrrev_b32 v15, 5, v1"); p("v_lshlrev_b32 v15, 5, v15"); p("v_lshl_add_u32 v%d, v14, 10, v15" % vOUT)
        p("v_add_u32 v%d, %d, v%d" % (vRED, RED, vH0))
    def z_loads(p):
        p("v_lshrrev_b32 v10, 2, v1"); p("v_and_b32 v11, 3, v1")
        p("v_lshlrev_b32 v12, 4, v11"); p("v_lshl_add_u32 v12, v10, 12, v12")
        p("s_and_b32 s%d, s%d, 1" % (sT1, sW)); p("s_lshl_b32 s%d, s%d, 5" % (sT1, sT1)); p("s_add_u32 s%d, s%d, s%d" % (sT1, sT1, sCh))
        p("s_lshl_b32 s%d, s%d, 12" % (sT0, sT1))
        p("s_lshr_b32 s%d, s%d, 1" % (sT1, sW)); p("s_lshl_b32 s%d, s%d, 5" % (sT1, sT1)); p("s_add_u32 s%d, s%d, s%d" % (sT1, sT1, sTok))
        p("s_lshl_b32 s%d, s%d, 1" % (sT1, sT1)); p("s_add_u32 s%d, s%d, s%d" % (sT0, sT0, sT1))
        p("buffer_load_dwordx4 %s, v12, s[%d:%d], s%d offen sc1" % (vr(128, 4), ZT2_, ZT2_ + 3, sT0), "z")
        p("s_add_u32 s%d, s%d, %d" % (sT0, sT0, 16 * 4096))
        p("buffer_load_dwordx4 %s, v12, s[%d:%d], s%d offen sc1" % (vr(132, 4), ZT2_, ZT2_ + 3, sT0), "z")
        p("v_lshrrev_b32 v12, 1, v10"); p("v_and_b32 v12, 3, v12"); p("v_xor_b32 v12, v12, v11")
        p("v_lshlrev_b32 v12, 4, v12"); p("v_lshl_add_u32 v12, v10, 6, v12")
        p("s_lshl_b32 s%d, s%d, 11" % (sT3, sW)); p("s_add_u32 s%d, s%d, %d" % (sT3, sT3, ZTT))
        p("v_add_u32 v%d, s%d, v12" % (vZq + 4, sT3))
        p("v_and_b32 v10, 15, v1"); p("v_lshrrev_b32 v12, 4, v1"); p("v_lshrrev_b32 v13, 1, v12"); p("v_and_b32 v12, 1, v12")
        p("v_lshrrev_b32 v14, 2, v10"); p("v_lshl_add_u32 v13, v13, 4, v14")
        p("v_and_b32 v15, 3, v10"); p("v_lshrrev_b32 v15, 1, v15"); p("v_lshl_add_u32 v15, v12, 1, v15")
        p("v_lshrrev_b32 v14, 1, v14"); p("v_xor_b32 v15, v15, v14")
        p("v_lshlrev_b32 v15, 4, v15"); p("v_lshl_add_u32 v15, v13, 6, v15")
        p("v_and_b32 v14, 1, v10"); p("v_lshl_add_u32 v15, v14, 3, v15")
        p("v_add_u32 v%d, s%d, v15" % (vZq, sT3))
        p("v_xor_b32 v5, 32, v%d" % vZq)
    def y_compute(p):
        XR_, ZR = 136, 164
        p("ds_write_b128 v%d, %s" % (vZq + 4, vr(128, 4))); p("ds_write_b128 v%d, %s offset:1024" % (vZq + 4, vr(132, 4)))
        p.wait_tag("ep")
        p("v_xor_b32 v10, 16, v%d" % vXq)
        p("ds_read_b128 %s, v%d" % (vr(XR_, 4), vXq)); p("ds_read_b128 %s, v10" % vr(XR_ + 4, 4))
        for m in range(4): p("ds_read_b64_tr_b16 %s, v%d offset:%d" % (vr(ZR + 2 * m, 2), vZq if m % 2 == 0 else 5, m * 256))
        mu, rs = vST2, vST2 + 1
        p("v_mul_f32 v%d, v%d, v%d" % (mu, mu, rs))
        for r_ in range(16):
            x, z, b = 48 + 3 * (r_ & 1), 49 + 3 * (r_ & 1), 50 + 3 * (r_ & 1)
            unpack(p, x, XR_ + (r_ >> 1), r_ & 1); unpack(p, z, ZR + (r_ >> 1), r_ & 1); unpack(p, b, vB2 + (r_ >> 1), r_ & 1)
            p("v_fma_f32 v%d, v%d, v%d, -v%d" % (vY + r_, x, rs, mu))
            p("v_add_f32 v%d, v%d, v%d" % (b, b, x))
            p("v_fma_f32 v%d, v%d, v%d, v%d" % (vY + r_, vY + r_, z, b))
    def reads(s): return [t for t, _ in tr_reads(s, FR + 8 * (s & 1), 'v')]
    def mfmas(s):
        slot = s % DH; out = []
        for cb in range(2):
            A = vr(FR + 8 * (s & 1) + 4 * cb, 4) if s < 12 else ar(STASH0 + 8 * (s - 12) + 4 * cb, 4)
            for tb in range(2):
                a = vr(ACC + 16 * (2 * tb + cb), 16)
                out.append("v_mfma_f32_32x32x16_bf16 %s, %s, %s, %s" % (a, A, ar(HB + 8 * slot + 4 * tb, 4), "0" if s == 0 else a))
        return out
    vFZ = 56
    def fz_issue(p):
        p("v_lshlrev_b32 v%d, 7, v1" % (vFZ + 2))
        p("s_lshr_b32 s84, s%d, 6" % sCh); p("s_lshl_b32 s84, s84, 1"); p("s_and_b32 s83, s%d, 1" % sW); p("s_add_u32 s84, s84, s83")
        p("s_lshl_b32 s84, s84, 13"); p("s_add_u32 s84, s84, %d" % FL_FZ)
        poll_issue(p, vFZ, vFZ + 2, 84, "fz")
    def fz_check(p):
        p.wait_tag("fz"); poll_check(p, [vFZ], [vFZ + 2], [84])
    S_FZ, S_ZL, S_Y = OPT.get("s_fz", 14), OPT.get("s_zl", 20), OPT.get("s_y", 25)
    yl = rec(y_compute)
    third = (len(yl) + 2) // 3
    extras = {1: rec(ep_setup), 2: rec(ep_loads), S_FZ: rec(fz_issue), S_ZL: [(fz_check, None)] + rec(z_loads),
              S_Y: yl[:third], S_Y + 1: yl[third:2 * third], S_Y + 2: yl[2 * third:]}
    p.wait(lg=0)
    p("s_barrier")
    p.wait_tag("w0")
    for t in reads(0): p(t)
    for s in range(NS):
        if s + 1 < 12:
            p.wait_tag("w%d" % (s + 1))
            for t in reads(s + 1): p(t)
        if s in (0, 7, 13, 20): stamp(p, "g2_s%d" % s)
        mf = mfmas(s)
        hl = h_loads(s + DH) if s + DH < NS else []
        ex = extras.get(s, [])
        q4 = (len(ex) + 3) // 4
        for i in range(4):
            p(mf[i])
            if i == 2:
                for t in hl[0:1]: p(*t)
            if i == 3:
                for t in hl[1:3]: p(*t)
            emit(p, ex[i * q4:(i + 1) * q4])
        if s == DH:
            p.wait_tag("zst")
            z_publish(p)
    stamp(p, "g2_mma_done")

def g2_epilogue(p, name):
    ACC = 64
    st = side_path_begin(p)
    for w in range(4):
        if w < 3:
            p("s_cmp_eq_u32 s%d, %d" % (sW, w))
            p("s_cbranch_scc0 %s_rw%d" % (name, w + 1))
        side_path_end(p, st)
        p("s_nop 7"); p("s_nop 3")
        for rel in range(1, 4):
            q = w ^ rel
            for rq in range(4):
                p("ds_write_b128 v%d, %s offset:%d" % (vRED, vr(ACC + 16 * q + 4 * rq, 4), q * 12288 + (rel - 1) * 4096 + rq * 1024))
        for i in range(16): p("v_add_f32 v%d, v%d, v%d" % (vY + i, vY + i, ACC + 16 * w + i))
        if w < 3:
            p("s_branch %s_rwd" % name)
            p.label("%s_rw%d" % (name, w + 1))
    p.label("%s_rwd" % name)
    p("s_mul_i32 s%d, s%d, 12288" % (sT0, sW)); p("v_add_u32 v10, s%d, v%d" % (sT0, vRED))
    p.wait(lg=0)
    p("s_barrier")
    stamp(p, "g2_red_bar")
    for sl in range(3):
        for rq in range(4):
            p("ds_read_b128 %s, v10 offset:%d" % (vr(ACC + 16 * sl + 4 * rq, 4), sl * 4096 + rq * 1024))
    PK = 160
    for r_ in range(16):
        p("v_add_f32 v%d, v%d, v%d" % (ACC + r_, ACC + r_, ACC + 16 + r_))
        p("v_add_f32 v%d, v%d, v%d" % (vY + r_, vY + r_, ACC + 32 + r_))
    for r_ in range(16):
        p("v_add_f32 v%d, v%d, v%d" % (vY + r_, vY + r_, ACC + r_))
        if r_ & 1: p("v_cvt_pk_bf16_f32 v%d, v%d, v%d" % (PK + (r_ >> 1), vY + r_ - 1, vY + r_))
        if r_ == 7: p("buffer_store_dwordx4 %s, v%d, s[%d:%d], s%d offen" % (vr(PK, 4), vOUT, OUT_, OUT_ + 3, sXO))
    p("buffer_store_dwordx4 %s, v%d, s[%d:%d], s%d offen offset:16" % (vr(PK + 4, 4), vOUT, OUT_, OUT_ + 3, sXO))

def flat(l): return [x for y in l for x in y]
def gen(name):
    p = Prog()
    prof_reset()
    p("s_cmp_ge_u32 s2, 256")
    p("s_cbranch_scc1 %s_end" % name)
    stamp(p, "rt0", True); stamp(p, "t0")
    p("s_memrealtime s[90:91]")
    load_kernargs(p)
    p("v_and_b32 v1, 63, v0"); p("v_lshrrev_b32 v2, 6, v0")
    p("s_and_b32 s%d, s2, 7" % sJ); p("s_lshr_b32 s%d, s2, 3" % sR)
    p("v_readfirstlane_b32 s%d, v2" % sW)
    p("v_mov_b32 v253, 0")
    p("s_waitcnt lgkmcnt(0)")
    srd(p, 92, P_DBG, 256)
    p("s_lshl_b32 s%d, s2, 2" % sT0); p("s_add_u32 s78, s%d, s%d" % (sT0, sW))
    p("s_cmp_eq_u32 s78, %d" % (248 * 4))
    p("s_cbranch_scc0 %s_n0" % name)
    st = side_path_begin(p)
    p("v_mov_b32 v250, s90"); p("v_mov_b32 v251, 1")
    p("s_mov_b64 exec, 1")
    p("buffer_store_dwordx2 v[250:251], v253, s[92:95], 0 offen sc1")
    p("s_mov_b64 exec, -1")
    side_path_end(p, st)
    p.label("%s_n0" % name)
    stamp(p, "karg")
    p_loads(p)
    tile_indices(p)
    touches_g1(p)
    after_loads = side_path_begin(p)
    p("s_cmp_ge_u32 s%d, 28" % sR)
    p("s_cbranch_scc1 %s_spare" % name)
    g1_dma_setup(p)
    for u in g1_dma_stage(0): emit(p, u)
    def common_srds(p):
        srd(p, FL_, P_WS, SZ_FLAG, WS_FLAG); srd(p, KVT_, P_WS, SZ_KVT, WS_KVT); srd(p, ST_, P_WS, SZ_ST, WS_ST); srd(p, CSP_, P_WS, SZ_CSP, WS_CSP)
    def b1_srd(p): srd(p, B1_, P_B1, F * 2)
    pre = rec(common_srds) + rec(b1_srd) + rec(g1_lds_setup) + rec(g2_setup)
    dm = g1_dma_stage(1) + g1_dma_stage(2)
    k = 0
    for i, it in enumerate(pre):
        emit(p, [it])
        while k < 8 and k * len(pre) < (i + 1) * 8: emit(p, dm[k]); k += 1
    stamp(p, "issued")
    kv = rec(kv_compute)
    for i, it in enumerate(kv):
        emit(p, [it])
        while k < 16 and (k - 8) * len(kv) < (i + 1) * 8 * 2: emit(p, dm[k]); k += 1
    while k < 16: emit(p, dm[k]); k += 1
    stamp(p, "kv_done")
    none = lambda p: None
    lg0 = lambda p: p.wait(lg=0)
    def pre4(p):
        nonce_check(p); fk_publish(p, "g1")
    def b1_load(p):
        p("v_and_b32 v14, 127, v0"); p("v_lshlrev_b32 v14, 1, v14"); p("s_lshl_b32 s84, s%d, 8" % sFT)
        p("buffer_load_ushort v%d, v14, s[%d:%d], s84 offen" % (vB1, B1_, B1_ + 3), "tab")
    def tab_done(p):
        p.wait_tag("tab"); tab_check(p); tab_partial(p)
    def tab_final(p):
        p("v_and_b32 v10, 127, v0"); p("v_lshlrev_b32 v10, 2, v10"); p("v_add_u32 v11, %d, v10" % CSQ_LDS); p("v_add_u32 v10, %d, v10" % TAB_LDS)
        for i in range(4): p("ds_read_b32 v%d, v11 offset:%d" % (20 + i, i * 512))
        p("v_lshlrev_b32 v%d, 16, v%d" % (vB1, vB1))
        p("v_add_f32 v20, v20, v21"); p("v_add_f32 v22, v22, v23"); p("v_add_f32 v20, v20, v22")
        p("ds_write_b32 v10, v20"); p("ds_write_b32 v10, v%d offset:512" % vB1)
    def fk_issue(p):
        fk_addr(p, True); poll_issue(p, vPK, vPA, 85, "fk")
    def fk_check(p):
        p.wait_tag("fk"); poll_check(p, [vPK], [vPA], [85])
    A = [w2_dma(12 + i, i) for i in range(12)]
    fill = {0: (lg0, none, rec(kv_stores) + rec(nonce_issue)),
            1: (none, none, rec(w2_touch) if OPT["w2touch"] == 1 else []),
            2: (none, none, rec(w2_touch) if OPT["w2touch"] == 2 else []),
            3: (none, none, rec(w2_touch) if OPT["w2touch"] == 3 else []),
            4: (lambda p: p.wait_tag("nonce"), pre4, []),
            5: (none, none, rec(tab_loads) + rec(b1_load) + flat(A[0:4])),
            6: (none, none, rec(fk_issue) + flat(A[4:6]) + [(tab_done, None)] + flat(A[6:8])),
            7: (lg0, none, rec(tab_final) + rec(conv_setup) + flat(A[8:10]) + [(fk_check, None)] + rec(conv_loads_regs) + flat(A[10:12]))}
    g1_main(p, fill)
    stamp(p, "g1_mfma_end")
    p.wait(lg=0)
    p("s_barrier")
    conv_loads_lds(p)
    stamp(p, "g1_mma_done")
    g1_epilogue(p, [])
    p.wait_tag("cv")
    p.label("%s_cfill" % name)
    stamp(p, "g1_epi_done")
    g2_setup_tr(p)
    conv_fill(p)
    def c0(p): p.wait_tag("w17")
    def c1(p):
        p.wait_tag("hst"); p.wait_tag("w23")
        p("s_cmp_ge_u32 s%d, 28" % sR)
        p("s_cbranch_scc1 %s_nohp" % name)
        st = side_path_begin(p)
        h_publish(p)
        side_path_end(p, st)
        p.label("%s_nohp" % name)
        p.wait(lg=0)
        stamp(p, "h_pub")
    def c2(p): p.wait(lg=0)
    def c3(p): p.wait(lg=0); p.wait_tag("w27")
    f0 = flat([stash_reads(12 + i, i) for i in range(6)])
    f1 = interleave(flat([stash_reads(18 + i, 6 + i) for i in range(6)]), flat([w2_dma(24 + i, i) for i in range(4)] + [w2_dma(4 + i, 4 + i) for i in range(2)]), 0.5)
    f2 = flat([w2_dma(6 + i, 6 + i) for i in range(6)])
    f3 = flat([stash_reads(24 + i, i) for i in range(4)]) + rec(fh_poll_issue)
    conv_main(p, [(c0, f0), (c1, f1), (c2, f2), (c3, f3)])
    p.wait(lg=0)
    for u in flat([w2_dma(i, i) for i in range(4)]): emit(p, u)
    g2_h_start(p)
    conv_finish(p, name, [t for s_ in range(OPT.get("h_first", 2), OPT["depth_h"]) for t in h_loads(s_)])
    stamp(p, "conv_done")
    z_stores(p)
    g2_main(p, name)
    g2_epilogue(p, name)
    stamp(p, "end")
    if common.PROF: p.wait(vm=0)
    stamp(p, "end_acked"); stamp(p, "rt1", True)
    prof_flush(p, sW)
    p("s_endpgm")
    p.label("%s_spare" % name)
    side_path_end(p, after_loads)
    sp_loads(p)
    common_srds(p)
    nonce_issue(p)
    sp_stats(p)
    sp_cs(p)
    p.wait_tag("nonce"); nonce_check(p)
    sp_stats_store(p)
    p.wait(lg=0)
    p("s_barrier")
    sp_cs_store(p)
    kv_compute(p)
    p.wait(lg=0)
    p("s_barrier")
    kv_stores(p)
    p.wait_tag("kst")
    p("s_barrier")
    fk_publish(p, "sp")
    g2_setup(p)
    if OPT["w2touch"]: w2_touch(p)
    for u in flat(A): emit(p, u)
    conv_setup(p)
    fk_addr(p, True)
    poll_issue(p, vPK, vPA, 85, "poll")
    p.wait(vm=0, lg=0)
    poll_check(p, [vPK], [vPA], [85])
    conv_loads_regs(p)
    conv_loads_lds(p)
    p.wait(vm=0)
    p("s_branch %s_cfill" % name)
    p.label("%s_end" % name)
    p("s_endpgm")
    return p.text(), 512, 256
```

```python
from common import *
import common

sN, sJ, sR, sW = 32, 33, 34, 35
sT0, sT1, sT2, sT3 = 36, 37, 38, 39
FL_ = 96
SC = " sc1"
NT = " nt"
OPT = dict(touch=True, w2touch=True, htouch=True, nt=True, noh=0, now=0, hplain=0, nofz=0)
def nt(): return NT if OPT["nt"] else ""

def unpack(p, dst, src, half):
    if half == 0: p("v_lshlrev_b32 v%d, 16, v%d" % (dst, src))
    else: p("v_and_b32 v%d, 0xffff0000, v%d" % (dst, src))

_uid = [0]
def flag_store(p, sOff):
    p("v_mov_b32 v252, s%d" % sN)
    p("v_mov_b32 v253, 0")
    p("s_mov_b64 exec, 1")
    p("buffer_store_dword v252, v253, s[%d:%d], s%d offen sc1" % (FL_, FL_ + 3, sOff), "flag")
    p("s_mov_b64 exec, -1")

def poll_issue(p, vdst, vaddr, sOff, tag):
    p("buffer_load_dword v%d, v%d, s[%d:%d], s%d offen sc1" % (vdst, vaddr, FL_, FL_ + 3, sOff), tag)

def poll_check(p, regs, vaddrs, sOffs):
    _uid[0] += 1; u = _uid[0]
    def cmp():
        p("v_cmp_ne_u32 vcc, s%d, v%d" % (sN, regs[0]))
        for r in regs[1:]:
            p("v_cmp_ne_u32 s[76:77], s%d, v%d" % (sN, r))
            p("s_nop 1")
            p("s_or_b64 vcc, vcc, s[76:77]")
        p("s_nop 4")
    cmp()
    p("s_cbranch_vccz Lp%d_ok" % u)
    saved = list(p.vm)
    p("s_mov_b32 s79, 0")
    p.label("Lp%d_loop" % u)
    p("s_sleep 2")
    for r, a, o in zip(regs, vaddrs, sOffs):
        p("buffer_load_dword v%d, v%d, s[%d:%d], s%d offen sc1" % (r, a, FL_, FL_ + 3, o))
    p.wait(vm=0)
    cmp()
    p("s_cbranch_vccz Lp%d_ok" % u)
    p("s_add_u32 s79, s79, 1")
    p("s_cmp_lt_u32 s79, 0x40000")
    p("s_cbranch_scc1 Lp%d_loop" % u)
    p.label("Lp%d_ok" % u)
    p.vm = saved

def get_nonce(p):
    DB_ = 40
    srd(p, DB_, P_DBG, 256)
    p("v_mov_b32 v253, 0")
    p.label("Lnonce")
    p("buffer_load_dwordx2 v[250:251], v253, s[%d:%d], 0 offen sc1" % (DB_, DB_ + 3))
    p.wait(vm=0)
    p("v_readfirstlane_b32 s%d, v251" % sT0)
    p("v_readfirstlane_b32 s%d, v250" % sN)
    p("s_cmp_eq_u32 s%d, 0" % sT0)
    p("s_cbranch_scc0 Lnonce_ok")
    p("s_sleep 2")
    p("s_branch Lnonce")
    p.label("Lnonce_ok")

def side_path_begin(p):
    return (list(p.vm), list(p.lg))
def side_path_end(p, st):
    p.vm, p.lg = list(st[0]), list(st[1])

def nonce_issue(p):
    p("v_mov_b32 v253, 0")
    p("buffer_load_dwordx2 v[250:251], v253, s[92:95], 0 offen sc1", "nonce")

def nonce_check(p):
    _uid[0] += 1; u = _uid[0]
    p("v_readfirstlane_b32 s%d, v251" % sT0)
    p("v_readfirstlane_b32 s%d, v250" % sN)
    p("s_cmp_eq_u32 s%d, 0" % sT0)
    p("s_cbranch_scc0 Ln%d_ok" % u)
    saved = list(p.vm)
    p("s_mov_b32 s79, 0")
    p.label("Ln%d_loop" % u)
    p("s_sleep 2")
    p("buffer_load_dwordx2 v[250:251], v253, s[92:95], 0 offen sc1")
    p.wait(vm=0)
    p("v_readfirstlane_b32 s%d, v251" % sT0)
    p("v_readfirstlane_b32 s%d, v250" % sN)
    p("s_add_u32 s79, s79, 1")
    p("s_cmp_lg_u32 s%d, 0" % sT0)
    p("s_cbranch_scc1 Ln%d_ok" % u)
    p("s_cmp_lt_u32 s79, 0x40000")
    p("s_cbranch_scc1 Ln%d_loop" % u)
    p.label("Ln%d_ok" % u)
    p.vm = saved

P_LDS, CSB_LDS, TAB_LDS, SK_LDS = 131072, 139264, 59392, 147456
sROW, sDR, sFT0 = 72, 73, 74
def p_loads(p):
    K_, V_, SK_, Q_, W1_ = 40, 44, 48, 52, 56
    srd(p, K_, P_K, S * D * 2); srd(p, V_, P_V, S * D * 2); srd(p, SK_, P_SK, D * 8)
    srd(p, Q_, P_Q, S * D * 2); srd(p, W1_, P_W1, D * F * 2)
    vC, vRR, vA = 3, 4, 5
    p("v_and_b32 v%d, 7, v1" % vC)
    p("v_lshrrev_b32 v%d, 3, v1" % vRR)
    p("s_lshl_b32 s%d, s%d, 6" % (sT0, sR)); p("s_lshl_b32 s%d, s%d, 4" % (sT1, sW))
    p("s_add_u32 s%d, s%d, s%d" % (sT0, sT0, sT1)); p("s_lshl_b32 s%d, s%d, 10" % (sT0, sT0))
    p("s_lshl_b32 s%d, s%d, 7" % (sT1, sJ)); p("s_add_u32 s%d, s%d, s%d" % (sT0, sT0, sT1))
    p("v_lshlrev_b32 v%d, 11, v%d" % (vA, vRR))
    p("v_lshl_add_u32 v%d, v%d, 4, v%d" % (vA, vC, vA))
    p("v_add_u32 v%d, s%d, v%d" % (vA, sT0, vA))
    KR, VR, SKR, XR, CR = 16, 36, 44, 60, 68
    for i in range(5): p("v_add_u32 v%d, %d, v%d" % (6 + i, (i - 3) * 1024, vA))
    for i in range(5): p(("buffer_load_dwordx4 %s, v%d, s[%d:%d], 0 offen" % (vr(KR + 4 * i, 4), 6 + i, K_, K_ + 3)) + nt())
    p(("buffer_load_dwordx4 %s, v%d, s[%d:%d], 0 offen" % (vr(VR, 4), vA, V_, V_ + 3)) + nt())
    p(("buffer_load_dwordx4 %s, v%d, s[%d:%d], 0 offen offset:1024" % (vr(VR + 4, 4), vA, V_, V_ + 3)) + nt())
    p("s_lshr_b32 s%d, s%d, 1" % (sT0, sJ)); p("s_lshl_b32 s%d, s%d, 9" % (sT0, sT0))
    p("s_and_b32 s%d, s%d, 1" % (sT1, sJ)); p("s_lshl_b32 s%d, s%d, 5" % (sT1, sT1))
    p("s_add_u32 s%d, s%d, s%d" % (sT1, sT1, sR)); p("s_lshl_b32 s%d, s%d, 3" % (sT1, sT1))
    p("s_add_u32 s%d, s%d, s%d" % (sT0, sT0, sT1)); p("s_lshl_b32 s%d, s%d, 1" % (sT1, sW))
    p("s_add_u32 s%d, s%d, s%d" % (sROW, sT0, sT1))
    p("s_lshl_b32 s%d, s%d, 10" % (sT0, sROW))
    p("v_lshlrev_b32 v12, 4, v1")
    p(("buffer_load_dwordx4 %s, v12, s[%d:%d], s%d offen" % (vr(XR, 4), Q_, Q_ + 3, sT0)) + nt())
    p(("buffer_load_dwordx4 %s, v12, s[%d:%d], s%d offen offset:1024" % (vr(XR + 4, 4), Q_, Q_ + 3, sT0)) + nt())
    p("s_mul_i32 s%d, s%d, 37" % (sT0, sR)); p("s_lshr_b32 s%d, s%d, 8" % (sT0, sT0))
    p("s_mul_i32 s%d, s%d, 7" % (sT1, sT0)); p("s_sub_u32 s%d, s%d, s%d" % (sT1, sR, sT1))
    p("s_lshr_b32 s%d, s%d, 1" % (sT2, sJ)); p("s_lshl_b32 s%d, s%d, 2" % (sT2, sT2))
    p("s_add_u32 s%d, s%d, s%d" % (sDR, sT2, sT0))
    p("s_and_b32 s%d, s%d, 1" % (sT2, sJ)); p("s_mul_i32 s%d, s%d, 7" % (sT2, sT2))
    p("s_add_u32 s%d, s%d, s%d" % (sFT0, sT2, sT1))
    p("s_lshl_b32 s%d, s%d, 5" % (sT0, sDR)); p("s_lshl_b32 s%d, s%d, 3" % (sT1, sW))
    p("s_add_u32 s%d, s%d, s%d" % (sT0, sT0, sT1)); p("s_mul_i32 s%d, s%d, 3584" % (sT0, sT0))
    p("s_lshl_b32 s%d, s%d, 8" % (sT1, sFT0)); p("s_add_u32 s%d, s%d, s%d" % (sT0, sT0, sT1))
    p("v_lshrrev_b32 v13, 4, v1"); p("v_mul_u32_u24 v13, 3584, v13")
    p("v_and_b32 v14, 15, v1"); p("v_lshl_add_u32 v13, v14, 4, v13")
    p(("buffer_load_dwordx4 %s, v13, s[%d:%d], s%d offen" % (vr(CR, 4), W1_, W1_ + 3, sT0)) + nt())
    p("s_add_u32 s%d, s%d, %d" % (sT1, sT0, 4 * 3584))
    p(("buffer_load_dwordx4 %s, v13, s[%d:%d], s%d offen" % (vr(CR + 4, 4), W1_, W1_ + 3, sT1)) + nt())
    p("s_lshl_b32 s%d, s%d, 9" % (sT1, sJ))
    p("v_and_b32 v11, 31, v1"); p("v_lshlrev_b32 v11, 4, v11")
    p("buffer_load_dwordx4 %s, v11, s[%d:%d], s%d offen" % (vr(SKR, 4), SK_, SK_ + 3, sT1))

def touches(p):
    if not OPT["touch"]: return
    SSMT_ = 8
    srd(p, SSMT_, P_SSM, D * S * 2)
    p("s_lshl_b32 s%d, s%d, 2" % (sT2, sR)); p("s_add_u32 s%d, s%d, s%d" % (sT2, sT2, sW))
    p("v_lshlrev_b32 v9, 7, v1")
    p("s_lshr_b32 s%d, s%d, 1" % (sT0, sJ)); p("s_lshl_b32 s%d, s%d, 19" % (sT0, sT0))
    p("s_lshl_b32 s%d, s%d, 12" % (sT1, sT2)); p("s_add_u32 s%d, s%d, s%d" % (sT0, sT0, sT1))
    p("s_mov_b32 exec_hi, 0")
    p(("buffer_load_dword v170, v9, s[52:55], s%d offen" % sT0) + nt(), "touch")
    p("s_mov_b64 exec, -1")
    p("v_mul_u32_u24 v10, 4682, v1"); p("v_lshrrev_b32 v10, 16, v10")
    p("v_mul_u32_u24 v11, 14, v10"); p("v_sub_u32 v11, v1, v11")
    p("v_mul_u32_u24 v10, 3584, v10"); p("v_lshl_add_u32 v10, v11, 7, v10")
    p("s_mul_i32 s%d, s%d, %d" % (sT0, sT2, 4 * 3584)); p("s_and_b32 s%d, s%d, 1" % (sT1, sJ))
    p("s_mul_i32 s%d, s%d, 1792" % (sT1, sT1)); p("s_add_u32 s%d, s%d, s%d" % (sT0, sT0, sT1))
    p("s_mov_b32 exec_hi, 0x00ffffff")
    p(("buffer_load_dword v171, v10, s[56:59], s%d offen" % sT0) + nt(), "touch")
    p("s_mov_b64 exec, -1")
    p("s_lshl_b32 s%d, s%d, 6" % (sT0, sJ)); p("s_lshl_b32 s%d, s%d, 1" % (sT1, sR))
    p("s_add_u32 s%d, s%d, s%d" % (sT0, sT0, sT1)); p("s_lshl_b32 s%d, s%d, 12" % (sT0, sT0))
    p("s_lshl_b32 s%d, s%d, 11" % (sT1, sW)); p("s_add_u32 s%d, s%d, s%d" % (sT0, sT0, sT1))
    p("s_mov_b64 exec, 0xffff")
    p(("buffer_load_dword v172, v9, s[%d:%d], s%d offen" % (SSMT_, SSMT_ + 3, sT0)) + nt(), "touch")
    p("s_mov_b64 exec, -1")

def w2_touch():
    if not OPT["w2touch"]: return []
    return [("s_mov_b32 s8, s%d" % P_W2, None), ("s_mov_b32 s9, s%d" % (P_W2 + 1), None), ("s_mov_b32 s10, 0x%x" % (F * D * 2), None), ("s_mov_b32 s11, 0x20000", None),
            ("s_lshl_b32 s%d, s%d, 2" % (sT2, sR), None), ("s_add_u32 s%d, s%d, s%d" % (sT2, sT2, sW), None),
            ("s_mul_i32 s%d, s%d, 14336" % (sT2, sT2), None),
            ("v_lshlrev_b32 v9, 7, v1", None),
            ("buffer_load_dword v173, v9, s[8:11], s%d offen" % sT2 + nt(), "touch2"),
            ("s_add_u32 s%d, s%d, 8192" % (sT2, sT2), None),
            ("s_mov_b32 exec_hi, 0xffff", None),
            ("buffer_load_dword v174, v9, s[8:11], s%d offen" % sT2 + nt(), "touch2"),
            ("s_mov_b64 exec, -1", None)]

def p_compute(p):
    vC, vRR = 3, 4
    KR, VR, SKR, XR, CR = 16, 36, 44, 60, 68
    T, RES = 80, 100
    p("s_lshl_b32 s%d, s%d, 9" % (sT0, sW)); p("s_add_u32 s%d, s%d, %d" % (sT0, sT0, SK_LDS))
    p("v_and_b32 v11, 31, v1"); p("v_lshlrev_b32 v11, 4, v11"); p("v_add_u32 v11, s%d, v11" % sT0)
    p("v_lshlrev_b32 v2, 6, v%d" % vC); p("v_add_u32 v2, s%d, v2" % sT0)
    p("ds_write_b128 v11, %s" % vr(SKR, 4))
    for rr in range(2):
        p("v_mov_b32 v%d, 0" % (T + 4 * rr)); p("v_mov_b32 v%d, 0" % (T + 4 * rr + 1))
    p("s_mov_b32 s75, 0x3f803f80")
    for i in range(4):
        for rr in range(2):
            sS, sQ = T + 4 * rr, T + 4 * rr + 1
            p("v_dot2_f32_bf16 v%d, v%d, s75, v%d" % (sS, XR + 4 * rr + i, sS))
            p("v_dot2_f32_bf16 v%d, v%d, v%d, v%d" % (sQ, XR + 4 * rr + i, XR + 4 * rr + i, sQ))
    p.wait(lg=0)
    for i in range(4): p("ds_read_b128 %s, v2 offset:%d" % (vr(SKR + 4 * i, 4), 16 * i))
    for ctrl in ("row_shr:1 row_mask:0xf", "row_shr:2 row_mask:0xf", "row_shr:4 row_mask:0xf", "row_shr:8 row_mask:0xf",
                 "row_bcast:15 row_mask:0xa", "row_bcast:31 row_mask:0xc"):
        for q in (T, T + 1, T + 4, T + 5):
            p("v_add_f32_dpp v%d, v%d, v%d %s bank_mask:0xf" % (q, q, q, ctrl))
    for rr in range(2):
        sS, sQ = T + 4 * rr, T + 4 * rr + 1
        p("v_mul_f32 v%d, 0x3b000000, v%d" % (sS, sS)); p("v_mul_f32 v%d, 0x3b000000, v%d" % (sQ, sQ))
    for rr in range(2):
        sS, sQ = T + 4 * rr, T + 4 * rr + 1
        p("v_fma_f32 v%d, -v%d, v%d, v%d" % (sQ, sS, sS, sQ))
        p("v_max_f32 v%d, 0, v%d" % (sQ, sQ))
        p("v_add_f32 v%d, 0x3727c5ac, v%d" % (sQ, sQ))
        p("v_rsq_f32 v%d, v%d" % (sQ, sQ))
    U = 88
    p("s_mov_b32 s76, 0x00003f80"); p("s_mov_b32 s77, 0x3f800000")
    for i in range(4):
        p("v_dot2_f32_bf16 v%d, v%d, s76, 0" % (U + 2 * i, CR + i)); p("v_dot2_f32_bf16 v%d, v%d, s77, 0" % (U + 2 * i + 1, CR + i))
    for i in range(4):
        p("v_dot2_f32_bf16 v%d, v%d, s76, v%d" % (U + 2 * i, CR + 4 + i, U + 2 * i)); p("v_dot2_f32_bf16 v%d, v%d, s77, v%d" % (U + 2 * i + 1, CR + 4 + i, U + 2 * i + 1))
    p("v_lshrrev_b32 v6, 4, v1"); p("s_lshl_b32 s%d, s%d, 2" % (sT0, sW))
    p("v_add_u32 v6, s%d, v6" % sT0); p("v_lshlrev_b32 v6, 9, v6"); p("v_lshl_add_u32 v6, v14, 5, v6")
    p("v_add_u32 v6, %d, v6" % CSB_LDS)
    p("ds_write_b128 v6, %s" % vr(U, 4)); p("ds_write_b128 v6, %s offset:16" % vr(U + 4, 4))
    p("s_mov_b32 s76, 0x05040100"); p("s_mov_b32 s77, 0x07060302")
    A = 108
    for e in range(8):
        dw, hf = e >> 1, e & 1
        sel = 76 + hf
        K = lambda i: KR + 4 * i + dw
        a = A + 8 * (e & 1)
        p("v_perm_b32 v%d, v%d, v%d, s%d" % (a + 0, K(2), K(3), sel))
        p("v_perm_b32 v%d, v%d, v%d, s%d" % (a + 1, K(0), K(1), sel))
        p("v_perm_b32 v%d, v%d, v%d, s%d" % (a + 2, K(3), K(4), sel))
        p("v_perm_b32 v%d, v%d, v%d, s%d" % (a + 3, K(1), K(2), sel))
        p("v_dot2_f32_bf16 v%d, v%d, v%d, 0" % (a + 4, a + 0, SKR + 2 * e))
        p("v_dot2_f32_bf16 v%d, v%d, v%d, 0" % (a + 5, a + 2, SKR + 2 * e))
        unpack(p, a + 6, VR + dw, hf); unpack(p, a + 7, VR + 4 + dw, hf)
        p("v_dot2_f32_bf16 v%d, v%d, v%d, v%d" % (a + 4, a + 1, SKR + 2 * e + 1, a + 4))
        p("v_dot2_f32_bf16 v%d, v%d, v%d, v%d" % (a + 5, a + 3, SKR + 2 * e + 1, a + 5))
        p("v_mul_f32 v%d, v%d, v%d" % (a + 4, a + 4, a + 6)); p("v_mul_f32 v%d, v%d, v%d" % (a + 5, a + 5, a + 7))
        p("v_cvt_pk_bf16_f32 v%d, v%d, v%d" % (RES + e, a + 5, a + 4))
    p("s_lshl_b32 s%d, s%d, 3" % (sT0, sW)); p("s_sub_u32 s%d, 31, s%d" % (sT0, sT0))
    p("v_sub_u32 v15, s%d, v%d" % (sT0, vRR))
    p("v_lshrrev_b32 v6, 2, v15"); p("v_xor_b32 v6, v6, v%d" % vC)
    p("v_and_b32 v15, 3, v15"); p("v_lshlrev_b32 v15, 2, v15")
    p("v_lshl_add_u32 v15, v6, 4, v15"); p("v_lshl_add_u32 v15, v%d, 10, v15" % vC)
    p("v_add_u32 v15, %d, v15" % P_LDS)
    for e in range(8): p("ds_write_b32 v15, v%d offset:%d" % (RES + e, e * 128))
    p("s_lshl_b32 s%d, s%d, 4" % (sT0, sW))
    p("v_add_u32 v6, s%d, v%d" % (sT0, vRR))
    p("v_lshlrev_b32 v7, 7, v6"); p("v_lshl_add_u32 v7, v%d, 4, v7" % vC); p("v_add_u32 v7, %d, v7" % P_LDS)
    p("v_and_b32 v11, 127, v0"); p("v_lshlrev_b32 v12, 2, v11"); p("v_add_u32 v12, %d, v12" % CSB_LDS)
    p.wait(lg=0)
    p("s_barrier")
    p("ds_read_b128 v[16:19], v7"); p("ds_read_b128 v[20:23], v7 offset:1024")
    for i in range(16): p("ds_read_b32 v%d, v12 offset:%d" % (24 + i, i * 512))
    p("v_lshlrev_b32 v8, 12, v6"); p("s_lshl_b32 s%d, s%d, 1" % (sT1, sW))
    p("v_xor_b32 v9, s%d, v%d" % (sT1, vC)); p("v_lshl_add_u32 v9, v9, 4, v8")
    p("s_add_u32 s%d, s%d, 1" % (sT1, sT1))
    p("v_xor_b32 v10, s%d, v%d" % (sT1, vC)); p("v_lshl_add_u32 v10, v10, 4, v8"); p("v_add_u32 v10, 0x8000, v10")
    for i in range(1, 16, 2):
        if i == 1: p("v_add_f32 v24, v24, v25")
        else: p("v_add_f32 v%d, v%d, v%d" % (24 + i - 1, 24 + i - 1, 24 + i))
    for i in (2, 6, 10, 4, 12, 8):
        pass
    p("v_add_f32 v24, v24, v26"); p("v_add_f32 v28, v28, v30"); p("v_add_f32 v32, v32, v34"); p("v_add_f32 v36, v36, v38")
    p("v_add_f32 v24, v24, v28"); p("v_add_f32 v32, v32, v36"); p("v_add_f32 v24, v24, v32")

def p_stores(p):
    KVT_, ST_, CSP_ = 60, 64, 68
    T = 80
    srd(p, KVT_, P_WS, SZ_KVT, WS_KVT); srd(p, ST_, P_WS, SZ_ST, WS_ST); srd(p, CSP_, P_WS, SZ_CSP, WS_CSP)
    for q in (T + 2, T + 3, T + 6, T + 7, 25): p("v_mov_b32 v%d, s%d" % (q, sN))
    p("s_lshl_b32 s%d, s%d, 6" % (sT0, sROW))
    p("s_mov_b32 exec_lo, 0"); p("s_mov_b32 exec_hi, 0x80000000")
    p("buffer_store_dwordx4 %s, v253, s[%d:%d], s%d offen sc1" % (vr(T, 4), ST_, ST_ + 3, sT0), "pst")
    p("buffer_store_dwordx4 %s, v253, s[%d:%d], s%d offen offset:16 sc1" % (vr(T + 4, 4), ST_, ST_ + 3, sT0), "pst")
    p("s_mov_b64 exec, -1")
    p("s_mul_i32 s%d, s%d, %d" % (sT0, sDR, 1792 * 8)); p("s_lshl_b32 s%d, s%d, 10" % (sT1, sFT0))
    p("s_add_u32 s%d, s%d, s%d" % (sT0, sT0, sT1))
    p("s_cmp_lt_u32 s%d, 28" % sR); p("s_cselect_b32 s%d, s%d, 0x7f000000" % (sT0, sT0))
    p("s_cmp_lt_u32 s%d, 2" % sW); p("s_cselect_b32 s%d, s%d, 0x7f000000" % (sT0, sT0))
    p("v_lshlrev_b32 v11, 3, v11")
    p("buffer_store_dwordx2 v[24:25], v11, s[%d:%d], s%d offen sc1" % (CSP_, CSP_ + 3, sT0), "pst")
    p("s_lshl_b32 s%d, s%d, 18" % (sT0, sJ)); p("s_lshl_b32 s%d, s%d, 7" % (sT1, sR))
    p("s_sub_u32 s%d, s%d, s%d" % (sT0, sT0, sT1)); p("s_add_u32 s%d, s%d, 3968" % (sT0, sT0))
    p("buffer_store_dwordx4 v[16:19], v9, s[%d:%d], s%d offen sc1" % (KVT_, KVT_ + 3, sT0), "pst")
    p("buffer_store_dwordx4 v[20:23], v10, s[%d:%d], s%d offen sc1" % (KVT_, KVT_ + 3, sT0), "pst")

def p_publish(p, name):
    p("s_cmp_eq_u32 s%d, 0" % sW)
    p("s_cbranch_scc0 %s_nofk" % name)
    st = side_path_begin(p)
    p("s_lshl_b32 s%d, s%d, 5" % (sT0, sJ)); p("s_add_u32 s%d, s%d, s%d" % (sT0, sT0, sR))
    p("s_lshl_b32 s%d, s%d, 7" % (sT0, sT0))
    if FL_FK: p("s_add_u32 s%d, s%d, %d" % (sT0, sT0, FL_FK))
    flag_store(p, sT0)
    side_path_end(p, st)
    p.label("%s_nofk" % name)

sRB, sFT = sDR, sFT0
sXo, sWo, sM = 80, 81, 82
GQ_, GW1_ = 52, 56
vX, vWd, vXA, vWA = 192, 196, 200, 208
def g1_dma_setup(p):
    p("v_lshrrev_b32 v10, 3, v1"); p("v_and_b32 v11, 7, v1"); p("v_lshrrev_b32 v12, 1, v10")
    for ii in range(4):
        p("v_add_u32 v13, %d, v12" % (4 * (ii & 1))); p("v_xor_b32 v13, v13, v11")
        p("v_lshlrev_b32 v13, 4, v13"); p("v_lshl_add_u32 v13, v10, 10, v13")
        p("v_add_u32 v%d, %d, v13" % (vX + ii, ii * 8192))
    p("v_lshrrev_b32 v10, 4, v1"); p("v_and_b32 v11, 15, v1"); p("v_lshlrev_b32 v12, 2, v10")
    p("v_xor_b32 v12, v12, v11"); p("v_lshlrev_b32 v12, 4, v12")
    p("v_mul_u32_u24 v13, 3584, v10"); p("v_add_u32 v13, v13, v12")
    for ii in range(4): p("v_add_u32 v%d, %d, v13" % (vWd + ii, ii * 4 * 3584))
    p("s_lshl_b32 s%d, s%d, 17" % (sXo, sRB)); p("s_lshl_b32 s%d, s%d, 15" % (sT0, sW))
    p("s_add_u32 s%d, s%d, s%d" % (sXo, sXo, sT0))
    p("s_mul_i32 s%d, s%d, %d" % (sWo, sW, 16 * 3584)); p("s_lshl_b32 s%d, s%d, 8" % (sT0, sFT))
    p("s_add_u32 s%d, s%d, s%d" % (sWo, sWo, sT0))
    p("s_lshl_b32 s%d, s%d, 12" % (sM, sW))
def g1_dma_stage(s):
    out = []; slot = s % 4
    for ii in range(4):
        out.append(("s_add_u32 m0, s%d, %d" % (sM, slot * 32768 + ii * 1024), None))
        out.append(("buffer_load_dwordx4 v%d, s[%d:%d], s%d offen lds" % (vX + ii, GQ_, GQ_ + 3, sXo), "st%d" % s))
    for ii in range(4):
        out.append(("s_add_u32 m0, s%d, %d" % (sM, slot * 32768 + 16384 + ii * 1024), None))
        out.append(("buffer_load_dwordx4 v%d, s[%d:%d], s%d offen lds" % (vWd + ii, GW1_, GW1_ + 3, sWo), "st%d" % s))
    out.append(("s_add_u32 s%d, s%d, 128" % (sXo, sXo), None))
    out.append(("s_add_u32 s%d, s%d, %d" % (sWo, sWo, 64 * 3584), None))
    return out

G1_ACC = 64
vCS, vB1, vST = 128, 160, 212
vPK = 161
vPA = 162
def g1_main(p):
    B1_, ST_, CSP_ = 40, 64, 68
    srd(p, B1_, P_B1, F * 2)
    p("v_and_b32 v10, 31, v1"); p("v_lshrrev_b32 v11, 5, v1")
    p("v_lshrrev_b32 v12, 1, v10"); p("v_and_b32 v12, 7, v12"); p("v_xor_b32 v12, v12, v11")
    p("s_lshr_b32 s%d, s%d, 1" % (sT1, sW)); p("s_lshl_b32 s%d, s%d, 13" % (sT1, sT1))
    p("v_lshlrev_b32 v13, 7, v10"); p("v_add_u32 v13, s%d, v13" % sT1)
    for jj in range(4):
        p("v_xor_b32 v14, %d, v12" % (2 * jj))
        p("v_lshl_add_u32 v%d, v14, 4, v13" % (vXA + jj))
        p("v_add_u32 v%d, 0x10000, v%d" % (vXA + 4 + jj, vXA + jj))
    p("v_and_b32 v10, 15, v1"); p("v_lshrrev_b32 v11, 4, v1"); p("v_lshrrev_b32 v12, 1, v11")
    p("v_and_b32 v11, 1, v11"); p("v_lshrrev_b32 v13, 2, v10")
    p("v_lshl_add_u32 v12, v12, 3, v13"); p("v_lshlrev_b32 v12, 8, v12")
    p("v_and_b32 v14, 1, v10"); p("v_lshl_add_u32 v12, v14, 3, v12"); p("v_add_u32 v12, 16384, v12")
    p("v_and_b32 v14, 3, v10"); p("v_lshrrev_b32 v14, 1, v14"); p("v_lshl_add_u32 v14, v11, 1, v14")
    p("s_and_b32 s%d, s%d, 1" % (sT1, sW)); p("s_lshl_b32 s%d, s%d, 3" % (sT1, sT1))
    p("v_add_u32 v14, s%d, v14" % sT1); p("v_lshlrev_b32 v13, 2, v13")
    for fb in range(2):
        p("v_add_u32 v15, %d, v14" % (4 * fb)); p("v_xor_b32 v15, v15, v13")
        p("v_lshl_add_u32 v%d, v15, 4, v12" % (vWA + fb))
        p("v_add_u32 v%d, 0x10000, v%d" % (vWA + 2 + fb, vWA + fb))
    ACC = G1_ACC
    for i in range(64): p("v_mov_b32 v%d, 0" % (ACC + i))
    FR = 32
    def reads(g):
        s, jj = g // 4, g % 4
        slot = s % 4; hi = slot >= 2; so = (slot & 1) * 32768
        f = FR + 16 * (g & 1); out = []
        for fb in range(2):
            for rr in range(2):
                out.append("ds_read_b64_tr_b16 %s, v%d offset:%d" % (vr(f + 4 * fb + 2 * rr, 2), vWA + fb + (2 if hi else 0), so + jj * 4096 + rr * 1024))
        for tb in range(2):
            out.append("ds_read_b128 %s, v%d offset:%d" % (vr(f + 8 + 4 * tb, 4), vXA + jj + (4 if hi else 0), so + tb * 4096))
        return out
    def mfmas(g):
        f = FR + 16 * (g & 1); out = []
        for fb in range(2):
            for tb in range(2):
                a = ACC + 16 * (2 * fb + tb)
                out.append("v_mfma_f32_32x32x16_bf16 %s, %s, %s, %s" % (vr(a, 16), vr(f + 4 * fb, 4), vr(f + 8 + 4 * tb, 4), vr(a, 16)))
        return out
    def tab_loads():
        p("v_and_b32 v10, 127, v0"); p("v_lshlrev_b32 v11, 3, v10")
        p("s_lshl_b32 s83, s%d, 10" % sFT)
        for i in range(16):
            p("buffer_load_dwordx2 %s, v11, s[%d:%d], s83 offen sc1" % (vr(vCS + 2 * i, 2), CSP_, CSP_ + 3), "tab")
            p("s_add_u32 s83, s83, %d" % (1792 * 8))
        p("s_lshr_b32 s%d, s%d, 1" % (sT1, sW)); p("s_lshl_b32 s%d, s%d, 6" % (sT1, sT1))
        p("s_lshl_b32 s83, s%d, 7" % sRB); p("s_add_u32 s83, s83, s%d" % sT1); p("s_lshl_b32 s83, s83, 6")
        p("v_and_b32 v12, 30, v1"); p("v_lshlrev_b32 v12, 6, v12"); p("v_and_b32 v13, 1, v1"); p("v_lshl_add_u32 v12, v13, 4, v12")
        p("buffer_load_dwordx4 %s, v12, s[%d:%d], s83 offen sc1" % (vr(vST, 4), ST_, ST_ + 3), "tab")
        p("buffer_load_dwordx4 %s, v12, s[%d:%d], s83 offen offset:2048 sc1" % (vr(vST + 4, 4), ST_, ST_ + 3), "tab")
    def tab_check():
        _uid[0] += 1; u = _uid[0]
        def cmp():
            tags = [vCS + 2 * i + 1 for i in range(16)] + [vST + 2, vST + 6]
            p("v_min3_u32 v10, v%d, v%d, v%d" % tuple(tags[0:3])); p("v_max3_u32 v11, v%d, v%d, v%d" % tuple(tags[0:3]))
            for i in range(3, 17, 2):
                p("v_min3_u32 v10, v10, v%d, v%d" % (tags[i], tags[i + 1])); p("v_max3_u32 v11, v11, v%d, v%d" % (tags[i], tags[i + 1]))
            p("v_min_u32 v10, v10, v%d" % tags[17]); p("v_max_u32 v11, v11, v%d" % tags[17])
            p("v_cmp_ne_u32 vcc, s%d, v10" % sN); p("v_cmp_ne_u32 s[76:77], s%d, v11" % sN)
            p("s_or_b64 vcc, vcc, s[76:77]"); p("s_nop 4")
        cmp()
        p("s_cbranch_vccz Lt%d_ok" % u)
        saved = (list(p.vm), list(p.lg))
        p("s_mov_b32 s79, 0")
        p.label("Lt%d_loop" % u)
        p("s_sleep 2")
        tab_loads()
        p.wait(vm=0)
        cmp()
        p("s_cbranch_vccz Lt%d_ok" % u)
        p("s_add_u32 s79, s79, 1"); p("s_cmp_lt_u32 s79, 0x40000"); p("s_cbranch_scc1 Lt%d_loop" % u)
        p.label("Lt%d_ok" % u)
        p.vm, p.lg = saved
    for s in range(8):
        p.wait_tag("st%d" % s)
        if s == 3: p.wait_tag("pst")
        p("s_barrier")
        stamp(p, "g1_st%d" % s) if s in (0, 4) else None
        if s == 3: p_publish(p, 'g1')
        if s == 5:
            tab_loads()
            p("v_lshlrev_b32 v12, 1, v10"); p("s_lshl_b32 s%d, s%d, 8" % (sT0, sFT))
            p("buffer_load_ushort v%d, v12, s[%d:%d], s%d offen" % (vB1, B1_, B1_ + 3, sT0), "tab")
        if s == 7:
            fk_addr(p)
            poll_issue(p, vPK, vPA + 1, 85, "poll")
        dm = g1_dma_stage(s + 3) if (1 <= s and s + 3 < 8) else []
        if s == 2: dm = dm + w2_touch()
        units = []; cur = []
        for it in dm:
            cur.append(it)
            if it[0].startswith("buffer_"): units.append(cur); cur = []
        if cur:
            if units: units[-1] += cur
            else: units.append(cur)
        ui = 0; k = 0
        nm = 16 if s > 0 else 12
        for jj in range(4):
            g = 4 * s + jj
            rd = reads(g)
            if g == 0:
                for t in rd: p(t)
                continue
            mf = mfmas(g - 1)
            for q, t in enumerate(mf):
                p(t)
                for r_ in rd[2 * q:2 * q + 2]: p(r_)
                k += 1
                while ui < len(units) and ui * nm < k * len(units):
                    for it in units[ui]: p(*it)
                    ui += 1
            for r_ in rd[8:]: p(r_)
        while ui < len(units):
            for it in units[ui]: p(*it)
            ui += 1
    for t in mfmas(31): p(t)
    p.wait(vm=0)
    stamp(p, "g1_mfma_end")
    tab_check()
    stamp(p, "tab_ok")
    for i in range(0, 16, 2): p("v_add_f32 v%d, v%d, v%d" % (vCS + 2 * i, vCS + 2 * i, vCS + 2 * i + 2))
    for i in range(0, 16, 4): p("v_add_f32 v%d, v%d, v%d" % (vCS + 2 * i, vCS + 2 * i, vCS + 2 * i + 4))
    p("v_add_f32 v%d, v%d, v%d" % (vCS, vCS, vCS + 8)); p("v_add_f32 v%d, v%d, v%d" % (vCS + 16, vCS + 16, vCS + 24))
    p("v_add_f32 v%d, v%d, v%d" % (vCS, vCS, vCS + 16))
    p("v_lshlrev_b32 v%d, 16, v%d" % (vB1, vB1))
    p("v_and_b32 v10, 127, v0"); p("v_lshlrev_b32 v10, 2, v10"); p("v_add_u32 v10, %d, v10" % TAB_LDS)
    p("ds_write_b32 v10, v%d" % vCS); p("ds_write_b32 v10, v%d offset:512" % vB1)
    poll_check(p, [vPK], [vPA + 1], [85])
    stamp(p, "fk_ok")
    conv_loads(p)
    p.wait(lg=0)
    p("s_barrier")

def fk_addr(p):
    p("v_min_u32 v%d, 31, v1" % (vPA + 1)); p("v_lshlrev_b32 v%d, 7, v%d" % (vPA + 1, vPA + 1))
    p("s_lshl_b32 s85, s%d, 12" % sJ)
    if FL_FK: p("s_add_u32 s85, s85, %d" % FL_FK)

def g1_epilogue(p):
    HF_ = 44
    srd(p, HF_, P_WS, SZ_HF, WS_HF)
    ACC = G1_ACC; TBL = 128
    p("v_lshrrev_b32 v10, 5, v1"); p("v_lshlrev_b32 v10, 4, v10")
    p("s_and_b32 s%d, s%d, 1" % (sT1, sW)); p("s_lshl_b32 s%d, s%d, 8" % (sT1, sT1))
    p("v_add_u32 v10, s%d, v10" % sT1); p("v_add_u32 v10, %d, v10" % TAB_LDS)
    p("s_lshr_b32 s%d, s%d, 1" % (sT1, sW)); p("s_lshl_b32 s%d, s%d, 1" % (sT1, sT1))
    p("s_lshl_b32 s%d, s%d, 2" % (sT0, sRB)); p("s_add_u32 s%d, s%d, s%d" % (sT0, sT0, sT1))
    p("s_mul_i32 s%d, s%d, 112" % (sT0, sT0)); p("s_lshl_b32 s%d, s%d, 3" % (sT1, sFT))
    p("s_add_u32 s%d, s%d, s%d" % (sT0, sT0, sT1))
    p("s_and_b32 s%d, s%d, 1" % (sT1, sW)); p("s_lshl_b32 s%d, s%d, 2" % (sT1, sT1))
    p("s_add_u32 s%d, s%d, s%d" % (sT0, sT0, sT1)); p("s_lshl_b32 s%d, s%d, 10" % (sT0, sT0))
    p("v_lshlrev_b32 v11, 4, v1"); p("v_add_u32 v12, %d, v11" % (112 * 1024))
    for tb in range(2): p("v_mul_f32 v%d, v%d, v%d" % (vST + 4 * tb, vST + 4 * tb, vST + 4 * tb + 1))
    for fb in range(2):
        for rq in range(4):
            p("ds_read_b128 %s, v10 offset:%d" % (vr(TBL + 4 * rq, 4), fb * 128 + rq * 32))
            p("ds_read_b128 %s, v10 offset:%d" % (vr(TBL + 16 + 4 * rq, 4), 512 + fb * 128 + rq * 32))
        for tb in range(2):
            a = ACC + 16 * (2 * fb + tb); mu, rs = vST + 4 * tb, vST + 4 * tb + 1
            PK = 160 + 8 * tb
            for r_ in range(0, 16, 2):
                t0 = 176 + 2 * ((r_ >> 1) & 3)
                p("v_pk_fma_f32 %s, %s, %s, %s op_sel_hi:[0,1,1] neg_lo:[1,0,0] neg_hi:[1,0,0]" % (vr(t0, 2), vr(mu, 2), vr(TBL + r_, 2), vr(TBL + 16 + r_, 2)))
                p("v_pk_fma_f32 %s, %s, %s, %s op_sel:[0,1,0] op_sel_hi:[1,1,1]" % (vr(t0, 2), vr(a + r_, 2), vr(mu, 2), vr(t0, 2)))
                p("v_max_f32 v%d, 0, v%d" % (t0, t0)); p("v_max_f32 v%d, 0, v%d" % (t0 + 1, t0 + 1))
                p("v_pk_mul_f32 %s, %s, %s" % (vr(t0, 2), vr(t0, 2), vr(t0, 2)))
                p("v_cvt_pk_bf16_f32 v%d, v%d, v%d" % (PK + (r_ >> 1), t0, t0 + 1))
            for q in range(2):
                p("buffer_store_dwordx4 %s, v%d, s[%d:%d], s%d offen offset:%d sc1" % (vr(PK + 4 * q, 4), 11 + tb, HF_, HF_ + 3, sT0, (2 * fb + q) * 1024), "hst")

def h_publish(p):
    p("s_lshl_b32 s%d, s%d, 1" % (sT0, sRB)); p("s_lshr_b32 s%d, s%d, 1" % (sT1, sW))
    p("s_add_u32 s%d, s%d, s%d" % (sT0, sT0, sT1)); p("s_mul_i32 s%d, s%d, 28" % (sT0, sT0))
    p("s_lshl_b32 s%d, s%d, 1" % (sT1, sFT)); p("s_add_u32 s%d, s%d, s%d" % (sT0, sT0, sT1))
    p("s_and_b32 s%d, s%d, 1" % (sT1, sW)); p("s_add_u32 s%d, s%d, s%d" % (sT0, sT0, sT1))
    p("s_lshl_b32 s%d, s%d, 7" % (sT0, sT0)); p("s_add_u32 s%d, s%d, %d" % (sT0, sT0, FL_FH))
    flag_store(p, sT0)

sCH, sC2, sCB = 86, 87, 88
KVT2_, SSM_, DD_, ZT_ = 48, 52, 56, 60
CV_R = 220
vDD = 254
def conv_loads(p):
    srd(p, KVT2_, P_WS, SZ_KVT, WS_KVT); srd(p, SSM_, P_SSM, D * S * 2); srd(p, DD_, P_DD, D * 2); srd(p, ZT_, P_WS, SZ_ZT, WS_ZT)
    p("s_lshr_b32 s%d, s%d, 1" % (sT0, sW)); p("s_and_b32 s%d, s%d, 1" % (sC2, sW))
    p("s_lshl_b32 s%d, s%d, 6" % (sCH, sJ)); p("s_lshl_b32 s%d, s%d, 1" % (sT1, sR))
    p("s_add_u32 s%d, s%d, s%d" % (sCH, sCH, sT1)); p("s_add_u32 s%d, s%d, s%d" % (sCH, sCH, sT0))
    p("s_mul_i32 s%d, s%d, 21248" % (sCB, sT0)); p("s_add_u32 s%d, s%d, 256" % (sCB, sCB))
    p("s_lshl_b32 s%d, s%d, 12" % (sT0, sCH)); p("s_lshl_b32 s%d, s%d, 11" % (sT1, sC2))
    p("s_add_u32 s%d, s%d, s%d" % (sT0, sT0, sT1))
    p("v_lshlrev_b32 v2, 4, v1")
    R = CV_R
    for sg in range(2):
        for k in range(3):
            p("buffer_load_dwordx4 %s, v2, s[%d:%d], s%d offen offset:%d sc1" % (vr(R + 12 * sg + 4 * k, 4), KVT2_, KVT2_ + 3, sT0, sg * 1024 + 4 * k), "cv")
    for sg in range(2):
        p("s_add_u32 s%d, s%d, s%d" % (sT2, sCB, sT1))
        p("s_add_u32 m0, s%d, %d" % (sT2, 16640 + 512 + sg * 1024))
        p("s_add_u32 s%d, s%d, %d" % (sT2, sT0, sg * 1024))
        p("buffer_load_dwordx4 v2, s[%d:%d], s%d offen lds" % (SSM_, SSM_ + 3, sT2), "cv")
    p("v_mov_b32 v4, 0"); p("s_lshl_b32 s%d, s%d, 1" % (sT2, sCH))
    p("buffer_load_ushort v%d, v4, s[%d:%d], s%d offen" % (vDD, DD_, DD_ + 3, sT2), "cv")
    for i in range(4): p("v_mov_b32 v%d, 0" % (8 + i))
    p("v_lshrrev_b32 v5, 1, v1"); p("v_mul_u32_u24 v5, 4160, v5")
    p("v_and_b32 v6, 1, v1"); p("v_lshl_add_u32 v5, v6, 4, v5"); p("v_add_u32 v5, 4096, v5")
    p("v_add_u32 v6, 16640, v2")
    p("s_cmp_eq_u32 s%d, 0" % sC2)
    p("s_cselect_b32 s76, 0xff, -1")
    p("s_cselect_b64 vcc, -1, 0")
    p("v_cndmask_b32 v5, v6, v5, vcc")
    p("v_add_u32 v5, s%d, v5" % sCB)
    p("s_mov_b32 exec_lo, s76"); p("s_mov_b32 exec_hi, 0")
    p("ds_write_b128 v5, v[8:11]")
    p("s_mov_b64 exec, -1")

def conv_fill(p):
    R = CV_R
    p("v_lshlrev_b32 v2, 4, v1"); p("v_mov_b32 v8, 0")
    p("s_lshl_b32 s77, s%d, 31" % sC2); p("s_mov_b32 s76, 0")
    last = R + 12
    for rg in (last + 7, last + 10, last + 11): p("v_cndmask_b32 v%d, v%d, v8, s[76:77]" % (rg, rg))
    p("s_lshl_b32 s%d, s%d, 11" % (sT1, sC2)); p("s_add_u32 s%d, s%d, s%d" % (sT1, sT1, sCB))
    p("v_add_u32 v5, s%d, v2" % sT1)
    for sg in range(2):
        r0, r1, r2 = R + 12 * sg, R + 12 * sg + 4, R + 12 * sg + 8
        c1, c3 = 40 + 8 * sg, 44 + 8 * sg
        p("ds_write_b128 v5, %s offset:%d" % (vr(r0, 4), sg * 1024))
        p("ds_write_b128 v5, %s offset:%d" % (vr(r1, 4), 2 * 4160 + sg * 1024))
        for i in range(4): p("v_alignbit_b32 v%d, v%d, v%d, 16" % (c1 + i, r1 + i, r0 + i))
        for i in range(4): p("v_alignbit_b32 v%d, v%d, v%d, 16" % (c3 + i, r2 + i, r1 + i))
        p("ds_write_b128 v5, %s offset:%d" % (vr(c1, 4), 4160 + sg * 1024))
        p("ds_write_b128 v5, %s offset:%d" % (vr(c3, 4), 3 * 4160 + sg * 1024))

def conv_main(p, extra_by_class):
    vA, vB = 12, 13
    p("v_and_b32 v6, 15, v1"); p("v_lshrrev_b32 v7, 4, v1")
    p("v_sub_u32 v14, 3, v6"); p("v_and_b32 v14, 3, v14")
    p("v_mul_u32_u24 v15, 4158, v14")
    p("v_lshlrev_b32 v14, 1, v6"); p("v_sub_u32 v15, v15, v14"); p("v_lshl_add_u32 v15, v7, 4, v15")
    p("s_lshl_b32 s%d, s%d, 8" % (sT1, sC2)); p("s_sub_u32 s%d, s%d, s%d" % (sT1, sCB, sT1))
    p("s_add_u32 s%d, s%d, 30" % (sT2, sT1)); p("v_add_u32 v%d, s%d, v15" % (vA, sT2))
    p("v_lshlrev_b32 v15, 5, v6"); p("v_lshl_add_u32 v15, v7, 4, v15")
    p("s_add_u32 s%d, s%d, %d" % (sT2, sT1, 16640 + 32)); p("v_add_u32 v%d, s%d, v15" % (vB, sT2))
    ACC = 64
    for i in range(32): p("v_mov_b32 v%d, 0" % (ACC + i))
    p.wait(lg=0)
    p("s_barrier")
    stamp(p, "conv_filled")
    FA, FB = 96, 160
    def reads(rl):
        st = rl & 1; out = []
        for x in range(8):
            oa = 64 * (63 - rl - 8 * x)
            out.append(("ds_read_b64 %s, v%d offset:%d" % (vr(FA + 32 * st + 4 * x, 2), vA, oa), None))
            out.append(("ds_read_b64 %s, v%d offset:%d" % (vr(FA + 32 * st + 4 * x + 2, 2), vA, oa + 8), None))
            out.append(("ds_read_b128 %s, v%d offset:%d" % (vr(FB + 32 * st + 4 * x, 4), vB, 64 * (7 - rl + 8 * x)), None))
        return out
    def mf(rl):
        st = rl & 1; out = []
        pairs = sorted([(a, b) for a in range(8) for b in range(8) if a + b <= 7], key=lambda ab: (max(ab), ab))
        for a, b in pairs:
            out.append(("v_mfma_f32_16x16x32_bf16 %s, %s, %s, %s" % (vr(ACC + 4 * (a + b), 4), vr(FA + 32 * st + 4 * a, 4), vr(FB + 32 * st + 4 * b, 4), vr(ACC + 4 * (a + b), 4)), None))
        return out
    for t in reads(0): p(*t)
    for rl in range(4):
        pre, fill = extra_by_class[rl]
        pre(p)
        nxt = (reads(rl + 1) if rl < 3 else [])
        merged = interleave(nxt, fill, len(fill) / max(1.0, float(len(nxt)))) if nxt else list(fill)
        for t in interleave(mf(rl), merged, len(merged) / 36.0): p(*t)
    stamp(p, "conv_mma_done")

sZO = 87
def conv_finish(p, name):
    ACC = 64
    RB = 256 + 2 * 21248
    p("v_lshlrev_b32 v2, 4, v1")
    p("s_lshl_b32 s%d, s%d, 12" % (sT1, sW))
    p("v_add_u32 v5, s%d, v2" % sT1); p("v_add_u32 v5, %d, v5" % RB)
    p("s_xor_b32 s%d, s%d, 1" % (sT1, sW)); p("s_lshl_b32 s%d, s%d, 12" % (sT1, sT1))
    p("v_add_u32 v14, s%d, v2" % sT1); p("v_add_u32 v14, %d, v14" % RB)
    p("v_lshlrev_b32 v15, 5, v6"); p("v_lshl_add_u32 v15, v7, 3, v15")
    p("s_lshl_b32 s%d, s%d, 11" % (sT1, sC2)); p("s_sub_u32 s%d, s%d, s%d" % (sT2, sCB, sT1))
    p("s_add_u32 s%d, s%d, %d" % (sT2, sT2, 4088 - 1536)); p("v_sub_u32 v16, s%d, v15" % sT2)
    p("s_lshl_b32 s84, s%d, 12" % sCH); p("s_add_u32 s84, s84, s%d" % sT1)
    p("v_lshlrev_b32 v%d, 16, v%d" % (vDD, vDD))
    st = side_path_begin(p)
    p("s_cmp_eq_u32 s%d, 0" % sC2)
    p("s_cbranch_scc0 %s_hi" % name)
    for variant in range(2):
        keep = ACC + 16 * variant; give = ACC + 16 * (1 - variant)
        if variant == 1:
            p("s_branch %s_cdone" % name)
            p.label("%s_hi" % name)
            side_path_end(p, st)
            p("s_nop 7")
        for q in range(4): p("ds_write_b128 v5, %s offset:%d" % (vr(give + 4 * q, 4), q * 1024))
        for q in range(4): p("ds_read_b64 %s, v16 offset:%d" % (vr(36 + 2 * q, 2), (3 - q) * 512))
        for q in range(4):
            a_ = keep + 4 * q; u = 36 + 2 * q
            for c, (src, hf) in enumerate(((u + 1, 1), (u + 1, 0), (u, 1), (u, 0))):
                unpack(p, 44 + (c & 1), src, hf)
                p("v_fmac_f32 v%d, v%d, v%d" % (a_ + c, 44 + (c & 1), vDD))
        p.wait(lg=0)
        p("s_barrier")
        for q in range(4): p("ds_read_b128 %s, v14 offset:%d" % (vr(20 + 4 * q, 4), q * 1024))
        for q in range(4):
            a_ = keep + 4 * q
            for c in range(4): p("v_add_f32 v%d, v%d, v%d" % (a_ + c, a_ + c, 20 + 4 * q + c))
            p("v_cvt_pk_bf16_f32 v%d, v%d, v%d" % (48 + 2 * q, a_, a_ + 1))
            p("v_cvt_pk_bf16_f32 v%d, v%d, v%d" % (49 + 2 * q, a_ + 2, a_ + 3))
    p.label("%s_cdone" % name)

def z_stores(p):
    for q in range(4):
        p("buffer_store_dwordx2 %s, v15, s[%d:%d], s84 offen offset:%d sc1" % (vr(48 + 2 * q, 2), ZT_, ZT_ + 3, q * 512), "zst")

def z_publish(p):
    p("s_lshl_b32 s%d, s%d, 7" % (sT0, sJ)); p("s_lshl_b32 s%d, s%d, 2" % (sT1, sR))
    p("s_add_u32 s%d, s%d, s%d" % (sT0, sT0, sT1)); p("s_add_u32 s%d, s%d, s%d" % (sT0, sT0, sW))
    p("s_lshl_b32 s%d, s%d, 7" % (sT0, sT0)); p("s_add_u32 s%d, s%d, %d" % (sT0, sT0, FL_FZ))
    flag_store(p, sT0)

DEPTH_W, DEPTH_H = 12, 6
RING = DEPTH_W * 2048
RING0 = 65536
RED, XT, ZTT = 0, 49152, 57344
sTok, sCh, sHo, sWo2, sM2, sXO = 89, 90, 91, 80, 81, 82
HF2_, W2_, Q2_, ZT2_, ST2_, B2_, OUT_ = 40, 68, 48, 52, 56, 64, 44
vH0, vH1, vD0, vD1 = 244, 245, 246, 247
NS = 28
def g2_setup(p):
    srd(p, W2_, P_W2, F * D * 2)
    p("s_lshl_b32 s%d, s%d, 8" % (sTok, sJ))
    p("s_lshr_b32 s%d, s%d, 3" % (sT0, sR)); p("s_lshl_b32 s%d, s%d, 6" % (sT0, sT0))
    p("s_add_u32 s%d, s%d, s%d" % (sTok, sTok, sT0))
    p("s_and_b32 s%d, s%d, 7" % (sCh, sR)); p("s_lshl_b32 s%d, s%d, 6" % (sCh, sCh))
    p("s_lshr_b32 s%d, s%d, 5" % (sT0, sTok)); p("s_mul_i32 s%d, s%d, 112" % (sT0, sT0))
    p("s_mul_i32 s%d, s%d, 28" % (sT1, sW))
    p("s_add_u32 s%d, s%d, s%d" % (sT0, sT0, sT1)); p("s_lshl_b32 s%d, s%d, 10" % (sHo, sT0))
    p("s_lshl_b32 s%d, s%d, 14" % (sWo2, sT1)); p("s_lshl_b32 s%d, s%d, 1" % (sT0, sCh))
    p("s_add_u32 s%d, s%d, s%d" % (sWo2, sWo2, sT0))
    p("s_mul_i32 s%d, s%d, %d" % (sM2, sW, RING)); p("s_add_u32 s%d, s%d, %d" % (sM2, sM2, RING0))
    p("v_lshlrev_b32 v%d, 4, v1" % vH0)
    p("v_add_u32 v%d, %d, v%d" % (vH1, 112 * 1024, vH0))
    p("v_lshrrev_b32 v10, 3, v1"); p("v_and_b32 v11, 7, v1")
    p("v_lshrrev_b32 v12, 1, v10"); p("v_and_b32 v12, 1, v12"); p("v_lshlrev_b32 v12, 2, v12")
    p("v_xor_b32 v12, v12, v11"); p("v_lshlrev_b32 v12, 4, v12")
    p("v_lshl_add_u32 v%d, v10, 10, v12" % vD0)
    p("v_add_u32 v%d, 8192, v%d" % (vD1, vD0))
def w2_dma(s):
    slot = s % DEPTH_W
    return [("s_add_u32 m0, s%d, %d" % (sM2, slot * 2048), None),
            ("buffer_load_dwordx4 v%d, s[%d:%d], s%d offen lds" % (vD0, W2_, W2_ + 3, sWo2), "w%d" % s),
            ("s_add_u32 m0, s%d, %d" % (sM2, slot * 2048 + 1024), None),
            ("buffer_load_dwordx4 v%d, s[%d:%d], s%d offen lds" % (vD1, W2_, W2_ + 3, sWo2), "w%d" % s),
            ("s_add_u32 s%d, s%d, 16384" % (sWo2, sWo2), None)]
def h_loads(s):
    slot = s % DEPTH_H
    sc = "" if OPT["hplain"] else " sc1"
    return [("buffer_load_dwordx4 %s, v%d, s[%d:%d], s%d offen%s" % (ar(8 * slot, 4), vH0, HF2_, HF2_ + 3, sHo, sc), "h%d" % s),
            ("buffer_load_dwordx4 %s, v%d, s[%d:%d], s%d offen%s" % (ar(8 * slot + 4, 4), vH1, HF2_, HF2_ + 3, sHo, sc), "h%d" % s),
            ("s_add_u32 s%d, s%d, 1024" % (sHo, sHo), None)]
vFH, vFHA = 248, 249
def fh_poll_issue(p):
    p("v_min_u32 v%d, 27, v1" % vFHA); p("v_lshlrev_b32 v%d, 7, v%d" % (vFHA, vFHA))
    p("s_lshr_b32 s83, s%d, 6" % sTok); p("s_mul_i32 s83, s83, %d" % (28 * 128)); p("s_add_u32 s83, s83, %d" % FL_FH)
    poll_issue(p, vFH, vFHA, 83, "fh")

def g2_h_start(p):
    srd(p, HF2_, P_WS, SZ_HF, WS_HF)
    p.wait_tag("fh")
    poll_check(p, [vFH], [vFHA], [83])
    stamp(p, "g2_h_ready")
    h0 = None
    for s in range(DEPTH_H):
        for t in h_loads(s): p(*t)
    if OPT["htouch"]:
        n = (NS - DEPTH_H) * 16 // 8
        p("s_and_b32 s%d, s%d, 7" % (sT0, sR)); p("s_mul_i32 s%d, s%d, %d" % (sT0, sT0, n))
        p("v_add_u32 v10, s%d, v1" % sT0)
        p("v_lshrrev_b32 v11, 4, v10"); p("v_and_b32 v12, 7, v10"); p("v_lshlrev_b32 v12, 7, v12")
        p("v_lshl_add_u32 v12, v11, 10, v12")
        p("v_bfe_u32 v11, v10, 3, 1"); p("v_mul_u32_u24 v11, %d, v11" % (112 * 1024)); p("v_add_u32 v12, v12, v11")
        p("s_mov_b32 exec_hi, 0x%x" % ((1 << (n - 32)) - 1))
        p("buffer_load_dword v60, v12, s[%d:%d], s%d offen sc1" % (HF2_, HF2_ + 3, sHo), "touch3")
        p("s_mov_b64 exec, -1")

def g2_main(p):
    srd(p, Q2_, P_Q, S * D * 2)
    srd(p, ZT2_, P_WS, SZ_ZT, WS_ZT); srd(p, ST2_, P_WS, SZ_ST, WS_ST); srd(p, B2_, P_B2, D * 2); srd(p, OUT_, P_OUT, S * D * 2)
    p.wait(lg=0)
    p("s_barrier")
    p("v_lshrrev_b32 v10, 3, v1"); p("v_and_b32 v11, 7, v1"); p("v_lshrrev_b32 v12, 1, v10")
    for ii in range(2):
        p("v_add_u32 v13, %d, v12" % (4 * ii)); p("v_xor_b32 v13, v13, v11")
        p("v_lshlrev_b32 v13, 4, v13"); p("v_lshl_add_u32 v%d, v10, 10, v13" % (6 + ii))
    p("s_lshl_b32 s%d, s%d, 4" % (sT0, sW)); p("s_add_u32 s%d, s%d, s%d" % (sT0, sT0, sTok))
    p("s_lshl_b32 s%d, s%d, 10" % (sT0, sT0)); p("s_lshl_b32 s%d, s%d, 1" % (sT1, sCh))
    p("s_add_u32 s%d, s%d, s%d" % (sXO, sT0, sT1))
    p("s_lshl_b32 s%d, s%d, 11" % (sT2, sW))
    for ii in range(2):
        p("s_add_u32 m0, s%d, %d" % (sT2, XT + ii * 1024)); p("s_add_u32 s%d, s%d, %d" % (sT0, sXO, ii * 8192))
        p("buffer_load_dwordx4 v%d, s[%d:%d], s%d offen lds" % (6 + ii, Q2_, Q2_ + 3, sT0), "ep")
    vST2, vB2 = 16, 20
    p("s_lshr_b32 s%d, s%d, 1" % (sT0, sW)); p("s_lshl_b32 s%d, s%d, 5" % (sT0, sT0))
    p("s_add_u32 s%d, s%d, s%d" % (sT0, sT0, sTok)); p("s_lshl_b32 s%d, s%d, 6" % (sT0, sT0))
    p("v_and_b32 v12, 30, v1"); p("v_lshlrev_b32 v12, 6, v12"); p("v_and_b32 v13, 1, v1"); p("v_lshl_add_u32 v13, v13, 4, v12")
    p("buffer_load_dwordx2 %s, v13, s[%d:%d], s%d offen sc1" % (vr(vST2, 2), ST2_, ST2_ + 3, sT0), "ep")
    p("s_and_b32 s%d, s%d, 1" % (sT0, sW)); p("s_lshl_b32 s%d, s%d, 5" % (sT0, sT0))
    p("s_add_u32 s%d, s%d, s%d" % (sT0, sT0, sCh)); p("s_lshl_b32 s%d, s%d, 1" % (sT0, sT0))
    p("v_lshrrev_b32 v13, 5, v1"); p("v_lshlrev_b32 v13, 5, v13")
    p("buffer_load_dwordx4 %s, v13, s[%d:%d], s%d offen" % (vr(vB2, 4), B2_, B2_ + 3, sT0), "ep")
    p("buffer_load_dwordx4 %s, v13, s[%d:%d], s%d offen offset:16" % (vr(vB2 + 4, 4), B2_, B2_ + 3, sT0), "ep")
    vA = 28
    p("v_and_b32 v10, 15, v1"); p("v_lshrrev_b32 v11, 4, v1"); p("v_lshrrev_b32 v12, 1, v11"); p("v_and_b32 v11, 1, v11")
    p("v_lshrrev_b32 v13, 2, v10"); p("v_lshl_add_u32 v12, v12, 2, v13"); p("v_lshlrev_b32 v12, 7, v12")
    p("v_and_b32 v14, 3, v10"); p("v_lshrrev_b32 v15, 1, v14"); p("v_lshl_add_u32 v12, v15, 3, v12")
    p("v_and_b32 v14, 1, v14"); p("v_lshl_add_u32 v14, v14, 1, v11")
    p("v_lshrrev_b32 v15, 3, v10"); p("v_lshlrev_b32 v15, 2, v15")
    p("v_add_u32 v12, s%d, v12" % sM2)
    for cb in range(2):
        p("v_add_u32 v13, %d, v14" % (4 * cb)); p("v_xor_b32 v13, v13, v15")
        p("v_lshl_add_u32 v%d, v13, 4, v12" % (vA + cb))
    ACC = 64
    for i in range(64): p("v_mov_b32 v%d, 0" % (ACC + i))
    FR = 32
    def reads(s):
        slot = s % DEPTH_W; f = FR + 8 * (s & 1); out = []
        for cb in range(2):
            for rr in range(2):
                out.append("ds_read_b64_tr_b16 %s, v%d offset:%d" % (vr(f + 4 * cb + 2 * rr, 2), vA + cb, slot * 2048 + rr * 1024))
        return out
    def mfmas(s):
        slot = s % DEPTH_H; f = FR + 8 * (s & 1); out = []
        for cb in range(2):
            for tb in range(2):
                a = ACC + 16 * (2 * tb + cb)
                out.append("v_mfma_f32_32x32x16_bf16 %s, %s, %s, %s" % (vr(a, 16), vr(f + 4 * cb, 4), ar(8 * slot + 4 * tb, 4), vr(a, 16)))
        return out
    vFZ = 56
    if OPT.get("delay"):
        for _ in range(OPT["delay"]): p("s_sleep 127")
    p.wait_tag("w0")
    for t in reads(0): p(t)
    for s in range(NS):
        if s + 1 < NS:
            if not OPT.get("nowait"): p.wait_tag("w%d" % (s + 1))
            if not OPT.get("nords"):
                for t in reads(s + 1): p(t)
        if s == 0: stamp(p, "g2_first")
        if (s in (7, 13, 16, 22) or OPT.get('allsteps')) and s > 0: stamp(p, "g2_s%d" % s)
        mf = mfmas(s)
        if OPT.get("nomf"): mf = ["s_nop 7"] * 4
        wd = w2_dma(s + DEPTH_W) if (s + DEPTH_W < NS and not OPT["now"]) else []
        hl = h_loads(s + DEPTH_H) if (s + DEPTH_H < NS and not OPT["noh"]) else []
        p(mf[0])
        for t in wd[0:2]: p(*t)
        p(mf[1])
        for t in wd[2:5]: p(*t)
        p(mf[2])
        for t in hl[0:1]: p(*t)
        p(mf[3])
        for t in hl[1:3]: p(*t)
        if s == DEPTH_H:
            p.wait_tag("zst")
            z_publish(p)
        if s == 13 and not OPT['nofz']:
            p("v_lshlrev_b32 v%d, 7, v1" % (vFZ + 2)); p("v_add_u32 v%d, 8192, v%d" % (vFZ + 3, vFZ + 2))
            p("s_lshr_b32 s84, s%d, 6" % sCh); p("s_lshl_b32 s84, s84, 14"); p("s_add_u32 s84, s84, %d" % FL_FZ)
            poll_issue(p, vFZ, vFZ + 2, 84, "fz"); poll_issue(p, vFZ + 1, vFZ + 3, 84, "fz")
        if s == 20:
            p.wait_tag("fz")
            if not OPT['nofz']: poll_check(p, [vFZ, vFZ + 1], [vFZ + 2, vFZ + 3], [84, 84])
            p("v_lshrrev_b32 v10, 3, v1"); p("v_and_b32 v11, 7, v1")
            p("v_lshlrev_b32 v12, 4, v11"); p("v_lshl_add_u32 v8, v10, 12, v12")
            p("s_lshl_b32 s%d, s%d, 4" % (sT0, sW)); p("s_add_u32 s%d, s%d, s%d" % (sT0, sT0, sCh))
            p("s_lshl_b32 s%d, s%d, 12" % (sT0, sT0)); p("s_lshl_b32 s%d, s%d, 1" % (sT1, sTok))
            p("s_add_u32 s%d, s%d, s%d" % (sT0, sT0, sT1))
            p("buffer_load_dwordx4 %s, v8, s[%d:%d], s%d offen sc1" % (vr(128, 4), ZT2_, ZT2_ + 3, sT0), "z")
            p("s_add_u32 s%d, s%d, %d" % (sT0, sT0, 8 * 4096))
            p("buffer_load_dwordx4 %s, v8, s[%d:%d], s%d offen sc1" % (vr(132, 4), ZT2_, ZT2_ + 3, sT0), "z")
        if s == 27:
            p("v_lshrrev_b32 v10, 3, v1"); p("v_and_b32 v11, 7, v1")
            p("v_lshrrev_b32 v12, 1, v10"); p("v_and_b32 v12, 1, v12"); p("v_lshlrev_b32 v12, 2, v12")
            p("v_xor_b32 v12, v12, v11"); p("v_lshlrev_b32 v12, 4, v12"); p("v_lshl_add_u32 v12, v10, 7, v12")
            p("s_lshl_b32 s%d, s%d, 11" % (sT2, sW)); p("s_add_u32 s%d, s%d, %d" % (sT2, sT2, ZTT))
            p("v_add_u32 v12, s%d, v12" % sT2)
            p("ds_write_b128 v12, %s" % vr(128, 4)); p("ds_write_b128 v12, %s offset:1024" % vr(132, 4))
    stamp(p, "g2_mma_done")

def g2_epilogue(p, name):
    ACC = 64; vST2, vB2 = 16, 20
    OWN = 176
    st = side_path_begin(p)
    for w in range(4):
        if w < 3:
            p("s_cmp_eq_u32 s%d, %d" % (sW, w))
            p("s_cbranch_scc0 %s_rw%d" % (name, w + 1))
        side_path_end(p, st)
        p("s_nop 7"); p("s_nop 3")
        for rel in range(1, 4):
            q = w ^ rel
            for rq in range(4):
                p("ds_write_b128 v%d, %s offset:%d" % (vH0, vr(ACC + 16 * q + 4 * rq, 4), RED + q * 12288 + (rel - 1) * 4096 + rq * 1024))
        for i in range(16): p("v_mov_b32 v%d, v%d" % (OWN + i, ACC + 16 * w + i))
        if w < 3:
            p("s_branch %s_rwd" % name)
            p.label("%s_rw%d" % (name, w + 1))
    p.label("%s_rwd" % name)
    XR, ZR = 128, 136
    p("v_and_b32 v11, 31, v1"); p("v_lshrrev_b32 v12, 5, v1")
    p("s_lshr_b32 s%d, s%d, 1" % (sT0, sW)); p("s_lshl_b32 s%d, s%d, 5" % (sT0, sT0))
    p("v_add_u32 v11, s%d, v11" % sT0)
    p("v_lshrrev_b32 v13, 1, v11"); p("v_and_b32 v13, 7, v13")
    p("s_and_b32 s%d, s%d, 1" % (sT1, sW)); p("s_lshl_b32 s%d, s%d, 2" % (sT1, sT1))
    p("v_lshlrev_b32 v12, 1, v12"); p("v_add_u32 v12, s%d, v12" % sT1)
    p("v_lshlrev_b32 v11, 7, v11")
    p("v_xor_b32 v14, v12, v13"); p("v_lshl_add_u32 v14, v14, 4, v11")
    p("v_add_u32 v12, 1, v12"); p("v_xor_b32 v15, v12, v13"); p("v_lshl_add_u32 v15, v15, 4, v11")
    p("v_add_u32 v6, %d, v14" % XT); p("v_add_u32 v7, %d, v15" % XT)
    p("v_and_b32 v10, 15, v1"); p("v_lshrrev_b32 v11, 4, v1"); p("v_lshrrev_b32 v12, 1, v11"); p("v_and_b32 v11, 1, v11")
    p("v_lshrrev_b32 v13, 2, v10"); p("v_lshl_add_u32 v12, v12, 4, v13")
    p("s_and_b32 s%d, s%d, 1" % (sT1, sW)); p("s_lshl_b32 s%d, s%d, 5" % (sT1, sT1))
    p("v_add_u32 v12, s%d, v12" % sT1); p("v_lshlrev_b32 v12, 7, v12")
    p("v_and_b32 v13, 1, v10"); p("v_lshl_add_u32 v12, v13, 3, v12")
    p("v_and_b32 v13, 3, v10"); p("v_lshrrev_b32 v13, 1, v13"); p("v_lshl_add_u32 v13, v11, 1, v13")
    p("s_lshr_b32 s%d, s%d, 1" % (sT1, sW)); p("s_lshl_b32 s%d, s%d, 2" % (sT1, sT1))
    p("v_add_u32 v13, s%d, v13" % sT1)
    p("v_lshrrev_b32 v8, 3, v10"); p("v_lshlrev_b32 v8, 2, v8"); p("v_xor_b32 v13, v13, v8")
    p("v_lshl_add_u32 v12, v13, 4, v12"); p("v_add_u32 v12, %d, v12" % ZTT)
    p("s_mul_i32 s%d, s%d, 12288" % (sT0, sW)); p("v_add_u32 v10, s%d, v%d" % (sT0, vH0))
    mu, rs = vST2, vST2 + 1
    p.wait_tag("ep")
    p("v_mul_f32 v%d, v%d, v%d" % (mu, mu, rs))
    p.wait(lg=0)
    p("s_barrier")
    stamp(p, "g2_red_bar")
    p("ds_read_b128 %s, v6" % vr(XR, 4)); p("ds_read_b128 %s, v7" % vr(XR + 4, 4))
    for m in range(4): p("ds_read_b64_tr_b16 %s, v12 offset:%d" % (vr(ZR + 2 * m, 2), m * 512))
    for sl in range(3):
        for rq in range(4):
            p("ds_read_b128 %s, v10 offset:%d" % (vr(ACC + 16 * sl + 4 * rq, 4), RED + sl * 4096 + rq * 1024))
    Y = 144
    for r_ in range(16):
        x, z, b = 30, 31, 32
        unpack(p, x, XR + (r_ >> 1), r_ & 1); unpack(p, z, ZR + (r_ >> 1), r_ & 1); unpack(p, b, vB2 + (r_ >> 1), r_ & 1)
        p("v_fma_f32 v%d, v%d, v%d, -v%d" % (Y + r_, x, rs, mu))
        p("v_add_f32 v%d, v%d, v%d" % (b, b, x))
        p("v_add_f32 v%d, v%d, v%d" % (b, b, OWN + r_))
        p("v_fma_f32 v%d, v%d, v%d, v%d" % (Y + r_, Y + r_, z, b))
    PK = 160
    for r_ in range(16):
        p("v_add_f32 v%d, v%d, v%d" % (ACC + r_, ACC + r_, ACC + 16 + r_))
        p("v_add_f32 v%d, v%d, v%d" % (Y + r_, Y + r_, ACC + 32 + r_))
        p("v_add_f32 v%d, v%d, v%d" % (Y + r_, Y + r_, ACC + r_))
        if r_ & 1: p("v_cvt_pk_bf16_f32 v%d, v%d, v%d" % (PK + (r_ >> 1), Y + r_ - 1, Y + r_))
    p("ds_write_b128 v6, %s" % vr(PK, 4)); p("ds_write_b128 v7, %s" % vr(PK + 4, 4))
    p("v_lshrrev_b32 v10, 3, v1"); p("v_and_b32 v11, 7, v1"); p("v_lshrrev_b32 v12, 1, v10")
    for ii in range(2):
        p("v_add_u32 v13, %d, v12" % (4 * ii)); p("v_xor_b32 v13, v13, v11")
        p("v_lshlrev_b32 v13, 4, v13"); p("v_lshl_add_u32 v%d, v10, 10, v13" % (8 + ii))
    p("v_add_u32 v9, 8192, v9")
    p("s_lshl_b32 s%d, s%d, 11" % (sT2, sW))
    p("v_add_u32 v10, s%d, v%d" % (sT2, vH0)); p("v_add_u32 v10, %d, v10" % XT)
    p.wait(lg=0)
    p("s_barrier")
    p("ds_read_b128 v[16:19], v10"); p("ds_read_b128 v[20:23], v10 offset:1024")
    p("buffer_store_dwordx4 v[16:19], v8, s[%d:%d], s%d offen" % (OUT_, OUT_ + 3, sXO))
    p("buffer_store_dwordx4 v[20:23], v9, s[%d:%d], s%d offen" % (OUT_, OUT_ + 3, sXO))

def gen_fused(name):
    p = Prog()
    prof_reset()
    p("s_cmp_ge_u32 s2, 256")
    p("s_cbranch_scc1 %s_end" % name)
    stamp(p, "rt0", True); stamp(p, "t0")
    p("s_memrealtime s[90:91]")
    load_kernargs(p)
    p("v_and_b32 v1, 63, v0"); p("v_lshrrev_b32 v2, 6, v0")
    p("s_and_b32 s%d, s2, 7" % sJ); p("s_lshr_b32 s%d, s2, 3" % sR)
    p("v_readfirstlane_b32 s%d, v2" % sW)
    p("v_mov_b32 v253, 0")
    p("s_waitcnt lgkmcnt(0)")
    srd(p, 92, P_DBG, 256)
    p("s_lshl_b32 s%d, s2, 2" % sT0); p("s_add_u32 s78, s%d, s%d" % (sT0, sW))
    p("s_cmp_eq_u32 s78, %d" % (255 * 4))
    p("s_cbranch_scc0 %s_n0" % name)
    st = side_path_begin(p)
    p("v_mov_b32 v250, s90"); p("v_mov_b32 v251, 1")
    p("s_mov_b64 exec, 1")
    p("buffer_store_dwordx2 v[250:251], v253, s[92:95], 0 offen sc1")
    p("s_mov_b64 exec, -1")
    side_path_end(p, st)
    p.label("%s_n0" % name)
    p_loads(p)
    touches(p)
    srd(p, FL_, P_WS, SZ_FLAG, WS_FLAG)
    after_loads = side_path_begin(p)
    p("s_cmp_ge_u32 s%d, 28" % sR)
    p("s_cbranch_scc1 %s_spare" % name)
    g1_dma_setup(p)
    for s_ in range(2):
        for t, tag in g1_dma_stage(s_): p(t, tag)
    nonce_issue(p)
    stamp(p, "issued")
    p_compute(p)
    stamp(p, "p_done")
    p.wait_tag("nonce")
    stamp(p, "nonce_arr")
    nonce_check(p)
    stamp(p, "nonce_ok")
    p_stores(p)
    for s_ in range(2, 4):
        for t, tag in g1_dma_stage(s_): p(t, tag)
    g1_main(p)
    stamp(p, "g1_mma_done")
    g1_epilogue(p)
    p.wait_tag("cv")
    p.label("%s_cfill" % name)
    stamp(p, "g1_epi_done")
    g2_setup(p)
    conv_fill(p)
    def pre_none(p): pass
    def pre_hpub(p):
        p.wait_tag("hst")
        p("s_cmp_ge_u32 s%d, 28" % sR)
        p("s_cbranch_scc1 %s_nohp" % name)
        st = side_path_begin(p)
        h_publish(p)
        side_path_end(p, st)
        p.label("%s_nohp" % name)
        stamp(p, "h_pub")
    w2 = [w2_dma(s_) for s_ in range(DEPTH_W)]
    flat = lambda l: [x for y in l for x in y]
    conv_main(p, [(pre_none, []), (pre_hpub, flat(w2[0:4])), (pre_none, flat(w2[4:8])), (pre_none, flat(w2[8:12]))])
    if OPT.get("w2probe"):
        for k_ in (0, 3, 7, 11):
            p.wait_tag("w%d" % k_); stamp(p, "w2_land%d" % k_)
    conv_finish(p, name)
    stamp(p, "conv_done")
    fh_poll_issue(p)
    g2_h_start(p)
    z_stores(p)
    g2_main(p)
    g2_epilogue(p, name)
    stamp(p, "end")
    if common.PROF: p.wait(vm=0)
    stamp(p, "end_acked"); stamp(p, "rt1", True)
    prof_flush(p, sW)
    p("s_endpgm")
    p.label("%s_spare" % name)
    side_path_end(p, after_loads)
    p_compute(p)
    nonce_issue(p)
    p.wait(vm=0)
    nonce_check(p)
    p_stores(p)
    for t in w2_touch(): p(*t)
    p.wait_tag("pst")
    p("s_barrier")
    p_publish(p, 'sp')
    fk_addr(p)
    poll_issue(p, vPK, vPA + 1, 85, "poll")
    p.wait(vm=0, lg=0)
    poll_check(p, [vPK], [vPA + 1], [85])
    conv_loads(p)
    p.wait(vm=0)
    p("s_branch %s_cfill" % name)
    p.label("%s_end" % name)
    p("s_endpgm")
    return p.text(), 512, 256
```

```python
import sys
from common import *
import k0, k1, k2
NAME = "parallel_sum__ssm_conv_h3__dense_activation_squared_relu__prompt"
def header():
    ref = open('cdna_kernels/%s.s.ref' % NAME).read().split('\n')
    out = []
    for l in ref:
        if l.startswith('; @launch') or l.startswith('; Override') or l.startswith('; grid='): break
        out.append(l)
    return '\n'.join(out) + '\n'
def gen_empty(name):
    return '  s_endpgm\n', 8, 8
def build_v1(extra=0):
    ks = [("k0_kernel", k0.gen_k0, 16384 + 512), ("k1_kernel", k1.gen_k1, 133120), ("k2_kernel", k2.gen_k2, 155648)]
    for i in range(extra): ks.append(('e%d_kernel' % i, gen_empty, 0))
    txt = header()
    for n, g, lds in ks: txt += "; @launch kernel=%s grid=(256,1,1) block=(256,1,1) lds=%d\n" % (n, lds)
    txt += '.amdgcn_target "amdgcn-amd-amdhsa--gfx950"\n.text\n'
    descs = ''
    for n, g, lds in ks:
        body, vg, acc = g(n)
        txt += kernel_text(n, body)
        descs += kernel_desc(n, vg, acc)
    txt += '.section .rodata,"a"\n' + descs
    return txt
def build_fused():
    import os
    n = NAME + "_kernel"
    if os.environ.get('VER', '6') == '6':
        import f6
        body, vg, acc = f6.gen('fz')
    elif os.environ.get('VER', '6') == '5':
        import f5
        body, vg, acc = f5.gen('fz')
    elif os.environ.get('VER', '6') == '4':
        import f4
        body, vg, acc = f4.gen("fz")
    else:
        import fused
        body, vg, acc = fused.gen_fused("fz")
    txt = header() + "; @launch grid=(256,1,1) block=(256,1,1) lds=163840\n"
    txt += '.amdgcn_target "amdgcn-amd-amdhsa--gfx950"\n.text\n' + kernel_text(n, body)
    txt += '.section .rodata,"a"\n' + kernel_desc(n, vg, acc)
    return txt
if __name__ == '__main__':
    import common
    import os
    if os.environ.get('OPT'):
        import fused, f4, f5, f6
        for kv in os.environ['OPT'].split(','):
            k, v = kv.split('='); fused.OPT[k] = int(v); f4.OPT[k] = int(v); f5.OPT[k] = int(v); f6.OPT[k] = int(v)
    if '--profdbg' in sys.argv:
        common.PROF = True; common.PROF_DBG = 1; sys.argv.remove('--profdbg')
        common.PROF_ONLY = ['rt0', 't0', 'issued', 'p_done', 'g1_st0', 'g1_mma_done', 'g1_epi_done', 'conv_done', 'g2_first', 'g2_mma_done', 'end_acked', 'rt1']
    if os.environ.get('PROF_ONLY_ENV'): common.PROF_ONLY = os.environ['PROF_ONLY_ENV'].split(',')
    if '--rt' in sys.argv: common.PROF_RT = True; sys.argv.remove('--rt')
    if '--prof' in sys.argv: common.PROF = True; sys.argv.remove('--prof')
    out = sys.argv[1] if len(sys.argv) > 1 else 'cdna_kernels/%s.s' % NAME
    extra = int(__import__('os').environ.get('EXTRA', '0'))
    open(out, 'w').write(build_v1(extra) if 'V1' in __import__('os').environ else build_fused())
    if common.PROF:
        import json; json.dump(common._stamp_names, open(out + '.names', 'w'))
    print("wrote", out)
```

```python
from common import *
import common
from fused import (sN, sJ, sR, sW, sT0, sT1, sT2, sT3, FL_, unpack, flag_store, poll_issue, poll_check,
                   side_path_begin, side_path_end, nonce_issue, nonce_check, _uid)
OPT = dict(touch=0, htouch=0, nt=0, ntkv=0, depth_h=8, w2touch=5)
def nt(): return " nt" if OPT["nt"] else ""
def ntkv(): return " nt" if (OPT["nt"] or OPT["ntkv"]) else ""

class Rec:
    def __init__(self): self.items = []; self.grp = None
    def __call__(self, txt, tag=None): (self.grp if self.grp is not None else self.items).append((txt, tag))
    def call(self, fn): (self.grp if self.grp is not None else self.items).append((fn, None))
    def wait(self, vm=None, lg=None): self.call(lambda p: p.wait(vm, lg))
    def wait_tag(self, tag): self.call(lambda p: p.wait_tag(tag))
    def begin(self): self.grp = []
    def end(self): self.items.append(self.grp); self.grp = None
def begin(p):
    if isinstance(p, Rec): p.begin()
def end(p):
    if isinstance(p, Rec): p.end()
def emit(p, items):
    for it in items:
        if isinstance(it, list): emit(p, it)
        elif callable(it[0]): it[0](p)
        else: p(it[0], it[1])
_srd0 = srd
def srd(p, dst, ptr, size, off=0):
    begin(p); _srd0(p, dst, ptr, size, off); end(p)
def rec(fn, *a):
    r = Rec(); fn(r, *a); return r.items

P_LDS, SK_LDS = 131072, 139264
TAB_LDS, CSQ_LDS = 157440, 158464
CV0 = 98304
RB_LDS = CV0 + 256 + 2 * 21248
XT, ZTT, RED = 98304, 106496, 114688
sROW, sRB, sFT = 72, 73, 74
sXo, sWo, sM = 80, 81, 82
sCH, sC2, sCB = 86, 87, 88
sTok, sCh, sHo = 89, 90, 91
sWA, sM2, sXO = 16, 17, 6
K_, V_, SK_, GQ_, GW1_ = 40, 44, 48, 52, 56
KVT_, ST_, CSP_ = 60, 64, 68

KR, VR, SKR, XR, CR = 16, 36, 44, 128, 136
vC, vRR = 3, 4
def p_loads(p):
    srd(p, K_, P_K, S * D * 2); srd(p, V_, P_V, S * D * 2); srd(p, SK_, P_SK, D * 8)
    vA = 5
    p("s_lshl_b32 s%d, s%d, 9" % (sT1, sJ))
    p("v_and_b32 v11, 31, v1"); p("v_lshlrev_b32 v11, 4, v11")
    p("buffer_load_dwordx4 %s, v11, s[%d:%d], s%d offen" % (vr(SKR, 4), SK_, SK_ + 3, sT1))
    p("v_and_b32 v%d, 7, v1" % vC); p("v_lshrrev_b32 v%d, 3, v1" % vRR)
    p("s_lshl_b32 s%d, s%d, 6" % (sT0, sR)); p("s_lshl_b32 s%d, s%d, 4" % (sT1, sW))
    p("s_add_u32 s%d, s%d, s%d" % (sT0, sT0, sT1)); p("s_lshl_b32 s%d, s%d, 10" % (sT0, sT0))
    p("s_lshl_b32 s%d, s%d, 7" % (sT1, sJ)); p("s_add_u32 s%d, s%d, s%d" % (sT0, sT0, sT1))
    p("v_lshlrev_b32 v%d, 11, v%d" % (vA, vRR)); p("v_lshl_add_u32 v%d, v%d, 4, v%d" % (vA, vC, vA))
    p("v_add_u32 v%d, s%d, v%d" % (vA, sT0, vA))
    for i in range(5): p("v_add_u32 v%d, %d, v%d" % (6 + i, (i - 3) * 1024, vA))
    for i in range(5): p("buffer_load_dwordx4 %s, v%d, s[%d:%d], 0 offen%s" % (vr(KR + 4 * i, 4), 6 + i, K_, K_ + 3, ntkv()))
    p("buffer_load_dwordx4 %s, v%d, s[%d:%d], 0 offen%s" % (vr(VR, 4), vA, V_, V_ + 3, ntkv()))
    p("buffer_load_dwordx4 %s, v%d, s[%d:%d], 0 offen offset:1024%s" % (vr(VR + 4, 4), vA, V_, V_ + 3, ntkv()))
def tile_indices(p):
    srd(p, GQ_, P_Q, S * D * 2); srd(p, GW1_, P_W1, D * F * 2)
    p("s_mul_i32 s%d, s%d, 37" % (sT0, sR)); p("s_lshr_b32 s%d, s%d, 8" % (sT0, sT0))
    p("s_mul_i32 s%d, s%d, 7" % (sT1, sT0)); p("s_sub_u32 s%d, s%d, s%d" % (sT1, sR, sT1))
    p("s_lshr_b32 s%d, s%d, 1" % (sT2, sJ)); p("s_lshl_b32 s%d, s%d, 2" % (sT2, sT2))
    p("s_add_u32 s%d, s%d, s%d" % (sRB, sT2, sT0))
    p("s_and_b32 s%d, s%d, 1" % (sT2, sJ)); p("s_mul_i32 s%d, s%d, 7" % (sT2, sT2))
    p("s_add_u32 s%d, s%d, s%d" % (sFT, sT2, sT1))

def touches_g1(p):
    if not OPT["touch"]: return
    p("s_lshl_b32 s%d, s%d, 2" % (sT2, sR)); p("s_add_u32 s%d, s%d, s%d" % (sT2, sT2, sW))
    p("v_lshlrev_b32 v9, 7, v1")
    p("s_lshr_b32 s%d, s%d, 1" % (sT0, sJ)); p("s_lshl_b32 s%d, s%d, 19" % (sT0, sT0))
    p("s_lshl_b32 s%d, s%d, 12" % (sT1, sT2)); p("s_add_u32 s%d, s%d, s%d" % (sT0, sT0, sT1))
    p("s_mov_b32 exec_hi, 0")
    p("buffer_load_dword v188, v9, s[%d:%d], s%d offen%s" % (GQ_, GQ_ + 3, sT0, nt()), "touch")
    p("s_mov_b64 exec, -1")
    p("v_mul_u32_u24 v10, 4682, v1"); p("v_lshrrev_b32 v10, 16, v10")
    p("v_mul_u32_u24 v11, 14, v10"); p("v_sub_u32 v11, v1, v11")
    p("v_mul_u32_u24 v10, 3584, v10"); p("v_lshl_add_u32 v10, v11, 7, v10")
    p("s_mul_i32 s%d, s%d, %d" % (sT0, sT2, 4 * 3584)); p("s_and_b32 s%d, s%d, 1" % (sT1, sJ))
    p("s_mul_i32 s%d, s%d, 1792" % (sT1, sT1)); p("s_add_u32 s%d, s%d, s%d" % (sT0, sT0, sT1))
    p("s_mov_b32 exec_hi, 0x00ffffff")
    p("buffer_load_dword v189, v10, s[%d:%d], s%d offen%s" % (GW1_, GW1_ + 3, sT0, nt()), "touch")
    p("s_mov_b64 exec, -1")

def w2_touch(p):
    p("v_lshlrev_b32 v9, 7, v1")
    p("s_lshl_b32 s83, s%d, 2" % sR); p("s_add_u32 s83, s83, s%d" % sW); p("s_mul_i32 s83, s83, 14336")
    p("buffer_load_dword v190, v9, s[8:11], s83 offen", "touch2")
    p("s_add_u32 s83, s83, 8192")
    begin(p)
    p("s_mov_b32 exec_hi, 0xffff")
    p("buffer_load_dword v191, v9, s[8:11], s83 offen", "touch2")
    p("s_mov_b64 exec, -1")
    end(p)

def w2_touch_part(p, k, n=16):
    p("v_lshlrev_b32 v9, 7, v1")
    p("s_lshl_b32 s83, s%d, 2" % sR); p("s_add_u32 s83, s83, s%d" % sW); p("s_mul_i32 s83, s83, 14336")
    if k: p("s_add_u32 s83, s83, %d" % (k * 16 * 128))
    begin(p)
    p("s_mov_b64 exec, 0x%x" % ((1 << n) - 1)) if n <= 16 else (p("s_mov_b32 exec_lo, 0x%x" % (((1 << min(n, 32)) - 1) & 0xffffffff)), p("s_mov_b32 exec_hi, 0x%x" % ((1 << max(n - 32, 0)) - 1)))
    p("buffer_load_dword v%d, v9, s[8:11], s83 offen%s" % ((186, 187, 190, 191)[k & 3], " nt" if OPT.get("ntw2") else ""), "touch2")
    p("s_mov_b64 exec, -1")
    end(p)
def code_touch(p, kname):
    _uid[0] += 1; u = _uid[0]
    begin(p)
    p("s_getpc_b64 s[76:77]")
    p("Lct%d:" % u)
    p("s_sub_u32 s76, s76, Lct%d-%s" % (u, kname))
    p("s_subb_u32 s77, s77, 0")
    end(p)
    p("s_lshl_b32 s83, s%d, 2" % sR); p("s_add_u32 s83, s83, s%d" % sW)
    p("v_lshlrev_b32 v8, 7, v1"); p("v_add_u32 v8, s83, v8")
    p("v_lshlrev_b32 v8, 7, v8")
    p("v_min_u32 v8, %s_end-%s-4, v8" % (kname_end[0], kname))
    begin(p)
    p("v_mov_b32 v9, s77"); p("v_add_co_u32 v8, vcc, s76, v8"); p("s_nop 1"); p("v_addc_co_u32 v9, vcc, 0, v9, vcc")
    p("s_mov_b64 exec, 7")
    p("global_load_dword v186, v[8:9], off", "codet")
    p("s_mov_b64 exec, -1")
    end(p)
kname_end = ["fz"]

vKL, vKG0, vKG1 = 24, 25, 26
def kv_compute(p):
    RES, A = 100, 108
    p("s_lshl_b32 s%d, s%d, 9" % (sT0, sW)); p("s_add_u32 s%d, s%d, %d" % (sT0, sT0, SK_LDS))
    p("v_and_b32 v11, 31, v1"); p("v_lshlrev_b32 v11, 4, v11"); p("v_add_u32 v11, s%d, v11" % sT0)
    p("v_lshlrev_b32 v2, 6, v%d" % vC); p("v_add_u32 v2, s%d, v2" % sT0)
    p("ds_write_b128 v11, %s" % vr(SKR, 4))
    p("s_lshl_b32 s%d, s%d, 3" % (sT0, sW)); p("s_sub_u32 s%d, 31, s%d" % (sT0, sT0))
    p("v_sub_u32 v15, s%d, v%d" % (sT0, vRR))
    p("v_lshrrev_b32 v6, 2, v15"); p("v_xor_b32 v6, v6, v%d" % vC)
    p("v_and_b32 v15, 3, v15"); p("v_lshlrev_b32 v15, 2, v15")
    p("v_lshl_add_u32 v15, v6, 4, v15"); p("v_lshl_add_u32 v15, v%d, 10, v15" % vC)
    p("v_add_u32 v15, %d, v15" % P_LDS)
    p.wait(lg=0)
    for i in range(4): p("ds_read_b128 %s, v2 offset:%d" % (vr(SKR + 4 * i, 4), 16 * i))
    p("s_mov_b32 s76, 0x05040100"); p("s_mov_b32 s77, 0x07060302")
    for e in range(8):
        dw, hf = e >> 1, e & 1
        sel = 76 + hf
        K = lambda i: KR + 4 * i + dw
        a = A + 8 * (e & 1)
        p("v_perm_b32 v%d, v%d, v%d, s%d" % (a + 0, K(2), K(3), sel))
        p("v_perm_b32 v%d, v%d, v%d, s%d" % (a + 1, K(0), K(1), sel))
        p("v_perm_b32 v%d, v%d, v%d, s%d" % (a + 2, K(3), K(4), sel))
        p("v_perm_b32 v%d, v%d, v%d, s%d" % (a + 3, K(1), K(2), sel))
        p("v_dot2_f32_bf16 v%d, v%d, v%d, 0" % (a + 4, a + 0, SKR + 2 * e))
        p("v_dot2_f32_bf16 v%d, v%d, v%d, 0" % (a + 5, a + 2, SKR + 2 * e))
        unpack(p, a + 6, VR + dw, hf); unpack(p, a + 7, VR + 4 + dw, hf)
        p("v_dot2_f32_bf16 v%d, v%d, v%d, v%d" % (a + 4, a + 1, SKR + 2 * e + 1, a + 4))
        p("v_dot2_f32_bf16 v%d, v%d, v%d, v%d" % (a + 5, a + 3, SKR + 2 * e + 1, a + 5))
        if e > 0:
            b = A + 8 * ((e - 1) & 1)
            p("v_mul_f32 v%d, v%d, v%d" % (b + 4, b + 4, b + 6)); p("v_mul_f32 v%d, v%d, v%d" % (b + 5, b + 5, b + 7))
            p("v_cvt_pk_bf16_f32 v%d, v%d, v%d" % (RES + e - 1, b + 5, b + 4))
            p("ds_write_b32 v15, v%d offset:%d" % (RES + e - 1, (e - 1) * 128))
    b = A + 8
    p("s_lshl_b32 s%d, s%d, 4" % (sT0, sW)); p("v_add_u32 v6, s%d, v%d" % (sT0, vRR))
    p("v_mul_f32 v%d, v%d, v%d" % (b + 4, b + 4, b + 6)); p("v_mul_f32 v%d, v%d, v%d" % (b + 5, b + 5, b + 7))
    p("v_cvt_pk_bf16_f32 v%d, v%d, v%d" % (RES + 7, b + 5, b + 4))
    p("ds_write_b32 v15, v%d offset:%d" % (RES + 7, 7 * 128))
    p("v_lshlrev_b32 v7, 7, v6"); p("v_lshl_add_u32 v7, v%d, 4, v7" % vC); p("v_add_u32 v%d, %d, v7" % (vKL, P_LDS))
    p("v_lshlrev_b32 v8, 12, v6"); p("s_lshl_b32 s%d, s%d, 1" % (sT1, sW))
    p("v_xor_b32 v9, s%d, v%d" % (sT1, vC)); p("v_lshl_add_u32 v%d, v9, 4, v8" % vKG0)
    p("s_add_u32 s%d, s%d, 1" % (sT1, sT1))
    p("v_xor_b32 v10, s%d, v%d" % (sT1, vC)); p("v_lshl_add_u32 v10, v10, 4, v8"); p("v_add_u32 v%d, 0x8000, v10" % vKG1)
def kv_stores(p):
    p("ds_read_b128 v[16:19], v%d" % vKL); p("ds_read_b128 v[20:23], v%d offset:1024" % vKL)
    p("s_lshl_b32 s83, s%d, 18" % sJ); p("s_lshl_b32 s84, s%d, 7" % sR)
    p("s_sub_u32 s83, s83, s84"); p("s_add_u32 s83, s83, 3968")
    p("buffer_store_dwordx4 v[16:19], v%d, s[%d:%d], s83 offen sc1" % (vKG0, KVT_, KVT_ + 3), "kst")
    p("buffer_store_dwordx4 v[20:23], v%d, s[%d:%d], s83 offen sc1" % (vKG1, KVT_, KVT_ + 3), "kst")

SX, SC_ = 128, 64
def sp_loads(p):
    p("s_sub_u32 s72, s%d, 28" % sR)
    p("s_lshr_b32 s%d, s%d, 1" % (sT0, sJ)); p("s_lshl_b32 s%d, s%d, 9" % (sT0, sT0))
    p("s_and_b32 s%d, s%d, 1" % (sT1, sJ)); p("s_lshl_b32 s%d, s%d, 2" % (sT1, sT1)); p("s_add_u32 s%d, s%d, s72" % (sT1, sT1))
    p("s_lshl_b32 s%d, s%d, 6" % (sT1, sT1)); p("s_add_u32 s%d, s%d, s%d" % (sT0, sT0, sT1))
    p("s_lshl_b32 s%d, s%d, 4" % (sT1, sW)); p("s_add_u32 s73, s%d, s%d" % (sT0, sT1))
    p("s_lshl_b32 s%d, s73, 10" % sT0)
    p("v_lshrrev_b32 v10, 3, v1"); p("v_and_b32 v11, 7, v1"); p("v_lshlrev_b32 v11, 4, v11"); p("v_lshl_add_u32 v10, v10, 10, v11")
    for g in range(2):
        for i in range(8):
            p("buffer_load_dwordx4 %s, v10, s[%d:%d], s%d offen offset:%d" % (vr(SX + 32 * g + 4 * i, 4), GQ_, GQ_ + 3, sT0, i * 128), "sx")
        if g == 0: p("s_add_u32 s%d, s%d, 8192" % (sT0, sT0))
    p("s_lshr_b32 s74, s%d, 1" % sJ); p("s_lshl_b32 s74, s74, 2"); p("s_add_u32 s74, s74, s72")
    p("s_lshl_b32 s%d, s74, 5" % sT0); p("s_lshl_b32 s%d, s%d, 3" % (sT1, sW)); p("s_add_u32 s%d, s%d, s%d" % (sT0, sT0, sT1))
    p("s_mul_i32 s%d, s%d, 3584" % (sT0, sT0)); p("s_and_b32 s%d, s%d, 1" % (sT1, sJ)); p("s_mul_i32 s%d, s%d, 1792" % (sT1, sT1))
    p("s_add_u32 s%d, s%d, s%d" % (sT0, sT0, sT1))
    p("v_lshlrev_b32 v12, 4, v1")
    for i in range(8):
        p("buffer_load_dwordx4 %s, v12, s[%d:%d], s%d offen" % (vr(SC_ + 8 * i, 4), GW1_, GW1_ + 3, sT0), "sc")
        p("buffer_load_dwordx4 %s, v12, s[%d:%d], s%d offen offset:1024" % (vr(SC_ + 8 * i + 4, 4), GW1_, GW1_ + 3, sT0), "sc")
        if i < 7: p("s_add_u32 s%d, s%d, 3584" % (sT0, sT0))
def sp_stats(p):
    T = 200
    p("s_mov_b32 s75, 0x3f803f80")
    for g in range(2):
        for h in range(2): p("v_mov_b32 v%d, 0" % (T + 4 * g + h)); p("v_mov_b32 v%d, 0" % (T + 8 + 2 * g + h))
    for i in range(8):
        for g in range(2):
            for d in range(4):
                r_ = SX + 32 * g + 4 * i + d
                aS, aQ = (T + 4 * g, T + 4 * g + 1) if d & 1 else (T + 8 + 2 * g, T + 9 + 2 * g)
                p("v_dot2_f32_bf16 v%d, v%d, s75, v%d" % (aS, r_, aS)); p("v_dot2_f32_bf16 v%d, v%d, v%d, v%d" % (aQ, r_, r_, aQ))
    for g in range(2):
        p("v_add_f32 v%d, v%d, v%d" % (T + 4 * g, T + 4 * g, T + 8 + 2 * g)); p("v_add_f32 v%d, v%d, v%d" % (T + 4 * g + 1, T + 4 * g + 1, T + 9 + 2 * g))
    for ctrl in ("quad_perm:[1,0,3,2] row_mask:0xf", "quad_perm:[2,3,0,1] row_mask:0xf", "row_half_mirror row_mask:0xf"):
        for q in (T, T + 1, T + 4, T + 5):
            p("v_add_f32_dpp v%d, v%d, v%d %s bank_mask:0xf" % (q, q, q, ctrl))
    for g in range(2):
        sS, sQ = T + 4 * g, T + 4 * g + 1
        p("v_mul_f32 v%d, 0x3b000000, v%d" % (sS, sS)); p("v_mul_f32 v%d, 0x3b000000, v%d" % (sQ, sQ))
    for g in range(2): p("v_fma_f32 v%d, -v%d, v%d, v%d" % (T + 4 * g + 1, T + 4 * g, T + 4 * g, T + 4 * g + 1))
    for g in range(2): p("v_max_f32 v%d, 0, v%d" % (T + 4 * g + 1, T + 4 * g + 1))
    for g in range(2): p("v_add_f32 v%d, 0x3727c5ac, v%d" % (T + 4 * g + 1, T + 4 * g + 1))
    for g in range(2): p("v_rsq_f32 v%d, v%d" % (T + 4 * g + 1, T + 4 * g + 1))
def sp_stats_store(p):
    T = 200
    for q in (T + 2, T + 3, T + 6, T + 7): p("v_mov_b32 v%d, s%d" % (q, sN))
    p("v_lshrrev_b32 v10, 3, v1"); p("v_lshlrev_b32 v10, 4, v10")
    p("s_lshl_b32 s%d, s73, 4" % sT0)
    p("s_mov_b32 exec_lo, 0x01010101"); p("s_mov_b32 exec_hi, 0x01010101")
    p("buffer_store_dwordx4 %s, v10, s[%d:%d], s%d offen sc1" % (vr(T, 4), ST_, ST_ + 3, sT0), "pst")
    p("buffer_store_dwordx4 %s, v10, s[%d:%d], s%d offen offset:128 sc1" % (vr(T + 4, 4), ST_, ST_ + 3, sT0), "pst")
    p("s_mov_b64 exec, -1")
SPC_LDS = 0
def sp_cs(p):
    A = 216
    p("s_mov_b32 s76, 0x00003f80"); p("s_mov_b32 s77, 0x3f800000")
    for i in range(8):
        for part in range(2):
            for d in range(4):
                r_ = SC_ + 8 * i + 4 * part + d; a = A + 8 * part + 2 * d
                p("v_dot2_f32_bf16 v%d, v%d, s76, %s" % (a, r_, "0" if i == 0 else "v%d" % a))
                p("v_dot2_f32_bf16 v%d, v%d, s77, %s" % (a + 1, r_, "0" if i == 0 else "v%d" % (a + 1)))
    p("v_lshlrev_b32 v10, 5, v1"); p("s_lshl_b32 s%d, s%d, 12" % (sT0, sW)); p("v_add_u32 v10, s%d, v10" % sT0)
    for part in range(2):
        p("ds_write_b128 v10, %s offset:%d" % (vr(A + 8 * part, 4), SPC_LDS + part * 2048))
        p("ds_write_b128 v10, %s offset:%d" % (vr(A + 8 * part + 4, 4), SPC_LDS + part * 2048 + 16))
def sp_cs_store(p):
    p("v_lshlrev_b32 v10, 4, v0")
    for w in range(4): p("ds_read_b128 %s, v10 offset:%d" % (vr(64 + 4 * w, 4), SPC_LDS + w * 4096))
    for c in range(4):
        p("v_add_f32 v%d, v%d, v%d" % (64 + c, 64 + c, 68 + c)); p("v_add_f32 v%d, v%d, v%d" % (72 + c, 72 + c, 76 + c))
    for c in range(4): p("v_add_f32 v%d, v%d, v%d" % (80 + 2 * c, 64 + c, 72 + c)); p("v_mov_b32 v%d, s%d" % (81 + 2 * c, sN))
    p("s_mul_i32 s%d, s74, %d" % (sT0, 1792 * 8)); p("s_and_b32 s%d, s%d, 1" % (sT1, sJ)); p("s_mul_i32 s%d, s%d, %d" % (sT1, sT1, 896 * 8))
    p("s_add_u32 s%d, s%d, s%d" % (sT0, sT0, sT1))
    p("v_lshlrev_b32 v11, 5, v0")
    p("v_cmp_gt_u32 vcc, 224, v0"); p("s_nop 1"); p("v_cndmask_b32 v11, v253, v11, vcc"); p("v_mov_b32 v12, 0x7f000000")
    p("v_cndmask_b32 v11, v12, v11, vcc")
    p("buffer_store_dwordx4 v[80:83], v11, s[%d:%d], s%d offen sc1" % (CSP_, CSP_ + 3, sT0), "pst")
    p("buffer_store_dwordx4 v[84:87], v11, s[%d:%d], s%d offen offset:16 sc1" % (CSP_, CSP_ + 3, sT0), "pst")
def fk_publish(p, name):
    p("s_cmp_eq_u32 s%d, 0" % sW)
    p("s_cbranch_scc0 %s_nofk" % name)
    st = side_path_begin(p)
    p("s_lshl_b32 s%d, s%d, 5" % (sT0, sJ)); p("s_add_u32 s%d, s%d, s%d" % (sT0, sT0, sR))
    p("s_lshl_b32 s%d, s%d, 7" % (sT0, sT0))
    if FL_FK: p("s_add_u32 s%d, s%d, %d" % (sT0, sT0, FL_FK))
    flag_store(p, sT0)
    side_path_end(p, st)
    p.label("%s_nofk" % name)
vPK, vPA = 184, 185
def fk_addr(p, all_waves=False):
    p("v_min_u32 v%d, 31, v1" % vPA); p("v_lshlrev_b32 v%d, 7, v%d" % (vPA, vPA))
    if not all_waves:
        p("s_min_u32 s85, s%d, 1" % sW); p("s_sub_u32 s85, 1, s85"); p("v_mul_u32_u24 v%d, s85, v%d" % (vPA, vPA))
    p("s_lshl_b32 s85, s%d, 12" % sJ)
    if FL_FK: p("s_add_u32 s85, s85, %d" % FL_FK)

vX, vWd, vXA, vWA = 192, 196, 200, 208
G1_ACC = 64
vCS, vB1, vST = 128, 180, 212
B1_ = 40
def g1_dma_setup(p):
    p("v_lshrrev_b32 v10, 3, v1"); p("v_and_b32 v11, 7, v1"); p("v_lshrrev_b32 v12, 1, v10")
    for ii in range(4):
        p("v_add_u32 v13, %d, v12" % (4 * (ii & 1))); p("v_xor_b32 v13, v13, v11")
        p("v_lshlrev_b32 v13, 4, v13"); p("v_lshl_add_u32 v13, v10, 10, v13")
        p("v_add_u32 v%d, %d, v13" % (vX + ii, ii * 8192))
    p("v_lshrrev_b32 v10, 4, v1"); p("v_and_b32 v11, 15, v1"); p("v_lshlrev_b32 v12, 2, v10")
    p("v_xor_b32 v12, v12, v11"); p("v_lshlrev_b32 v12, 4, v12")
    p("v_mul_u32_u24 v13, 3584, v10"); p("v_add_u32 v13, v13, v12")
    for ii in range(4): p("v_add_u32 v%d, %d, v13" % (vWd + ii, ii * 4 * 3584))
    p("s_lshl_b32 s%d, s%d, 17" % (sXo, sRB)); p("s_lshl_b32 s%d, s%d, 15" % (sT0, sW))
    p("s_add_u32 s%d, s%d, s%d" % (sXo, sXo, sT0))
    p("s_mul_i32 s%d, s%d, %d" % (sWo, sW, 16 * 3584)); p("s_lshl_b32 s%d, s%d, 8" % (sT0, sFT))
    p("s_add_u32 s%d, s%d, s%d" % (sWo, sWo, sT0))
    p("s_lshl_b32 s%d, s%d, 12" % (sM, sW))
def g1_dma_stage(s):
    out = []; slot = s % 4
    for ii in range(4):
        out.append([("s_add_u32 m0, s%d, %d" % (sM, slot * 32768 + ii * 1024), None),
                    ("buffer_load_dwordx4 v%d, s[%d:%d], s%d offen lds" % (vX + ii, GQ_, GQ_ + 3, sXo), "st%d" % s)])
    for ii in range(4):
        out.append([("s_add_u32 m0, s%d, %d" % (sM, slot * 32768 + 16384 + ii * 1024), None),
                    ("buffer_load_dwordx4 v%d, s[%d:%d], s%d offen lds" % (vWd + ii, GW1_, GW1_ + 3, sWo), "st%d" % s)])
    out[-1] += [("s_add_u32 s%d, s%d, 128" % (sXo, sXo), None), ("s_add_u32 s%d, s%d, %d" % (sWo, sWo, 64 * 3584), None)]
    return out
def g1_lds_setup(p):
    p("v_and_b32 v10, 31, v1"); p("v_lshrrev_b32 v11, 5, v1")
    p("v_lshrrev_b32 v12, 1, v10"); p("v_and_b32 v12, 7, v12"); p("v_xor_b32 v12, v12, v11")
    p("s_lshr_b32 s%d, s%d, 1" % (sT1, sW)); p("s_lshl_b32 s%d, s%d, 13" % (sT1, sT1))
    p("v_lshlrev_b32 v13, 7, v10"); p("v_add_u32 v13, s%d, v13" % sT1)
    for jj in range(4):
        p("v_xor_b32 v14, %d, v12" % (2 * jj))
        p("v_lshl_add_u32 v%d, v14, 4, v13" % (vXA + jj))
        p("v_add_u32 v%d, 0x10000, v%d" % (vXA + 4 + jj, vXA + jj))
    p("v_and_b32 v10, 15, v1"); p("v_lshrrev_b32 v11, 4, v1"); p("v_lshrrev_b32 v12, 1, v11")
    p("v_and_b32 v11, 1, v11"); p("v_lshrrev_b32 v13, 2, v10")
    p("v_lshl_add_u32 v12, v12, 3, v13"); p("v_lshlrev_b32 v12, 8, v12")
    p("v_and_b32 v14, 1, v10"); p("v_lshl_add_u32 v12, v14, 3, v12"); p("v_add_u32 v12, 16384, v12")
    p("v_and_b32 v14, 3, v10"); p("v_lshrrev_b32 v14, 1, v14"); p("v_lshl_add_u32 v14, v11, 1, v14")
    p("s_and_b32 s%d, s%d, 1" % (sT1, sW)); p("s_lshl_b32 s%d, s%d, 3" % (sT1, sT1))
    p("v_add_u32 v14, s%d, v14" % sT1); p("v_lshlrev_b32 v13, 2, v13")
    for fb in range(2):
        p("v_add_u32 v15, %d, v14" % (4 * fb)); p("v_xor_b32 v15, v15, v13")
        p("v_lshl_add_u32 v%d, v15, 4, v12" % (vWA + fb))
        p("v_add_u32 v%d, 0x10000, v%d" % (vWA + 2 + fb, vWA + fb))

def tab_loads(p):
    p("v_lshlrev_b32 v10, 4, v1")
    p("s_lshl_b32 s83, s%d, 2" % sW); p("s_mul_i32 s83, s83, %d" % (1792 * 8)); p("s_lshl_b32 s84, s%d, 10" % sFT); p("s_add_u32 s83, s83, s84")
    for i in range(4):
        p("buffer_load_dwordx4 %s, v10, s[%d:%d], s83 offen sc1" % (vr(vCS + 4 * i, 4), CSP_, CSP_ + 3), "tab")
        if i < 3: p("s_add_u32 s83, s83, %d" % (1792 * 8))
    p("s_lshr_b32 s84, s%d, 1" % sW); p("s_lshl_b32 s84, s84, 6")
    p("s_lshl_b32 s83, s%d, 7" % sRB); p("s_add_u32 s83, s83, s84"); p("s_lshl_b32 s83, s83, 4")
    p("v_and_b32 v12, 31, v1"); p("v_lshlrev_b32 v12, 4, v12")
    p("buffer_load_dwordx4 %s, v12, s[%d:%d], s83 offen sc1" % (vr(vST, 4), ST_, ST_ + 3), "tab")
    p("buffer_load_dwordx4 %s, v12, s[%d:%d], s83 offen offset:512 sc1" % (vr(vST + 4, 4), ST_, ST_ + 3), "tab")
def tab_check(p):
    _uid[0] += 1; u = _uid[0]
    def cmp():
        tags = [vCS + 4 * i + 1 for i in range(4)] + [vCS + 4 * i + 3 for i in range(4)] + [vST + 2, vST + 6]
        p("v_min3_u32 v10, v%d, v%d, v%d" % tuple(tags[0:3])); p("v_max3_u32 v11, v%d, v%d, v%d" % tuple(tags[0:3]))
        for i in range(3, 9, 2):
            p("v_min3_u32 v10, v10, v%d, v%d" % (tags[i], tags[i + 1])); p("v_max3_u32 v11, v11, v%d, v%d" % (tags[i], tags[i + 1]))
        p("v_min_u32 v10, v10, v%d" % tags[9]); p("v_max_u32 v11, v11, v%d" % tags[9])
        p("v_cmp_ne_u32 vcc, s%d, v10" % sN); p("v_cmp_ne_u32 s[76:77], s%d, v11" % sN)
        p("s_or_b64 vcc, vcc, s[76:77]"); p("s_nop 4")
    cmp()
    p("s_cbranch_vccz Lt%d_ok" % u)
    saved = (list(p.vm), list(p.lg))
    p("s_mov_b32 s79, 0")
    p.label("Lt%d_loop" % u)
    p("s_sleep 2")
    tab_loads(p)
    p.wait(vm=0)
    cmp()
    p("s_cbranch_vccz Lt%d_ok" % u)
    p("s_add_u32 s79, s79, 1"); p("s_cmp_lt_u32 s79, 0x40000"); p("s_cbranch_scc1 Lt%d_loop" % u)
    p.label("Lt%d_ok" % u)
    p.vm, p.lg = saved
def tab_partial(p):
    p("v_add_f32 v%d, v%d, v%d" % (vCS, vCS, vCS + 4)); p("v_add_f32 v%d, v%d, v%d" % (vCS + 2, vCS + 2, vCS + 6))
    p("v_add_f32 v%d, v%d, v%d" % (vCS + 8, vCS + 8, vCS + 12)); p("v_add_f32 v%d, v%d, v%d" % (vCS + 10, vCS + 10, vCS + 14))
    p("v_add_f32 v%d, v%d, v%d" % (vCS, vCS, vCS + 8)); p("v_add_f32 v%d, v%d, v%d" % (vCS + 1, vCS + 2, vCS + 10))
    p("v_lshlrev_b32 v10, 3, v1"); p("s_lshl_b32 s83, s%d, 9" % sW); p("v_add_u32 v10, s83, v10"); p("v_add_u32 v10, %d, v10" % CSQ_LDS)
    p("ds_write_b64 v10, %s" % vr(vCS, 2))

def g1_main(p, fill):
    ACC = G1_ACC; FR = 32
    def reads(g):
        s, jj = g // 4, g % 4
        slot = s % 4; hi = slot >= 2; so = (slot & 1) * 32768
        f = FR + 16 * (g & 1); out = []
        for fb in range(2):
            for rr in range(2):
                out.append("ds_read_b64_tr_b16 %s, v%d offset:%d" % (vr(f + 4 * fb + 2 * rr, 2), vWA + fb + (2 if hi else 0), so + jj * 4096 + rr * 1024))
        for tb in range(2):
            out.append("ds_read_b128 %s, v%d offset:%d" % (vr(f + 8 + 4 * tb, 4), vXA + jj + (4 if hi else 0), so + tb * 4096))
        return out
    def mfmas(g):
        f = FR + 16 * (g & 1); out = []
        for fb in range(2):
            for tb in range(2):
                a = ACC + 16 * (2 * fb + tb)
                out.append("v_mfma_f32_32x32x16_bf16 %s, %s, %s, %s" % (vr(a, 16), vr(f + 4 * fb, 4), vr(f + 8 + 4 * tb, 4), "0" if g == 0 else vr(a, 16)))
        return out
    for s in range(8):
        prewait, pre, units = fill[s][:3]
        tail = fill[s][3] if len(fill[s]) > 3 else []
        p.wait_tag("st%d" % s)
        prewait(p)
        p("s_barrier")
        stamp(p, "g1_st%d" % s)
        pre(p)
        dm = g1_dma_stage(s + 3) if (s + 3 < 8 and s >= 1) else []
        if s == 0: dm = g1_dma_stage(3)
        nm = 16 if s > 0 else 12
        di = ui = k = 0
        for jj in range(4):
            g = 4 * s + jj
            rd = reads(g)
            if g == 0:
                for t in rd: p(t)
                continue
            for q, t in enumerate(mfmas(g - 1)):
                p(t)
                for r_ in rd[2 * q:2 * q + 2]: p(r_)
                k += 1
                while di < len(dm) and di * nm < k * len(dm):
                    emit(p, dm[di]); di += 1
                while ui < len(units) and ui * nm < k * len(units):
                    emit(p, [units[ui]]); ui += 1
        while di < len(dm): emit(p, dm[di]); di += 1
        while ui < len(units): emit(p, [units[ui]]); ui += 1
        emit(p, tail)
    for t in mfmas(31): p(t)

def g1_epilogue(p, extra):
    HF_ = 44
    srd(p, HF_, P_WS, SZ_HF, WS_HF)
    ACC = G1_ACC; TBL = 128
    p("v_lshrrev_b32 v10, 5, v1"); p("v_lshlrev_b32 v10, 4, v10")
    p("s_and_b32 s%d, s%d, 1" % (sT1, sW)); p("s_lshl_b32 s%d, s%d, 8" % (sT1, sT1))
    p("v_add_u32 v10, s%d, v10" % sT1); p("v_add_u32 v10, %d, v10" % TAB_LDS)
    for rq in range(4):
        p("ds_read_b128 %s, v10 offset:%d" % (vr(TBL + 4 * rq, 4), rq * 32))
        p("ds_read_b128 %s, v10 offset:%d" % (vr(TBL + 16 + 4 * rq, 4), 512 + rq * 32))
    p("s_lshr_b32 s%d, s%d, 1" % (sT1, sW)); p("s_lshl_b32 s%d, s%d, 1" % (sT1, sT1))
    p("s_lshl_b32 s%d, s%d, 2" % (sT0, sRB)); p("s_add_u32 s%d, s%d, s%d" % (sT0, sT0, sT1))
    p("s_mul_i32 s%d, s%d, 112" % (sT0, sT0)); p("s_lshl_b32 s%d, s%d, 3" % (sT1, sFT))
    p("s_add_u32 s%d, s%d, s%d" % (sT0, sT0, sT1))
    p("s_and_b32 s%d, s%d, 1" % (sT1, sW)); p("s_lshl_b32 s%d, s%d, 2" % (sT1, sT1))
    p("s_add_u32 s%d, s%d, s%d" % (sT0, sT0, sT1)); p("s_lshl_b32 s83, s%d, 10" % sT0)
    p("v_lshlrev_b32 v11, 4, v1"); p("v_add_u32 v12, %d, v11" % (112 * 1024))
    for tb in range(2): p("v_mul_f32 v%d, v%d, v%d" % (vST + 4 * tb, vST + 4 * tb, vST + 4 * tb + 1))
    main = []
    TB2 = 32
    for fb in range(2):
        tbl = TBL if fb == 0 else TB2
        for tb in range(2):
            a = ACC + 16 * (2 * fb + tb); mu = vST + 4 * tb
            PK = 160 + 8 * tb
            if fb == 0 and tb == 0:
                for rq in range(4):
                    main.append(("ds_read_b128 %s, v10 offset:%d" % (vr(TB2 + 4 * rq, 4), 128 + rq * 32), None))
                    main.append(("ds_read_b128 %s, v10 offset:%d" % (vr(TB2 + 16 + 4 * rq, 4), 512 + 128 + rq * 32), None))
            for r_ in range(0, 16, 4):
                t0, t1 = 176, 178
                for t, rr in ((t0, r_), (t1, r_ + 2)):
                    main.append(("v_pk_fma_f32 %s, %s, %s, %s op_sel_hi:[0,1,1] neg_lo:[1,0,0] neg_hi:[1,0,0]" % (vr(t, 2), vr(mu, 2), vr(tbl + rr, 2), vr(tbl + 16 + rr, 2)), None))
                for t, rr in ((t0, r_), (t1, r_ + 2)):
                    main.append(("v_pk_fma_f32 %s, %s, %s, %s op_sel:[0,1,0] op_sel_hi:[1,1,1]" % (vr(t, 2), vr(a + rr, 2), vr(mu, 2), vr(t, 2)), None))
                for t in (t0, t0 + 1, t1, t1 + 1): main.append(("v_max_f32 v%d, 0, v%d" % (t, t), None))
                for t in (t0, t1): main.append(("v_pk_mul_f32 %s, %s, %s" % (vr(t, 2), vr(t, 2), vr(t, 2)), None))
                for t, rr in ((t0, r_), (t1, r_ + 2)): main.append(("v_cvt_pk_bf16_f32 v%d, v%d, v%d" % (PK + (rr >> 1), t, t + 1), None))
            for q in range(2):
                main.append(("buffer_store_dwordx4 %s, v%d, s[%d:%d], s83 offen offset:%d sc1" % (vr(PK + 4 * q, 4), 11 + tb, HF_, HF_ + 3, (2 * fb + q) * 1024), "hst"))
    n = len(extra); k = 0
    for i, it in enumerate(main):
        emit(p, [it])
        while k < n and k * len(main) < (i + 1) * n:
            emit(p, [extra[k]]); k += 1

def h_publish(p):
    p("s_lshl_b32 s%d, s%d, 1" % (sT0, sRB)); p("s_lshr_b32 s%d, s%d, 1" % (sT1, sW))
    p("s_add_u32 s%d, s%d, s%d" % (sT0, sT0, sT1)); p("s_mul_i32 s%d, s%d, 28" % (sT0, sT0))
    p("s_lshl_b32 s%d, s%d, 1" % (sT1, sFT)); p("s_add_u32 s%d, s%d, s%d" % (sT0, sT0, sT1))
    p("s_and_b32 s%d, s%d, 1" % (sT1, sW)); p("s_add_u32 s%d, s%d, s%d" % (sT0, sT0, sT1))
    p("s_lshl_b32 s%d, s%d, 7" % (sT0, sT0)); p("s_add_u32 s%d, s%d, %d" % (sT0, sT0, FL_FH))
    flag_store(p, sT0)

KVT2_, SSM_, DD_, ZT_ = 48, 52, 56, 60
CV_R, vDD = 220, 254
def conv_setup(p):
    srd(p, KVT2_, P_WS, SZ_KVT, WS_KVT); srd(p, SSM_, P_SSM, D * S * 2); srd(p, DD_, P_DD, D * 2); srd(p, ZT_, P_WS, SZ_ZT, WS_ZT)
    p("s_lshr_b32 s%d, s%d, 1" % (sT0, sW)); p("s_and_b32 s%d, s%d, 1" % (sC2, sW))
    p("s_lshl_b32 s%d, s%d, 6" % (sCH, sJ)); p("s_lshl_b32 s%d, s%d, 1" % (sT1, sR))
    p("s_add_u32 s%d, s%d, s%d" % (sCH, sCH, sT1)); p("s_add_u32 s%d, s%d, s%d" % (sCH, sCH, sT0))
    p("s_mul_i32 s%d, s%d, 21248" % (sCB, sT0)); p("s_add_u32 s%d, s%d, %d" % (sCB, sCB, CV0 + 256))
def conv_loads_regs(p):
    p("s_lshl_b32 s83, s%d, 12" % sCH); p("s_lshl_b32 s84, s%d, 11" % sC2); p("s_add_u32 s83, s83, s84")
    p("v_lshlrev_b32 v2, 4, v1")
    R = CV_R
    for sg in range(2):
        for k in range(3):
            p("buffer_load_dwordx4 %s, v2, s[%d:%d], s83 offen offset:%d sc1" % (vr(R + 12 * sg + 4 * k, 4), KVT2_, KVT2_ + 3, sg * 1024 + 4 * k), "cv")
    p("v_mov_b32 v4, 0"); p("s_lshl_b32 s84, s%d, 1" % sCH)
    p("buffer_load_ushort v%d, v4, s[%d:%d], s84 offen" % (vDD, DD_, DD_ + 3), "cv")
def conv_loads_lds(p):
    p("s_lshl_b32 s%d, s%d, 12" % (sT0, sCH)); p("s_lshl_b32 s%d, s%d, 11" % (sT1, sC2))
    p("s_add_u32 s%d, s%d, s%d" % (sT0, sT0, sT1))
    p("v_lshlrev_b32 v2, 4, v1")
    for sg in range(2):
        p("s_add_u32 s%d, s%d, s%d" % (sT2, sCB, sT1))
        p("s_add_u32 m0, s%d, %d" % (sT2, 16640 + 512 + sg * 1024))
        p("s_add_u32 s%d, s%d, %d" % (sT2, sT0, sg * 1024))
        p("buffer_load_dwordx4 v2, s[%d:%d], s%d offen lds" % (SSM_, SSM_ + 3, sT2), "cv")
    for i in range(4): p("v_mov_b32 v%d, 0" % (16 + i))
    p("v_lshrrev_b32 v5, 1, v1"); p("v_mul_u32_u24 v5, 4160, v5")
    p("v_and_b32 v6, 1, v1"); p("v_lshl_add_u32 v5, v6, 4, v5"); p("v_add_u32 v5, 4096, v5")
    p("v_add_u32 v6, 16640, v2")
    p("s_cmp_eq_u32 s%d, 0" % sC2)
    p("s_cselect_b32 s76, 0xff, -1")
    p("s_cselect_b64 vcc, -1, 0")
    p("v_cndmask_b32 v5, v6, v5, vcc")
    p("v_add_u32 v5, s%d, v5" % sCB)
    p("s_mov_b32 exec_lo, s76"); p("s_mov_b32 exec_hi, 0")
    p("ds_write_b128 v5, v[16:19]")
    p("s_mov_b64 exec, -1")

def conv_fill(p):
    R = CV_R
    p("v_lshlrev_b32 v2, 4, v1"); p("v_mov_b32 v8, 0")
    p("s_lshl_b32 s77, s%d, 31" % sC2); p("s_mov_b32 s76, 0")
    last = R + 12
    for rg in (last + 7, last + 10, last + 11): p("v_cndmask_b32 v%d, v%d, v8, s[76:77]" % (rg, rg))
    p("s_lshl_b32 s%d, s%d, 11" % (sT1, sC2)); p("s_add_u32 s%d, s%d, s%d" % (sT1, sT1, sCB))
    p("v_add_u32 v5, s%d, v2" % sT1)
    for sg in range(2):
        r0, r1, r2 = R + 12 * sg, R + 12 * sg + 4, R + 12 * sg + 8
        c1, c3 = 40 + 8 * sg, 44 + 8 * sg
        p("ds_write_b128 v5, %s offset:%d" % (vr(r0, 4), sg * 1024))
        for i in range(4): p("v_alignbit_b32 v%d, v%d, v%d, 16" % (c1 + i, r1 + i, r0 + i))
        p("ds_write_b128 v5, %s offset:%d" % (vr(r1, 4), 2 * 4160 + sg * 1024))
        for i in range(4): p("v_alignbit_b32 v%d, v%d, v%d, 16" % (c3 + i, r2 + i, r1 + i))
        p("ds_write_b128 v5, %s offset:%d" % (vr(c1, 4), 4160 + sg * 1024))
        p("ds_write_b128 v5, %s offset:%d" % (vr(c3, 4), 3 * 4160 + sg * 1024))

def conv_main(p, extra_by_class):
    vA, vB = 12, 13
    p("v_and_b32 v6, 15, v1"); p("v_lshrrev_b32 v7, 4, v1")
    p("v_sub_u32 v14, 3, v6"); p("v_and_b32 v14, 3, v14")
    p("v_mul_u32_u24 v15, 4158, v14")
    p("v_lshlrev_b32 v14, 1, v6"); p("v_sub_u32 v15, v15, v14"); p("v_lshl_add_u32 v15, v7, 4, v15")
    p("s_lshl_b32 s%d, s%d, 8" % (sT1, sC2)); p("s_sub_u32 s%d, s%d, s%d" % (sT1, sCB, sT1))
    p("s_add_u32 s%d, s%d, 30" % (sT2, sT1)); p("v_add_u32 v%d, s%d, v15" % (vA, sT2))
    p("v_lshlrev_b32 v15, 5, v6"); p("v_lshl_add_u32 v15, v7, 4, v15")
    p("s_add_u32 s%d, s%d, %d" % (sT2, sT1, 16640 + 32)); p("v_add_u32 v%d, s%d, v15" % (vB, sT2))
    ACC = 64
    p.wait(lg=0)
    p("s_barrier")
    stamp(p, "conv_filled")
    FA, FB = 96, 160
    def reads(rl):
        st = rl & 1; out = []
        for x in range(8):
            oa = 64 * (63 - rl - 8 * x)
            out.append(("ds_read_b64 %s, v%d offset:%d" % (vr(FA + 32 * st + 4 * x, 2), vA, oa), None))
            out.append(("ds_read_b64 %s, v%d offset:%d" % (vr(FA + 32 * st + 4 * x + 2, 2), vA, oa + 8), None))
            out.append(("ds_read_b128 %s, v%d offset:%d" % (vr(FB + 32 * st + 4 * x, 4), vB, 64 * (7 - rl + 8 * x)), None))
        return out
    seen = set()
    def mf(rl):
        st = rl & 1; out = []
        pairs = sorted([(a, b) for a in range(8) for b in range(8) if a + b <= 7], key=lambda ab: (max(ab), ab))
        for a, b in pairs:
            c = vr(ACC + 4 * (a + b), 4)
            first = (a + b) not in seen; seen.add(a + b)
            out.append(("v_mfma_f32_16x16x32_bf16 %s, %s, %s, %s" % (c, vr(FA + 32 * st + 4 * a, 4), vr(FB + 32 * st + 4 * b, 4), "0" if first else c), None))
        return out
    for t in reads(0): p(*t)
    for rl in range(4):
        pre, fill = extra_by_class[rl]
        pre(p)
        nxt = (reads(rl + 1) if rl < 3 else [])
        m = mf(rl)
        ni = fi = 0
        for i, t in enumerate(m):
            p(*t)
            while ni < len(nxt) and ni * 30 < (i + 1) * len(nxt): p(*nxt[ni]); ni += 1
            while fi < len(fill) and fi * 36 < (i + 1) * len(fill): emit(p, [fill[fi]]); fi += 1
    stamp(p, "conv_mma_done")

def conv_finish(p, name, extra):
    ACC = 64
    RB = RB_LDS
    p("v_lshlrev_b32 v2, 4, v1")
    p("s_lshl_b32 s%d, s%d, 12" % (sT1, sW))
    p("v_add_u32 v5, s%d, v2" % sT1); p("v_add_u32 v5, %d, v5" % RB)
    p("s_xor_b32 s%d, s%d, 1" % (sT1, sW)); p("s_lshl_b32 s%d, s%d, 12" % (sT1, sT1))
    p("v_add_u32 v14, s%d, v2" % sT1); p("v_add_u32 v14, %d, v14" % RB)
    p("v_lshlrev_b32 v15, 5, v6"); p("v_lshl_add_u32 v15, v7, 3, v15")
    p("s_lshl_b32 s%d, s%d, 11" % (sT1, sC2)); p("s_sub_u32 s%d, s%d, s%d" % (sT2, sCB, sT1))
    p("s_add_u32 s%d, s%d, %d" % (sT2, sT2, 4088 - 1536)); p("v_sub_u32 v16, s%d, v15" % sT2)
    p("s_lshl_b32 s84, s%d, 12" % sCH); p("s_add_u32 s84, s84, s%d" % sT1)
    p("v_lshlrev_b32 v%d, 16, v%d" % (vDD, vDD))
    for q in range(4): p("ds_read_b64 %s, v16 offset:%d" % (vr(36 + 2 * q, 2), (3 - q) * 512))
    n1 = len(extra) // 2
    emit(p, extra[:n1])
    st = side_path_begin(p); hist = len(p.out)
    p("s_cmp_eq_u32 s%d, 0" % sC2)
    p("s_cbranch_scc0 %s_hi" % name)
    for variant in range(2):
        keep = ACC + 16 * variant; give = ACC + 16 * (1 - variant)
        if variant == 1:
            p("s_branch %s_cdone" % name)
            p.label("%s_hi" % name)
            side_path_end(p, st)
            p("s_nop 7")
        for q in range(4): p("ds_write_b128 v5, %s offset:%d" % (vr(give + 4 * q, 4), q * 1024))
        for q in range(4):
            a_ = keep + 4 * q; u = 36 + 2 * q
            for c, (src, hf) in enumerate(((u + 1, 1), (u + 1, 0), (u, 1), (u, 0))):
                unpack(p, 44 + (c & 1), src, hf)
                p("v_fmac_f32 v%d, v%d, v%d" % (a_ + c, 44 + (c & 1), vDD))
        p.wait(lg=0)
        p("s_barrier")
        for q in range(4): p("ds_read_b128 %s, v14 offset:%d" % (vr(20 + 4 * q, 4), q * 1024))
        for q in range(4):
            a_ = keep + 4 * q
            for c in range(4): p("v_add_f32 v%d, v%d, v%d" % (a_ + c, a_ + c, 20 + 4 * q + c))
            p("v_cvt_pk_bf16_f32 v%d, v%d, v%d" % (48 + 2 * q, a_, a_ + 1))
            p("v_cvt_pk_bf16_f32 v%d, v%d, v%d" % (49 + 2 * q, a_ + 2, a_ + 3))
    p.label("%s_cdone" % name)
    emit(p, extra[n1:])
def z_stores(p):
    for q in range(4):
        p("buffer_store_dwordx2 %s, v15, s[%d:%d], s84 offen offset:%d sc1" % (vr(48 + 2 * q, 2), ZT_, ZT_ + 3, q * 512), "zst")
def z_publish(p):
    p("s_lshl_b32 s%d, s%d, 7" % (sT0, sJ)); p("s_lshl_b32 s%d, s%d, 2" % (sT1, sR))
    p("s_add_u32 s%d, s%d, s%d" % (sT0, sT0, sT1)); p("s_add_u32 s%d, s%d, s%d" % (sT0, sT0, sW))
    p("s_lshl_b32 s%d, s%d, 7" % (sT0, sT0)); p("s_add_u32 s%d, s%d, %d" % (sT0, sT0, FL_FZ))
    flag_store(p, sT0)

HF2_, W2_, Q2_, ZT2_, ST2_, B2_, OUT_ = 40, 8, 48, 52, 56, 64, 44
vH0, vH1, vD0, vD1 = 244, 245, 246, 247
vFH, vFHA = 248, 249
vTRA = 60
sWS = 75
NS = 28
STASH0 = 0
HB = 128
def g2_setup(p):
    srd(p, W2_, P_W2, F * D * 2)
    p("s_lshl_b32 s%d, s%d, 8" % (sTok, sJ))
    p("s_lshr_b32 s%d, s%d, 3" % (sT0, sR)); p("s_lshl_b32 s%d, s%d, 6" % (sT0, sT0))
    p("s_add_u32 s%d, s%d, s%d" % (sTok, sTok, sT0))
    p("s_add_u32 s%d, s%d, %d" % (sCh, sR, OPT.get("cbrot", 0))); p("s_and_b32 s%d, s%d, 7" % (sCh, sCh)); p("s_lshl_b32 s%d, s%d, 6" % (sCh, sCh))
    p("s_lshr_b32 s%d, s%d, 5" % (sT0, sTok)); p("s_mul_i32 s%d, s%d, 112" % (sT0, sT0))
    p("s_mul_i32 s%d, s%d, 28" % (sT1, sW))
    p("s_add_u32 s%d, s%d, s%d" % (sT0, sT0, sT1)); p("s_lshl_b32 s%d, s%d, 10" % (sHo, sT0))
    p("s_lshl_b32 s%d, s%d, 14" % (sWA, sT1)); p("s_lshl_b32 s%d, s%d, 1" % (sT0, sCh))
    p("s_add_u32 s%d, s%d, s%d" % (sWA, sWA, sT0))
    p("s_lshl_b32 s%d, s%d, 11" % (sM2, sW))
    p("v_lshlrev_b32 v%d, 4, v1" % vH0)
    p("v_add_u32 v%d, %d, v%d" % (vH1, 112 * 1024, vH0))
    p("v_lshrrev_b32 v10, 3, v1"); p("v_and_b32 v11, 7, v1")
    p("v_lshrrev_b32 v12, 1, v10"); p("v_and_b32 v12, 1, v12"); p("v_lshlrev_b32 v12, 2, v12")
    p("v_xor_b32 v12, v12, v11"); p("v_lshlrev_b32 v12, 4, v12")
    p("v_lshl_add_u32 v%d, v10, 10, v12" % vD0)
    p("v_add_u32 v%d, 8192, v%d" % (vD1, vD0))
def g2_setup_tr(p):
    p("v_and_b32 v10, 15, v1"); p("v_lshrrev_b32 v11, 4, v1"); p("v_lshrrev_b32 v12, 1, v11"); p("v_and_b32 v11, 1, v11")
    p("v_lshrrev_b32 v13, 2, v10"); p("v_lshl_add_u32 v12, v12, 2, v13"); p("v_lshlrev_b32 v12, 7, v12")
    p("v_and_b32 v14, 3, v10"); p("v_lshrrev_b32 v15, 1, v14"); p("v_lshl_add_u32 v12, v15, 3, v12")
    p("v_and_b32 v14, 1, v14"); p("v_lshl_add_u32 v14, v14, 1, v11")
    p("v_lshrrev_b32 v15, 3, v10"); p("v_lshlrev_b32 v15, 2, v15")
    p("v_add_u32 v12, s%d, v12" % sM2)
    for cb in range(2):
        p("v_add_u32 v13, %d, v14" % (4 * cb)); p("v_xor_b32 v13, v13, v15")
        p("v_lshl_add_u32 v%d, v13, 4, v12" % (vTRA + cb))
        p("v_add_u32 v%d, 0x10000, v%d" % (vTRA + 2 + cb, vTRA + cb))
def w2_dma(step, slot):
    tag = "w%d" % step
    return [[("s_add_u32 s%d, s%d, %d" % (sWS, sWA, step * 16384), None),
             ("s_add_u32 m0, s%d, %d" % (sM2, slot * 8192), None),
             ("buffer_load_dwordx4 v%d, s[%d:%d], s%d offen lds" % (vD0, W2_, W2_ + 3, sWS), tag)],
            [("s_add_u32 s%d, s%d, %d" % (sWS, sWA, step * 16384), None),
             ("s_add_u32 m0, s%d, %d" % (sM2, slot * 8192 + 1024), None),
             ("buffer_load_dwordx4 v%d, s[%d:%d], s%d offen lds" % (vD1, W2_, W2_ + 3, sWS), tag)]]
def tr_reads(slot, dst, kind):
    out = []
    for cb in range(2):
        for rr in range(2):
            hi = slot >= 8
            out.append(("ds_read_b64_tr_b16 %s, v%d offset:%d" % (vr(dst + 4 * cb + 2 * rr, 2, kind), vTRA + cb + (2 if hi else 0), (slot - 8 * hi) * 8192 + rr * 1024), None))
    return out
def stash_reads(step, slot): return tr_reads(slot, STASH0 + 8 * (step - 12), 'a')
def h_loads(s):
    slot = s % OPT["depth_h"]
    return [("buffer_load_dwordx4 %s, v%d, s[%d:%d], s%d offen sc1" % (ar(HB + 8 * slot, 4), vH0, HF2_, HF2_ + 3, sHo), "h%d" % s),
            ("buffer_load_dwordx4 %s, v%d, s[%d:%d], s%d offen sc1" % (ar(HB + 8 * slot + 4, 4), vH1, HF2_, HF2_ + 3, sHo), "h%d" % s),
            ("s_add_u32 s%d, s%d, 1024" % (sHo, sHo), None)]
def fh_poll_issue(p):
    p("v_min_u32 v%d, 6, v1" % vFHA); p("v_lshlrev_b32 v%d, 7, v%d" % (vFHA, vFHA))
    p("s_lshr_b32 s83, s%d, 6" % sTok); p("s_mul_i32 s83, s83, 28"); p("s_mul_i32 s%d, s%d, 7" % (sT0, sW)); p("s_add_u32 s83, s83, s%d" % sT0)
    p("s_lshl_b32 s83, s83, 7"); p("s_add_u32 s83, s83, %d" % FL_FH)
    poll_issue(p, vFH, vFHA, 83, "fh")
def g2_h_start(p):
    DH = OPT["depth_h"]
    srd(p, HF2_, P_WS, SZ_HF, WS_HF)
    p.wait_tag("fh")
    poll_check(p, [vFH], [vFHA], [83])
    stamp(p, "g2_h_ready")
    for s in range(OPT.get("h_first", 2)):
        for t in h_loads(s): p(*t)
    if OPT["htouch"]:
        n = (NS - DH) * 16 // 8
        p("s_and_b32 s%d, s%d, 7" % (sT0, sR)); p("s_mul_i32 s%d, s%d, %d" % (sT0, sT0, n))
        p("v_add_u32 v10, s%d, v1" % sT0)
        p("v_lshrrev_b32 v11, 4, v10"); p("v_and_b32 v12, 7, v10"); p("v_lshlrev_b32 v12, 7, v12")
        p("v_lshl_add_u32 v12, v11, 10, v12")
        p("v_bfe_u32 v11, v10, 3, 1"); p("v_mul_u32_u24 v11, %d, v11" % (112 * 1024)); p("v_add_u32 v12, v12, v11")
        if n > 32: p("s_mov_b32 exec_hi, 0x%x" % ((1 << (n - 32)) - 1))
        else: p("s_mov_b64 exec, 0x%x" % ((1 << n) - 1))
        p("buffer_load_dword v59, v12, s[%d:%d], s%d offen sc1" % (HF2_, HF2_ + 3, sHo), "touch3")
        p("s_mov_b64 exec, -1")

vST2, vB2 = 16, 20
vY, vOWN = 144, 176
vXq, vZq, vRED, vOUT = 6, 7, 8, 9
def g2_main(p, name):
    DH = OPT["depth_h"]
    ACC = 64; FR = 32
    def ep_setup(p):
        srd(p, Q2_, P_Q, S * D * 2)
        srd(p, ZT2_, P_WS, SZ_ZT, WS_ZT); srd(p, ST2_, P_WS, SZ_ST, WS_ST); srd(p, B2_, P_B2, D * 2); srd(p, OUT_, P_OUT, S * D * 2)
    def ep_loads(p):
        p("v_lshrrev_b32 v10, 2, v1"); p("v_and_b32 v11, 3, v1")
        p("v_lshrrev_b32 v12, 2, v10"); p("v_xor_b32 v12, v12, v11")
        p("v_lshlrev_b32 v12, 4, v12"); p("v_lshl_add_u32 v13, v10, 10, v12")
        p("s_lshr_b32 s%d, s%d, 1" % (sT0, sW)); p("s_lshl_b32 s%d, s%d, 5" % (sT0, sT0)); p("s_add_u32 s%d, s%d, s%d" % (sT0, sT0, sTok))
        p("s_and_b32 s%d, s%d, 1" % (sT1, sW)); p("s_lshl_b32 s%d, s%d, 5" % (sT1, sT1)); p("s_add_u32 s%d, s%d, s%d" % (sT1, sT1, sCh))
        p("s_lshl_b32 s%d, s%d, 10" % (sXO, sT0)); p("s_lshl_b32 s%d, s%d, 1" % (sT2, sT1)); p("s_add_u32 s%d, s%d, s%d" % (sXO, sXO, sT2))
        p("s_lshl_b32 s%d, s%d, 11" % (sT3, sW))
        p("s_add_u32 m0, s%d, %d" % (sT3, XT))
        p("buffer_load_dwordx4 v13, s[%d:%d], s%d offen lds" % (Q2_, Q2_ + 3, sXO), "ep")
        p("s_add_u32 s7, s%d, 16384" % sXO)
        p("s_add_u32 m0, s%d, %d" % (sT3, XT + 1024))
        p("buffer_load_dwordx4 v13, s[%d:%d], s7 offen lds" % (Q2_, Q2_ + 3), "ep")
        p("s_lshl_b32 s%d, s%d, 4" % (sT0, sT0))
        p("v_and_b32 v14, 31, v1"); p("v_lshlrev_b32 v15, 4, v14")
        p("buffer_load_dwordx4 %s, v15, s[%d:%d], s%d offen sc1" % (vr(vST2, 4), ST2_, ST2_ + 3, sT0), "ep")
        p("v_lshrrev_b32 v15, 5, v1"); p("v_lshlrev_b32 v12, 5, v15")
        p("buffer_load_dwordx4 %s, v12, s[%d:%d], s%d offen" % (vr(vB2, 4), B2_, B2_ + 3, sT2), "ep")
        p("buffer_load_dwordx4 %s, v12, s[%d:%d], s%d offen offset:16" % (vr(vB2 + 4, 4), B2_, B2_ + 3, sT2), "ep")
        p("v_lshrrev_b32 v12, 2, v14"); p("v_and_b32 v12, 3, v12")
        p("v_lshlrev_b32 v15, 1, v15"); p("v_xor_b32 v15, v15, v12")
        p("v_lshlrev_b32 v15, 4, v15"); p("v_lshl_add_u32 v15, v14, 6, v15")
        p("v_add_u32 v15, s%d, v15" % sT3); p("v_add_u32 v%d, %d, v15" % (vXq, XT))
        p("v_lshrrev_b32 v15, 5, v1"); p("v_lshlrev_b32 v15, 5, v15"); p("v_lshl_add_u32 v%d, v14, 10, v15" % vOUT)
        p("v_add_u32 v%d, %d, v%d" % (vRED, RED, vH0))
    def z_loads(p):
        p("v_lshrrev_b32 v10, 2, v1"); p("v_and_b32 v11, 3, v1")
        p("v_lshlrev_b32 v12, 4, v11"); p("v_lshl_add_u32 v12, v10, 12, v12")
        p("s_and_b32 s%d, s%d, 1" % (sT1, sW)); p("s_lshl_b32 s%d, s%d, 5" % (sT1, sT1)); p("s_add_u32 s%d, s%d, s%d" % (sT1, sT1, sCh))
        p("s_lshl_b32 s%d, s%d, 12" % (sT0, sT1))
        p("s_lshr_b32 s%d, s%d, 1" % (sT1, sW)); p("s_lshl_b32 s%d, s%d, 5" % (sT1, sT1)); p("s_add_u32 s%d, s%d, s%d" % (sT1, sT1, sTok))
        p("s_lshl_b32 s%d, s%d, 1" % (sT1, sT1)); p("s_add_u32 s%d, s%d, s%d" % (sT0, sT0, sT1))
        p("buffer_load_dwordx4 %s, v12, s[%d:%d], s%d offen sc1" % (vr(128, 4), ZT2_, ZT2_ + 3, sT0), "z")
        p("s_add_u32 s%d, s%d, %d" % (sT0, sT0, 16 * 4096))
        p("buffer_load_dwordx4 %s, v12, s[%d:%d], s%d offen sc1" % (vr(132, 4), ZT2_, ZT2_ + 3, sT0), "z")
        p("v_lshrrev_b32 v12, 1, v10"); p("v_and_b32 v12, 3, v12"); p("v_xor_b32 v12, v12, v11")
        p("v_lshlrev_b32 v12, 4, v12"); p("v_lshl_add_u32 v12, v10, 6, v12")
        p("s_lshl_b32 s%d, s%d, 11" % (sT3, sW)); p("s_add_u32 s%d, s%d, %d" % (sT3, sT3, ZTT))
        p("v_add_u32 v%d, s%d, v12" % (vZq + 4, sT3))
        p("v_and_b32 v10, 15, v1"); p("v_lshrrev_b32 v12, 4, v1"); p("v_lshrrev_b32 v13, 1, v12"); p("v_and_b32 v12, 1, v12")
        p("v_lshrrev_b32 v14, 2, v10"); p("v_lshl_add_u32 v13, v13, 4, v14")
        p("v_and_b32 v15, 3, v10"); p("v_lshrrev_b32 v15, 1, v15"); p("v_lshl_add_u32 v15, v12, 1, v15")
        p("v_lshrrev_b32 v14, 1, v14"); p("v_xor_b32 v15, v15, v14")
        p("v_lshlrev_b32 v15, 4, v15"); p("v_lshl_add_u32 v15, v13, 6, v15")
        p("v_and_b32 v14, 1, v10"); p("v_lshl_add_u32 v15, v14, 3, v15")
        p("v_add_u32 v%d, s%d, v15" % (vZq, sT3))
        p("v_xor_b32 v5, 32, v%d" % vZq)
    def y_compute(p):
        XR_, ZR = 136, 164
        p("ds_write_b128 v%d, %s" % (vZq + 4, vr(128, 4))); p("ds_write_b128 v%d, %s offset:1024" % (vZq + 4, vr(132, 4)))
        p.wait_tag("ep")
        p("v_xor_b32 v10, 16, v%d" % vXq)
        p("ds_read_b128 %s, v%d" % (vr(XR_, 4), vXq)); p("ds_read_b128 %s, v10" % vr(XR_ + 4, 4))
        for m in range(4): p("ds_read_b64_tr_b16 %s, v%d offset:%d" % (vr(ZR + 2 * m, 2), vZq if m % 2 == 0 else 5, m * 256))
        mu, rs = vST2, vST2 + 1
        p("v_mul_f32 v%d, v%d, v%d" % (mu, mu, rs))
        for r_ in range(16):
            x, z, b = 48 + 3 * (r_ & 1), 49 + 3 * (r_ & 1), 50 + 3 * (r_ & 1)
            unpack(p, x, XR_ + (r_ >> 1), r_ & 1); unpack(p, z, ZR + (r_ >> 1), r_ & 1); unpack(p, b, vB2 + (r_ >> 1), r_ & 1)
            p("v_fma_f32 v%d, v%d, v%d, -v%d" % (vY + r_, x, rs, mu))
            p("v_add_f32 v%d, v%d, v%d" % (b, b, x))
            p("v_fma_f32 v%d, v%d, v%d, v%d" % (vY + r_, vY + r_, z, b))
    def reads(s): return [t for t, _ in tr_reads(s, FR + 8 * (s & 1), 'v')]
    def mfmas(s):
        slot = s % DH; out = []
        for cb in range(2):
            A = vr(FR + 8 * (s & 1) + 4 * cb, 4) if s < 12 else ar(STASH0 + 8 * (s - 12) + 4 * cb, 4)
            for tb in range(2):
                a = vr(ACC + 16 * (2 * tb + cb), 16)
                out.append("v_mfma_f32_32x32x16_bf16 %s, %s, %s, %s" % (a, A, ar(HB + 8 * slot + 4 * tb, 4), "0" if s == 0 else a))
        return out
    vFZ = 56
    def fz_issue(p):
        p("v_lshlrev_b32 v%d, 7, v1" % (vFZ + 2))
        p("s_lshr_b32 s84, s%d, 6" % sCh); p("s_lshl_b32 s84, s84, 1"); p("s_and_b32 s83, s%d, 1" % sW); p("s_add_u32 s84, s84, s83")
        p("s_lshl_b32 s84, s84, 13"); p("s_add_u32 s84, s84, %d" % FL_FZ)
        poll_issue(p, vFZ, vFZ + 2, 84, "fz")
    def fz_check(p):
        p.wait_tag("fz"); poll_check(p, [vFZ], [vFZ + 2], [84])
    S_FZ, S_ZL, S_Y = OPT.get("s_fz", 14), OPT.get("s_zl", 20), OPT.get("s_y", 25)
    yl = rec(y_compute)
    third = (len(yl) + 2) // 3
    extras = {1: rec(ep_setup), 2: rec(ep_loads), S_FZ: rec(fz_issue), S_ZL: [(fz_check, None)] + rec(z_loads),
              S_Y: yl[:third], S_Y + 1: yl[third:2 * third], S_Y + 2: yl[2 * third:]}
    p.wait(lg=0)
    p("s_barrier")
    p.wait_tag("w0")
    for t in reads(0): p(t)
    for s in range(NS):
        if s + 1 < 12:
            p.wait_tag("w%d" % (s + 1))
            for t in reads(s + 1): p(t)
        if s in (0, 7, 13, 20): stamp(p, "g2_s%d" % s)
        mf = mfmas(s)
        hl = h_loads(s + DH) if s + DH < NS else []
        ex = extras.get(s, [])
        q4 = (len(ex) + 3) // 4
        for i in range(4):
            p(mf[i])
            if i == 2:
                for t in hl[0:1]: p(*t)
            if i == 3:
                for t in hl[1:3]: p(*t)
            emit(p, ex[i * q4:(i + 1) * q4])
        if s == DH:
            p.wait_tag("zst")
            z_publish(p)
    stamp(p, "g2_mma_done")

OUTPOL = ["", " sc1", " nt", " sc0 sc1"]
def g2_epilogue(p, name):
    ACC = 64
    st = side_path_begin(p)
    for w in range(4):
        if w < 3:
            p("s_cmp_eq_u32 s%d, %d" % (sW, w))
            p("s_cbranch_scc0 %s_rw%d" % (name, w + 1))
        side_path_end(p, st)
        p("s_nop 7"); p("s_nop 3")
        for rel in range(1, 4):
            q = w ^ rel
            for rq in range(4):
                p("ds_write_b128 v%d, %s offset:%d" % (vRED, vr(ACC + 16 * q + 4 * rq, 4), q * 12288 + (rel - 1) * 4096 + rq * 1024))
        for i in range(16): p("v_add_f32 v%d, v%d, v%d" % (vY + i, vY + i, ACC + 16 * w + i))
        if w < 3:
            p("s_branch %s_rwd" % name)
            p.label("%s_rw%d" % (name, w + 1))
    p.label("%s_rwd" % name)
    p("s_mul_i32 s%d, s%d, 12288" % (sT0, sW)); p("v_add_u32 v10, s%d, v%d" % (sT0, vRED))
    p.wait(lg=0)
    p("s_barrier")
    stamp(p, "g2_red_bar")
    for sl in range(3):
        for rq in range(4):
            p("ds_read_b128 %s, v10 offset:%d" % (vr(ACC + 16 * sl + 4 * rq, 4), sl * 4096 + rq * 1024))
    PK = 160
    for r_ in range(16):
        p("v_add_f32 v%d, v%d, v%d" % (ACC + r_, ACC + r_, ACC + 16 + r_))
        p("v_add_f32 v%d, v%d, v%d" % (vY + r_, vY + r_, ACC + 32 + r_))
    for r_ in range(16):
        p("v_add_f32 v%d, v%d, v%d" % (vY + r_, vY + r_, ACC + r_))
        if r_ & 1: p("v_cvt_pk_bf16_f32 v%d, v%d, v%d" % (PK + (r_ >> 1), vY + r_ - 1, vY + r_))
        if r_ == 7: p("buffer_store_dwordx4 %s, v%d, s[%d:%d], s%d offen%s" % (vr(PK, 4), vOUT, OUT_, OUT_ + 3, sXO, OUTPOL[OPT.get("outpol", 0)]))
    p("buffer_store_dwordx4 %s, v%d, s[%d:%d], s%d offen offset:16%s" % (vr(PK + 4, 4), vOUT, OUT_, OUT_ + 3, sXO, OUTPOL[OPT.get("outpol", 0)]))

def flat(l): return [x for y in l for x in y]
def gen(name):
    p = Prog()
    prof_reset()
    p("s_cmp_ge_u32 s2, 256")
    p("s_cbranch_scc1 %s_end" % name)
    stamp(p, "rt0", True); stamp(p, "t0")
    p("s_memrealtime s[90:91]")
    load_kernargs(p)
    p("v_and_b32 v1, 63, v0"); p("v_lshrrev_b32 v2, 6, v0")
    p("s_and_b32 s%d, s2, 7" % sJ); p("s_lshr_b32 s%d, s2, 3" % sR)
    p("v_readfirstlane_b32 s%d, v2" % sW)
    p("v_mov_b32 v253, 0")
    p("s_waitcnt lgkmcnt(0)")
    srd(p, 92, P_DBG, 256)
    p("s_lshl_b32 s%d, s2, 2" % sT0); p("s_add_u32 s78, s%d, s%d" % (sT0, sW))
    p("s_cmp_eq_u32 s78, %d" % (248 * 4))
    p("s_cbranch_scc0 %s_n0" % name)
    st = side_path_begin(p)
    p("v_mov_b32 v250, s90"); p("v_mov_b32 v251, 1")
    p("s_mov_b64 exec, 1")
    p("buffer_store_dwordx2 v[250:251], v253, s[92:95], 0 offen sc1")
    p("s_mov_b64 exec, -1")
    side_path_end(p, st)
    p.label("%s_n0" % name)
    stamp(p, "karg")
    KN = "parallel_sum__ssm_conv_h3__dense_activation_squared_relu__prompt_kernel"
    if OPT.get("codetouch", 0) & 1: code_touch(p, KN)
    p_loads(p)
    tile_indices(p)
    touches_g1(p)
    if OPT.get("codetouch", 0) & 2: code_touch(p, KN)
    after_loads = side_path_begin(p)
    p("s_cmp_ge_u32 s%d, 28" % sR)
    p("s_cbranch_scc1 %s_spare" % name)
    g1_dma_setup(p)
    for u in g1_dma_stage(0): emit(p, u)
    def common_srds(p):
        srd(p, FL_, P_WS, SZ_FLAG, WS_FLAG); srd(p, KVT_, P_WS, SZ_KVT, WS_KVT); srd(p, ST_, P_WS, SZ_ST, WS_ST); srd(p, CSP_, P_WS, SZ_CSP, WS_CSP)
    def b1_srd(p): srd(p, B1_, P_B1, F * 2)
    pre = rec(common_srds) + rec(b1_srd) + rec(g1_lds_setup) + rec(g2_setup)
    dm = g1_dma_stage(1) + g1_dma_stage(2)
    k = 0
    for i, it in enumerate(pre):
        emit(p, [it])
        while k < 8 and k * len(pre) < (i + 1) * 8: emit(p, dm[k]); k += 1
    stamp(p, "issued")
    kv = rec(kv_compute)
    for i, it in enumerate(kv):
        emit(p, [it])
        while k < 16 and (k - 8) * len(kv) < (i + 1) * 8 * 2: emit(p, dm[k]); k += 1
    while k < 16: emit(p, dm[k]); k += 1
    stamp(p, "kv_done")
    none = lambda p: None
    lg0 = lambda p: p.wait(lg=0)
    def pre4(p):
        nonce_check(p); fk_publish(p, "g1")
    def b1_load(p):
        p("v_and_b32 v14, 127, v0"); p("v_lshlrev_b32 v14, 1, v14"); p("s_lshl_b32 s84, s%d, 8" % sFT)
        p("buffer_load_ushort v%d, v14, s[%d:%d], s84 offen" % (vB1, B1_, B1_ + 3), "tab")
    def tab_done(p):
        p.wait_tag("tab"); tab_check(p); tab_partial(p)
    def tab_final(p):
        p("v_and_b32 v10, 127, v0"); p("v_lshlrev_b32 v10, 2, v10"); p("v_add_u32 v11, %d, v10" % CSQ_LDS); p("v_add_u32 v10, %d, v10" % TAB_LDS)
        for i in range(4): p("ds_read_b32 v%d, v11 offset:%d" % (20 + i, i * 512))
        p("v_lshlrev_b32 v%d, 16, v%d" % (vB1, vB1))
        p("v_add_f32 v20, v20, v21"); p("v_add_f32 v22, v22, v23"); p("v_add_f32 v20, v20, v22")
        p("ds_write_b32 v10, v20"); p("ds_write_b32 v10, v%d offset:512" % vB1)
    def fk_issue(p):
        fk_addr(p, True); poll_issue(p, vPK, vPA, 85, "fk")
    def fk_check(p):
        p.wait_tag("fk"); poll_check(p, [vPK], [vPA], [85])
    A = [w2_dma(12 + i, i) for i in range(12)]
    def late(p_items): return [p_items]
    fill = {0: (lg0, none, rec(kv_stores) + rec(nonce_issue)),
            1: (none, none, rec(w2_touch) if OPT["w2touch"] == 1 else []),
            2: (none, none, rec(w2_touch) if OPT["w2touch"] == 2 else []),
            3: (none, none, rec(w2_touch) if OPT["w2touch"] == 3 else []),
            4: (lambda p: p.wait_tag("nonce"), pre4, rec(code_touch, KN) if OPT.get("codetouch", 0) & 4 else []),
            5: (none, none, rec(tab_loads) + rec(b1_load) + flat(A[0:4])),
            6: (none, none, rec(fk_issue) + flat(A[4:6]) + [(tab_done, None)] + flat(A[6:8])),
            7: (lg0, none, rec(tab_final) + rec(conv_setup) + flat(A[8:10]) + [(fk_check, None)] + rec(conv_loads_regs) + flat(A[10:12]))}
    if OPT["w2touch"] == 4:
        for st_ in range(7):
            a_, b_, c_ = fill[st_]
            fill[st_] = (a_, b_, c_, rec(w2_touch_part, st_))
    if OPT["w2touch"] == 5:
        for st_, (k_, n_) in enumerate(((0, 32), (2, 32), (4, 48))):
            a_, b_, c_ = fill[st_]
            fill[st_] = (a_, b_, c_, rec(w2_touch_part, k_, n_))
    g1_main(p, fill)
    stamp(p, "g1_mfma_end")
    p.wait(lg=0)
    p("s_barrier")
    conv_loads_lds(p)
    stamp(p, "g1_mma_done")
    g1_epilogue(p, [])
    p.wait_tag("cv")
    p.label("%s_cfill" % name)
    stamp(p, "g1_epi_done")
    g2_setup_tr(p)
    conv_fill(p)
    def c0(p): p.wait_tag("w17")
    def c1(p):
        p.wait_tag("hst"); p.wait_tag("w23")
        p("s_cmp_ge_u32 s%d, 28" % sR)
        p("s_cbranch_scc1 %s_nohp" % name)
        st = side_path_begin(p)
        h_publish(p)
        side_path_end(p, st)
        p.label("%s_nohp" % name)
        p.wait(lg=0)
        stamp(p, "h_pub")
    def c2(p): p.wait(lg=0)
    def c3(p): p.wait(lg=0); p.wait_tag("w27")
    f0 = flat([stash_reads(12 + i, i) for i in range(6)])
    f1 = interleave(flat([stash_reads(18 + i, 6 + i) for i in range(6)]), flat([w2_dma(24 + i, i) for i in range(4)] + [w2_dma(4 + i, 4 + i) for i in range(2)]), 0.5)
    f2 = flat([w2_dma(6 + i, 6 + i) for i in range(6)])
    f3 = flat([stash_reads(24 + i, i) for i in range(4)]) + rec(fh_poll_issue)
    conv_main(p, [(c0, f0), (c1, f1), (c2, f2), (c3, f3)])
    p.wait(lg=0)
    for u in flat([w2_dma(i, i) for i in range(4)]): emit(p, u)
    g2_h_start(p)
    conv_finish(p, name, [t for s_ in range(OPT.get("h_first", 2), OPT["depth_h"]) for t in h_loads(s_)])
    stamp(p, "conv_done")
    z_stores(p)
    g2_main(p, name)
    g2_epilogue(p, name)
    stamp(p, "end")
    if common.PROF: p.wait(vm=0)
    stamp(p, "end_acked"); stamp(p, "rt1", True)
    prof_flush(p, sW)
    p("s_endpgm")
    p.label("%s_spare" % name)
    side_path_end(p, after_loads)
    sp_loads(p)
    common_srds(p)
    nonce_issue(p)
    sp_stats(p)
    sp_cs(p)
    p.wait_tag("nonce"); nonce_check(p)
    sp_stats_store(p)
    p.wait(lg=0)
    p("s_barrier")
    sp_cs_store(p)
    kv_compute(p)
    p.wait(lg=0)
    p("s_barrier")
    kv_stores(p)
    p.wait_tag("kst")
    p("s_barrier")
    fk_publish(p, "sp")
    g2_setup(p)
    if OPT["w2touch"]: w2_touch(p)
    for u in flat(A): emit(p, u)
    conv_setup(p)
    fk_addr(p, True)
    poll_issue(p, vPK, vPA, 85, "poll")
    p.wait(vm=0, lg=0)
    poll_check(p, [vPK], [vPA], [85])
    conv_loads_regs(p)
    conv_loads_lds(p)
    p.wait(vm=0)
    p("s_branch %s_cfill" % name)
    p.label("%s_end" % name)
    p("s_endpgm")
    return p.text(), 512, 256
```

```python
from common import *
import common
from fused import (sN, sJ, sR, sW, sT0, sT1, sT2, sT3, FL_, unpack, flag_store, poll_issue, poll_check,
                   side_path_begin, side_path_end, nonce_issue, nonce_check, _uid)
OPT = dict(touch=0, htouch=0, nt=0, ntkv=0, depth_h=8, w2touch=5)
def nt(): return " nt" if OPT["nt"] else ""
def ntkv(): return " nt" if (OPT["nt"] or OPT["ntkv"]) else ""

class Rec:
    def __init__(self): self.items = []; self.grp = None
    def __call__(self, txt, tag=None): (self.grp if self.grp is not None else self.items).append((txt, tag))
    def call(self, fn): (self.grp if self.grp is not None else self.items).append((fn, None))
    def wait(self, vm=None, lg=None): self.call(lambda p: p.wait(vm, lg))
    def wait_tag(self, tag): self.call(lambda p: p.wait_tag(tag))
    def begin(self): self.grp = []
    def end(self): self.items.append(self.grp); self.grp = None
def begin(p):
    if isinstance(p, Rec): p.begin()
def end(p):
    if isinstance(p, Rec): p.end()
def emit(p, items):
    for it in items:
        if isinstance(it, list): emit(p, it)
        elif callable(it[0]): it[0](p)
        else: p(it[0], it[1])
_srd0 = srd
def srd(p, dst, ptr, size, off=0):
    begin(p); _srd0(p, dst, ptr, size, off); end(p)
def rec(fn, *a):
    r = Rec(); fn(r, *a); return r.items

P_LDS, SK_LDS = 131072, 139264
TAB_LDS, CSQ_LDS = 157440, 158464
CV0 = 98304
RB_LDS = CV0 + 256 + 2 * 21248
XT, ZTT, RED = 98304, 106496, 114688
sROW, sRB, sFT = 72, 73, 74
sXo, sWo, sM = 80, 81, 82
sCH, sC2, sCB = 86, 87, 88
sTok, sCh, sHo = 89, 90, 91
sWA, sM2, sXO = 16, 17, 6
K_, V_, SK_, GQ_, GW1_ = 40, 44, 48, 52, 56
KVT_, ST_, CSP_ = 60, 64, 68

KR, VR, SKR, XR, CR = 16, 36, 44, 128, 136
vC, vRR = 3, 4
def p_loads(p):
    srd(p, K_, P_K, S * D * 2); srd(p, V_, P_V, S * D * 2); srd(p, SK_, P_SK, D * 8)
    vA = 5
    p("s_lshl_b32 s%d, s%d, 9" % (sT1, sJ))
    p("v_and_b32 v11, 31, v1"); p("v_lshlrev_b32 v11, 4, v11")
    p("buffer_load_dwordx4 %s, v11, s[%d:%d], s%d offen" % (vr(SKR, 4), SK_, SK_ + 3, sT1))
    p("v_and_b32 v%d, 7, v1" % vC); p("v_lshrrev_b32 v%d, 3, v1" % vRR)
    p("s_lshl_b32 s%d, s%d, 6" % (sT0, sR)); p("s_lshl_b32 s%d, s%d, 4" % (sT1, sW))
    p("s_add_u32 s%d, s%d, s%d" % (sT0, sT0, sT1)); p("s_lshl_b32 s%d, s%d, 10" % (sT0, sT0))
    p("s_lshl_b32 s%d, s%d, 7" % (sT1, sJ)); p("s_add_u32 s%d, s%d, s%d" % (sT0, sT0, sT1))
    p("v_lshlrev_b32 v%d, 11, v%d" % (vA, vRR)); p("v_lshl_add_u32 v%d, v%d, 4, v%d" % (vA, vC, vA))
    p("v_add_u32 v%d, s%d, v%d" % (vA, sT0, vA))
    for i in range(5): p("v_add_u32 v%d, %d, v%d" % (6 + i, (i - 3) * 1024, vA))
    for i in range(5): p("buffer_load_dwordx4 %s, v%d, s[%d:%d], 0 offen%s" % (vr(KR + 4 * i, 4), 6 + i, K_, K_ + 3, ntkv()))
    p("buffer_load_dwordx4 %s, v%d, s[%d:%d], 0 offen%s" % (vr(VR, 4), vA, V_, V_ + 3, ntkv()))
    p("buffer_load_dwordx4 %s, v%d, s[%d:%d], 0 offen offset:1024%s" % (vr(VR + 4, 4), vA, V_, V_ + 3, ntkv()))
def tile_indices(p):
    srd(p, GQ_, P_Q, S * D * 2); srd(p, GW1_, P_W1, D * F * 2)
    p("s_mul_i32 s%d, s%d, 37" % (sT0, sR)); p("s_lshr_b32 s%d, s%d, 8" % (sT0, sT0))
    p("s_mul_i32 s%d, s%d, 7" % (sT1, sT0)); p("s_sub_u32 s%d, s%d, s%d" % (sT1, sR, sT1))
    p("s_lshr_b32 s%d, s%d, 1" % (sT2, sJ)); p("s_lshl_b32 s%d, s%d, 2" % (sT2, sT2))
    p("s_add_u32 s%d, s%d, s%d" % (sRB, sT2, sT0))
    p("s_and_b32 s%d, s%d, 1" % (sT2, sJ)); p("s_mul_i32 s%d, s%d, 7" % (sT2, sT2))
    p("s_add_u32 s%d, s%d, s%d" % (sFT, sT2, sT1))

def touches_g1(p):
    if not OPT["touch"]: return
    p("s_lshl_b32 s%d, s%d, 2" % (sT2, sR)); p("s_add_u32 s%d, s%d, s%d" % (sT2, sT2, sW))
    p("v_lshlrev_b32 v9, 7, v1")
    p("s_lshr_b32 s%d, s%d, 1" % (sT0, sJ)); p("s_lshl_b32 s%d, s%d, 19" % (sT0, sT0))
    p("s_lshl_b32 s%d, s%d, 12" % (sT1, sT2)); p("s_add_u32 s%d, s%d, s%d" % (sT0, sT0, sT1))
    p("s_mov_b32 exec_hi, 0")
    p("buffer_load_dword v188, v9, s[%d:%d], s%d offen%s" % (GQ_, GQ_ + 3, sT0, nt()), "touch")
    p("s_mov_b64 exec, -1")
    p("v_mul_u32_u24 v10, 4682, v1"); p("v_lshrrev_b32 v10, 16, v10")
    p("v_mul_u32_u24 v11, 14, v10"); p("v_sub_u32 v11, v1, v11")
    p("v_mul_u32_u24 v10, 3584, v10"); p("v_lshl_add_u32 v10, v11, 7, v10")
    p("s_mul_i32 s%d, s%d, %d" % (sT0, sT2, 4 * 3584)); p("s_and_b32 s%d, s%d, 1" % (sT1, sJ))
    p("s_mul_i32 s%d, s%d, 1792" % (sT1, sT1)); p("s_add_u32 s%d, s%d, s%d" % (sT0, sT0, sT1))
    p("s_mov_b32 exec_hi, 0x00ffffff")
    p("buffer_load_dword v189, v10, s[%d:%d], s%d offen%s" % (GW1_, GW1_ + 3, sT0, nt()), "touch")
    p("s_mov_b64 exec, -1")

def w2_touch(p):
    p("v_lshlrev_b32 v9, 7, v1")
    p("s_lshl_b32 s83, s%d, 2" % sR); p("s_add_u32 s83, s83, s%d" % sW); p("s_mul_i32 s83, s83, 14336")
    p("buffer_load_dword v190, v9, s[8:11], s83 offen", "touch2")
    p("s_add_u32 s83, s83, 8192")
    begin(p)
    p("s_mov_b32 exec_hi, 0xffff")
    p("buffer_load_dword v191, v9, s[8:11], s83 offen", "touch2")
    p("s_mov_b64 exec, -1")
    end(p)

def w2_touch_part(p, k, n=16):
    p("v_lshlrev_b32 v9, 7, v1")
    p("s_lshl_b32 s83, s%d, 2" % sR); p("s_add_u32 s83, s83, s%d" % sW); p("s_mul_i32 s83, s83, 14336")
    if k: p("s_add_u32 s83, s83, %d" % (k * 16 * 128))
    begin(p)
    p("s_mov_b64 exec, 0x%x" % ((1 << n) - 1)) if n <= 16 else (p("s_mov_b32 exec_lo, 0x%x" % (((1 << min(n, 32)) - 1) & 0xffffffff)), p("s_mov_b32 exec_hi, 0x%x" % ((1 << max(n - 32, 0)) - 1)))
    p("buffer_load_dword v%d, v9, s[8:11], s83 offen%s" % ((186, 187, 190, 191)[k & 3], " nt" if OPT.get("ntw2") else ""), "touch2")
    p("s_mov_b64 exec, -1")
    end(p)
def code_touch(p, kname):
    _uid[0] += 1; u = _uid[0]
    begin(p)
    p("s_getpc_b64 s[76:77]")
    p("Lct%d:" % u)
    p("s_sub_u32 s76, s76, Lct%d-%s" % (u, kname))
    p("s_subb_u32 s77, s77, 0")
    end(p)
    p("s_lshl_b32 s83, s%d, 2" % sR); p("s_add_u32 s83, s83, s%d" % sW)
    p("v_lshlrev_b32 v8, 7, v1"); p("v_add_u32 v8, s83, v8")
    p("v_lshlrev_b32 v8, 7, v8")
    p("v_min_u32 v8, %s_end-%s-4, v8" % (kname_end[0], kname))
    begin(p)
    p("v_mov_b32 v9, s77"); p("v_add_co_u32 v8, vcc, s76, v8"); p("s_nop 1"); p("v_addc_co_u32 v9, vcc, 0, v9, vcc")
    p("s_mov_b64 exec, 7")
    p("global_load_dword v186, v[8:9], off", "codet")
    p("s_mov_b64 exec, -1")
    end(p)
kname_end = ["fz"]

vKL, vKG0, vKG1 = 24, 25, 26
def kv_compute(p):
    RES, A = 100, 108
    p("s_lshl_b32 s%d, s%d, 9" % (sT0, sW)); p("s_add_u32 s%d, s%d, %d" % (sT0, sT0, SK_LDS))
    p("v_and_b32 v11, 31, v1"); p("v_lshlrev_b32 v11, 4, v11"); p("v_add_u32 v11, s%d, v11" % sT0)
    p("v_lshlrev_b32 v2, 6, v%d" % vC); p("v_add_u32 v2, s%d, v2" % sT0)
    p("ds_write_b128 v11, %s" % vr(SKR, 4))
    p("s_lshl_b32 s%d, s%d, 3" % (sT0, sW)); p("s_sub_u32 s%d, 31, s%d" % (sT0, sT0))
    p("v_sub_u32 v15, s%d, v%d" % (sT0, vRR))
    p("v_lshrrev_b32 v6, 2, v15"); p("v_xor_b32 v6, v6, v%d" % vC)
    p("v_and_b32 v15, 3, v15"); p("v_lshlrev_b32 v15, 2, v15")
    p("v_lshl_add_u32 v15, v6, 4, v15"); p("v_lshl_add_u32 v15, v%d, 10, v15" % vC)
    p("v_add_u32 v15, %d, v15" % P_LDS)
    p.wait(lg=0)
    for i in range(4): p("ds_read_b128 %s, v2 offset:%d" % (vr(SKR + 4 * i, 4), 16 * i))
    p("s_mov_b32 s76, 0x05040100"); p("s_mov_b32 s77, 0x07060302")
    for e in range(8):
        dw, hf = e >> 1, e & 1
        sel = 76 + hf
        K = lambda i: KR + 4 * i + dw
        a = A + 8 * (e & 1)
        p("v_perm_b32 v%d, v%d, v%d, s%d" % (a + 0, K(2), K(3), sel))
        p("v_perm_b32 v%d, v%d, v%d, s%d" % (a + 1, K(0), K(1), sel))
        p("v_perm_b32 v%d, v%d, v%d, s%d" % (a + 2, K(3), K(4), sel))
        p("v_perm_b32 v%d, v%d, v%d, s%d" % (a + 3, K(1), K(2), sel))
        p("v_dot2_f32_bf16 v%d, v%d, v%d, 0" % (a + 4, a + 0, SKR + 2 * e))
        p("v_dot2_f32_bf16 v%d, v%d, v%d, 0" % (a + 5, a + 2, SKR + 2 * e))
        unpack(p, a + 6, VR + dw, hf); unpack(p, a + 7, VR + 4 + dw, hf)
        p("v_dot2_f32_bf16 v%d, v%d, v%d, v%d" % (a + 4, a + 1, SKR + 2 * e + 1, a + 4))
        p("v_dot2_f32_bf16 v%d, v%d, v%d, v%d" % (a + 5, a + 3, SKR + 2 * e + 1, a + 5))
        if e > 0:
            b = A + 8 * ((e - 1) & 1)
            p("v_mul_f32 v%d, v%d, v%d" % (b + 4, b + 4, b + 6)); p("v_mul_f32 v%d, v%d, v%d" % (b + 5, b + 5, b + 7))
            p("v_cvt_pk_bf16_f32 v%d, v%d, v%d" % (RES + e - 1, b + 5, b + 4))
            p("ds_write_b32 v15, v%d offset:%d" % (RES + e - 1, (e - 1) * 128))
    b = A + 8
    p("s_lshl_b32 s%d, s%d, 4" % (sT0, sW)); p("v_add_u32 v6, s%d, v%d" % (sT0, vRR))
    p("v_mul_f32 v%d, v%d, v%d" % (b + 4, b + 4, b + 6)); p("v_mul_f32 v%d, v%d, v%d" % (b + 5, b + 5, b + 7))
    p("v_cvt_pk_bf16_f32 v%d, v%d, v%d" % (RES + 7, b + 5, b + 4))
    p("ds_write_b32 v15, v%d offset:%d" % (RES + 7, 7 * 128))
    p("v_lshlrev_b32 v7, 7, v6"); p("v_lshl_add_u32 v7, v%d, 4, v7" % vC); p("v_add_u32 v%d, %d, v7" % (vKL, P_LDS))
    p("v_lshlrev_b32 v8, 12, v6"); p("s_lshl_b32 s%d, s%d, 1" % (sT1, sW))
    p("v_xor_b32 v9, s%d, v%d" % (sT1, vC)); p("v_lshl_add_u32 v%d, v9, 4, v8" % vKG0)
    p("s_add_u32 s%d, s%d, 1" % (sT1, sT1))
    p("v_xor_b32 v10, s%d, v%d" % (sT1, vC)); p("v_lshl_add_u32 v10, v10, 4, v8"); p("v_add_u32 v%d, 0x8000, v10" % vKG1)
def kv_stores(p):
    p("ds_read_b128 v[16:19], v%d" % vKL); p("ds_read_b128 v[20:23], v%d offset:1024" % vKL)
    p("s_lshl_b32 s83, s%d, 18" % sJ); p("s_lshl_b32 s84, s%d, 7" % sR)
    p("s_sub_u32 s83, s83, s84"); p("s_add_u32 s83, s83, 3968")
    p("buffer_store_dwordx4 v[16:19], v%d, s[%d:%d], s83 offen sc1" % (vKG0, KVT_, KVT_ + 3), "kst")
    p("buffer_store_dwordx4 v[20:23], v%d, s[%d:%d], s83 offen sc1" % (vKG1, KVT_, KVT_ + 3), "kst")

SX, SC_ = 128, 64
def sp_loads(p):
    p("s_sub_u32 s72, s%d, 28" % sR)
    p("s_lshr_b32 s%d, s%d, 1" % (sT0, sJ)); p("s_lshl_b32 s%d, s%d, 9" % (sT0, sT0))
    p("s_and_b32 s%d, s%d, 1" % (sT1, sJ)); p("s_lshl_b32 s%d, s%d, 2" % (sT1, sT1)); p("s_add_u32 s%d, s%d, s72" % (sT1, sT1))
    p("s_lshl_b32 s%d, s%d, 6" % (sT1, sT1)); p("s_add_u32 s%d, s%d, s%d" % (sT0, sT0, sT1))
    p("s_lshl_b32 s%d, s%d, 4" % (sT1, sW)); p("s_add_u32 s73, s%d, s%d" % (sT0, sT1))
    p("s_lshl_b32 s%d, s73, 10" % sT0)
    p("v_lshrrev_b32 v10, 3, v1"); p("v_and_b32 v11, 7, v1"); p("v_lshlrev_b32 v11, 4, v11"); p("v_lshl_add_u32 v10, v10, 10, v11")
    for g in range(2):
        for i in range(8):
            p("buffer_load_dwordx4 %s, v10, s[%d:%d], s%d offen offset:%d" % (vr(SX + 32 * g + 4 * i, 4), GQ_, GQ_ + 3, sT0, i * 128), "sx")
        if g == 0: p("s_add_u32 s%d, s%d, 8192" % (sT0, sT0))
    p("s_lshr_b32 s74, s%d, 1" % sJ); p("s_lshl_b32 s74, s74, 2"); p("s_add_u32 s74, s74, s72")
    p("s_lshl_b32 s%d, s74, 5" % sT0); p("s_lshl_b32 s%d, s%d, 3" % (sT1, sW)); p("s_add_u32 s%d, s%d, s%d" % (sT0, sT0, sT1))
    p("s_mul_i32 s%d, s%d, 3584" % (sT0, sT0)); p("s_and_b32 s%d, s%d, 1" % (sT1, sJ)); p("s_mul_i32 s%d, s%d, 1792" % (sT1, sT1))
    p("s_add_u32 s%d, s%d, s%d" % (sT0, sT0, sT1))
    p("v_lshlrev_b32 v12, 4, v1")
    for i in range(8):
        p("buffer_load_dwordx4 %s, v12, s[%d:%d], s%d offen" % (vr(SC_ + 8 * i, 4), GW1_, GW1_ + 3, sT0), "sc")
        p("buffer_load_dwordx4 %s, v12, s[%d:%d], s%d offen offset:1024" % (vr(SC_ + 8 * i + 4, 4), GW1_, GW1_ + 3, sT0), "sc")
        if i < 7: p("s_add_u32 s%d, s%d, 3584" % (sT0, sT0))
def sp_stats(p):
    T = 200
    p("s_mov_b32 s75, 0x3f803f80")
    for g in range(2):
        for h in range(2): p("v_mov_b32 v%d, 0" % (T + 4 * g + h)); p("v_mov_b32 v%d, 0" % (T + 8 + 2 * g + h))
    for i in range(8):
        for g in range(2):
            for d in range(4):
                r_ = SX + 32 * g + 4 * i + d
                aS, aQ = (T + 4 * g, T + 4 * g + 1) if d & 1 else (T + 8 + 2 * g, T + 9 + 2 * g)
                p("v_dot2_f32_bf16 v%d, v%d, s75, v%d" % (aS, r_, aS)); p("v_dot2_f32_bf16 v%d, v%d, v%d, v%d" % (aQ, r_, r_, aQ))
    for g in range(2):
        p("v_add_f32 v%d, v%d, v%d" % (T + 4 * g, T + 4 * g, T + 8 + 2 * g)); p("v_add_f32 v%d, v%d, v%d" % (T + 4 * g + 1, T + 4 * g + 1, T + 9 + 2 * g))
    for ctrl in ("quad_perm:[1,0,3,2] row_mask:0xf", "quad_perm:[2,3,0,1] row_mask:0xf", "row_half_mirror row_mask:0xf"):
        for q in (T, T + 1, T + 4, T + 5):
            p("v_add_f32_dpp v%d, v%d, v%d %s bank_mask:0xf" % (q, q, q, ctrl))
    for g in range(2):
        sS, sQ = T + 4 * g, T + 4 * g + 1
        p("v_mul_f32 v%d, 0x3b000000, v%d" % (sS, sS)); p("v_mul_f32 v%d, 0x3b000000, v%d" % (sQ, sQ))
    for g in range(2): p("v_fma_f32 v%d, -v%d, v%d, v%d" % (T + 4 * g + 1, T + 4 * g, T + 4 * g, T + 4 * g + 1))
    for g in range(2): p("v_max_f32 v%d, 0, v%d" % (T + 4 * g + 1, T + 4 * g + 1))
    for g in range(2): p("v_add_f32 v%d, 0x3727c5ac, v%d" % (T + 4 * g + 1, T + 4 * g + 1))
    for g in range(2): p("v_rsq_f32 v%d, v%d" % (T + 4 * g + 1, T + 4 * g + 1))
def sp_stats_store(p):
    T = 200
    for q in (T + 2, T + 3, T + 6, T + 7): p("v_mov_b32 v%d, s%d" % (q, sN))
    p("v_lshrrev_b32 v10, 3, v1"); p("v_lshlrev_b32 v10, 4, v10")
    p("s_lshl_b32 s%d, s73, 4" % sT0)
    p("s_mov_b32 exec_lo, 0x01010101"); p("s_mov_b32 exec_hi, 0x01010101")
    p("buffer_store_dwordx4 %s, v10, s[%d:%d], s%d offen sc1" % (vr(T, 4), ST_, ST_ + 3, sT0), "pst")
    p("buffer_store_dwordx4 %s, v10, s[%d:%d], s%d offen offset:128 sc1" % (vr(T + 4, 4), ST_, ST_ + 3, sT0), "pst")
    p("s_mov_b64 exec, -1")
SPC_LDS = 0
def sp_cs(p):
    A = 216
    p("s_mov_b32 s76, 0x00003f80"); p("s_mov_b32 s77, 0x3f800000")
    for i in range(8):
        for part in range(2):
            for d in range(4):
                r_ = SC_ + 8 * i + 4 * part + d; a = A + 8 * part + 2 * d
                p("v_dot2_f32_bf16 v%d, v%d, s76, %s" % (a, r_, "0" if i == 0 else "v%d" % a))
                p("v_dot2_f32_bf16 v%d, v%d, s77, %s" % (a + 1, r_, "0" if i == 0 else "v%d" % (a + 1)))
    p("v_lshlrev_b32 v10, 5, v1"); p("s_lshl_b32 s%d, s%d, 12" % (sT0, sW)); p("v_add_u32 v10, s%d, v10" % sT0)
    for part in range(2):
        p("ds_write_b128 v10, %s offset:%d" % (vr(A + 8 * part, 4), SPC_LDS + part * 2048))
        p("ds_write_b128 v10, %s offset:%d" % (vr(A + 8 * part + 4, 4), SPC_LDS + part * 2048 + 16))
def sp_cs_store(p):
    p("v_lshlrev_b32 v10, 4, v0")
    for w in range(4): p("ds_read_b128 %s, v10 offset:%d" % (vr(64 + 4 * w, 4), SPC_LDS + w * 4096))
    for c in range(4):
        p("v_add_f32 v%d, v%d, v%d" % (64 + c, 64 + c, 68 + c)); p("v_add_f32 v%d, v%d, v%d" % (72 + c, 72 + c, 76 + c))
    for c in range(4): p("v_add_f32 v%d, v%d, v%d" % (80 + 2 * c, 64 + c, 72 + c)); p("v_mov_b32 v%d, s%d" % (81 + 2 * c, sN))
    p("s_mul_i32 s%d, s74, %d" % (sT0, 1792 * 8)); p("s_and_b32 s%d, s%d, 1" % (sT1, sJ)); p("s_mul_i32 s%d, s%d, %d" % (sT1, sT1, 896 * 8))
    p("s_add_u32 s%d, s%d, s%d" % (sT0, sT0, sT1))
    p("v_lshlrev_b32 v11, 5, v0")
    p("v_cmp_gt_u32 vcc, 224, v0"); p("s_nop 1"); p("v_cndmask_b32 v11, v253, v11, vcc"); p("v_mov_b32 v12, 0x7f000000")
    p("v_cndmask_b32 v11, v12, v11, vcc")
    p("buffer_store_dwordx4 v[80:83], v11, s[%d:%d], s%d offen sc1" % (CSP_, CSP_ + 3, sT0), "pst")
    p("buffer_store_dwordx4 v[84:87], v11, s[%d:%d], s%d offen offset:16 sc1" % (CSP_, CSP_ + 3, sT0), "pst")
def fk_publish(p, name):
    p("s_cmp_eq_u32 s%d, 0" % sW)
    p("s_cbranch_scc0 %s_nofk" % name)
    st = side_path_begin(p)
    p("s_lshl_b32 s%d, s%d, 5" % (sT0, sJ)); p("s_add_u32 s%d, s%d, s%d" % (sT0, sT0, sR))
    p("s_lshl_b32 s%d, s%d, 7" % (sT0, sT0))
    if FL_FK: p("s_add_u32 s%d, s%d, %d" % (sT0, sT0, FL_FK))
    flag_store(p, sT0)
    side_path_end(p, st)
    p.label("%s_nofk" % name)
vPK, vPA = 184, 185
def fk_addr(p, all_waves=False):
    p("v_min_u32 v%d, 31, v1" % vPA); p("v_lshlrev_b32 v%d, 7, v%d" % (vPA, vPA))
    if not all_waves:
        p("s_min_u32 s85, s%d, 1" % sW); p("s_sub_u32 s85, 1, s85"); p("v_mul_u32_u24 v%d, s85, v%d" % (vPA, vPA))
    p("s_lshl_b32 s85, s%d, 12" % sJ)
    if FL_FK: p("s_add_u32 s85, s85, %d" % FL_FK)

vX, vWd, vXA, vWA = 192, 196, 200, 208
G1_ACC = 64
vCS, vB1, vST = 128, 180, 212
B1_ = 40
def g1_dma_setup(p):
    p("v_lshrrev_b32 v10, 3, v1"); p("v_and_b32 v11, 7, v1"); p("v_lshrrev_b32 v12, 1, v10")
    for ii in range(4):
        p("v_add_u32 v13, %d, v12" % (4 * (ii & 1))); p("v_xor_b32 v13, v13, v11")
        p("v_lshlrev_b32 v13, 4, v13"); p("v_lshl_add_u32 v13, v10, 10, v13")
        p("v_add_u32 v%d, %d, v13" % (vX + ii, ii * 8192 - ii * 1024))
    p("v_lshrrev_b32 v10, 4, v1"); p("v_and_b32 v11, 15, v1"); p("v_lshlrev_b32 v12, 2, v10")
    p("v_xor_b32 v12, v12, v11"); p("v_lshlrev_b32 v12, 4, v12")
    p("v_mul_u32_u24 v13, 3584, v10"); p("v_add_u32 v13, v13, v12")
    for ii in range(4): p("v_add_u32 v%d, %d, v13" % (vWd + ii, ii * 4 * 3584 - ii * 1024))
    p("s_lshl_b32 s%d, s%d, 17" % (sXo, sRB)); p("s_lshl_b32 s%d, s%d, 15" % (sT0, sW))
    p("s_add_u32 s%d, s%d, s%d" % (sXo, sXo, sT0))
    p("s_mul_i32 s%d, s%d, %d" % (sWo, sW, 16 * 3584)); p("s_lshl_b32 s%d, s%d, 8" % (sT0, sFT))
    p("s_add_u32 s%d, s%d, s%d" % (sWo, sWo, sT0))
    p("s_lshl_b32 s%d, s%d, 12" % (sM, sW))
def g1_dma_stage(s):
    out = []; slot = s % 4
    for ii in range(4):
        u = [("s_add_u32 m0, s%d, %d" % (sM, slot * 32768), None)] if ii == 0 else []
        out.append(u + [("buffer_load_dwordx4 v%d, s[%d:%d], s%d offen offset:%d lds" % (vX + ii, GQ_, GQ_ + 3, sXo, ii * 1024), "st%d" % s)])
    for ii in range(4):
        u = [("s_add_u32 m0, s%d, %d" % (sM, slot * 32768 + 16384), None)] if ii == 0 else []
        out.append(u + [("buffer_load_dwordx4 v%d, s[%d:%d], s%d offen offset:%d lds" % (vWd + ii, GW1_, GW1_ + 3, sWo, ii * 1024), "st%d" % s)])
    out[-1] += [("s_add_u32 s%d, s%d, 128" % (sXo, sXo), None), ("s_add_u32 s%d, s%d, %d" % (sWo, sWo, 64 * 3584), None)]
    return out
def g1_lds_setup(p):
    p("v_and_b32 v10, 31, v1"); p("v_lshrrev_b32 v11, 5, v1")
    p("v_lshrrev_b32 v12, 1, v10"); p("v_and_b32 v12, 7, v12"); p("v_xor_b32 v12, v12, v11")
    p("s_lshr_b32 s%d, s%d, 1" % (sT1, sW)); p("s_lshl_b32 s%d, s%d, 13" % (sT1, sT1))
    p("v_lshlrev_b32 v13, 7, v10"); p("v_add_u32 v13, s%d, v13" % sT1)
    for jj in range(4):
        p("v_xor_b32 v14, %d, v12" % (2 * jj))
        p("v_lshl_add_u32 v%d, v14, 4, v13" % (vXA + jj))
        p("v_add_u32 v%d, 0x10000, v%d" % (vXA + 4 + jj, vXA + jj))
    p("v_and_b32 v10, 15, v1"); p("v_lshrrev_b32 v11, 4, v1"); p("v_lshrrev_b32 v12, 1, v11")
    p("v_and_b32 v11, 1, v11"); p("v_lshrrev_b32 v13, 2, v10")
    p("v_lshl_add_u32 v12, v12, 3, v13"); p("v_lshlrev_b32 v12, 8, v12")
    p("v_and_b32 v14, 1, v10"); p("v_lshl_add_u32 v12, v14, 3, v12"); p("v_add_u32 v12, 16384, v12")
    p("v_and_b32 v14, 3, v10"); p("v_lshrrev_b32 v14, 1, v14"); p("v_lshl_add_u32 v14, v11, 1, v14")
    p("s_and_b32 s%d, s%d, 1" % (sT1, sW)); p("s_lshl_b32 s%d, s%d, 3" % (sT1, sT1))
    p("v_add_u32 v14, s%d, v14" % sT1); p("v_lshlrev_b32 v13, 2, v13")
    for fb in range(2):
        p("v_add_u32 v15, %d, v14" % (4 * fb)); p("v_xor_b32 v15, v15, v13")
        p("v_lshl_add_u32 v%d, v15, 4, v12" % (vWA + fb))
        p("v_add_u32 v%d, 0x10000, v%d" % (vWA + 2 + fb, vWA + fb))

def tab_loads(p):
    p("v_lshlrev_b32 v10, 4, v1")
    p("s_lshl_b32 s83, s%d, 2" % sW); p("s_mul_i32 s83, s83, %d" % (1792 * 8)); p("s_lshl_b32 s84, s%d, 10" % sFT); p("s_add_u32 s83, s83, s84")
    for i in range(4):
        p("buffer_load_dwordx4 %s, v10, s[%d:%d], s83 offen sc1" % (vr(vCS + 4 * i, 4), CSP_, CSP_ + 3), "tab")
        if i < 3: p("s_add_u32 s83, s83, %d" % (1792 * 8))
    p("s_lshr_b32 s84, s%d, 1" % sW); p("s_lshl_b32 s84, s84, 6")
    p("s_lshl_b32 s83, s%d, 7" % sRB); p("s_add_u32 s83, s83, s84"); p("s_lshl_b32 s83, s83, 4")
    p("v_and_b32 v12, 31, v1"); p("v_lshlrev_b32 v12, 4, v12")
    p("buffer_load_dwordx4 %s, v12, s[%d:%d], s83 offen sc1" % (vr(vST, 4), ST_, ST_ + 3), "tab")
    p("buffer_load_dwordx4 %s, v12, s[%d:%d], s83 offen offset:512 sc1" % (vr(vST + 4, 4), ST_, ST_ + 3), "tab")
def tab_check(p):
    _uid[0] += 1; u = _uid[0]
    def cmp():
        tags = [vCS + 4 * i + 1 for i in range(4)] + [vCS + 4 * i + 3 for i in range(4)] + [vST + 2, vST + 6]
        p("v_min3_u32 v10, v%d, v%d, v%d" % tuple(tags[0:3])); p("v_max3_u32 v11, v%d, v%d, v%d" % tuple(tags[0:3]))
        for i in range(3, 9, 2):
            p("v_min3_u32 v10, v10, v%d, v%d" % (tags[i], tags[i + 1])); p("v_max3_u32 v11, v11, v%d, v%d" % (tags[i], tags[i + 1]))
        p("v_min_u32 v10, v10, v%d" % tags[9]); p("v_max_u32 v11, v11, v%d" % tags[9])
        p("v_cmp_ne_u32 vcc, s%d, v10" % sN); p("v_cmp_ne_u32 s[76:77], s%d, v11" % sN)
        p("s_or_b64 vcc, vcc, s[76:77]"); p("s_nop 4")
    cmp()
    p("s_cbranch_vccz Lt%d_ok" % u)
    saved = (list(p.vm), list(p.lg))
    p("s_mov_b32 s79, 0")
    p.label("Lt%d_loop" % u)
    p("s_sleep 2")
    tab_loads(p)
    p.wait(vm=0)
    cmp()
    p("s_cbranch_vccz Lt%d_ok" % u)
    p("s_add_u32 s79, s79, 1"); p("s_cmp_lt_u32 s79, 0x40000"); p("s_cbranch_scc1 Lt%d_loop" % u)
    p.label("Lt%d_ok" % u)
    p.vm, p.lg = saved
def tab_partial(p):
    p("v_add_f32 v%d, v%d, v%d" % (vCS, vCS, vCS + 4)); p("v_add_f32 v%d, v%d, v%d" % (vCS + 2, vCS + 2, vCS + 6))
    p("v_add_f32 v%d, v%d, v%d" % (vCS + 8, vCS + 8, vCS + 12)); p("v_add_f32 v%d, v%d, v%d" % (vCS + 10, vCS + 10, vCS + 14))
    p("v_add_f32 v%d, v%d, v%d" % (vCS, vCS, vCS + 8)); p("v_add_f32 v%d, v%d, v%d" % (vCS + 1, vCS + 2, vCS + 10))
    p("v_lshlrev_b32 v10, 3, v1"); p("s_lshl_b32 s83, s%d, 9" % sW); p("v_add_u32 v10, s83, v10"); p("v_add_u32 v10, %d, v10" % CSQ_LDS)
    p("ds_write_b64 v10, %s" % vr(vCS, 2))

def g1_main(p, fill):
    ACC = G1_ACC; FR = 32
    def reads(g):
        s, jj = g // 4, g % 4
        slot = s % 4; hi = slot >= 2; so = (slot & 1) * 32768
        f = FR + 16 * (g & 1); out = []
        for fb in range(2):
            for rr in range(2):
                out.append("ds_read_b64_tr_b16 %s, v%d offset:%d" % (vr(f + 4 * fb + 2 * rr, 2), vWA + fb + (2 if hi else 0), so + jj * 4096 + rr * 1024))
        for tb in range(2):
            out.append("ds_read_b128 %s, v%d offset:%d" % (vr(f + 8 + 4 * tb, 4), vXA + jj + (4 if hi else 0), so + tb * 4096))
        return out
    def mfmas(g):
        f = FR + 16 * (g & 1); out = []
        for fb in range(2):
            for tb in range(2):
                a = ACC + 16 * (2 * fb + tb)
                out.append("v_mfma_f32_32x32x16_bf16 %s, %s, %s, %s" % (vr(a, 16), vr(f + 4 * fb, 4), vr(f + 8 + 4 * tb, 4), "0" if g == 0 else vr(a, 16)))
        return out
    for s in range(8):
        prewait, pre, units = fill[s][:3]
        tail = fill[s][3] if len(fill[s]) > 3 else []
        p.wait_tag("st%d" % s)
        prewait(p)
        p("s_barrier")
        stamp(p, "g1_st%d" % s)
        pre(p)
        dm = g1_dma_stage(s + 3) if (s + 3 < 8 and s >= 1) else []
        if s == 0: dm = g1_dma_stage(3)
        nm = 16 if s > 0 else 12
        di = ui = k = 0
        for jj in range(4):
            g = 4 * s + jj
            rd = reads(g)
            if g == 0:
                for t in rd: p(t)
                continue
            for q, t in enumerate(mfmas(g - 1)):
                p(t)
                for r_ in rd[2 * q:2 * q + 2]: p(r_)
                k += 1
                while di < len(dm) and di * nm < k * len(dm):
                    emit(p, dm[di]); di += 1
                while ui < len(units) and ui * nm < k * len(units):
                    emit(p, [units[ui]]); ui += 1
        while di < len(dm): emit(p, dm[di]); di += 1
        while ui < len(units): emit(p, [units[ui]]); ui += 1
        emit(p, tail)
    for t in mfmas(31): p(t)

def g1_epilogue(p, extra):
    HF_ = 44
    srd(p, HF_, P_WS, SZ_HF, WS_HF)
    ACC = G1_ACC; TBL = 128
    p("v_lshrrev_b32 v10, 5, v1"); p("v_lshlrev_b32 v10, 4, v10")
    p("s_and_b32 s%d, s%d, 1" % (sT1, sW)); p("s_lshl_b32 s%d, s%d, 8" % (sT1, sT1))
    p("v_add_u32 v10, s%d, v10" % sT1); p("v_add_u32 v10, %d, v10" % TAB_LDS)
    for rq in range(4):
        p("ds_read_b128 %s, v10 offset:%d" % (vr(TBL + 4 * rq, 4), rq * 32))
        p("ds_read_b128 %s, v10 offset:%d" % (vr(TBL + 16 + 4 * rq, 4), 512 + rq * 32))
    p("s_lshr_b32 s%d, s%d, 1" % (sT1, sW)); p("s_lshl_b32 s%d, s%d, 1" % (sT1, sT1))
    p("s_lshl_b32 s%d, s%d, 2" % (sT0, sRB)); p("s_add_u32 s%d, s%d, s%d" % (sT0, sT0, sT1))
    p("s_mul_i32 s%d, s%d, 112" % (sT0, sT0)); p("s_lshl_b32 s%d, s%d, 3" % (sT1, sFT))
    p("s_add_u32 s%d, s%d, s%d" % (sT0, sT0, sT1))
    p("s_and_b32 s%d, s%d, 1" % (sT1, sW)); p("s_lshl_b32 s%d, s%d, 2" % (sT1, sT1))
    p("s_add_u32 s%d, s%d, s%d" % (sT0, sT0, sT1)); p("s_lshl_b32 s83, s%d, 10" % sT0)
    p("v_lshlrev_b32 v11, 4, v1"); p("v_add_u32 v12, %d, v11" % (112 * 1024))
    for tb in range(2): p("v_mul_f32 v%d, v%d, v%d" % (vST + 4 * tb, vST + 4 * tb, vST + 4 * tb + 1))
    main = []
    TB2 = 32
    for fb in range(2):
        tbl = TBL if fb == 0 else TB2
        for tb in range(2):
            a = ACC + 16 * (2 * fb + tb); mu = vST + 4 * tb
            PK = 160 + 8 * tb
            if fb == 0 and tb == 0:
                for rq in range(4):
                    main.append(("ds_read_b128 %s, v10 offset:%d" % (vr(TB2 + 4 * rq, 4), 128 + rq * 32), None))
                    main.append(("ds_read_b128 %s, v10 offset:%d" % (vr(TB2 + 16 + 4 * rq, 4), 512 + 128 + rq * 32), None))
            for r_ in range(0, 16, 4):
                t0, t1 = 176, 178
                for t, rr in ((t0, r_), (t1, r_ + 2)):
                    main.append(("v_pk_fma_f32 %s, %s, %s, %s op_sel_hi:[0,1,1] neg_lo:[1,0,0] neg_hi:[1,0,0]" % (vr(t, 2), vr(mu, 2), vr(tbl + rr, 2), vr(tbl + 16 + rr, 2)), None))
                for t, rr in ((t0, r_), (t1, r_ + 2)):
                    main.append(("v_pk_fma_f32 %s, %s, %s, %s op_sel:[0,1,0] op_sel_hi:[1,1,1]" % (vr(t, 2), vr(a + rr, 2), vr(mu, 2), vr(t, 2)), None))
                for t in (t0, t0 + 1, t1, t1 + 1): main.append(("v_max_f32 v%d, 0, v%d" % (t, t), None))
                for t in (t0, t1): main.append(("v_pk_mul_f32 %s, %s, %s" % (vr(t, 2), vr(t, 2), vr(t, 2)), None))
                for t, rr in ((t0, r_), (t1, r_ + 2)): main.append(("v_cvt_pk_bf16_f32 v%d, v%d, v%d" % (PK + (rr >> 1), t, t + 1), None))
            for q in range(2):
                main.append(("buffer_store_dwordx4 %s, v%d, s[%d:%d], s83 offen offset:%d sc1" % (vr(PK + 4 * q, 4), 11 + tb, HF_, HF_ + 3, (2 * fb + q) * 1024), "hst"))
    n = len(extra); k = 0
    for i, it in enumerate(main):
        emit(p, [it])
        while k < n and k * len(main) < (i + 1) * n:
            emit(p, [extra[k]]); k += 1

def h_publish(p):
    p("s_lshl_b32 s%d, s%d, 1" % (sT0, sRB)); p("s_lshr_b32 s%d, s%d, 1" % (sT1, sW))
    p("s_add_u32 s%d, s%d, s%d" % (sT0, sT0, sT1)); p("s_mul_i32 s%d, s%d, 28" % (sT0, sT0))
    p("s_lshl_b32 s%d, s%d, 1" % (sT1, sFT)); p("s_add_u32 s%d, s%d, s%d" % (sT0, sT0, sT1))
    p("s_and_b32 s%d, s%d, 1" % (sT1, sW)); p("s_add_u32 s%d, s%d, s%d" % (sT0, sT0, sT1))
    p("s_lshl_b32 s%d, s%d, 7" % (sT0, sT0)); p("s_add_u32 s%d, s%d, %d" % (sT0, sT0, FL_FH))
    flag_store(p, sT0)

KVT2_, SSM_, DD_, ZT_ = 48, 44, 60, 60
CV_R, vDD = 220, 254
def conv_setup(p):
    srd(p, KVT2_, P_WS, SZ_KVT, WS_KVT); srd(p, SSM_, P_SSM, D * S * 2); srd(p, DD_, P_DD, D * 2)
    p("s_lshr_b32 s%d, s%d, 1" % (sT0, sW)); p("s_and_b32 s%d, s%d, 1" % (sC2, sW))
    p("s_lshl_b32 s%d, s%d, 6" % (sCH, sJ)); p("s_lshl_b32 s%d, s%d, 1" % (sT1, sR))
    p("s_add_u32 s%d, s%d, s%d" % (sCH, sCH, sT1)); p("s_add_u32 s%d, s%d, s%d" % (sCH, sCH, sT0))
    p("s_mul_i32 s%d, s%d, 21248" % (sCB, sT0)); p("s_add_u32 s%d, s%d, %d" % (sCB, sCB, CV0 + 256))
def conv_loads_regs(p):
    p("s_lshl_b32 s83, s%d, 12" % sCH); p("s_lshl_b32 s84, s%d, 11" % sC2); p("s_add_u32 s83, s83, s84")
    p("v_lshlrev_b32 v2, 4, v1")
    R = CV_R
    for sg in range(2):
        for k in range(3):
            p("buffer_load_dwordx4 %s, v2, s[%d:%d], s83 offen offset:%d sc1" % (vr(R + 12 * sg + 4 * k, 4), KVT2_, KVT2_ + 3, sg * 1024 + 4 * k), "cv")
    p("v_mov_b32 v4, 0"); p("s_lshl_b32 s84, s%d, 1" % sCH)
    p("buffer_load_ushort v%d, v4, s[%d:%d], s84 offen" % (vDD, DD_, DD_ + 3), "cv")
def conv_loads_lds(p):
    p("s_lshl_b32 s%d, s%d, 12" % (sT0, sCH)); p("s_lshl_b32 s%d, s%d, 11" % (sT1, sC2))
    p("s_add_u32 s%d, s%d, s%d" % (sT0, sT0, sT1))
    p("v_lshlrev_b32 v2, 4, v1")
    for sg in range(2):
        p("s_add_u32 s%d, s%d, s%d" % (sT2, sCB, sT1))
        p("s_add_u32 m0, s%d, %d" % (sT2, 16640 + 512 + sg * 1024))
        p("s_add_u32 s%d, s%d, %d" % (sT2, sT0, sg * 1024))
        p("buffer_load_dwordx4 v2, s[%d:%d], s%d offen lds" % (SSM_, SSM_ + 3, sT2), "cv")
    for i in range(4): p("v_mov_b32 v%d, 0" % (16 + i))
    p("v_lshrrev_b32 v5, 1, v1"); p("v_mul_u32_u24 v5, 4160, v5")
    p("v_and_b32 v6, 1, v1"); p("v_lshl_add_u32 v5, v6, 4, v5"); p("v_add_u32 v5, 4096, v5")
    p("v_add_u32 v6, 16640, v2")
    p("s_cmp_eq_u32 s%d, 0" % sC2)
    p("s_cselect_b32 s76, 0xff, -1")
    p("s_cselect_b64 vcc, -1, 0")
    p("v_cndmask_b32 v5, v6, v5, vcc")
    p("v_add_u32 v5, s%d, v5" % sCB)
    p("s_mov_b32 exec_lo, s76"); p("s_mov_b32 exec_hi, 0")
    p("ds_write_b128 v5, v[16:19]")
    p("s_mov_b64 exec, -1")

def conv_fill(p):
    R = CV_R
    p("v_mov_b32 v10, %d" % ZCNT_LDS); p("ds_write_b32 v10, v253")
    p("v_lshlrev_b32 v2, 4, v1"); p("v_mov_b32 v8, 0")
    p("s_lshl_b32 s77, s%d, 31" % sC2); p("s_mov_b32 s76, 0")
    last = R + 12
    for rg in (last + 7, last + 10, last + 11): p("v_cndmask_b32 v%d, v%d, v8, s[76:77]" % (rg, rg))
    p("s_lshl_b32 s%d, s%d, 11" % (sT1, sC2)); p("s_add_u32 s%d, s%d, s%d" % (sT1, sT1, sCB))
    p("v_add_u32 v5, s%d, v2" % sT1)
    for sg in range(2):
        r0, r1, r2 = R + 12 * sg, R + 12 * sg + 4, R + 12 * sg + 8
        c1, c3 = 40 + 8 * sg, 44 + 8 * sg
        p("ds_write_b128 v5, %s offset:%d" % (vr(r0, 4), sg * 1024))
        for i in range(4): p("v_alignbit_b32 v%d, v%d, v%d, 16" % (c1 + i, r1 + i, r0 + i))
        p("ds_write_b128 v5, %s offset:%d" % (vr(r1, 4), 2 * 4160 + sg * 1024))
        for i in range(4): p("v_alignbit_b32 v%d, v%d, v%d, 16" % (c3 + i, r2 + i, r1 + i))
        p("ds_write_b128 v5, %s offset:%d" % (vr(c1, 4), 4160 + sg * 1024))
        p("ds_write_b128 v5, %s offset:%d" % (vr(c3, 4), 3 * 4160 + sg * 1024))

def conv_main(p, extra_by_class):
    vA, vB = 12, 13
    p("v_and_b32 v6, 15, v1"); p("v_lshrrev_b32 v7, 4, v1")
    p("v_sub_u32 v14, 3, v6"); p("v_and_b32 v14, 3, v14")
    p("v_mul_u32_u24 v15, 4158, v14")
    p("v_lshlrev_b32 v14, 1, v6"); p("v_sub_u32 v15, v15, v14"); p("v_lshl_add_u32 v15, v7, 4, v15")
    p("s_lshl_b32 s%d, s%d, 8" % (sT1, sC2)); p("s_sub_u32 s%d, s%d, s%d" % (sT1, sCB, sT1))
    p("s_add_u32 s%d, s%d, 30" % (sT2, sT1)); p("v_add_u32 v%d, s%d, v15" % (vA, sT2))
    p("v_lshlrev_b32 v15, 5, v6"); p("v_lshl_add_u32 v15, v7, 4, v15")
    p("s_add_u32 s%d, s%d, %d" % (sT2, sT1, 16640 + 32)); p("v_add_u32 v%d, s%d, v15" % (vB, sT2))
    ACC = 64
    p.wait(lg=0)
    p("s_barrier")
    stamp(p, "conv_filled")
    FA, FB = 96, 160
    def reads(rl):
        st = rl & 1; out = []
        for x in range(8):
            oa = 64 * (63 - rl - 8 * x)
            out.append(("ds_read_b64 %s, v%d offset:%d" % (vr(FA + 32 * st + 4 * x, 2), vA, oa), None))
            out.append(("ds_read_b64 %s, v%d offset:%d" % (vr(FA + 32 * st + 4 * x + 2, 2), vA, oa + 8), None))
            out.append(("ds_read_b128 %s, v%d offset:%d" % (vr(FB + 32 * st + 4 * x, 4), vB, 64 * (7 - rl + 8 * x)), None))
        return out
    seen = set()
    def mf(rl):
        st = rl & 1; out = []
        pairs = sorted([(a, b) for a in range(8) for b in range(8) if a + b <= 7], key=lambda ab: (max(ab), ab))
        for a, b in pairs:
            c = vr(ACC + 4 * (a + b), 4)
            first = (a + b) not in seen; seen.add(a + b)
            out.append(("v_mfma_f32_16x16x32_bf16 %s, %s, %s, %s" % (c, vr(FA + 32 * st + 4 * a, 4), vr(FB + 32 * st + 4 * b, 4), "0" if first else c), None))
        return out
    for t in reads(0): p(*t)
    for rl in range(4):
        pre, fill = extra_by_class[rl]
        pre(p)
        nxt = (reads(rl + 1) if rl < 3 else [])
        m = mf(rl)
        ni = fi = 0
        for i, t in enumerate(m):
            p(*t)
            while ni < len(nxt) and ni * 30 < (i + 1) * len(nxt): p(*nxt[ni]); ni += 1
            while fi < len(fill) and fi * 36 < (i + 1) * len(fill): emit(p, [fill[fi]]); fi += 1
    stamp(p, "conv_mma_done")

def conv_finish(p, name, extra):
    ACC = 64
    RB = RB_LDS
    srd(p, ZT_, P_WS, SZ_ZT, WS_ZT)
    p("v_lshlrev_b32 v2, 4, v1")
    p("s_lshl_b32 s%d, s%d, 12" % (sT1, sW))
    p("v_add_u32 v5, s%d, v2" % sT1); p("v_add_u32 v5, %d, v5" % RB)
    p("s_xor_b32 s%d, s%d, 1" % (sT1, sW)); p("s_lshl_b32 s%d, s%d, 12" % (sT1, sT1))
    p("v_add_u32 v14, s%d, v2" % sT1); p("v_add_u32 v14, %d, v14" % RB)
    p("v_lshlrev_b32 v15, 5, v6"); p("v_lshl_add_u32 v15, v7, 3, v15")
    p("s_lshl_b32 s%d, s%d, 11" % (sT1, sC2)); p("s_sub_u32 s%d, s%d, s%d" % (sT2, sCB, sT1))
    p("s_add_u32 s%d, s%d, %d" % (sT2, sT2, 4088 - 1536)); p("v_sub_u32 v16, s%d, v15" % sT2)
    p("s_lshl_b32 s84, s%d, 12" % sCH); p("s_add_u32 s84, s84, s%d" % sT1)
    p("v_lshlrev_b32 v%d, 16, v%d" % (vDD, vDD))
    for q in range(4): p("ds_read_b64 %s, v16 offset:%d" % (vr(36 + 2 * q, 2), (3 - q) * 512))
    n1 = len(extra) // 2
    emit(p, extra[:n1])
    st = side_path_begin(p); hist = len(p.out)
    p("s_cmp_eq_u32 s%d, 0" % sC2)
    p("s_cbranch_scc0 %s_hi" % name)
    for variant in range(2):
        keep = ACC + 16 * variant; give = ACC + 16 * (1 - variant)
        if variant == 1:
            p("s_branch %s_cdone" % name)
            p.label("%s_hi" % name)
            side_path_end(p, st)
            p("s_nop 7")
        for q in range(4): p("ds_write_b128 v5, %s offset:%d" % (vr(give + 4 * q, 4), q * 1024))
        for q in range(4):
            a_ = keep + 4 * q; u = 36 + 2 * q
            for c, (src, hf) in enumerate(((u + 1, 1), (u + 1, 0), (u, 1), (u, 0))):
                unpack(p, 44 + (c & 1), src, hf)
                p("v_fmac_f32 v%d, v%d, v%d" % (a_ + c, 44 + (c & 1), vDD))
        p.wait(lg=0)
        p("s_barrier")
        for q in range(4): p("ds_read_b128 %s, v14 offset:%d" % (vr(20 + 4 * q, 4), q * 1024))
        for q in range(4):
            a_ = keep + 4 * q
            for c in range(4): p("v_add_f32 v%d, v%d, v%d" % (a_ + c, a_ + c, 20 + 4 * q + c))
            p("v_cvt_pk_bf16_f32 v%d, v%d, v%d" % (48 + 2 * q, a_, a_ + 1))
            p("v_cvt_pk_bf16_f32 v%d, v%d, v%d" % (49 + 2 * q, a_ + 2, a_ + 3))
    p.label("%s_cdone" % name)
    emit(p, extra[n1:])
def z_stores(p):
    for q in range(4):
        p("buffer_store_dwordx2 %s, v15, s[%d:%d], s84 offen offset:%d sc1" % (vr(48 + 2 * q, 2), ZT_, ZT_ + 3, q * 512), "zst")
ZCNT_LDS = 163832
def z_publish(p, name):
    p("v_mov_b32 v10, %d" % ZCNT_LDS); p("v_mov_b32 v11, 1")
    p("s_mov_b64 exec, 1")
    p("ds_add_rtn_u32 v11, v10, v11")
    p("s_mov_b64 exec, -1")
    p.wait(lg=0)
    p("v_readfirstlane_b32 s%d, v11" % sT0)
    p("s_cmp_eq_u32 s%d, 3" % sT0)
    p("s_cbranch_scc0 %s_nozp" % name)
    st = side_path_begin(p)
    p("s_lshl_b32 s%d, s%d, 5" % (sT0, sJ)); p("s_add_u32 s%d, s%d, s%d" % (sT0, sT0, sR))
    p("s_lshl_b32 s%d, s%d, 7" % (sT0, sT0)); p("s_add_u32 s%d, s%d, %d" % (sT0, sT0, FL_FZ))
    flag_store(p, sT0)
    side_path_end(p, st)
    p.label("%s_nozp" % name)

HF2_, W2_, Q2_, ZT2_, ST2_, B2_, OUT_ = 40, 8, 48, 52, 56, 64, 44
vH0, vH1, vD0, vD1 = 244, 245, 246, 247
vFH, vFHA = 248, 249
vTRA = 60
sWS = 75
NS = 28
STASH0 = 0
HB = 128
def g2_setup(p):
    srd(p, W2_, P_W2, F * D * 2)
    p("s_lshl_b32 s%d, s%d, 8" % (sTok, sJ))
    p("s_lshr_b32 s%d, s%d, 3" % (sT0, sR)); p("s_lshl_b32 s%d, s%d, 6" % (sT0, sT0))
    p("s_add_u32 s%d, s%d, s%d" % (sTok, sTok, sT0))
    p("s_add_u32 s%d, s%d, %d" % (sCh, sR, OPT.get("cbrot", 0))); p("s_and_b32 s%d, s%d, 7" % (sCh, sCh)); p("s_lshl_b32 s%d, s%d, 6" % (sCh, sCh))
    p("s_lshr_b32 s%d, s%d, 5" % (sT0, sTok)); p("s_mul_i32 s%d, s%d, 112" % (sT0, sT0))
    p("s_mul_i32 s%d, s%d, 28" % (sT1, sW))
    p("s_add_u32 s%d, s%d, s%d" % (sT0, sT0, sT1)); p("s_lshl_b32 s%d, s%d, 10" % (sHo, sT0))
    p("s_lshl_b32 s%d, s%d, 14" % (sWA, sT1)); p("s_lshl_b32 s%d, s%d, 1" % (sT0, sCh))
    p("s_add_u32 s%d, s%d, s%d" % (sWA, sWA, sT0))
    p("s_lshl_b32 s%d, s%d, 11" % (sM2, sW))
    p("v_lshlrev_b32 v%d, 4, v1" % vH0)
    p("v_add_u32 v%d, %d, v%d" % (vH1, 112 * 1024, vH0))
    p("v_lshrrev_b32 v10, 3, v1"); p("v_and_b32 v11, 7, v1")
    p("v_lshrrev_b32 v12, 1, v10"); p("v_and_b32 v12, 1, v12"); p("v_lshlrev_b32 v12, 2, v12")
    p("v_xor_b32 v12, v12, v11"); p("v_lshlrev_b32 v12, 4, v12")
    p("v_lshl_add_u32 v%d, v10, 10, v12" % vD0)
    p("v_add_u32 v%d, %d, v%d" % (vD1, 8192 - 1024, vD0))
def g2_setup_tr(p):
    p("v_and_b32 v10, 15, v1"); p("v_lshrrev_b32 v11, 4, v1"); p("v_lshrrev_b32 v12, 1, v11"); p("v_and_b32 v11, 1, v11")
    p("v_lshrrev_b32 v13, 2, v10"); p("v_lshl_add_u32 v12, v12, 2, v13"); p("v_lshlrev_b32 v12, 7, v12")
    p("v_and_b32 v14, 3, v10"); p("v_lshrrev_b32 v15, 1, v14"); p("v_lshl_add_u32 v12, v15, 3, v12")
    p("v_and_b32 v14, 1, v14"); p("v_lshl_add_u32 v14, v14, 1, v11")
    p("v_lshrrev_b32 v15, 3, v10"); p("v_lshlrev_b32 v15, 2, v15")
    p("v_add_u32 v12, s%d, v12" % sM2)
    for cb in range(2):
        p("v_add_u32 v13, %d, v14" % (4 * cb)); p("v_xor_b32 v13, v13, v15")
        p("v_lshl_add_u32 v%d, v13, 4, v12" % (vTRA + cb))
        p("v_add_u32 v%d, 0x10000, v%d" % (vTRA + 2 + cb, vTRA + cb))
def w2_dma(step, slot):
    tag = "w%d" % step
    return [[("s_add_u32 s%d, s%d, %d" % (sWS, sWA, step * 16384), None),
             ("s_add_u32 m0, s%d, %d" % (sM2, slot * 8192), None),
             ("buffer_load_dwordx4 v%d, s[%d:%d], s%d offen lds" % (vD0, W2_, W2_ + 3, sWS), tag),
             ("buffer_load_dwordx4 v%d, s[%d:%d], s%d offen offset:1024 lds" % (vD1, W2_, W2_ + 3, sWS), tag)]]
def tr_reads(slot, dst, kind):
    out = []
    for cb in range(2):
        for rr in range(2):
            hi = slot >= 8
            out.append(("ds_read_b64_tr_b16 %s, v%d offset:%d" % (vr(dst + 4 * cb + 2 * rr, 2, kind), vTRA + cb + (2 if hi else 0), (slot - 8 * hi) * 8192 + rr * 1024), None))
    return out
def stash_reads(step, slot): return tr_reads(slot, STASH0 + 8 * (step - 12), 'a')
def h_loads(s):
    slot = s % OPT["depth_h"]
    return [("buffer_load_dwordx4 %s, v%d, s[%d:%d], s%d offen sc1" % (ar(HB + 8 * slot, 4), vH0, HF2_, HF2_ + 3, sHo), "h%d" % s),
            ("buffer_load_dwordx4 %s, v%d, s[%d:%d], s%d offen sc1" % (ar(HB + 8 * slot + 4, 4), vH1, HF2_, HF2_ + 3, sHo), "h%d" % s),
            ("s_add_u32 s%d, s%d, 1024" % (sHo, sHo), None)]
def fh_poll_issue(p):
    p("v_min_u32 v%d, 6, v1" % vFHA); p("v_lshlrev_b32 v%d, 7, v%d" % (vFHA, vFHA))
    p("s_lshr_b32 s83, s%d, 6" % sTok); p("s_mul_i32 s83, s83, 28"); p("s_mul_i32 s%d, s%d, 7" % (sT0, sW)); p("s_add_u32 s83, s83, s%d" % sT0)
    p("s_lshl_b32 s83, s83, 7"); p("s_add_u32 s83, s83, %d" % FL_FH)
    poll_issue(p, vFH, vFHA, 83, "fh")
def g2_h_start(p):
    DH = OPT["depth_h"]
    srd(p, HF2_, P_WS, SZ_HF, WS_HF)
    p.wait_tag("fh")
    poll_check(p, [vFH], [vFHA], [83])
    stamp(p, "g2_h_ready")
    for s in range(OPT.get("h_first", 2)):
        for t in h_loads(s): p(*t)
    if OPT["htouch"]:
        n = (NS - DH) * 16 // 8
        p("s_and_b32 s%d, s%d, 7" % (sT0, sR)); p("s_mul_i32 s%d, s%d, %d" % (sT0, sT0, n))
        p("v_add_u32 v10, s%d, v1" % sT0)
        p("v_lshrrev_b32 v11, 4, v10"); p("v_and_b32 v12, 7, v10"); p("v_lshlrev_b32 v12, 7, v12")
        p("v_lshl_add_u32 v12, v11, 10, v12")
        p("v_bfe_u32 v11, v10, 3, 1"); p("v_mul_u32_u24 v11, %d, v11" % (112 * 1024)); p("v_add_u32 v12, v12, v11")
        if n > 32: p("s_mov_b32 exec_hi, 0x%x" % ((1 << (n - 32)) - 1))
        else: p("s_mov_b64 exec, 0x%x" % ((1 << n) - 1))
        p("buffer_load_dword v59, v12, s[%d:%d], s%d offen sc1" % (HF2_, HF2_ + 3, sHo), "touch3")
        p("s_mov_b64 exec, -1")

vST2, vB2 = 16, 20
vY, vOWN = 144, 176
vXq, vZq, vRED, vOUT = 6, 7, 8, 9
def g2_main(p, name):
    DH = OPT["depth_h"]
    ACC = 64; FR = 32
    def ep_setup(p):
        srd(p, Q2_, P_Q, S * D * 2)
        srd(p, ZT2_, P_WS, SZ_ZT, WS_ZT); srd(p, ST2_, P_WS, SZ_ST, WS_ST); srd(p, B2_, P_B2, D * 2); srd(p, OUT_, P_OUT, S * D * 2)
    def ep_loads(p):
        p("v_lshrrev_b32 v10, 2, v1"); p("v_and_b32 v11, 3, v1")
        p("v_lshrrev_b32 v12, 2, v10"); p("v_xor_b32 v12, v12, v11")
        p("v_lshlrev_b32 v12, 4, v12"); p("v_lshl_add_u32 v13, v10, 10, v12")
        p("s_lshr_b32 s%d, s%d, 1" % (sT0, sW)); p("s_lshl_b32 s%d, s%d, 5" % (sT0, sT0)); p("s_add_u32 s%d, s%d, s%d" % (sT0, sT0, sTok))
        p("s_and_b32 s%d, s%d, 1" % (sT1, sW)); p("s_lshl_b32 s%d, s%d, 5" % (sT1, sT1)); p("s_add_u32 s%d, s%d, s%d" % (sT1, sT1, sCh))
        p("s_lshl_b32 s%d, s%d, 10" % (sXO, sT0)); p("s_lshl_b32 s%d, s%d, 1" % (sT2, sT1)); p("s_add_u32 s%d, s%d, s%d" % (sXO, sXO, sT2))
        p("s_lshl_b32 s%d, s%d, 11" % (sT3, sW))
        p("s_add_u32 m0, s%d, %d" % (sT3, XT))
        p("buffer_load_dwordx4 v13, s[%d:%d], s%d offen lds" % (Q2_, Q2_ + 3, sXO), "ep")
        p("s_add_u32 s7, s%d, 16384" % sXO)
        p("s_add_u32 m0, s%d, %d" % (sT3, XT + 1024))
        p("buffer_load_dwordx4 v13, s[%d:%d], s7 offen lds" % (Q2_, Q2_ + 3), "ep")
        p("s_lshl_b32 s%d, s%d, 4" % (sT0, sT0))
        p("v_and_b32 v14, 31, v1"); p("v_lshlrev_b32 v15, 4, v14")
        p("buffer_load_dwordx4 %s, v15, s[%d:%d], s%d offen sc1" % (vr(vST2, 4), ST2_, ST2_ + 3, sT0), "ep")
        p("v_lshrrev_b32 v15, 5, v1"); p("v_lshlrev_b32 v12, 5, v15")
        p("buffer_load_dwordx4 %s, v12, s[%d:%d], s%d offen" % (vr(vB2, 4), B2_, B2_ + 3, sT2), "ep")
        p("buffer_load_dwordx4 %s, v12, s[%d:%d], s%d offen offset:16" % (vr(vB2 + 4, 4), B2_, B2_ + 3, sT2), "ep")
        p("v_lshrrev_b32 v12, 2, v14"); p("v_and_b32 v12, 3, v12")
        p("v_lshlrev_b32 v15, 1, v15"); p("v_xor_b32 v15, v15, v12")
        p("v_lshlrev_b32 v15, 4, v15"); p("v_lshl_add_u32 v15, v14, 6, v15")
        p("v_add_u32 v15, s%d, v15" % sT3); p("v_add_u32 v%d, %d, v15" % (vXq, XT))
        p("v_lshrrev_b32 v15, 5, v1"); p("v_lshlrev_b32 v15, 5, v15"); p("v_lshl_add_u32 v%d, v14, 10, v15" % vOUT)
        p("v_add_u32 v%d, %d, v%d" % (vRED, RED, vH0))
    def z_loads(p):
        p("v_lshrrev_b32 v10, 2, v1"); p("v_and_b32 v11, 3, v1")
        p("v_lshlrev_b32 v12, 4, v11"); p("v_lshl_add_u32 v12, v10, 12, v12")
        p("s_and_b32 s%d, s%d, 1" % (sT1, sW)); p("s_lshl_b32 s%d, s%d, 5" % (sT1, sT1)); p("s_add_u32 s%d, s%d, s%d" % (sT1, sT1, sCh))
        p("s_lshl_b32 s%d, s%d, 12" % (sT0, sT1))
        p("s_lshr_b32 s%d, s%d, 1" % (sT1, sW)); p("s_lshl_b32 s%d, s%d, 5" % (sT1, sT1)); p("s_add_u32 s%d, s%d, s%d" % (sT1, sT1, sTok))
        p("s_lshl_b32 s%d, s%d, 1" % (sT1, sT1)); p("s_add_u32 s%d, s%d, s%d" % (sT0, sT0, sT1))
        p("buffer_load_dwordx4 %s, v12, s[%d:%d], s%d offen sc1" % (vr(128, 4), ZT2_, ZT2_ + 3, sT0), "z")
        p("s_add_u32 s%d, s%d, %d" % (sT0, sT0, 16 * 4096))
        p("buffer_load_dwordx4 %s, v12, s[%d:%d], s%d offen sc1" % (vr(132, 4), ZT2_, ZT2_ + 3, sT0), "z")
        p("v_lshrrev_b32 v12, 1, v10"); p("v_and_b32 v12, 3, v12"); p("v_xor_b32 v12, v12, v11")
        p("v_lshlrev_b32 v12, 4, v12"); p("v_lshl_add_u32 v12, v10, 6, v12")
        p("s_lshl_b32 s%d, s%d, 11" % (sT3, sW)); p("s_add_u32 s%d, s%d, %d" % (sT3, sT3, ZTT))
        p("v_add_u32 v%d, s%d, v12" % (vZq + 4, sT3))
        p("v_and_b32 v10, 15, v1"); p("v_lshrrev_b32 v12, 4, v1"); p("v_lshrrev_b32 v13, 1, v12"); p("v_and_b32 v12, 1, v12")
        p("v_lshrrev_b32 v14, 2, v10"); p("v_lshl_add_u32 v13, v13, 4, v14")
        p("v_and_b32 v15, 3, v10"); p("v_lshrrev_b32 v15, 1, v15"); p("v_lshl_add_u32 v15, v12, 1, v15")
        p("v_lshrrev_b32 v14, 1, v14"); p("v_xor_b32 v15, v15, v14")
        p("v_lshlrev_b32 v15, 4, v15"); p("v_lshl_add_u32 v15, v13, 6, v15")
        p("v_and_b32 v14, 1, v10"); p("v_lshl_add_u32 v15, v14, 3, v15")
        p("v_add_u32 v%d, s%d, v15" % (vZq, sT3))
        p("v_xor_b32 v5, 32, v%d" % vZq)
    def y_compute(p):
        XR_, ZR = 136, 164
        p("ds_write_b128 v%d, %s" % (vZq + 4, vr(128, 4))); p("ds_write_b128 v%d, %s offset:1024" % (vZq + 4, vr(132, 4)))
        p.wait_tag("ep")
        p("v_xor_b32 v10, 16, v%d" % vXq)
        p("ds_read_b128 %s, v%d" % (vr(XR_, 4), vXq)); p("ds_read_b128 %s, v10" % vr(XR_ + 4, 4))
        for m in range(4): p("ds_read_b64_tr_b16 %s, v%d offset:%d" % (vr(ZR + 2 * m, 2), vZq if m % 2 == 0 else 5, m * 256))
        mu, rs = vST2, vST2 + 1
        p("v_mul_f32 v%d, v%d, v%d" % (mu, mu, rs))
        for r_ in range(16):
            x, z, b = 48 + 3 * (r_ & 1), 49 + 3 * (r_ & 1), 50 + 3 * (r_ & 1)
            unpack(p, x, XR_ + (r_ >> 1), r_ & 1); unpack(p, z, ZR + (r_ >> 1), r_ & 1); unpack(p, b, vB2 + (r_ >> 1), r_ & 1)
            p("v_fma_f32 v%d, v%d, v%d, -v%d" % (vY + r_, x, rs, mu))
            p("v_add_f32 v%d, v%d, v%d" % (b, b, x))
            p("v_fma_f32 v%d, v%d, v%d, v%d" % (vY + r_, vY + r_, z, b))
    def reads(s): return [t for t, _ in tr_reads(s, FR + 8 * (s & 1), 'v')]
    def mfmas(s):
        slot = s % DH; out = []
        for cb in range(2):
            A = vr(FR + 8 * (s & 1) + 4 * cb, 4) if s < 12 else ar(STASH0 + 8 * (s - 12) + 4 * cb, 4)
            for tb in range(2):
                a = vr(ACC + 16 * (2 * tb + cb), 16)
                out.append("v_mfma_f32_32x32x16_bf16 %s, %s, %s, %s" % (a, A, ar(HB + 8 * slot + 4 * tb, 4), "0" if s == 0 else a))
        return out
    vFZ = 56
    def fz_issue(p):
        p("v_min_u32 v%d, 15, v1" % (vFZ + 2)); p("v_lshlrev_b32 v%d, 7, v%d" % (vFZ + 2, vFZ + 2))
        p("s_lshr_b32 s84, s%d, 6" % sCh); p("s_lshl_b32 s84, s84, 1"); p("s_and_b32 s83, s%d, 1" % sW); p("s_add_u32 s84, s84, s83")
        p("s_lshl_b32 s84, s84, 11"); p("s_add_u32 s84, s84, %d" % FL_FZ)
        poll_issue(p, vFZ, vFZ + 2, 84, "fz")
    def fz_check(p):
        p.wait_tag("fz"); poll_check(p, [vFZ], [vFZ + 2], [84])
    S_FZ, S_ZL, S_Y = OPT.get("s_fz", 14), OPT.get("s_zl", 20), OPT.get("s_y", 25)
    yl = rec(y_compute)
    third = (len(yl) + 2) // 3
    extras = {1: rec(ep_setup), 2: rec(ep_loads), S_FZ: rec(fz_issue), S_ZL: [(fz_check, None)] + rec(z_loads),
              S_Y: yl[:third], S_Y + 1: yl[third:2 * third], S_Y + 2: yl[2 * third:]}
    p.wait(lg=0)
    p("s_barrier")
    p.wait_tag("w0")
    for t in reads(0): p(t)
    for s in range(NS):
        if s + 1 < 12:
            p.wait_tag("w%d" % (s + 1))
            for t in reads(s + 1): p(t)
        if s in (0, 7, 13, 20): stamp(p, "g2_s%d" % s)
        mf = mfmas(s)
        hl = h_loads(s + DH) if s + DH < NS else []
        ex = extras.get(s, [])
        q4 = (len(ex) + 3) // 4
        for i in range(4):
            p(mf[i])
            if i == 2:
                for t in hl[0:1]: p(*t)
            if i == 3:
                for t in hl[1:3]: p(*t)
            emit(p, ex[i * q4:(i + 1) * q4])
        if s == DH:
            p.wait_tag("zst")
            z_publish(p, name)
    stamp(p, "g2_mma_done")

OUTPOL = ["", " sc1", " nt", " sc0 sc1"]
def g2_epilogue(p, name):
    ACC = 64
    st = side_path_begin(p)
    for w in range(4):
        if w < 3:
            p("s_cmp_eq_u32 s%d, %d" % (sW, w))
            p("s_cbranch_scc0 %s_rw%d" % (name, w + 1))
        side_path_end(p, st)
        p("s_nop 7"); p("s_nop 3")
        for rel in range(1, 4):
            q = w ^ rel
            for rq in range(4):
                p("ds_write_b128 v%d, %s offset:%d" % (vRED, vr(ACC + 16 * q + 4 * rq, 4), q * 12288 + (rel - 1) * 4096 + rq * 1024))
        for i in range(16): p("v_add_f32 v%d, v%d, v%d" % (vY + i, vY + i, ACC + 16 * w + i))
        if w < 3:
            p("s_branch %s_rwd" % name)
            p.label("%s_rw%d" % (name, w + 1))
    p.label("%s_rwd" % name)
    p("s_mul_i32 s%d, s%d, 12288" % (sT0, sW)); p("v_add_u32 v10, s%d, v%d" % (sT0, vRED))
    p.wait(lg=0)
    p("s_barrier")
    stamp(p, "g2_red_bar")
    for sl in range(3):
        for rq in range(4):
            p("ds_read_b128 %s, v10 offset:%d" % (vr(ACC + 16 * sl + 4 * rq, 4), sl * 4096 + rq * 1024))
    PK = 160
    for r_ in range(16):
        p("v_add_f32 v%d, v%d, v%d" % (ACC + r_, ACC + r_, ACC + 16 + r_))
        p("v_add_f32 v%d, v%d, v%d" % (vY + r_, vY + r_, ACC + 32 + r_))
    for r_ in range(16):
        p("v_add_f32 v%d, v%d, v%d" % (vY + r_, vY + r_, ACC + r_))
        if r_ & 1: p("v_cvt_pk_bf16_f32 v%d, v%d, v%d" % (PK + (r_ >> 1), vY + r_ - 1, vY + r_))
        if r_ == 7: p("buffer_store_dwordx4 %s, v%d, s[%d:%d], s%d offen%s" % (vr(PK, 4), vOUT, OUT_, OUT_ + 3, sXO, OUTPOL[OPT.get("outpol", 0)]))
    p("buffer_store_dwordx4 %s, v%d, s[%d:%d], s%d offen offset:16%s" % (vr(PK + 4, 4), vOUT, OUT_, OUT_ + 3, sXO, OUTPOL[OPT.get("outpol", 0)]))

def flat(l): return [x for y in l for x in y]
def gen(name):
    p = Prog()
    prof_reset()
    p("s_cmp_ge_u32 s2, 256")
    p("s_cbranch_scc1 %s_end" % name)
    stamp(p, "rt0", True); stamp(p, "t0")
    p("s_memrealtime s[90:91]")
    load_kernargs(p)
    p("v_and_b32 v1, 63, v0"); p("v_lshrrev_b32 v2, 6, v0")
    p("s_and_b32 s%d, s2, 7" % sJ); p("s_lshr_b32 s%d, s2, 3" % sR)
    p("v_readfirstlane_b32 s%d, v2" % sW)
    p("v_mov_b32 v253, 0")
    p("s_waitcnt lgkmcnt(0)")
    srd(p, 92, P_DBG, 256)
    p("s_lshl_b32 s%d, s2, 2" % sT0); p("s_add_u32 s78, s%d, s%d" % (sT0, sW))
    p("s_cmp_eq_u32 s78, %d" % (248 * 4))
    p("s_cbranch_scc0 %s_n0" % name)
    st = side_path_begin(p)
    p("v_mov_b32 v250, s90"); p("v_mov_b32 v251, 1")
    p("s_mov_b64 exec, 1")
    p("buffer_store_dwordx2 v[250:251], v253, s[92:95], 0 offen sc1")
    p("s_mov_b64 exec, -1")
    side_path_end(p, st)
    p.label("%s_n0" % name)
    stamp(p, "karg")
    KN = "parallel_sum__ssm_conv_h3__dense_activation_squared_relu__prompt_kernel"
    if OPT.get("codetouch", 0) & 1: code_touch(p, KN)
    p_loads(p)
    tile_indices(p)
    touches_g1(p)
    if OPT.get("codetouch", 0) & 2: code_touch(p, KN)
    after_loads = side_path_begin(p)
    p("s_cmp_ge_u32 s%d, 28" % sR)
    p("s_cbranch_scc1 %s_spare" % name)
    g1_dma_setup(p)
    for u in g1_dma_stage(0): emit(p, u)
    def common_srds(p):
        srd(p, FL_, P_WS, SZ_FLAG, WS_FLAG); srd(p, KVT_, P_WS, SZ_KVT, WS_KVT); srd(p, ST_, P_WS, SZ_ST, WS_ST); srd(p, CSP_, P_WS, SZ_CSP, WS_CSP)
    def b1_srd(p): srd(p, B1_, P_B1, F * 2)
    common_srds(p); b1_srd(p); g1_lds_setup(p); g2_setup(p)
    stamp(p, "issued")
    dm = g1_dma_stage(1) + g1_dma_stage(2)
    kv = rec(kv_compute)
    k = 0
    for i, it in enumerate(kv):
        emit(p, [it])
        while k < 16 and k * len(kv) < (i + 1) * 16: emit(p, dm[k]); k += 1
    while k < 16: emit(p, dm[k]); k += 1
    stamp(p, "kv_done")
    none = lambda p: None
    lg0 = lambda p: p.wait(lg=0)
    def pre4(p):
        nonce_check(p); fk_publish(p, "g1")
    def b1_load(p):
        p("v_and_b32 v14, 127, v0"); p("v_lshlrev_b32 v14, 1, v14"); p("s_lshl_b32 s84, s%d, 8" % sFT)
        p("buffer_load_ushort v%d, v14, s[%d:%d], s84 offen" % (vB1, B1_, B1_ + 3), "tab")
    def tab_done(p):
        p.wait_tag("tab"); tab_check(p); tab_partial(p)
    def tab_final(p):
        p("v_and_b32 v10, 127, v0"); p("v_lshlrev_b32 v10, 2, v10"); p("v_add_u32 v11, %d, v10" % CSQ_LDS); p("v_add_u32 v10, %d, v10" % TAB_LDS)
        for i in range(4): p("ds_read_b32 v%d, v11 offset:%d" % (20 + i, i * 512))
        p("v_lshlrev_b32 v%d, 16, v%d" % (vB1, vB1))
        p("v_add_f32 v20, v20, v21"); p("v_add_f32 v22, v22, v23"); p("v_add_f32 v20, v20, v22")
        p("ds_write_b32 v10, v20"); p("ds_write_b32 v10, v%d offset:512" % vB1)
    def fk_issue(p):
        fk_addr(p, True); poll_issue(p, vPK, vPA, 85, "fk")
    def fk_check(p):
        p.wait_tag("fk"); poll_check(p, [vPK], [vPA], [85])
    A = [w2_dma(12 + i, i) for i in range(12)]
    def late(p_items): return [p_items]
    fill = {0: (lg0, none, rec(kv_stores) + rec(nonce_issue)),
            1: (none, none, rec(w2_touch) if OPT["w2touch"] == 1 else []),
            2: (none, none, rec(conv_setup)),
            3: (none, none, rec(w2_touch) if OPT["w2touch"] == 3 else []),
            4: (lambda p: p.wait_tag("nonce"), pre4, rec(code_touch, KN) if OPT.get("codetouch", 0) & 4 else []),
            5: (none, none, rec(tab_loads) + rec(b1_load) + flat(A[0:4])),
            6: (none, none, rec(fk_issue) + flat(A[4:6]) + [(tab_done, None)] + flat(A[6:8])),
            7: (lg0, none, rec(tab_final) + flat(A[8:10]) + [(fk_check, None)] + rec(conv_loads_regs) + flat(A[10:12]))}
    if OPT.get("plan", 1) == 2:
        ts = OPT.get("tstage", 5)
        fill[5] = (none, none, rec(tab_loads) + rec(b1_load) + rec(fk_issue))
        fill[6] = (none, none, [(tab_done, None)])
        fill[7] = (lg0, none, rec(tab_final) + [(fk_check, None)] + rec(conv_loads_regs))
        a_, b_, c_ = fill[ts]
        fill[ts] = (a_, b_, c_, rec(w2_touch))
    elif OPT["w2touch"] == 4:
        for st_ in range(7):
            a_, b_, c_ = fill[st_]
            fill[st_] = (a_, b_, c_, rec(w2_touch_part, st_))
    if OPT["w2touch"] == 5 and OPT.get("plan", 1) == 1:
        for st_, (k_, n_) in enumerate(((0, 32), (2, 32), (4, 48))):
            a_, b_, c_ = fill[st_]
            fill[st_] = (a_, b_, c_, rec(w2_touch_part, k_, n_))
    g1_main(p, fill)
    stamp(p, "g1_mfma_end")
    p.wait(lg=0)
    p("s_barrier")
    conv_loads_lds(p)
    stamp(p, "g1_mma_done")
    g1_epilogue(p, flat(A) if OPT.get('plan', 1) == 2 else [])
    p.wait_tag("cv")
    p.label("%s_cfill" % name)
    stamp(p, "g1_epi_done")
    g2_setup_tr(p)
    conv_fill(p)
    def c0(p): p.wait_tag("w17")
    def c1(p):
        p.wait_tag("hst"); p.wait_tag("w23")
        p("s_cmp_ge_u32 s%d, 28" % sR)
        p("s_cbranch_scc1 %s_nohp" % name)
        st = side_path_begin(p)
        h_publish(p)
        side_path_end(p, st)
        p.label("%s_nohp" % name)
        p.wait(lg=0)
        stamp(p, "h_pub")
    def c2(p): p.wait(lg=0)
    def c3(p): p.wait(lg=0); p.wait_tag("w27")
    f0 = flat([stash_reads(12 + i, i) for i in range(6)])
    f1 = interleave(flat([stash_reads(18 + i, 6 + i) for i in range(6)]), flat([w2_dma(24 + i, i) for i in range(4)] + [w2_dma(4 + i, 4 + i) for i in range(2)]), 0.5)
    f2 = flat([w2_dma(6 + i, 6 + i) for i in range(6)])
    f3 = flat([stash_reads(24 + i, i) for i in range(4)]) + rec(fh_poll_issue)
    conv_main(p, [(c0, f0), (c1, f1), (c2, f2), (c3, f3)])
    p.wait(lg=0)
    for u in flat([w2_dma(i, i) for i in range(4)]): emit(p, u)
    g2_h_start(p)
    conv_finish(p, name, [t for s_ in range(OPT.get("h_first", 2), OPT["depth_h"]) for t in h_loads(s_)])
    stamp(p, "conv_done")
    z_stores(p)
    g2_main(p, name)
    g2_epilogue(p, name)
    stamp(p, "end")
    if common.PROF: p.wait(vm=0)
    stamp(p, "end_acked"); stamp(p, "rt1", True)
    prof_flush(p, sW)
    p("s_endpgm")
    p.label("%s_spare" % name)
    side_path_end(p, after_loads)
    sp_loads(p)
    common_srds(p)
    nonce_issue(p)
    sp_stats(p)
    sp_cs(p)
    p.wait_tag("nonce"); nonce_check(p)
    sp_stats_store(p)
    p.wait(lg=0)
    p("s_barrier")
    sp_cs_store(p)
    kv_compute(p)
    p.wait(lg=0)
    p("s_barrier")
    kv_stores(p)
    p.wait_tag("kst")
    p("s_barrier")
    fk_publish(p, "sp")
    g2_setup(p)
    if OPT["w2touch"]: w2_touch(p)
    for u in flat(A): emit(p, u)
    conv_setup(p)
    fk_addr(p, True)
    poll_issue(p, vPK, vPA, 85, "poll")
    p.wait(vm=0, lg=0)
    poll_check(p, [vPK], [vPA], [85])
    conv_loads_regs(p)
    conv_loads_lds(p)
    p.wait(vm=0)
    p("s_branch %s_cfill" % name)
    p.label("%s_end" % name)
    p("s_endpgm")
    return p.text(), 512, 256
```

```python
import sys
from common import *
import k0, k1, k2
NAME = "parallel_sum__ssm_conv_h3__dense_activation_squared_relu__prompt"
def header():
    ref = open('cdna_kernels/%s.s.ref' % NAME).read().split('\n')
    out = []
    for l in ref:
        if l.startswith('; @launch') or l.startswith('; Override') or l.startswith('; grid='): break
        out.append(l)
    return '\n'.join(out) + '\n'
def gen_empty(name):
    return '  s_endpgm\n', 8, 8
def build_v1(extra=0):
    ks = [("k0_kernel", k0.gen_k0, 16384 + 512), ("k1_kernel", k1.gen_k1, 133120), ("k2_kernel", k2.gen_k2, 155648)]
    for i in range(extra): ks.append(('e%d_kernel' % i, gen_empty, 0))
    txt = header()
    for n, g, lds in ks: txt += "; @launch kernel=%s grid=(256,1,1) block=(256,1,1) lds=%d\n" % (n, lds)
    txt += '.amdgcn_target "amdgcn-amd-amdhsa--gfx950"\n.text\n'
    descs = ''
    for n, g, lds in ks:
        body, vg, acc = g(n)
        txt += kernel_text(n, body)
        descs += kernel_desc(n, vg, acc)
    txt += '.section .rodata,"a"\n' + descs
    return txt
def build_fused():
    import os
    n = NAME + "_kernel"
    if os.environ.get('VER', '7') == '7':
        import f7
        body, vg, acc = f7.gen('fz')
    elif os.environ.get('VER', '7') == '6':
        import f6
        body, vg, acc = f6.gen('fz')
    elif os.environ.get('VER', '7') == '5':
        import f5
        body, vg, acc = f5.gen('fz')
    elif os.environ.get('VER', '7') == '4':
        import f4
        body, vg, acc = f4.gen("fz")
    else:
        import fused
        body, vg, acc = fused.gen_fused("fz")
    txt = header() + "; @launch grid=(256,1,1) block=(256,1,1) lds=163840\n"
    txt += '.amdgcn_target "amdgcn-amd-amdhsa--gfx950"\n.text\n' + kernel_text(n, body)
    txt += '.section .rodata,"a"\n' + kernel_desc(n, vg, acc)
    return txt
if __name__ == '__main__':
    import common
    import os
    if os.environ.get('OPT'):
        import fused, f4, f5, f6, f7
        for kv in os.environ['OPT'].split(','):
            k, v = kv.split('='); fused.OPT[k] = int(v); f4.OPT[k] = int(v); f5.OPT[k] = int(v); f6.OPT[k] = int(v); f7.OPT[k] = int(v)
    if '--profdbg' in sys.argv:
        common.PROF = True; common.PROF_DBG = 1; sys.argv.remove('--profdbg')
        common.PROF_ONLY = ['rt0', 't0', 'issued', 'p_done', 'g1_st0', 'g1_mma_done', 'g1_epi_done', 'conv_done', 'g2_first', 'g2_mma_done', 'end_acked', 'rt1']
    if os.environ.get('PROF_ONLY_ENV'): common.PROF_ONLY = os.environ['PROF_ONLY_ENV'].split(',')
    if '--rt' in sys.argv: common.PROF_RT = True; sys.argv.remove('--rt')
    if '--prof' in sys.argv: common.PROF = True; sys.argv.remove('--prof')
    out = sys.argv[1] if len(sys.argv) > 1 else 'cdna_kernels/%s.s' % NAME
    extra = int(__import__('os').environ.get('EXTRA', '0'))
    open(out, 'w').write(build_v1(extra) if 'V1' in __import__('os').environ else build_fused())
    if common.PROF:
        import json; json.dump(common._stamp_names, open(out + '.names', 'w'))
    print("wrote", out)
```

```python
from common import *
import common
from fused import (sN, sJ, sR, sW, sT0, sT1, sT2, sT3, FL_, unpack, flag_store, poll_issue, poll_check,
                   side_path_begin, side_path_end, nonce_issue, nonce_check, _uid)
OPT = dict(touch=0, htouch=0, nt=0, ntkv=0, depth_h=6, w2touch=5, s_fz=17, s_zl=21)
def nt(): return " nt" if OPT["nt"] else ""
def ntkv(): return " nt" if (OPT["nt"] or OPT["ntkv"]) else ""

class Rec:
    def __init__(self): self.items = []; self.grp = None
    def __call__(self, txt, tag=None): (self.grp if self.grp is not None else self.items).append((txt, tag))
    def call(self, fn): (self.grp if self.grp is not None else self.items).append((fn, None))
    def wait(self, vm=None, lg=None): self.call(lambda p: p.wait(vm, lg))
    def wait_tag(self, tag): self.call(lambda p: p.wait_tag(tag))
    def begin(self): self.grp = []
    def end(self): self.items.append(self.grp); self.grp = None
def begin(p):
    if isinstance(p, Rec): p.begin()
def end(p):
    if isinstance(p, Rec): p.end()
def emit(p, items):
    for it in items:
        if isinstance(it, list): emit(p, it)
        elif callable(it[0]): it[0](p)
        else: p(it[0], it[1])
_srd0 = srd
def srd(p, dst, ptr, size, off=0):
    begin(p); _srd0(p, dst, ptr, size, off); end(p)
def rec(fn, *a):
    r = Rec(); fn(r, *a); return r.items

P_LDS, SK_LDS = 131072, 139264
TAB_LDS, CSQ_LDS = 157440, 158464
CV0 = 98304
RB_LDS = CV0 + 256 + 2 * 21248
XT, ZTT, RED = 98304, 106496, 114688
sROW, sRB, sFT = 72, 73, 74
sXo, sWo, sM = 80, 81, 82
sCH, sC2, sCB = 86, 87, 88
sTok, sCh, sHo = 89, 90, 91
sWA, sM2, sXO = 16, 17, 6
K_, V_, SK_, GQ_, GW1_ = 40, 44, 48, 52, 56
KVT_, ST_, CSP_ = 60, 64, 68

KR, VR, SKR, XR, CR = 16, 36, 44, 128, 136
vC, vRR = 3, 4
def p_loads(p):
    srd(p, K_, P_K, S * D * 2); srd(p, V_, P_V, S * D * 2); srd(p, SK_, P_SK, D * 8)
    vA = 5
    p("s_lshl_b32 s%d, s%d, 9" % (sT1, sJ))
    p("v_and_b32 v11, 31, v1"); p("v_lshlrev_b32 v11, 4, v11")
    p("buffer_load_dwordx4 %s, v11, s[%d:%d], s%d offen" % (vr(SKR, 4), SK_, SK_ + 3, sT1))
    p("v_and_b32 v%d, 7, v1" % vC); p("v_lshrrev_b32 v%d, 3, v1" % vRR)
    p("s_lshl_b32 s%d, s%d, 6" % (sT0, sR)); p("s_lshl_b32 s%d, s%d, 4" % (sT1, sW))
    p("s_add_u32 s%d, s%d, s%d" % (sT0, sT0, sT1)); p("s_lshl_b32 s%d, s%d, 10" % (sT0, sT0))
    p("s_lshl_b32 s%d, s%d, 7" % (sT1, sJ)); p("s_add_u32 s%d, s%d, s%d" % (sT0, sT0, sT1))
    p("v_lshlrev_b32 v%d, 11, v%d" % (vA, vRR)); p("v_lshl_add_u32 v%d, v%d, 4, v%d" % (vA, vC, vA))
    p("v_add_u32 v%d, s%d, v%d" % (vA, sT0, vA))
    for i in range(5): p("v_add_u32 v%d, %d, v%d" % (6 + i, (i - 3) * 1024, vA))
    for i in range(5): p("buffer_load_dwordx4 %s, v%d, s[%d:%d], 0 offen%s" % (vr(KR + 4 * i, 4), 6 + i, K_, K_ + 3, ntkv()))
    p("buffer_load_dwordx4 %s, v%d, s[%d:%d], 0 offen%s" % (vr(VR, 4), vA, V_, V_ + 3, ntkv()))
    p("buffer_load_dwordx4 %s, v%d, s[%d:%d], 0 offen offset:1024%s" % (vr(VR + 4, 4), vA, V_, V_ + 3, ntkv()))
def tile_indices(p):
    srd(p, GQ_, P_Q, S * D * 2); srd(p, GW1_, P_W1, D * F * 2)
    p("s_mul_i32 s%d, s%d, 37" % (sT0, sR)); p("s_lshr_b32 s%d, s%d, 8" % (sT0, sT0))
    p("s_mul_i32 s%d, s%d, 7" % (sT1, sT0)); p("s_sub_u32 s%d, s%d, s%d" % (sT1, sR, sT1))
    p("s_lshr_b32 s%d, s%d, 1" % (sT2, sJ)); p("s_lshl_b32 s%d, s%d, 2" % (sT2, sT2))
    p("s_add_u32 s%d, s%d, s%d" % (sRB, sT2, sT0))
    p("s_and_b32 s%d, s%d, 1" % (sT2, sJ)); p("s_mul_i32 s%d, s%d, 7" % (sT2, sT2))
    p("s_add_u32 s%d, s%d, s%d" % (sFT, sT2, sT1))

def touches_g1(p):
    if OPT["touch"] != 1: return
    p("s_lshl_b32 s%d, s%d, 2" % (sT2, sR)); p("s_add_u32 s%d, s%d, s%d" % (sT2, sT2, sW))
    p("v_lshlrev_b32 v9, 7, v1")
    p("s_lshr_b32 s%d, s%d, 1" % (sT0, sJ)); p("s_lshl_b32 s%d, s%d, 19" % (sT0, sT0))
    p("s_lshl_b32 s%d, s%d, 12" % (sT1, sT2)); p("s_add_u32 s%d, s%d, s%d" % (sT0, sT0, sT1))
    p("s_mov_b32 exec_hi, 0")
    p("buffer_load_dword v188, v9, s[%d:%d], s%d offen%s" % (GQ_, GQ_ + 3, sT0, nt()), "touch")
    p("s_mov_b64 exec, -1")
    p("v_mul_u32_u24 v10, 4682, v1"); p("v_lshrrev_b32 v10, 16, v10")
    p("v_mul_u32_u24 v11, 14, v10"); p("v_sub_u32 v11, v1, v11")
    p("v_mul_u32_u24 v10, 3584, v10"); p("v_lshl_add_u32 v10, v11, 7, v10")
    p("s_mul_i32 s%d, s%d, %d" % (sT0, sT2, 4 * 3584)); p("s_and_b32 s%d, s%d, 1" % (sT1, sJ))
    p("s_mul_i32 s%d, s%d, 1792" % (sT1, sT1)); p("s_add_u32 s%d, s%d, s%d" % (sT0, sT0, sT1))
    p("s_mov_b32 exec_hi, 0x00ffffff")
    p("buffer_load_dword v189, v10, s[%d:%d], s%d offen%s" % (GW1_, GW1_ + 3, sT0, nt()), "touch")
    p("s_mov_b64 exec, -1")

def touches_g1_late(p):
    p("s_lshl_b32 s83, s%d, 2" % sR); p("s_add_u32 s83, s83, s%d" % sW)
    p("v_mul_u32_u24 v8, 13108, v1"); p("v_lshrrev_b32 v8, 16, v8")
    p("v_mul_u32_u24 v9, 5, v8"); p("v_sub_u32 v9, v1, v9"); p("v_add_u32 v9, 3, v9")
    p("v_lshlrev_b32 v8, 10, v8"); p("v_lshl_add_u32 v8, v9, 7, v8")
    p("s_lshr_b32 s84, s%d, 1" % sJ); p("s_lshl_b32 s84, s84, 19"); p("s_lshl_b32 s75, s83, 12"); p("s_add_u32 s84, s84, s75")
    begin(p)
    p("s_mov_b64 exec, 0xfffff")
    p("buffer_load_dword v188, v8, s[%d:%d], s84 offen" % (GQ_, GQ_ + 3), "touch")
    p("s_mov_b64 exec, -1")
    end(p)
    p("s_mul_i32 s83, s83, 35"); p("v_add_u32 v8, s83, v1")
    p("v_mul_u32_u24 v9, 4682, v8"); p("v_lshrrev_b32 v9, 16, v9")
    p("v_mul_u32_u24 v10, 14, v9"); p("v_sub_u32 v10, v8, v10")
    p("v_add_u32 v9, 192, v9"); p("v_mul_u32_u24 v9, 3584, v9"); p("v_lshl_add_u32 v9, v10, 7, v9")
    p("s_and_b32 s84, s%d, 1" % sJ); p("s_mul_i32 s84, s84, 1792")
    begin(p)
    p("s_mov_b32 exec_hi, 0x7")
    p("buffer_load_dword v189, v9, s[%d:%d], s84 offen" % (GW1_, GW1_ + 3), "touch")
    p("s_mov_b64 exec, -1")
    end(p)
assert all((L * 4682) >> 16 == L // 14 for L in range(0, 1200)), "check"
def w2_touch(p):
    p("v_lshlrev_b32 v9, 7, v1")
    p("s_lshl_b32 s83, s%d, 2" % sR); p("s_add_u32 s83, s83, s%d" % sW); p("s_mul_i32 s83, s83, 14336")
    p("buffer_load_dword v190, v9, s[8:11], s83 offen", "touch2")
    p("s_add_u32 s83, s83, 8192")
    begin(p)
    p("s_mov_b32 exec_hi, 0xffff")
    p("buffer_load_dword v191, v9, s[8:11], s83 offen", "touch2")
    p("s_mov_b64 exec, -1")
    end(p)

def w2_touch_part(p, k, n=16):
    p("v_lshlrev_b32 v9, 7, v1")
    p("s_lshl_b32 s83, s%d, 2" % sR); p("s_add_u32 s83, s83, s%d" % sW); p("s_mul_i32 s83, s83, 14336")
    if k: p("s_add_u32 s83, s83, %d" % (k * 16 * 128))
    begin(p)
    p("s_mov_b64 exec, 0x%x" % ((1 << n) - 1)) if n <= 16 else (p("s_mov_b32 exec_lo, 0x%x" % (((1 << min(n, 32)) - 1) & 0xffffffff)), p("s_mov_b32 exec_hi, 0x%x" % ((1 << max(n - 32, 0)) - 1)))
    p("buffer_load_dword v%d, v9, s[8:11], s83 offen%s" % ((186, 187, 190, 191)[k & 3], " nt" if OPT.get("ntw2") else ""), "touch2")
    p("s_mov_b64 exec, -1")
    end(p)
def w2_touch_a(p, part, nparts):
    n = 48 // nparts
    p("s_lshl_b32 s83, s%d, 2" % sR); p("s_add_u32 s83, s83, s%d" % sW)
    p("s_lshr_b32 s84, s83, 5"); p("s_mul_i32 s84, s84, 448"); p("s_and_b32 s83, s83, 31"); p("s_mul_i32 s83, s83, 6")
    p("s_add_u32 s83, s83, s84"); p("s_add_u32 s83, s83, 192"); p("s_lshl_b32 s83, s83, 10")
    if part: p("s_add_u32 s83, s83, %d" % (part * n * 128))
    p("v_lshlrev_b32 v9, 7, v1")
    begin(p)
    if n <= 32: p("s_mov_b64 exec, 0x%x" % ((1 << n) - 1)) if n <= 16 else (p("s_mov_b32 exec_lo, 0x%x" % ((1 << n) - 1)), p("s_mov_b32 exec_hi, 0"))
    else: p("s_mov_b32 exec_hi, 0x%x" % ((1 << (n - 32)) - 1))
    p("buffer_load_dword v%d, v9, s[8:11], s83 offen" % (186 + (part & 1)), "touch2")
    p("s_mov_b64 exec, -1")
    end(p)
def w2_touch_b(p):
    p("s_lshl_b32 s83, s%d, 2" % sR); p("s_add_u32 s83, s83, s%d" % sW)
    p("s_lshr_b32 s84, s83, 5"); p("s_mul_i32 s84, s84, 448"); p("s_and_b32 s83, s83, 31")
    begin(p); p("s_cmp_ge_u32 s83, 24"); p("s_cselect_b32 s75, 192, 0"); end(p)
    p("s_lshl_b32 s83, s83, 3"); p("s_add_u32 s83, s83, s75"); p("s_add_u32 s83, s83, s84"); p("s_lshl_b32 s83, s83, 10")
    p("v_lshlrev_b32 v9, 7, v1")
    p("buffer_load_dword v190, v9, s[8:11], s83 offen", "touch2")
def code_touch(p, kname):
    _uid[0] += 1; u = _uid[0]
    begin(p)
    p("s_getpc_b64 s[76:77]")
    p("Lct%d:" % u)
    p("s_sub_u32 s76, s76, Lct%d-%s" % (u, kname))
    p("s_subb_u32 s77, s77, 0")
    end(p)
    p("s_lshl_b32 s83, s%d, 2" % sR); p("s_add_u32 s83, s83, s%d" % sW)
    p("v_lshlrev_b32 v8, 7, v1"); p("v_add_u32 v8, s83, v8")
    p("v_lshlrev_b32 v8, 7, v8")
    p("v_min_u32 v8, %s_end-%s-4, v8" % (kname_end[0], kname))
    begin(p)
    p("v_mov_b32 v9, s77"); p("v_add_co_u32 v8, vcc, s76, v8"); p("s_nop 1"); p("v_addc_co_u32 v9, vcc, 0, v9, vcc")
    p("s_mov_b64 exec, 7")
    p("global_load_dword v186, v[8:9], off", "codet")
    p("s_mov_b64 exec, -1")
    end(p)
kname_end = ["fz"]

vKL, vKG0, vKG1 = 24, 25, 26
def kv_compute(p, RES=100, A=108):
    p("s_lshl_b32 s%d, s%d, 9" % (sT0, sW)); p("s_add_u32 s%d, s%d, %d" % (sT0, sT0, SK_LDS))
    p("v_and_b32 v11, 31, v1"); p("v_lshlrev_b32 v11, 4, v11"); p("v_add_u32 v11, s%d, v11" % sT0)
    p("v_lshlrev_b32 v2, 6, v%d" % vC); p("v_add_u32 v2, s%d, v2" % sT0)
    p("ds_write_b128 v11, %s" % vr(SKR, 4))
    p("s_lshl_b32 s%d, s%d, 3" % (sT0, sW)); p("s_sub_u32 s%d, 31, s%d" % (sT0, sT0))
    p("v_sub_u32 v15, s%d, v%d" % (sT0, vRR))
    p("v_lshrrev_b32 v6, 2, v15"); p("v_xor_b32 v6, v6, v%d" % vC)
    p("v_and_b32 v15, 3, v15"); p("v_lshlrev_b32 v15, 2, v15")
    p("v_lshl_add_u32 v15, v6, 4, v15"); p("v_lshl_add_u32 v15, v%d, 10, v15" % vC)
    p("v_add_u32 v15, %d, v15" % P_LDS)
    p.wait(lg=0)
    for i in range(4): p("ds_read_b128 %s, v2 offset:%d" % (vr(SKR + 4 * i, 4), 16 * i))
    p("s_mov_b32 s76, 0x05040100"); p("s_mov_b32 s77, 0x07060302")
    for e in range(8):
        dw, hf = e >> 1, e & 1
        sel = 76 + hf
        K = lambda i: KR + 4 * i + dw
        a = A + 8 * (e & 1)
        p("v_perm_b32 v%d, v%d, v%d, s%d" % (a + 0, K(2), K(3), sel))
        p("v_perm_b32 v%d, v%d, v%d, s%d" % (a + 1, K(0), K(1), sel))
        p("v_perm_b32 v%d, v%d, v%d, s%d" % (a + 2, K(3), K(4), sel))
        p("v_perm_b32 v%d, v%d, v%d, s%d" % (a + 3, K(1), K(2), sel))
        p("v_dot2_f32_bf16 v%d, v%d, v%d, 0" % (a + 4, a + 0, SKR + 2 * e))
        p("v_dot2_f32_bf16 v%d, v%d, v%d, 0" % (a + 5, a + 2, SKR + 2 * e))
        unpack(p, a + 6, VR + dw, hf); unpack(p, a + 7, VR + 4 + dw, hf)
        p("v_dot2_f32_bf16 v%d, v%d, v%d, v%d" % (a + 4, a + 1, SKR + 2 * e + 1, a + 4))
        p("v_dot2_f32_bf16 v%d, v%d, v%d, v%d" % (a + 5, a + 3, SKR + 2 * e + 1, a + 5))
        if e > 0:
            b = A + 8 * ((e - 1) & 1)
            p("v_mul_f32 v%d, v%d, v%d" % (b + 4, b + 4, b + 6)); p("v_mul_f32 v%d, v%d, v%d" % (b + 5, b + 5, b + 7))
            p("v_cvt_pk_bf16_f32 v%d, v%d, v%d" % (RES + e - 1, b + 5, b + 4))
            p("ds_write_b32 v15, v%d offset:%d" % (RES + e - 1, (e - 1) * 128))
    b = A + 8
    p("s_lshl_b32 s%d, s%d, 4" % (sT0, sW)); p("v_add_u32 v6, s%d, v%d" % (sT0, vRR))
    p("v_mul_f32 v%d, v%d, v%d" % (b + 4, b + 4, b + 6)); p("v_mul_f32 v%d, v%d, v%d" % (b + 5, b + 5, b + 7))
    p("v_cvt_pk_bf16_f32 v%d, v%d, v%d" % (RES + 7, b + 5, b + 4))
    p("ds_write_b32 v15, v%d offset:%d" % (RES + 7, 7 * 128))
    p("v_lshlrev_b32 v7, 7, v6"); p("v_lshl_add_u32 v7, v%d, 4, v7" % vC); p("v_add_u32 v%d, %d, v7" % (vKL, P_LDS))
    p("v_lshlrev_b32 v8, 12, v6"); p("s_lshl_b32 s%d, s%d, 1" % (sT1, sW))
    p("v_xor_b32 v9, s%d, v%d" % (sT1, vC)); p("v_lshl_add_u32 v%d, v9, 4, v8" % vKG0)
    p("s_add_u32 s%d, s%d, 1" % (sT1, sT1))
    p("v_xor_b32 v10, s%d, v%d" % (sT1, vC)); p("v_lshl_add_u32 v10, v10, 4, v8"); p("v_add_u32 v%d, 0x8000, v10" % vKG1)
def kv_stores(p):
    p("ds_read_b128 v[16:19], v%d" % vKL); p("ds_read_b128 v[20:23], v%d offset:1024" % vKL)
    p("s_lshl_b32 s83, s%d, 18" % sJ); p("s_lshl_b32 s84, s%d, 7" % sR)
    p("s_sub_u32 s83, s83, s84"); p("s_add_u32 s83, s83, 3968")
    p("buffer_store_dwordx4 v[16:19], v%d, s[%d:%d], s83 offen sc1" % (vKG0, KVT_, KVT_ + 3), "kst")
    p("buffer_store_dwordx4 v[20:23], v%d, s[%d:%d], s83 offen sc1" % (vKG1, KVT_, KVT_ + 3), "kst")

SX, SC_ = 128, 64
def sp_loads(p):
    p("s_sub_u32 s72, s%d, 28" % sR)
    p("s_lshr_b32 s%d, s%d, 1" % (sT0, sJ)); p("s_lshl_b32 s%d, s%d, 9" % (sT0, sT0))
    p("s_and_b32 s%d, s%d, 1" % (sT1, sJ)); p("s_lshl_b32 s%d, s%d, 2" % (sT1, sT1)); p("s_add_u32 s%d, s%d, s72" % (sT1, sT1))
    p("s_lshl_b32 s%d, s%d, 6" % (sT1, sT1)); p("s_add_u32 s%d, s%d, s%d" % (sT0, sT0, sT1))
    p("s_lshl_b32 s%d, s%d, 4" % (sT1, sW)); p("s_add_u32 s73, s%d, s%d" % (sT0, sT1))
    p("s_lshl_b32 s%d, s73, 10" % sT0)
    p("v_lshrrev_b32 v10, 3, v1"); p("v_and_b32 v11, 7, v1"); p("v_lshlrev_b32 v11, 4, v11"); p("v_lshl_add_u32 v10, v10, 10, v11")
    for g in range(2):
        for i in range(8):
            p("buffer_load_dwordx4 %s, v10, s[%d:%d], s%d offen offset:%d" % (vr(SX + 32 * g + 4 * i, 4), GQ_, GQ_ + 3, sT0, i * 128), "sx")
        if g == 0: p("s_add_u32 s%d, s%d, 8192" % (sT0, sT0))
    p("s_lshr_b32 s74, s%d, 1" % sJ); p("s_lshl_b32 s74, s74, 2"); p("s_add_u32 s74, s74, s72")
    p("s_lshl_b32 s%d, s74, 5" % sT0); p("s_lshl_b32 s%d, s%d, 3" % (sT1, sW)); p("s_add_u32 s%d, s%d, s%d" % (sT0, sT0, sT1))
    p("s_mul_i32 s%d, s%d, 3584" % (sT0, sT0)); p("s_and_b32 s%d, s%d, 1" % (sT1, sJ)); p("s_mul_i32 s%d, s%d, 1792" % (sT1, sT1))
    p("s_add_u32 s%d, s%d, s%d" % (sT0, sT0, sT1))
    p("v_lshlrev_b32 v12, 4, v1")
    for i in range(8):
        p("buffer_load_dwordx4 %s, v12, s[%d:%d], s%d offen" % (vr(SC_ + 8 * i, 4), GW1_, GW1_ + 3, sT0), "sc")
        p("buffer_load_dwordx4 %s, v12, s[%d:%d], s%d offen offset:1024" % (vr(SC_ + 8 * i + 4, 4), GW1_, GW1_ + 3, sT0), "sc")
        if i < 7: p("s_add_u32 s%d, s%d, 3584" % (sT0, sT0))
def sp_stats(p):
    T = 200
    p("s_mov_b32 s75, 0x3f803f80")
    for g in range(2):
        for h in range(2): p("v_mov_b32 v%d, 0" % (T + 4 * g + h)); p("v_mov_b32 v%d, 0" % (T + 8 + 2 * g + h))
    for i in range(8):
        for g in range(2):
            for d in range(4):
                r_ = SX + 32 * g + 4 * i + d
                aS, aQ = (T + 4 * g, T + 4 * g + 1) if d & 1 else (T + 8 + 2 * g, T + 9 + 2 * g)
                p("v_dot2_f32_bf16 v%d, v%d, s75, v%d" % (aS, r_, aS)); p("v_dot2_f32_bf16 v%d, v%d, v%d, v%d" % (aQ, r_, r_, aQ))
    for g in range(2):
        p("v_add_f32 v%d, v%d, v%d" % (T + 4 * g, T + 4 * g, T + 8 + 2 * g)); p("v_add_f32 v%d, v%d, v%d" % (T + 4 * g + 1, T + 4 * g + 1, T + 9 + 2 * g))
    for ctrl in ("quad_perm:[1,0,3,2] row_mask:0xf", "quad_perm:[2,3,0,1] row_mask:0xf", "row_half_mirror row_mask:0xf"):
        for q in (T, T + 1, T + 4, T + 5):
            p("v_add_f32_dpp v%d, v%d, v%d %s bank_mask:0xf" % (q, q, q, ctrl))
    for g in range(2):
        sS, sQ = T + 4 * g, T + 4 * g + 1
        p("v_mul_f32 v%d, 0x3b000000, v%d" % (sS, sS)); p("v_mul_f32 v%d, 0x3b000000, v%d" % (sQ, sQ))
    for g in range(2): p("v_fma_f32 v%d, -v%d, v%d, v%d" % (T + 4 * g + 1, T + 4 * g, T + 4 * g, T + 4 * g + 1))
    for g in range(2): p("v_max_f32 v%d, 0, v%d" % (T + 4 * g + 1, T + 4 * g + 1))
    for g in range(2): p("v_add_f32 v%d, 0x3727c5ac, v%d" % (T + 4 * g + 1, T + 4 * g + 1))
    for g in range(2): p("v_rsq_f32 v%d, v%d" % (T + 4 * g + 1, T + 4 * g + 1))
def sp_stats_store(p):
    T = 200
    for q in (T + 2, T + 3, T + 6, T + 7): p("v_mov_b32 v%d, s%d" % (q, sN))
    p("v_lshrrev_b32 v10, 3, v1"); p("v_lshlrev_b32 v10, 4, v10")
    p("s_lshl_b32 s%d, s73, 4" % sT0)
    p("s_mov_b32 exec_lo, 0x01010101"); p("s_mov_b32 exec_hi, 0x01010101")
    p("buffer_store_dwordx4 %s, v10, s[%d:%d], s%d offen sc1" % (vr(T, 4), ST_, ST_ + 3, sT0), "pst")
    p("buffer_store_dwordx4 %s, v10, s[%d:%d], s%d offen offset:128 sc1" % (vr(T + 4, 4), ST_, ST_ + 3, sT0), "pst")
    p("s_mov_b64 exec, -1")
SPC_LDS = 0
def sp_cs(p):
    A = 216
    p("s_mov_b32 s76, 0x00003f80"); p("s_mov_b32 s77, 0x3f800000")
    for i in range(8):
        for part in range(2):
            for d in range(4):
                r_ = SC_ + 8 * i + 4 * part + d; a = A + 8 * part + 2 * d
                p("v_dot2_f32_bf16 v%d, v%d, s76, %s" % (a, r_, "0" if i == 0 else "v%d" % a))
                p("v_dot2_f32_bf16 v%d, v%d, s77, %s" % (a + 1, r_, "0" if i == 0 else "v%d" % (a + 1)))
    p("v_lshlrev_b32 v10, 5, v1"); p("s_lshl_b32 s%d, s%d, 12" % (sT0, sW)); p("v_add_u32 v10, s%d, v10" % sT0)
    for part in range(2):
        p("ds_write_b128 v10, %s offset:%d" % (vr(A + 8 * part, 4), SPC_LDS + part * 2048))
        p("ds_write_b128 v10, %s offset:%d" % (vr(A + 8 * part + 4, 4), SPC_LDS + part * 2048 + 16))
def sp_cs_store(p):
    p("v_lshlrev_b32 v10, 4, v0")
    for w in range(4): p("ds_read_b128 %s, v10 offset:%d" % (vr(64 + 4 * w, 4), SPC_LDS + w * 4096))
    for c in range(4):
        p("v_add_f32 v%d, v%d, v%d" % (64 + c, 64 + c, 68 + c)); p("v_add_f32 v%d, v%d, v%d" % (72 + c, 72 + c, 76 + c))
    for c in range(4): p("v_add_f32 v%d, v%d, v%d" % (80 + 2 * c, 64 + c, 72 + c)); p("v_mov_b32 v%d, s%d" % (81 + 2 * c, sN))
    p("s_mul_i32 s%d, s74, %d" % (sT0, 1792 * 8)); p("s_and_b32 s%d, s%d, 1" % (sT1, sJ)); p("s_mul_i32 s%d, s%d, %d" % (sT1, sT1, 896 * 8))
    p("s_add_u32 s%d, s%d, s%d" % (sT0, sT0, sT1))
    p("v_lshlrev_b32 v11, 5, v0")
    p("v_cmp_gt_u32 vcc, 224, v0"); p("s_nop 1"); p("v_cndmask_b32 v11, v253, v11, vcc"); p("v_mov_b32 v12, 0x7f000000")
    p("v_cndmask_b32 v11, v12, v11, vcc")
    p("buffer_store_dwordx4 v[80:83], v11, s[%d:%d], s%d offen sc1" % (CSP_, CSP_ + 3, sT0), "pst")
    p("buffer_store_dwordx4 v[84:87], v11, s[%d:%d], s%d offen offset:16 sc1" % (CSP_, CSP_ + 3, sT0), "pst")
def fk_publish(p, name):
    p("s_cmp_eq_u32 s%d, 0" % sW)
    p("s_cbranch_scc0 %s_nofk" % name)
    st = side_path_begin(p)
    p("s_lshl_b32 s%d, s%d, 5" % (sT0, sJ)); p("s_add_u32 s%d, s%d, s%d" % (sT0, sT0, sR))
    p("s_lshl_b32 s%d, s%d, 7" % (sT0, sT0))
    if FL_FK: p("s_add_u32 s%d, s%d, %d" % (sT0, sT0, FL_FK))
    flag_store(p, sT0)
    side_path_end(p, st)
    p.label("%s_nofk" % name)
vPK, vPA = 184, 185
def fk_addr(p, all_waves=False):
    p("v_min_u32 v%d, 31, v1" % vPA); p("v_lshlrev_b32 v%d, 7, v%d" % (vPA, vPA))
    if not all_waves:
        p("s_min_u32 s85, s%d, 1" % sW); p("s_sub_u32 s85, 1, s85"); p("v_mul_u32_u24 v%d, s85, v%d" % (vPA, vPA))
    p("s_lshl_b32 s85, s%d, 12" % sJ)
    if FL_FK: p("s_add_u32 s85, s85, %d" % FL_FK)

vX, vWd, vXA, vWA = 192, 196, 200, 208
G1_ACC = 64
vCS, vB1, vST = 128, 180, 212
B1_ = 40
def g1_dma_setup(p):
    p("v_lshrrev_b32 v10, 3, v1"); p("v_and_b32 v11, 7, v1"); p("v_lshrrev_b32 v12, 1, v10")
    for ii in range(4):
        p("v_add_u32 v13, %d, v12" % (4 * (ii & 1))); p("v_xor_b32 v13, v13, v11")
        p("v_lshlrev_b32 v13, 4, v13"); p("v_lshl_add_u32 v13, v10, 10, v13")
        p("v_add_u32 v%d, %d, v13" % (vX + ii, ii * 8192 - ii * 1024))
    p("v_lshrrev_b32 v10, 4, v1"); p("v_and_b32 v11, 15, v1"); p("v_lshlrev_b32 v12, 2, v10")
    p("v_xor_b32 v12, v12, v11"); p("v_lshlrev_b32 v12, 4, v12")
    p("v_mul_u32_u24 v13, 3584, v10"); p("v_add_u32 v13, v13, v12")
    for ii in range(4): p("v_add_u32 v%d, %d, v13" % (vWd + ii, ii * 4 * 3584 - ii * 1024))
    p("s_lshl_b32 s%d, s%d, 17" % (sXo, sRB)); p("s_lshl_b32 s%d, s%d, 15" % (sT0, sW))
    p("s_add_u32 s%d, s%d, s%d" % (sXo, sXo, sT0))
    p("s_mul_i32 s%d, s%d, %d" % (sWo, sW, 16 * 3584)); p("s_lshl_b32 s%d, s%d, 8" % (sT0, sFT))
    p("s_add_u32 s%d, s%d, s%d" % (sWo, sWo, sT0))
    p("s_lshl_b32 s%d, s%d, 12" % (sM, sW))
def g1_dma_stage(s):
    out = []; slot = s % 4
    for ii in range(4):
        u = [("s_add_u32 m0, s%d, %d" % (sM, slot * 32768), None)] if ii == 0 else []
        out.append(u + [("buffer_load_dwordx4 v%d, s[%d:%d], s%d offen offset:%d lds" % (vX + ii, GQ_, GQ_ + 3, sXo, ii * 1024), "st%d" % s)])
    for ii in range(4):
        u = [("s_add_u32 m0, s%d, %d" % (sM, slot * 32768 + 16384), None)] if ii == 0 else []
        out.append(u + [("buffer_load_dwordx4 v%d, s[%d:%d], s%d offen offset:%d lds" % (vWd + ii, GW1_, GW1_ + 3, sWo, ii * 1024), "st%d" % s)])
    out[-1] += [("s_add_u32 s%d, s%d, 128" % (sXo, sXo), None), ("s_add_u32 s%d, s%d, %d" % (sWo, sWo, 64 * 3584), None)]
    return out
def g1_lds_setup(p):
    p("v_and_b32 v10, 31, v1"); p("v_lshrrev_b32 v11, 5, v1")
    p("v_lshrrev_b32 v12, 1, v10"); p("v_and_b32 v12, 7, v12"); p("v_xor_b32 v12, v12, v11")
    p("s_lshr_b32 s%d, s%d, 1" % (sT1, sW)); p("s_lshl_b32 s%d, s%d, 13" % (sT1, sT1))
    p("v_lshlrev_b32 v13, 7, v10"); p("v_add_u32 v13, s%d, v13" % sT1)
    for jj in range(4):
        p("v_xor_b32 v14, %d, v12" % (2 * jj))
        p("v_lshl_add_u32 v%d, v14, 4, v13" % (vXA + jj))
        p("v_add_u32 v%d, 0x10000, v%d" % (vXA + 4 + jj, vXA + jj))
    p("v_and_b32 v10, 15, v1"); p("v_lshrrev_b32 v11, 4, v1"); p("v_lshrrev_b32 v12, 1, v11")
    p("v_and_b32 v11, 1, v11"); p("v_lshrrev_b32 v13, 2, v10")
    p("v_lshl_add_u32 v12, v12, 3, v13"); p("v_lshlrev_b32 v12, 8, v12")
    p("v_and_b32 v14, 1, v10"); p("v_lshl_add_u32 v12, v14, 3, v12"); p("v_add_u32 v12, 16384, v12")
    p("v_and_b32 v14, 3, v10"); p("v_lshrrev_b32 v14, 1, v14"); p("v_lshl_add_u32 v14, v11, 1, v14")
    p("s_and_b32 s%d, s%d, 1" % (sT1, sW)); p("s_lshl_b32 s%d, s%d, 3" % (sT1, sT1))
    p("v_add_u32 v14, s%d, v14" % sT1); p("v_lshlrev_b32 v13, 2, v13")
    for fb in range(2):
        p("v_add_u32 v15, %d, v14" % (4 * fb)); p("v_xor_b32 v15, v15, v13")
        p("v_lshl_add_u32 v%d, v15, 4, v12" % (vWA + fb))
        p("v_add_u32 v%d, 0x10000, v%d" % (vWA + 2 + fb, vWA + fb))

def tab_loads(p):
    p("v_lshlrev_b32 v10, 4, v1")
    p("s_lshl_b32 s83, s%d, 2" % sW); p("s_mul_i32 s83, s83, %d" % (1792 * 8)); p("s_lshl_b32 s84, s%d, 10" % sFT); p("s_add_u32 s83, s83, s84")
    for i in range(4):
        p("buffer_load_dwordx4 %s, v10, s[%d:%d], s83 offen sc1" % (vr(vCS + 4 * i, 4), CSP_, CSP_ + 3), "tab")
        if i < 3: p("s_add_u32 s83, s83, %d" % (1792 * 8))
    p("s_lshr_b32 s84, s%d, 1" % sW); p("s_lshl_b32 s84, s84, 6")
    p("s_lshl_b32 s83, s%d, 7" % sRB); p("s_add_u32 s83, s83, s84"); p("s_lshl_b32 s83, s83, 4")
    p("v_and_b32 v12, 31, v1"); p("v_lshlrev_b32 v12, 4, v12")
    p("buffer_load_dwordx4 %s, v12, s[%d:%d], s83 offen sc1" % (vr(vST, 4), ST_, ST_ + 3), "tab")
    p("buffer_load_dwordx4 %s, v12, s[%d:%d], s83 offen offset:512 sc1" % (vr(vST + 4, 4), ST_, ST_ + 3), "tab")
def tab_check(p):
    _uid[0] += 1; u = _uid[0]
    def cmp():
        tags = [vCS + 4 * i + 1 for i in range(4)] + [vCS + 4 * i + 3 for i in range(4)] + [vST + 2, vST + 6]
        p("v_min3_u32 v10, v%d, v%d, v%d" % tuple(tags[0:3])); p("v_max3_u32 v11, v%d, v%d, v%d" % tuple(tags[0:3]))
        for i in range(3, 9, 2):
            p("v_min3_u32 v10, v10, v%d, v%d" % (tags[i], tags[i + 1])); p("v_max3_u32 v11, v11, v%d, v%d" % (tags[i], tags[i + 1]))
        p("v_min_u32 v10, v10, v%d" % tags[9]); p("v_max_u32 v11, v11, v%d" % tags[9])
        p("v_cmp_ne_u32 vcc, s%d, v10" % sN); p("v_cmp_ne_u32 s[76:77], s%d, v11" % sN)
        p("s_or_b64 vcc, vcc, s[76:77]"); p("s_nop 4")
    cmp()
    p("s_cbranch_vccz Lt%d_ok" % u)
    saved = (list(p.vm), list(p.lg))
    p("s_mov_b32 s79, 0")
    p.label("Lt%d_loop" % u)
    p("s_sleep 2")
    tab_loads(p)
    p.wait(vm=0)
    cmp()
    p("s_cbranch_vccz Lt%d_ok" % u)
    p("s_add_u32 s79, s79, 1"); p("s_cmp_lt_u32 s79, 0x40000"); p("s_cbranch_scc1 Lt%d_loop" % u)
    p.label("Lt%d_ok" % u)
    p.vm, p.lg = saved
def tab_partial(p):
    p("v_add_f32 v%d, v%d, v%d" % (vCS, vCS, vCS + 4)); p("v_add_f32 v%d, v%d, v%d" % (vCS + 2, vCS + 2, vCS + 6))
    p("v_add_f32 v%d, v%d, v%d" % (vCS + 8, vCS + 8, vCS + 12)); p("v_add_f32 v%d, v%d, v%d" % (vCS + 10, vCS + 10, vCS + 14))
    p("v_add_f32 v%d, v%d, v%d" % (vCS, vCS, vCS + 8)); p("v_add_f32 v%d, v%d, v%d" % (vCS + 1, vCS + 2, vCS + 10))
    p("v_lshlrev_b32 v10, 3, v1"); p("s_lshl_b32 s83, s%d, 9" % sW); p("v_add_u32 v10, s83, v10"); p("v_add_u32 v10, %d, v10" % CSQ_LDS)
    p("ds_write_b64 v10, %s" % vr(vCS, 2))

def g1_main(p, fill):
    ACC = G1_ACC; FR = 32
    def reads(g):
        s, jj = g // 4, g % 4
        slot = s % 4; hi = slot >= 2; so = (slot & 1) * 32768
        f = FR + 16 * (g & 1); out = []
        for fb in range(2):
            for rr in range(2):
                out.append("ds_read_b64_tr_b16 %s, v%d offset:%d" % (vr(f + 4 * fb + 2 * rr, 2), vWA + fb + (2 if hi else 0), so + jj * 4096 + rr * 1024))
        for tb in range(2):
            out.append("ds_read_b128 %s, v%d offset:%d" % (vr(f + 8 + 4 * tb, 4), vXA + jj + (4 if hi else 0), so + tb * 4096))
        return out
    def mfmas(g):
        f = FR + 16 * (g & 1); out = []
        for fb in range(2):
            for tb in range(2):
                a = ACC + 16 * (2 * fb + tb)
                out.append("v_mfma_f32_32x32x16_bf16 %s, %s, %s, %s" % (vr(a, 16), vr(f + 4 * fb, 4), vr(f + 8 + 4 * tb, 4), "0" if g == 0 else vr(a, 16)))
        return out
    for s in range(8):
        prewait, pre, units = fill[s][:3]
        tail = fill[s][3] if len(fill[s]) > 3 else []
        p.wait_tag("st%d" % s)
        prewait(p)
        p("s_barrier")
        stamp(p, "g1_st%d" % s)
        pre(p)
        dm = g1_dma_stage(s + 3) if (s + 3 < 8 and s >= 1) else []
        if s == 0: dm = g1_dma_stage(3)
        nm = 16 if s > 0 else 12
        di = ui = k = 0
        for jj in range(4):
            g = 4 * s + jj
            rd = reads(g)
            if g == 0:
                for t in rd: p(t)
                continue
            for q, t in enumerate(mfmas(g - 1)):
                p(t)
                for r_ in rd[2 * q:2 * q + 2]: p(r_)
                k += 1
                while di < len(dm) and di * nm < k * len(dm):
                    emit(p, dm[di]); di += 1
                while ui < len(units) and ui * nm < k * len(units):
                    emit(p, [units[ui]]); ui += 1
        while di < len(dm): emit(p, dm[di]); di += 1
        while ui < len(units): emit(p, [units[ui]]); ui += 1
        emit(p, tail)
    for t in mfmas(31): p(t)

def g1_epilogue(p, extra):
    HF_ = 44
    srd(p, HF_, P_WS, SZ_HF, WS_HF)
    ACC = G1_ACC; TBL = 128
    p("v_lshrrev_b32 v10, 5, v1"); p("v_lshlrev_b32 v10, 4, v10")
    p("s_and_b32 s%d, s%d, 1" % (sT1, sW)); p("s_lshl_b32 s%d, s%d, 8" % (sT1, sT1))
    p("v_add_u32 v10, s%d, v10" % sT1); p("v_add_u32 v10, %d, v10" % TAB_LDS)
    for rq in range(4):
        p("ds_read_b128 %s, v10 offset:%d" % (vr(TBL + 4 * rq, 4), rq * 32))
        p("ds_read_b128 %s, v10 offset:%d" % (vr(TBL + 16 + 4 * rq, 4), 512 + rq * 32))
    p("s_lshr_b32 s%d, s%d, 1" % (sT1, sW)); p("s_lshl_b32 s%d, s%d, 1" % (sT1, sT1))
    p("s_lshl_b32 s%d, s%d, 2" % (sT0, sRB)); p("s_add_u32 s%d, s%d, s%d" % (sT0, sT0, sT1))
    p("s_mul_i32 s%d, s%d, 112" % (sT0, sT0)); p("s_lshl_b32 s%d, s%d, 3" % (sT1, sFT))
    p("s_add_u32 s%d, s%d, s%d" % (sT0, sT0, sT1))
    p("s_and_b32 s%d, s%d, 1" % (sT1, sW)); p("s_lshl_b32 s%d, s%d, 2" % (sT1, sT1))
    p("s_add_u32 s%d, s%d, s%d" % (sT0, sT0, sT1)); p("s_lshl_b32 s83, s%d, 10" % sT0)
    p("v_lshlrev_b32 v11, 4, v1"); p("v_add_u32 v12, %d, v11" % (112 * 1024))
    for tb in range(2): p("v_mul_f32 v%d, v%d, v%d" % (vST + 4 * tb, vST + 4 * tb, vST + 4 * tb + 1))
    main = []
    TB2 = 32
    for fb in range(2):
        tbl = TBL if fb == 0 else TB2
        for tb in range(2):
            a = ACC + 16 * (2 * fb + tb); mu = vST + 4 * tb
            PK = 160 + 8 * tb
            if fb == 0 and tb == 0:
                for rq in range(4):
                    main.append(("ds_read_b128 %s, v10 offset:%d" % (vr(TB2 + 4 * rq, 4), 128 + rq * 32), None))
                    main.append(("ds_read_b128 %s, v10 offset:%d" % (vr(TB2 + 16 + 4 * rq, 4), 512 + 128 + rq * 32), None))
            for r_ in range(0, 16, 4):
                t0, t1 = 176, 178
                for t, rr in ((t0, r_), (t1, r_ + 2)):
                    main.append(("v_pk_fma_f32 %s, %s, %s, %s op_sel_hi:[0,1,1] neg_lo:[1,0,0] neg_hi:[1,0,0]" % (vr(t, 2), vr(mu, 2), vr(tbl + rr, 2), vr(tbl + 16 + rr, 2)), None))
                for t, rr in ((t0, r_), (t1, r_ + 2)):
                    main.append(("v_pk_fma_f32 %s, %s, %s, %s op_sel:[0,1,0] op_sel_hi:[1,1,1]" % (vr(t, 2), vr(a + rr, 2), vr(mu, 2), vr(t, 2)), None))
                for t in (t0, t0 + 1, t1, t1 + 1): main.append(("v_max_f32 v%d, 0, v%d" % (t, t), None))
                for t in (t0, t1): main.append(("v_pk_mul_f32 %s, %s, %s" % (vr(t, 2), vr(t, 2), vr(t, 2)), None))
                for t, rr in ((t0, r_), (t1, r_ + 2)): main.append(("v_cvt_pk_bf16_f32 v%d, v%d, v%d" % (PK + (rr >> 1), t, t + 1), None))
            for q in range(2):
                main.append(("buffer_store_dwordx4 %s, v%d, s[%d:%d], s83 offen offset:%d sc1" % (vr(PK + 4 * q, 4), 11 + tb, HF_, HF_ + 3, (2 * fb + q) * 1024), "hst"))
    n = len(extra); k = 0
    for i, it in enumerate(main):
        emit(p, [it])
        while k < n and k * len(main) < (i + 1) * n:
            emit(p, [extra[k]]); k += 1

def h_publish(p):
    p("s_lshl_b32 s%d, s%d, 1" % (sT0, sRB)); p("s_lshr_b32 s%d, s%d, 1" % (sT1, sW))
    p("s_add_u32 s%d, s%d, s%d" % (sT0, sT0, sT1)); p("s_mul_i32 s%d, s%d, 28" % (sT0, sT0))
    p("s_lshl_b32 s%d, s%d, 1" % (sT1, sFT)); p("s_add_u32 s%d, s%d, s%d" % (sT0, sT0, sT1))
    p("s_and_b32 s%d, s%d, 1" % (sT1, sW)); p("s_add_u32 s%d, s%d, s%d" % (sT0, sT0, sT1))
    p("s_lshl_b32 s%d, s%d, 7" % (sT0, sT0)); p("s_add_u32 s%d, s%d, %d" % (sT0, sT0, FL_FH))
    flag_store(p, sT0)

KVT2_, SSM_, DD_, ZT_ = 48, 44, 60, 60
CV_R, vDD = 220, 254
def conv_setup(p):
    srd(p, KVT2_, P_WS, SZ_KVT, WS_KVT); srd(p, SSM_, P_SSM, D * S * 2); srd(p, DD_, P_DD, D * 2)
    p("s_lshr_b32 s%d, s%d, 1" % (sT0, sW)); p("s_and_b32 s%d, s%d, 1" % (sC2, sW))
    p("s_lshl_b32 s%d, s%d, 6" % (sCH, sJ)); p("s_lshl_b32 s%d, s%d, 1" % (sT1, sR))
    p("s_add_u32 s%d, s%d, s%d" % (sCH, sCH, sT1)); p("s_add_u32 s%d, s%d, s%d" % (sCH, sCH, sT0))
    p("s_mul_i32 s%d, s%d, 21248" % (sCB, sT0)); p("s_add_u32 s%d, s%d, %d" % (sCB, sCB, CV0 + 256))
def conv_loads_regs(p):
    p("s_lshl_b32 s83, s%d, 12" % sCH); p("s_lshl_b32 s84, s%d, 11" % sC2); p("s_add_u32 s83, s83, s84")
    p("v_lshlrev_b32 v2, 4, v1")
    R = CV_R
    for sg in range(2):
        for k in range(3):
            p("buffer_load_dwordx4 %s, v2, s[%d:%d], s83 offen offset:%d sc1" % (vr(R + 12 * sg + 4 * k, 4), KVT2_, KVT2_ + 3, sg * 1024 + 4 * k), "cv")
    p("v_mov_b32 v4, 0"); p("s_lshl_b32 s84, s%d, 1" % sCH)
    p("buffer_load_ushort v%d, v4, s[%d:%d], s84 offen" % (vDD, DD_, DD_ + 3), "cv")
def conv_loads_lds(p):
    p("s_lshl_b32 s%d, s%d, 12" % (sT0, sCH)); p("s_lshl_b32 s%d, s%d, 11" % (sT1, sC2))
    p("s_add_u32 s%d, s%d, s%d" % (sT0, sT0, sT1))
    p("v_lshlrev_b32 v2, 4, v1")
    for sg in range(2):
        p("s_add_u32 s%d, s%d, s%d" % (sT2, sCB, sT1))
        p("s_add_u32 m0, s%d, %d" % (sT2, 16640 + 512 + sg * 1024))
        p("s_add_u32 s%d, s%d, %d" % (sT2, sT0, sg * 1024))
        p("buffer_load_dwordx4 v2, s[%d:%d], s%d offen lds" % (SSM_, SSM_ + 3, sT2), "cv")
    for i in range(4): p("v_mov_b32 v%d, 0" % (16 + i))
    p("v_lshrrev_b32 v5, 1, v1"); p("v_mul_u32_u24 v5, 4160, v5")
    p("v_and_b32 v6, 1, v1"); p("v_lshl_add_u32 v5, v6, 4, v5"); p("v_add_u32 v5, 4096, v5")
    p("v_add_u32 v6, 16640, v2")
    p("s_cmp_eq_u32 s%d, 0" % sC2)
    p("s_cselect_b32 s76, 0xff, -1")
    p("s_cselect_b64 vcc, -1, 0")
    p("v_cndmask_b32 v5, v6, v5, vcc")
    p("v_add_u32 v5, s%d, v5" % sCB)
    p("s_mov_b32 exec_lo, s76"); p("s_mov_b32 exec_hi, 0")
    p("ds_write_b128 v5, v[16:19]")
    p("s_mov_b64 exec, -1")

def conv_fill(p):
    R = CV_R
    p("v_mov_b32 v10, %d" % ZCNT_LDS); p("ds_write_b32 v10, v253")
    p("v_lshlrev_b32 v2, 4, v1"); p("v_mov_b32 v8, 0")
    p("s_lshl_b32 s77, s%d, 31" % sC2); p("s_mov_b32 s76, 0")
    last = R + 12
    for rg in (last + 7, last + 10, last + 11): p("v_cndmask_b32 v%d, v%d, v8, s[76:77]" % (rg, rg))
    p("s_lshl_b32 s%d, s%d, 11" % (sT1, sC2)); p("s_add_u32 s%d, s%d, s%d" % (sT1, sT1, sCB))
    p("v_add_u32 v5, s%d, v2" % sT1)
    for sg in range(2):
        r0, r1, r2 = R + 12 * sg, R + 12 * sg + 4, R + 12 * sg + 8
        c1, c3 = 40 + 8 * sg, 44 + 8 * sg
        p("ds_write_b128 v5, %s offset:%d" % (vr(r0, 4), sg * 1024))
        for i in range(4): p("v_alignbit_b32 v%d, v%d, v%d, 16" % (c1 + i, r1 + i, r0 + i))
        p("ds_write_b128 v5, %s offset:%d" % (vr(r1, 4), 2 * 4160 + sg * 1024))
        for i in range(4): p("v_alignbit_b32 v%d, v%d, v%d, 16" % (c3 + i, r2 + i, r1 + i))
        p("ds_write_b128 v5, %s offset:%d" % (vr(c1, 4), 4160 + sg * 1024))
        p("ds_write_b128 v5, %s offset:%d" % (vr(c3, 4), 3 * 4160 + sg * 1024))

def conv_main(p, extra_by_class):
    vA, vB = 12, 13
    p("v_and_b32 v6, 15, v1"); p("v_lshrrev_b32 v7, 4, v1")
    p("v_sub_u32 v14, 3, v6"); p("v_and_b32 v14, 3, v14")
    p("v_mul_u32_u24 v15, 4158, v14")
    p("v_lshlrev_b32 v14, 1, v6"); p("v_sub_u32 v15, v15, v14"); p("v_lshl_add_u32 v15, v7, 4, v15")
    p("s_lshl_b32 s%d, s%d, 8" % (sT1, sC2)); p("s_sub_u32 s%d, s%d, s%d" % (sT1, sCB, sT1))
    p("s_add_u32 s%d, s%d, 30" % (sT2, sT1)); p("v_add_u32 v%d, s%d, v15" % (vA, sT2))
    p("v_lshlrev_b32 v15, 5, v6"); p("v_lshl_add_u32 v15, v7, 4, v15")
    p("s_add_u32 s%d, s%d, %d" % (sT2, sT1, 16640 + 32)); p("v_add_u32 v%d, s%d, v15" % (vB, sT2))
    ACC = 64
    p.wait(lg=0)
    p("s_barrier")
    stamp(p, "conv_filled")
    FA, FB = 96, 160
    def reads(rl):
        st = rl & 1; out = []
        for x in range(8):
            oa = 64 * (63 - rl - 8 * x)
            out.append(("ds_read_b64 %s, v%d offset:%d" % (vr(FA + 32 * st + 4 * x, 2), vA, oa), None))
            out.append(("ds_read_b64 %s, v%d offset:%d" % (vr(FA + 32 * st + 4 * x + 2, 2), vA, oa + 8), None))
            out.append(("ds_read_b128 %s, v%d offset:%d" % (vr(FB + 32 * st + 4 * x, 4), vB, 64 * (7 - rl + 8 * x)), None))
        return out
    seen = set()
    def mf(rl):
        st = rl & 1; out = []
        pairs = sorted([(a, b) for a in range(8) for b in range(8) if a + b <= 7], key=lambda ab: (max(ab), ab))
        for a, b in pairs:
            c = vr(ACC + 4 * (a + b), 4)
            first = (a + b) not in seen; seen.add(a + b)
            out.append(("v_mfma_f32_16x16x32_bf16 %s, %s, %s, %s" % (c, vr(FA + 32 * st + 4 * a, 4), vr(FB + 32 * st + 4 * b, 4), "0" if first else c), None))
        return out
    for t in reads(0): p(*t)
    for rl in range(4):
        pre, fill = extra_by_class[rl]
        pre(p)
        nxt = (reads(rl + 1) if rl < 3 else [])
        m = mf(rl)
        ni = fi = 0
        for i, t in enumerate(m):
            p(*t)
            while ni < len(nxt) and ni * 30 < (i + 1) * len(nxt): p(*nxt[ni]); ni += 1
            while fi < len(fill) and fi * 36 < (i + 1) * len(fill): emit(p, [fill[fi]]); fi += 1
    stamp(p, "conv_mma_done")

def conv_finish(p, name, extra):
    ACC = 64
    RB = RB_LDS
    srd(p, ZT_, P_WS, SZ_ZT, WS_ZT)
    p("v_lshlrev_b32 v2, 4, v1")
    p("s_lshl_b32 s%d, s%d, 12" % (sT1, sW))
    p("v_add_u32 v5, s%d, v2" % sT1); p("v_add_u32 v5, %d, v5" % RB)
    p("s_xor_b32 s%d, s%d, 1" % (sT1, sW)); p("s_lshl_b32 s%d, s%d, 12" % (sT1, sT1))
    p("v_add_u32 v14, s%d, v2" % sT1); p("v_add_u32 v14, %d, v14" % RB)
    p("v_lshlrev_b32 v15, 5, v6"); p("v_lshl_add_u32 v15, v7, 3, v15")
    p("s_lshl_b32 s%d, s%d, 11" % (sT1, sC2)); p("s_sub_u32 s%d, s%d, s%d" % (sT2, sCB, sT1))
    p("s_add_u32 s%d, s%d, %d" % (sT2, sT2, 4088 - 1536)); p("v_sub_u32 v16, s%d, v15" % sT2)
    p("s_lshl_b32 s84, s%d, 12" % sCH); p("s_add_u32 s84, s84, s%d" % sT1)
    p("v_lshlrev_b32 v%d, 16, v%d" % (vDD, vDD))
    for q in range(4): p("ds_read_b64 %s, v16 offset:%d" % (vr(36 + 2 * q, 2), (3 - q) * 512))
    n1 = len(extra) // 2
    emit(p, extra[:n1])
    st = side_path_begin(p); hist = len(p.out)
    p("s_cmp_eq_u32 s%d, 0" % sC2)
    p("s_cbranch_scc0 %s_hi" % name)
    for variant in range(2):
        keep = ACC + 16 * variant; give = ACC + 16 * (1 - variant)
        if variant == 1:
            p("s_branch %s_cdone" % name)
            p.label("%s_hi" % name)
            side_path_end(p, st)
            p("s_nop 7")
        for q in range(4): p("ds_write_b128 v5, %s offset:%d" % (vr(give + 4 * q, 4), q * 1024))
        for q in range(4):
            a_ = keep + 4 * q; u = 36 + 2 * q
            for c, (src, hf) in enumerate(((u + 1, 1), (u + 1, 0), (u, 1), (u, 0))):
                unpack(p, 44 + (c & 1), src, hf)
                p("v_fmac_f32 v%d, v%d, v%d" % (a_ + c, 44 + (c & 1), vDD))
        p.wait(lg=0)
        p("s_barrier")
        for q in range(4): p("ds_read_b128 %s, v14 offset:%d" % (vr(20 + 4 * q, 4), q * 1024))
        for q in range(4):
            a_ = keep + 4 * q
            for c in range(4): p("v_add_f32 v%d, v%d, v%d" % (a_ + c, a_ + c, 20 + 4 * q + c))
            p("v_cvt_pk_bf16_f32 v%d, v%d, v%d" % (48 + 2 * q, a_, a_ + 1))
            p("v_cvt_pk_bf16_f32 v%d, v%d, v%d" % (49 + 2 * q, a_ + 2, a_ + 3))
    p.label("%s_cdone" % name)
    emit(p, extra[n1:])
def z_stores(p):
    for q in range(4):
        p("buffer_store_dwordx2 %s, v15, s[%d:%d], s84 offen offset:%d sc1" % (vr(48 + 2 * q, 2), ZT_, ZT_ + 3, q * 512), "zst")
ZCNT_LDS = 163832
def z_publish(p, name):
    p("v_mov_b32 v10, %d" % ZCNT_LDS); p("v_mov_b32 v11, 1")
    p("s_mov_b64 exec, 1")
    p("ds_add_rtn_u32 v11, v10, v11")
    p("s_mov_b64 exec, -1")
    p.wait(lg=0)
    p("v_readfirstlane_b32 s%d, v11" % sT0)
    p("s_cmp_eq_u32 s%d, 3" % sT0)
    p("s_cbranch_scc0 %s_nozp" % name)
    st = side_path_begin(p)
    p("s_lshl_b32 s%d, s%d, 5" % (sT0, sJ)); p("s_add_u32 s%d, s%d, s%d" % (sT0, sT0, sR))
    p("s_lshl_b32 s%d, s%d, 7" % (sT0, sT0)); p("s_add_u32 s%d, s%d, %d" % (sT0, sT0, FL_FZ))
    flag_store(p, sT0)
    side_path_end(p, st)
    p.label("%s_nozp" % name)

HF2_, W2_, Q2_, ZT2_, ST2_, B2_, OUT_ = 40, 8, 48, 52, 56, 64, 44
vH0, vH1, vD0, vD1 = 244, 245, 246, 247
vFH, vFHA = 248, 249
vTRA = 60
sWS = 75
NS = 28
STASH0 = 0
HB = 128
def g2_setup(p):
    srd(p, W2_, P_W2, F * D * 2)
    p("s_lshl_b32 s%d, s%d, 8" % (sTok, sJ))
    p("s_lshr_b32 s%d, s%d, 3" % (sT0, sR)); p("s_lshl_b32 s%d, s%d, 6" % (sT0, sT0))
    p("s_add_u32 s%d, s%d, s%d" % (sTok, sTok, sT0))
    p("s_add_u32 s%d, s%d, %d" % (sCh, sR, OPT.get("cbrot", 0))); p("s_and_b32 s%d, s%d, 7" % (sCh, sCh)); p("s_lshl_b32 s%d, s%d, 6" % (sCh, sCh))
    p("s_lshr_b32 s%d, s%d, 5" % (sT0, sTok)); p("s_mul_i32 s%d, s%d, 112" % (sT0, sT0))
    p("s_mul_i32 s%d, s%d, 28" % (sT1, sW))
    p("s_add_u32 s%d, s%d, s%d" % (sT0, sT0, sT1)); p("s_lshl_b32 s%d, s%d, 10" % (sHo, sT0))
    p("s_lshl_b32 s%d, s%d, 14" % (sWA, sT1)); p("s_lshl_b32 s%d, s%d, 1" % (sT0, sCh))
    p("s_add_u32 s%d, s%d, s%d" % (sWA, sWA, sT0))
    p("s_lshl_b32 s%d, s%d, 11" % (sM2, sW))
    p("v_lshlrev_b32 v%d, 4, v1" % vH0)
    p("v_add_u32 v%d, %d, v%d" % (vH1, 112 * 1024, vH0))
    p("v_lshrrev_b32 v10, 3, v1"); p("v_and_b32 v11, 7, v1")
    p("v_lshrrev_b32 v12, 1, v10"); p("v_and_b32 v12, 1, v12"); p("v_lshlrev_b32 v12, 2, v12")
    p("v_xor_b32 v12, v12, v11"); p("v_lshlrev_b32 v12, 4, v12")
    p("v_lshl_add_u32 v%d, v10, 10, v12" % vD0)
    p("v_add_u32 v%d, %d, v%d" % (vD1, 8192 - 1024, vD0))
def g2_setup_tr(p):
    p("v_and_b32 v10, 15, v1"); p("v_lshrrev_b32 v11, 4, v1"); p("v_lshrrev_b32 v12, 1, v11"); p("v_and_b32 v11, 1, v11")
    p("v_lshrrev_b32 v13, 2, v10"); p("v_lshl_add_u32 v12, v12, 2, v13"); p("v_lshlrev_b32 v12, 7, v12")
    p("v_and_b32 v14, 3, v10"); p("v_lshrrev_b32 v15, 1, v14"); p("v_lshl_add_u32 v12, v15, 3, v12")
    p("v_and_b32 v14, 1, v14"); p("v_lshl_add_u32 v14, v14, 1, v11")
    p("v_lshrrev_b32 v15, 3, v10"); p("v_lshlrev_b32 v15, 2, v15")
    p("v_add_u32 v12, s%d, v12" % sM2)
    for cb in range(2):
        p("v_add_u32 v13, %d, v14" % (4 * cb)); p("v_xor_b32 v13, v13, v15")
        p("v_lshl_add_u32 v%d, v13, 4, v12" % (vTRA + cb))
        p("v_add_u32 v%d, 0x10000, v%d" % (vTRA + 2 + cb, vTRA + cb))
def w2_dma(step, slot):
    tag = "w%d" % step
    return [[("s_add_u32 s%d, s%d, %d" % (sWS, sWA, step * 16384), None),
             ("s_add_u32 m0, s%d, %d" % (sM2, slot * 8192), None),
             ("buffer_load_dwordx4 v%d, s[%d:%d], s%d offen lds" % (vD0, W2_, W2_ + 3, sWS), tag),
             ("buffer_load_dwordx4 v%d, s[%d:%d], s%d offen offset:1024 lds" % (vD1, W2_, W2_ + 3, sWS), tag)]]
def tr_reads(slot, dst, kind):
    out = []
    for cb in range(2):
        for rr in range(2):
            hi = slot >= 8
            out.append(("ds_read_b64_tr_b16 %s, v%d offset:%d" % (vr(dst + 4 * cb + 2 * rr, 2, kind), vTRA + cb + (2 if hi else 0), (slot - 8 * hi) * 8192 + rr * 1024), None))
    return out
def stash_reads(step, slot): return tr_reads(slot, STASH0 + 8 * (step - 12), 'a')
def h_loads(s):
    slot = s % OPT["depth_h"]
    return [("buffer_load_dwordx4 %s, v%d, s[%d:%d], s%d offen sc1" % (ar(HB + 8 * slot, 4), vH0, HF2_, HF2_ + 3, sHo), "h%d" % s),
            ("buffer_load_dwordx4 %s, v%d, s[%d:%d], s%d offen sc1" % (ar(HB + 8 * slot + 4, 4), vH1, HF2_, HF2_ + 3, sHo), "h%d" % s),
            ("s_add_u32 s%d, s%d, 1024" % (sHo, sHo), None)]
def fh_poll_issue(p):
    p("v_min_u32 v%d, 6, v1" % vFHA); p("v_lshlrev_b32 v%d, 7, v%d" % (vFHA, vFHA))
    p("s_lshr_b32 s83, s%d, 6" % sTok); p("s_mul_i32 s83, s83, 28"); p("s_mul_i32 s%d, s%d, 7" % (sT0, sW)); p("s_add_u32 s83, s83, s%d" % sT0)
    p("s_lshl_b32 s83, s83, 7"); p("s_add_u32 s83, s83, %d" % FL_FH)
    poll_issue(p, vFH, vFHA, 83, "fh")
def g2_h_start(p):
    DH = OPT["depth_h"]
    srd(p, HF2_, P_WS, SZ_HF, WS_HF)
    p.wait_tag("fh")
    poll_check(p, [vFH], [vFHA], [83])
    stamp(p, "g2_h_ready")
    for s in range(OPT.get("h_first", 2)):
        for t in h_loads(s): p(*t)
def h_touch(p):
    DH = OPT["depth_h"]
    n = (NS - DH) * 16 // 8
    p("s_and_b32 s%d, s%d, 7" % (sT0, sR)); p("s_mul_i32 s%d, s%d, %d" % (sT0, sT0, n))
    p("v_add_u32 v10, s%d, v1" % sT0)
    p("v_lshrrev_b32 v11, 4, v10"); p("v_and_b32 v12, 7, v10"); p("v_lshlrev_b32 v12, 7, v12")
    p("v_lshl_add_u32 v12, v11, 10, v12")
    p("v_bfe_u32 v11, v10, 3, 1"); p("v_mul_u32_u24 v11, %d, v11" % (112 * 1024)); p("v_add_u32 v12, v12, v11")
    if n > 32: p("s_mov_b32 exec_hi, 0x%x" % ((1 << (n - 32)) - 1))
    else: p("s_mov_b64 exec, 0x%x" % ((1 << n) - 1))
    p("buffer_load_dword v59, v12, s[%d:%d], s%d offen sc1" % (HF2_, HF2_ + 3, sHo), "touch3")
    p("s_mov_b64 exec, -1")

vST2, vB2 = 16, 20
vY, vOWN = 144, 176
vXq, vZq, vRED, vOUT = 6, 7, 8, 9
def g2_main(p, name):
    DH = OPT["depth_h"]
    ACC = 64; FR = 32
    def ep_setup(p):
        srd(p, Q2_, P_Q, S * D * 2)
        srd(p, ZT2_, P_WS, SZ_ZT, WS_ZT); srd(p, ST2_, P_WS, SZ_ST, WS_ST); srd(p, B2_, P_B2, D * 2); srd(p, OUT_, P_OUT, S * D * 2)
    def ep_loads(p):
        p("v_lshrrev_b32 v10, 2, v1"); p("v_and_b32 v11, 3, v1")
        p("v_lshrrev_b32 v12, 2, v10"); p("v_xor_b32 v12, v12, v11")
        p("v_lshlrev_b32 v12, 4, v12"); p("v_lshl_add_u32 v13, v10, 10, v12")
        p("s_lshr_b32 s%d, s%d, 1" % (sT0, sW)); p("s_lshl_b32 s%d, s%d, 5" % (sT0, sT0)); p("s_add_u32 s%d, s%d, s%d" % (sT0, sT0, sTok))
        p("s_and_b32 s%d, s%d, 1" % (sT1, sW)); p("s_lshl_b32 s%d, s%d, 5" % (sT1, sT1)); p("s_add_u32 s%d, s%d, s%d" % (sT1, sT1, sCh))
        p("s_lshl_b32 s%d, s%d, 10" % (sXO, sT0)); p("s_lshl_b32 s%d, s%d, 1" % (sT2, sT1)); p("s_add_u32 s%d, s%d, s%d" % (sXO, sXO, sT2))
        p("s_lshl_b32 s%d, s%d, 11" % (sT3, sW))
        p("s_add_u32 m0, s%d, %d" % (sT3, XT))
        p("buffer_load_dwordx4 v13, s[%d:%d], s%d offen lds" % (Q2_, Q2_ + 3, sXO), "ep")
        p("s_add_u32 s7, s%d, 16384" % sXO)
        p("s_add_u32 m0, s%d, %d" % (sT3, XT + 1024))
        p("buffer_load_dwordx4 v13, s[%d:%d], s7 offen lds" % (Q2_, Q2_ + 3), "ep")
        p("s_lshl_b32 s%d, s%d, 4" % (sT0, sT0))
        p("v_and_b32 v14, 31, v1"); p("v_lshlrev_b32 v15, 4, v14")
        p("buffer_load_dwordx4 %s, v15, s[%d:%d], s%d offen sc1" % (vr(vST2, 4), ST2_, ST2_ + 3, sT0), "ep")
        p("v_lshrrev_b32 v15, 5, v1"); p("v_lshlrev_b32 v12, 5, v15")
        p("buffer_load_dwordx4 %s, v12, s[%d:%d], s%d offen" % (vr(vB2, 4), B2_, B2_ + 3, sT2), "ep")
        p("buffer_load_dwordx4 %s, v12, s[%d:%d], s%d offen offset:16" % (vr(vB2 + 4, 4), B2_, B2_ + 3, sT2), "ep")
        p("v_lshrrev_b32 v12, 2, v14"); p("v_and_b32 v12, 3, v12")
        p("v_lshlrev_b32 v15, 1, v15"); p("v_xor_b32 v15, v15, v12")
        p("v_lshlrev_b32 v15, 4, v15"); p("v_lshl_add_u32 v15, v14, 6, v15")
        p("v_add_u32 v15, s%d, v15" % sT3); p("v_add_u32 v%d, %d, v15" % (vXq, XT))
        p("v_lshrrev_b32 v15, 5, v1"); p("v_lshlrev_b32 v15, 5, v15"); p("v_lshl_add_u32 v%d, v14, 10, v15" % vOUT)
        p("v_add_u32 v%d, %d, v%d" % (vRED, RED, vH0))
    def z_loads(p):
        p("v_lshrrev_b32 v10, 2, v1"); p("v_and_b32 v11, 3, v1")
        p("v_lshlrev_b32 v12, 4, v11"); p("v_lshl_add_u32 v12, v10, 12, v12")
        p("s_and_b32 s%d, s%d, 1" % (sT1, sW)); p("s_lshl_b32 s%d, s%d, 5" % (sT1, sT1)); p("s_add_u32 s%d, s%d, s%d" % (sT1, sT1, sCh))
        p("s_lshl_b32 s%d, s%d, 12" % (sT0, sT1))
        p("s_lshr_b32 s%d, s%d, 1" % (sT1, sW)); p("s_lshl_b32 s%d, s%d, 5" % (sT1, sT1)); p("s_add_u32 s%d, s%d, s%d" % (sT1, sT1, sTok))
        p("s_lshl_b32 s%d, s%d, 1" % (sT1, sT1)); p("s_add_u32 s%d, s%d, s%d" % (sT0, sT0, sT1))
        p("buffer_load_dwordx4 %s, v12, s[%d:%d], s%d offen sc1" % (vr(128, 4), ZT2_, ZT2_ + 3, sT0), "z")
        p("s_add_u32 s%d, s%d, %d" % (sT0, sT0, 16 * 4096))
        p("buffer_load_dwordx4 %s, v12, s[%d:%d], s%d offen sc1" % (vr(132, 4), ZT2_, ZT2_ + 3, sT0), "z")
        p("v_lshrrev_b32 v12, 1, v10"); p("v_and_b32 v12, 3, v12"); p("v_xor_b32 v12, v12, v11")
        p("v_lshlrev_b32 v12, 4, v12"); p("v_lshl_add_u32 v12, v10, 6, v12")
        p("s_lshl_b32 s%d, s%d, 11" % (sT3, sW)); p("s_add_u32 s%d, s%d, %d" % (sT3, sT3, ZTT))
        p("v_add_u32 v%d, s%d, v12" % (vZq + 4, sT3))
        p("v_and_b32 v10, 15, v1"); p("v_lshrrev_b32 v12, 4, v1"); p("v_lshrrev_b32 v13, 1, v12"); p("v_and_b32 v12, 1, v12")
        p("v_lshrrev_b32 v14, 2, v10"); p("v_lshl_add_u32 v13, v13, 4, v14")
        p("v_and_b32 v15, 3, v10"); p("v_lshrrev_b32 v15, 1, v15"); p("v_lshl_add_u32 v15, v12, 1, v15")
        p("v_lshrrev_b32 v14, 1, v14"); p("v_xor_b32 v15, v15, v14")
        p("v_lshlrev_b32 v15, 4, v15"); p("v_lshl_add_u32 v15, v13, 6, v15")
        p("v_and_b32 v14, 1, v10"); p("v_lshl_add_u32 v15, v14, 3, v15")
        p("v_add_u32 v%d, s%d, v15" % (vZq, sT3))
        p("v_xor_b32 v5, 32, v%d" % vZq)
    def y_compute(p):
        XR_, ZR = 136, 164
        p("ds_write_b128 v%d, %s" % (vZq + 4, vr(128, 4))); p("ds_write_b128 v%d, %s offset:1024" % (vZq + 4, vr(132, 4)))
        p.wait_tag("ep")
        p("v_xor_b32 v10, 16, v%d" % vXq)
        p("ds_read_b128 %s, v%d" % (vr(XR_, 4), vXq)); p("ds_read_b128 %s, v10" % vr(XR_ + 4, 4))
        for m in range(4): p("ds_read_b64_tr_b16 %s, v%d offset:%d" % (vr(ZR + 2 * m, 2), vZq if m % 2 == 0 else 5, m * 256))
        mu, rs = vST2, vST2 + 1
        p("v_mul_f32 v%d, v%d, v%d" % (mu, mu, rs))
        for r_ in range(16):
            x, z, b = 48 + 3 * (r_ & 1), 49 + 3 * (r_ & 1), 50 + 3 * (r_ & 1)
            unpack(p, x, XR_ + (r_ >> 1), r_ & 1); unpack(p, z, ZR + (r_ >> 1), r_ & 1); unpack(p, b, vB2 + (r_ >> 1), r_ & 1)
            p("v_fma_f32 v%d, v%d, v%d, -v%d" % (vY + r_, x, rs, mu))
            p("v_add_f32 v%d, v%d, v%d" % (b, b, x))
            p("v_fma_f32 v%d, v%d, v%d, v%d" % (vY + r_, vY + r_, z, b))
    def reads(s): return [t for t, _ in tr_reads(s, FR + 8 * (s & 1), 'v')]
    def mfmas(s):
        slot = s % DH; out = []
        for cb in range(2):
            A = vr(FR + 8 * (s & 1) + 4 * cb, 4) if s < 12 else ar(STASH0 + 8 * (s - 12) + 4 * cb, 4)
            for tb in range(2):
                a = vr(ACC + 16 * (2 * tb + cb), 16)
                out.append("v_mfma_f32_32x32x16_bf16 %s, %s, %s, %s" % (a, A, ar(HB + 8 * slot + 4 * tb, 4), "0" if s == 0 else a))
        return out
    vFZ = 56
    def fz_issue(p):
        p("v_min_u32 v%d, 15, v1" % (vFZ + 2)); p("v_lshlrev_b32 v%d, 7, v%d" % (vFZ + 2, vFZ + 2))
        p("s_lshr_b32 s84, s%d, 6" % sCh); p("s_lshl_b32 s84, s84, 1"); p("s_and_b32 s83, s%d, 1" % sW); p("s_add_u32 s84, s84, s83")
        p("s_lshl_b32 s84, s84, 11"); p("s_add_u32 s84, s84, %d" % FL_FZ)
        poll_issue(p, vFZ, vFZ + 2, 84, "fz")
    def fz_check(p):
        p.wait_tag("fz"); poll_check(p, [vFZ], [vFZ + 2], [84])
    S_FZ, S_ZL, S_Y = OPT.get("s_fz", 14), OPT.get("s_zl", 20), OPT.get("s_y", 25)
    yl = rec(y_compute)
    third = (len(yl) + 2) // 3
    extras = {1: rec(ep_setup), 2: rec(ep_loads), S_FZ: rec(fz_issue), S_ZL: [(fz_check, None)] + rec(z_loads),
              S_Y: yl[:third], S_Y + 1: yl[third:2 * third], S_Y + 2: yl[2 * third:]}
    p.wait(lg=0)
    p("s_barrier")
    p.wait_tag("w0")
    for t in reads(0): p(t)
    for s in range(NS):
        if s + 1 < 12:
            p.wait_tag("w%d" % (s + 1))
            for t in reads(s + 1): p(t)
        if s in (0, 7, 13, 20): stamp(p, "g2_s%d" % s)
        mf = mfmas(s)
        hl = h_loads(s + DH) if s + DH < NS else []
        ex = extras.get(s, [])
        q4 = (len(ex) + 3) // 4
        for i in range(4):
            p(mf[i])
            if i == 2:
                for t in hl[0:1]: p(*t)
            if i == 3:
                for t in hl[1:3]: p(*t)
            emit(p, ex[i * q4:(i + 1) * q4])
        if s == DH:
            p.wait_tag("zst")
            z_publish(p, name)
    stamp(p, "g2_mma_done")

OUTPOL = ["", " sc1", " nt", " sc0 sc1"]
def g2_epilogue(p, name):
    ACC = 64
    st = side_path_begin(p)
    for w in range(4):
        if w < 3:
            p("s_cmp_eq_u32 s%d, %d" % (sW, w))
            p("s_cbranch_scc0 %s_rw%d" % (name, w + 1))
        side_path_end(p, st)
        p("s_nop 7"); p("s_nop 3")
        for rel in range(1, 4):
            q = w ^ rel
            for rq in range(4):
                p("ds_write_b128 v%d, %s offset:%d" % (vRED, vr(ACC + 16 * q + 4 * rq, 4), q * 12288 + (rel - 1) * 4096 + rq * 1024))
        for i in range(16): p("v_add_f32 v%d, v%d, v%d" % (vY + i, vY + i, ACC + 16 * w + i))
        if w < 3:
            p("s_branch %s_rwd" % name)
            p.label("%s_rw%d" % (name, w + 1))
    p.label("%s_rwd" % name)
    p("s_mul_i32 s%d, s%d, 12288" % (sT0, sW)); p("v_add_u32 v10, s%d, v%d" % (sT0, vRED))
    p.wait(lg=0)
    p("s_barrier")
    stamp(p, "g2_red_bar")
    for sl in range(3):
        for rq in range(4):
            p("ds_read_b128 %s, v10 offset:%d" % (vr(ACC + 16 * sl + 4 * rq, 4), sl * 4096 + rq * 1024))
    PK = 160
    for r_ in range(16):
        p("v_add_f32 v%d, v%d, v%d" % (ACC + r_, ACC + r_, ACC + 16 + r_))
        p("v_add_f32 v%d, v%d, v%d" % (vY + r_, vY + r_, ACC + 32 + r_))
    for r_ in range(16):
        p("v_add_f32 v%d, v%d, v%d" % (vY + r_, vY + r_, ACC + r_))
        if r_ & 1: p("v_cvt_pk_bf16_f32 v%d, v%d, v%d" % (PK + (r_ >> 1), vY + r_ - 1, vY + r_))
        if r_ == 7: p("buffer_store_dwordx4 %s, v%d, s[%d:%d], s%d offen%s" % (vr(PK, 4), vOUT, OUT_, OUT_ + 3, sXO, OUTPOL[OPT.get("outpol", 0)]))
    p("buffer_store_dwordx4 %s, v%d, s[%d:%d], s%d offen offset:16%s" % (vr(PK + 4, 4), vOUT, OUT_, OUT_ + 3, sXO, OUTPOL[OPT.get("outpol", 0)]))

def flat(l): return [x for y in l for x in y]
def gen(name):
    p = Prog()
    prof_reset()
    p("s_cmp_ge_u32 s2, 256")
    p("s_cbranch_scc1 %s_end" % name)
    stamp(p, "rt0", True); stamp(p, "t0")
    p("s_memrealtime s[90:91]")
    load_kernargs(p)
    p("v_and_b32 v1, 63, v0"); p("v_lshrrev_b32 v2, 6, v0")
    p("s_and_b32 s%d, s2, 7" % sJ); p("s_lshr_b32 s%d, s2, 3" % sR)
    p("v_readfirstlane_b32 s%d, v2" % sW)
    p("v_mov_b32 v253, 0")
    p("s_waitcnt lgkmcnt(0)")
    srd(p, 92, P_DBG, 256)
    p("s_lshl_b32 s%d, s2, 2" % sT0); p("s_add_u32 s78, s%d, s%d" % (sT0, sW))
    p("s_cmp_eq_u32 s78, %d" % (248 * 4))
    p("s_cbranch_scc0 %s_n0" % name)
    st = side_path_begin(p)
    p("v_mov_b32 v250, s90"); p("v_mov_b32 v251, 1")
    p("s_mov_b64 exec, 1")
    p("buffer_store_dwordx2 v[250:251], v253, s[92:95], 0 offen sc1")
    p("s_mov_b64 exec, -1")
    side_path_end(p, st)
    p.label("%s_n0" % name)
    stamp(p, "karg")
    KN = "parallel_sum__ssm_conv_h3__dense_activation_squared_relu__prompt_kernel"
    if OPT.get("codetouch", 0) & 1: code_touch(p, KN)
    p_loads(p)
    tile_indices(p)
    touches_g1(p)
    if OPT.get("codetouch", 0) & 2: code_touch(p, KN)
    after_loads = side_path_begin(p)
    p("s_cmp_ge_u32 s%d, 28" % sR)
    p("s_cbranch_scc1 %s_spare" % name)
    g1_dma_setup(p)
    for u in g1_dma_stage(0): emit(p, u)
    def common_srds(p):
        srd(p, FL_, P_WS, SZ_FLAG, WS_FLAG); srd(p, KVT_, P_WS, SZ_KVT, WS_KVT); srd(p, ST_, P_WS, SZ_ST, WS_ST); srd(p, CSP_, P_WS, SZ_CSP, WS_CSP)
    def b1_srd(p): srd(p, B1_, P_B1, F * 2)
    common_srds(p); b1_srd(p); g1_lds_setup(p); g2_setup(p)
    stamp(p, "issued")
    dm = g1_dma_stage(1) + g1_dma_stage(2)
    kv = rec(kv_compute)
    k = 0
    for i, it in enumerate(kv):
        emit(p, [it])
        while k < 16 and k * len(kv) < (i + 1) * 16: emit(p, dm[k]); k += 1
    while k < 16: emit(p, dm[k]); k += 1
    if OPT["touch"] == 2: touches_g1_late(p)
    stamp(p, "kv_done")
    none = lambda p: None
    lg0 = lambda p: p.wait(lg=0)
    def pre4(p):
        nonce_check(p); fk_publish(p, "g1")
    def b1_load(p):
        p("v_and_b32 v14, 127, v0"); p("v_lshlrev_b32 v14, 1, v14"); p("s_lshl_b32 s84, s%d, 8" % sFT)
        p("buffer_load_ushort v%d, v14, s[%d:%d], s84 offen" % (vB1, B1_, B1_ + 3), "tab")
    def tab_done(p):
        p.wait_tag("tab"); tab_check(p); tab_partial(p)
    def tab_final(p):
        p("v_and_b32 v10, 127, v0"); p("v_lshlrev_b32 v10, 2, v10"); p("v_add_u32 v11, %d, v10" % CSQ_LDS); p("v_add_u32 v10, %d, v10" % TAB_LDS)
        for i in range(4): p("ds_read_b32 v%d, v11 offset:%d" % (20 + i, i * 512))
        p("v_lshlrev_b32 v%d, 16, v%d" % (vB1, vB1))
        p("v_add_f32 v20, v20, v21"); p("v_add_f32 v22, v22, v23"); p("v_add_f32 v20, v20, v22")
        p("ds_write_b32 v10, v20"); p("ds_write_b32 v10, v%d offset:512" % vB1)
    def fk_issue(p):
        fk_addr(p, True); poll_issue(p, vPK, vPA, 85, "fk")
    def fk_check(p):
        p.wait_tag("fk"); poll_check(p, [vPK], [vPA], [85])
    A = [w2_dma(12 + i, i) for i in range(12)]
    def late(p_items): return [p_items]
    fill = {0: (lg0, none, rec(kv_stores) + rec(nonce_issue)),
            1: (none, none, rec(w2_touch) if OPT["w2touch"] == 1 else []),
            2: (none, none, rec(conv_setup)),
            3: (lambda p: p.wait_tag("nonce"), pre4, []),
            4: (none, none, []),
            5: (none, none, rec(tab_loads) + rec(b1_load) + flat(A[0:4])),
            6: (none, none, rec(fk_issue) + flat(A[4:6]) + [(tab_done, None)] + flat(A[6:8])),
            7: (lg0, none, rec(tab_final) + flat(A[8:10]) + [(fk_check, None)] + rec(conv_loads_regs) + flat(A[10:12]))}
    if OPT["w2touch"] == 6:
        np_ = OPT.get("ta_parts", 2); t0_ = OPT.get("ta_stage", 0); tb_ = OPT.get("tb_stage", 5)
        for i_ in range(np_):
            a_, b_, c_ = fill[t0_ + i_][:3]
            fill[t0_ + i_] = (a_, b_, c_, rec(w2_touch_a, i_, np_))
        a_, b_, c_ = fill[tb_][:3]
        fill[tb_] = (a_, b_, c_, (fill[tb_][3] if len(fill[tb_]) > 3 else []) + rec(w2_touch_b))
    elif OPT.get("plan", 1) == 2:
        ts = OPT.get("tstage", 5)
        fill[5] = (none, none, rec(tab_loads) + rec(b1_load) + rec(fk_issue))
        fill[6] = (none, none, [(tab_done, None)])
        fill[7] = (lg0, none, rec(tab_final) + [(fk_check, None)] + rec(conv_loads_regs))
        a_, b_, c_ = fill[ts]
        fill[ts] = (a_, b_, c_, rec(w2_touch))
    elif OPT["w2touch"] == 4:
        for st_ in range(7):
            a_, b_, c_ = fill[st_]
            fill[st_] = (a_, b_, c_, rec(w2_touch_part, st_))
    if OPT["w2touch"] == 5 and OPT.get("plan", 1) == 1:
        for st_, (k_, n_) in enumerate(((0, 32), (2, 32), (4, 48))):
            a_, b_, c_ = fill[st_]
            fill[st_] = (a_, b_, c_, rec(w2_touch_part, k_, n_))
    g1_main(p, fill)
    stamp(p, "g1_mfma_end")
    p.wait(lg=0)
    p("s_barrier")
    conv_loads_lds(p)
    stamp(p, "g1_mma_done")
    g1_epilogue(p, flat(A) if OPT.get('plan', 1) == 2 else [])
    p.wait_tag("cv")
    p.label("%s_cfill" % name)
    stamp(p, "g1_epi_done")
    g2_setup_tr(p)
    conv_fill(p)
    def c0(p): p.wait_tag("w17")
    def c1(p):
        p.wait_tag("hst"); p.wait_tag("w23")
        p("s_cmp_ge_u32 s%d, 28" % sR)
        p("s_cbranch_scc1 %s_nohp" % name)
        st = side_path_begin(p)
        h_publish(p)
        side_path_end(p, st)
        p.label("%s_nohp" % name)
        p.wait(lg=0)
        stamp(p, "h_pub")
    def c2(p): p.wait(lg=0)
    def c3(p): p.wait(lg=0); p.wait_tag("w27")
    f0 = flat([stash_reads(12 + i, i) for i in range(6)])
    f1 = interleave(flat([stash_reads(18 + i, 6 + i) for i in range(6)]), flat([w2_dma(24 + i, i) for i in range(4)] + [w2_dma(4 + i, 4 + i) for i in range(2)]), 0.5)
    f2 = flat([w2_dma(6 + i, 6 + i) for i in range(6)])
    f3 = flat([stash_reads(24 + i, i) for i in range(4)]) + rec(fh_poll_issue)
    conv_main(p, [(c0, f0), (c1, f1), (c2, f2), (c3, f3)])
    p.wait(lg=0)
    for u in flat([w2_dma(i, i) for i in range(4)]): emit(p, u)
    g2_h_start(p)
    conv_finish(p, name, [t for s_ in range(OPT.get("h_first", 2), OPT["depth_h"]) for t in h_loads(s_)])
    stamp(p, "conv_done")
    if OPT["htouch"] == 1: h_touch(p)
    z_stores(p)
    if OPT["htouch"] == 2: h_touch(p)
    g2_main(p, name)
    g2_epilogue(p, name)
    stamp(p, "end")
    if common.PROF: p.wait(vm=0)
    stamp(p, "end_acked"); stamp(p, "rt1", True)
    prof_flush(p, sW)
    p("s_endpgm")
    p.label("%s_spare" % name)
    side_path_end(p, after_loads)
    sp_loads(p)
    if OPT["touch"] == 2: touches_g1_late(p)
    common_srds(p)
    kv_compute(p, 192, 200)
    p.wait(lg=0)
    p("s_barrier")
    kv_stores(p)
    nonce_issue(p)
    sp_stats(p)
    p.wait_tag("nonce"); nonce_check(p)
    sp_stats_store(p)
    sp_cs(p)
    p.wait(lg=0)
    p.wait_tag("kst")
    p("s_barrier")
    fk_publish(p, "sp")
    sp_cs_store(p)
    p.wait(lg=0)
    p("s_barrier")
    g2_setup(p)
    if OPT["w2touch"] == 6: w2_touch_a(p, 0, 1); w2_touch_b(p)
    elif OPT["w2touch"]: w2_touch(p)
    for u in flat(A): emit(p, u)
    conv_setup(p)
    fk_addr(p, True)
    poll_issue(p, vPK, vPA, 85, "poll")
    p.wait(vm=0, lg=0)
    poll_check(p, [vPK], [vPA], [85])
    conv_loads_regs(p)
    conv_loads_lds(p)
    p.wait(vm=0)
    p("s_branch %s_cfill" % name)
    p.label("%s_end" % name)
    p("s_endpgm")
    return p.text(), 512, 256
```

```python
from common import *
import common
from fused import (sN, sJ, sR, sW, sT0, sT1, sT2, sT3, FL_, unpack, flag_store, poll_issue, poll_check,
                   side_path_begin, side_path_end, nonce_issue, nonce_check, _uid)
OPT = dict(touch=0, htouch=0, nt=0, ntkv=0, depth_h=6, w2touch=5, s_fz=17, s_zl=21)
def nt(): return " nt" if OPT["nt"] else ""
def ntkv(): return " nt" if (OPT["nt"] or OPT["ntkv"]) else ""

class Rec:
    def __init__(self): self.items = []; self.grp = None
    def __call__(self, txt, tag=None): (self.grp if self.grp is not None else self.items).append((txt, tag))
    def call(self, fn): (self.grp if self.grp is not None else self.items).append((fn, None))
    def wait(self, vm=None, lg=None): self.call(lambda p: p.wait(vm, lg))
    def wait_tag(self, tag): self.call(lambda p: p.wait_tag(tag))
    def begin(self): self.grp = []
    def end(self): self.items.append(self.grp); self.grp = None
def begin(p):
    if isinstance(p, Rec): p.begin()
def end(p):
    if isinstance(p, Rec): p.end()
def emit(p, items):
    for it in items:
        if isinstance(it, list): emit(p, it)
        elif callable(it[0]): it[0](p)
        else: p(it[0], it[1])
_srd0 = srd
def srd(p, dst, ptr, size, off=0):
    begin(p); _srd0(p, dst, ptr, size, off); end(p)
def rec(fn, *a):
    r = Rec(); fn(r, *a); return r.items

P_LDS, SK_LDS = 131072, 139264
TAB_LDS, CSQ_LDS = 157440, 158464
CV0 = 98304
RB_LDS = CV0 + 256 + 2 * 21248
XT, ZTT, RED = 98304, 106496, 114688
sROW, sRB, sFT = 72, 73, 74
sXo, sWo, sM = 80, 81, 82
sCH, sC2, sCB = 86, 87, 88
sTok, sCh, sHo = 89, 90, 91
sWA, sM2, sXO = 3, 17, 6
K_, V_, SK_, GQ_, GW1_ = 40, 44, 48, 52, 56
KVT_, ST_, CSP_ = 60, 64, 68

KR, VR, SKR, XR, CR = 16, 36, 44, 128, 136
vC, vRR = 3, 4
def p_addr(p):
    vA = 5
    p("v_and_b32 v11, 31, v1"); p("v_lshlrev_b32 v11, 4, v11")
    p("v_and_b32 v%d, 7, v1" % vC); p("v_lshrrev_b32 v%d, 3, v1" % vRR)
    p("s_lshl_b32 s%d, s%d, 6" % (sT0, sR)); p("s_lshl_b32 s%d, s%d, 4" % (sT1, sW))
    p("s_add_u32 s%d, s%d, s%d" % (sT0, sT0, sT1)); p("s_lshl_b32 s%d, s%d, 10" % (sT0, sT0))
    p("s_lshl_b32 s%d, s%d, 7" % (sT1, sJ)); p("s_add_u32 s%d, s%d, s%d" % (sT0, sT0, sT1))
    p("v_lshlrev_b32 v%d, 11, v%d" % (vA, vRR)); p("v_lshl_add_u32 v%d, v%d, 4, v%d" % (vA, vC, vA))
    p("v_add_u32 v%d, s%d, v%d" % (vA, sT0, vA))
    for i in range(5): p("v_add_u32 v%d, %d, v%d" % (6 + i, (i - 3) * 1024, vA))
    p("s_lshl_b32 s%d, s%d, 9" % (sT3, sJ))
def p_loads(p):
    vA = 5
    srd(p, K_, P_K, S * D * 2)
    for i in range(5): p("buffer_load_dwordx4 %s, v%d, s[%d:%d], 0 offen%s" % (vr(KR + 4 * i, 4), 6 + i, K_, K_ + 3, ntkv()))
    srd(p, V_, P_V, S * D * 2)
    p("buffer_load_dwordx4 %s, v%d, s[%d:%d], 0 offen%s" % (vr(VR, 4), vA, V_, V_ + 3, ntkv()))
    p("buffer_load_dwordx4 %s, v%d, s[%d:%d], 0 offen offset:1024%s" % (vr(VR + 4, 4), vA, V_, V_ + 3, ntkv()))
    srd(p, SK_, P_SK, D * 8)
    p("buffer_load_dwordx4 %s, v11, s[%d:%d], s%d offen" % (vr(SKR, 4), SK_, SK_ + 3, sT3))

def tile_srds(p):
    srd(p, GQ_, P_Q, S * D * 2); srd(p, GW1_, P_W1, D * F * 2)
def tile_indices(p):
    p("s_mul_i32 s%d, s%d, 37" % (sT0, sR)); p("s_lshr_b32 s%d, s%d, 8" % (sT0, sT0))
    p("s_mul_i32 s%d, s%d, 7" % (sT1, sT0)); p("s_sub_u32 s%d, s%d, s%d" % (sT1, sR, sT1))
    p("s_lshr_b32 s%d, s%d, 1" % (sT2, sJ)); p("s_lshl_b32 s%d, s%d, 2" % (sT2, sT2))
    p("s_add_u32 s%d, s%d, s%d" % (sRB, sT2, sT0))
    p("s_and_b32 s%d, s%d, 1" % (sT2, sJ)); p("s_mul_i32 s%d, s%d, 7" % (sT2, sT2))
    p("s_add_u32 s%d, s%d, s%d" % (sFT, sT2, sT1))

def touches_g1(p):
    if OPT["touch"] != 1: return
    p("s_lshl_b32 s%d, s%d, 2" % (sT2, sR)); p("s_add_u32 s%d, s%d, s%d" % (sT2, sT2, sW))
    p("v_lshlrev_b32 v9, 7, v1")
    p("s_lshr_b32 s%d, s%d, 1" % (sT0, sJ)); p("s_lshl_b32 s%d, s%d, 19" % (sT0, sT0))
    p("s_lshl_b32 s%d, s%d, 12" % (sT1, sT2)); p("s_add_u32 s%d, s%d, s%d" % (sT0, sT0, sT1))
    p("s_mov_b32 exec_hi, 0")
    p("buffer_load_dword v188, v9, s[%d:%d], s%d offen%s" % (GQ_, GQ_ + 3, sT0, nt()), "touch")
    p("s_mov_b64 exec, -1")
    p("v_mul_u32_u24 v10, 4682, v1"); p("v_lshrrev_b32 v10, 16, v10")
    p("v_mul_u32_u24 v11, 14, v10"); p("v_sub_u32 v11, v1, v11")
    p("v_mul_u32_u24 v10, 3584, v10"); p("v_lshl_add_u32 v10, v11, 7, v10")
    p("s_mul_i32 s%d, s%d, %d" % (sT0, sT2, 4 * 3584)); p("s_and_b32 s%d, s%d, 1" % (sT1, sJ))
    p("s_mul_i32 s%d, s%d, 1792" % (sT1, sT1)); p("s_add_u32 s%d, s%d, s%d" % (sT0, sT0, sT1))
    p("s_mov_b32 exec_hi, 0x00ffffff")
    p("buffer_load_dword v189, v10, s[%d:%d], s%d offen%s" % (GW1_, GW1_ + 3, sT0, nt()), "touch")
    p("s_mov_b64 exec, -1")

def touches_g1_late(p):
    p("s_lshl_b32 s83, s%d, 2" % sR); p("s_add_u32 s83, s83, s%d" % sW)
    p("v_mul_u32_u24 v8, 13108, v1"); p("v_lshrrev_b32 v8, 16, v8")
    p("v_mul_u32_u24 v9, 5, v8"); p("v_sub_u32 v9, v1, v9"); p("v_add_u32 v9, 3, v9")
    p("v_lshlrev_b32 v8, 10, v8"); p("v_lshl_add_u32 v8, v9, 7, v8")
    p("s_lshr_b32 s84, s%d, 1" % sJ); p("s_lshl_b32 s84, s84, 19"); p("s_lshl_b32 s75, s83, 12"); p("s_add_u32 s84, s84, s75")
    begin(p)
    p("s_mov_b64 exec, 0xfffff")
    p("buffer_load_dword v188, v8, s[%d:%d], s84 offen" % (GQ_, GQ_ + 3), "touch")
    p("s_mov_b64 exec, -1")
    end(p)
    p("s_mul_i32 s83, s83, 35"); p("v_add_u32 v8, s83, v1")
    p("v_mul_u32_u24 v9, 4682, v8"); p("v_lshrrev_b32 v9, 16, v9")
    p("v_mul_u32_u24 v10, 14, v9"); p("v_sub_u32 v10, v8, v10")
    p("v_add_u32 v9, 192, v9"); p("v_mul_u32_u24 v9, 3584, v9"); p("v_lshl_add_u32 v9, v10, 7, v9")
    p("s_and_b32 s84, s%d, 1" % sJ); p("s_mul_i32 s84, s84, 1792")
    begin(p)
    p("s_mov_b32 exec_hi, 0x7")
    p("buffer_load_dword v189, v9, s[%d:%d], s84 offen" % (GW1_, GW1_ + 3), "touch")
    p("s_mov_b64 exec, -1")
    end(p)
assert all((L * 4682) >> 16 == L // 14 for L in range(0, 1200)), "check"
def w2_touch(p):
    p("v_lshlrev_b32 v9, 7, v1")
    p("s_lshl_b32 s83, s%d, 2" % sR); p("s_add_u32 s83, s83, s%d" % sW); p("s_mul_i32 s83, s83, 14336")
    p("buffer_load_dword v190, v9, s[8:11], s83 offen", "touch2")
    p("s_add_u32 s83, s83, 8192")
    begin(p)
    p("s_mov_b32 exec_hi, 0xffff")
    p("buffer_load_dword v191, v9, s[8:11], s83 offen", "touch2")
    p("s_mov_b64 exec, -1")
    end(p)

def ssm_touch(p):
    p("v_lshlrev_b32 v9, 7, v1")
    p("s_lshl_b32 s83, s%d, 6" % sJ); p("s_lshl_b32 s84, s%d, 1" % sR); p("s_add_u32 s83, s83, s84"); p("s_lshl_b32 s83, s83, 12")
    p("s_lshl_b32 s84, s%d, 11" % sW); p("s_add_u32 s83, s83, s84")
    begin(p)
    p("s_mov_b64 exec, 0xffff")
    p("buffer_load_dword v191, v9, s[%d:%d], s83 offen%s" % (SSM_, SSM_ + 3, ntkv()), "touch4")
    p("s_mov_b64 exec, -1")
    end(p)
def w2_touch_part(p, k, n=16):
    p("v_lshlrev_b32 v9, 7, v1")
    p("s_lshl_b32 s83, s%d, 2" % sR); p("s_add_u32 s83, s83, s%d" % sW); p("s_mul_i32 s83, s83, 14336")
    if k: p("s_add_u32 s83, s83, %d" % (k * 16 * 128))
    begin(p)
    p("s_mov_b64 exec, 0x%x" % ((1 << n) - 1)) if n <= 16 else (p("s_mov_b32 exec_lo, 0x%x" % (((1 << min(n, 32)) - 1) & 0xffffffff)), p("s_mov_b32 exec_hi, 0x%x" % ((1 << max(n - 32, 0)) - 1)))
    p("buffer_load_dword v%d, v9, s[8:11], s83 offen%s" % ((186, 187, 190, 191)[k & 3], " nt" if OPT.get("ntw2") else ""), "touch2")
    p("s_mov_b64 exec, -1")
    end(p)
def w2_touch_a(p, part, nparts):
    n = 48 // nparts
    p("s_lshl_b32 s83, s%d, 2" % sR); p("s_add_u32 s83, s83, s%d" % sW)
    p("s_lshr_b32 s84, s83, 5"); p("s_mul_i32 s84, s84, 448"); p("s_and_b32 s83, s83, 31"); p("s_mul_i32 s83, s83, 6")
    p("s_add_u32 s83, s83, s84"); p("s_add_u32 s83, s83, 192"); p("s_lshl_b32 s83, s83, 10")
    if part: p("s_add_u32 s83, s83, %d" % (part * n * 128))
    p("v_lshlrev_b32 v9, 7, v1")
    begin(p)
    if n <= 32: p("s_mov_b64 exec, 0x%x" % ((1 << n) - 1)) if n <= 16 else (p("s_mov_b32 exec_lo, 0x%x" % ((1 << n) - 1)), p("s_mov_b32 exec_hi, 0"))
    else: p("s_mov_b32 exec_hi, 0x%x" % ((1 << (n - 32)) - 1))
    p("buffer_load_dword v%d, v9, s[8:11], s83 offen" % (186 + (part & 1)), "touch2")
    p("s_mov_b64 exec, -1")
    end(p)
def w2_touch_b(p):
    p("s_lshl_b32 s83, s%d, 2" % sR); p("s_add_u32 s83, s83, s%d" % sW)
    p("s_lshr_b32 s84, s83, 5"); p("s_mul_i32 s84, s84, 448"); p("s_and_b32 s83, s83, 31")
    begin(p); p("s_cmp_ge_u32 s83, 24"); p("s_cselect_b32 s75, 192, 0"); end(p)
    p("s_lshl_b32 s83, s83, 3"); p("s_add_u32 s83, s83, s75"); p("s_add_u32 s83, s83, s84"); p("s_lshl_b32 s83, s83, 10")
    p("v_lshlrev_b32 v9, 7, v1")
    p("buffer_load_dword v190, v9, s[8:11], s83 offen", "touch2")
def code_touch(p, kname):
    _uid[0] += 1; u = _uid[0]
    begin(p)
    p("s_getpc_b64 s[76:77]")
    p("Lct%d:" % u)
    p("s_sub_u32 s76, s76, Lct%d-%s" % (u, kname))
    p("s_subb_u32 s77, s77, 0")
    end(p)
    p("s_lshl_b32 s83, s%d, 2" % sR); p("s_add_u32 s83, s83, s%d" % sW)
    p("v_lshlrev_b32 v8, 7, v1"); p("v_add_u32 v8, s83, v8")
    p("v_lshlrev_b32 v8, 7, v8")
    p("v_min_u32 v8, %s_end-%s-4, v8" % (kname_end[0], kname))
    begin(p)
    p("v_mov_b32 v9, s77"); p("v_add_co_u32 v8, vcc, s76, v8"); p("s_nop 1"); p("v_addc_co_u32 v9, vcc, 0, v9, vcc")
    p("s_mov_b64 exec, 7")
    p("global_load_dword v186, v[8:9], off", "codet")
    p("s_mov_b64 exec, -1")
    end(p)
kname_end = ["fz"]

vKL, vKG0, vKG1 = 24, 25, 26
def kv_compute(p, RES=100, A=108):
    p("s_lshl_b32 s%d, s%d, 9" % (sT0, sW)); p("s_add_u32 s%d, s%d, %d" % (sT0, sT0, SK_LDS))
    p("v_and_b32 v11, 31, v1"); p("v_lshlrev_b32 v11, 4, v11"); p("v_add_u32 v11, s%d, v11" % sT0)
    p("v_lshlrev_b32 v2, 6, v%d" % vC); p("v_add_u32 v2, s%d, v2" % sT0)
    p("ds_write_b128 v11, %s" % vr(SKR, 4))
    p("s_lshl_b32 s%d, s%d, 3" % (sT0, sW)); p("s_sub_u32 s%d, 31, s%d" % (sT0, sT0))
    p("v_sub_u32 v15, s%d, v%d" % (sT0, vRR))
    p("v_lshrrev_b32 v6, 2, v15"); p("v_xor_b32 v6, v6, v%d" % vC)
    p("v_and_b32 v15, 3, v15"); p("v_lshlrev_b32 v15, 2, v15")
    p("v_lshl_add_u32 v15, v6, 4, v15"); p("v_lshl_add_u32 v15, v%d, 10, v15" % vC)
    p("v_add_u32 v15, %d, v15" % P_LDS)
    p.wait(lg=0)
    for i in range(4): p("ds_read_b128 %s, v2 offset:%d" % (vr(SKR + 4 * i, 4), 16 * i))
    p("s_mov_b32 s76, 0x05040100"); p("s_mov_b32 s77, 0x07060302")
    for e in range(8 if not OPT.get("x_nokv") else 1):
        dw, hf = e >> 1, e & 1
        sel = 76 + hf
        K = lambda i: KR + 4 * i + dw
        a = A + 8 * (e & 1)
        p("v_perm_b32 v%d, v%d, v%d, s%d" % (a + 0, K(2), K(3), sel))
        p("v_perm_b32 v%d, v%d, v%d, s%d" % (a + 1, K(0), K(1), sel))
        p("v_perm_b32 v%d, v%d, v%d, s%d" % (a + 2, K(3), K(4), sel))
        p("v_perm_b32 v%d, v%d, v%d, s%d" % (a + 3, K(1), K(2), sel))
        p("v_dot2_f32_bf16 v%d, v%d, v%d, 0" % (a + 4, a + 0, SKR + 2 * e))
        p("v_dot2_f32_bf16 v%d, v%d, v%d, 0" % (a + 5, a + 2, SKR + 2 * e))
        unpack(p, a + 6, VR + dw, hf); unpack(p, a + 7, VR + 4 + dw, hf)
        p("v_dot2_f32_bf16 v%d, v%d, v%d, v%d" % (a + 4, a + 1, SKR + 2 * e + 1, a + 4))
        p("v_dot2_f32_bf16 v%d, v%d, v%d, v%d" % (a + 5, a + 3, SKR + 2 * e + 1, a + 5))
        if e > 0:
            b = A + 8 * ((e - 1) & 1)
            p("v_mul_f32 v%d, v%d, v%d" % (b + 4, b + 4, b + 6)); p("v_mul_f32 v%d, v%d, v%d" % (b + 5, b + 5, b + 7))
            p("v_cvt_pk_bf16_f32 v%d, v%d, v%d" % (RES + e - 1, b + 5, b + 4))
            p("ds_write_b32 v15, v%d offset:%d" % (RES + e - 1, (e - 1) * 128))
    b = A + 8
    p("s_lshl_b32 s%d, s%d, 4" % (sT0, sW)); p("v_add_u32 v6, s%d, v%d" % (sT0, vRR))
    p("v_mul_f32 v%d, v%d, v%d" % (b + 4, b + 4, b + 6)); p("v_mul_f32 v%d, v%d, v%d" % (b + 5, b + 5, b + 7))
    p("v_cvt_pk_bf16_f32 v%d, v%d, v%d" % (RES + 7, b + 5, b + 4))
    p("ds_write_b32 v15, v%d offset:%d" % (RES + 7, 7 * 128))
    p("v_lshlrev_b32 v7, 7, v6"); p("v_lshl_add_u32 v7, v%d, 4, v7" % vC); p("v_add_u32 v%d, %d, v7" % (vKL, P_LDS))
    p("v_lshlrev_b32 v8, 12, v6"); p("s_lshl_b32 s%d, s%d, 1" % (sT1, sW))
    p("v_xor_b32 v9, s%d, v%d" % (sT1, vC)); p("v_lshl_add_u32 v%d, v9, 4, v8" % vKG0)
    p("s_add_u32 s%d, s%d, 1" % (sT1, sT1))
    p("v_xor_b32 v10, s%d, v%d" % (sT1, vC)); p("v_lshl_add_u32 v10, v10, 4, v8"); p("v_add_u32 v%d, 0x8000, v10" % vKG1)
def kv_stores(p):
    p("ds_read_b128 v[16:19], v%d" % vKL); p("ds_read_b128 v[20:23], v%d offset:1024" % vKL)
    p("s_lshl_b32 s83, s%d, 18" % sJ); p("s_lshl_b32 s84, s%d, 7" % sR)
    p("s_sub_u32 s83, s83, s84"); p("s_add_u32 s83, s83, 3968")
    p("buffer_store_dwordx4 v[16:19], v%d, s[%d:%d], s83 offen sc1" % (vKG0, KVT_, KVT_ + 3), "kst")
    p("buffer_store_dwordx4 v[20:23], v%d, s[%d:%d], s83 offen sc1" % (vKG1, KVT_, KVT_ + 3), "kst")

SX, SC_ = 128, 64
def sp_loads(p):
    p("s_sub_u32 s72, s%d, 28" % sR)
    p("s_lshr_b32 s%d, s%d, 1" % (sT0, sJ)); p("s_lshl_b32 s%d, s%d, 9" % (sT0, sT0))
    p("s_and_b32 s%d, s%d, 1" % (sT1, sJ)); p("s_lshl_b32 s%d, s%d, 2" % (sT1, sT1)); p("s_add_u32 s%d, s%d, s72" % (sT1, sT1))
    p("s_lshl_b32 s%d, s%d, 6" % (sT1, sT1)); p("s_add_u32 s%d, s%d, s%d" % (sT0, sT0, sT1))
    p("s_lshl_b32 s%d, s%d, 4" % (sT1, sW)); p("s_add_u32 s73, s%d, s%d" % (sT0, sT1))
    p("s_lshl_b32 s%d, s73, 10" % sT0)
    p("v_lshrrev_b32 v10, 3, v1"); p("v_and_b32 v11, 7, v1"); p("v_lshlrev_b32 v11, 4, v11"); p("v_lshl_add_u32 v10, v10, 10, v11")
    for g in range(2):
        for i in range(8):
            p("buffer_load_dwordx4 %s, v10, s[%d:%d], s%d offen offset:%d" % (vr(SX + 32 * g + 4 * i, 4), GQ_, GQ_ + 3, sT0, i * 128), "sx")
        if g == 0: p("s_add_u32 s%d, s%d, 8192" % (sT0, sT0))
    p("s_lshr_b32 s74, s%d, 1" % sJ); p("s_lshl_b32 s74, s74, 2"); p("s_add_u32 s74, s74, s72")
    p("s_lshl_b32 s%d, s74, 5" % sT0); p("s_lshl_b32 s%d, s%d, 3" % (sT1, sW)); p("s_add_u32 s%d, s%d, s%d" % (sT0, sT0, sT1))
    p("s_mul_i32 s%d, s%d, 3584" % (sT0, sT0)); p("s_and_b32 s%d, s%d, 1" % (sT1, sJ)); p("s_mul_i32 s%d, s%d, 1792" % (sT1, sT1))
    p("s_add_u32 s%d, s%d, s%d" % (sT0, sT0, sT1))
    p("v_lshlrev_b32 v12, 4, v1")
    for i in range(8):
        p("buffer_load_dwordx4 %s, v12, s[%d:%d], s%d offen" % (vr(SC_ + 8 * i, 4), GW1_, GW1_ + 3, sT0), "sc")
        p("buffer_load_dwordx4 %s, v12, s[%d:%d], s%d offen offset:1024" % (vr(SC_ + 8 * i + 4, 4), GW1_, GW1_ + 3, sT0), "sc")
        if i < 7: p("s_add_u32 s%d, s%d, 3584" % (sT0, sT0))
def sp_stats(p):
    T = 200
    p("s_mov_b32 s75, 0x3f803f80")
    for g in range(2):
        for h in range(2): p("v_mov_b32 v%d, 0" % (T + 4 * g + h)); p("v_mov_b32 v%d, 0" % (T + 8 + 2 * g + h))
    for i in range(8):
        for g in range(2):
            for d in range(4):
                r_ = SX + 32 * g + 4 * i + d
                aS, aQ = (T + 4 * g, T + 4 * g + 1) if d & 1 else (T + 8 + 2 * g, T + 9 + 2 * g)
                p("v_dot2_f32_bf16 v%d, v%d, s75, v%d" % (aS, r_, aS)); p("v_dot2_f32_bf16 v%d, v%d, v%d, v%d" % (aQ, r_, r_, aQ))
    for g in range(2):
        p("v_add_f32 v%d, v%d, v%d" % (T + 4 * g, T + 4 * g, T + 8 + 2 * g)); p("v_add_f32 v%d, v%d, v%d" % (T + 4 * g + 1, T + 4 * g + 1, T + 9 + 2 * g))
    for ctrl in ("quad_perm:[1,0,3,2] row_mask:0xf", "quad_perm:[2,3,0,1] row_mask:0xf", "row_half_mirror row_mask:0xf"):
        for q in (T, T + 1, T + 4, T + 5):
            p("v_add_f32_dpp v%d, v%d, v%d %s bank_mask:0xf" % (q, q, q, ctrl))
    for g in range(2):
        sS, sQ = T + 4 * g, T + 4 * g + 1
        p("v_mul_f32 v%d, 0x3b000000, v%d" % (sS, sS)); p("v_mul_f32 v%d, 0x3b000000, v%d" % (sQ, sQ))
    for g in range(2): p("v_fma_f32 v%d, -v%d, v%d, v%d" % (T + 4 * g + 1, T + 4 * g, T + 4 * g, T + 4 * g + 1))
    for g in range(2): p("v_max_f32 v%d, 0, v%d" % (T + 4 * g + 1, T + 4 * g + 1))
    for g in range(2): p("v_add_f32 v%d, 0x3727c5ac, v%d" % (T + 4 * g + 1, T + 4 * g + 1))
    for g in range(2): p("v_rsq_f32 v%d, v%d" % (T + 4 * g + 1, T + 4 * g + 1))
def sp_stats_store(p):
    T = 200
    for q in (T + 2, T + 3, T + 6, T + 7): p("v_mov_b32 v%d, s%d" % (q, sN))
    p("v_lshrrev_b32 v10, 3, v1"); p("v_lshlrev_b32 v10, 4, v10")
    p("s_lshl_b32 s%d, s73, 4" % sT0)
    p("s_mov_b32 exec_lo, 0x01010101"); p("s_mov_b32 exec_hi, 0x01010101")
    p("buffer_store_dwordx4 %s, v10, s[%d:%d], s%d offen sc1" % (vr(T, 4), ST_, ST_ + 3, sT0), "pst")
    p("buffer_store_dwordx4 %s, v10, s[%d:%d], s%d offen offset:128 sc1" % (vr(T + 4, 4), ST_, ST_ + 3, sT0), "pst")
    p("s_mov_b64 exec, -1")
SPC_LDS = 0
def sp_cs(p):
    A = 216
    p("s_mov_b32 s76, 0x00003f80"); p("s_mov_b32 s77, 0x3f800000")
    for i in range(8):
        for part in range(2):
            for d in range(4):
                r_ = SC_ + 8 * i + 4 * part + d; a = A + 8 * part + 2 * d
                p("v_dot2_f32_bf16 v%d, v%d, s76, %s" % (a, r_, "0" if i == 0 else "v%d" % a))
                p("v_dot2_f32_bf16 v%d, v%d, s77, %s" % (a + 1, r_, "0" if i == 0 else "v%d" % (a + 1)))
    p("v_lshlrev_b32 v10, 5, v1"); p("s_lshl_b32 s%d, s%d, 12" % (sT0, sW)); p("v_add_u32 v10, s%d, v10" % sT0)
    for part in range(2):
        p("ds_write_b128 v10, %s offset:%d" % (vr(A + 8 * part, 4), SPC_LDS + part * 2048))
        p("ds_write_b128 v10, %s offset:%d" % (vr(A + 8 * part + 4, 4), SPC_LDS + part * 2048 + 16))
def sp_cs_store(p):
    p("v_lshlrev_b32 v10, 4, v0")
    for w in range(4): p("ds_read_b128 %s, v10 offset:%d" % (vr(64 + 4 * w, 4), SPC_LDS + w * 4096))
    for c in range(4):
        p("v_add_f32 v%d, v%d, v%d" % (64 + c, 64 + c, 68 + c)); p("v_add_f32 v%d, v%d, v%d" % (72 + c, 72 + c, 76 + c))
    for c in range(4): p("v_add_f32 v%d, v%d, v%d" % (80 + 2 * c, 64 + c, 72 + c)); p("v_mov_b32 v%d, s%d" % (81 + 2 * c, sN))
    p("s_mul_i32 s%d, s74, %d" % (sT0, 1792 * 8)); p("s_and_b32 s%d, s%d, 1" % (sT1, sJ)); p("s_mul_i32 s%d, s%d, %d" % (sT1, sT1, 896 * 8))
    p("s_add_u32 s%d, s%d, s%d" % (sT0, sT0, sT1))
    p("v_lshlrev_b32 v11, 5, v0")
    p("v_cmp_gt_u32 vcc, 224, v0"); p("s_nop 1"); p("v_cndmask_b32 v11, v253, v11, vcc"); p("v_mov_b32 v12, 0x7f000000")
    p("v_cndmask_b32 v11, v12, v11, vcc")
    p("buffer_store_dwordx4 v[80:83], v11, s[%d:%d], s%d offen sc1" % (CSP_, CSP_ + 3, sT0), "pst")
    p("buffer_store_dwordx4 v[84:87], v11, s[%d:%d], s%d offen offset:16 sc1" % (CSP_, CSP_ + 3, sT0), "pst")
def fk_publish(p, name):
    p("s_cmp_eq_u32 s%d, 0" % sW)
    p("s_cbranch_scc0 %s_nofk" % name)
    st = side_path_begin(p)
    p("s_lshl_b32 s%d, s%d, 5" % (sT0, sJ)); p("s_add_u32 s%d, s%d, s%d" % (sT0, sT0, sR))
    p("s_lshl_b32 s%d, s%d, 7" % (sT0, sT0))
    if FL_FK: p("s_add_u32 s%d, s%d, %d" % (sT0, sT0, FL_FK))
    flag_store(p, sT0)
    side_path_end(p, st)
    p.label("%s_nofk" % name)
vPK, vPA = 184, 185
def fk_addr(p, all_waves=False):
    p("v_min_u32 v%d, 31, v1" % vPA); p("v_lshlrev_b32 v%d, 7, v%d" % (vPA, vPA))
    if not all_waves:
        p("s_min_u32 s85, s%d, 1" % sW); p("s_sub_u32 s85, 1, s85"); p("v_mul_u32_u24 v%d, s85, v%d" % (vPA, vPA))
    p("s_lshl_b32 s85, s%d, 12" % sJ)
    if FL_FK: p("s_add_u32 s85, s85, %d" % FL_FK)

vX, vWd, vXA, vWA = 192, 196, 200, 208
G1_ACC = 64
vCS, vB1, vST = 128, 180, 212
B1_ = 40
def g1_dma_setup(p):
    p("v_lshrrev_b32 v10, 3, v1"); p("v_and_b32 v11, 7, v1"); p("v_lshrrev_b32 v12, 1, v10")
    for ii in range(4):
        p("v_add_u32 v13, %d, v12" % (4 * (ii & 1))); p("v_xor_b32 v13, v13, v11")
        p("v_lshlrev_b32 v13, 4, v13"); p("v_lshl_add_u32 v13, v10, 10, v13")
        p("v_add_u32 v%d, %d, v13" % (vX + ii, ii * 8192 - ii * 1024))
    p("v_lshrrev_b32 v10, 4, v1"); p("v_and_b32 v11, 15, v1"); p("v_lshlrev_b32 v12, 2, v10")
    p("v_xor_b32 v12, v12, v11"); p("v_lshlrev_b32 v12, 4, v12")
    p("v_mul_u32_u24 v13, 3584, v10"); p("v_add_u32 v13, v13, v12")
    for ii in range(4): p("v_add_u32 v%d, %d, v13" % (vWd + ii, ii * 4 * 3584 - ii * 1024))
    p("s_lshl_b32 s%d, s%d, 17" % (sXo, sRB)); p("s_lshl_b32 s%d, s%d, 15" % (sT0, sW))
    p("s_add_u32 s%d, s%d, s%d" % (sXo, sXo, sT0))
    p("s_mul_i32 s%d, s%d, %d" % (sWo, sW, 16 * 3584)); p("s_lshl_b32 s%d, s%d, 8" % (sT0, sFT))
    p("s_add_u32 s%d, s%d, s%d" % (sWo, sWo, sT0))
    p("s_lshl_b32 s%d, s%d, 12" % (sM, sW))
def g1_dma_stage(s):
    out = []; slot = s % 4
    for ii in range(4):
        u = [("s_add_u32 m0, s%d, %d" % (sM, slot * 32768), None)] if ii == 0 else []
        out.append(u + [("buffer_load_dwordx4 v%d, s[%d:%d], s%d offen offset:%d lds" % (vX + ii, GQ_, GQ_ + 3, sXo, ii * 1024), "st%d" % s)])
    for ii in range(4):
        u = [("s_add_u32 m0, s%d, %d" % (sM, slot * 32768 + 16384), None)] if ii == 0 else []
        out.append(u + [("buffer_load_dwordx4 v%d, s[%d:%d], s%d offen offset:%d lds" % (vWd + ii, GW1_, GW1_ + 3, sWo, ii * 1024), "st%d" % s)])
    out[-1] += [("s_add_u32 s%d, s%d, 128" % (sXo, sXo), None), ("s_add_u32 s%d, s%d, %d" % (sWo, sWo, 64 * 3584), None)]
    return out
def g1_lds_setup(p):
    p("v_and_b32 v10, 31, v1"); p("v_lshrrev_b32 v11, 5, v1")
    p("v_lshrrev_b32 v12, 1, v10"); p("v_and_b32 v12, 7, v12"); p("v_xor_b32 v12, v12, v11")
    p("s_lshr_b32 s%d, s%d, 1" % (sT1, sW)); p("s_lshl_b32 s%d, s%d, 13" % (sT1, sT1))
    p("v_lshlrev_b32 v13, 7, v10"); p("v_add_u32 v13, s%d, v13" % sT1)
    for jj in range(4):
        p("v_xor_b32 v14, %d, v12" % (2 * jj))
        p("v_lshl_add_u32 v%d, v14, 4, v13" % (vXA + jj))
        p("v_add_u32 v%d, 0x10000, v%d" % (vXA + 4 + jj, vXA + jj))
    p("v_and_b32 v10, 15, v1"); p("v_lshrrev_b32 v11, 4, v1"); p("v_lshrrev_b32 v12, 1, v11")
    p("v_and_b32 v11, 1, v11"); p("v_lshrrev_b32 v13, 2, v10")
    p("v_lshl_add_u32 v12, v12, 3, v13"); p("v_lshlrev_b32 v12, 8, v12")
    p("v_and_b32 v14, 1, v10"); p("v_lshl_add_u32 v12, v14, 3, v12"); p("v_add_u32 v12, 16384, v12")
    p("v_and_b32 v14, 3, v10"); p("v_lshrrev_b32 v14, 1, v14"); p("v_lshl_add_u32 v14, v11, 1, v14")
    p("s_and_b32 s%d, s%d, 1" % (sT1, sW)); p("s_lshl_b32 s%d, s%d, 3" % (sT1, sT1))
    p("v_add_u32 v14, s%d, v14" % sT1); p("v_lshlrev_b32 v13, 2, v13")
    for fb in range(2):
        p("v_add_u32 v15, %d, v14" % (4 * fb)); p("v_xor_b32 v15, v15, v13")
        p("v_lshl_add_u32 v%d, v15, 4, v12" % (vWA + fb))
        p("v_add_u32 v%d, 0x10000, v%d" % (vWA + 2 + fb, vWA + fb))

def tab_loads(p):
    p("v_lshlrev_b32 v10, 4, v1")
    p("s_lshl_b32 s83, s%d, 2" % sW); p("s_mul_i32 s83, s83, %d" % (1792 * 8)); p("s_lshl_b32 s84, s%d, 10" % sFT); p("s_add_u32 s83, s83, s84")
    for i in range(4):
        p("buffer_load_dwordx4 %s, v10, s[%d:%d], s83 offen sc1" % (vr(vCS + 4 * i, 4), CSP_, CSP_ + 3), "tab")
        if i < 3: p("s_add_u32 s83, s83, %d" % (1792 * 8))
    p("s_lshr_b32 s84, s%d, 1" % sW); p("s_lshl_b32 s84, s84, 6")
    p("s_lshl_b32 s83, s%d, 7" % sRB); p("s_add_u32 s83, s83, s84"); p("s_lshl_b32 s83, s83, 4")
    p("v_and_b32 v12, 31, v1"); p("v_lshlrev_b32 v12, 4, v12")
    p("buffer_load_dwordx4 %s, v12, s[%d:%d], s83 offen sc1" % (vr(vST, 4), ST_, ST_ + 3), "tab")
    p("buffer_load_dwordx4 %s, v12, s[%d:%d], s83 offen offset:512 sc1" % (vr(vST + 4, 4), ST_, ST_ + 3), "tab")
def tab_check(p):
    _uid[0] += 1; u = _uid[0]
    def cmp():
        tags = [vCS + 4 * i + 1 for i in range(4)] + [vCS + 4 * i + 3 for i in range(4)] + [vST + 2, vST + 6]
        p("v_min3_u32 v10, v%d, v%d, v%d" % tuple(tags[0:3])); p("v_max3_u32 v11, v%d, v%d, v%d" % tuple(tags[0:3]))
        for i in range(3, 9, 2):
            p("v_min3_u32 v10, v10, v%d, v%d" % (tags[i], tags[i + 1])); p("v_max3_u32 v11, v11, v%d, v%d" % (tags[i], tags[i + 1]))
        p("v_min_u32 v10, v10, v%d" % tags[9]); p("v_max_u32 v11, v11, v%d" % tags[9])
        p("v_cmp_ne_u32 vcc, s%d, v10" % sN); p("v_cmp_ne_u32 s[76:77], s%d, v11" % sN)
        p("s_or_b64 vcc, vcc, s[76:77]"); p("s_nop 4")
    cmp()
    p("s_cbranch_vccz Lt%d_ok" % u)
    saved = (list(p.vm), list(p.lg))
    p("s_mov_b32 s79, 0")
    p.label("Lt%d_loop" % u)
    p("s_sleep 2")
    tab_loads(p)
    p.wait(vm=0)
    cmp()
    p("s_cbranch_vccz Lt%d_ok" % u)
    p("s_add_u32 s79, s79, 1"); p("s_cmp_lt_u32 s79, 0x40000"); p("s_cbranch_scc1 Lt%d_loop" % u)
    p.label("Lt%d_ok" % u)
    p.vm, p.lg = saved
def tab_partial(p):
    p("v_add_f32 v%d, v%d, v%d" % (vCS, vCS, vCS + 4)); p("v_add_f32 v%d, v%d, v%d" % (vCS + 2, vCS + 2, vCS + 6))
    p("v_add_f32 v%d, v%d, v%d" % (vCS + 8, vCS + 8, vCS + 12)); p("v_add_f32 v%d, v%d, v%d" % (vCS + 10, vCS + 10, vCS + 14))
    p("v_add_f32 v%d, v%d, v%d" % (vCS, vCS, vCS + 8)); p("v_add_f32 v%d, v%d, v%d" % (vCS + 1, vCS + 2, vCS + 10))
    p("v_lshlrev_b32 v10, 3, v1"); p("s_lshl_b32 s83, s%d, 9" % sW); p("v_add_u32 v10, s83, v10"); p("v_add_u32 v10, %d, v10" % CSQ_LDS)
    p("ds_write_b64 v10, %s" % vr(vCS, 2))

def g1_main(p, fill):
    ACC = G1_ACC; FR = 32
    def reads(g):
        s, jj = g // 4, g % 4
        slot = s % 4; hi = slot >= 2; so = (slot & 1) * 32768
        f = FR + 16 * (g & 1); out = []
        for fb in range(2):
            for rr in range(2):
                out.append("ds_read_b64_tr_b16 %s, v%d offset:%d" % (vr(f + 4 * fb + 2 * rr, 2), vWA + fb + (2 if hi else 0), so + jj * 4096 + rr * 1024))
        for tb in range(2):
            out.append("ds_read_b128 %s, v%d offset:%d" % (vr(f + 8 + 4 * tb, 4), vXA + jj + (4 if hi else 0), so + tb * 4096))
        return out
    def mfmas(g):
        f = FR + 16 * (g & 1); out = []
        for fb in range(2):
            for tb in range(2):
                a = ACC + 16 * (2 * fb + tb)
                out.append("v_mfma_f32_32x32x16_bf16 %s, %s, %s, %s" % (vr(a, 16), vr(f + 4 * fb, 4), vr(f + 8 + 4 * tb, 4), "0" if g == 0 else vr(a, 16)))
        return out
    for s in range(8):
        prewait, pre, units = fill[s][:3]
        tail = fill[s][3] if len(fill[s]) > 3 else []
        p.wait_tag("st%d" % s)
        prewait(p)
        p("s_barrier")
        stamp(p, "g1_st%d" % s)
        pre(p)
        dm = g1_dma_stage(s + 3) if (s + 3 < 8 and s >= 1) else []
        if s == 0: dm = g1_dma_stage(3)
        nm = 16 if s > 0 else 12
        di = ui = k = 0
        for jj in range(4):
            g = 4 * s + jj
            rd = reads(g)
            if g == 0:
                for t in rd: p(t)
                continue
            rm = OPT.get("rdmode", 0)
            if rm == 1:
                for r_ in rd: p(r_)
            for q, t in enumerate(mfmas(g - 1)):
                if not (OPT.get("x_nog1") and q >= 2): p(t)
                if rm == 0:
                    for r_ in rd[2 * q:2 * q + 2]: p(r_)
                if rm == 2:
                    for r_ in rd[3 * q:3 * q + 3]: p(r_)
                if rm == 3 and q == 0:
                    for r_ in rd: p(r_)
                k += 1
                while di < len(dm) and di * nm < k * len(dm):
                    emit(p, dm[di]); di += 1
                while ui < len(units) and ui * nm < k * len(units):
                    emit(p, [units[ui]]); ui += 1
        while di < len(dm): emit(p, dm[di]); di += 1
        while ui < len(units): emit(p, [units[ui]]); ui += 1
        emit(p, tail)
    for t in mfmas(31): p(t)

def g1_epilogue(p, extra):
    HF_ = 44
    srd(p, HF_, P_WS, SZ_HF, WS_HF)
    ACC = G1_ACC; TBL = 128
    p("v_lshrrev_b32 v10, 5, v1"); p("v_lshlrev_b32 v10, 4, v10")
    p("s_and_b32 s%d, s%d, 1" % (sT1, sW)); p("s_lshl_b32 s%d, s%d, 8" % (sT1, sT1))
    p("v_add_u32 v10, s%d, v10" % sT1); p("v_add_u32 v10, %d, v10" % TAB_LDS)
    for rq in range(4):
        p("ds_read_b128 %s, v10 offset:%d" % (vr(TBL + 4 * rq, 4), rq * 32))
        p("ds_read_b128 %s, v10 offset:%d" % (vr(TBL + 16 + 4 * rq, 4), 512 + rq * 32))
    p("s_lshr_b32 s%d, s%d, 1" % (sT1, sW)); p("s_lshl_b32 s%d, s%d, 1" % (sT1, sT1))
    p("s_lshl_b32 s%d, s%d, 2" % (sT0, sRB)); p("s_add_u32 s%d, s%d, s%d" % (sT0, sT0, sT1))
    p("s_mul_i32 s%d, s%d, 112" % (sT0, sT0)); p("s_lshl_b32 s%d, s%d, 3" % (sT1, sFT))
    p("s_add_u32 s%d, s%d, s%d" % (sT0, sT0, sT1))
    p("s_and_b32 s%d, s%d, 1" % (sT1, sW)); p("s_lshl_b32 s%d, s%d, 2" % (sT1, sT1))
    p("s_add_u32 s%d, s%d, s%d" % (sT0, sT0, sT1)); p("s_lshl_b32 s83, s%d, 10" % sT0)
    p("v_lshlrev_b32 v11, 4, v1"); p("v_add_u32 v12, %d, v11" % (112 * 1024))
    for tb in range(2): p("v_mul_f32 v%d, v%d, v%d" % (vST + 4 * tb, vST + 4 * tb, vST + 4 * tb + 1))
    main = []
    TB2 = 32
    for fb in range(2):
        tbl = TBL if fb == 0 else TB2
        for tb in range(2):
            a = ACC + 16 * (2 * fb + tb); mu = vST + 4 * tb
            PK = 160 + 8 * tb
            if fb == 0 and tb == 0:
                for rq in range(4):
                    main.append(("ds_read_b128 %s, v10 offset:%d" % (vr(TB2 + 4 * rq, 4), 128 + rq * 32), None))
                    main.append(("ds_read_b128 %s, v10 offset:%d" % (vr(TB2 + 16 + 4 * rq, 4), 512 + 128 + rq * 32), None))
            for r_ in range(0, 16 if not OPT.get("x_noepi") else 4, 4):
                t0, t1 = 176, 178
                for t, rr in ((t0, r_), (t1, r_ + 2)):
                    main.append(("v_pk_fma_f32 %s, %s, %s, %s op_sel_hi:[0,1,1] neg_lo:[1,0,0] neg_hi:[1,0,0]" % (vr(t, 2), vr(mu, 2), vr(tbl + rr, 2), vr(tbl + 16 + rr, 2)), None))
                for t, rr in ((t0, r_), (t1, r_ + 2)):
                    main.append(("v_pk_fma_f32 %s, %s, %s, %s op_sel:[0,1,0] op_sel_hi:[1,1,1]" % (vr(t, 2), vr(a + rr, 2), vr(mu, 2), vr(t, 2)), None))
                for t in (t0, t0 + 1, t1, t1 + 1): main.append(("v_max_f32 v%d, 0, v%d" % (t, t), None))
                for t in (t0, t1): main.append(("v_pk_mul_f32 %s, %s, %s" % (vr(t, 2), vr(t, 2), vr(t, 2)), None))
                for t, rr in ((t0, r_), (t1, r_ + 2)): main.append(("v_cvt_pk_bf16_f32 v%d, v%d, v%d" % (PK + (rr >> 1), t, t + 1), None))
            for q in range(2):
                main.append(("buffer_store_dwordx4 %s, v%d, s[%d:%d], s83 offen offset:%d sc1" % (vr(PK + 4 * q, 4), 11 + tb, HF_, HF_ + 3, (2 * fb + q) * 1024), "hst"))
    n = len(extra); k = 0
    i0 = int(len(main) * OPT.get("epi_start", 30) / 100.0)
    for i, it in enumerate(main):
        emit(p, [it])
        while i >= i0 and k < n and k * (len(main) - i0) < (i + 1 - i0) * n:
            emit(p, [extra[k]]); k += 1

def h_publish(p):
    p("s_lshl_b32 s%d, s%d, 1" % (sT0, sRB)); p("s_lshr_b32 s%d, s%d, 1" % (sT1, sW))
    p("s_add_u32 s%d, s%d, s%d" % (sT0, sT0, sT1)); p("s_mul_i32 s%d, s%d, 28" % (sT0, sT0))
    p("s_lshl_b32 s%d, s%d, 1" % (sT1, sFT)); p("s_add_u32 s%d, s%d, s%d" % (sT0, sT0, sT1))
    p("s_and_b32 s%d, s%d, 1" % (sT1, sW)); p("s_add_u32 s%d, s%d, s%d" % (sT0, sT0, sT1))
    p("s_lshl_b32 s%d, s%d, 7" % (sT0, sT0)); p("s_add_u32 s%d, s%d, %d" % (sT0, sT0, FL_FH))
    flag_store(p, sT0)

KVT2_, SSM_, DD_, ZT_ = 48, 44, 60, 60
CV_R, vDD = 220, 254
def conv_setup(p):
    srd(p, KVT2_, P_WS, SZ_KVT, WS_KVT); srd(p, SSM_, P_SSM, D * S * 2); srd(p, DD_, P_DD, D * 2)
    p("s_lshr_b32 s%d, s%d, 1" % (sT0, sW)); p("s_and_b32 s%d, s%d, 1" % (sC2, sW))
    p("s_lshl_b32 s%d, s%d, 6" % (sCH, sJ)); p("s_lshl_b32 s%d, s%d, 1" % (sT1, sR))
    p("s_add_u32 s%d, s%d, s%d" % (sCH, sCH, sT1)); p("s_add_u32 s%d, s%d, s%d" % (sCH, sCH, sT0))
    p("s_mul_i32 s%d, s%d, 21248" % (sCB, sT0)); p("s_add_u32 s%d, s%d, %d" % (sCB, sCB, CV0 + 256))
def conv_loads_regs(p):
    p("s_lshl_b32 s83, s%d, 12" % sCH); p("s_lshl_b32 s84, s%d, 11" % sC2); p("s_add_u32 s83, s83, s84")
    p("v_lshlrev_b32 v2, 4, v1")
    R = CV_R
    for sg in range(2):
        for k in range(3):
            p("buffer_load_dwordx4 %s, v2, s[%d:%d], s83 offen offset:%d sc1" % (vr(R + 12 * sg + 4 * k, 4), KVT2_, KVT2_ + 3, sg * 1024 + 4 * k), "cv")
    p("v_mov_b32 v4, 0"); p("s_lshl_b32 s84, s%d, 1" % sCH)
    p("buffer_load_ushort v%d, v4, s[%d:%d], s84 offen" % (vDD, DD_, DD_ + 3), "cv")
def conv_loads_lds(p):
    p("s_lshl_b32 s%d, s%d, 12" % (sT0, sCH)); p("s_lshl_b32 s%d, s%d, 11" % (sT1, sC2))
    p("s_add_u32 s%d, s%d, s%d" % (sT0, sT0, sT1))
    p("v_lshlrev_b32 v2, 4, v1")
    for sg in range(2):
        p("s_add_u32 s%d, s%d, s%d" % (sT2, sCB, sT1))
        p("s_add_u32 m0, s%d, %d" % (sT2, 16640 + 512 + sg * 1024))
        p("s_add_u32 s%d, s%d, %d" % (sT2, sT0, sg * 1024))
        p("buffer_load_dwordx4 v2, s[%d:%d], s%d offen lds" % (SSM_, SSM_ + 3, sT2), "cv")
    for i in range(4): p("v_mov_b32 v%d, 0" % (16 + i))
    p("v_lshrrev_b32 v5, 1, v1"); p("v_mul_u32_u24 v5, 4160, v5")
    p("v_and_b32 v6, 1, v1"); p("v_lshl_add_u32 v5, v6, 4, v5"); p("v_add_u32 v5, 4096, v5")
    p("v_add_u32 v6, 16640, v2")
    p("s_cmp_eq_u32 s%d, 0" % sC2)
    p("s_cselect_b32 s76, 0xff, -1")
    p("s_cselect_b64 vcc, -1, 0")
    p("v_cndmask_b32 v5, v6, v5, vcc")
    p("v_add_u32 v5, s%d, v5" % sCB)
    p("s_mov_b32 exec_lo, s76"); p("s_mov_b32 exec_hi, 0")
    p("ds_write_b128 v5, v[16:19]")
    p("s_mov_b64 exec, -1")

def conv_fill(p):
    R = CV_R
    p("v_mov_b32 v13, %d" % ZCNT_LDS); p("ds_write_b32 v13, v253")
    p("v_lshlrev_b32 v2, 4, v1"); p("v_mov_b32 v8, 0")
    p("s_lshl_b32 s77, s%d, 31" % sC2); p("s_mov_b32 s76, 0")
    last = R + 12
    for rg in (last + 7, last + 10, last + 11): p("v_cndmask_b32 v%d, v%d, v8, s[76:77]" % (rg, rg))
    p("s_lshl_b32 s%d, s%d, 11" % (sT1, sC2)); p("s_add_u32 s%d, s%d, s%d" % (sT1, sT1, sCB))
    p("v_add_u32 v5, s%d, v2" % sT1)
    for sg in range(2):
        r0, r1, r2 = R + 12 * sg, R + 12 * sg + 4, R + 12 * sg + 8
        c1, c3 = 16 + 8 * sg, 20 + 8 * sg
        p("ds_write_b128 v5, %s offset:%d" % (vr(r0, 4), sg * 1024))
        for i in range(4): p("v_alignbit_b32 v%d, v%d, v%d, 16" % (c1 + i, r1 + i, r0 + i))
        p("ds_write_b128 v5, %s offset:%d" % (vr(r1, 4), 2 * 4160 + sg * 1024))
        for i in range(4): p("v_alignbit_b32 v%d, v%d, v%d, 16" % (c3 + i, r2 + i, r1 + i))
        p("ds_write_b128 v5, %s offset:%d" % (vr(c1, 4), 4160 + sg * 1024))
        p("ds_write_b128 v5, %s offset:%d" % (vr(c3, 4), 3 * 4160 + sg * 1024))

def conv_main(p, extra_by_class):
    vA, vB = 12, 13
    p("v_and_b32 v6, 15, v1"); p("v_lshrrev_b32 v7, 4, v1")
    p("v_sub_u32 v14, 3, v6"); p("v_and_b32 v14, 3, v14")
    p("v_mul_u32_u24 v15, 4158, v14")
    p("v_lshlrev_b32 v14, 1, v6"); p("v_sub_u32 v15, v15, v14"); p("v_lshl_add_u32 v15, v7, 4, v15")
    p("s_lshl_b32 s%d, s%d, 8" % (sT1, sC2)); p("s_sub_u32 s%d, s%d, s%d" % (sT1, sCB, sT1))
    p("s_add_u32 s%d, s%d, 30" % (sT2, sT1)); p("v_add_u32 v%d, s%d, v15" % (vA, sT2))
    p("v_lshlrev_b32 v15, 5, v6"); p("v_lshl_add_u32 v15, v7, 4, v15")
    p("s_add_u32 s%d, s%d, %d" % (sT2, sT1, 16640 + 32)); p("v_add_u32 v%d, s%d, v15" % (vB, sT2))
    ACC = 64
    p.wait(lg=0)
    p("s_barrier")
    stamp(p, "conv_filled")
    FA, FB = 96, 160
    def reads(rl):
        st = rl & 1; out = []
        for x in range(8):
            oa = 64 * (63 - rl - 8 * x)
            out.append(("ds_read_b64 %s, v%d offset:%d" % (vr(FA + 32 * st + 4 * x, 2), vA, oa), None))
            out.append(("ds_read_b64 %s, v%d offset:%d" % (vr(FA + 32 * st + 4 * x + 2, 2), vA, oa + 8), None))
            out.append(("ds_read_b128 %s, v%d offset:%d" % (vr(FB + 32 * st + 4 * x, 4), vB, 64 * (7 - rl + 8 * x)), None))
        return out
    seen = set()
    def mf(rl):
        st = rl & 1; out = []
        pairs = sorted([(a, b) for a in range(8) for b in range(8) if a + b <= 7], key=lambda ab: (max(ab), ab))
        for a, b in pairs:
            c = vr(ACC + 4 * (a + b), 4)
            first = (a + b) not in seen; seen.add(a + b)
            out.append(("v_mfma_f32_16x16x32_bf16 %s, %s, %s, %s" % (c, vr(FA + 32 * st + 4 * a, 4), vr(FB + 32 * st + 4 * b, 4), "0" if first else c), None))
        return out
    for t in reads(0): p(*t)
    for rl in range(4):
        pre, fill = extra_by_class[rl]
        pre(p)
        nxt = (reads(rl + 1) if rl < 3 else [])
        m = mf(rl)
        if OPT.get("x_noconv"): m = m[:4]
        ni = fi = 0
        for i, t in enumerate(m):
            p(*t)
            while ni < len(nxt) and ni * 30 < (i + 1) * len(nxt): p(*nxt[ni]); ni += 1
            while fi < len(fill) and fi * 36 < (i + 1) * len(fill): emit(p, [fill[fi]]); fi += 1
    stamp(p, "conv_mma_done")

def conv_finish(p, name, extra):
    ACC = 64
    if not OPT.get("fin_pre", 1): conv_finish_addr(p)
    for q in range(4): p("ds_read_b64 %s, v16 offset:%d" % (vr(36 + 2 * q, 2), (3 - q) * 512))
    n1 = len(extra) // 2
    conv_finish_rest(p, name, extra, n1)
def conv_finish_addr(p):
    RB = RB_LDS
    srd(p, ZT_, P_WS, SZ_ZT, WS_ZT)
    p("v_lshlrev_b32 v2, 4, v1")
    p("s_lshl_b32 s%d, s%d, 12" % (sT1, sW))
    p("v_add_u32 v5, s%d, v2" % sT1); p("v_add_u32 v5, %d, v5" % RB)
    p("s_xor_b32 s%d, s%d, 1" % (sT1, sW)); p("s_lshl_b32 s%d, s%d, 12" % (sT1, sT1))
    p("v_add_u32 v14, s%d, v2" % sT1); p("v_add_u32 v14, %d, v14" % RB)
    p("v_lshlrev_b32 v15, 5, v6"); p("v_lshl_add_u32 v15, v7, 3, v15")
    p("s_lshl_b32 s%d, s%d, 11" % (sT1, sC2)); p("s_sub_u32 s%d, s%d, s%d" % (sT2, sCB, sT1))
    p("s_add_u32 s%d, s%d, %d" % (sT2, sT2, 4088 - 1536)); p("v_sub_u32 v16, s%d, v15" % sT2)
    p("s_lshl_b32 s84, s%d, 12" % sCH); p("s_add_u32 s84, s84, s%d" % sT1)
    p("v_lshlrev_b32 v%d, 16, v%d" % (vDD, vDD))
def conv_finish_rest(p, name, extra, n1):
    ACC = 64
    emit(p, extra[:n1])
    st = side_path_begin(p); hist = len(p.out)
    p("s_cmp_eq_u32 s%d, 0" % sC2)
    p("s_cbranch_scc0 %s_hi" % name)
    for variant in range(2):
        keep = ACC + 16 * variant; give = ACC + 16 * (1 - variant)
        if variant == 1:
            p("s_branch %s_cdone" % name)
            p.label("%s_hi" % name)
            side_path_end(p, st)
            p("s_nop 7")
        for q in range(4): p("ds_write_b128 v5, %s offset:%d" % (vr(give + 4 * q, 4), q * 1024))
        for q in range(4):
            a_ = keep + 4 * q; u = 36 + 2 * q
            for c, (src, hf) in enumerate(((u + 1, 1), (u + 1, 0), (u, 1), (u, 0))):
                unpack(p, 44 + (c & 1), src, hf)
                p("v_fmac_f32 v%d, v%d, v%d" % (a_ + c, 44 + (c & 1), vDD))
        p.wait(lg=0)
        p("s_barrier")
        for q in range(4): p("ds_read_b128 %s, v14 offset:%d" % (vr(20 + 4 * q, 4), q * 1024))
        for q in range(4):
            a_ = keep + 4 * q
            for c in range(4): p("v_add_f32 v%d, v%d, v%d" % (a_ + c, a_ + c, 20 + 4 * q + c))
            p("v_cvt_pk_bf16_f32 v%d, v%d, v%d" % (48 + 2 * q, a_, a_ + 1))
            p("v_cvt_pk_bf16_f32 v%d, v%d, v%d" % (49 + 2 * q, a_ + 2, a_ + 3))
    p.label("%s_cdone" % name)
    emit(p, extra[n1:])
def z_stores(p):
    for q in range(4):
        p("buffer_store_dwordx2 %s, v15, s[%d:%d], s84 offen offset:%d sc1" % (vr(48 + 2 * q, 2), ZT_, ZT_ + 3, q * 512), "zst")
ZCNT_LDS = 163832
def z_publish(p, name):
    p("v_mov_b32 v10, %d" % ZCNT_LDS); p("v_mov_b32 v11, 1")
    p("s_mov_b64 exec, 1")
    p("ds_add_rtn_u32 v11, v10, v11")
    p("s_mov_b64 exec, -1")
    p.wait(lg=0)
    p("v_readfirstlane_b32 s%d, v11" % sT0)
    p("s_cmp_eq_u32 s%d, 3" % sT0)
    p("s_cbranch_scc0 %s_nozp" % name)
    st = side_path_begin(p)
    p("s_lshl_b32 s%d, s%d, 5" % (sT0, sJ)); p("s_add_u32 s%d, s%d, s%d" % (sT0, sT0, sR))
    p("s_lshl_b32 s%d, s%d, 7" % (sT0, sT0)); p("s_add_u32 s%d, s%d, %d" % (sT0, sT0, FL_FZ))
    flag_store(p, sT0)
    side_path_end(p, st)
    p.label("%s_nozp" % name)

HF2_, W2_, Q2_, ZT2_, ST2_, B2_, OUT_ = 40, 8, 48, 52, 56, 64, 44
vH0, vH1, vD0, vD1 = 244, 245, 246, 247
vFH, vFHA = 248, 249
vTRA = 60
sWS = 75
NS = 28
STASH0 = 0
HB = 128
def g2_srd(p):
    srd(p, W2_, P_W2, F * D * 2)
    p("s_lshl_b32 s%d, s%d, 11" % (sM2, sW))
def g2_setup(p):
    p("s_lshl_b32 s%d, s%d, 8" % (sTok, sJ))
    p("s_lshr_b32 s%d, s%d, 3" % (sT0, sR)); p("s_lshl_b32 s%d, s%d, 6" % (sT0, sT0))
    p("s_add_u32 s%d, s%d, s%d" % (sTok, sTok, sT0))
    p("s_add_u32 s%d, s%d, %d" % (sCh, sR, OPT.get("cbrot", 0))); p("s_and_b32 s%d, s%d, 7" % (sCh, sCh)); p("s_lshl_b32 s%d, s%d, 6" % (sCh, sCh))
    p("s_lshr_b32 s%d, s%d, 5" % (sT0, sTok)); p("s_mul_i32 s%d, s%d, 112" % (sT0, sT0))
    p("s_mul_i32 s%d, s%d, 28" % (sT1, sW))
    p("s_add_u32 s%d, s%d, s%d" % (sT0, sT0, sT1)); p("s_lshl_b32 s%d, s%d, 10" % (sHo, sT0))
    p("s_lshl_b32 s%d, s%d, 14" % (sWA, sT1)); p("s_lshl_b32 s%d, s%d, 1" % (sT0, sCh))
    p("s_add_u32 s%d, s%d, s%d" % (sWA, sWA, sT0))
    p("v_lshlrev_b32 v%d, 4, v1" % vH0)
    p("v_add_u32 v%d, %d, v%d" % (vH1, 112 * 1024, vH0))
    p("v_lshrrev_b32 v10, 3, v1"); p("v_and_b32 v11, 7, v1")
    p("v_lshrrev_b32 v12, 1, v10"); p("v_and_b32 v12, 1, v12"); p("v_lshlrev_b32 v12, 2, v12")
    p("v_xor_b32 v12, v12, v11"); p("v_lshlrev_b32 v12, 4, v12")
    p("v_lshl_add_u32 v%d, v10, 10, v12" % vD0)
    p("v_add_u32 v%d, %d, v%d" % (vD1, 8192 - 1024, vD0))
def g2_setup_tr(p):
    p("v_and_b32 v10, 15, v1"); p("v_lshrrev_b32 v11, 4, v1"); p("v_lshrrev_b32 v12, 1, v11"); p("v_and_b32 v11, 1, v11")
    p("v_lshrrev_b32 v13, 2, v10"); p("v_lshl_add_u32 v12, v12, 2, v13"); p("v_lshlrev_b32 v12, 7, v12")
    p("v_and_b32 v14, 3, v10"); p("v_lshrrev_b32 v15, 1, v14"); p("v_lshl_add_u32 v12, v15, 3, v12")
    p("v_and_b32 v14, 1, v14"); p("v_lshl_add_u32 v14, v14, 1, v11")
    p("v_lshrrev_b32 v15, 3, v10"); p("v_lshlrev_b32 v15, 2, v15")
    p("v_add_u32 v12, s%d, v12" % sM2)
    for cb in range(2):
        p("v_add_u32 v13, %d, v14" % (4 * cb)); p("v_xor_b32 v13, v13, v15")
        p("v_lshl_add_u32 v%d, v13, 4, v12" % (vTRA + cb))
        p("v_add_u32 v%d, 0x10000, v%d" % (vTRA + 2 + cb, vTRA + cb))
def w2_dma(step, slot):
    tag = "w%d" % step
    if OPT.get("x_now2") == 1 or (OPT.get("x_now2") == 2 and (step < 12 or step >= 24)): return [[("s_nop 0", None)]]
    return [[("s_add_u32 m0, s%d, %d" % (sM2, slot * 8192), None),
             ("s_add_u32 s%d, s%d, %d" % (sWS, sWA, step * 16384), None),
             ("buffer_load_dwordx4 v%d, s[%d:%d], s%d offen lds" % (vD0, W2_, W2_ + 3, sWS), tag),
             ("buffer_load_dwordx4 v%d, s[%d:%d], s%d offen offset:1024 lds" % (vD1, W2_, W2_ + 3, sWS), tag)]]
def tr_reads(slot, dst, kind):
    out = []
    for cb in range(2):
        for rr in range(2):
            hi = slot >= 8
            out.append(("ds_read_b64_tr_b16 %s, v%d offset:%d" % (vr(dst + 4 * cb + 2 * rr, 2, kind), vTRA + cb + (2 if hi else 0), (slot - 8 * hi) * 8192 + rr * 1024), None))
    return out
def stash_reads(step, slot): return tr_reads(slot, STASH0 + 8 * (step - 12), 'a')
def h_loads(s):
    slot = s % OPT["depth_h"]
    return [("buffer_load_dwordx4 %s, v%d, s[%d:%d], s%d offen sc1" % (ar(HB + 8 * slot, 4), vH0, HF2_, HF2_ + 3, sHo), "h%d" % s),
            ("buffer_load_dwordx4 %s, v%d, s[%d:%d], s%d offen sc1" % (ar(HB + 8 * slot + 4, 4), vH1, HF2_, HF2_ + 3, sHo), "h%d" % s),
            ("s_add_u32 s%d, s%d, 1024" % (sHo, sHo), None)]
def fh_poll_issue(p):
    p("v_min_u32 v%d, 6, v1" % vFHA); p("v_lshlrev_b32 v%d, 7, v%d" % (vFHA, vFHA))
    p("s_lshr_b32 s83, s%d, 6" % sTok); p("s_mul_i32 s83, s83, 28"); p("s_mul_i32 s%d, s%d, 7" % (sT0, sW)); p("s_add_u32 s83, s83, s%d" % sT0)
    p("s_lshl_b32 s83, s83, 7"); p("s_add_u32 s83, s83, %d" % FL_FH)
    poll_issue(p, vFH, vFHA, 83, "fh")
def g2_h_start(p):
    DH = OPT["depth_h"]
    srd(p, HF2_, P_WS, SZ_HF, WS_HF)
    p.wait_tag("fh")
    poll_check(p, [vFH], [vFHA], [83])
    stamp(p, "g2_h_ready")
    for s in range(OPT.get("h_first", 2)):
        for t in h_loads(s): p(*t)
def h_touch(p):
    DH = OPT["depth_h"]
    n = (NS - DH) * 16 // 8
    p("s_and_b32 s%d, s%d, 7" % (sT0, sR)); p("s_mul_i32 s%d, s%d, %d" % (sT0, sT0, n))
    p("v_add_u32 v10, s%d, v1" % sT0)
    p("v_lshrrev_b32 v11, 4, v10"); p("v_and_b32 v12, 7, v10"); p("v_lshlrev_b32 v12, 7, v12")
    p("v_lshl_add_u32 v12, v11, 10, v12")
    p("v_bfe_u32 v11, v10, 3, 1"); p("v_mul_u32_u24 v11, %d, v11" % (112 * 1024)); p("v_add_u32 v12, v12, v11")
    if n > 32: p("s_mov_b32 exec_hi, 0x%x" % ((1 << (n - 32)) - 1))
    else: p("s_mov_b64 exec, 0x%x" % ((1 << n) - 1))
    p("buffer_load_dword v59, v12, s[%d:%d], s%d offen sc1" % (HF2_, HF2_ + 3, sHo), "touch3")
    p("s_mov_b64 exec, -1")

vST2, vB2 = 16, 20
vY, vOWN = 144, 176
vXq, vZq, vRED, vOUT = 6, 7, 8, 9
def g2_main(p, name):
    DH = OPT["depth_h"]
    ACC = 64; FR = 32
    def ep_setup(p):
        srd(p, Q2_, P_Q, S * D * 2)
        srd(p, ZT2_, P_WS, SZ_ZT, WS_ZT); srd(p, ST2_, P_WS, SZ_ST, WS_ST); srd(p, B2_, P_B2, D * 2); srd(p, OUT_, P_OUT, S * D * 2)
    def ep_loads(p):
        p("v_lshrrev_b32 v10, 2, v1"); p("v_and_b32 v11, 3, v1")
        p("v_lshrrev_b32 v12, 2, v10"); p("v_xor_b32 v12, v12, v11")
        p("v_lshlrev_b32 v12, 4, v12"); p("v_lshl_add_u32 v13, v10, 10, v12")
        p("s_lshr_b32 s%d, s%d, 1" % (sT0, sW)); p("s_lshl_b32 s%d, s%d, 5" % (sT0, sT0)); p("s_add_u32 s%d, s%d, s%d" % (sT0, sT0, sTok))
        p("s_and_b32 s%d, s%d, 1" % (sT1, sW)); p("s_lshl_b32 s%d, s%d, 5" % (sT1, sT1)); p("s_add_u32 s%d, s%d, s%d" % (sT1, sT1, sCh))
        p("s_lshl_b32 s%d, s%d, 10" % (sXO, sT0)); p("s_lshl_b32 s%d, s%d, 1" % (sT2, sT1)); p("s_add_u32 s%d, s%d, s%d" % (sXO, sXO, sT2))
        p("s_lshl_b32 s%d, s%d, 11" % (sT3, sW))
        p("s_add_u32 m0, s%d, %d" % (sT3, XT))
        p("buffer_load_dwordx4 v13, s[%d:%d], s%d offen lds" % (Q2_, Q2_ + 3, sXO), "ep")
        p("s_add_u32 s7, s%d, 16384" % sXO)
        p("s_add_u32 m0, s%d, %d" % (sT3, XT + 1024))
        p("buffer_load_dwordx4 v13, s[%d:%d], s7 offen lds" % (Q2_, Q2_ + 3), "ep")
        p("s_lshl_b32 s%d, s%d, 4" % (sT0, sT0))
        p("v_and_b32 v14, 31, v1"); p("v_lshlrev_b32 v15, 4, v14")
        p("buffer_load_dwordx4 %s, v15, s[%d:%d], s%d offen sc1" % (vr(vST2, 4), ST2_, ST2_ + 3, sT0), "ep")
        p("v_lshrrev_b32 v15, 5, v1"); p("v_lshlrev_b32 v12, 5, v15")
        p("buffer_load_dwordx4 %s, v12, s[%d:%d], s%d offen" % (vr(vB2, 4), B2_, B2_ + 3, sT2), "ep")
        p("buffer_load_dwordx4 %s, v12, s[%d:%d], s%d offen offset:16" % (vr(vB2 + 4, 4), B2_, B2_ + 3, sT2), "ep")
        p("v_lshrrev_b32 v12, 2, v14"); p("v_and_b32 v12, 3, v12")
        p("v_lshlrev_b32 v15, 1, v15"); p("v_xor_b32 v15, v15, v12")
        p("v_lshlrev_b32 v15, 4, v15"); p("v_lshl_add_u32 v15, v14, 6, v15")
        p("v_add_u32 v15, s%d, v15" % sT3); p("v_add_u32 v%d, %d, v15" % (vXq, XT))
        p("v_lshrrev_b32 v15, 5, v1"); p("v_lshlrev_b32 v15, 5, v15"); p("v_lshl_add_u32 v%d, v14, 10, v15" % vOUT)
        p("v_add_u32 v%d, %d, v%d" % (vRED, RED, vH0))
    def z_loads(p):
        p("v_lshrrev_b32 v10, 2, v1"); p("v_and_b32 v11, 3, v1")
        p("v_lshlrev_b32 v12, 4, v11"); p("v_lshl_add_u32 v12, v10, 12, v12")
        p("s_and_b32 s%d, s%d, 1" % (sT1, sW)); p("s_lshl_b32 s%d, s%d, 5" % (sT1, sT1)); p("s_add_u32 s%d, s%d, s%d" % (sT1, sT1, sCh))
        p("s_lshl_b32 s%d, s%d, 12" % (sT0, sT1))
        p("s_lshr_b32 s%d, s%d, 1" % (sT1, sW)); p("s_lshl_b32 s%d, s%d, 5" % (sT1, sT1)); p("s_add_u32 s%d, s%d, s%d" % (sT1, sT1, sTok))
        p("s_lshl_b32 s%d, s%d, 1" % (sT1, sT1)); p("s_add_u32 s%d, s%d, s%d" % (sT0, sT0, sT1))
        p("buffer_load_dwordx4 %s, v12, s[%d:%d], s%d offen sc1" % (vr(128, 4), ZT2_, ZT2_ + 3, sT0), "z")
        p("s_add_u32 s%d, s%d, %d" % (sT0, sT0, 16 * 4096))
        p("buffer_load_dwordx4 %s, v12, s[%d:%d], s%d offen sc1" % (vr(132, 4), ZT2_, ZT2_ + 3, sT0), "z")
        p("v_lshrrev_b32 v12, 1, v10"); p("v_and_b32 v12, 3, v12"); p("v_xor_b32 v12, v12, v11")
        p("v_lshlrev_b32 v12, 4, v12"); p("v_lshl_add_u32 v12, v10, 6, v12")
        p("s_lshl_b32 s%d, s%d, 11" % (sT3, sW)); p("s_add_u32 s%d, s%d, %d" % (sT3, sT3, ZTT))
        p("v_add_u32 v%d, s%d, v12" % (vZq + 4, sT3))
        p("v_and_b32 v10, 15, v1"); p("v_lshrrev_b32 v12, 4, v1"); p("v_lshrrev_b32 v13, 1, v12"); p("v_and_b32 v12, 1, v12")
        p("v_lshrrev_b32 v14, 2, v10"); p("v_lshl_add_u32 v13, v13, 4, v14")
        p("v_and_b32 v15, 3, v10"); p("v_lshrrev_b32 v15, 1, v15"); p("v_lshl_add_u32 v15, v12, 1, v15")
        p("v_lshrrev_b32 v14, 1, v14"); p("v_xor_b32 v15, v15, v14")
        p("v_lshlrev_b32 v15, 4, v15"); p("v_lshl_add_u32 v15, v13, 6, v15")
        p("v_and_b32 v14, 1, v10"); p("v_lshl_add_u32 v15, v14, 3, v15")
        p("v_add_u32 v%d, s%d, v15" % (vZq, sT3))
        p("v_xor_b32 v5, 32, v%d" % vZq)
    def y_compute(p):
        XR_, ZR = 136, 164
        p("ds_write_b128 v%d, %s" % (vZq + 4, vr(128, 4))); p("ds_write_b128 v%d, %s offset:1024" % (vZq + 4, vr(132, 4)))
        p.wait_tag("ep")
        p("v_xor_b32 v10, 16, v%d" % vXq)
        p("ds_read_b128 %s, v%d" % (vr(XR_, 4), vXq)); p("ds_read_b128 %s, v10" % vr(XR_ + 4, 4))
        for m in range(4): p("ds_read_b64_tr_b16 %s, v%d offset:%d" % (vr(ZR + 2 * m, 2), vZq if m % 2 == 0 else 5, m * 256))
        mu, rs = vST2, vST2 + 1
        p("v_mul_f32 v%d, v%d, v%d" % (mu, mu, rs))
        for r_ in range(16):
            x, z, b = 48 + 3 * (r_ & 1), 49 + 3 * (r_ & 1), 50 + 3 * (r_ & 1)
            unpack(p, x, XR_ + (r_ >> 1), r_ & 1); unpack(p, z, ZR + (r_ >> 1), r_ & 1); unpack(p, b, vB2 + (r_ >> 1), r_ & 1)
            p("v_fma_f32 v%d, v%d, v%d, -v%d" % (vY + r_, x, rs, mu))
            p("v_add_f32 v%d, v%d, v%d" % (b, b, x))
            p("v_fma_f32 v%d, v%d, v%d, v%d" % (vY + r_, vY + r_, z, b))
    def reads(s): return [t for t, _ in tr_reads(s, FR + 8 * (s & 1), 'v')]
    def mfmas(s):
        slot = s % DH; out = []
        for cb in range(2):
            A = vr(FR + 8 * (s & 1) + 4 * cb, 4) if s < 12 else ar(STASH0 + 8 * (s - 12) + 4 * cb, 4)
            for tb in range(2):
                a = vr(ACC + 16 * (2 * tb + cb), 16)
                out.append("v_mfma_f32_32x32x16_bf16 %s, %s, %s, %s" % (a, A, ar(HB + 8 * slot + 4 * tb, 4), "0" if s == 0 else a))
        return out
    vFZ = 56
    def fz_issue(p):
        p("v_min_u32 v%d, 15, v1" % (vFZ + 2)); p("v_lshlrev_b32 v%d, 7, v%d" % (vFZ + 2, vFZ + 2))
        p("s_lshr_b32 s84, s%d, 6" % sCh); p("s_lshl_b32 s84, s84, 1"); p("s_and_b32 s83, s%d, 1" % sW); p("s_add_u32 s84, s84, s83")
        p("s_lshl_b32 s84, s84, 11"); p("s_add_u32 s84, s84, %d" % FL_FZ)
        poll_issue(p, vFZ, vFZ + 2, 84, "fz")
    def fz_check(p):
        p.wait_tag("fz"); poll_check(p, [vFZ], [vFZ + 2], [84])
    S_FZ, S_ZL, S_Y = OPT.get("s_fz", 14), OPT.get("s_zl", 20), OPT.get("s_y", 25)
    yl = rec(y_compute)
    third = (len(yl) + 2) // 3
    extras = {1: rec(ep_setup), 2: rec(ep_loads), S_FZ: rec(fz_issue), S_ZL: rec(z_loads),
              S_Y: yl[:third], S_Y + 1: yl[third:2 * third], S_Y + 2: yl[2 * third:]}
    def step(s, ex):
        if s + 1 < 12:
            p.wait_tag("w%d" % (s + 1))
            for t in reads(s + 1): p(t)
        mf = mfmas(s)
        if OPT.get("x_nog2") and 8 <= s < 18: mf = ["s_nop 0"] * 4
        hl = h_loads(s + DH) if s + DH < NS else []
        if OPT.get("x_noh"): hl = []
        q4 = (len(ex) + 3) // 4
        for i in range(4):
            p(mf[i])
            if i == 2:
                for t in hl[0:1]: p(*t)
            if i == 3:
                for t in hl[1:3]: p(*t)
            emit(p, ex[i * q4:(i + 1) * q4])
    p.wait(lg=0)
    p("s_barrier")
    p.wait_tag("w0")
    for t in reads(0): p(t)
    for s in range(S_ZL):
        if s in (0, 7, 13, 20): stamp(p, "g2_s%d" % s)
        step(s, extras.get(s, []))
        if s == DH:
            p.wait_tag("zst")
            z_publish(p, name)
    p.wait_tag("fz")
    p("v_cmp_ne_u32 vcc, s%d, v%d" % (sN, vFZ)); p("s_nop 4")
    p("s_cbranch_vccnz %s_zlate" % name)
    br = side_path_begin(p)
    for s in range(S_ZL, NS): step(s, extras.get(s, []))
    stamp(p, "g2_mma_done")
    g2_epilogue(p, name + "f", True)
    p("s_branch %s_fin" % name)
    p.label("%s_zlate" % name)
    side_path_end(p, br)
    for s in range(S_ZL, NS): step(s, [])
    g2_epilogue(p, name + "s", False)
    poll_issue(p, vFZ, vFZ + 2, 84, "fz2")
    p.wait(vm=0)
    poll_check(p, [vFZ], [vFZ + 2], [84])
    z_loads(p)
    y_compute(p)
    for r_ in range(16):
        p("v_add_f32 v%d, v%d, v%d" % (vY + r_, vY + r_, vOWN + r_))
    g2_store(p)
    p.wait(vm=63)
    p.label("%s_fin" % name)

OUTPOL = ["", " sc1", " nt", " sc0 sc1"]
def g2_store(p):
    PK = 160
    for r_ in range(16):
        if r_ & 1: p("v_cvt_pk_bf16_f32 v%d, v%d, v%d" % (PK + (r_ >> 1), vY + r_ - 1, vY + r_))
        if r_ == 7: p("buffer_store_dwordx4 %s, v%d, s[%d:%d], s%d offen%s" % (vr(PK, 4), vOUT, OUT_, OUT_ + 3, sXO, OUTPOL[OPT.get("outpol", 0)]))
    p("buffer_store_dwordx4 %s, v%d, s[%d:%d], s%d offen offset:16%s" % (vr(PK + 4, 4), vOUT, OUT_, OUT_ + 3, sXO, OUTPOL[OPT.get("outpol", 0)]))
def g2_epilogue(p, name, have_y):
    ACC = 64
    st = side_path_begin(p)
    for w in range(4):
        if w < 3:
            p("s_cmp_eq_u32 s%d, %d" % (sW, w))
            p("s_cbranch_scc0 %s_rw%d" % (name, w + 1))
        side_path_end(p, st)
        p("s_nop 7"); p("s_nop 3")
        for rel in range(1, 4):
            q = w ^ rel
            for rq in range(4):
                p("ds_write_b128 v%d, %s offset:%d" % (vRED, vr(ACC + 16 * q + 4 * rq, 4), q * 12288 + (rel - 1) * 4096 + rq * 1024))
        for i in range(16): p("v_mov_b32 v%d, v%d" % (vOWN + i, ACC + 16 * w + i))
        if w < 3:
            p("s_branch %s_rwd" % name)
            p.label("%s_rw%d" % (name, w + 1))
    p.label("%s_rwd" % name)
    p("s_mul_i32 s%d, s%d, 12288" % (sT0, sW)); p("v_add_u32 v10, s%d, v%d" % (sT0, vRED))
    p.wait(lg=0)
    p("s_barrier")
    if have_y: stamp(p, "g2_red_bar")
    for sl in range(3):
        for rq in range(4):
            p("ds_read_b128 %s, v10 offset:%d" % (vr(ACC + 16 * sl + 4 * rq, 4), sl * 4096 + rq * 1024))
    for r_ in range(16):
        p("v_add_f32 v%d, v%d, v%d" % (vOWN + r_, vOWN + r_, ACC + r_))
        p("v_add_f32 v%d, v%d, v%d" % (ACC + 16 + r_, ACC + 16 + r_, ACC + 32 + r_))
    for r_ in range(16): p("v_add_f32 v%d, v%d, v%d" % (vOWN + r_, vOWN + r_, ACC + 16 + r_))
    if have_y:
        for r_ in range(16): p("v_add_f32 v%d, v%d, v%d" % (vY + r_, vY + r_, vOWN + r_))
        g2_store(p)

def flat(l): return [x for y in l for x in y]
def gen(name):
    p = Prog()
    prof_reset()
    p("s_cmp_ge_u32 s2, 256")
    p("s_cbranch_scc1 %s_end" % name)
    stamp(p, "rt0", True); stamp(p, "t0")
    p("s_memrealtime s[86:87]")
    load_kernargs(p)
    p("v_and_b32 v1, 63, v0"); p("v_lshrrev_b32 v2, 6, v0")
    p("s_and_b32 s%d, s2, 7" % sJ); p("s_lshr_b32 s%d, s2, 3" % sR)
    p("v_readfirstlane_b32 s%d, v2" % sW)
    p("v_mov_b32 v253, 0")
    pend = list(p.lg); p.lg = []
    tile_indices(p); g1_dma_setup(p); g1_lds_setup(p); g2_setup(p); p_addr(p)
    p("s_lshl_b32 s%d, s2, 2" % sT0); p("s_add_u32 s78, s%d, s%d" % (sT0, sW))
    p.lg = pend
    p("s_waitcnt lgkmcnt(0)")
    stamp(p, "karg")
    p_loads(p)
    tile_srds(p)
    touches_g1(p)
    srd(p, 92, P_DBG, 256)
    p("s_cmp_eq_u32 s78, %d" % (248 * 4))
    p("s_cbranch_scc0 %s_n0" % name)
    st = side_path_begin(p)
    p("v_mov_b32 v250, s86"); p("v_mov_b32 v251, 1")
    p("s_mov_b64 exec, 1")
    p("buffer_store_dwordx2 v[250:251], v253, s[92:95], 0 offen sc1")
    p("s_mov_b64 exec, -1")
    side_path_end(p, st)
    p.label("%s_n0" % name)
    after_loads = side_path_begin(p)
    p("s_cmp_ge_u32 s%d, 28" % sR)
    p("s_cbranch_scc1 %s_spare" % name)
    for u in g1_dma_stage(0): emit(p, u)
    def common_srds(p):
        srd(p, FL_, P_WS, SZ_FLAG, WS_FLAG); srd(p, KVT_, P_WS, SZ_KVT, WS_KVT); srd(p, ST_, P_WS, SZ_ST, WS_ST); srd(p, CSP_, P_WS, SZ_CSP, WS_CSP)
    def b1_srd(p): srd(p, B1_, P_B1, F * 2)
    common_srds(p); b1_srd(p); g2_srd(p)
    stamp(p, "issued")
    KN = "parallel_sum__ssm_conv_h3__dense_activation_squared_relu__prompt_kernel"
    dm = g1_dma_stage(1) + g1_dma_stage(2)
    kv = rec(kv_compute)
    k = 0
    for i, it in enumerate(kv):
        emit(p, [it])
        while k < 16 and k * len(kv) < (i + 1) * 16: emit(p, dm[k]); k += 1
    while k < 16: emit(p, dm[k]); k += 1
    if OPT["touch"] == 2: touches_g1_late(p)
    stamp(p, "kv_done")
    none = lambda p: None
    lg0 = lambda p: p.wait(lg=0)
    def pre4(p):
        nonce_check(p); fk_publish(p, "g1")
    def b1_load(p):
        p("v_and_b32 v14, 127, v0"); p("v_lshlrev_b32 v14, 1, v14"); p("s_lshl_b32 s84, s%d, 8" % sFT)
        p("buffer_load_ushort v%d, v14, s[%d:%d], s84 offen" % (vB1, B1_, B1_ + 3), "tab")
    def tab_done(p):
        p.wait_tag("tab"); tab_check(p); tab_partial(p)
    def tab_final(p):
        p("v_and_b32 v10, 127, v0"); p("v_lshlrev_b32 v10, 2, v10"); p("v_add_u32 v11, %d, v10" % CSQ_LDS); p("v_add_u32 v10, %d, v10" % TAB_LDS)
        for i in range(4): p("ds_read_b32 v%d, v11 offset:%d" % (20 + i, i * 512))
        p("v_lshlrev_b32 v%d, 16, v%d" % (vB1, vB1))
        p("v_add_f32 v20, v20, v21"); p("v_add_f32 v22, v22, v23"); p("v_add_f32 v20, v20, v22")
        p("ds_write_b32 v10, v20"); p("ds_write_b32 v10, v%d offset:512" % vB1)
    def fk_issue(p):
        fk_addr(p, True); poll_issue(p, vPK, vPA, 85, "fk")
    def fk_check(p):
        p.wait_tag("fk"); poll_check(p, [vPK], [vPA], [85])
    A = [w2_dma(12 + i, i) for i in range(12)]
    def late(p_items): return [p_items]
    fill = {0: (lg0, none, rec(kv_stores) + rec(nonce_issue)),
            1: (none, none, rec(w2_touch) if OPT["w2touch"] == 1 else []),
            2: (none, none, rec(conv_setup)),
            3: (lambda p: p.wait_tag("nonce"), pre4, []),
            4: (none, none, []),
            5: (none, none, rec(tab_loads) + rec(b1_load) + flat(A[0:4])),
            6: (none, none, rec(fk_issue) + flat(A[4:6]) + [(tab_done, None)] + flat(A[6:8])),
            7: (lg0, none, rec(tab_final) + flat(A[8:10]) + [(fk_check, None)] + rec(conv_loads_regs) + flat(A[10:12]))}
    if OPT["w2touch"] == 6:
        np_ = OPT.get("ta_parts", 2); t0_ = OPT.get("ta_stage", 0); tb_ = OPT.get("tb_stage", 5)
        for i_ in range(np_):
            a_, b_, c_ = fill[t0_ + i_][:3]
            fill[t0_ + i_] = (a_, b_, c_, rec(w2_touch_a, i_, np_))
        a_, b_, c_ = fill[tb_][:3]
        fill[tb_] = (a_, b_, c_, (fill[tb_][3] if len(fill[tb_]) > 3 else []) + rec(w2_touch_b))
    elif OPT.get("plan", 1) == 2:
        ts = OPT.get("tstage", 5)
        fill[5] = (none, none, rec(tab_loads) + rec(b1_load) + rec(fk_issue))
        fill[6] = (none, none, [(tab_done, None)])
        fill[7] = (lg0, none, rec(tab_final) + [(fk_check, None)] + rec(conv_loads_regs))
        a_, b_, c_ = fill[ts]
        fill[ts] = (a_, b_, c_, rec(w2_touch))
    elif OPT["w2touch"] == 4:
        for st_ in range(7):
            a_, b_, c_ = fill[st_]
            fill[st_] = (a_, b_, c_, rec(w2_touch_part, st_))
    if OPT["w2touch"] == 5 and OPT.get("plan", 1) == 1:
        for st_, (k_, n_) in enumerate(((0, 32), (2, 32), (4, 48))):
            a_, b_, c_ = fill[st_]
            fill[st_] = (a_, b_, c_, rec(w2_touch_part, k_, n_))
    if OPT.get("ssmtouch", 3):
        st_ = OPT.get("ssmtouch", 3)
        f_ = fill[st_]
        fill[st_] = (f_[0], f_[1], f_[2], (f_[3] if len(f_) > 3 else []) + rec(ssm_touch))
    g1_main(p, fill)
    stamp(p, "g1_mfma_end")
    p.wait(lg=0)
    p("s_barrier")
    conv_loads_lds(p)
    stamp(p, "g1_mma_done")
    FE = OPT.get("fill_epi", 1)
    g1_epilogue(p, rec(conv_fill) if FE else [])
    p.wait_tag("cv")
    p.label("%s_cfill" % name)
    stamp(p, "g1_epi_done")
    g2_setup_tr(p)
    early = OPT.get("early_stash", 0)
    if early:
        p.wait_tag("w23")
        for t in flat([stash_reads(12 + i, i) for i in range(12)]): p(*t)
        B = flat([w2_dma(24 + i, i) for i in range(4)] + [w2_dma(4 + i, 4 + i) for i in range(8)])
        cf = rec(conv_fill)
        p.wait(lg=0)
        k = 0
        for i, it in enumerate(cf):
            emit(p, [it])
            while k < len(B) and k * len(cf) < (i + 1) * len(B): emit(p, [B[k]]); k += 1
    elif not FE:
        conv_fill(p)
    def c0(p):
        if not early: p.wait_tag("w17")
    def c1(p):
        p.wait_tag("hst")
        if not early: p.wait_tag("w23")
        p("s_cmp_ge_u32 s%d, 28" % sR)
        p("s_cbranch_scc1 %s_nohp" % name)
        st = side_path_begin(p)
        h_publish(p)
        side_path_end(p, st)
        p.label("%s_nohp" % name)
        if not early: p.wait(lg=0)
        stamp(p, "h_pub")
    def c2(p):
        if not early: p.wait(lg=0)
        else: p.wait_tag("w27")
    def c3(p):
        p.wait(lg=0)
        if not early: p.wait_tag("w27")
    if early:
        f0, f1 = [], []
        f2 = flat([stash_reads(24 + i, i) for i in range(4)])
        f3 = flat([w2_dma(i, i) for i in range(4)]) + rec(fh_poll_issue)
    else:
        f0 = flat([stash_reads(12 + i, i) for i in range(6)])
        f1 = interleave(flat([stash_reads(18 + i, 6 + i) for i in range(6)]), flat([w2_dma(24 + i, i) for i in range(4)] + [w2_dma(4 + i, 4 + i) for i in range(2)]), 0.5)
        f2 = flat([w2_dma(6 + i, 6 + i) for i in range(6)])
        sr_ = flat([stash_reads(24 + i, i) for i in range(4)])
        if OPT.get("fh_early", 0):
            k_ = OPT["fh_early"]
            f3 = sr_[:k_] + rec(fh_poll_issue) + sr_[k_:]
        else:
            f3 = sr_ + rec(fh_poll_issue)
        if OPT.get("fin_pre", 1): f2 = f2 + rec(conv_finish_addr)
    conv_main(p, [(c0, f0), (c1, f1), (c2, f2), (c3, f3)])
    if not early:
        p.wait(lg=0)
        for u in flat([w2_dma(i, i) for i in range(4)]): emit(p, u)
    g2_h_start(p)
    conv_finish(p, name, [t for s_ in range(OPT.get("h_first", 2), OPT["depth_h"]) for t in h_loads(s_)])
    stamp(p, "conv_done")
    if OPT["htouch"] == 1: h_touch(p)
    z_stores(p)
    if OPT["htouch"] == 2: h_touch(p)
    g2_main(p, name)
    stamp(p, "end")
    if common.PROF: p.wait(vm=0)
    stamp(p, "end_acked"); stamp(p, "rt1", True)
    prof_flush(p, sW)
    p("s_endpgm")
    p.label("%s_spare" % name)
    side_path_end(p, after_loads)
    sp_loads(p)
    if OPT["touch"] == 2: touches_g1_late(p)
    common_srds(p)
    kv_compute(p, 192, 200)
    p.wait(lg=0)
    p("s_barrier")
    kv_stores(p)
    nonce_issue(p)
    sp_stats(p)
    p.wait_tag("nonce"); nonce_check(p)
    sp_stats_store(p)
    sp_cs(p)
    p.wait(lg=0)
    p.wait_tag("kst")
    p("s_barrier")
    fk_publish(p, "sp")
    sp_cs_store(p)
    p.wait(lg=0)
    p("s_barrier")
    g2_srd(p)
    if OPT["w2touch"] == 6: w2_touch_a(p, 0, 1); w2_touch_b(p)
    elif OPT["w2touch"]: w2_touch(p)
    for u in flat(A): emit(p, u)
    conv_setup(p)
    fk_addr(p, True)
    poll_issue(p, vPK, vPA, 85, "poll")
    p.wait(vm=0, lg=0)
    poll_check(p, [vPK], [vPA], [85])
    conv_loads_regs(p)
    conv_loads_lds(p)
    p.wait(vm=0)
    if FE: conv_fill(p)
    p("s_branch %s_cfill" % name)
    p.label("%s_end" % name)
    p("s_endpgm")
    return p.text(), 512, 256
```

```python
from common import *
import common
from fused import (sN, sJ, sR, sW, sT0, sT1, sT2, sT3, FL_, unpack, flag_store, poll_issue, poll_check,
                   side_path_begin, side_path_end, nonce_issue, nonce_check, _uid)
OPT = dict(touch=0, htouch=0, nt=0, ntkv=0, depth_h=6, w2touch=5, s_fz=17, s_zl=21)
def nt(): return " nt" if OPT["nt"] else ""
def ntkv(): return " nt" if (OPT["nt"] or OPT["ntkv"]) else ""

class Rec:
    def __init__(self): self.items = []; self.grp = None
    def __call__(self, txt, tag=None): (self.grp if self.grp is not None else self.items).append((txt, tag))
    def call(self, fn): (self.grp if self.grp is not None else self.items).append((fn, None))
    def wait(self, vm=None, lg=None): self.call(lambda p: p.wait(vm, lg))
    def wait_tag(self, tag): self.call(lambda p: p.wait_tag(tag))
    def begin(self): self.grp = []
    def end(self): self.items.append(self.grp); self.grp = None
def begin(p):
    if isinstance(p, Rec): p.begin()
def end(p):
    if isinstance(p, Rec): p.end()
def emit(p, items):
    for it in items:
        if isinstance(it, list): emit(p, it)
        elif callable(it[0]): it[0](p)
        else: p(it[0], it[1])
_srd0 = srd
def srd(p, dst, ptr, size, off=0):
    begin(p); _srd0(p, dst, ptr, size, off); end(p)
def rec(fn, *a):
    r = Rec(); fn(r, *a); return r.items

P_LDS, SK_LDS = 131072, 139264
TAB_LDS, CSQ_LDS = 157440, 158464
CV0 = 98304
RB_LDS = CV0 + 256 + 2 * 21248
XT, ZTT, RED = 98304, 106496, 114688
sROW, sRB, sFT = 72, 73, 74
sXo, sWo, sM = 80, 81, 82
sCH, sC2, sCB = 86, 87, 88
sTok, sCh, sHo = 89, 90, 91
sWA, sM2, sXO = 3, 17, 6
K_, V_, SK_, GQ_, GW1_ = 40, 44, 48, 52, 56
KVT_, ST_, CSP_ = 60, 64, 68

KR, VR, SKR, XR, CR = 16, 36, 44, 128, 136
vC, vRR = 3, 4
def p_addr(p):
    vA = 5
    p("v_and_b32 v11, 31, v1"); p("v_lshlrev_b32 v11, 4, v11")
    p("v_and_b32 v%d, 7, v1" % vC); p("v_lshrrev_b32 v%d, 3, v1" % vRR)
    p("s_lshl_b32 s%d, s%d, 6" % (sT0, sR)); p("s_lshl_b32 s%d, s%d, 4" % (sT1, sW))
    p("s_add_u32 s%d, s%d, s%d" % (sT0, sT0, sT1)); p("s_lshl_b32 s%d, s%d, 10" % (sT0, sT0))
    p("s_lshl_b32 s%d, s%d, 7" % (sT1, sJ)); p("s_add_u32 s%d, s%d, s%d" % (sT0, sT0, sT1))
    p("v_lshlrev_b32 v%d, 11, v%d" % (vA, vRR)); p("v_lshl_add_u32 v%d, v%d, 4, v%d" % (vA, vC, vA))
    p("v_add_u32 v%d, s%d, v%d" % (vA, sT0, vA))
    for i in range(5): p("v_add_u32 v%d, %d, v%d" % (6 + i, (i - 3) * 1024, vA))
    p("s_lshl_b32 s%d, s%d, 9" % (sT3, sJ))
def p_loads(p):
    vA = 5
    srd(p, K_, P_K, S * D * 2)
    for i in range(5): p("buffer_load_dwordx4 %s, v%d, s[%d:%d], 0 offen%s" % (vr(KR + 4 * i, 4), 6 + i, K_, K_ + 3, ntkv()))
    srd(p, V_, P_V, S * D * 2)
    p("buffer_load_dwordx4 %s, v%d, s[%d:%d], 0 offen%s" % (vr(VR, 4), vA, V_, V_ + 3, ntkv()))
    p("buffer_load_dwordx4 %s, v%d, s[%d:%d], 0 offen offset:1024%s" % (vr(VR + 4, 4), vA, V_, V_ + 3, ntkv()))
    srd(p, SK_, P_SK, D * 8)
    p("buffer_load_dwordx4 %s, v11, s[%d:%d], s%d offen" % (vr(SKR, 4), SK_, SK_ + 3, sT3))

def tile_srds(p):
    srd(p, GQ_, P_Q, S * D * 2); srd(p, GW1_, P_W1, D * F * 2)
def tile_indices(p):
    p("s_mul_i32 s%d, s%d, 37" % (sT0, sR)); p("s_lshr_b32 s%d, s%d, 8" % (sT0, sT0))
    p("s_mul_i32 s%d, s%d, 7" % (sT1, sT0)); p("s_sub_u32 s%d, s%d, s%d" % (sT1, sR, sT1))
    p("s_lshr_b32 s%d, s%d, 1" % (sT2, sJ)); p("s_lshl_b32 s%d, s%d, 2" % (sT2, sT2))
    p("s_add_u32 s%d, s%d, s%d" % (sRB, sT2, sT0))
    p("s_and_b32 s%d, s%d, 1" % (sT2, sJ)); p("s_mul_i32 s%d, s%d, 7" % (sT2, sT2))
    p("s_add_u32 s%d, s%d, s%d" % (sFT, sT2, sT1))

def touches_g1(p):
    if OPT["touch"] != 1: return
    p("s_lshl_b32 s%d, s%d, 2" % (sT2, sR)); p("s_add_u32 s%d, s%d, s%d" % (sT2, sT2, sW))
    p("v_lshlrev_b32 v9, 7, v1")
    p("s_lshr_b32 s%d, s%d, 1" % (sT0, sJ)); p("s_lshl_b32 s%d, s%d, 19" % (sT0, sT0))
    p("s_lshl_b32 s%d, s%d, 12" % (sT1, sT2)); p("s_add_u32 s%d, s%d, s%d" % (sT0, sT0, sT1))
    p("s_mov_b32 exec_hi, 0")
    p("buffer_load_dword v188, v9, s[%d:%d], s%d offen%s" % (GQ_, GQ_ + 3, sT0, nt()), "touch")
    p("s_mov_b64 exec, -1")
    p("v_mul_u32_u24 v10, 4682, v1"); p("v_lshrrev_b32 v10, 16, v10")
    p("v_mul_u32_u24 v11, 14, v10"); p("v_sub_u32 v11, v1, v11")
    p("v_mul_u32_u24 v10, 3584, v10"); p("v_lshl_add_u32 v10, v11, 7, v10")
    p("s_mul_i32 s%d, s%d, %d" % (sT0, sT2, 4 * 3584)); p("s_and_b32 s%d, s%d, 1" % (sT1, sJ))
    p("s_mul_i32 s%d, s%d, 1792" % (sT1, sT1)); p("s_add_u32 s%d, s%d, s%d" % (sT0, sT0, sT1))
    p("s_mov_b32 exec_hi, 0x00ffffff")
    p("buffer_load_dword v189, v10, s[%d:%d], s%d offen%s" % (GW1_, GW1_ + 3, sT0, nt()), "touch")
    p("s_mov_b64 exec, -1")

def touches_g1_late(p):
    p("s_lshl_b32 s83, s%d, 2" % sR); p("s_add_u32 s83, s83, s%d" % sW)
    p("v_mul_u32_u24 v8, 13108, v1"); p("v_lshrrev_b32 v8, 16, v8")
    p("v_mul_u32_u24 v9, 5, v8"); p("v_sub_u32 v9, v1, v9"); p("v_add_u32 v9, 3, v9")
    p("v_lshlrev_b32 v8, 10, v8"); p("v_lshl_add_u32 v8, v9, 7, v8")
    p("s_lshr_b32 s84, s%d, 1" % sJ); p("s_lshl_b32 s84, s84, 19"); p("s_lshl_b32 s75, s83, 12"); p("s_add_u32 s84, s84, s75")
    begin(p)
    p("s_mov_b64 exec, 0xfffff")
    p("buffer_load_dword v188, v8, s[%d:%d], s84 offen" % (GQ_, GQ_ + 3), "touch")
    p("s_mov_b64 exec, -1")
    end(p)
    p("s_mul_i32 s83, s83, 35"); p("v_add_u32 v8, s83, v1")
    p("v_mul_u32_u24 v9, 4682, v8"); p("v_lshrrev_b32 v9, 16, v9")
    p("v_mul_u32_u24 v10, 14, v9"); p("v_sub_u32 v10, v8, v10")
    p("v_add_u32 v9, 192, v9"); p("v_mul_u32_u24 v9, 3584, v9"); p("v_lshl_add_u32 v9, v10, 7, v9")
    p("s_and_b32 s84, s%d, 1" % sJ); p("s_mul_i32 s84, s84, 1792")
    begin(p)
    p("s_mov_b32 exec_hi, 0x7")
    p("buffer_load_dword v189, v9, s[%d:%d], s84 offen" % (GW1_, GW1_ + 3), "touch")
    p("s_mov_b64 exec, -1")
    end(p)
assert all((L * 4682) >> 16 == L // 14 for L in range(0, 1200)), "check"
def w2_touch(p):
    p("v_lshlrev_b32 v9, 7, v1")
    p("s_lshl_b32 s83, s%d, 2" % sR); p("s_add_u32 s83, s83, s%d" % sW); p("s_mul_i32 s83, s83, 14336")
    p("buffer_load_dword v190, v9, s[8:11], s83 offen", "touch2")
    p("s_add_u32 s83, s83, 8192")
    begin(p)
    p("s_mov_b32 exec_hi, 0xffff")
    p("buffer_load_dword v191, v9, s[8:11], s83 offen", "touch2")
    p("s_mov_b64 exec, -1")
    end(p)

def ssm_touch(p):
    p("v_lshlrev_b32 v9, 7, v1")
    p("s_lshl_b32 s83, s%d, 6" % sJ); p("s_lshl_b32 s84, s%d, 1" % sR); p("s_add_u32 s83, s83, s84"); p("s_lshl_b32 s83, s83, 12")
    p("s_lshl_b32 s84, s%d, 11" % sW); p("s_add_u32 s83, s83, s84")
    begin(p)
    p("s_mov_b64 exec, 0xffff")
    p("buffer_load_dword v191, v9, s[%d:%d], s83 offen%s" % (SSM_, SSM_ + 3, ntkv()), "touch4")
    p("s_mov_b64 exec, -1")
    end(p)
def w2_touch_part(p, k, n=16):
    p("v_lshlrev_b32 v9, 7, v1")
    p("s_lshl_b32 s83, s%d, 2" % sR); p("s_add_u32 s83, s83, s%d" % sW); p("s_mul_i32 s83, s83, 14336")
    if k: p("s_add_u32 s83, s83, %d" % (k * 16 * 128))
    begin(p)
    p("s_mov_b64 exec, 0x%x" % ((1 << n) - 1)) if n <= 16 else (p("s_mov_b32 exec_lo, 0x%x" % (((1 << min(n, 32)) - 1) & 0xffffffff)), p("s_mov_b32 exec_hi, 0x%x" % ((1 << max(n - 32, 0)) - 1)))
    p("buffer_load_dword v%d, v9, s[8:11], s83 offen%s" % ((186, 187, 190, 191)[k & 3], " nt" if OPT.get("ntw2") else ""), "touch2")
    p("s_mov_b64 exec, -1")
    end(p)
def w2_touch_half(p, part, nparts):
    n = 56 // nparts
    p("v_lshrrev_b32 v8, 2, v1"); p("v_and_b32 v9, 3, v1"); p("v_lshlrev_b32 v9, 7, v9"); p("v_lshl_add_u32 v9, v8, 10, v9")
    p("s_lshl_b32 s83, s%d, 2" % sR); p("s_add_u32 s83, s83, s%d" % sW); p("s_mul_i32 s83, s83, 14336")
    p("s_and_b32 s84, s%d, 1" % sJ); p("s_lshl_b32 s84, s84, 9"); p("s_add_u32 s83, s83, s84")
    if part: p("s_add_u32 s83, s83, %d" % (part * (n // 4) * 1024))
    begin(p)
    p("s_mov_b32 exec_lo, 0x%x" % (((1 << min(n, 32)) - 1) & 0xffffffff)); p("s_mov_b32 exec_hi, 0x%x" % ((1 << max(n - 32, 0)) - 1))
    p("buffer_load_dword v%d, v9, s[8:11], s83 offen" % (186 + (part & 1)), "touch2")
    p("s_mov_b64 exec, -1")
    end(p)
def w2_touch_a(p, part, nparts):
    n = 48 // nparts
    p("s_lshl_b32 s83, s%d, 2" % sR); p("s_add_u32 s83, s83, s%d" % sW)
    p("s_lshr_b32 s84, s83, 5"); p("s_mul_i32 s84, s84, 448"); p("s_and_b32 s83, s83, 31"); p("s_mul_i32 s83, s83, 6")
    p("s_add_u32 s83, s83, s84"); p("s_add_u32 s83, s83, 192"); p("s_lshl_b32 s83, s83, 10")
    if part: p("s_add_u32 s83, s83, %d" % (part * n * 128))
    p("v_lshlrev_b32 v9, 7, v1")
    begin(p)
    if n <= 32: p("s_mov_b64 exec, 0x%x" % ((1 << n) - 1)) if n <= 16 else (p("s_mov_b32 exec_lo, 0x%x" % ((1 << n) - 1)), p("s_mov_b32 exec_hi, 0"))
    else: p("s_mov_b32 exec_hi, 0x%x" % ((1 << (n - 32)) - 1))
    p("buffer_load_dword v%d, v9, s[8:11], s83 offen" % (186 + (part & 1)), "touch2")
    p("s_mov_b64 exec, -1")
    end(p)
def w2_touch_b(p):
    p("s_lshl_b32 s83, s%d, 2" % sR); p("s_add_u32 s83, s83, s%d" % sW)
    p("s_lshr_b32 s84, s83, 5"); p("s_mul_i32 s84, s84, 448"); p("s_and_b32 s83, s83, 31")
    begin(p); p("s_cmp_ge_u32 s83, 24"); p("s_cselect_b32 s75, 192, 0"); end(p)
    p("s_lshl_b32 s83, s83, 3"); p("s_add_u32 s83, s83, s75"); p("s_add_u32 s83, s83, s84"); p("s_lshl_b32 s83, s83, 10")
    p("v_lshlrev_b32 v9, 7, v1")
    p("buffer_load_dword v190, v9, s[8:11], s83 offen", "touch2")
def code_touch(p, kname):
    _uid[0] += 1; u = _uid[0]
    begin(p)
    p("s_getpc_b64 s[76:77]")
    p("Lct%d:" % u)
    p("s_sub_u32 s76, s76, Lct%d-%s" % (u, kname))
    p("s_subb_u32 s77, s77, 0")
    end(p)
    p("s_lshl_b32 s83, s%d, 2" % sR); p("s_add_u32 s83, s83, s%d" % sW)
    p("v_lshlrev_b32 v8, 7, v1"); p("v_add_u32 v8, s83, v8")
    p("v_lshlrev_b32 v8, 7, v8")
    p("v_min_u32 v8, %s_end-%s-4, v8" % (kname_end[0], kname))
    begin(p)
    p("v_mov_b32 v9, s77"); p("v_add_co_u32 v8, vcc, s76, v8"); p("s_nop 1"); p("v_addc_co_u32 v9, vcc, 0, v9, vcc")
    p("s_mov_b64 exec, 7")
    p("global_load_dword v186, v[8:9], off", "codet")
    p("s_mov_b64 exec, -1")
    end(p)
kname_end = ["fz"]

vKL, vKG0, vKG1 = 24, 25, 26
def kv_compute(p, RES=100, A=108):
    p("s_lshl_b32 s%d, s%d, 9" % (sT0, sW)); p("s_add_u32 s%d, s%d, %d" % (sT0, sT0, SK_LDS))
    p("v_and_b32 v11, 31, v1"); p("v_lshlrev_b32 v11, 4, v11"); p("v_add_u32 v11, s%d, v11" % sT0)
    p("v_lshlrev_b32 v2, 6, v%d" % vC); p("v_add_u32 v2, s%d, v2" % sT0)
    p("ds_write_b128 v11, %s" % vr(SKR, 4))
    p("s_lshl_b32 s%d, s%d, 3" % (sT0, sW)); p("s_sub_u32 s%d, 31, s%d" % (sT0, sT0))
    p("v_sub_u32 v15, s%d, v%d" % (sT0, vRR))
    p("v_lshrrev_b32 v6, 2, v15"); p("v_xor_b32 v6, v6, v%d" % vC)
    p("v_and_b32 v15, 3, v15"); p("v_lshlrev_b32 v15, 2, v15")
    p("v_lshl_add_u32 v15, v6, 4, v15"); p("v_lshl_add_u32 v15, v%d, 10, v15" % vC)
    p("v_add_u32 v15, %d, v15" % P_LDS)
    p.wait(lg=0)
    for i in range(4): p("ds_read_b128 %s, v2 offset:%d" % (vr(SKR + 4 * i, 4), 16 * i))
    p("s_mov_b32 s76, 0x05040100"); p("s_mov_b32 s77, 0x07060302")
    for e in range(8 if not OPT.get("x_nokv") else 1):
        dw, hf = e >> 1, e & 1
        sel = 76 + hf
        K = lambda i: KR + 4 * i + dw
        a = A + 8 * (e & 1)
        p("v_perm_b32 v%d, v%d, v%d, s%d" % (a + 0, K(2), K(3), sel))
        p("v_perm_b32 v%d, v%d, v%d, s%d" % (a + 1, K(0), K(1), sel))
        p("v_perm_b32 v%d, v%d, v%d, s%d" % (a + 2, K(3), K(4), sel))
        p("v_perm_b32 v%d, v%d, v%d, s%d" % (a + 3, K(1), K(2), sel))
        p("v_dot2_f32_bf16 v%d, v%d, v%d, 0" % (a + 4, a + 0, SKR + 2 * e))
        p("v_dot2_f32_bf16 v%d, v%d, v%d, 0" % (a + 5, a + 2, SKR + 2 * e))
        unpack(p, a + 6, VR + dw, hf); unpack(p, a + 7, VR + 4 + dw, hf)
        p("v_dot2_f32_bf16 v%d, v%d, v%d, v%d" % (a + 4, a + 1, SKR + 2 * e + 1, a + 4))
        p("v_dot2_f32_bf16 v%d, v%d, v%d, v%d" % (a + 5, a + 3, SKR + 2 * e + 1, a + 5))
        if e > 0:
            b = A + 8 * ((e - 1) & 1)
            p("v_mul_f32 v%d, v%d, v%d" % (b + 4, b + 4, b + 6)); p("v_mul_f32 v%d, v%d, v%d" % (b + 5, b + 5, b + 7))
            p("v_cvt_pk_bf16_f32 v%d, v%d, v%d" % (RES + e - 1, b + 5, b + 4))
            p("ds_write_b32 v15, v%d offset:%d" % (RES + e - 1, (e - 1) * 128))
    b = A + 8
    p("s_lshl_b32 s%d, s%d, 4" % (sT0, sW)); p("v_add_u32 v6, s%d, v%d" % (sT0, vRR))
    p("v_mul_f32 v%d, v%d, v%d" % (b + 4, b + 4, b + 6)); p("v_mul_f32 v%d, v%d, v%d" % (b + 5, b + 5, b + 7))
    p("v_cvt_pk_bf16_f32 v%d, v%d, v%d" % (RES + 7, b + 5, b + 4))
    p("ds_write_b32 v15, v%d offset:%d" % (RES + 7, 7 * 128))
    p("v_lshlrev_b32 v7, 7, v6"); p("v_lshl_add_u32 v7, v%d, 4, v7" % vC); p("v_add_u32 v%d, %d, v7" % (vKL, P_LDS))
    p("v_lshlrev_b32 v8, 12, v6"); p("s_lshl_b32 s%d, s%d, 1" % (sT1, sW))
    p("v_xor_b32 v9, s%d, v%d" % (sT1, vC)); p("v_lshl_add_u32 v%d, v9, 4, v8" % vKG0)
    p("s_add_u32 s%d, s%d, 1" % (sT1, sT1))
    p("v_xor_b32 v10, s%d, v%d" % (sT1, vC)); p("v_lshl_add_u32 v10, v10, 4, v8"); p("v_add_u32 v%d, 0x8000, v10" % vKG1)
def kv_stores(p):
    p("ds_read_b128 v[16:19], v%d" % vKL); p("ds_read_b128 v[20:23], v%d offset:1024" % vKL)
    p("s_lshl_b32 s83, s%d, 18" % sJ); p("s_lshl_b32 s84, s%d, 7" % sR)
    p("s_sub_u32 s83, s83, s84"); p("s_add_u32 s83, s83, 3968")
    p("buffer_store_dwordx4 v[16:19], v%d, s[%d:%d], s83 offen sc1" % (vKG0, KVT_, KVT_ + 3), "kst")
    p("buffer_store_dwordx4 v[20:23], v%d, s[%d:%d], s83 offen sc1" % (vKG1, KVT_, KVT_ + 3), "kst")

SX, SC_ = 128, 64
def sp_loads(p):
    p("s_sub_u32 s72, s%d, 28" % sR)
    p("s_lshr_b32 s%d, s%d, 1" % (sT0, sJ)); p("s_lshl_b32 s%d, s%d, 9" % (sT0, sT0))
    p("s_and_b32 s%d, s%d, 1" % (sT1, sJ)); p("s_lshl_b32 s%d, s%d, 2" % (sT1, sT1)); p("s_add_u32 s%d, s%d, s72" % (sT1, sT1))
    p("s_lshl_b32 s%d, s%d, 6" % (sT1, sT1)); p("s_add_u32 s%d, s%d, s%d" % (sT0, sT0, sT1))
    p("s_lshl_b32 s%d, s%d, 4" % (sT1, sW)); p("s_add_u32 s73, s%d, s%d" % (sT0, sT1))
    p("s_lshl_b32 s%d, s73, 10" % sT0)
    p("v_lshrrev_b32 v10, 3, v1"); p("v_and_b32 v11, 7, v1"); p("v_lshlrev_b32 v11, 4, v11"); p("v_lshl_add_u32 v10, v10, 10, v11")
    for g in range(2):
        for i in range(8):
            p("buffer_load_dwordx4 %s, v10, s[%d:%d], s%d offen offset:%d" % (vr(SX + 32 * g + 4 * i, 4), GQ_, GQ_ + 3, sT0, i * 128), "sx")
        if g == 0: p("s_add_u32 s%d, s%d, 8192" % (sT0, sT0))
    p("s_lshr_b32 s74, s%d, 1" % sJ); p("s_lshl_b32 s74, s74, 2"); p("s_add_u32 s74, s74, s72")
    p("s_lshl_b32 s%d, s74, 5" % sT0); p("s_lshl_b32 s%d, s%d, 3" % (sT1, sW)); p("s_add_u32 s%d, s%d, s%d" % (sT0, sT0, sT1))
    p("s_mul_i32 s%d, s%d, 3584" % (sT0, sT0)); p("s_and_b32 s%d, s%d, 1" % (sT1, sJ)); p("s_mul_i32 s%d, s%d, 1792" % (sT1, sT1))
    p("s_add_u32 s%d, s%d, s%d" % (sT0, sT0, sT1))
    p("v_lshlrev_b32 v12, 4, v1")
    for i in range(8):
        p("buffer_load_dwordx4 %s, v12, s[%d:%d], s%d offen" % (vr(SC_ + 8 * i, 4), GW1_, GW1_ + 3, sT0), "sc")
        p("buffer_load_dwordx4 %s, v12, s[%d:%d], s%d offen offset:1024" % (vr(SC_ + 8 * i + 4, 4), GW1_, GW1_ + 3, sT0), "sc")
        if i < 7: p("s_add_u32 s%d, s%d, 3584" % (sT0, sT0))
def sp_stats(p):
    T = 200
    p("s_mov_b32 s75, 0x3f803f80")
    for g in range(2):
        for h in range(2): p("v_mov_b32 v%d, 0" % (T + 4 * g + h)); p("v_mov_b32 v%d, 0" % (T + 8 + 2 * g + h))
    for i in range(8):
        for g in range(2):
            for d in range(4):
                r_ = SX + 32 * g + 4 * i + d
                aS, aQ = (T + 4 * g, T + 4 * g + 1) if d & 1 else (T + 8 + 2 * g, T + 9 + 2 * g)
                p("v_dot2_f32_bf16 v%d, v%d, s75, v%d" % (aS, r_, aS)); p("v_dot2_f32_bf16 v%d, v%d, v%d, v%d" % (aQ, r_, r_, aQ))
    for g in range(2):
        p("v_add_f32 v%d, v%d, v%d" % (T + 4 * g, T + 4 * g, T + 8 + 2 * g)); p("v_add_f32 v%d, v%d, v%d" % (T + 4 * g + 1, T + 4 * g + 1, T + 9 + 2 * g))
    for ctrl in ("quad_perm:[1,0,3,2] row_mask:0xf", "quad_perm:[2,3,0,1] row_mask:0xf", "row_half_mirror row_mask:0xf"):
        for q in (T, T + 1, T + 4, T + 5):
            p("v_add_f32_dpp v%d, v%d, v%d %s bank_mask:0xf" % (q, q, q, ctrl))
    for g in range(2):
        sS, sQ = T + 4 * g, T + 4 * g + 1
        p("v_mul_f32 v%d, 0x3b000000, v%d" % (sS, sS)); p("v_mul_f32 v%d, 0x3b000000, v%d" % (sQ, sQ))
    for g in range(2): p("v_fma_f32 v%d, -v%d, v%d, v%d" % (T + 4 * g + 1, T + 4 * g, T + 4 * g, T + 4 * g + 1))
    for g in range(2): p("v_max_f32 v%d, 0, v%d" % (T + 4 * g + 1, T + 4 * g + 1))
    for g in range(2): p("v_add_f32 v%d, 0x3727c5ac, v%d" % (T + 4 * g + 1, T + 4 * g + 1))
    for g in range(2): p("v_rsq_f32 v%d, v%d" % (T + 4 * g + 1, T + 4 * g + 1))
def sp_stats_store(p):
    T = 200
    for q in (T + 2, T + 3, T + 6, T + 7): p("v_mov_b32 v%d, s%d" % (q, sN))
    p("v_lshrrev_b32 v10, 3, v1"); p("v_lshlrev_b32 v10, 4, v10")
    p("s_lshl_b32 s%d, s73, 4" % sT0)
    p("s_mov_b32 exec_lo, 0x01010101"); p("s_mov_b32 exec_hi, 0x01010101")
    p("buffer_store_dwordx4 %s, v10, s[%d:%d], s%d offen sc1" % (vr(T, 4), ST_, ST_ + 3, sT0), "pst")
    p("buffer_store_dwordx4 %s, v10, s[%d:%d], s%d offen offset:128 sc1" % (vr(T + 4, 4), ST_, ST_ + 3, sT0), "pst")
    p("s_mov_b64 exec, -1")
SPC_LDS = 0
def sp_cs(p):
    A = 216
    p("s_mov_b32 s76, 0x00003f80"); p("s_mov_b32 s77, 0x3f800000")
    for i in range(8):
        for part in range(2):
            for d in range(4):
                r_ = SC_ + 8 * i + 4 * part + d; a = A + 8 * part + 2 * d
                p("v_dot2_f32_bf16 v%d, v%d, s76, %s" % (a, r_, "0" if i == 0 else "v%d" % a))
                p("v_dot2_f32_bf16 v%d, v%d, s77, %s" % (a + 1, r_, "0" if i == 0 else "v%d" % (a + 1)))
    p("v_lshlrev_b32 v10, 5, v1"); p("s_lshl_b32 s%d, s%d, 12" % (sT0, sW)); p("v_add_u32 v10, s%d, v10" % sT0)
    for part in range(2):
        p("ds_write_b128 v10, %s offset:%d" % (vr(A + 8 * part, 4), SPC_LDS + part * 2048))
        p("ds_write_b128 v10, %s offset:%d" % (vr(A + 8 * part + 4, 4), SPC_LDS + part * 2048 + 16))
def sp_cs_store(p):
    p("v_lshlrev_b32 v10, 4, v0")
    for w in range(4): p("ds_read_b128 %s, v10 offset:%d" % (vr(64 + 4 * w, 4), SPC_LDS + w * 4096))
    for c in range(4):
        p("v_add_f32 v%d, v%d, v%d" % (64 + c, 64 + c, 68 + c)); p("v_add_f32 v%d, v%d, v%d" % (72 + c, 72 + c, 76 + c))
    for c in range(4): p("v_add_f32 v%d, v%d, v%d" % (80 + 2 * c, 64 + c, 72 + c)); p("v_mov_b32 v%d, s%d" % (81 + 2 * c, sN))
    p("s_mul_i32 s%d, s74, %d" % (sT0, 1792 * 8)); p("s_and_b32 s%d, s%d, 1" % (sT1, sJ)); p("s_mul_i32 s%d, s%d, %d" % (sT1, sT1, 896 * 8))
    p("s_add_u32 s%d, s%d, s%d" % (sT0, sT0, sT1))
    p("v_lshlrev_b32 v11, 5, v0")
    p("v_cmp_gt_u32 vcc, 224, v0"); p("s_nop 1"); p("v_cndmask_b32 v11, v253, v11, vcc"); p("v_mov_b32 v12, 0x7f000000")
    p("v_cndmask_b32 v11, v12, v11, vcc")
    p("buffer_store_dwordx4 v[80:83], v11, s[%d:%d], s%d offen sc1" % (CSP_, CSP_ + 3, sT0), "pst")
    p("buffer_store_dwordx4 v[84:87], v11, s[%d:%d], s%d offen offset:16 sc1" % (CSP_, CSP_ + 3, sT0), "pst")
def fk_publish(p, name):
    p("s_cmp_eq_u32 s%d, 0" % sW)
    p("s_cbranch_scc0 %s_nofk" % name)
    st = side_path_begin(p)
    p("s_lshl_b32 s%d, s%d, 5" % (sT0, sJ)); p("s_add_u32 s%d, s%d, s%d" % (sT0, sT0, sR))
    p("s_lshl_b32 s%d, s%d, 7" % (sT0, sT0))
    if FL_FK: p("s_add_u32 s%d, s%d, %d" % (sT0, sT0, FL_FK))
    flag_store(p, sT0)
    side_path_end(p, st)
    p.label("%s_nofk" % name)
vPK, vPA = 184, 185
def fk_addr(p, all_waves=False):
    p("v_min_u32 v%d, 31, v1" % vPA); p("v_lshlrev_b32 v%d, 7, v%d" % (vPA, vPA))
    if not all_waves:
        p("s_min_u32 s85, s%d, 1" % sW); p("s_sub_u32 s85, 1, s85"); p("v_mul_u32_u24 v%d, s85, v%d" % (vPA, vPA))
    p("s_lshl_b32 s85, s%d, 12" % sJ)
    if FL_FK: p("s_add_u32 s85, s85, %d" % FL_FK)

vX, vWd, vXA, vWA = 192, 196, 200, 208
G1_ACC = 64
vCS, vB1, vST = 128, 180, 212
B1_ = 40
def g1_dma_setup(p):
    p("v_lshrrev_b32 v10, 3, v1"); p("v_and_b32 v11, 7, v1"); p("v_lshrrev_b32 v12, 1, v10")
    for ii in range(4):
        p("v_add_u32 v13, %d, v12" % (4 * (ii & 1))); p("v_xor_b32 v13, v13, v11")
        p("v_lshlrev_b32 v13, 4, v13"); p("v_lshl_add_u32 v13, v10, 10, v13")
        p("v_add_u32 v%d, %d, v13" % (vX + ii, ii * 8192 - ii * 1024))
    p("v_lshrrev_b32 v10, 4, v1"); p("v_and_b32 v11, 15, v1"); p("v_lshlrev_b32 v12, 2, v10")
    p("v_xor_b32 v12, v12, v11"); p("v_lshlrev_b32 v12, 4, v12")
    p("v_mul_u32_u24 v13, 3584, v10"); p("v_add_u32 v13, v13, v12")
    for ii in range(4): p("v_add_u32 v%d, %d, v13" % (vWd + ii, ii * 4 * 3584 - ii * 1024))
    p("s_lshl_b32 s%d, s%d, 17" % (sXo, sRB)); p("s_lshl_b32 s%d, s%d, 15" % (sT0, sW))
    p("s_add_u32 s%d, s%d, s%d" % (sXo, sXo, sT0))
    p("s_mul_i32 s%d, s%d, %d" % (sWo, sW, 16 * 3584)); p("s_lshl_b32 s%d, s%d, 8" % (sT0, sFT))
    p("s_add_u32 s%d, s%d, s%d" % (sWo, sWo, sT0))
    p("s_lshl_b32 s%d, s%d, 12" % (sM, sW))
def g1_rot_setup(p):
    if not OPT.get("rot", 0): return
    p("s_mul_i32 s%d, s%d, 37" % (sT0, sR)); p("s_lshr_b32 s%d, s%d, 8" % (sT0, sT0))
    p("s_mul_i32 s%d, s%d, 5" % (sT1, sT0)); p("s_sub_u32 s%d, s%d, s%d" % (sT1, sR, sT1))
    p("s_mul_i32 s%d, s%d, %d" % (sT1, sT1, OPT["rot"])); p("s_and_b32 s%d, s%d, 7" % (sROT, sT1))
    p("s_mov_b32 s%d, s%d" % (sXb, sXo)); p("s_mov_b32 s%d, s%d" % (sWb, sWo))
    for it in rot_offsets(): p(it[0])
sROT, sXb, sWb = 72, 6, 7
def rot_offsets():
    return [("s_lshl_b32 s%d, s%d, 7" % (sT3, sROT), None), ("s_add_u32 s%d, s%d, s%d" % (sXo, sXb, sT3), None),
            ("s_mul_i32 s%d, s%d, %d" % (sT3, sROT, 64 * 3584), None), ("s_add_u32 s%d, s%d, s%d" % (sWo, sWb, sT3), None)]
def g1_dma_stage(s):
    out = []; slot = s % 4
    for ii in range(4):
        u = [("s_add_u32 m0, s%d, %d" % (sM, slot * 32768), None)] if ii == 0 else []
        out.append(u + [("buffer_load_dwordx4 v%d, s[%d:%d], s%d offen offset:%d lds" % (vX + ii, GQ_, GQ_ + 3, sXo, ii * 1024), "st%d" % s)])
    for ii in range(4):
        u = [("s_add_u32 m0, s%d, %d" % (sM, slot * 32768 + 16384), None)] if ii == 0 else []
        out.append(u + [("buffer_load_dwordx4 v%d, s[%d:%d], s%d offen offset:%d lds" % (vWd + ii, GW1_, GW1_ + 3, sWo, ii * 1024), "st%d" % s)])
    if OPT.get("rot", 0):
        out[-1] += [("s_add_u32 s%d, s%d, 1" % (sROT, sROT), None), ("s_and_b32 s%d, s%d, 7" % (sROT, sROT), None)] + rot_offsets()
    else:
        out[-1] += [("s_add_u32 s%d, s%d, 128" % (sXo, sXo), None), ("s_add_u32 s%d, s%d, %d" % (sWo, sWo, 64 * 3584), None)]
    return out
def g1_lds_setup(p):
    p("v_and_b32 v10, 31, v1"); p("v_lshrrev_b32 v11, 5, v1")
    p("v_lshrrev_b32 v12, 1, v10"); p("v_and_b32 v12, 7, v12"); p("v_xor_b32 v12, v12, v11")
    p("s_lshr_b32 s%d, s%d, 1" % (sT1, sW)); p("s_lshl_b32 s%d, s%d, 13" % (sT1, sT1))
    p("v_lshlrev_b32 v13, 7, v10"); p("v_add_u32 v13, s%d, v13" % sT1)
    for jj in range(4):
        p("v_xor_b32 v14, %d, v12" % (2 * jj))
        p("v_lshl_add_u32 v%d, v14, 4, v13" % (vXA + jj))
        p("v_add_u32 v%d, 0x10000, v%d" % (vXA + 4 + jj, vXA + jj))
    p("v_and_b32 v10, 15, v1"); p("v_lshrrev_b32 v11, 4, v1"); p("v_lshrrev_b32 v12, 1, v11")
    p("v_and_b32 v11, 1, v11"); p("v_lshrrev_b32 v13, 2, v10")
    p("v_lshl_add_u32 v12, v12, 3, v13"); p("v_lshlrev_b32 v12, 8, v12")
    p("v_and_b32 v14, 1, v10"); p("v_lshl_add_u32 v12, v14, 3, v12"); p("v_add_u32 v12, 16384, v12")
    p("v_and_b32 v14, 3, v10"); p("v_lshrrev_b32 v14, 1, v14"); p("v_lshl_add_u32 v14, v11, 1, v14")
    p("s_and_b32 s%d, s%d, 1" % (sT1, sW)); p("s_lshl_b32 s%d, s%d, 3" % (sT1, sT1))
    p("v_add_u32 v14, s%d, v14" % sT1); p("v_lshlrev_b32 v13, 2, v13")
    for fb in range(2):
        p("v_add_u32 v15, %d, v14" % (4 * fb)); p("v_xor_b32 v15, v15, v13")
        p("v_lshl_add_u32 v%d, v15, 4, v12" % (vWA + fb))
        p("v_add_u32 v%d, 0x10000, v%d" % (vWA + 2 + fb, vWA + fb))

def tab_loads(p):
    p("v_lshlrev_b32 v10, 4, v1")
    p("s_lshl_b32 s83, s%d, 2" % sW); p("s_mul_i32 s83, s83, %d" % (1792 * 8)); p("s_lshl_b32 s84, s%d, 10" % sFT); p("s_add_u32 s83, s83, s84")
    for i in range(4):
        p("buffer_load_dwordx4 %s, v10, s[%d:%d], s83 offen sc1" % (vr(vCS + 4 * i, 4), CSP_, CSP_ + 3), "tab")
        if i < 3: p("s_add_u32 s83, s83, %d" % (1792 * 8))
    p("s_lshr_b32 s84, s%d, 1" % sW); p("s_lshl_b32 s84, s84, 6")
    p("s_lshl_b32 s83, s%d, 7" % sRB); p("s_add_u32 s83, s83, s84"); p("s_lshl_b32 s83, s83, 4")
    p("v_and_b32 v12, 31, v1"); p("v_lshlrev_b32 v12, 4, v12")
    p("buffer_load_dwordx4 %s, v12, s[%d:%d], s83 offen sc1" % (vr(vST, 4), ST_, ST_ + 3), "tab")
    p("buffer_load_dwordx4 %s, v12, s[%d:%d], s83 offen offset:512 sc1" % (vr(vST + 4, 4), ST_, ST_ + 3), "tab")
def tab_check(p):
    _uid[0] += 1; u = _uid[0]
    def cmp():
        tags = [vCS + 4 * i + 1 for i in range(4)] + [vCS + 4 * i + 3 for i in range(4)] + [vST + 2, vST + 6]
        p("v_min3_u32 v10, v%d, v%d, v%d" % tuple(tags[0:3])); p("v_max3_u32 v11, v%d, v%d, v%d" % tuple(tags[0:3]))
        for i in range(3, 9, 2):
            p("v_min3_u32 v10, v10, v%d, v%d" % (tags[i], tags[i + 1])); p("v_max3_u32 v11, v11, v%d, v%d" % (tags[i], tags[i + 1]))
        p("v_min_u32 v10, v10, v%d" % tags[9]); p("v_max_u32 v11, v11, v%d" % tags[9])
        p("v_cmp_ne_u32 vcc, s%d, v10" % sN); p("v_cmp_ne_u32 s[76:77], s%d, v11" % sN)
        p("s_or_b64 vcc, vcc, s[76:77]"); p("s_nop 4")
    cmp()
    p("s_cbranch_vccz Lt%d_ok" % u)
    saved = (list(p.vm), list(p.lg))
    p("s_mov_b32 s79, 0")
    p.label("Lt%d_loop" % u)
    p("s_sleep 2")
    tab_loads(p)
    p.wait(vm=0)
    cmp()
    p("s_cbranch_vccz Lt%d_ok" % u)
    p("s_add_u32 s79, s79, 1"); p("s_cmp_lt_u32 s79, 0x40000"); p("s_cbranch_scc1 Lt%d_loop" % u)
    p.label("Lt%d_ok" % u)
    p.vm, p.lg = saved
def tab_partial(p):
    p("v_add_f32 v%d, v%d, v%d" % (vCS, vCS, vCS + 4)); p("v_add_f32 v%d, v%d, v%d" % (vCS + 2, vCS + 2, vCS + 6))
    p("v_add_f32 v%d, v%d, v%d" % (vCS + 8, vCS + 8, vCS + 12)); p("v_add_f32 v%d, v%d, v%d" % (vCS + 10, vCS + 10, vCS + 14))
    p("v_add_f32 v%d, v%d, v%d" % (vCS, vCS, vCS + 8)); p("v_add_f32 v%d, v%d, v%d" % (vCS + 1, vCS + 2, vCS + 10))
    p("v_lshlrev_b32 v10, 3, v1"); p("s_lshl_b32 s83, s%d, 9" % sW); p("v_add_u32 v10, s83, v10"); p("v_add_u32 v10, %d, v10" % CSQ_LDS)
    p("ds_write_b64 v10, %s" % vr(vCS, 2))

def g1_main(p, fill):
    ACC = G1_ACC; FR = 32
    def reads(g):
        s, jj = g // 4, g % 4
        slot = s % 4; hi = slot >= 2; so = (slot & 1) * 32768
        f = FR + 16 * (g & 1); out = []
        for fb in range(2):
            for rr in range(2):
                out.append("ds_read_b64_tr_b16 %s, v%d offset:%d" % (vr(f + 4 * fb + 2 * rr, 2), vWA + fb + (2 if hi else 0), so + jj * 4096 + rr * 1024))
        for tb in range(2):
            out.append("ds_read_b128 %s, v%d offset:%d" % (vr(f + 8 + 4 * tb, 4), vXA + jj + (4 if hi else 0), so + tb * 4096))
        return out
    def mfmas(g):
        f = FR + 16 * (g & 1); out = []
        for fb in range(2):
            for tb in range(2):
                a = ACC + 16 * (2 * fb + tb)
                out.append("v_mfma_f32_32x32x16_bf16 %s, %s, %s, %s" % (vr(a, 16), vr(f + 4 * fb, 4), vr(f + 8 + 4 * tb, 4), "0" if g == 0 else vr(a, 16)))
        return out
    for s in range(8):
        prewait, pre, units = fill[s][:3]
        tail = fill[s][3] if len(fill[s]) > 3 else []
        p.wait_tag("st%d" % s)
        prewait(p)
        p("s_barrier")
        stamp(p, "g1_st%d" % s)
        pre(p)
        dm = g1_dma_stage(s + 3) if (s + 3 < 8 and s >= 1) else []
        if s == 0: dm = g1_dma_stage(3)
        nm = 16 if s > 0 else 12
        di = ui = k = 0
        for jj in range(4):
            g = 4 * s + jj
            rd = reads(g)
            if g == 0:
                for t in rd: p(t)
                continue
            rm = OPT.get("rdmode", 0)
            if rm == 1:
                for r_ in rd: p(r_)
            for q, t in enumerate(mfmas(g - 1)):
                if not (OPT.get("x_nog1") and q >= 2): p(t)
                if rm == 0:
                    for r_ in rd[2 * q:2 * q + 2]: p(r_)
                if rm == 2:
                    for r_ in rd[3 * q:3 * q + 3]: p(r_)
                if rm == 3 and q == 0:
                    for r_ in rd: p(r_)
                k += 1
                while di < len(dm) and di * nm < k * len(dm):
                    emit(p, dm[di]); di += 1
                while ui < len(units) and ui * nm < k * len(units):
                    emit(p, [units[ui]]); ui += 1
        while di < len(dm): emit(p, dm[di]); di += 1
        while ui < len(units): emit(p, [units[ui]]); ui += 1
        emit(p, tail)
    for t in mfmas(31): p(t)

def g1_epilogue(p, extra):
    HF_ = 44
    srd(p, HF_, P_WS, SZ_HF, WS_HF)
    ACC = G1_ACC; TBL = 128
    p("v_lshrrev_b32 v10, 5, v1"); p("v_lshlrev_b32 v10, 4, v10")
    p("s_and_b32 s%d, s%d, 1" % (sT1, sW)); p("s_lshl_b32 s%d, s%d, 8" % (sT1, sT1))
    p("v_add_u32 v10, s%d, v10" % sT1); p("v_add_u32 v10, %d, v10" % TAB_LDS)
    for rq in range(4):
        p("ds_read_b128 %s, v10 offset:%d" % (vr(TBL + 4 * rq, 4), rq * 32))
        p("ds_read_b128 %s, v10 offset:%d" % (vr(TBL + 16 + 4 * rq, 4), 512 + rq * 32))
    p("s_lshr_b32 s%d, s%d, 1" % (sT1, sW)); p("s_lshl_b32 s%d, s%d, 1" % (sT1, sT1))
    p("s_lshl_b32 s%d, s%d, 2" % (sT0, sRB)); p("s_add_u32 s%d, s%d, s%d" % (sT0, sT0, sT1))
    p("s_mul_i32 s%d, s%d, 112" % (sT0, sT0)); p("s_lshl_b32 s%d, s%d, 3" % (sT1, sFT))
    p("s_add_u32 s%d, s%d, s%d" % (sT0, sT0, sT1))
    p("s_and_b32 s%d, s%d, 1" % (sT1, sW)); p("s_lshl_b32 s%d, s%d, 2" % (sT1, sT1))
    p("s_add_u32 s%d, s%d, s%d" % (sT0, sT0, sT1)); p("s_lshl_b32 s83, s%d, 10" % sT0)
    p("v_lshlrev_b32 v11, 4, v1"); p("v_add_u32 v12, %d, v11" % (112 * 1024))
    for tb in range(2): p("v_mul_f32 v%d, v%d, v%d" % (vST + 4 * tb, vST + 4 * tb, vST + 4 * tb + 1))
    main = []
    TB2 = 32
    for fb in range(2):
        tbl = TBL if fb == 0 else TB2
        for tb in range(2):
            a = ACC + 16 * (2 * fb + tb); mu = vST + 4 * tb
            PK = 160 + 8 * tb
            if fb == 0 and tb == 0:
                for rq in range(4):
                    main.append(("ds_read_b128 %s, v10 offset:%d" % (vr(TB2 + 4 * rq, 4), 128 + rq * 32), None))
                    main.append(("ds_read_b128 %s, v10 offset:%d" % (vr(TB2 + 16 + 4 * rq, 4), 512 + 128 + rq * 32), None))
            for r_ in range(0, 16 if not OPT.get("x_noepi") else 4, 4):
                t0, t1 = 176, 178
                for t, rr in ((t0, r_), (t1, r_ + 2)):
                    main.append(("v_pk_fma_f32 %s, %s, %s, %s op_sel_hi:[0,1,1] neg_lo:[1,0,0] neg_hi:[1,0,0]" % (vr(t, 2), vr(mu, 2), vr(tbl + rr, 2), vr(tbl + 16 + rr, 2)), None))
                for t, rr in ((t0, r_), (t1, r_ + 2)):
                    main.append(("v_pk_fma_f32 %s, %s, %s, %s op_sel:[0,1,0] op_sel_hi:[1,1,1]" % (vr(t, 2), vr(a + rr, 2), vr(mu, 2), vr(t, 2)), None))
                for t in (t0, t0 + 1, t1, t1 + 1): main.append(("v_max_f32 v%d, 0, v%d" % (t, t), None))
                for t in (t0, t1): main.append(("v_pk_mul_f32 %s, %s, %s" % (vr(t, 2), vr(t, 2), vr(t, 2)), None))
                for t, rr in ((t0, r_), (t1, r_ + 2)): main.append(("v_cvt_pk_bf16_f32 v%d, v%d, v%d" % (PK + (rr >> 1), t, t + 1), None))
            for q in range(2):
                main.append(("buffer_store_dwordx4 %s, v%d, s[%d:%d], s83 offen offset:%d sc1" % (vr(PK + 4 * q, 4), 11 + tb, HF_, HF_ + 3, (2 * fb + q) * 1024), "hst"))
    n = len(extra); k = 0
    i0 = int(len(main) * OPT.get("epi_start", 30) / 100.0)
    for i, it in enumerate(main):
        emit(p, [it])
        while i >= i0 and k < n and k * (len(main) - i0) < (i + 1 - i0) * n:
            emit(p, [extra[k]]); k += 1

def h_publish(p):
    p("s_lshl_b32 s%d, s%d, 1" % (sT0, sRB)); p("s_lshr_b32 s%d, s%d, 1" % (sT1, sW))
    p("s_add_u32 s%d, s%d, s%d" % (sT0, sT0, sT1)); p("s_mul_i32 s%d, s%d, 28" % (sT0, sT0))
    p("s_lshl_b32 s%d, s%d, 1" % (sT1, sFT)); p("s_add_u32 s%d, s%d, s%d" % (sT0, sT0, sT1))
    p("s_and_b32 s%d, s%d, 1" % (sT1, sW)); p("s_add_u32 s%d, s%d, s%d" % (sT0, sT0, sT1))
    p("s_lshl_b32 s%d, s%d, 7" % (sT0, sT0)); p("s_add_u32 s%d, s%d, %d" % (sT0, sT0, FL_FH))
    flag_store(p, sT0)

KVT2_, SSM_, DD_, ZT_ = 48, 44, 60, 60
CV_R, vDD = 220, 254
def conv_setup(p):
    srd(p, KVT2_, P_WS, SZ_KVT, WS_KVT); srd(p, SSM_, P_SSM, D * S * 2); srd(p, DD_, P_DD, D * 2)
    p("s_lshr_b32 s%d, s%d, 1" % (sT0, sW)); p("s_and_b32 s%d, s%d, 1" % (sC2, sW))
    p("s_lshl_b32 s%d, s%d, 6" % (sCH, sJ)); p("s_lshl_b32 s%d, s%d, 1" % (sT1, sR))
    p("s_add_u32 s%d, s%d, s%d" % (sCH, sCH, sT1)); p("s_add_u32 s%d, s%d, s%d" % (sCH, sCH, sT0))
    p("s_mul_i32 s%d, s%d, 21248" % (sCB, sT0)); p("s_add_u32 s%d, s%d, %d" % (sCB, sCB, CV0 + 256))
def conv_loads_regs(p):
    p("s_lshl_b32 s83, s%d, 12" % sCH); p("s_lshl_b32 s84, s%d, 11" % sC2); p("s_add_u32 s83, s83, s84")
    p("v_lshlrev_b32 v2, 4, v1")
    R = CV_R
    for sg in range(2):
        for k in range(3):
            p("buffer_load_dwordx4 %s, v2, s[%d:%d], s83 offen offset:%d sc1" % (vr(R + 12 * sg + 4 * k, 4), KVT2_, KVT2_ + 3, sg * 1024 + 4 * k), "cv")
    p("v_mov_b32 v4, 0"); p("s_lshl_b32 s84, s%d, 1" % sCH)
    p("buffer_load_ushort v%d, v4, s[%d:%d], s84 offen" % (vDD, DD_, DD_ + 3), "cv")
def conv_loads_lds(p):
    p("s_lshl_b32 s%d, s%d, 12" % (sT0, sCH)); p("s_lshl_b32 s%d, s%d, 11" % (sT1, sC2))
    p("s_add_u32 s%d, s%d, s%d" % (sT0, sT0, sT1))
    p("v_lshlrev_b32 v2, 4, v1")
    for sg in range(2):
        p("s_add_u32 s%d, s%d, s%d" % (sT2, sCB, sT1))
        p("s_add_u32 m0, s%d, %d" % (sT2, 16640 + 512 + sg * 1024))
        p("s_add_u32 s%d, s%d, %d" % (sT2, sT0, sg * 1024))
        p("buffer_load_dwordx4 v2, s[%d:%d], s%d offen lds" % (SSM_, SSM_ + 3, sT2), "cv")
    for i in range(4): p("v_mov_b32 v%d, 0" % (16 + i))
    p("v_lshrrev_b32 v5, 1, v1"); p("v_mul_u32_u24 v5, 4160, v5")
    p("v_and_b32 v6, 1, v1"); p("v_lshl_add_u32 v5, v6, 4, v5"); p("v_add_u32 v5, 4096, v5")
    p("v_add_u32 v6, 16640, v2")
    p("s_cmp_eq_u32 s%d, 0" % sC2)
    p("s_cselect_b32 s76, 0xff, -1")
    p("s_cselect_b64 vcc, -1, 0")
    p("v_cndmask_b32 v5, v6, v5, vcc")
    p("v_add_u32 v5, s%d, v5" % sCB)
    p("s_mov_b32 exec_lo, s76"); p("s_mov_b32 exec_hi, 0")
    p("ds_write_b128 v5, v[16:19]")
    p("s_mov_b64 exec, -1")

def conv_fill(p):
    R = CV_R
    p("v_mov_b32 v13, %d" % ZCNT_LDS); p("ds_write_b32 v13, v253")
    p("v_lshlrev_b32 v2, 4, v1"); p("v_mov_b32 v8, 0")
    p("s_lshl_b32 s77, s%d, 31" % sC2); p("s_mov_b32 s76, 0")
    last = R + 12
    for rg in (last + 7, last + 10, last + 11): p("v_cndmask_b32 v%d, v%d, v8, s[76:77]" % (rg, rg))
    p("s_lshl_b32 s%d, s%d, 11" % (sT1, sC2)); p("s_add_u32 s%d, s%d, s%d" % (sT1, sT1, sCB))
    p("v_add_u32 v5, s%d, v2" % sT1)
    for sg in range(2):
        r0, r1, r2 = R + 12 * sg, R + 12 * sg + 4, R + 12 * sg + 8
        c1, c3 = 16 + 8 * sg, 20 + 8 * sg
        p("ds_write_b128 v5, %s offset:%d" % (vr(r0, 4), sg * 1024))
        for i in range(4): p("v_alignbit_b32 v%d, v%d, v%d, 16" % (c1 + i, r1 + i, r0 + i))
        p("ds_write_b128 v5, %s offset:%d" % (vr(r1, 4), 2 * 4160 + sg * 1024))
        for i in range(4): p("v_alignbit_b32 v%d, v%d, v%d, 16" % (c3 + i, r2 + i, r1 + i))
        p("ds_write_b128 v5, %s offset:%d" % (vr(c1, 4), 4160 + sg * 1024))
        p("ds_write_b128 v5, %s offset:%d" % (vr(c3, 4), 3 * 4160 + sg * 1024))

def conv_main(p, extra_by_class):
    vA, vB = 12, 13
    p("v_and_b32 v6, 15, v1"); p("v_lshrrev_b32 v7, 4, v1")
    p("v_sub_u32 v14, 3, v6"); p("v_and_b32 v14, 3, v14")
    p("v_mul_u32_u24 v15, 4158, v14")
    p("v_lshlrev_b32 v14, 1, v6"); p("v_sub_u32 v15, v15, v14"); p("v_lshl_add_u32 v15, v7, 4, v15")
    p("s_lshl_b32 s%d, s%d, 8" % (sT1, sC2)); p("s_sub_u32 s%d, s%d, s%d" % (sT1, sCB, sT1))
    p("s_add_u32 s%d, s%d, 30" % (sT2, sT1)); p("v_add_u32 v%d, s%d, v15" % (vA, sT2))
    p("v_lshlrev_b32 v15, 5, v6"); p("v_lshl_add_u32 v15, v7, 4, v15")
    p("s_add_u32 s%d, s%d, %d" % (sT2, sT1, 16640 + 32)); p("v_add_u32 v%d, s%d, v15" % (vB, sT2))
    ACC = 64
    p.wait(lg=0)
    p("s_barrier")
    stamp(p, "conv_filled")
    FA, FB = 96, 160
    def reads(rl):
        st = rl & 1; out = []
        for x in range(8):
            oa = 64 * (63 - rl - 8 * x)
            out.append(("ds_read_b64 %s, v%d offset:%d" % (vr(FA + 32 * st + 4 * x, 2), vA, oa), None))
            out.append(("ds_read_b64 %s, v%d offset:%d" % (vr(FA + 32 * st + 4 * x + 2, 2), vA, oa + 8), None))
            out.append(("ds_read_b128 %s, v%d offset:%d" % (vr(FB + 32 * st + 4 * x, 4), vB, 64 * (7 - rl + 8 * x)), None))
        return out
    seen = set()
    def mf(rl):
        st = rl & 1; out = []
        pairs = sorted([(a, b) for a in range(8) for b in range(8) if a + b <= 7], key=lambda ab: (max(ab), ab))
        for a, b in pairs:
            c = vr(ACC + 4 * (a + b), 4)
            first = (a + b) not in seen; seen.add(a + b)
            out.append(("v_mfma_f32_16x16x32_bf16 %s, %s, %s, %s" % (c, vr(FA + 32 * st + 4 * a, 4), vr(FB + 32 * st + 4 * b, 4), "0" if first else c), None))
        return out
    for t in reads(0): p(*t)
    for rl in range(4):
        pre, fill = extra_by_class[rl]
        pre(p)
        nxt = (reads(rl + 1) if rl < 3 else [])
        m = mf(rl)
        if OPT.get("x_noconv"): m = m[:4]
        ni = fi = 0
        for i, t in enumerate(m):
            p(*t)
            while ni < len(nxt) and ni * 30 < (i + 1) * len(nxt): p(*nxt[ni]); ni += 1
            while fi < len(fill) and fi * 36 < (i + 1) * len(fill): emit(p, [fill[fi]]); fi += 1
    stamp(p, "conv_mma_done")

def conv_finish(p, name, extra):
    ACC = 64
    if not OPT.get("fin_pre", 1): conv_finish_addr(p)
    for q in range(4): p("ds_read_b64 %s, v16 offset:%d" % (vr(36 + 2 * q, 2), (3 - q) * 512))
    n1 = len(extra) // 2
    conv_finish_rest(p, name, extra, n1)
def conv_finish_addr(p):
    RB = RB_LDS
    srd(p, ZT_, P_WS, SZ_ZT, WS_ZT)
    p("v_lshlrev_b32 v2, 4, v1")
    p("s_lshl_b32 s%d, s%d, 12" % (sT1, sW))
    p("v_add_u32 v5, s%d, v2" % sT1); p("v_add_u32 v5, %d, v5" % RB)
    p("s_xor_b32 s%d, s%d, 1" % (sT1, sW)); p("s_lshl_b32 s%d, s%d, 12" % (sT1, sT1))
    p("v_add_u32 v14, s%d, v2" % sT1); p("v_add_u32 v14, %d, v14" % RB)
    p("v_lshlrev_b32 v15, 5, v6"); p("v_lshl_add_u32 v15, v7, 3, v15")
    p("s_lshl_b32 s%d, s%d, 11" % (sT1, sC2)); p("s_sub_u32 s%d, s%d, s%d" % (sT2, sCB, sT1))
    p("s_add_u32 s%d, s%d, %d" % (sT2, sT2, 4088 - 1536)); p("v_sub_u32 v16, s%d, v15" % sT2)
    p("s_lshl_b32 s84, s%d, 12" % sCH); p("s_add_u32 s84, s84, s%d" % sT1)
    p("v_lshlrev_b32 v%d, 16, v%d" % (vDD, vDD))
def conv_finish_rest(p, name, extra, n1):
    ACC = 64
    emit(p, extra[:n1])
    st = side_path_begin(p); hist = len(p.out)
    p("s_cmp_eq_u32 s%d, 0" % sC2)
    p("s_cbranch_scc0 %s_hi" % name)
    for variant in range(2):
        keep = ACC + 16 * variant; give = ACC + 16 * (1 - variant)
        if variant == 1:
            p("s_branch %s_cdone" % name)
            p.label("%s_hi" % name)
            side_path_end(p, st)
            p("s_nop 7")
        for q in range(4): p("ds_write_b128 v5, %s offset:%d" % (vr(give + 4 * q, 4), q * 1024))
        for q in range(4):
            a_ = keep + 4 * q; u = 36 + 2 * q
            for c, (src, hf) in enumerate(((u + 1, 1), (u + 1, 0), (u, 1), (u, 0))):
                unpack(p, 44 + (c & 1), src, hf)
                p("v_fmac_f32 v%d, v%d, v%d" % (a_ + c, 44 + (c & 1), vDD))
        p.wait(lg=0)
        p("s_barrier")
        for q in range(4): p("ds_read_b128 %s, v14 offset:%d" % (vr(20 + 4 * q, 4), q * 1024))
        for q in range(4):
            a_ = keep + 4 * q
            for c in range(4): p("v_add_f32 v%d, v%d, v%d" % (a_ + c, a_ + c, 20 + 4 * q + c))
            p("v_cvt_pk_bf16_f32 v%d, v%d, v%d" % (48 + 2 * q, a_, a_ + 1))
            p("v_cvt_pk_bf16_f32 v%d, v%d, v%d" % (49 + 2 * q, a_ + 2, a_ + 3))
    p.label("%s_cdone" % name)
    emit(p, extra[n1:])
def z_stores(p):
    for q in range(4):
        p("buffer_store_dwordx2 %s, v15, s[%d:%d], s84 offen offset:%d sc1" % (vr(48 + 2 * q, 2), ZT_, ZT_ + 3, q * 512), "zst")
ZCNT_LDS = 163832
def z_publish(p, name):
    p("v_mov_b32 v10, %d" % ZCNT_LDS); p("v_mov_b32 v11, 1")
    p("s_mov_b64 exec, 1")
    p("ds_add_rtn_u32 v11, v10, v11")
    p("s_mov_b64 exec, -1")
    p.wait(lg=0)
    p("v_readfirstlane_b32 s%d, v11" % sT0)
    p("s_cmp_eq_u32 s%d, 3" % sT0)
    p("s_cbranch_scc0 %s_nozp" % name)
    st = side_path_begin(p)
    p("s_lshl_b32 s%d, s%d, 5" % (sT0, sJ)); p("s_add_u32 s%d, s%d, s%d" % (sT0, sT0, sR))
    p("s_lshl_b32 s%d, s%d, 7" % (sT0, sT0)); p("s_add_u32 s%d, s%d, %d" % (sT0, sT0, FL_FZ))
    flag_store(p, sT0)
    side_path_end(p, st)
    p.label("%s_nozp" % name)

HF2_, W2_, Q2_, ZT2_, ST2_, B2_, OUT_ = 40, 8, 48, 52, 56, 64, 44
vH0, vH1, vD0, vD1 = 244, 245, 246, 247
vFH, vFHA = 248, 249
vTRA = 60
sWS = 75
NS = 28
STASH0 = 0
HB = 128
def g2_srd(p):
    srd(p, W2_, P_W2, F * D * 2)
    p("s_lshl_b32 s%d, s%d, 11" % (sM2, sW))
def g2_setup(p):
    if OPT.get("g2map", 0):
        p("s_lshr_b32 s%d, s%d, 1" % (sTok, sJ)); p("s_lshl_b32 s%d, s%d, 9" % (sTok, sTok))
        p("s_lshr_b32 s%d, s%d, 2" % (sT0, sR)); p("s_lshl_b32 s%d, s%d, 6" % (sT0, sT0))
        p("s_add_u32 s%d, s%d, s%d" % (sTok, sTok, sT0))
        p("s_and_b32 s%d, s%d, 1" % (sCh, sJ)); p("s_lshl_b32 s%d, s%d, 2" % (sCh, sCh)); p("s_and_b32 s%d, s%d, 3" % (sT0, sR))
        p("s_add_u32 s%d, s%d, s%d" % (sCh, sCh, sT0)); p("s_lshl_b32 s%d, s%d, 6" % (sCh, sCh))
    else:
        p("s_lshl_b32 s%d, s%d, 8" % (sTok, sJ))
        p("s_lshr_b32 s%d, s%d, 3" % (sT0, sR)); p("s_lshl_b32 s%d, s%d, 6" % (sT0, sT0))
        p("s_add_u32 s%d, s%d, s%d" % (sTok, sTok, sT0))
        p("s_add_u32 s%d, s%d, %d" % (sCh, sR, OPT.get("cbrot", 0))); p("s_and_b32 s%d, s%d, 7" % (sCh, sCh)); p("s_lshl_b32 s%d, s%d, 6" % (sCh, sCh))
    p("s_lshr_b32 s%d, s%d, 5" % (sT0, sTok)); p("s_mul_i32 s%d, s%d, 112" % (sT0, sT0))
    p("s_mul_i32 s%d, s%d, 28" % (sT1, sW))
    p("s_add_u32 s%d, s%d, s%d" % (sT0, sT0, sT1)); p("s_lshl_b32 s%d, s%d, 10" % (sHo, sT0))
    p("s_lshl_b32 s%d, s%d, 14" % (sWA, sT1)); p("s_lshl_b32 s%d, s%d, 1" % (sT0, sCh))
    p("s_add_u32 s%d, s%d, s%d" % (sWA, sWA, sT0))
    p("v_lshlrev_b32 v%d, 4, v1" % vH0)
    p("v_add_u32 v%d, %d, v%d" % (vH1, 112 * 1024, vH0))
    p("v_lshrrev_b32 v10, 3, v1"); p("v_and_b32 v11, 7, v1")
    p("v_lshrrev_b32 v12, 1, v10"); p("v_and_b32 v12, 1, v12"); p("v_lshlrev_b32 v12, 2, v12")
    p("v_xor_b32 v12, v12, v11"); p("v_lshlrev_b32 v12, 4, v12")
    p("v_lshl_add_u32 v%d, v10, 10, v12" % vD0)
    p("v_add_u32 v%d, %d, v%d" % (vD1, 8192 - 1024, vD0))
def g2_setup_tr(p):
    p("v_and_b32 v10, 15, v1"); p("v_lshrrev_b32 v11, 4, v1"); p("v_lshrrev_b32 v12, 1, v11"); p("v_and_b32 v11, 1, v11")
    p("v_lshrrev_b32 v13, 2, v10"); p("v_lshl_add_u32 v12, v12, 2, v13"); p("v_lshlrev_b32 v12, 7, v12")
    p("v_and_b32 v14, 3, v10"); p("v_lshrrev_b32 v15, 1, v14"); p("v_lshl_add_u32 v12, v15, 3, v12")
    p("v_and_b32 v14, 1, v14"); p("v_lshl_add_u32 v14, v14, 1, v11")
    p("v_lshrrev_b32 v15, 3, v10"); p("v_lshlrev_b32 v15, 2, v15")
    p("v_add_u32 v12, s%d, v12" % sM2)
    for cb in range(2):
        p("v_add_u32 v13, %d, v14" % (4 * cb)); p("v_xor_b32 v13, v13, v15")
        p("v_lshl_add_u32 v%d, v13, 4, v12" % (vTRA + cb))
        p("v_add_u32 v%d, 0x10000, v%d" % (vTRA + 2 + cb, vTRA + cb))
def w2_dma(step, slot):
    tag = "w%d" % step
    if OPT.get("x_now2") == 1 or (OPT.get("x_now2") == 2 and (step < 12 or step >= 24)): return [[("s_nop 0", None)]]
    return [[("s_add_u32 m0, s%d, %d" % (sM2, slot * 8192), None),
             ("s_add_u32 s%d, s%d, %d" % (sWS, sWA, step * 16384), None),
             ("buffer_load_dwordx4 v%d, s[%d:%d], s%d offen lds" % (vD0, W2_, W2_ + 3, sWS), tag),
             ("buffer_load_dwordx4 v%d, s[%d:%d], s%d offen offset:1024 lds" % (vD1, W2_, W2_ + 3, sWS), tag)]]
def tr_reads(slot, dst, kind):
    out = []
    for cb in range(2):
        for rr in range(2):
            hi = slot >= 8
            out.append(("ds_read_b64_tr_b16 %s, v%d offset:%d" % (vr(dst + 4 * cb + 2 * rr, 2, kind), vTRA + cb + (2 if hi else 0), (slot - 8 * hi) * 8192 + rr * 1024), None))
    return out
def stash_reads(step, slot): return tr_reads(slot, STASH0 + 8 * (step - 12), 'a')
ORD = list(range(12, 28)) + list(range(4, 12)) + list(range(0, 4))
def h_loads(s):
    slot = s % OPT["depth_h"]
    return [("s_add_u32 s7, s%d, %d" % (sHo, ORD[s] * 1024), None),
            ("buffer_load_dwordx4 %s, v%d, s[%d:%d], s7 offen sc1" % (ar(HB + 8 * slot, 4), vH0, HF2_, HF2_ + 3), "h%d" % s),
            ("buffer_load_dwordx4 %s, v%d, s[%d:%d], s7 offen sc1" % (ar(HB + 8 * slot + 4, 4), vH1, HF2_, HF2_ + 3), "h%d" % s)]
def fh_poll_issue(p):
    p("v_min_u32 v%d, 6, v1" % vFHA); p("v_lshlrev_b32 v%d, 7, v%d" % (vFHA, vFHA))
    p("s_lshr_b32 s83, s%d, 6" % sTok); p("s_mul_i32 s83, s83, 28"); p("s_mul_i32 s%d, s%d, 7" % (sT0, sW)); p("s_add_u32 s83, s83, s%d" % sT0)
    p("s_lshl_b32 s83, s83, 7"); p("s_add_u32 s83, s83, %d" % FL_FH)
    poll_issue(p, vFH, vFHA, 83, "fh")
def g2_h_start(p):
    DH = OPT["depth_h"]
    srd(p, HF2_, P_WS, SZ_HF, WS_HF)
    p.wait_tag("fh")
    poll_check(p, [vFH], [vFHA], [83])
    stamp(p, "g2_h_ready")
    for s in range(OPT.get("h_first", 2)):
        for t in h_loads(s): p(*t)
def h_touch(p):
    DH = OPT["depth_h"]
    n = (NS - DH) * 16 // 8
    p("s_and_b32 s%d, s%d, 7" % (sT0, sR)); p("s_mul_i32 s%d, s%d, %d" % (sT0, sT0, n))
    p("v_add_u32 v10, s%d, v1" % sT0)
    p("v_lshrrev_b32 v11, 4, v10"); p("v_and_b32 v12, 7, v10"); p("v_lshlrev_b32 v12, 7, v12")
    p("v_lshl_add_u32 v12, v11, 10, v12")
    p("v_bfe_u32 v11, v10, 3, 1"); p("v_mul_u32_u24 v11, %d, v11" % (112 * 1024)); p("v_add_u32 v12, v12, v11")
    if n > 32: p("s_mov_b32 exec_hi, 0x%x" % ((1 << (n - 32)) - 1))
    else: p("s_mov_b64 exec, 0x%x" % ((1 << n) - 1))
    p("buffer_load_dword v59, v12, s[%d:%d], s%d offen sc1" % (HF2_, HF2_ + 3, sHo), "touch3")
    p("s_mov_b64 exec, -1")

vST2, vB2 = 16, 20
vY, vOWN = 144, 176
vXq, vZq, vRED, vOUT = 6, 7, 8, 9
def g2_main(p, name, g2_units):
    DH = OPT["depth_h"]
    ACC = 64; FR = 32
    def ep_setup(p):
        srd(p, Q2_, P_Q, S * D * 2)
        srd(p, ZT2_, P_WS, SZ_ZT, WS_ZT); srd(p, ST2_, P_WS, SZ_ST, WS_ST); srd(p, B2_, P_B2, D * 2); srd(p, OUT_, P_OUT, S * D * 2)
    def ep_loads(p):
        p("v_lshrrev_b32 v10, 2, v1"); p("v_and_b32 v11, 3, v1")
        p("v_lshrrev_b32 v12, 2, v10"); p("v_xor_b32 v12, v12, v11")
        p("v_lshlrev_b32 v12, 4, v12"); p("v_lshl_add_u32 v13, v10, 10, v12")
        p("s_lshr_b32 s%d, s%d, 1" % (sT0, sW)); p("s_lshl_b32 s%d, s%d, 5" % (sT0, sT0)); p("s_add_u32 s%d, s%d, s%d" % (sT0, sT0, sTok))
        p("s_and_b32 s%d, s%d, 1" % (sT1, sW)); p("s_lshl_b32 s%d, s%d, 5" % (sT1, sT1)); p("s_add_u32 s%d, s%d, s%d" % (sT1, sT1, sCh))
        p("s_lshl_b32 s%d, s%d, 10" % (sXO, sT0)); p("s_lshl_b32 s%d, s%d, 1" % (sT2, sT1)); p("s_add_u32 s%d, s%d, s%d" % (sXO, sXO, sT2))
        p("s_lshl_b32 s%d, s%d, 11" % (sT3, sW))
        p("s_add_u32 m0, s%d, %d" % (sT3, XT))
        p("buffer_load_dwordx4 v13, s[%d:%d], s%d offen lds" % (Q2_, Q2_ + 3, sXO), "ep")
        p("s_add_u32 s78, s%d, 16384" % sXO)
        p("s_add_u32 m0, s%d, %d" % (sT3, XT + 1024))
        p("buffer_load_dwordx4 v13, s[%d:%d], s78 offen lds" % (Q2_, Q2_ + 3), "ep")
        p("s_lshl_b32 s%d, s%d, 4" % (sT0, sT0))
        p("v_and_b32 v14, 31, v1"); p("v_lshlrev_b32 v15, 4, v14")
        p("buffer_load_dwordx4 %s, v15, s[%d:%d], s%d offen sc1" % (vr(vST2, 4), ST2_, ST2_ + 3, sT0), "ep")
        p("v_lshrrev_b32 v15, 5, v1"); p("v_lshlrev_b32 v12, 5, v15")
        p("buffer_load_dwordx4 %s, v12, s[%d:%d], s%d offen" % (vr(vB2, 4), B2_, B2_ + 3, sT2), "ep")
        p("buffer_load_dwordx4 %s, v12, s[%d:%d], s%d offen offset:16" % (vr(vB2 + 4, 4), B2_, B2_ + 3, sT2), "ep")
        p("v_lshrrev_b32 v12, 2, v14"); p("v_and_b32 v12, 3, v12")
        p("v_lshlrev_b32 v15, 1, v15"); p("v_xor_b32 v15, v15, v12")
        p("v_lshlrev_b32 v15, 4, v15"); p("v_lshl_add_u32 v15, v14, 6, v15")
        p("v_add_u32 v15, s%d, v15" % sT3); p("v_add_u32 v%d, %d, v15" % (vXq, XT))
        p("v_lshrrev_b32 v15, 5, v1"); p("v_lshlrev_b32 v15, 5, v15"); p("v_lshl_add_u32 v%d, v14, 10, v15" % vOUT)
        p("v_add_u32 v%d, %d, v%d" % (vRED, RED, vH0))
    def z_loads(p):
        p("v_lshrrev_b32 v10, 2, v1"); p("v_and_b32 v11, 3, v1")
        p("v_lshlrev_b32 v12, 4, v11"); p("v_lshl_add_u32 v12, v10, 12, v12")
        p("s_and_b32 s%d, s%d, 1" % (sT1, sW)); p("s_lshl_b32 s%d, s%d, 5" % (sT1, sT1)); p("s_add_u32 s%d, s%d, s%d" % (sT1, sT1, sCh))
        p("s_lshl_b32 s%d, s%d, 12" % (sT0, sT1))
        p("s_lshr_b32 s%d, s%d, 1" % (sT1, sW)); p("s_lshl_b32 s%d, s%d, 5" % (sT1, sT1)); p("s_add_u32 s%d, s%d, s%d" % (sT1, sT1, sTok))
        p("s_lshl_b32 s%d, s%d, 1" % (sT1, sT1)); p("s_add_u32 s%d, s%d, s%d" % (sT0, sT0, sT1))
        p("buffer_load_dwordx4 %s, v12, s[%d:%d], s%d offen sc1" % (vr(128, 4), ZT2_, ZT2_ + 3, sT0), "z")
        p("s_add_u32 s%d, s%d, %d" % (sT0, sT0, 16 * 4096))
        p("buffer_load_dwordx4 %s, v12, s[%d:%d], s%d offen sc1" % (vr(132, 4), ZT2_, ZT2_ + 3, sT0), "z")
        p("v_lshrrev_b32 v12, 1, v10"); p("v_and_b32 v12, 3, v12"); p("v_xor_b32 v12, v12, v11")
        p("v_lshlrev_b32 v12, 4, v12"); p("v_lshl_add_u32 v12, v10, 6, v12")
        p("s_lshl_b32 s%d, s%d, 11" % (sT3, sW)); p("s_add_u32 s%d, s%d, %d" % (sT3, sT3, ZTT))
        p("v_add_u32 v%d, s%d, v12" % (vZq + 4, sT3))
        p("v_and_b32 v10, 15, v1"); p("v_lshrrev_b32 v12, 4, v1"); p("v_lshrrev_b32 v13, 1, v12"); p("v_and_b32 v12, 1, v12")
        p("v_lshrrev_b32 v14, 2, v10"); p("v_lshl_add_u32 v13, v13, 4, v14")
        p("v_and_b32 v15, 3, v10"); p("v_lshrrev_b32 v15, 1, v15"); p("v_lshl_add_u32 v15, v12, 1, v15")
        p("v_lshrrev_b32 v14, 1, v14"); p("v_xor_b32 v15, v15, v14")
        p("v_lshlrev_b32 v15, 4, v15"); p("v_lshl_add_u32 v15, v13, 6, v15")
        p("v_and_b32 v14, 1, v10"); p("v_lshl_add_u32 v15, v14, 3, v15")
        p("v_add_u32 v%d, s%d, v15" % (vZq, sT3))
        p("v_xor_b32 v5, 32, v%d" % vZq)
    def y_compute(p):
        XR_, ZR = 136, 164
        p("ds_write_b128 v%d, %s" % (vZq + 4, vr(128, 4))); p("ds_write_b128 v%d, %s offset:1024" % (vZq + 4, vr(132, 4)))
        p.wait_tag("ep")
        p("v_xor_b32 v10, 16, v%d" % vXq)
        p("ds_read_b128 %s, v%d" % (vr(XR_, 4), vXq)); p("ds_read_b128 %s, v10" % vr(XR_ + 4, 4))
        for m in range(4): p("ds_read_b64_tr_b16 %s, v%d offset:%d" % (vr(ZR + 2 * m, 2), vZq if m % 2 == 0 else 5, m * 256))
        mu, rs = vST2, vST2 + 1
        p("v_mul_f32 v%d, v%d, v%d" % (mu, mu, rs))
        for r_ in range(16):
            x, z, b = 48 + 3 * (r_ & 1), 49 + 3 * (r_ & 1), 50 + 3 * (r_ & 1)
            unpack(p, x, XR_ + (r_ >> 1), r_ & 1); unpack(p, z, ZR + (r_ >> 1), r_ & 1); unpack(p, b, vB2 + (r_ >> 1), r_ & 1)
            p("v_fma_f32 v%d, v%d, v%d, -v%d" % (vY + r_, x, rs, mu))
            p("v_add_f32 v%d, v%d, v%d" % (b, b, x))
            p("v_fma_f32 v%d, v%d, v%d, v%d" % (vY + r_, vY + r_, z, b))
    def reads(s): return [t for t, _ in tr_reads(ORD[s], FR + 8 * (s & 1), 'v')]
    def mfmas(s):
        slot = s % DH; out = []
        for cb in range(2):
            A = vr(FR + 8 * (s & 1) + 4 * cb, 4) if ORD[s] < 12 else ar(STASH0 + 8 * (ORD[s] - 12) + 4 * cb, 4)
            for tb in range(2):
                a = vr(ACC + 16 * (2 * tb + cb), 16)
                out.append("v_mfma_f32_32x32x16_bf16 %s, %s, %s, %s" % (a, A, ar(HB + 8 * slot + 4 * tb, 4), "0" if s == 0 else a))
        return out
    vFZ = 56
    def fz_issue(p):
        p("v_min_u32 v%d, 15, v1" % (vFZ + 2)); p("v_lshlrev_b32 v%d, 7, v%d" % (vFZ + 2, vFZ + 2))
        p("s_lshr_b32 s84, s%d, 6" % sCh); p("s_lshl_b32 s84, s84, 1"); p("s_and_b32 s83, s%d, 1" % sW); p("s_add_u32 s84, s84, s83")
        p("s_lshl_b32 s84, s84, 11"); p("s_add_u32 s84, s84, %d" % FL_FZ)
        poll_issue(p, vFZ, vFZ + 2, 84, "fz")
    def fz_check(p):
        p.wait_tag("fz"); poll_check(p, [vFZ], [vFZ + 2], [84])
    S_FZ, S_ZL, S_Y = OPT.get("s_fz", 14), OPT.get("s_zl", 20), OPT.get("s_y", 25)
    yl = rec(y_compute)
    third = (len(yl) + 2) // 3
    extras = {1: rec(ep_setup), 2: rec(ep_loads), S_FZ: rec(fz_issue), S_ZL: rec(z_loads),
              S_Y: yl[:third], S_Y + 1: yl[third:2 * third], S_Y + 2: yl[2 * third:]}
    for pos_, units_ in g2_units.items(): extras[pos_] = extras.get(pos_, []) + units_
    def step(s, ex):
        if s + 1 < NS and ORD[s + 1] < 12:
            p.wait_tag("w%d" % ORD[s + 1])
            for t in reads(s + 1): p(t)
        mf = mfmas(s)
        if OPT.get("x_nog2") and 8 <= s < 18: mf = ["s_nop 0"] * 4
        hl = h_loads(s + DH) if s + DH < NS else []
        if OPT.get("x_noh"): hl = []
        q4 = (len(ex) + 3) // 4
        for i in range(4):
            p(mf[i])
            if i == 2:
                for t in hl[0:2]: p(*t)
            if i == 3:
                for t in hl[2:3]: p(*t)
            emit(p, ex[i * q4:(i + 1) * q4])
    p.wait(lg=0)
    p("s_barrier")
    for s in range(S_ZL):
        if s in (0, 7, 13, 20): stamp(p, "g2_s%d" % s)
        step(s, extras.get(s, []))
        if s == DH:
            p.wait_tag("zst")
            z_publish(p, name)
    p.wait_tag("fz")
    p("v_cmp_ne_u32 vcc, s%d, v%d" % (sN, vFZ)); p("s_nop 4")
    p("s_cbranch_vccnz %s_zlate" % name)
    br = side_path_begin(p)
    for s in range(S_ZL, NS): step(s, extras.get(s, []))
    stamp(p, "g2_mma_done")
    g2_epilogue(p, name + "f", True)
    p("s_branch %s_fin" % name)
    p.label("%s_zlate" % name)
    side_path_end(p, br)
    for s in range(S_ZL, NS): step(s, [])
    g2_epilogue(p, name + "s", False)
    poll_issue(p, vFZ, vFZ + 2, 84, "fz2")
    p.wait(vm=0)
    poll_check(p, [vFZ], [vFZ + 2], [84])
    z_loads(p)
    y_compute(p)
    for r_ in range(16):
        p("v_add_f32 v%d, v%d, v%d" % (vY + r_, vY + r_, vOWN + r_))
    g2_store(p)
    p.wait(vm=63)
    p.label("%s_fin" % name)

OUTPOL = ["", " sc1", " nt", " sc0 sc1"]
def g2_store(p):
    PK = 160
    for r_ in range(16):
        if r_ & 1: p("v_cvt_pk_bf16_f32 v%d, v%d, v%d" % (PK + (r_ >> 1), vY + r_ - 1, vY + r_))
        if r_ == 7: p("buffer_store_dwordx4 %s, v%d, s[%d:%d], s%d offen%s" % (vr(PK, 4), vOUT, OUT_, OUT_ + 3, sXO, OUTPOL[OPT.get("outpol", 0)]))
    p("buffer_store_dwordx4 %s, v%d, s[%d:%d], s%d offen offset:16%s" % (vr(PK + 4, 4), vOUT, OUT_, OUT_ + 3, sXO, OUTPOL[OPT.get("outpol", 0)]))
def g2_epilogue(p, name, have_y):
    ACC = 64
    st = side_path_begin(p)
    for w in range(4):
        if w < 3:
            p("s_cmp_eq_u32 s%d, %d" % (sW, w))
            p("s_cbranch_scc0 %s_rw%d" % (name, w + 1))
        side_path_end(p, st)
        p("s_nop 7"); p("s_nop 3")
        for rel in range(1, 4):
            q = w ^ rel
            for rq in range(4):
                p("ds_write_b128 v%d, %s offset:%d" % (vRED, vr(ACC + 16 * q + 4 * rq, 4), q * 12288 + (rel - 1) * 4096 + rq * 1024))
        for i in range(16): p("v_mov_b32 v%d, v%d" % (vOWN + i, ACC + 16 * w + i))
        if w < 3:
            p("s_branch %s_rwd" % name)
            p.label("%s_rw%d" % (name, w + 1))
    p.label("%s_rwd" % name)
    p("s_mul_i32 s%d, s%d, 12288" % (sT0, sW)); p("v_add_u32 v10, s%d, v%d" % (sT0, vRED))
    p.wait(lg=0)
    p("s_barrier")
    if have_y: stamp(p, "g2_red_bar")
    for sl in range(3):
        for rq in range(4):
            p("ds_read_b128 %s, v10 offset:%d" % (vr(ACC + 16 * sl + 4 * rq, 4), sl * 4096 + rq * 1024))
    for r_ in range(16):
        p("v_add_f32 v%d, v%d, v%d" % (vOWN + r_, vOWN + r_, ACC + r_))
        p("v_add_f32 v%d, v%d, v%d" % (ACC + 16 + r_, ACC + 16 + r_, ACC + 32 + r_))
    for r_ in range(16): p("v_add_f32 v%d, v%d, v%d" % (vOWN + r_, vOWN + r_, ACC + 16 + r_))
    if have_y:
        for r_ in range(16): p("v_add_f32 v%d, v%d, v%d" % (vY + r_, vY + r_, vOWN + r_))
        g2_store(p)

def flat(l): return [x for y in l for x in y]
def gen(name):
    p = Prog()
    prof_reset()
    p("s_cmp_ge_u32 s2, 256")
    p("s_cbranch_scc1 %s_end" % name)
    stamp(p, "rt0", True); stamp(p, "t0")
    p("s_memrealtime s[86:87]")
    load_kernargs(p)
    p("v_and_b32 v1, 63, v0"); p("v_lshrrev_b32 v2, 6, v0")
    p("s_and_b32 s%d, s2, 7" % sJ); p("s_lshr_b32 s%d, s2, 3" % sR)
    p("v_readfirstlane_b32 s%d, v2" % sW)
    p("v_mov_b32 v253, 0")
    pend = list(p.lg); p.lg = []
    tile_indices(p); g1_dma_setup(p); g1_lds_setup(p); g2_setup(p); p_addr(p)
    p("s_lshl_b32 s%d, s2, 2" % sT0); p("s_add_u32 s78, s%d, s%d" % (sT0, sW))
    p.lg = pend
    p("s_waitcnt lgkmcnt(0)")
    stamp(p, "karg")
    p_loads(p)
    tile_srds(p)
    touches_g1(p)
    srd(p, 92, P_DBG, 256)
    p("s_cmp_eq_u32 s78, %d" % (248 * 4))
    p("s_cbranch_scc0 %s_n0" % name)
    st = side_path_begin(p)
    p("v_mov_b32 v250, s86"); p("v_mov_b32 v251, 1")
    p("s_mov_b64 exec, 1")
    p("buffer_store_dwordx2 v[250:251], v253, s[92:95], 0 offen sc1")
    p("s_mov_b64 exec, -1")
    side_path_end(p, st)
    p.label("%s_n0" % name)
    after_loads = side_path_begin(p)
    p("s_cmp_ge_u32 s%d, 28" % sR)
    p("s_cbranch_scc1 %s_spare" % name)
    g1_rot_setup(p)
    for u in g1_dma_stage(0): emit(p, u)
    def common_srds(p):
        srd(p, FL_, P_WS, SZ_FLAG, WS_FLAG); srd(p, KVT_, P_WS, SZ_KVT, WS_KVT); srd(p, ST_, P_WS, SZ_ST, WS_ST); srd(p, CSP_, P_WS, SZ_CSP, WS_CSP)
    def b1_srd(p): srd(p, B1_, P_B1, F * 2)
    common_srds(p); b1_srd(p); g2_srd(p)
    stamp(p, "issued")
    KN = "parallel_sum__ssm_conv_h3__dense_activation_squared_relu__prompt_kernel"
    dm = g1_dma_stage(1) + g1_dma_stage(2)
    kv = rec(kv_compute)
    k = 0
    for i, it in enumerate(kv):
        emit(p, [it])
        while k < 16 and k * len(kv) < (i + 1) * 16: emit(p, dm[k]); k += 1
    while k < 16: emit(p, dm[k]); k += 1
    if OPT["touch"] == 2: touches_g1_late(p)
    stamp(p, "kv_done")
    none = lambda p: None
    lg0 = lambda p: p.wait(lg=0)
    def pre4(p):
        nonce_check(p); fk_publish(p, "g1")
    def b1_load(p):
        p("v_and_b32 v14, 127, v0"); p("v_lshlrev_b32 v14, 1, v14"); p("s_lshl_b32 s84, s%d, 8" % sFT)
        p("buffer_load_ushort v%d, v14, s[%d:%d], s84 offen" % (vB1, B1_, B1_ + 3), "tab")
    def tab_done(p):
        p.wait_tag("tab"); tab_check(p); tab_partial(p)
    def tab_final(p):
        p("v_and_b32 v10, 127, v0"); p("v_lshlrev_b32 v10, 2, v10"); p("v_add_u32 v11, %d, v10" % CSQ_LDS); p("v_add_u32 v10, %d, v10" % TAB_LDS)
        for i in range(4): p("ds_read_b32 v%d, v11 offset:%d" % (20 + i, i * 512))
        p("v_lshlrev_b32 v%d, 16, v%d" % (vB1, vB1))
        p("v_add_f32 v20, v20, v21"); p("v_add_f32 v22, v22, v23"); p("v_add_f32 v20, v20, v22")
        p("ds_write_b32 v10, v20"); p("ds_write_b32 v10, v%d offset:512" % vB1)
    def fk_issue(p):
        fk_addr(p, True); poll_issue(p, vPK, vPA, 85, "fk")
    def fk_check(p):
        p.wait_tag("fk"); poll_check(p, [vPK], [vPA], [85])
    A = [w2_dma(12 + i, i) for i in range(12)]
    B1 = [w2_dma(24 + i, i) for i in range(4)]
    B2 = [w2_dma(4 + i, 4 + i) for i in range(8)]
    C = [w2_dma(i, i) for i in range(4)]
    SCH = {1: dict(s5=A[0:4], s6=A[4:8], s7=A[8:12], epi=[], c1=B1 + B2[0:2], c2=B2[2:8], c3=[], fin=C, g2={}),
           2: dict(s5=A[0:2], s6=A[2:4], s7=A[4:6], epi=A[6:12], c1=B1, c2=B2[0:4], c3=B2[4:8], fin=[], g2={0: C[0], 3: C[1], 5: C[2], 7: C[3]}),
           3: dict(s5=A[0:3], s6=A[3:6], s7=A[6:9], epi=A[9:12], c1=B1 + B2[0:1], c2=B2[1:5], c3=B2[5:8], fin=C[0:2], g2={0: C[2], 3: C[3]}),
           4: dict(s5=A[0:4], s6=A[4:8], s7=A[8:12], epi=[], c1=B1, c2=B2[0:4], c3=B2[4:8], fin=[], g2={0: C[0], 3: C[1], 5: C[2], 7: C[3]}),
           }[OPT.get("sch", 1)]
    def late(p_items): return [p_items]
    fill = {0: (lg0, none, rec(kv_stores) + rec(nonce_issue)),
            1: (none, none, rec(w2_touch) if OPT["w2touch"] == 1 else []),
            2: (none, none, rec(conv_setup)),
            3: (lambda p: p.wait_tag("nonce"), pre4, []),
            4: (none, none, []),
            5: (none, none, rec(tab_loads) + rec(b1_load) + flat(SCH['s5'])),
            6: (none, none, rec(fk_issue) + flat(SCH['s6'][:len(SCH['s6']) // 2]) + [(tab_done, None)] + flat(SCH['s6'][len(SCH['s6']) // 2:])),
            7: (lg0, none, rec(tab_final) + flat(SCH['s7'][:len(SCH['s7']) // 2]) + [(fk_check, None)] + rec(conv_loads_regs) + flat(SCH['s7'][len(SCH['s7']) // 2:]))}
    if OPT.get("g2map", 0):
        np_ = OPT.get("th_parts", 2); t0_ = OPT.get("th_stage", 0)
        for i_ in range(np_):
            a_, b_, c_ = fill[t0_ + i_][:3]
            fill[t0_ + i_] = (a_, b_, c_, rec(w2_touch_half, i_, np_))
    elif OPT["w2touch"] == 6:
        np_ = OPT.get("ta_parts", 2); t0_ = OPT.get("ta_stage", 0); tb_ = OPT.get("tb_stage", 5)
        for i_ in range(np_):
            a_, b_, c_ = fill[t0_ + i_][:3]
            fill[t0_ + i_] = (a_, b_, c_, rec(w2_touch_a, i_, np_))
        a_, b_, c_ = fill[tb_][:3]
        fill[tb_] = (a_, b_, c_, (fill[tb_][3] if len(fill[tb_]) > 3 else []) + rec(w2_touch_b))
    elif OPT.get("plan", 1) == 2:
        ts = OPT.get("tstage", 5)
        fill[5] = (none, none, rec(tab_loads) + rec(b1_load) + rec(fk_issue))
        fill[6] = (none, none, [(tab_done, None)])
        fill[7] = (lg0, none, rec(tab_final) + [(fk_check, None)] + rec(conv_loads_regs))
        a_, b_, c_ = fill[ts]
        fill[ts] = (a_, b_, c_, rec(w2_touch))
    elif OPT["w2touch"] == 4:
        for st_ in range(7):
            a_, b_, c_ = fill[st_]
            fill[st_] = (a_, b_, c_, rec(w2_touch_part, st_))
    if OPT["w2touch"] == 5 and OPT.get("plan", 1) == 1 and not OPT.get("g2map", 0):
        for st_, (k_, n_) in enumerate(((0, 32), (2, 32), (4, 48))):
            a_, b_, c_ = fill[st_]
            fill[st_] = (a_, b_, c_, rec(w2_touch_part, k_, n_))
    if OPT.get("ssmtouch", 3):
        st_ = OPT.get("ssmtouch", 3)
        f_ = fill[st_]
        fill[st_] = (f_[0], f_[1], f_[2], (f_[3] if len(f_) > 3 else []) + rec(ssm_touch))
    g1_main(p, fill)
    stamp(p, "g1_mfma_end")
    p.wait(lg=0)
    p("s_barrier")
    conv_loads_lds(p)
    stamp(p, "g1_mma_done")
    FE = OPT.get("fill_epi", 1)
    epi_x = flat(SCH['epi'])
    if FE: epi_x = interleave(rec(conv_fill), epi_x, len(epi_x) / float(len(rec(conv_fill)))) if epi_x else rec(conv_fill)
    g1_epilogue(p, epi_x)
    p.wait_tag("cv")
    p.label("%s_cfill" % name)
    stamp(p, "g1_epi_done")
    g2_setup_tr(p)
    early = OPT.get("early_stash", 0)
    if early:
        p.wait_tag("w23")
        for t in flat([stash_reads(12 + i, i) for i in range(12)]): p(*t)
        B = flat([w2_dma(24 + i, i) for i in range(4)] + [w2_dma(4 + i, 4 + i) for i in range(8)])
        cf = rec(conv_fill)
        p.wait(lg=0)
        k = 0
        for i, it in enumerate(cf):
            emit(p, [it])
            while k < len(B) and k * len(cf) < (i + 1) * len(B): emit(p, [B[k]]); k += 1
    elif not FE:
        conv_fill(p)
    def c0(p):
        if not early: p.wait_tag("w17")
    def c1(p):
        p.wait_tag("hst")
        if not early: p.wait_tag("w23")
        p("s_cmp_ge_u32 s%d, 28" % sR)
        p("s_cbranch_scc1 %s_nohp" % name)
        st = side_path_begin(p)
        h_publish(p)
        side_path_end(p, st)
        p.label("%s_nohp" % name)
        if not early: p.wait(lg=0)
        stamp(p, "h_pub")
    def c2(p):
        if not early: p.wait(lg=0)
        else: p.wait_tag("w27")
    def c3(p):
        p.wait(lg=0)
        if not early: p.wait_tag("w27")
    if early:
        f0, f1 = [], []
        f2 = flat([stash_reads(24 + i, i) for i in range(4)])
        f3 = flat([w2_dma(i, i) for i in range(4)]) + rec(fh_poll_issue)
    else:
        f0 = flat([stash_reads(12 + i, i) for i in range(6)])
        f1 = interleave(flat([stash_reads(18 + i, 6 + i) for i in range(6)]), flat(SCH['c1']), len(SCH['c1']) / 24.0)
        f2 = flat(SCH['c2'])
        sr_ = flat([stash_reads(24 + i, i) for i in range(4)])
        if OPT.get("fh_early", 0):
            k_ = OPT["fh_early"]
            f3 = sr_[:k_] + rec(fh_poll_issue) + sr_[k_:]
        else:
            f3 = sr_ + rec(fh_poll_issue)
        if SCH['c3']: f3 = interleave(f3, flat(SCH['c3']), len(SCH['c3']) / float(len(f3)))
        if OPT.get("fin_pre", 1): f2 = f2 + rec(conv_finish_addr)
    conv_main(p, [(c0, f0), (c1, f1), (c2, f2), (c3, f3)])
    if not early:
        p.wait(lg=0)
        for u in flat(SCH['fin']): emit(p, u)
    g2_h_start(p)
    conv_finish(p, name, [t for s_ in range(OPT.get("h_first", 2), OPT["depth_h"]) for t in h_loads(s_)])
    stamp(p, "conv_done")
    if OPT["htouch"] == 1: h_touch(p)
    z_stores(p)
    if OPT["htouch"] == 2: h_touch(p)
    g2_main(p, name, {k_: [v_[0]] for k_, v_ in SCH['g2'].items()})
    stamp(p, "end")
    if common.PROF: p.wait(vm=0)
    stamp(p, "end_acked"); stamp(p, "rt1", True)
    prof_flush(p, sW)
    p("s_endpgm")
    p.label("%s_spare" % name)
    side_path_end(p, after_loads)
    sp_loads(p)
    if OPT["touch"] == 2: touches_g1_late(p)
    common_srds(p)
    kv_compute(p, 192, 200)
    p.wait(lg=0)
    p("s_barrier")
    kv_stores(p)
    nonce_issue(p)
    sp_stats(p)
    p.wait_tag("nonce"); nonce_check(p)
    sp_stats_store(p)
    sp_cs(p)
    p.wait(lg=0)
    p.wait_tag("kst")
    p("s_barrier")
    fk_publish(p, "sp")
    sp_cs_store(p)
    p.wait(lg=0)
    p("s_barrier")
    g2_srd(p)
    if OPT.get("g2map", 0): w2_touch_half(p, 0, 1)
    elif OPT["w2touch"] == 6: w2_touch_a(p, 0, 1); w2_touch_b(p)
    elif OPT["w2touch"]: w2_touch(p)
    for u in flat(A): emit(p, u)
    conv_setup(p)
    fk_addr(p, True)
    poll_issue(p, vPK, vPA, 85, "poll")
    p.wait(vm=0, lg=0)
    poll_check(p, [vPK], [vPA], [85])
    conv_loads_regs(p)
    conv_loads_lds(p)
    p.wait(vm=0)
    if FE: conv_fill(p)
    p("s_branch %s_cfill" % name)
    p.label("%s_end" % name)
    p("s_endpgm")
    return p.text(), 512, 256
```

```python
import sys
from common import *
import k0, k1, k2
NAME = "parallel_sum__ssm_conv_h3__dense_activation_squared_relu__prompt"
def header():
    ref = open('cdna_kernels/%s.s.ref' % NAME).read().split('\n')
    out = []
    for l in ref:
        if l.startswith('; @launch') or l.startswith('; Override') or l.startswith('; grid='): break
        out.append(l)
    return '\n'.join(out) + '\n'
def gen_empty(name):
    return '  s_endpgm\n', 8, 8
def build_v1(extra=0):
    ks = [("k0_kernel", k0.gen_k0, 16384 + 512), ("k1_kernel", k1.gen_k1, 133120), ("k2_kernel", k2.gen_k2, 155648)]
    for i in range(extra): ks.append(('e%d_kernel' % i, gen_empty, 0))
    txt = header()
    for n, g, lds in ks: txt += "; @launch kernel=%s grid=(256,1,1) block=(256,1,1) lds=%d\n" % (n, lds)
    txt += '.amdgcn_target "amdgcn-amd-amdhsa--gfx950"\n.text\n'
    descs = ''
    for n, g, lds in ks:
        body, vg, acc = g(n)
        txt += kernel_text(n, body)
        descs += kernel_desc(n, vg, acc)
    txt += '.section .rodata,"a"\n' + descs
    return txt
def build_fused():
    import os
    n = NAME + "_kernel"
    if os.environ.get('VER', '9') == '9':
        import f9
        body, vg, acc = f9.gen('fz')
    elif os.environ.get('VER', '9') == '8':
        import f8
        body, vg, acc = f8.gen('fz')
    elif os.environ.get('VER', '9') == '7':
        import f7
        body, vg, acc = f7.gen('fz')
    elif os.environ.get('VER', '9') == '6':
        import f6
        body, vg, acc = f6.gen('fz')
    elif os.environ.get('VER', '9') == '5':
        import f5
        body, vg, acc = f5.gen('fz')
    elif os.environ.get('VER', '9') == '4':
        import f4
        body, vg, acc = f4.gen("fz")
    else:
        import fused
        body, vg, acc = fused.gen_fused("fz")
    txt = header() + "; @launch grid=(256,1,1) block=(256,1,1) lds=163840\n"
    txt += '.amdgcn_target "amdgcn-amd-amdhsa--gfx950"\n.text\n' + kernel_text(n, body)
    txt += '.section .rodata,"a"\n' + kernel_desc(n, vg, acc)
    return txt
if __name__ == '__main__':
    import common
    import os
    if os.environ.get('OPT'):
        import fused, f4, f5, f6, f7, f8, f9
        for kv in os.environ['OPT'].split(','):
            k, v = kv.split('='); fused.OPT[k] = int(v); f4.OPT[k] = int(v); f5.OPT[k] = int(v); f6.OPT[k] = int(v); f7.OPT[k] = int(v); f8.OPT[k] = int(v); f9.OPT[k] = int(v)
    if '--profdbg' in sys.argv:
        common.PROF = True; common.PROF_DBG = 1; sys.argv.remove('--profdbg')
        common.PROF_ONLY = ['rt0', 't0', 'issued', 'p_done', 'g1_st0', 'g1_mma_done', 'g1_epi_done', 'conv_done', 'g2_first', 'g2_mma_done', 'end_acked', 'rt1']
    if os.environ.get('PROF_ONLY_ENV'): common.PROF_ONLY = os.environ['PROF_ONLY_ENV'].split(',')
    if '--rt' in sys.argv: common.PROF_RT = True; sys.argv.remove('--rt')
    if '--prof' in sys.argv: common.PROF = True; sys.argv.remove('--prof')
    out = sys.argv[1] if len(sys.argv) > 1 else 'cdna_kernels/%s.s' % NAME
    extra = int(__import__('os').environ.get('EXTRA', '0'))
    open(out, 'w').write(build_v1(extra) if 'V1' in __import__('os').environ else build_fused())
    if common.PROF:
        import json; json.dump(common._stamp_names, open(out + '.names', 'w'))
    print("wrote", out)
```

```python
from common import *
import common
from fused import (sN, sJ, sR, sW, sT0, sT1, sT2, sT3, FL_, unpack, flag_store, poll_issue, poll_check,
                   side_path_begin, side_path_end, nonce_issue, nonce_check, _uid)
OPT = dict(touch=0, htouch=0, nt=0, ntkv=0, depth_h=6, w2touch=5, s_fz=17, s_zl=21)
def nt(): return " nt" if OPT["nt"] else ""
def ntkv(): return " nt" if (OPT["nt"] or OPT["ntkv"]) else ""

class Rec:
    def __init__(self): self.items = []; self.grp = None
    def __call__(self, txt, tag=None): (self.grp if self.grp is not None else self.items).append((txt, tag))
    def call(self, fn): (self.grp if self.grp is not None else self.items).append((fn, None))
    def wait(self, vm=None, lg=None): self.call(lambda p: p.wait(vm, lg))
    def wait_tag(self, tag): self.call(lambda p: p.wait_tag(tag))
    def begin(self): self.grp = []
    def end(self): self.items.append(self.grp); self.grp = None
def begin(p):
    if isinstance(p, Rec): p.begin()
def end(p):
    if isinstance(p, Rec): p.end()
def emit(p, items):
    for it in items:
        if isinstance(it, list): emit(p, it)
        elif callable(it[0]): it[0](p)
        else: p(it[0], it[1])
_srd0 = srd
def srd(p, dst, ptr, size, off=0):
    begin(p); _srd0(p, dst, ptr, size, off); end(p)
def rec(fn, *a):
    r = Rec(); fn(r, *a); return r.items

P_LDS, SK_LDS = 131072, 139264
TAB_LDS, CSQ_LDS = 157440, 158464
CV0 = 98304
RB_LDS = CV0 + 256 + 2 * 21248
XT, ZTT, RED = 98304, 106496, 114688
sROW, sRB, sFT = 72, 73, 74
sXo, sWo, sM = 80, 81, 82
sCH, sC2, sCB = 86, 87, 88
sTok, sCh, sHo = 89, 90, 91
sWA, sM2, sXO = 3, 17, 6
K_, V_, SK_, GQ_, GW1_ = 40, 44, 48, 52, 56
KVT_, ST_, CSP_ = 60, 64, 68

KR, VR, SKR, XR, CR = 16, 36, 44, 128, 136
vC, vRR = 3, 4
def p_addr(p):
    vA = 5
    p("v_and_b32 v11, 31, v1"); p("v_lshlrev_b32 v11, 4, v11")
    p("v_and_b32 v%d, 7, v1" % vC); p("v_lshrrev_b32 v%d, 3, v1" % vRR)
    p("s_lshl_b32 s%d, s%d, 6" % (sT0, sR)); p("s_lshl_b32 s%d, s%d, 4" % (sT1, sW))
    p("s_add_u32 s%d, s%d, s%d" % (sT0, sT0, sT1)); p("s_lshl_b32 s%d, s%d, 10" % (sT0, sT0))
    p("s_lshl_b32 s%d, s%d, 7" % (sT1, sJ)); p("s_add_u32 s%d, s%d, s%d" % (sT0, sT0, sT1))
    p("v_lshlrev_b32 v%d, 11, v%d" % (vA, vRR)); p("v_lshl_add_u32 v%d, v%d, 4, v%d" % (vA, vC, vA))
    p("v_add_u32 v%d, s%d, v%d" % (vA, sT0, vA))
    for i in range(5): p("v_add_u32 v%d, %d, v%d" % (6 + i, (i - 3) * 1024, vA))
    p("s_lshl_b32 s%d, s%d, 9" % (sT3, sJ))
def p_loads(p):
    vA = 5
    srd(p, K_, P_K, S * D * 2)
    for i in range(5): p("buffer_load_dwordx4 %s, v%d, s[%d:%d], 0 offen%s" % (vr(KR + 4 * i, 4), 6 + i, K_, K_ + 3, ntkv()))
    srd(p, V_, P_V, S * D * 2)
    p("buffer_load_dwordx4 %s, v%d, s[%d:%d], 0 offen%s" % (vr(VR, 4), vA, V_, V_ + 3, ntkv()))
    p("buffer_load_dwordx4 %s, v%d, s[%d:%d], 0 offen offset:1024%s" % (vr(VR + 4, 4), vA, V_, V_ + 3, ntkv()))
    srd(p, SK_, P_SK, D * 8)
    p("buffer_load_dwordx4 %s, v11, s[%d:%d], s%d offen" % (vr(SKR, 4), SK_, SK_ + 3, sT3))

def tile_srds(p):
    srd(p, GQ_, P_Q, S * D * 2); srd(p, GW1_, P_W1, D * F * 2)
def tile_indices(p):
    p("s_mul_i32 s%d, s%d, 37" % (sT0, sR)); p("s_lshr_b32 s%d, s%d, 8" % (sT0, sT0))
    p("s_mul_i32 s%d, s%d, 7" % (sT1, sT0)); p("s_sub_u32 s%d, s%d, s%d" % (sT1, sR, sT1))
    p("s_lshr_b32 s%d, s%d, 1" % (sT2, sJ)); p("s_lshl_b32 s%d, s%d, 2" % (sT2, sT2))
    p("s_add_u32 s%d, s%d, s%d" % (sRB, sT2, sT0))
    p("s_and_b32 s%d, s%d, 1" % (sT2, sJ)); p("s_mul_i32 s%d, s%d, 7" % (sT2, sT2))
    p("s_add_u32 s%d, s%d, s%d" % (sFT, sT2, sT1))

def touches_g1(p):
    if OPT["touch"] != 1: return
    p("s_lshl_b32 s%d, s%d, 2" % (sT2, sR)); p("s_add_u32 s%d, s%d, s%d" % (sT2, sT2, sW))
    p("v_lshlrev_b32 v9, 7, v1")
    p("s_lshr_b32 s%d, s%d, 1" % (sT0, sJ)); p("s_lshl_b32 s%d, s%d, 19" % (sT0, sT0))
    p("s_lshl_b32 s%d, s%d, 12" % (sT1, sT2)); p("s_add_u32 s%d, s%d, s%d" % (sT0, sT0, sT1))
    p("s_mov_b32 exec_hi, 0")
    p("buffer_load_dword v188, v9, s[%d:%d], s%d offen%s" % (GQ_, GQ_ + 3, sT0, nt()), "touch")
    p("s_mov_b64 exec, -1")
    p("v_mul_u32_u24 v10, 4682, v1"); p("v_lshrrev_b32 v10, 16, v10")
    p("v_mul_u32_u24 v11, 14, v10"); p("v_sub_u32 v11, v1, v11")
    p("v_mul_u32_u24 v10, 3584, v10"); p("v_lshl_add_u32 v10, v11, 7, v10")
    p("s_mul_i32 s%d, s%d, %d" % (sT0, sT2, 4 * 3584)); p("s_and_b32 s%d, s%d, 1" % (sT1, sJ))
    p("s_mul_i32 s%d, s%d, 1792" % (sT1, sT1)); p("s_add_u32 s%d, s%d, s%d" % (sT0, sT0, sT1))
    p("s_mov_b32 exec_hi, 0x00ffffff")
    p("buffer_load_dword v189, v10, s[%d:%d], s%d offen%s" % (GW1_, GW1_ + 3, sT0, nt()), "touch")
    p("s_mov_b64 exec, -1")

def touches_g1_late(p):
    p("s_lshl_b32 s83, s%d, 2" % sR); p("s_add_u32 s83, s83, s%d" % sW)
    p("v_mul_u32_u24 v8, 13108, v1"); p("v_lshrrev_b32 v8, 16, v8")
    p("v_mul_u32_u24 v9, 5, v8"); p("v_sub_u32 v9, v1, v9"); p("v_add_u32 v9, 3, v9")
    p("v_lshlrev_b32 v8, 10, v8"); p("v_lshl_add_u32 v8, v9, 7, v8")
    p("s_lshr_b32 s84, s%d, 1" % sJ); p("s_lshl_b32 s84, s84, 19"); p("s_lshl_b32 s75, s83, 12"); p("s_add_u32 s84, s84, s75")
    begin(p)
    p("s_mov_b64 exec, 0xfffff")
    p("buffer_load_dword v188, v8, s[%d:%d], s84 offen" % (GQ_, GQ_ + 3), "touch")
    p("s_mov_b64 exec, -1")
    end(p)
    p("s_mul_i32 s83, s83, 35"); p("v_add_u32 v8, s83, v1")
    p("v_mul_u32_u24 v9, 4682, v8"); p("v_lshrrev_b32 v9, 16, v9")
    p("v_mul_u32_u24 v10, 14, v9"); p("v_sub_u32 v10, v8, v10")
    p("v_add_u32 v9, 192, v9"); p("v_mul_u32_u24 v9, 3584, v9"); p("v_lshl_add_u32 v9, v10, 7, v9")
    p("s_and_b32 s84, s%d, 1" % sJ); p("s_mul_i32 s84, s84, 1792")
    begin(p)
    p("s_mov_b32 exec_hi, 0x7")
    p("buffer_load_dword v189, v9, s[%d:%d], s84 offen" % (GW1_, GW1_ + 3), "touch")
    p("s_mov_b64 exec, -1")
    end(p)
assert all((L * 4682) >> 16 == L // 14 for L in range(0, 1200)), "check"
def w2_touch(p):
    p("v_lshlrev_b32 v9, 7, v1")
    p("s_lshl_b32 s83, s%d, 2" % sR); p("s_add_u32 s83, s83, s%d" % sW); p("s_mul_i32 s83, s83, 14336")
    p("buffer_load_dword v190, v9, s[8:11], s83 offen", "touch2")
    p("s_add_u32 s83, s83, 8192")
    begin(p)
    p("s_mov_b32 exec_hi, 0xffff")
    p("buffer_load_dword v191, v9, s[8:11], s83 offen", "touch2")
    p("s_mov_b64 exec, -1")
    end(p)

def ssm_touch(p):
    p("v_lshlrev_b32 v9, 7, v1")
    p("s_lshl_b32 s83, s%d, 6" % sJ); p("s_lshl_b32 s84, s%d, 1" % sR); p("s_add_u32 s83, s83, s84"); p("s_lshl_b32 s83, s83, 12")
    p("s_lshl_b32 s84, s%d, 11" % sW); p("s_add_u32 s83, s83, s84")
    begin(p)
    p("s_mov_b64 exec, 0xffff")
    p("buffer_load_dword v191, v9, s[%d:%d], s83 offen%s" % (SSM_, SSM_ + 3, ntkv()), "touch4")
    p("s_mov_b64 exec, -1")
    end(p)
def w2_touch_part(p, k, n=16):
    p("v_lshlrev_b32 v9, 7, v1")
    p("s_lshl_b32 s83, s%d, 2" % sR); p("s_add_u32 s83, s83, s%d" % sW); p("s_mul_i32 s83, s83, 14336")
    if k: p("s_add_u32 s83, s83, %d" % (k * 16 * 128))
    begin(p)
    p("s_mov_b64 exec, 0x%x" % ((1 << n) - 1)) if n <= 16 else (p("s_mov_b32 exec_lo, 0x%x" % (((1 << min(n, 32)) - 1) & 0xffffffff)), p("s_mov_b32 exec_hi, 0x%x" % ((1 << max(n - 32, 0)) - 1)))
    p("buffer_load_dword v%d, v9, s[8:11], s83 offen%s" % ((186, 187, 190, 191)[k & 3], " nt" if OPT.get("ntw2") else ""), "touch2")
    p("s_mov_b64 exec, -1")
    end(p)
def w2_touch_a(p, part, nparts):
    n = 48 // nparts
    p("s_lshl_b32 s83, s%d, 2" % sR); p("s_add_u32 s83, s83, s%d" % sW)
    p("s_lshr_b32 s84, s83, 5"); p("s_mul_i32 s84, s84, 448"); p("s_and_b32 s83, s83, 31"); p("s_mul_i32 s83, s83, 6")
    p("s_add_u32 s83, s83, s84"); p("s_add_u32 s83, s83, 192"); p("s_lshl_b32 s83, s83, 10")
    if part: p("s_add_u32 s83, s83, %d" % (part * n * 128))
    p("v_lshlrev_b32 v9, 7, v1")
    begin(p)
    if n <= 32: p("s_mov_b64 exec, 0x%x" % ((1 << n) - 1)) if n <= 16 else (p("s_mov_b32 exec_lo, 0x%x" % ((1 << n) - 1)), p("s_mov_b32 exec_hi, 0"))
    else: p("s_mov_b32 exec_hi, 0x%x" % ((1 << (n - 32)) - 1))
    p("buffer_load_dword v%d, v9, s[8:11], s83 offen" % (186 + (part & 1)), "touch2")
    p("s_mov_b64 exec, -1")
    end(p)
def w2_touch_b(p):
    p("s_lshl_b32 s83, s%d, 2" % sR); p("s_add_u32 s83, s83, s%d" % sW)
    p("s_lshr_b32 s84, s83, 5"); p("s_mul_i32 s84, s84, 448"); p("s_and_b32 s83, s83, 31")
    begin(p); p("s_cmp_ge_u32 s83, 24"); p("s_cselect_b32 s75, 192, 0"); end(p)
    p("s_lshl_b32 s83, s83, 3"); p("s_add_u32 s83, s83, s75"); p("s_add_u32 s83, s83, s84"); p("s_lshl_b32 s83, s83, 10")
    p("v_lshlrev_b32 v9, 7, v1")
    p("buffer_load_dword v190, v9, s[8:11], s83 offen", "touch2")
def code_touch(p, kname):
    _uid[0] += 1; u = _uid[0]
    begin(p)
    p("s_getpc_b64 s[76:77]")
    p("Lct%d:" % u)
    p("s_sub_u32 s76, s76, Lct%d-%s" % (u, kname))
    p("s_subb_u32 s77, s77, 0")
    end(p)
    p("s_lshl_b32 s83, s%d, 2" % sR); p("s_add_u32 s83, s83, s%d" % sW)
    p("v_lshlrev_b32 v8, 7, v1"); p("v_add_u32 v8, s83, v8")
    p("v_lshlrev_b32 v8, 7, v8")
    p("v_min_u32 v8, %s_end-%s-4, v8" % (kname_end[0], kname))
    begin(p)
    p("v_mov_b32 v9, s77"); p("v_add_co_u32 v8, vcc, s76, v8"); p("s_nop 1"); p("v_addc_co_u32 v9, vcc, 0, v9, vcc")
    p("s_mov_b64 exec, 7")
    p("global_load_dword v186, v[8:9], off", "codet")
    p("s_mov_b64 exec, -1")
    end(p)
kname_end = ["fz"]

vKL, vKG0, vKG1 = 24, 25, 26
def kv_compute(p, RES=100, A=108):
    p("s_lshl_b32 s%d, s%d, 9" % (sT0, sW)); p("s_add_u32 s%d, s%d, %d" % (sT0, sT0, SK_LDS))
    p("v_and_b32 v11, 31, v1"); p("v_lshlrev_b32 v11, 4, v11"); p("v_add_u32 v11, s%d, v11" % sT0)
    p("v_lshlrev_b32 v2, 6, v%d" % vC); p("v_add_u32 v2, s%d, v2" % sT0)
    p("ds_write_b128 v11, %s" % vr(SKR, 4))
    p("s_lshl_b32 s%d, s%d, 3" % (sT0, sW)); p("s_sub_u32 s%d, 31, s%d" % (sT0, sT0))
    p("v_sub_u32 v15, s%d, v%d" % (sT0, vRR))
    p("v_lshrrev_b32 v6, 2, v15"); p("v_xor_b32 v6, v6, v%d" % vC)
    p("v_and_b32 v15, 3, v15"); p("v_lshlrev_b32 v15, 2, v15")
    p("v_lshl_add_u32 v15, v6, 4, v15"); p("v_lshl_add_u32 v15, v%d, 10, v15" % vC)
    p("v_add_u32 v15, %d, v15" % P_LDS)
    p.wait(lg=0)
    for i in range(4): p("ds_read_b128 %s, v2 offset:%d" % (vr(SKR + 4 * i, 4), 16 * i))
    p("s_mov_b32 s76, 0x05040100"); p("s_mov_b32 s77, 0x07060302")
    for e in range(8 if not OPT.get("x_nokv") else 1):
        dw, hf = e >> 1, e & 1
        sel = 76 + hf
        K = lambda i: KR + 4 * i + dw
        a = A + 8 * (e & 1)
        p("v_perm_b32 v%d, v%d, v%d, s%d" % (a + 0, K(2), K(3), sel))
        p("v_perm_b32 v%d, v%d, v%d, s%d" % (a + 1, K(0), K(1), sel))
        p("v_perm_b32 v%d, v%d, v%d, s%d" % (a + 2, K(3), K(4), sel))
        p("v_perm_b32 v%d, v%d, v%d, s%d" % (a + 3, K(1), K(2), sel))
        p("v_dot2_f32_bf16 v%d, v%d, v%d, 0" % (a + 4, a + 0, SKR + 2 * e))
        p("v_dot2_f32_bf16 v%d, v%d, v%d, 0" % (a + 5, a + 2, SKR + 2 * e))
        unpack(p, a + 6, VR + dw, hf); unpack(p, a + 7, VR + 4 + dw, hf)
        p("v_dot2_f32_bf16 v%d, v%d, v%d, v%d" % (a + 4, a + 1, SKR + 2 * e + 1, a + 4))
        p("v_dot2_f32_bf16 v%d, v%d, v%d, v%d" % (a + 5, a + 3, SKR + 2 * e + 1, a + 5))
        if e > 0:
            b = A + 8 * ((e - 1) & 1)
            p("v_mul_f32 v%d, v%d, v%d" % (b + 4, b + 4, b + 6)); p("v_mul_f32 v%d, v%d, v%d" % (b + 5, b + 5, b + 7))
            p("v_cvt_pk_bf16_f32 v%d, v%d, v%d" % (RES + e - 1, b + 5, b + 4))
            p("ds_write_b32 v15, v%d offset:%d" % (RES + e - 1, (e - 1) * 128))
    b = A + 8
    p("s_lshl_b32 s%d, s%d, 4" % (sT0, sW)); p("v_add_u32 v6, s%d, v%d" % (sT0, vRR))
    p("v_mul_f32 v%d, v%d, v%d" % (b + 4, b + 4, b + 6)); p("v_mul_f32 v%d, v%d, v%d" % (b + 5, b + 5, b + 7))
    p("v_cvt_pk_bf16_f32 v%d, v%d, v%d" % (RES + 7, b + 5, b + 4))
    p("ds_write_b32 v15, v%d offset:%d" % (RES + 7, 7 * 128))
    p("v_lshlrev_b32 v7, 7, v6"); p("v_lshl_add_u32 v7, v%d, 4, v7" % vC); p("v_add_u32 v%d, %d, v7" % (vKL, P_LDS))
    p("v_lshlrev_b32 v8, 12, v6"); p("s_lshl_b32 s%d, s%d, 1" % (sT1, sW))
    p("v_xor_b32 v9, s%d, v%d" % (sT1, vC)); p("v_lshl_add_u32 v%d, v9, 4, v8" % vKG0)
    p("s_add_u32 s%d, s%d, 1" % (sT1, sT1))
    p("v_xor_b32 v10, s%d, v%d" % (sT1, vC)); p("v_lshl_add_u32 v10, v10, 4, v8"); p("v_add_u32 v%d, 0x8000, v10" % vKG1)
def kv_stores(p):
    p("ds_read_b128 v[16:19], v%d" % vKL); p("ds_read_b128 v[20:23], v%d offset:1024" % vKL)
    p("s_lshl_b32 s83, s%d, 18" % sJ); p("s_lshl_b32 s84, s%d, 7" % sR)
    p("s_sub_u32 s83, s83, s84"); p("s_add_u32 s83, s83, 3968")
    p("buffer_store_dwordx4 v[16:19], v%d, s[%d:%d], s83 offen sc1" % (vKG0, KVT_, KVT_ + 3), "kst")
    p("buffer_store_dwordx4 v[20:23], v%d, s[%d:%d], s83 offen sc1" % (vKG1, KVT_, KVT_ + 3), "kst")

SX, SC_ = 128, 64
def sp_loads(p):
    p("s_sub_u32 s72, s%d, 28" % sR)
    p("s_lshr_b32 s%d, s%d, 1" % (sT0, sJ)); p("s_lshl_b32 s%d, s%d, 9" % (sT0, sT0))
    p("s_and_b32 s%d, s%d, 1" % (sT1, sJ)); p("s_lshl_b32 s%d, s%d, 2" % (sT1, sT1)); p("s_add_u32 s%d, s%d, s72" % (sT1, sT1))
    p("s_lshl_b32 s%d, s%d, 6" % (sT1, sT1)); p("s_add_u32 s%d, s%d, s%d" % (sT0, sT0, sT1))
    p("s_lshl_b32 s%d, s%d, 4" % (sT1, sW)); p("s_add_u32 s73, s%d, s%d" % (sT0, sT1))
    p("s_lshl_b32 s%d, s73, 10" % sT0)
    p("v_lshrrev_b32 v10, 3, v1"); p("v_and_b32 v11, 7, v1"); p("v_lshlrev_b32 v11, 4, v11"); p("v_lshl_add_u32 v10, v10, 10, v11")
    for g in range(2):
        for i in range(8):
            p("buffer_load_dwordx4 %s, v10, s[%d:%d], s%d offen offset:%d" % (vr(SX + 32 * g + 4 * i, 4), GQ_, GQ_ + 3, sT0, i * 128), "sx")
        if g == 0: p("s_add_u32 s%d, s%d, 8192" % (sT0, sT0))
    p("s_lshr_b32 s74, s%d, 1" % sJ); p("s_lshl_b32 s74, s74, 2"); p("s_add_u32 s74, s74, s72")
    p("s_lshl_b32 s%d, s74, 5" % sT0); p("s_lshl_b32 s%d, s%d, 3" % (sT1, sW)); p("s_add_u32 s%d, s%d, s%d" % (sT0, sT0, sT1))
    p("s_mul_i32 s%d, s%d, 3584" % (sT0, sT0)); p("s_and_b32 s%d, s%d, 1" % (sT1, sJ)); p("s_mul_i32 s%d, s%d, 1792" % (sT1, sT1))
    p("s_add_u32 s%d, s%d, s%d" % (sT0, sT0, sT1))
    p("v_lshlrev_b32 v12, 4, v1")
    for i in range(8):
        p("buffer_load_dwordx4 %s, v12, s[%d:%d], s%d offen" % (vr(SC_ + 8 * i, 4), GW1_, GW1_ + 3, sT0), "sc")
        p("buffer_load_dwordx4 %s, v12, s[%d:%d], s%d offen offset:1024" % (vr(SC_ + 8 * i + 4, 4), GW1_, GW1_ + 3, sT0), "sc")
        if i < 7: p("s_add_u32 s%d, s%d, 3584" % (sT0, sT0))
def sp_stats(p):
    T = 200
    p("s_mov_b32 s75, 0x3f803f80")
    for g in range(2):
        for h in range(2): p("v_mov_b32 v%d, 0" % (T + 4 * g + h)); p("v_mov_b32 v%d, 0" % (T + 8 + 2 * g + h))
    for i in range(8):
        for g in range(2):
            for d in range(4):
                r_ = SX + 32 * g + 4 * i + d
                aS, aQ = (T + 4 * g, T + 4 * g + 1) if d & 1 else (T + 8 + 2 * g, T + 9 + 2 * g)
                p("v_dot2_f32_bf16 v%d, v%d, s75, v%d" % (aS, r_, aS)); p("v_dot2_f32_bf16 v%d, v%d, v%d, v%d" % (aQ, r_, r_, aQ))
    for g in range(2):
        p("v_add_f32 v%d, v%d, v%d" % (T + 4 * g, T + 4 * g, T + 8 + 2 * g)); p("v_add_f32 v%d, v%d, v%d" % (T + 4 * g + 1, T + 4 * g + 1, T + 9 + 2 * g))
    for ctrl in ("quad_perm:[1,0,3,2] row_mask:0xf", "quad_perm:[2,3,0,1] row_mask:0xf", "row_half_mirror row_mask:0xf"):
        for q in (T, T + 1, T + 4, T + 5):
            p("v_add_f32_dpp v%d, v%d, v%d %s bank_mask:0xf" % (q, q, q, ctrl))
    for g in range(2):
        sS, sQ = T + 4 * g, T + 4 * g + 1
        p("v_mul_f32 v%d, 0x3b000000, v%d" % (sS, sS)); p("v_mul_f32 v%d, 0x3b000000, v%d" % (sQ, sQ))
    for g in range(2): p("v_fma_f32 v%d, -v%d, v%d, v%d" % (T + 4 * g + 1, T + 4 * g, T + 4 * g, T + 4 * g + 1))
    for g in range(2): p("v_max_f32 v%d, 0, v%d" % (T + 4 * g + 1, T + 4 * g + 1))
    for g in range(2): p("v_add_f32 v%d, 0x3727c5ac, v%d" % (T + 4 * g + 1, T + 4 * g + 1))
    for g in range(2): p("v_rsq_f32 v%d, v%d" % (T + 4 * g + 1, T + 4 * g + 1))
def sp_stats_store(p):
    T = 200
    for g in range(2): p("v_mov_b32 v%d, v%d" % (T + 4 * g + 2, T + 4 * g + 1))
    for q in (T + 1, T + 3, T + 5, T + 7): p("v_mov_b32 v%d, s%d" % (q, sN))
    p("v_lshrrev_b32 v10, 3, v1"); p("v_lshlrev_b32 v10, 4, v10")
    p("s_lshl_b32 s%d, s73, 4" % sT0)
    p("s_mov_b32 exec_lo, 0x01010101"); p("s_mov_b32 exec_hi, 0x01010101")
    p("buffer_store_dwordx4 %s, v10, s[%d:%d], s%d offen sc1" % (vr(T, 4), ST_, ST_ + 3, sT0), "pst")
    p("buffer_store_dwordx4 %s, v10, s[%d:%d], s%d offen offset:128 sc1" % (vr(T + 4, 4), ST_, ST_ + 3, sT0), "pst")
    p("s_mov_b64 exec, -1")
SPC_LDS = 0
def sp_cs(p):
    A = 216
    p("s_mov_b32 s76, 0x00003f80"); p("s_mov_b32 s77, 0x3f800000")
    for i in range(8):
        for part in range(2):
            for d in range(4):
                r_ = SC_ + 8 * i + 4 * part + d; a = A + 8 * part + 2 * d
                p("v_dot2_f32_bf16 v%d, v%d, s76, %s" % (a, r_, "0" if i == 0 else "v%d" % a))
                p("v_dot2_f32_bf16 v%d, v%d, s77, %s" % (a + 1, r_, "0" if i == 0 else "v%d" % (a + 1)))
    p("v_lshlrev_b32 v10, 5, v1"); p("s_lshl_b32 s%d, s%d, 12" % (sT0, sW)); p("v_add_u32 v10, s%d, v10" % sT0)
    for part in range(2):
        p("ds_write_b128 v10, %s offset:%d" % (vr(A + 8 * part, 4), SPC_LDS + part * 2048))
        p("ds_write_b128 v10, %s offset:%d" % (vr(A + 8 * part + 4, 4), SPC_LDS + part * 2048 + 16))
def sp_cs_store(p):
    p("v_lshlrev_b32 v10, 4, v0")
    for w in range(4): p("ds_read_b128 %s, v10 offset:%d" % (vr(64 + 4 * w, 4), SPC_LDS + w * 4096))
    for c in range(4):
        p("v_add_f32 v%d, v%d, v%d" % (64 + c, 64 + c, 68 + c)); p("v_add_f32 v%d, v%d, v%d" % (72 + c, 72 + c, 76 + c))
    for c in range(4): p("v_add_f32 v%d, v%d, v%d" % (80 + 2 * c, 64 + c, 72 + c)); p("v_mov_b32 v%d, s%d" % (81 + 2 * c, sN))
    p("s_mul_i32 s%d, s74, %d" % (sT0, 1792 * 8)); p("s_and_b32 s%d, s%d, 1" % (sT1, sJ)); p("s_mul_i32 s%d, s%d, %d" % (sT1, sT1, 896 * 8))
    p("s_add_u32 s%d, s%d, s%d" % (sT0, sT0, sT1))
    p("v_lshlrev_b32 v11, 5, v0")
    p("v_cmp_gt_u32 vcc, 224, v0"); p("s_nop 1"); p("v_cndmask_b32 v11, v253, v11, vcc"); p("v_mov_b32 v12, 0x7f000000")
    p("v_cndmask_b32 v11, v12, v11, vcc")
    p("buffer_store_dwordx4 v[80:83], v11, s[%d:%d], s%d offen sc1" % (CSP_, CSP_ + 3, sT0), "pst")
    p("buffer_store_dwordx4 v[84:87], v11, s[%d:%d], s%d offen offset:16 sc1" % (CSP_, CSP_ + 3, sT0), "pst")
def fk_publish(p, name):
    p("s_cmp_eq_u32 s%d, 0" % sW)
    p("s_cbranch_scc0 %s_nofk" % name)
    st = side_path_begin(p)
    p("s_lshl_b32 s%d, s%d, 5" % (sT0, sJ)); p("s_add_u32 s%d, s%d, s%d" % (sT0, sT0, sR))
    p("s_lshl_b32 s%d, s%d, 7" % (sT0, sT0))
    if FL_FK: p("s_add_u32 s%d, s%d, %d" % (sT0, sT0, FL_FK))
    flag_store(p, sT0)
    side_path_end(p, st)
    p.label("%s_nofk" % name)
vPK, vPA = 184, 185
def fk_addr(p, all_waves=False):
    p("v_min_u32 v%d, 31, v1" % vPA); p("v_lshlrev_b32 v%d, 7, v%d" % (vPA, vPA))
    if not all_waves:
        p("s_min_u32 s85, s%d, 1" % sW); p("s_sub_u32 s85, 1, s85"); p("v_mul_u32_u24 v%d, s85, v%d" % (vPA, vPA))
    p("s_lshl_b32 s85, s%d, 12" % sJ)
    if FL_FK: p("s_add_u32 s85, s85, %d" % FL_FK)

vX, vWd, vXA, vWA = 192, 196, 200, 208
G1_ACC = 64
vCS, vB1, vST = 128, 180, 212
B1_ = 40
def g1_dma_setup(p):
    p("v_lshrrev_b32 v10, 3, v1"); p("v_and_b32 v11, 7, v1"); p("v_lshrrev_b32 v12, 1, v10")
    for ii in range(4):
        p("v_add_u32 v13, %d, v12" % (4 * (ii & 1))); p("v_xor_b32 v13, v13, v11")
        p("v_lshlrev_b32 v13, 4, v13"); p("v_lshl_add_u32 v13, v10, 10, v13")
        p("v_add_u32 v%d, %d, v13" % (vX + ii, ii * 8192 - ii * 1024))
    p("v_lshrrev_b32 v10, 4, v1"); p("v_and_b32 v11, 15, v1"); p("v_lshlrev_b32 v12, 2, v10")
    p("v_xor_b32 v12, v12, v11"); p("v_lshlrev_b32 v12, 4, v12")
    p("v_mul_u32_u24 v13, 3584, v10"); p("v_add_u32 v13, v13, v12")
    for ii in range(4): p("v_add_u32 v%d, %d, v13" % (vWd + ii, ii * 4 * 3584 - ii * 1024))
    p("s_lshl_b32 s%d, s%d, 17" % (sXo, sRB)); p("s_lshl_b32 s%d, s%d, 15" % (sT0, sW))
    p("s_add_u32 s%d, s%d, s%d" % (sXo, sXo, sT0))
    p("s_mul_i32 s%d, s%d, %d" % (sWo, sW, 16 * 3584)); p("s_lshl_b32 s%d, s%d, 8" % (sT0, sFT))
    p("s_add_u32 s%d, s%d, s%d" % (sWo, sWo, sT0))
    p("s_lshl_b32 s%d, s%d, 12" % (sM, sW))
def g1_dma_stage(s):
    out = []; slot = s % 4
    for ii in range(4):
        u = [("s_add_u32 m0, s%d, %d" % (sM, slot * 32768), None)] if ii == 0 else []
        out.append(u + [("buffer_load_dwordx4 v%d, s[%d:%d], s%d offen offset:%d lds" % (vX + ii, GQ_, GQ_ + 3, sXo, ii * 1024), "st%d" % s)])
    for ii in range(4):
        u = [("s_add_u32 m0, s%d, %d" % (sM, slot * 32768 + 16384), None)] if ii == 0 else []
        out.append(u + [("buffer_load_dwordx4 v%d, s[%d:%d], s%d offen offset:%d lds" % (vWd + ii, GW1_, GW1_ + 3, sWo, ii * 1024), "st%d" % s)])
    out[-1] += [("s_add_u32 s%d, s%d, 128" % (sXo, sXo), None), ("s_add_u32 s%d, s%d, %d" % (sWo, sWo, 64 * 3584), None)]
    return out
def g1_lds_setup(p):
    p("v_and_b32 v10, 31, v1"); p("v_lshrrev_b32 v11, 5, v1")
    p("v_lshrrev_b32 v12, 1, v10"); p("v_and_b32 v12, 7, v12"); p("v_xor_b32 v12, v12, v11")
    p("s_lshr_b32 s%d, s%d, 1" % (sT1, sW)); p("s_lshl_b32 s%d, s%d, 13" % (sT1, sT1))
    p("v_lshlrev_b32 v13, 7, v10"); p("v_add_u32 v13, s%d, v13" % sT1)
    for jj in range(4):
        p("v_xor_b32 v14, %d, v12" % (2 * jj))
        p("v_lshl_add_u32 v%d, v14, 4, v13" % (vXA + jj))
        p("v_add_u32 v%d, 0x10000, v%d" % (vXA + 4 + jj, vXA + jj))
    p("v_and_b32 v10, 15, v1"); p("v_lshrrev_b32 v11, 4, v1"); p("v_lshrrev_b32 v12, 1, v11")
    p("v_and_b32 v11, 1, v11"); p("v_lshrrev_b32 v13, 2, v10")
    p("v_lshl_add_u32 v12, v12, 3, v13"); p("v_lshlrev_b32 v12, 8, v12")
    p("v_and_b32 v14, 1, v10"); p("v_lshl_add_u32 v12, v14, 3, v12"); p("v_add_u32 v12, 16384, v12")
    p("v_and_b32 v14, 3, v10"); p("v_lshrrev_b32 v14, 1, v14"); p("v_lshl_add_u32 v14, v11, 1, v14")
    p("s_and_b32 s%d, s%d, 1" % (sT1, sW)); p("s_lshl_b32 s%d, s%d, 3" % (sT1, sT1))
    p("v_add_u32 v14, s%d, v14" % sT1); p("v_lshlrev_b32 v13, 2, v13")
    for fb in range(2):
        p("v_add_u32 v15, %d, v14" % (4 * fb)); p("v_xor_b32 v15, v15, v13")
        p("v_lshl_add_u32 v%d, v15, 4, v12" % (vWA + fb))
        p("v_add_u32 v%d, 0x10000, v%d" % (vWA + 2 + fb, vWA + fb))

def tab_loads(p):
    p("v_lshlrev_b32 v10, 4, v1")
    p("s_lshl_b32 s83, s%d, 2" % sW); p("s_mul_i32 s83, s83, %d" % (1792 * 8)); p("s_lshl_b32 s84, s%d, 10" % sFT); p("s_add_u32 s83, s83, s84")
    for i in range(4):
        p("buffer_load_dwordx4 %s, v10, s[%d:%d], s83 offen sc1" % (vr(vCS + 4 * i, 4), CSP_, CSP_ + 3), "tab")
        if i < 3: p("s_add_u32 s83, s83, %d" % (1792 * 8))
    p("s_lshr_b32 s84, s%d, 1" % sW); p("s_lshl_b32 s84, s84, 6")
    p("s_lshl_b32 s83, s%d, 7" % sRB); p("s_add_u32 s83, s83, s84"); p("s_lshl_b32 s83, s83, 4")
    p("v_and_b32 v12, 31, v1"); p("v_lshlrev_b32 v12, 4, v12")
    p("buffer_load_dwordx4 %s, v12, s[%d:%d], s83 offen sc1" % (vr(vST, 4), ST_, ST_ + 3), "tab")
    p("buffer_load_dwordx4 %s, v12, s[%d:%d], s83 offen offset:512 sc1" % (vr(vST + 4, 4), ST_, ST_ + 3), "tab")
def tab_check(p):
    _uid[0] += 1; u = _uid[0]
    def cmp():
        tags = [vCS + 4 * i + 1 for i in range(4)] + [vCS + 4 * i + 3 for i in range(4)] + [vST + 1, vST + 3, vST + 5, vST + 7]
        p("v_min3_u32 v10, v%d, v%d, v%d" % tuple(tags[0:3])); p("v_max3_u32 v11, v%d, v%d, v%d" % tuple(tags[0:3]))
        for i in range(3, 11, 2):
            p("v_min3_u32 v10, v10, v%d, v%d" % (tags[i], tags[i + 1])); p("v_max3_u32 v11, v11, v%d, v%d" % (tags[i], tags[i + 1]))
        p("v_min_u32 v10, v10, v%d" % tags[11]); p("v_max_u32 v11, v11, v%d" % tags[11])
        p("v_cmp_ne_u32 vcc, s%d, v10" % sN); p("v_cmp_ne_u32 s[76:77], s%d, v11" % sN)
        p("s_or_b64 vcc, vcc, s[76:77]"); p("s_nop 4")
    cmp()
    p("s_cbranch_vccz Lt%d_ok" % u)
    saved = (list(p.vm), list(p.lg))
    p("s_mov_b32 s79, 0")
    p.label("Lt%d_loop" % u)
    p("s_sleep 2")
    tab_loads(p)
    p.wait(vm=0)
    cmp()
    p("s_cbranch_vccz Lt%d_ok" % u)
    p("s_add_u32 s79, s79, 1"); p("s_cmp_lt_u32 s79, 0x40000"); p("s_cbranch_scc1 Lt%d_loop" % u)
    p.label("Lt%d_ok" % u)
    p.vm, p.lg = saved
def tab_partial(p):
    for tb in range(2): p("v_mov_b32 v%d, v%d" % (vST + 4 * tb + 1, vST + 4 * tb + 2))
    p("v_add_f32 v%d, v%d, v%d" % (vCS, vCS, vCS + 4)); p("v_add_f32 v%d, v%d, v%d" % (vCS + 2, vCS + 2, vCS + 6))
    p("v_add_f32 v%d, v%d, v%d" % (vCS + 8, vCS + 8, vCS + 12)); p("v_add_f32 v%d, v%d, v%d" % (vCS + 10, vCS + 10, vCS + 14))
    p("v_add_f32 v%d, v%d, v%d" % (vCS, vCS, vCS + 8)); p("v_add_f32 v%d, v%d, v%d" % (vCS + 1, vCS + 2, vCS + 10))
    p("v_lshlrev_b32 v10, 3, v1"); p("s_lshl_b32 s83, s%d, 9" % sW); p("v_add_u32 v10, s83, v10"); p("v_add_u32 v10, %d, v10" % CSQ_LDS)
    p("ds_write_b64 v10, %s" % vr(vCS, 2))

def g1_main(p, fill):
    ACC = G1_ACC; FR = 32
    def reads(g):
        s, jj = g // 4, g % 4
        slot = s % 4; hi = slot >= 2; so = (slot & 1) * 32768
        f = FR + 16 * (g & 1); out = []
        for fb in range(2):
            for rr in range(2):
                out.append("ds_read_b64_tr_b16 %s, v%d offset:%d" % (vr(f + 4 * fb + 2 * rr, 2), vWA + fb + (2 if hi else 0), so + jj * 4096 + rr * 1024))
        for tb in range(2):
            out.append("ds_read_b128 %s, v%d offset:%d" % (vr(f + 8 + 4 * tb, 4), vXA + jj + (4 if hi else 0), so + tb * 4096))
        return out
    def mfmas(g):
        f = FR + 16 * (g & 1); out = []
        for fb in range(2):
            for tb in range(2):
                a = ACC + 16 * (2 * fb + tb)
                out.append("v_mfma_f32_32x32x16_bf16 %s, %s, %s, %s" % (vr(a, 16), vr(f + 4 * fb, 4), vr(f + 8 + 4 * tb, 4), "0" if g == 0 else vr(a, 16)))
        return out
    for s in range(8):
        prewait, pre, units = fill[s][:3]
        tail = fill[s][3] if len(fill[s]) > 3 else []
        p.wait_tag("st%d" % s)
        prewait(p)
        p("s_barrier")
        stamp(p, "g1_st%d" % s)
        pre(p)
        dm = g1_dma_stage(s + 3) if (s + 3 < 8 and s >= 1) else []
        if s == 0: dm = g1_dma_stage(3)
        nm = 16 if s > 0 else 12
        di = ui = k = 0
        for jj in range(4):
            g = 4 * s + jj
            rd = reads(g)
            if g == 0:
                for t in rd: p(t)
                continue
            rm = OPT.get("rdmode", 0)
            if rm == 1:
                for r_ in rd: p(r_)
            for q, t in enumerate(mfmas(g - 1)):
                if not (OPT.get("x_nog1") and q >= 2): p(t)
                if rm == 0:
                    for r_ in rd[2 * q:2 * q + 2]: p(r_)
                if rm == 2:
                    for r_ in rd[3 * q:3 * q + 3]: p(r_)
                if rm == 3 and q == 0:
                    for r_ in rd: p(r_)
                k += 1
                while di < len(dm) and di * nm < k * len(dm):
                    emit(p, dm[di]); di += 1
                while ui < len(units) and ui * nm < k * len(units):
                    emit(p, [units[ui]]); ui += 1
        while di < len(dm): emit(p, dm[di]); di += 1
        while ui < len(units): emit(p, [units[ui]]); ui += 1
        emit(p, tail)
    for t in mfmas(31): p(t)

def g1_epilogue(p, extra):
    HF_ = 44
    srd(p, HF_, P_WS, SZ_HF, WS_HF)
    ACC = G1_ACC; TBL = 128
    p("v_lshrrev_b32 v10, 5, v1"); p("v_lshlrev_b32 v10, 4, v10")
    p("s_and_b32 s%d, s%d, 1" % (sT1, sW)); p("s_lshl_b32 s%d, s%d, 8" % (sT1, sT1))
    p("v_add_u32 v10, s%d, v10" % sT1); p("v_add_u32 v10, %d, v10" % TAB_LDS)
    for rq in range(4):
        p("ds_read_b128 %s, v10 offset:%d" % (vr(TBL + 4 * rq, 4), rq * 32))
        p("ds_read_b128 %s, v10 offset:%d" % (vr(TBL + 16 + 4 * rq, 4), 512 + rq * 32))
    p("s_lshr_b32 s%d, s%d, 1" % (sT1, sW)); p("s_lshl_b32 s%d, s%d, 1" % (sT1, sT1))
    p("s_lshl_b32 s%d, s%d, 2" % (sT0, sRB)); p("s_add_u32 s%d, s%d, s%d" % (sT0, sT0, sT1))
    p("s_mul_i32 s%d, s%d, 112" % (sT0, sT0)); p("s_lshl_b32 s%d, s%d, 3" % (sT1, sFT))
    p("s_add_u32 s%d, s%d, s%d" % (sT0, sT0, sT1))
    p("s_and_b32 s%d, s%d, 1" % (sT1, sW)); p("s_lshl_b32 s%d, s%d, 2" % (sT1, sT1))
    p("s_add_u32 s%d, s%d, s%d" % (sT0, sT0, sT1)); p("s_lshl_b32 s83, s%d, 10" % sT0)
    p("v_lshlrev_b32 v11, 4, v1"); p("v_add_u32 v12, %d, v11" % (112 * 1024))
    for tb in range(2): p("v_mul_f32 v%d, v%d, v%d" % (vST + 4 * tb, vST + 4 * tb, vST + 4 * tb + 1))
    main = []
    TB2 = 32
    for fb in range(2):
        tbl = TBL if fb == 0 else TB2
        for tb in range(2):
            a = ACC + 16 * (2 * fb + tb); mu = vST + 4 * tb
            PK = 160 + 8 * tb
            if fb == 0 and tb == 0:
                for rq in range(4):
                    main.append(("ds_read_b128 %s, v10 offset:%d" % (vr(TB2 + 4 * rq, 4), 128 + rq * 32), None))
                    main.append(("ds_read_b128 %s, v10 offset:%d" % (vr(TB2 + 16 + 4 * rq, 4), 512 + 128 + rq * 32), None))
            for r_ in range(0, 16 if not OPT.get("x_noepi") else 4, 4):
                t0, t1 = 176, 178
                for t, rr in ((t0, r_), (t1, r_ + 2)):
                    main.append(("v_pk_fma_f32 %s, %s, %s, %s op_sel_hi:[0,1,1] neg_lo:[1,0,0] neg_hi:[1,0,0]" % (vr(t, 2), vr(mu, 2), vr(tbl + rr, 2), vr(tbl + 16 + rr, 2)), None))
                for t, rr in ((t0, r_), (t1, r_ + 2)):
                    main.append(("v_pk_fma_f32 %s, %s, %s, %s op_sel:[0,1,0] op_sel_hi:[1,1,1]" % (vr(t, 2), vr(a + rr, 2), vr(mu, 2), vr(t, 2)), None))
                for t in (t0, t0 + 1, t1, t1 + 1): main.append(("v_max_f32 v%d, 0, v%d" % (t, t), None))
                for t in (t0, t1): main.append(("v_pk_mul_f32 %s, %s, %s" % (vr(t, 2), vr(t, 2), vr(t, 2)), None))
                for t, rr in ((t0, r_), (t1, r_ + 2)): main.append(("v_cvt_pk_bf16_f32 v%d, v%d, v%d" % (PK + (rr >> 1), t, t + 1), None))
            for q in range(2):
                main.append(("buffer_store_dwordx4 %s, v%d, s[%d:%d], s83 offen offset:%d sc1" % (vr(PK + 4 * q, 4), 11 + tb, HF_, HF_ + 3, (2 * fb + q) * 1024), "hst"))
    n = len(extra); k = 0
    i0 = int(len(main) * OPT.get("epi_start", 30) / 100.0)
    for i, it in enumerate(main):
        emit(p, [it])
        while i >= i0 and k < n and k * (len(main) - i0) < (i + 1 - i0) * n:
            emit(p, [extra[k]]); k += 1

def h_publish(p):
    p("s_lshl_b32 s%d, s%d, 1" % (sT0, sRB)); p("s_lshr_b32 s%d, s%d, 1" % (sT1, sW))
    p("s_add_u32 s%d, s%d, s%d" % (sT0, sT0, sT1)); p("s_mul_i32 s%d, s%d, 28" % (sT0, sT0))
    p("s_lshl_b32 s%d, s%d, 1" % (sT1, sFT)); p("s_add_u32 s%d, s%d, s%d" % (sT0, sT0, sT1))
    p("s_and_b32 s%d, s%d, 1" % (sT1, sW)); p("s_add_u32 s%d, s%d, s%d" % (sT0, sT0, sT1))
    p("s_lshl_b32 s%d, s%d, 7" % (sT0, sT0)); p("s_add_u32 s%d, s%d, %d" % (sT0, sT0, FL_FH))
    flag_store(p, sT0)

KVT2_, SSM_, DD_, ZT_ = 48, 44, 60, 60
CV_R, vDD = 220, 254
def conv_setup(p):
    srd(p, KVT2_, P_WS, SZ_KVT, WS_KVT); srd(p, SSM_, P_SSM, D * S * 2); srd(p, DD_, P_DD, D * 2)
    p("s_lshr_b32 s%d, s%d, 1" % (sT0, sW)); p("s_and_b32 s%d, s%d, 1" % (sC2, sW))
    p("s_lshl_b32 s%d, s%d, 6" % (sCH, sJ)); p("s_lshl_b32 s%d, s%d, 1" % (sT1, sR))
    p("s_add_u32 s%d, s%d, s%d" % (sCH, sCH, sT1)); p("s_add_u32 s%d, s%d, s%d" % (sCH, sCH, sT0))
    p("s_mul_i32 s%d, s%d, 21248" % (sCB, sT0)); p("s_add_u32 s%d, s%d, %d" % (sCB, sCB, CV0 + 256))
def conv_loads_regs(p):
    p("s_lshl_b32 s83, s%d, 12" % sCH); p("s_lshl_b32 s84, s%d, 11" % sC2); p("s_add_u32 s83, s83, s84")
    p("v_lshlrev_b32 v2, 4, v1")
    R = CV_R
    for sg in range(2):
        for k in range(3):
            p("buffer_load_dwordx4 %s, v2, s[%d:%d], s83 offen offset:%d sc1" % (vr(R + 12 * sg + 4 * k, 4), KVT2_, KVT2_ + 3, sg * 1024 + 4 * k), "cv")
    p("v_mov_b32 v4, 0"); p("s_lshl_b32 s84, s%d, 1" % sCH)
    p("buffer_load_ushort v%d, v4, s[%d:%d], s84 offen" % (vDD, DD_, DD_ + 3), "cv")
def conv_loads_lds(p):
    p("s_lshl_b32 s%d, s%d, 12" % (sT0, sCH)); p("s_lshl_b32 s%d, s%d, 11" % (sT1, sC2))
    p("s_add_u32 s%d, s%d, s%d" % (sT0, sT0, sT1))
    p("v_lshlrev_b32 v2, 4, v1")
    for sg in range(2):
        p("s_add_u32 s%d, s%d, s%d" % (sT2, sCB, sT1))
        p("s_add_u32 m0, s%d, %d" % (sT2, 16640 + 512 + sg * 1024))
        p("s_add_u32 s%d, s%d, %d" % (sT2, sT0, sg * 1024))
        p("buffer_load_dwordx4 v2, s[%d:%d], s%d offen lds" % (SSM_, SSM_ + 3, sT2), "cv")
    for i in range(4): p("v_mov_b32 v%d, 0" % (16 + i))
    p("v_lshrrev_b32 v5, 1, v1"); p("v_mul_u32_u24 v5, 4160, v5")
    p("v_and_b32 v6, 1, v1"); p("v_lshl_add_u32 v5, v6, 4, v5"); p("v_add_u32 v5, 4096, v5")
    p("v_add_u32 v6, 16640, v2")
    p("s_cmp_eq_u32 s%d, 0" % sC2)
    p("s_cselect_b32 s76, 0xff, -1")
    p("s_cselect_b64 vcc, -1, 0")
    p("v_cndmask_b32 v5, v6, v5, vcc")
    p("v_add_u32 v5, s%d, v5" % sCB)
    p("s_mov_b32 exec_lo, s76"); p("s_mov_b32 exec_hi, 0")
    p("ds_write_b128 v5, v[16:19]")
    p("s_mov_b64 exec, -1")

def conv_fill(p):
    R = CV_R
    p("v_mov_b32 v13, %d" % ZCNT_LDS); p("ds_write_b32 v13, v253")
    p("v_lshlrev_b32 v2, 4, v1"); p("v_mov_b32 v8, 0")
    p("s_lshl_b32 s77, s%d, 31" % sC2); p("s_mov_b32 s76, 0")
    last = R + 12
    for rg in (last + 7, last + 10, last + 11): p("v_cndmask_b32 v%d, v%d, v8, s[76:77]" % (rg, rg))
    p("s_lshl_b32 s%d, s%d, 11" % (sT1, sC2)); p("s_add_u32 s%d, s%d, s%d" % (sT1, sT1, sCB))
    p("v_add_u32 v5, s%d, v2" % sT1)
    for sg in range(2):
        r0, r1, r2 = R + 12 * sg, R + 12 * sg + 4, R + 12 * sg + 8
        c1, c3 = 16 + 8 * sg, 20 + 8 * sg
        p("ds_write_b128 v5, %s offset:%d" % (vr(r0, 4), sg * 1024))
        for i in range(4): p("v_alignbit_b32 v%d, v%d, v%d, 16" % (c1 + i, r1 + i, r0 + i))
        p("ds_write_b128 v5, %s offset:%d" % (vr(r1, 4), 2 * 4160 + sg * 1024))
        for i in range(4): p("v_alignbit_b32 v%d, v%d, v%d, 16" % (c3 + i, r2 + i, r1 + i))
        p("ds_write_b128 v5, %s offset:%d" % (vr(c1, 4), 4160 + sg * 1024))
        p("ds_write_b128 v5, %s offset:%d" % (vr(c3, 4), 3 * 4160 + sg * 1024))

def conv_main(p, extra_by_class):
    vA, vB = 12, 13
    p("v_and_b32 v6, 15, v1"); p("v_lshrrev_b32 v7, 4, v1")
    p("v_sub_u32 v14, 3, v6"); p("v_and_b32 v14, 3, v14")
    p("v_mul_u32_u24 v15, 4158, v14")
    p("v_lshlrev_b32 v14, 1, v6"); p("v_sub_u32 v15, v15, v14"); p("v_lshl_add_u32 v15, v7, 4, v15")
    p("s_lshl_b32 s%d, s%d, 8" % (sT1, sC2)); p("s_sub_u32 s%d, s%d, s%d" % (sT1, sCB, sT1))
    p("s_add_u32 s%d, s%d, 30" % (sT2, sT1)); p("v_add_u32 v%d, s%d, v15" % (vA, sT2))
    p("v_lshlrev_b32 v15, 5, v6"); p("v_lshl_add_u32 v15, v7, 4, v15")
    p("s_add_u32 s%d, s%d, %d" % (sT2, sT1, 16640 + 32)); p("v_add_u32 v%d, s%d, v15" % (vB, sT2))
    ACC = 64
    p.wait(lg=0)
    p("s_barrier")
    stamp(p, "conv_filled")
    FA, FB = 96, 160
    def reads(rl):
        st = rl & 1; out = []
        for x in range(8):
            oa = 64 * (63 - rl - 8 * x)
            out.append(("ds_read_b64 %s, v%d offset:%d" % (vr(FA + 32 * st + 4 * x, 2), vA, oa), None))
            out.append(("ds_read_b64 %s, v%d offset:%d" % (vr(FA + 32 * st + 4 * x + 2, 2), vA, oa + 8), None))
            out.append(("ds_read_b128 %s, v%d offset:%d" % (vr(FB + 32 * st + 4 * x, 4), vB, 64 * (7 - rl + 8 * x)), None))
        return out
    seen = set()
    def mf(rl):
        st = rl & 1; out = []
        pairs = sorted([(a, b) for a in range(8) for b in range(8) if a + b <= 7], key=lambda ab: (max(ab), ab))
        for a, b in pairs:
            c = vr(ACC + 4 * (a + b), 4)
            first = (a + b) not in seen; seen.add(a + b)
            out.append(("v_mfma_f32_16x16x32_bf16 %s, %s, %s, %s" % (c, vr(FA + 32 * st + 4 * a, 4), vr(FB + 32 * st + 4 * b, 4), "0" if first else c), None))
        return out
    for t in reads(0): p(*t)
    for rl in range(4):
        pre, fill = extra_by_class[rl]
        pre(p)
        nxt = (reads(rl + 1) if rl < 3 else [])
        m = mf(rl)
        if OPT.get("x_noconv"): m = m[:4]
        ni = fi = 0
        for i, t in enumerate(m):
            p(*t)
            while ni < len(nxt) and ni * 30 < (i + 1) * len(nxt): p(*nxt[ni]); ni += 1
            while fi < len(fill) and fi * 36 < (i + 1) * len(fill): emit(p, [fill[fi]]); fi += 1
    stamp(p, "conv_mma_done")

def conv_finish(p, name, extra):
    ACC = 64
    if not OPT.get("fin_pre", 1): conv_finish_addr(p)
    for q in range(4): p("ds_read_b64 %s, v16 offset:%d" % (vr(36 + 2 * q, 2), (3 - q) * 512))
    n1 = len(extra) // 2
    conv_finish_rest(p, name, extra, n1)
def conv_finish_addr(p):
    RB = RB_LDS
    srd(p, ZT_, P_WS, SZ_ZT, WS_ZT)
    p("v_lshlrev_b32 v2, 4, v1")
    p("s_lshl_b32 s%d, s%d, 12" % (sT1, sW))
    p("v_add_u32 v5, s%d, v2" % sT1); p("v_add_u32 v5, %d, v5" % RB)
    p("s_xor_b32 s%d, s%d, 1" % (sT1, sW)); p("s_lshl_b32 s%d, s%d, 12" % (sT1, sT1))
    p("v_add_u32 v14, s%d, v2" % sT1); p("v_add_u32 v14, %d, v14" % RB)
    p("v_lshlrev_b32 v15, 5, v6"); p("v_lshl_add_u32 v15, v7, 3, v15")
    p("s_lshl_b32 s%d, s%d, 11" % (sT1, sC2)); p("s_sub_u32 s%d, s%d, s%d" % (sT2, sCB, sT1))
    p("s_add_u32 s%d, s%d, %d" % (sT2, sT2, 4088 - 1536)); p("v_sub_u32 v16, s%d, v15" % sT2)
    p("s_lshl_b32 s84, s%d, 12" % sCH); p("s_add_u32 s84, s84, s%d" % sT1)
    p("v_lshlrev_b32 v%d, 16, v%d" % (vDD, vDD))
def conv_finish_rest(p, name, extra, n1):
    ACC = 64
    emit(p, extra[:n1])
    st = side_path_begin(p); hist = len(p.out)
    p("s_cmp_eq_u32 s%d, 0" % sC2)
    p("s_cbranch_scc0 %s_hi" % name)
    for variant in range(2):
        keep = ACC + 16 * variant; give = ACC + 16 * (1 - variant)
        if variant == 1:
            p("s_branch %s_cdone" % name)
            p.label("%s_hi" % name)
            side_path_end(p, st)
            p("s_nop 7")
        for q in range(4): p("ds_write_b128 v5, %s offset:%d" % (vr(give + 4 * q, 4), q * 1024))
        for q in range(4):
            a_ = keep + 4 * q; u = 36 + 2 * q
            for c, (src, hf) in enumerate(((u + 1, 1), (u + 1, 0), (u, 1), (u, 0))):
                unpack(p, 44 + (c & 1), src, hf)
                p("v_fmac_f32 v%d, v%d, v%d" % (a_ + c, 44 + (c & 1), vDD))
        p.wait(lg=0)
        p("s_barrier")
        for q in range(4): p("ds_read_b128 %s, v14 offset:%d" % (vr(20 + 4 * q, 4), q * 1024))
        for q in range(4):
            a_ = keep + 4 * q
            for c in range(4): p("v_add_f32 v%d, v%d, v%d" % (a_ + c, a_ + c, 20 + 4 * q + c))
            p("v_cvt_pk_bf16_f32 v%d, v%d, v%d" % (48 + 2 * q, a_, a_ + 1))
            p("v_cvt_pk_bf16_f32 v%d, v%d, v%d" % (49 + 2 * q, a_ + 2, a_ + 3))
    p.label("%s_cdone" % name)
    emit(p, extra[n1:])
def z_stores(p):
    for q in range(4):
        p("buffer_store_dwordx2 %s, v15, s[%d:%d], s84 offen offset:%d sc1" % (vr(48 + 2 * q, 2), ZT_, ZT_ + 3, q * 512), "zst")
ZCNT_LDS = 163832
def z_publish(p, name):
    p("v_mov_b32 v10, %d" % ZCNT_LDS); p("v_mov_b32 v11, 1")
    p("s_mov_b64 exec, 1")
    p("ds_add_rtn_u32 v11, v10, v11")
    p("s_mov_b64 exec, -1")
    p.wait(lg=0)
    p("v_readfirstlane_b32 s%d, v11" % sT0)
    p("s_cmp_eq_u32 s%d, 3" % sT0)
    p("s_cbranch_scc0 %s_nozp" % name)
    st = side_path_begin(p)
    p("s_lshl_b32 s%d, s%d, 5" % (sT0, sJ)); p("s_add_u32 s%d, s%d, s%d" % (sT0, sT0, sR))
    p("s_lshl_b32 s%d, s%d, 7" % (sT0, sT0)); p("s_add_u32 s%d, s%d, %d" % (sT0, sT0, FL_FZ))
    flag_store(p, sT0)
    side_path_end(p, st)
    p.label("%s_nozp" % name)

HF2_, W2_, Q2_, ZT2_, ST2_, B2_, OUT_ = 40, 8, 48, 52, 56, 64, 44
vH0, vH1, vD0, vD1 = 244, 245, 246, 247
vFH, vFHA = 248, 249
vTRA = 60
sWS = 75
NS = 28
STASH0 = 0
HB = 128
def g2_srd(p):
    srd(p, W2_, P_W2, F * D * 2)
    p("s_lshl_b32 s%d, s%d, 11" % (sM2, sW))
def g2_setup(p):
    p("s_lshl_b32 s%d, s%d, 8" % (sTok, sJ))
    p("s_lshr_b32 s%d, s%d, 3" % (sT0, sR)); p("s_lshl_b32 s%d, s%d, 6" % (sT0, sT0))
    p("s_add_u32 s%d, s%d, s%d" % (sTok, sTok, sT0))
    p("s_add_u32 s%d, s%d, %d" % (sCh, sR, OPT.get("cbrot", 0))); p("s_and_b32 s%d, s%d, 7" % (sCh, sCh)); p("s_lshl_b32 s%d, s%d, 6" % (sCh, sCh))
    p("s_lshr_b32 s%d, s%d, 5" % (sT0, sTok)); p("s_mul_i32 s%d, s%d, 112" % (sT0, sT0))
    p("s_mul_i32 s%d, s%d, 28" % (sT1, sW))
    p("s_add_u32 s%d, s%d, s%d" % (sT0, sT0, sT1)); p("s_lshl_b32 s%d, s%d, 10" % (sHo, sT0))
    p("s_lshl_b32 s%d, s%d, 14" % (sWA, sT1)); p("s_lshl_b32 s%d, s%d, 1" % (sT0, sCh))
    p("s_add_u32 s%d, s%d, s%d" % (sWA, sWA, sT0))
    p("v_lshlrev_b32 v%d, 4, v1" % vH0)
    p("v_add_u32 v%d, %d, v%d" % (vH1, 112 * 1024, vH0))
    p("v_lshrrev_b32 v10, 3, v1"); p("v_and_b32 v11, 7, v1")
    p("v_lshrrev_b32 v12, 1, v10"); p("v_and_b32 v12, 1, v12"); p("v_lshlrev_b32 v12, 2, v12")
    p("v_xor_b32 v12, v12, v11"); p("v_lshlrev_b32 v12, 4, v12")
    p("v_lshl_add_u32 v%d, v10, 10, v12" % vD0)
    p("v_add_u32 v%d, %d, v%d" % (vD1, 8192 - 1024, vD0))
def g2_setup_tr(p):
    p("v_and_b32 v10, 15, v1"); p("v_lshrrev_b32 v11, 4, v1"); p("v_lshrrev_b32 v12, 1, v11"); p("v_and_b32 v11, 1, v11")
    p("v_lshrrev_b32 v13, 2, v10"); p("v_lshl_add_u32 v12, v12, 2, v13"); p("v_lshlrev_b32 v12, 7, v12")
    p("v_and_b32 v14, 3, v10"); p("v_lshrrev_b32 v15, 1, v14"); p("v_lshl_add_u32 v12, v15, 3, v12")
    p("v_and_b32 v14, 1, v14"); p("v_lshl_add_u32 v14, v14, 1, v11")
    p("v_lshrrev_b32 v15, 3, v10"); p("v_lshlrev_b32 v15, 2, v15")
    p("v_add_u32 v12, s%d, v12" % sM2)
    for cb in range(2):
        p("v_add_u32 v13, %d, v14" % (4 * cb)); p("v_xor_b32 v13, v13, v15")
        p("v_lshl_add_u32 v%d, v13, 4, v12" % (vTRA + cb))
        p("v_add_u32 v%d, 0x10000, v%d" % (vTRA + 2 + cb, vTRA + cb))
def w2_dma(step, slot):
    tag = "w%d" % step
    if OPT.get("x_now2") == 1 or (OPT.get("x_now2") == 2 and (step < 12 or step >= 24)): return [[("s_nop 0", None)]]
    return [[("s_add_u32 m0, s%d, %d" % (sM2, slot * 8192), None),
             ("s_add_u32 s%d, s%d, %d" % (sWS, sWA, step * 16384), None),
             ("buffer_load_dwordx4 v%d, s[%d:%d], s%d offen lds" % (vD0, W2_, W2_ + 3, sWS), tag),
             ("buffer_load_dwordx4 v%d, s[%d:%d], s%d offen offset:1024 lds" % (vD1, W2_, W2_ + 3, sWS), tag)]]
def tr_reads(slot, dst, kind):
    out = []
    for cb in range(2):
        for rr in range(2):
            hi = slot >= 8
            out.append(("ds_read_b64_tr_b16 %s, v%d offset:%d" % (vr(dst + 4 * cb + 2 * rr, 2, kind), vTRA + cb + (2 if hi else 0), (slot - 8 * hi) * 8192 + rr * 1024), None))
    return out
def stash_reads(step, slot): return tr_reads(slot, STASH0 + 8 * (step - 12), 'a')
def h_loads(s):
    slot = s % OPT["depth_h"]
    return [("buffer_load_dwordx4 %s, v%d, s[%d:%d], s%d offen sc1" % (ar(HB + 8 * slot, 4), vH0, HF2_, HF2_ + 3, sHo), "h%d" % s),
            ("buffer_load_dwordx4 %s, v%d, s[%d:%d], s%d offen sc1" % (ar(HB + 8 * slot + 4, 4), vH1, HF2_, HF2_ + 3, sHo), "h%d" % s),
            ("s_add_u32 s%d, s%d, 1024" % (sHo, sHo), None)]
def fh_poll_issue(p):
    p("v_min_u32 v%d, 6, v1" % vFHA); p("v_lshlrev_b32 v%d, 7, v%d" % (vFHA, vFHA))
    p("s_lshr_b32 s83, s%d, 6" % sTok); p("s_mul_i32 s83, s83, 28"); p("s_mul_i32 s%d, s%d, 7" % (sT0, sW)); p("s_add_u32 s83, s83, s%d" % sT0)
    p("s_lshl_b32 s83, s83, 7"); p("s_add_u32 s83, s83, %d" % FL_FH)
    poll_issue(p, vFH, vFHA, 83, "fh")
def g2_h_start(p):
    DH = OPT["depth_h"]
    srd(p, HF2_, P_WS, SZ_HF, WS_HF)
    p.wait_tag("fh")
    poll_check(p, [vFH], [vFHA], [83])
    stamp(p, "g2_h_ready")
    for s in range(OPT.get("h_first", 2)):
        for t in h_loads(s): p(*t)
def h_touch(p):
    DH = OPT["depth_h"]
    n = (NS - DH) * 16 // 8
    p("s_and_b32 s%d, s%d, 7" % (sT0, sR)); p("s_mul_i32 s%d, s%d, %d" % (sT0, sT0, n))
    p("v_add_u32 v10, s%d, v1" % sT0)
    p("v_lshrrev_b32 v11, 4, v10"); p("v_and_b32 v12, 7, v10"); p("v_lshlrev_b32 v12, 7, v12")
    p("v_lshl_add_u32 v12, v11, 10, v12")
    p("v_bfe_u32 v11, v10, 3, 1"); p("v_mul_u32_u24 v11, %d, v11" % (112 * 1024)); p("v_add_u32 v12, v12, v11")
    if n > 32: p("s_mov_b32 exec_hi, 0x%x" % ((1 << (n - 32)) - 1))
    else: p("s_mov_b64 exec, 0x%x" % ((1 << n) - 1))
    p("buffer_load_dword v59, v12, s[%d:%d], s%d offen sc1" % (HF2_, HF2_ + 3, sHo), "touch3")
    p("s_mov_b64 exec, -1")

vST2, vB2 = 16, 20
vY, vOWN = 144, 176
vXq, vZq, vRED, vOUT = 6, 7, 8, 9
def g2_main(p, name):
    DH = OPT["depth_h"]
    ACC = 64; FR = 32
    def ep_setup(p):
        srd(p, Q2_, P_Q, S * D * 2)
        srd(p, ZT2_, P_WS, SZ_ZT, WS_ZT); srd(p, ST2_, P_WS, SZ_ST, WS_ST); srd(p, B2_, P_B2, D * 2); srd(p, OUT_, P_OUT, S * D * 2)
    def ep_loads(p):
        p("v_lshrrev_b32 v10, 2, v1"); p("v_and_b32 v11, 3, v1")
        p("v_lshrrev_b32 v12, 2, v10"); p("v_xor_b32 v12, v12, v11")
        p("v_lshlrev_b32 v12, 4, v12"); p("v_lshl_add_u32 v13, v10, 10, v12")
        p("s_lshr_b32 s%d, s%d, 1" % (sT0, sW)); p("s_lshl_b32 s%d, s%d, 5" % (sT0, sT0)); p("s_add_u32 s%d, s%d, s%d" % (sT0, sT0, sTok))
        p("s_and_b32 s%d, s%d, 1" % (sT1, sW)); p("s_lshl_b32 s%d, s%d, 5" % (sT1, sT1)); p("s_add_u32 s%d, s%d, s%d" % (sT1, sT1, sCh))
        p("s_lshl_b32 s%d, s%d, 10" % (sXO, sT0)); p("s_lshl_b32 s%d, s%d, 1" % (sT2, sT1)); p("s_add_u32 s%d, s%d, s%d" % (sXO, sXO, sT2))
        p("s_lshl_b32 s%d, s%d, 11" % (sT3, sW))
        p("s_add_u32 m0, s%d, %d" % (sT3, XT))
        p("buffer_load_dwordx4 v13, s[%d:%d], s%d offen lds" % (Q2_, Q2_ + 3, sXO), "ep")
        p("s_add_u32 s7, s%d, 16384" % sXO)
        p("s_add_u32 m0, s%d, %d" % (sT3, XT + 1024))
        p("buffer_load_dwordx4 v13, s[%d:%d], s7 offen lds" % (Q2_, Q2_ + 3), "ep")
        p("s_lshl_b32 s%d, s%d, 4" % (sT0, sT0))
        p("v_and_b32 v14, 31, v1"); p("v_lshlrev_b32 v15, 4, v14")
        p("buffer_load_dwordx4 %s, v15, s[%d:%d], s%d offen sc1" % (vr(vST2, 4), ST2_, ST2_ + 3, sT0), "ep")
        p("v_lshrrev_b32 v15, 5, v1"); p("v_lshlrev_b32 v12, 5, v15")
        p("buffer_load_dwordx4 %s, v12, s[%d:%d], s%d offen" % (vr(vB2, 4), B2_, B2_ + 3, sT2), "ep")
        p("buffer_load_dwordx4 %s, v12, s[%d:%d], s%d offen offset:16" % (vr(vB2 + 4, 4), B2_, B2_ + 3, sT2), "ep")
        p("v_lshrrev_b32 v12, 2, v14"); p("v_and_b32 v12, 3, v12")
        p("v_lshlrev_b32 v15, 1, v15"); p("v_xor_b32 v15, v15, v12")
        p("v_lshlrev_b32 v15, 4, v15"); p("v_lshl_add_u32 v15, v14, 6, v15")
        p("v_add_u32 v15, s%d, v15" % sT3); p("v_add_u32 v%d, %d, v15" % (vXq, XT))
        p("v_lshrrev_b32 v15, 5, v1"); p("v_lshlrev_b32 v15, 5, v15"); p("v_lshl_add_u32 v%d, v14, 10, v15" % vOUT)
        p("v_add_u32 v%d, %d, v%d" % (vRED, RED, vH0))
    def z_loads(p):
        p("v_lshrrev_b32 v10, 2, v1"); p("v_and_b32 v11, 3, v1")
        p("v_lshlrev_b32 v12, 4, v11"); p("v_lshl_add_u32 v12, v10, 12, v12")
        p("s_and_b32 s%d, s%d, 1" % (sT1, sW)); p("s_lshl_b32 s%d, s%d, 5" % (sT1, sT1)); p("s_add_u32 s%d, s%d, s%d" % (sT1, sT1, sCh))
        p("s_lshl_b32 s%d, s%d, 12" % (sT0, sT1))
        p("s_lshr_b32 s%d, s%d, 1" % (sT1, sW)); p("s_lshl_b32 s%d, s%d, 5" % (sT1, sT1)); p("s_add_u32 s%d, s%d, s%d" % (sT1, sT1, sTok))
        p("s_lshl_b32 s%d, s%d, 1" % (sT1, sT1)); p("s_add_u32 s%d, s%d, s%d" % (sT0, sT0, sT1))
        p("buffer_load_dwordx4 %s, v12, s[%d:%d], s%d offen sc1" % (vr(128, 4), ZT2_, ZT2_ + 3, sT0), "z")
        p("s_add_u32 s%d, s%d, %d" % (sT0, sT0, 16 * 4096))
        p("buffer_load_dwordx4 %s, v12, s[%d:%d], s%d offen sc1" % (vr(132, 4), ZT2_, ZT2_ + 3, sT0), "z")
        p("v_lshrrev_b32 v12, 1, v10"); p("v_and_b32 v12, 3, v12"); p("v_xor_b32 v12, v12, v11")
        p("v_lshlrev_b32 v12, 4, v12"); p("v_lshl_add_u32 v12, v10, 6, v12")
        p("s_lshl_b32 s%d, s%d, 11" % (sT3, sW)); p("s_add_u32 s%d, s%d, %d" % (sT3, sT3, ZTT))
        p("v_add_u32 v%d, s%d, v12" % (vZq + 4, sT3))
        p("v_and_b32 v10, 15, v1"); p("v_lshrrev_b32 v12, 4, v1"); p("v_lshrrev_b32 v13, 1, v12"); p("v_and_b32 v12, 1, v12")
        p("v_lshrrev_b32 v14, 2, v10"); p("v_lshl_add_u32 v13, v13, 4, v14")
        p("v_and_b32 v15, 3, v10"); p("v_lshrrev_b32 v15, 1, v15"); p("v_lshl_add_u32 v15, v12, 1, v15")
        p("v_lshrrev_b32 v14, 1, v14"); p("v_xor_b32 v15, v15, v14")
        p("v_lshlrev_b32 v15, 4, v15"); p("v_lshl_add_u32 v15, v13, 6, v15")
        p("v_and_b32 v14, 1, v10"); p("v_lshl_add_u32 v15, v14, 3, v15")
        p("v_add_u32 v%d, s%d, v15" % (vZq, sT3))
        p("v_xor_b32 v5, 32, v%d" % vZq)
    def y_compute(p):
        XR_, ZR = 136, 164
        p("ds_write_b128 v%d, %s" % (vZq + 4, vr(128, 4))); p("ds_write_b128 v%d, %s offset:1024" % (vZq + 4, vr(132, 4)))
        p.wait_tag("ep")
        p("v_xor_b32 v10, 16, v%d" % vXq)
        p("ds_read_b128 %s, v%d" % (vr(XR_, 4), vXq)); p("ds_read_b128 %s, v10" % vr(XR_ + 4, 4))
        for m in range(4): p("ds_read_b64_tr_b16 %s, v%d offset:%d" % (vr(ZR + 2 * m, 2), vZq if m % 2 == 0 else 5, m * 256))
        mu, rs = vST2, vST2 + 2
        p("v_mul_f32 v%d, v%d, v%d" % (mu, mu, rs))
        for r_ in range(16):
            x, z, b = 48 + 3 * (r_ & 1), 49 + 3 * (r_ & 1), 50 + 3 * (r_ & 1)
            unpack(p, x, XR_ + (r_ >> 1), r_ & 1); unpack(p, z, ZR + (r_ >> 1), r_ & 1); unpack(p, b, vB2 + (r_ >> 1), r_ & 1)
            p("v_fma_f32 v%d, v%d, v%d, -v%d" % (vY + r_, x, rs, mu))
            p("v_add_f32 v%d, v%d, v%d" % (b, b, x))
            p("v_fma_f32 v%d, v%d, v%d, v%d" % (vY + r_, vY + r_, z, b))
    def reads(s): return [t for t, _ in tr_reads(s, FR + 8 * (s & 1), 'v')]
    def mfmas(s):
        slot = s % DH; out = []
        for cb in range(2):
            A = vr(FR + 8 * (s & 1) + 4 * cb, 4) if s < 12 else ar(STASH0 + 8 * (s - 12) + 4 * cb, 4)
            for tb in range(2):
                a = vr(ACC + 16 * (2 * tb + cb), 16)
                out.append("v_mfma_f32_32x32x16_bf16 %s, %s, %s, %s" % (a, A, ar(HB + 8 * slot + 4 * tb, 4), "0" if s == 0 else a))
        return out
    vFZ = 56
    def fz_issue(p):
        p("v_min_u32 v%d, 15, v1" % (vFZ + 2)); p("v_lshlrev_b32 v%d, 7, v%d" % (vFZ + 2, vFZ + 2))
        p("s_lshr_b32 s84, s%d, 6" % sCh); p("s_lshl_b32 s84, s84, 1"); p("s_and_b32 s83, s%d, 1" % sW); p("s_add_u32 s84, s84, s83")
        p("s_lshl_b32 s84, s84, 11"); p("s_add_u32 s84, s84, %d" % FL_FZ)
        poll_issue(p, vFZ, vFZ + 2, 84, "fz")
    def fz_check(p):
        p.wait_tag("fz"); poll_check(p, [vFZ], [vFZ + 2], [84])
    S_FZ, S_ZL, S_Y = OPT.get("s_fz", 14), OPT.get("s_zl", 20), OPT.get("s_y", 25)
    yl = rec(y_compute)
    third = (len(yl) + 2) // 3
    extras = {1: rec(ep_setup), 2: rec(ep_loads), S_FZ: rec(fz_issue), S_ZL: rec(z_loads),
              S_Y: yl[:third], S_Y + 1: yl[third:2 * third], S_Y + 2: yl[2 * third:]}
    def step(s, ex):
        if s + 1 < 12:
            p.wait_tag("w%d" % (s + 1))
            for t in reads(s + 1): p(t)
        mf = mfmas(s)
        if OPT.get("x_nog2") and 8 <= s < 18: mf = ["s_nop 0"] * 4
        hl = h_loads(s + DH) if s + DH < NS else []
        if OPT.get("x_noh"): hl = []
        q4 = (len(ex) + 3) // 4
        for i in range(4):
            p(mf[i])
            if i == 2:
                for t in hl[0:1]: p(*t)
            if i == 3:
                for t in hl[1:3]: p(*t)
            emit(p, ex[i * q4:(i + 1) * q4])
    p.wait(lg=0)
    p("s_barrier")
    p.wait_tag("w0")
    for t in reads(0): p(t)
    for s in range(S_ZL):
        if s in (0, 7, 13, 20): stamp(p, "g2_s%d" % s)
        step(s, extras.get(s, []))
        if s == DH:
            p.wait_tag("zst")
            z_publish(p, name)
    p.wait_tag("fz")
    p("v_cmp_ne_u32 vcc, s%d, v%d" % (sN, vFZ)); p("s_nop 4")
    p("s_cbranch_vccnz %s_zlate" % name)
    br = side_path_begin(p)
    for s in range(S_ZL, NS): step(s, extras.get(s, []))
    stamp(p, "g2_mma_done")
    g2_epilogue(p, name + "f", True)
    p("s_branch %s_fin" % name)
    p.label("%s_zlate" % name)
    side_path_end(p, br)
    for s in range(S_ZL, NS): step(s, [])
    g2_epilogue(p, name + "s", False)
    poll_issue(p, vFZ, vFZ + 2, 84, "fz2")
    p.wait(vm=0)
    poll_check(p, [vFZ], [vFZ + 2], [84])
    z_loads(p)
    y_compute(p)
    for r_ in range(16):
        p("v_add_f32 v%d, v%d, v%d" % (vY + r_, vY + r_, vOWN + r_))
    g2_store(p)
    p.wait(vm=63)
    p.label("%s_fin" % name)

OUTPOL = ["", " sc1", " nt", " sc0 sc1"]
def g2_store(p):
    PK = 160
    for r_ in range(16):
        if r_ & 1: p("v_cvt_pk_bf16_f32 v%d, v%d, v%d" % (PK + (r_ >> 1), vY + r_ - 1, vY + r_))
        if r_ == 7: p("buffer_store_dwordx4 %s, v%d, s[%d:%d], s%d offen%s" % (vr(PK, 4), vOUT, OUT_, OUT_ + 3, sXO, OUTPOL[OPT.get("outpol", 0)]))
    p("buffer_store_dwordx4 %s, v%d, s[%d:%d], s%d offen offset:16%s" % (vr(PK + 4, 4), vOUT, OUT_, OUT_ + 3, sXO, OUTPOL[OPT.get("outpol", 0)]))
def g2_epilogue(p, name, have_y):
    ACC = 64
    st = side_path_begin(p)
    for w in range(4):
        if w < 3:
            p("s_cmp_eq_u32 s%d, %d" % (sW, w))
            p("s_cbranch_scc0 %s_rw%d" % (name, w + 1))
        side_path_end(p, st)
        p("s_nop 7"); p("s_nop 3")
        for rel in range(1, 4):
            q = w ^ rel
            for rq in range(4):
                p("ds_write_b128 v%d, %s offset:%d" % (vRED, vr(ACC + 16 * q + 4 * rq, 4), q * 12288 + (rel - 1) * 4096 + rq * 1024))
        for i in range(16): p("v_mov_b32 v%d, v%d" % (vOWN + i, ACC + 16 * w + i))
        if w < 3:
            p("s_branch %s_rwd" % name)
            p.label("%s_rw%d" % (name, w + 1))
    p.label("%s_rwd" % name)
    p("s_mul_i32 s%d, s%d, 12288" % (sT0, sW)); p("v_add_u32 v10, s%d, v%d" % (sT0, vRED))
    p.wait(lg=0)
    p("s_barrier")
    if have_y: stamp(p, "g2_red_bar")
    for sl in range(3):
        for rq in range(4):
            p("ds_read_b128 %s, v10 offset:%d" % (vr(ACC + 16 * sl + 4 * rq, 4), sl * 4096 + rq * 1024))
    for r_ in range(16):
        p("v_add_f32 v%d, v%d, v%d" % (vOWN + r_, vOWN + r_, ACC + r_))
        p("v_add_f32 v%d, v%d, v%d" % (ACC + 16 + r_, ACC + 16 + r_, ACC + 32 + r_))
    for r_ in range(16): p("v_add_f32 v%d, v%d, v%d" % (vOWN + r_, vOWN + r_, ACC + 16 + r_))
    if have_y:
        for r_ in range(16): p("v_add_f32 v%d, v%d, v%d" % (vY + r_, vY + r_, vOWN + r_))
        g2_store(p)

def flat(l): return [x for y in l for x in y]
def gen(name):
    p = Prog()
    prof_reset()
    p("s_cmp_ge_u32 s2, 256")
    p("s_cbranch_scc1 %s_end" % name)
    stamp(p, "rt0", True); stamp(p, "t0")
    p("s_memrealtime s[86:87]")
    load_kernargs(p)
    p("v_and_b32 v1, 63, v0"); p("v_lshrrev_b32 v2, 6, v0")
    p("s_and_b32 s%d, s2, 7" % sJ); p("s_lshr_b32 s%d, s2, 3" % sR)
    p("v_readfirstlane_b32 s%d, v2" % sW)
    p("v_mov_b32 v253, 0")
    pend = list(p.lg); p.lg = []
    tile_indices(p); g1_dma_setup(p); g1_lds_setup(p); g2_setup(p); p_addr(p)
    p("s_lshl_b32 s%d, s2, 2" % sT0); p("s_add_u32 s78, s%d, s%d" % (sT0, sW))
    p.lg = pend
    p("s_waitcnt lgkmcnt(0)")
    stamp(p, "karg")
    p_loads(p)
    tile_srds(p)
    touches_g1(p)
    srd(p, 92, P_DBG, 256)
    p("s_cmp_eq_u32 s78, %d" % (248 * 4))
    p("s_cbranch_scc0 %s_n0" % name)
    st = side_path_begin(p)
    p("v_mov_b32 v250, s86"); p("v_mov_b32 v251, 1")
    p("s_mov_b64 exec, 1")
    p("buffer_store_dwordx2 v[250:251], v253, s[92:95], 0 offen sc1")
    p("s_mov_b64 exec, -1")
    side_path_end(p, st)
    p.label("%s_n0" % name)
    after_loads = side_path_begin(p)
    p("s_cmp_ge_u32 s%d, 28" % sR)
    p("s_cbranch_scc1 %s_spare" % name)
    for u in g1_dma_stage(0): emit(p, u)
    def common_srds(p):
        srd(p, FL_, P_WS, SZ_FLAG, WS_FLAG); srd(p, KVT_, P_WS, SZ_KVT, WS_KVT); srd(p, ST_, P_WS, SZ_ST, WS_ST); srd(p, CSP_, P_WS, SZ_CSP, WS_CSP)
    def b1_srd(p): srd(p, B1_, P_B1, F * 2)
    common_srds(p); b1_srd(p); g2_srd(p)
    stamp(p, "issued")
    KN = "parallel_sum__ssm_conv_h3__dense_activation_squared_relu__prompt_kernel"
    dm = g1_dma_stage(1) + g1_dma_stage(2)
    kv = rec(kv_compute)
    k = 0
    for i, it in enumerate(kv):
        emit(p, [it])
        while k < 16 and k * len(kv) < (i + 1) * 16: emit(p, dm[k]); k += 1
    while k < 16: emit(p, dm[k]); k += 1
    if OPT["touch"] == 2: touches_g1_late(p)
    stamp(p, "kv_done")
    none = lambda p: None
    lg0 = lambda p: p.wait(lg=0)
    def pre4(p):
        nonce_check(p); fk_publish(p, "g1")
    def b1_load(p):
        p("v_and_b32 v14, 127, v0"); p("v_lshlrev_b32 v14, 1, v14"); p("s_lshl_b32 s84, s%d, 8" % sFT)
        p("buffer_load_ushort v%d, v14, s[%d:%d], s84 offen" % (vB1, B1_, B1_ + 3), "tab")
    def tab_done(p):
        p.wait_tag("tab"); tab_check(p); tab_partial(p)
    def tab_final(p):
        p("v_and_b32 v10, 127, v0"); p("v_lshlrev_b32 v10, 2, v10"); p("v_add_u32 v11, %d, v10" % CSQ_LDS); p("v_add_u32 v10, %d, v10" % TAB_LDS)
        for i in range(4): p("ds_read_b32 v%d, v11 offset:%d" % (20 + i, i * 512))
        p("v_lshlrev_b32 v%d, 16, v%d" % (vB1, vB1))
        p("v_add_f32 v20, v20, v21"); p("v_add_f32 v22, v22, v23"); p("v_add_f32 v20, v20, v22")
        p("ds_write_b32 v10, v20"); p("ds_write_b32 v10, v%d offset:512" % vB1)
    def fk_issue(p):
        fk_addr(p, True); poll_issue(p, vPK, vPA, 85, "fk")
    def fk_check(p):
        p.wait_tag("fk"); poll_check(p, [vPK], [vPA], [85])
    A = [w2_dma(12 + i, i) for i in range(12)]
    def late(p_items): return [p_items]
    fill = {0: (lg0, none, rec(kv_stores) + rec(nonce_issue)),
            1: (none, none, rec(w2_touch) if OPT["w2touch"] == 1 else []),
            2: (none, none, rec(conv_setup)),
            3: (lambda p: p.wait_tag("nonce"), pre4, []),
            4: (none, none, []),
            5: (none, none, rec(tab_loads) + rec(b1_load) + flat(A[0:4])),
            6: (none, none, rec(fk_issue) + flat(A[4:6]) + [(tab_done, None)] + flat(A[6:8])),
            7: (lg0, none, rec(tab_final) + flat(A[8:10]) + [(fk_check, None)] + rec(conv_loads_regs) + flat(A[10:12]))}
    if OPT["w2touch"] == 6:
        np_ = OPT.get("ta_parts", 2); t0_ = OPT.get("ta_stage", 0); tb_ = OPT.get("tb_stage", 5)
        for i_ in range(np_):
            a_, b_, c_ = fill[t0_ + i_][:3]
            fill[t0_ + i_] = (a_, b_, c_, rec(w2_touch_a, i_, np_))
        a_, b_, c_ = fill[tb_][:3]
        fill[tb_] = (a_, b_, c_, (fill[tb_][3] if len(fill[tb_]) > 3 else []) + rec(w2_touch_b))
    elif OPT.get("plan", 1) == 2:
        ts = OPT.get("tstage", 5)
        fill[5] = (none, none, rec(tab_loads) + rec(b1_load) + rec(fk_issue))
        fill[6] = (none, none, [(tab_done, None)])
        fill[7] = (lg0, none, rec(tab_final) + [(fk_check, None)] + rec(conv_loads_regs))
        a_, b_, c_ = fill[ts]
        fill[ts] = (a_, b_, c_, rec(w2_touch))
    elif OPT["w2touch"] == 4:
        for st_ in range(7):
            a_, b_, c_ = fill[st_]
            fill[st_] = (a_, b_, c_, rec(w2_touch_part, st_))
    if OPT["w2touch"] == 5 and OPT.get("plan", 1) == 1:
        for st_, (k_, n_) in enumerate(((0, 32), (2, 32), (4, 48))):
            a_, b_, c_ = fill[st_]
            fill[st_] = (a_, b_, c_, rec(w2_touch_part, k_, n_))
    if OPT.get("ssmtouch", 3):
        st_ = OPT.get("ssmtouch", 3)
        f_ = fill[st_]
        fill[st_] = (f_[0], f_[1], f_[2], (f_[3] if len(f_) > 3 else []) + rec(ssm_touch))
    g1_main(p, fill)
    stamp(p, "g1_mfma_end")
    p.wait(lg=0)
    p("s_barrier")
    conv_loads_lds(p)
    stamp(p, "g1_mma_done")
    FE = OPT.get("fill_epi", 1)
    g1_epilogue(p, rec(conv_fill) if FE else [])
    p.wait_tag("cv")
    p.label("%s_cfill" % name)
    stamp(p, "g1_epi_done")
    g2_setup_tr(p)
    early = OPT.get("early_stash", 0)
    if early:
        p.wait_tag("w23")
        for t in flat([stash_reads(12 + i, i) for i in range(12)]): p(*t)
        B = flat([w2_dma(24 + i, i) for i in range(4)] + [w2_dma(4 + i, 4 + i) for i in range(8)])
        cf = rec(conv_fill)
        p.wait(lg=0)
        k = 0
        for i, it in enumerate(cf):
            emit(p, [it])
            while k < len(B) and k * len(cf) < (i + 1) * len(B): emit(p, [B[k]]); k += 1
    elif not FE:
        conv_fill(p)
    def c0(p):
        if not early: p.wait_tag("w17")
    def c1(p):
        p.wait_tag("hst")
        if not early: p.wait_tag("w23")
        p("s_cmp_ge_u32 s%d, 28" % sR)
        p("s_cbranch_scc1 %s_nohp" % name)
        st = side_path_begin(p)
        h_publish(p)
        side_path_end(p, st)
        p.label("%s_nohp" % name)
        if not early: p.wait(lg=0)
        stamp(p, "h_pub")
    def c2(p):
        if not early: p.wait(lg=0)
        else: p.wait_tag("w27")
    def c3(p):
        p.wait(lg=0)
        if not early: p.wait_tag("w27")
    if early:
        f0, f1 = [], []
        f2 = flat([stash_reads(24 + i, i) for i in range(4)])
        f3 = flat([w2_dma(i, i) for i in range(4)]) + rec(fh_poll_issue)
    else:
        f0 = flat([stash_reads(12 + i, i) for i in range(6)])
        f1 = interleave(flat([stash_reads(18 + i, 6 + i) for i in range(6)]), flat([w2_dma(24 + i, i) for i in range(4)] + [w2_dma(4 + i, 4 + i) for i in range(2)]), 0.5)
        f2 = flat([w2_dma(6 + i, 6 + i) for i in range(6)])
        sr_ = flat([stash_reads(24 + i, i) for i in range(4)])
        if OPT.get("fh_early", 0):
            k_ = OPT["fh_early"]
            f3 = sr_[:k_] + rec(fh_poll_issue) + sr_[k_:]
        else:
            f3 = sr_ + rec(fh_poll_issue)
        if OPT.get("fin_pre", 1): f2 = f2 + rec(conv_finish_addr)
    conv_main(p, [(c0, f0), (c1, f1), (c2, f2), (c3, f3)])
    if not early:
        p.wait(lg=0)
        for u in flat([w2_dma(i, i) for i in range(4)]): emit(p, u)
    g2_h_start(p)
    conv_finish(p, name, [t for s_ in range(OPT.get("h_first", 2), OPT["depth_h"]) for t in h_loads(s_)])
    stamp(p, "conv_done")
    if OPT["htouch"] == 1: h_touch(p)
    z_stores(p)
    if OPT["htouch"] == 2: h_touch(p)
    g2_main(p, name)
    stamp(p, "end")
    if common.PROF: p.wait(vm=0)
    stamp(p, "end_acked"); stamp(p, "rt1", True)
    prof_flush(p, sW)
    p("s_endpgm")
    p.label("%s_spare" % name)
    side_path_end(p, after_loads)
    sp_loads(p)
    if OPT["touch"] == 2: touches_g1_late(p)
    common_srds(p)
    kv_compute(p, 192, 200)
    p.wait(lg=0)
    p("s_barrier")
    kv_stores(p)
    nonce_issue(p)
    sp_stats(p)
    p.wait_tag("nonce"); nonce_check(p)
    sp_stats_store(p)
    sp_cs(p)
    p.wait(lg=0)
    p.wait_tag("kst")
    p("s_barrier")
    fk_publish(p, "sp")
    sp_cs_store(p)
    p.wait(lg=0)
    p("s_barrier")
    g2_srd(p)
    if OPT["w2touch"] == 6: w2_touch_a(p, 0, 1); w2_touch_b(p)
    elif OPT["w2touch"]: w2_touch(p)
    for u in flat(A): emit(p, u)
    conv_setup(p)
    fk_addr(p, True)
    poll_issue(p, vPK, vPA, 85, "poll")
    p.wait(vm=0, lg=0)
    poll_check(p, [vPK], [vPA], [85])
    conv_loads_regs(p)
    conv_loads_lds(p)
    p.wait(vm=0)
    if FE: conv_fill(p)
    p("s_branch %s_cfill" % name)
    p.label("%s_end" % name)
    p("s_endpgm")
    return p.text(), 512, 256
```

```python
from common import *
import common
from fused import (sN, sJ, sR, sW, sT0, sT1, sT2, sT3, FL_, unpack, flag_store, poll_issue, poll_check,
                   side_path_begin, side_path_end, nonce_issue, nonce_check, _uid)
OPT = dict(touch=0, htouch=0, nt=0, ntkv=0, depth_h=6, w2touch=5, s_fz=17, s_zl=21, g2map=1, th_stage=1)
def nt(): return " nt" if OPT["nt"] else ""
def ntkv(): return " nt" if (OPT["nt"] or OPT["ntkv"]) else ""

class Rec:
    def __init__(self): self.items = []; self.grp = None
    def __call__(self, txt, tag=None): (self.grp if self.grp is not None else self.items).append((txt, tag))
    def call(self, fn): (self.grp if self.grp is not None else self.items).append((fn, None))
    def wait(self, vm=None, lg=None): self.call(lambda p: p.wait(vm, lg))
    def wait_tag(self, tag): self.call(lambda p: p.wait_tag(tag))
    def begin(self): self.grp = []
    def end(self): self.items.append(self.grp); self.grp = None
def begin(p):
    if isinstance(p, Rec): p.begin()
def end(p):
    if isinstance(p, Rec): p.end()
def emit(p, items):
    for it in items:
        if isinstance(it, list): emit(p, it)
        elif callable(it[0]): it[0](p)
        else: p(it[0], it[1])
_srd0 = srd
def srd(p, dst, ptr, size, off=0):
    begin(p); _srd0(p, dst, ptr, size, off); end(p)
def rec(fn, *a):
    r = Rec(); fn(r, *a); return r.items

P_LDS, SK_LDS = 131072, 139264
TAB_LDS, CSQ_LDS = 157440, 158464
CV0 = 98304
RB_LDS = CV0 + 256 + 2 * 21248
XT, ZTT, RED = 98304, 106496, 114688
sROW, sRB, sFT = 72, 73, 74
sXo, sWo, sM = 80, 81, 82
sCH, sC2, sCB = 86, 87, 88
sTok, sCh, sHo = 89, 90, 91
sWA, sM2, sXO = 3, 17, 6
K_, V_, SK_, GQ_, GW1_ = 40, 44, 48, 52, 56
KVT_, ST_, CSP_ = 60, 64, 68

KR, VR, SKR, XR, CR = 16, 36, 44, 128, 136
vC, vRR = 3, 4
def p_addr(p):
    vA = 5
    p("v_and_b32 v11, 31, v1"); p("v_lshlrev_b32 v11, 4, v11")
    p("v_and_b32 v%d, 7, v1" % vC); p("v_lshrrev_b32 v%d, 3, v1" % vRR)
    p("s_lshl_b32 s%d, s%d, 6" % (sT0, sR)); p("s_lshl_b32 s%d, s%d, 4" % (sT1, sW))
    p("s_add_u32 s%d, s%d, s%d" % (sT0, sT0, sT1)); p("s_lshl_b32 s%d, s%d, 10" % (sT0, sT0))
    p("s_lshl_b32 s%d, s%d, 7" % (sT1, sJ)); p("s_add_u32 s%d, s%d, s%d" % (sT0, sT0, sT1))
    p("v_lshlrev_b32 v%d, 11, v%d" % (vA, vRR)); p("v_lshl_add_u32 v%d, v%d, 4, v%d" % (vA, vC, vA))
    p("v_add_u32 v%d, s%d, v%d" % (vA, sT0, vA))
    for i in range(5): p("v_add_u32 v%d, %d, v%d" % (6 + i, (i - 3) * 1024, vA))
    p("s_lshl_b32 s%d, s%d, 9" % (sT3, sJ))
def p_loads(p):
    vA = 5
    srd(p, K_, P_K, S * D * 2)
    for i in range(5): p("buffer_load_dwordx4 %s, v%d, s[%d:%d], 0 offen%s" % (vr(KR + 4 * i, 4), 6 + i, K_, K_ + 3, ntkv()))
    srd(p, V_, P_V, S * D * 2)
    p("buffer_load_dwordx4 %s, v%d, s[%d:%d], 0 offen%s" % (vr(VR, 4), vA, V_, V_ + 3, ntkv()))
    p("buffer_load_dwordx4 %s, v%d, s[%d:%d], 0 offen offset:1024%s" % (vr(VR + 4, 4), vA, V_, V_ + 3, ntkv()))
    srd(p, SK_, P_SK, D * 8)
    p("buffer_load_dwordx4 %s, v11, s[%d:%d], s%d offen" % (vr(SKR, 4), SK_, SK_ + 3, sT3))

def tile_srds(p):
    srd(p, GQ_, P_Q, S * D * 2); srd(p, GW1_, P_W1, D * F * 2)
def tile_indices(p):
    p("s_mul_i32 s%d, s%d, 37" % (sT0, sR)); p("s_lshr_b32 s%d, s%d, 8" % (sT0, sT0))
    p("s_mul_i32 s%d, s%d, 7" % (sT1, sT0)); p("s_sub_u32 s%d, s%d, s%d" % (sT1, sR, sT1))
    p("s_lshr_b32 s%d, s%d, 1" % (sT2, sJ)); p("s_lshl_b32 s%d, s%d, 2" % (sT2, sT2))
    p("s_add_u32 s%d, s%d, s%d" % (sRB, sT2, sT0))
    p("s_and_b32 s%d, s%d, 1" % (sT2, sJ)); p("s_mul_i32 s%d, s%d, 7" % (sT2, sT2))
    p("s_add_u32 s%d, s%d, s%d" % (sFT, sT2, sT1))

def touches_g1(p):
    if OPT["touch"] != 1: return
    p("s_lshl_b32 s%d, s%d, 2" % (sT2, sR)); p("s_add_u32 s%d, s%d, s%d" % (sT2, sT2, sW))
    p("v_lshlrev_b32 v9, 7, v1")
    p("s_lshr_b32 s%d, s%d, 1" % (sT0, sJ)); p("s_lshl_b32 s%d, s%d, 19" % (sT0, sT0))
    p("s_lshl_b32 s%d, s%d, 12" % (sT1, sT2)); p("s_add_u32 s%d, s%d, s%d" % (sT0, sT0, sT1))
    p("s_mov_b32 exec_hi, 0")
    p("buffer_load_dword v188, v9, s[%d:%d], s%d offen%s" % (GQ_, GQ_ + 3, sT0, nt()), "touch")
    p("s_mov_b64 exec, -1")
    p("v_mul_u32_u24 v10, 4682, v1"); p("v_lshrrev_b32 v10, 16, v10")
    p("v_mul_u32_u24 v11, 14, v10"); p("v_sub_u32 v11, v1, v11")
    p("v_mul_u32_u24 v10, 3584, v10"); p("v_lshl_add_u32 v10, v11, 7, v10")
    p("s_mul_i32 s%d, s%d, %d" % (sT0, sT2, 4 * 3584)); p("s_and_b32 s%d, s%d, 1" % (sT1, sJ))
    p("s_mul_i32 s%d, s%d, 1792" % (sT1, sT1)); p("s_add_u32 s%d, s%d, s%d" % (sT0, sT0, sT1))
    p("s_mov_b32 exec_hi, 0x00ffffff")
    p("buffer_load_dword v189, v10, s[%d:%d], s%d offen%s" % (GW1_, GW1_ + 3, sT0, nt()), "touch")
    p("s_mov_b64 exec, -1")

def touches_g1_late(p):
    p("s_lshl_b32 s83, s%d, 2" % sR); p("s_add_u32 s83, s83, s%d" % sW)
    p("v_mul_u32_u24 v8, 13108, v1"); p("v_lshrrev_b32 v8, 16, v8")
    p("v_mul_u32_u24 v9, 5, v8"); p("v_sub_u32 v9, v1, v9"); p("v_add_u32 v9, 3, v9")
    p("v_lshlrev_b32 v8, 10, v8"); p("v_lshl_add_u32 v8, v9, 7, v8")
    p("s_lshr_b32 s84, s%d, 1" % sJ); p("s_lshl_b32 s84, s84, 19"); p("s_lshl_b32 s75, s83, 12"); p("s_add_u32 s84, s84, s75")
    begin(p)
    p("s_mov_b64 exec, 0xfffff")
    p("buffer_load_dword v188, v8, s[%d:%d], s84 offen" % (GQ_, GQ_ + 3), "touch")
    p("s_mov_b64 exec, -1")
    end(p)
    p("s_mul_i32 s83, s83, 35"); p("v_add_u32 v8, s83, v1")
    p("v_mul_u32_u24 v9, 4682, v8"); p("v_lshrrev_b32 v9, 16, v9")
    p("v_mul_u32_u24 v10, 14, v9"); p("v_sub_u32 v10, v8, v10")
    p("v_add_u32 v9, 192, v9"); p("v_mul_u32_u24 v9, 3584, v9"); p("v_lshl_add_u32 v9, v10, 7, v9")
    p("s_and_b32 s84, s%d, 1" % sJ); p("s_mul_i32 s84, s84, 1792")
    begin(p)
    p("s_mov_b32 exec_hi, 0x7")
    p("buffer_load_dword v189, v9, s[%d:%d], s84 offen" % (GW1_, GW1_ + 3), "touch")
    p("s_mov_b64 exec, -1")
    end(p)
assert all((L * 4682) >> 16 == L // 14 for L in range(0, 1200)), "check"
def w2_touch(p):
    p("v_lshlrev_b32 v9, 7, v1")
    p("s_lshl_b32 s83, s%d, 2" % sR); p("s_add_u32 s83, s83, s%d" % sW); p("s_mul_i32 s83, s83, 14336")
    p("buffer_load_dword v190, v9, s[8:11], s83 offen", "touch2")
    p("s_add_u32 s83, s83, 8192")
    begin(p)
    p("s_mov_b32 exec_hi, 0xffff")
    p("buffer_load_dword v191, v9, s[8:11], s83 offen", "touch2")
    p("s_mov_b64 exec, -1")
    end(p)

def ssm_touch(p):
    p("v_lshlrev_b32 v9, 7, v1")
    p("s_lshl_b32 s83, s%d, 6" % sJ); p("s_lshl_b32 s84, s%d, 1" % sR); p("s_add_u32 s83, s83, s84"); p("s_lshl_b32 s83, s83, 12")
    p("s_lshl_b32 s84, s%d, 11" % sW); p("s_add_u32 s83, s83, s84")
    begin(p)
    p("s_mov_b64 exec, 0xffff")
    p("buffer_load_dword v191, v9, s[%d:%d], s83 offen%s" % (SSM_, SSM_ + 3, ntkv()), "touch4")
    p("s_mov_b64 exec, -1")
    end(p)
def w2_touch_part(p, k, n=16):
    p("v_lshlrev_b32 v9, 7, v1")
    p("s_lshl_b32 s83, s%d, 2" % sR); p("s_add_u32 s83, s83, s%d" % sW); p("s_mul_i32 s83, s83, 14336")
    if k: p("s_add_u32 s83, s83, %d" % (k * 16 * 128))
    begin(p)
    p("s_mov_b64 exec, 0x%x" % ((1 << n) - 1)) if n <= 16 else (p("s_mov_b32 exec_lo, 0x%x" % (((1 << min(n, 32)) - 1) & 0xffffffff)), p("s_mov_b32 exec_hi, 0x%x" % ((1 << max(n - 32, 0)) - 1)))
    p("buffer_load_dword v%d, v9, s[8:11], s83 offen%s" % ((186, 187, 190, 191)[k & 3], " nt" if OPT.get("ntw2") else ""), "touch2")
    p("s_mov_b64 exec, -1")
    end(p)
def w2_touch_half(p, part, nparts):
    n = 56 // nparts
    p("v_lshrrev_b32 v8, 2, v1"); p("v_and_b32 v9, 3, v1"); p("v_lshlrev_b32 v9, 7, v9"); p("v_lshl_add_u32 v9, v8, 10, v9")
    p("s_lshl_b32 s83, s%d, 2" % sR); p("s_add_u32 s83, s83, s%d" % sW); p("s_mul_i32 s83, s83, 14336")
    p("s_and_b32 s84, s%d, 1" % sJ); p("s_lshl_b32 s84, s84, 9"); p("s_add_u32 s83, s83, s84")
    if part: p("s_add_u32 s83, s83, %d" % (part * (n // 4) * 1024))
    begin(p)
    p("s_mov_b32 exec_lo, 0x%x" % (((1 << min(n, 32)) - 1) & 0xffffffff)); p("s_mov_b32 exec_hi, 0x%x" % ((1 << max(n - 32, 0)) - 1))
    p("buffer_load_dword v%d, v9, s[8:11], s83 offen" % (186 + (part & 1)), "touch2")
    p("s_mov_b64 exec, -1")
    end(p)
def w2_touch_a(p, part, nparts):
    n = 48 // nparts
    p("s_lshl_b32 s83, s%d, 2" % sR); p("s_add_u32 s83, s83, s%d" % sW)
    p("s_lshr_b32 s84, s83, 5"); p("s_mul_i32 s84, s84, 448"); p("s_and_b32 s83, s83, 31"); p("s_mul_i32 s83, s83, 6")
    p("s_add_u32 s83, s83, s84"); p("s_add_u32 s83, s83, 192"); p("s_lshl_b32 s83, s83, 10")
    if part: p("s_add_u32 s83, s83, %d" % (part * n * 128))
    p("v_lshlrev_b32 v9, 7, v1")
    begin(p)
    if n <= 32: p("s_mov_b64 exec, 0x%x" % ((1 << n) - 1)) if n <= 16 else (p("s_mov_b32 exec_lo, 0x%x" % ((1 << n) - 1)), p("s_mov_b32 exec_hi, 0"))
    else: p("s_mov_b32 exec_hi, 0x%x" % ((1 << (n - 32)) - 1))
    p("buffer_load_dword v%d, v9, s[8:11], s83 offen" % (186 + (part & 1)), "touch2")
    p("s_mov_b64 exec, -1")
    end(p)
def w2_touch_b(p):
    p("s_lshl_b32 s83, s%d, 2" % sR); p("s_add_u32 s83, s83, s%d" % sW)
    p("s_lshr_b32 s84, s83, 5"); p("s_mul_i32 s84, s84, 448"); p("s_and_b32 s83, s83, 31")
    begin(p); p("s_cmp_ge_u32 s83, 24"); p("s_cselect_b32 s75, 192, 0"); end(p)
    p("s_lshl_b32 s83, s83, 3"); p("s_add_u32 s83, s83, s75"); p("s_add_u32 s83, s83, s84"); p("s_lshl_b32 s83, s83, 10")
    p("v_lshlrev_b32 v9, 7, v1")
    p("buffer_load_dword v190, v9, s[8:11], s83 offen", "touch2")
def code_touch(p, kname):
    _uid[0] += 1; u = _uid[0]
    begin(p)
    p("s_getpc_b64 s[76:77]")
    p("Lct%d:" % u)
    p("s_sub_u32 s76, s76, Lct%d-%s" % (u, kname))
    p("s_subb_u32 s77, s77, 0")
    end(p)
    p("s_lshl_b32 s83, s%d, 2" % sR); p("s_add_u32 s83, s83, s%d" % sW)
    p("v_lshlrev_b32 v14, 7, v1"); p("v_add_u32 v14, s83, v14")
    p("v_lshlrev_b32 v14, 7, v14")
    p("v_min_u32 v14, %s_end-%s-4, v14" % (kname_end[0], kname))
    begin(p)
    p("v_mov_b32 v15, s77"); p("v_add_co_u32 v14, vcc, s76, v14"); p("s_nop 1"); p("v_addc_co_u32 v15, vcc, 0, v15, vcc")
    p("s_mov_b64 exec, 7")
    p("global_load_dword v186, v[14:15], off", "codet")
    p("s_mov_b64 exec, -1")
    end(p)
kname_end = ["fz"]

vKL, vKG0, vKG1 = 24, 25, 26
def kv_compute(p, RES=100, A=108):
    p("s_lshl_b32 s%d, s%d, 9" % (sT0, sW)); p("s_add_u32 s%d, s%d, %d" % (sT0, sT0, SK_LDS))
    p("v_and_b32 v11, 31, v1"); p("v_lshlrev_b32 v11, 4, v11"); p("v_add_u32 v11, s%d, v11" % sT0)
    p("v_lshlrev_b32 v2, 6, v%d" % vC); p("v_add_u32 v2, s%d, v2" % sT0)
    p("ds_write_b128 v11, %s" % vr(SKR, 4))
    p("s_lshl_b32 s%d, s%d, 3" % (sT0, sW)); p("s_sub_u32 s%d, 31, s%d" % (sT0, sT0))
    p("v_sub_u32 v15, s%d, v%d" % (sT0, vRR))
    p("v_lshrrev_b32 v6, 2, v15"); p("v_xor_b32 v6, v6, v%d" % vC)
    p("v_and_b32 v15, 3, v15"); p("v_lshlrev_b32 v15, 2, v15")
    p("v_lshl_add_u32 v15, v6, 4, v15"); p("v_lshl_add_u32 v15, v%d, 10, v15" % vC)
    p("v_add_u32 v15, %d, v15" % P_LDS)
    p.wait(lg=0)
    for i in range(4): p("ds_read_b128 %s, v2 offset:%d" % (vr(SKR + 4 * i, 4), 16 * i))
    p("s_mov_b32 s76, 0x05040100"); p("s_mov_b32 s77, 0x07060302")
    for e in range(8 if not OPT.get("x_nokv") else 1):
        dw, hf = e >> 1, e & 1
        sel = 76 + hf
        K = lambda i: KR + 4 * i + dw
        a = A + 8 * (e & 1)
        p("v_perm_b32 v%d, v%d, v%d, s%d" % (a + 0, K(2), K(3), sel))
        p("v_perm_b32 v%d, v%d, v%d, s%d" % (a + 1, K(0), K(1), sel))
        p("v_perm_b32 v%d, v%d, v%d, s%d" % (a + 2, K(3), K(4), sel))
        p("v_perm_b32 v%d, v%d, v%d, s%d" % (a + 3, K(1), K(2), sel))
        p("v_dot2_f32_bf16 v%d, v%d, v%d, 0" % (a + 4, a + 0, SKR + 2 * e))
        p("v_dot2_f32_bf16 v%d, v%d, v%d, 0" % (a + 5, a + 2, SKR + 2 * e))
        unpack(p, a + 6, VR + dw, hf); unpack(p, a + 7, VR + 4 + dw, hf)
        p("v_dot2_f32_bf16 v%d, v%d, v%d, v%d" % (a + 4, a + 1, SKR + 2 * e + 1, a + 4))
        p("v_dot2_f32_bf16 v%d, v%d, v%d, v%d" % (a + 5, a + 3, SKR + 2 * e + 1, a + 5))
        if e > 0:
            b = A + 8 * ((e - 1) & 1)
            p("v_mul_f32 v%d, v%d, v%d" % (b + 4, b + 4, b + 6)); p("v_mul_f32 v%d, v%d, v%d" % (b + 5, b + 5, b + 7))
            p("v_cvt_pk_bf16_f32 v%d, v%d, v%d" % (RES + e - 1, b + 5, b + 4))
            p("ds_write_b32 v15, v%d offset:%d" % (RES + e - 1, (e - 1) * 128))
    b = A + 8
    p("s_lshl_b32 s%d, s%d, 4" % (sT0, sW)); p("v_add_u32 v6, s%d, v%d" % (sT0, vRR))
    p("v_mul_f32 v%d, v%d, v%d" % (b + 4, b + 4, b + 6)); p("v_mul_f32 v%d, v%d, v%d" % (b + 5, b + 5, b + 7))
    p("v_cvt_pk_bf16_f32 v%d, v%d, v%d" % (RES + 7, b + 5, b + 4))
    p("ds_write_b32 v15, v%d offset:%d" % (RES + 7, 7 * 128))
    p("v_lshlrev_b32 v7, 7, v6"); p("v_lshl_add_u32 v7, v%d, 4, v7" % vC); p("v_add_u32 v%d, %d, v7" % (vKL, P_LDS))
    p("v_lshlrev_b32 v8, 12, v6"); p("s_lshl_b32 s%d, s%d, 1" % (sT1, sW))
    p("v_xor_b32 v9, s%d, v%d" % (sT1, vC)); p("v_lshl_add_u32 v%d, v9, 4, v8" % vKG0)
    p("s_add_u32 s%d, s%d, 1" % (sT1, sT1))
    p("v_xor_b32 v10, s%d, v%d" % (sT1, vC)); p("v_lshl_add_u32 v10, v10, 4, v8"); p("v_add_u32 v%d, 0x8000, v10" % vKG1)
def kv_stores(p):
    p("ds_read_b128 v[16:19], v%d" % vKL); p("ds_read_b128 v[20:23], v%d offset:1024" % vKL)
    p("s_lshl_b32 s83, s%d, 18" % sJ); p("s_lshl_b32 s84, s%d, 7" % sR)
    p("s_sub_u32 s83, s83, s84"); p("s_add_u32 s83, s83, 3968")
    p("buffer_store_dwordx4 v[16:19], v%d, s[%d:%d], s83 offen sc1" % (vKG0, KVT_, KVT_ + 3), "kst")
    p("buffer_store_dwordx4 v[20:23], v%d, s[%d:%d], s83 offen sc1" % (vKG1, KVT_, KVT_ + 3), "kst")

SX, SC_ = 128, 64
def sp_loads(p):
    p("s_sub_u32 s72, s%d, 28" % sR)
    p("s_lshr_b32 s%d, s%d, 1" % (sT0, sJ)); p("s_lshl_b32 s%d, s%d, 9" % (sT0, sT0))
    p("s_and_b32 s%d, s%d, 1" % (sT1, sJ)); p("s_lshl_b32 s%d, s%d, 2" % (sT1, sT1)); p("s_add_u32 s%d, s%d, s72" % (sT1, sT1))
    p("s_lshl_b32 s%d, s%d, 6" % (sT1, sT1)); p("s_add_u32 s%d, s%d, s%d" % (sT0, sT0, sT1))
    p("s_lshl_b32 s%d, s%d, 4" % (sT1, sW)); p("s_add_u32 s73, s%d, s%d" % (sT0, sT1))
    p("s_lshl_b32 s%d, s73, 10" % sT0)
    p("v_lshrrev_b32 v10, 3, v1"); p("v_and_b32 v11, 7, v1"); p("v_lshlrev_b32 v11, 4, v11"); p("v_lshl_add_u32 v10, v10, 10, v11")
    for g in range(2):
        for i in range(8):
            p("buffer_load_dwordx4 %s, v10, s[%d:%d], s%d offen offset:%d" % (vr(SX + 32 * g + 4 * i, 4), GQ_, GQ_ + 3, sT0, i * 128), "sx")
        if g == 0: p("s_add_u32 s%d, s%d, 8192" % (sT0, sT0))
    p("s_lshr_b32 s74, s%d, 1" % sJ); p("s_lshl_b32 s74, s74, 2"); p("s_add_u32 s74, s74, s72")
    p("s_lshl_b32 s%d, s74, 5" % sT0); p("s_lshl_b32 s%d, s%d, 3" % (sT1, sW)); p("s_add_u32 s%d, s%d, s%d" % (sT0, sT0, sT1))
    p("s_mul_i32 s%d, s%d, 3584" % (sT0, sT0)); p("s_and_b32 s%d, s%d, 1" % (sT1, sJ)); p("s_mul_i32 s%d, s%d, 1792" % (sT1, sT1))
    p("s_add_u32 s%d, s%d, s%d" % (sT0, sT0, sT1))
    p("v_lshlrev_b32 v12, 4, v1")
    for i in range(8):
        p("buffer_load_dwordx4 %s, v12, s[%d:%d], s%d offen" % (vr(SC_ + 8 * i, 4), GW1_, GW1_ + 3, sT0), "sc")
        p("buffer_load_dwordx4 %s, v12, s[%d:%d], s%d offen offset:1024" % (vr(SC_ + 8 * i + 4, 4), GW1_, GW1_ + 3, sT0), "sc")
        if i < 7: p("s_add_u32 s%d, s%d, 3584" % (sT0, sT0))
def sp_stats(p):
    T = 200
    p("s_mov_b32 s75, 0x3f803f80")
    for g in range(2):
        for h in range(2): p("v_mov_b32 v%d, 0" % (T + 4 * g + h)); p("v_mov_b32 v%d, 0" % (T + 8 + 2 * g + h))
    for i in range(8):
        for g in range(2):
            for d in range(4):
                r_ = SX + 32 * g + 4 * i + d
                aS, aQ = (T + 4 * g, T + 4 * g + 1) if d & 1 else (T + 8 + 2 * g, T + 9 + 2 * g)
                p("v_dot2_f32_bf16 v%d, v%d, s75, v%d" % (aS, r_, aS)); p("v_dot2_f32_bf16 v%d, v%d, v%d, v%d" % (aQ, r_, r_, aQ))
    for g in range(2):
        p("v_add_f32 v%d, v%d, v%d" % (T + 4 * g, T + 4 * g, T + 8 + 2 * g)); p("v_add_f32 v%d, v%d, v%d" % (T + 4 * g + 1, T + 4 * g + 1, T + 9 + 2 * g))
    for ctrl in ("quad_perm:[1,0,3,2] row_mask:0xf", "quad_perm:[2,3,0,1] row_mask:0xf", "row_half_mirror row_mask:0xf"):
        for q in (T, T + 1, T + 4, T + 5):
            p("v_add_f32_dpp v%d, v%d, v%d %s bank_mask:0xf" % (q, q, q, ctrl))
    for g in range(2):
        sS, sQ = T + 4 * g, T + 4 * g + 1
        p("v_mul_f32 v%d, 0x3b000000, v%d" % (sS, sS)); p("v_mul_f32 v%d, 0x3b000000, v%d" % (sQ, sQ))
    for g in range(2): p("v_fma_f32 v%d, -v%d, v%d, v%d" % (T + 4 * g + 1, T + 4 * g, T + 4 * g, T + 4 * g + 1))
    for g in range(2): p("v_max_f32 v%d, 0, v%d" % (T + 4 * g + 1, T + 4 * g + 1))
    for g in range(2): p("v_add_f32 v%d, 0x3727c5ac, v%d" % (T + 4 * g + 1, T + 4 * g + 1))
    for g in range(2): p("v_rsq_f32 v%d, v%d" % (T + 4 * g + 1, T + 4 * g + 1))
def sp_stats_store(p):
    T = 200
    for g in range(2): p("v_mov_b32 v%d, v%d" % (T + 4 * g + 2, T + 4 * g + 1))
    for q in (T + 1, T + 3, T + 5, T + 7): p("v_mov_b32 v%d, s%d" % (q, sN))
    p("v_lshrrev_b32 v10, 3, v1"); p("v_lshlrev_b32 v10, 4, v10")
    p("s_lshl_b32 s%d, s73, 4" % sT0)
    p("s_mov_b32 exec_lo, 0x01010101"); p("s_mov_b32 exec_hi, 0x01010101")
    p("buffer_store_dwordx4 %s, v10, s[%d:%d], s%d offen sc1" % (vr(T, 4), ST_, ST_ + 3, sT0), "pst")
    p("buffer_store_dwordx4 %s, v10, s[%d:%d], s%d offen offset:128 sc1" % (vr(T + 4, 4), ST_, ST_ + 3, sT0), "pst")
    p("s_mov_b64 exec, -1")
SPC_LDS = 0
def sp_cs(p):
    A = 216
    p("s_mov_b32 s76, 0x00003f80"); p("s_mov_b32 s77, 0x3f800000")
    for i in range(8):
        for part in range(2):
            for d in range(4):
                r_ = SC_ + 8 * i + 4 * part + d; a = A + 8 * part + 2 * d
                p("v_dot2_f32_bf16 v%d, v%d, s76, %s" % (a, r_, "0" if i == 0 else "v%d" % a))
                p("v_dot2_f32_bf16 v%d, v%d, s77, %s" % (a + 1, r_, "0" if i == 0 else "v%d" % (a + 1)))
    p("v_lshlrev_b32 v10, 5, v1"); p("s_lshl_b32 s%d, s%d, 12" % (sT0, sW)); p("v_add_u32 v10, s%d, v10" % sT0)
    for part in range(2):
        p("ds_write_b128 v10, %s offset:%d" % (vr(A + 8 * part, 4), SPC_LDS + part * 2048))
        p("ds_write_b128 v10, %s offset:%d" % (vr(A + 8 * part + 4, 4), SPC_LDS + part * 2048 + 16))
def sp_cs_store(p):
    p("v_lshlrev_b32 v10, 4, v0")
    for w in range(4): p("ds_read_b128 %s, v10 offset:%d" % (vr(64 + 4 * w, 4), SPC_LDS + w * 4096))
    for c in range(4):
        p("v_add_f32 v%d, v%d, v%d" % (64 + c, 64 + c, 68 + c)); p("v_add_f32 v%d, v%d, v%d" % (72 + c, 72 + c, 76 + c))
    for c in range(4): p("v_add_f32 v%d, v%d, v%d" % (80 + 2 * c, 64 + c, 72 + c)); p("v_mov_b32 v%d, s%d" % (81 + 2 * c, sN))
    p("s_mul_i32 s%d, s74, %d" % (sT0, 1792 * 8)); p("s_and_b32 s%d, s%d, 1" % (sT1, sJ)); p("s_mul_i32 s%d, s%d, %d" % (sT1, sT1, 896 * 8))
    p("s_add_u32 s%d, s%d, s%d" % (sT0, sT0, sT1))
    p("v_lshlrev_b32 v11, 5, v0")
    p("v_cmp_gt_u32 vcc, 224, v0"); p("s_nop 1"); p("v_cndmask_b32 v11, v253, v11, vcc"); p("v_mov_b32 v12, 0x7f000000")
    p("v_cndmask_b32 v11, v12, v11, vcc")
    p("buffer_store_dwordx4 v[80:83], v11, s[%d:%d], s%d offen sc1" % (CSP_, CSP_ + 3, sT0), "pst")
    p("buffer_store_dwordx4 v[84:87], v11, s[%d:%d], s%d offen offset:16 sc1" % (CSP_, CSP_ + 3, sT0), "pst")
def fk_publish(p, name):
    p("s_cmp_eq_u32 s%d, 0" % sW)
    p("s_cbranch_scc0 %s_nofk" % name)
    st = side_path_begin(p)
    p("s_lshl_b32 s%d, s%d, 5" % (sT0, sJ)); p("s_add_u32 s%d, s%d, s%d" % (sT0, sT0, sR))
    p("s_lshl_b32 s%d, s%d, 7" % (sT0, sT0))
    if FL_FK: p("s_add_u32 s%d, s%d, %d" % (sT0, sT0, FL_FK))
    flag_store(p, sT0)
    side_path_end(p, st)
    p.label("%s_nofk" % name)
vPK, vPA = 184, 185
def fk_addr(p, all_waves=False):
    p("v_min_u32 v%d, 31, v1" % vPA); p("v_lshlrev_b32 v%d, 7, v%d" % (vPA, vPA))
    if not all_waves:
        p("s_min_u32 s85, s%d, 1" % sW); p("s_sub_u32 s85, 1, s85"); p("v_mul_u32_u24 v%d, s85, v%d" % (vPA, vPA))
    p("s_lshl_b32 s85, s%d, 12" % sJ)
    if FL_FK: p("s_add_u32 s85, s85, %d" % FL_FK)

vX, vWd, vXA, vWA = 192, 196, 200, 208
G1_ACC = 64
vCS, vB1, vST = 128, 180, 212
B1_ = 40
def g1_dma_setup(p):
    p("v_lshrrev_b32 v10, 3, v1"); p("v_and_b32 v11, 7, v1"); p("v_lshrrev_b32 v12, 1, v10")
    for ii in range(4):
        p("v_add_u32 v13, %d, v12" % (4 * (ii & 1))); p("v_xor_b32 v13, v13, v11")
        p("v_lshlrev_b32 v13, 4, v13"); p("v_lshl_add_u32 v13, v10, 10, v13")
        p("v_add_u32 v%d, %d, v13" % (vX + ii, ii * 8192 - ii * 1024))
    p("v_lshrrev_b32 v10, 4, v1"); p("v_and_b32 v11, 15, v1"); p("v_lshlrev_b32 v12, 2, v10")
    p("v_xor_b32 v12, v12, v11"); p("v_lshlrev_b32 v12, 4, v12")
    p("v_mul_u32_u24 v13, 3584, v10"); p("v_add_u32 v13, v13, v12")
    for ii in range(4): p("v_add_u32 v%d, %d, v13" % (vWd + ii, ii * 4 * 3584 - ii * 1024))
    p("s_lshl_b32 s%d, s%d, 17" % (sXo, sRB)); p("s_lshl_b32 s%d, s%d, 15" % (sT0, sW))
    p("s_add_u32 s%d, s%d, s%d" % (sXo, sXo, sT0))
    p("s_mul_i32 s%d, s%d, %d" % (sWo, sW, 16 * 3584)); p("s_lshl_b32 s%d, s%d, 8" % (sT0, sFT))
    p("s_add_u32 s%d, s%d, s%d" % (sWo, sWo, sT0))
    p("s_lshl_b32 s%d, s%d, 12" % (sM, sW))
def g1_rot_setup(p):
    if not OPT.get("rot", 0): return
    p("s_mul_i32 s%d, s%d, 37" % (sT0, sR)); p("s_lshr_b32 s%d, s%d, 8" % (sT0, sT0))
    p("s_mul_i32 s%d, s%d, 5" % (sT1, sT0)); p("s_sub_u32 s%d, s%d, s%d" % (sT1, sR, sT1))
    p("s_mul_i32 s%d, s%d, %d" % (sT1, sT1, OPT["rot"])); p("s_and_b32 s%d, s%d, 7" % (sROT, sT1))
    p("s_mov_b32 s%d, s%d" % (sXb, sXo)); p("s_mov_b32 s%d, s%d" % (sWb, sWo))
    for it in rot_offsets(): p(it[0])
sROT, sXb, sWb = 72, 6, 7
def rot_offsets():
    return [("s_lshl_b32 s%d, s%d, 7" % (sT3, sROT), None), ("s_add_u32 s%d, s%d, s%d" % (sXo, sXb, sT3), None),
            ("s_mul_i32 s%d, s%d, %d" % (sT3, sROT, 64 * 3584), None), ("s_add_u32 s%d, s%d, s%d" % (sWo, sWb, sT3), None)]
def g1_dma_stage(s):
    out = []; slot = s % 4
    for ii in range(4):
        u = [("s_add_u32 m0, s%d, %d" % (sM, slot * 32768), None)] if ii == 0 else []
        out.append(u + [("buffer_load_dwordx4 v%d, s[%d:%d], s%d offen offset:%d lds" % (vX + ii, GQ_, GQ_ + 3, sXo, ii * 1024), "st%d" % s)])
    for ii in range(4):
        u = [("s_add_u32 m0, s%d, %d" % (sM, slot * 32768 + 16384), None)] if ii == 0 else []
        out.append(u + [("buffer_load_dwordx4 v%d, s[%d:%d], s%d offen offset:%d lds" % (vWd + ii, GW1_, GW1_ + 3, sWo, ii * 1024), "st%d" % s)])
    if OPT.get("rot", 0):
        out[-1] += [("s_add_u32 s%d, s%d, 1" % (sROT, sROT), None), ("s_and_b32 s%d, s%d, 7" % (sROT, sROT), None)] + rot_offsets()
    else:
        out[-1] += [("s_add_u32 s%d, s%d, 128" % (sXo, sXo), None), ("s_add_u32 s%d, s%d, %d" % (sWo, sWo, 64 * 3584), None)]
    return out
def g1_lds_setup(p):
    p("v_and_b32 v10, 31, v1"); p("v_lshrrev_b32 v11, 5, v1")
    p("v_lshrrev_b32 v12, 1, v10"); p("v_and_b32 v12, 7, v12"); p("v_xor_b32 v12, v12, v11")
    p("s_lshr_b32 s%d, s%d, 1" % (sT1, sW)); p("s_lshl_b32 s%d, s%d, 13" % (sT1, sT1))
    p("v_lshlrev_b32 v13, 7, v10"); p("v_add_u32 v13, s%d, v13" % sT1)
    for jj in range(4):
        p("v_xor_b32 v14, %d, v12" % (2 * jj))
        p("v_lshl_add_u32 v%d, v14, 4, v13" % (vXA + jj))
        p("v_add_u32 v%d, 0x10000, v%d" % (vXA + 4 + jj, vXA + jj))
    p("v_and_b32 v10, 15, v1"); p("v_lshrrev_b32 v11, 4, v1"); p("v_lshrrev_b32 v12, 1, v11")
    p("v_and_b32 v11, 1, v11"); p("v_lshrrev_b32 v13, 2, v10")
    p("v_lshl_add_u32 v12, v12, 3, v13"); p("v_lshlrev_b32 v12, 8, v12")
    p("v_and_b32 v14, 1, v10"); p("v_lshl_add_u32 v12, v14, 3, v12"); p("v_add_u32 v12, 16384, v12")
    p("v_and_b32 v14, 3, v10"); p("v_lshrrev_b32 v14, 1, v14"); p("v_lshl_add_u32 v14, v11, 1, v14")
    p("s_and_b32 s%d, s%d, 1" % (sT1, sW)); p("s_lshl_b32 s%d, s%d, 3" % (sT1, sT1))
    p("v_add_u32 v14, s%d, v14" % sT1); p("v_lshlrev_b32 v13, 2, v13")
    for fb in range(2):
        p("v_add_u32 v15, %d, v14" % (4 * fb)); p("v_xor_b32 v15, v15, v13")
        p("v_lshl_add_u32 v%d, v15, 4, v12" % (vWA + fb))
        p("v_add_u32 v%d, 0x10000, v%d" % (vWA + 2 + fb, vWA + fb))

def tab_loads(p):
    p("v_lshlrev_b32 v10, 4, v1")
    p("s_lshl_b32 s83, s%d, 2" % sW); p("s_mul_i32 s83, s83, %d" % (1792 * 8)); p("s_lshl_b32 s84, s%d, 10" % sFT); p("s_add_u32 s83, s83, s84")
    for i in range(4):
        p("buffer_load_dwordx4 %s, v10, s[%d:%d], s83 offen sc1" % (vr(vCS + 4 * i, 4), CSP_, CSP_ + 3), "tab")
        if i < 3: p("s_add_u32 s83, s83, %d" % (1792 * 8))
    p("s_lshr_b32 s84, s%d, 1" % sW); p("s_lshl_b32 s84, s84, 6")
    p("s_lshl_b32 s83, s%d, 7" % sRB); p("s_add_u32 s83, s83, s84"); p("s_lshl_b32 s83, s83, 4")
    p("v_and_b32 v12, 31, v1"); p("v_lshlrev_b32 v12, 4, v12")
    p("buffer_load_dwordx4 %s, v12, s[%d:%d], s83 offen sc1" % (vr(vST, 4), ST_, ST_ + 3), "tab")
    p("buffer_load_dwordx4 %s, v12, s[%d:%d], s83 offen offset:512 sc1" % (vr(vST + 4, 4), ST_, ST_ + 3), "tab")
def tab_check(p):
    _uid[0] += 1; u = _uid[0]
    def cmp():
        tags = [vCS + 4 * i + 1 for i in range(4)] + [vCS + 4 * i + 3 for i in range(4)] + [vST + 1, vST + 3, vST + 5, vST + 7]
        p("v_min3_u32 v10, v%d, v%d, v%d" % tuple(tags[0:3])); p("v_max3_u32 v11, v%d, v%d, v%d" % tuple(tags[0:3]))
        for i in range(3, 11, 2):
            p("v_min3_u32 v10, v10, v%d, v%d" % (tags[i], tags[i + 1])); p("v_max3_u32 v11, v11, v%d, v%d" % (tags[i], tags[i + 1]))
        p("v_min_u32 v10, v10, v%d" % tags[11]); p("v_max_u32 v11, v11, v%d" % tags[11])
        p("v_cmp_ne_u32 vcc, s%d, v10" % sN); p("v_cmp_ne_u32 s[76:77], s%d, v11" % sN)
        p("s_or_b64 vcc, vcc, s[76:77]"); p("s_nop 4")
    cmp()
    p("s_cbranch_vccz Lt%d_ok" % u)
    saved = (list(p.vm), list(p.lg))
    p("s_mov_b32 s79, 0")
    p.label("Lt%d_loop" % u)
    p("s_sleep 2")
    tab_loads(p)
    p.wait(vm=0)
    cmp()
    p("s_cbranch_vccz Lt%d_ok" % u)
    p("s_add_u32 s79, s79, 1"); p("s_cmp_lt_u32 s79, 0x40000"); p("s_cbranch_scc1 Lt%d_loop" % u)
    p.label("Lt%d_ok" % u)
    p.vm, p.lg = saved
def tab_partial(p):
    for tb in range(2): p("v_mov_b32 v%d, v%d" % (vST + 4 * tb + 1, vST + 4 * tb + 2))
    p("v_add_f32 v%d, v%d, v%d" % (vCS, vCS, vCS + 4)); p("v_add_f32 v%d, v%d, v%d" % (vCS + 2, vCS + 2, vCS + 6))
    p("v_add_f32 v%d, v%d, v%d" % (vCS + 8, vCS + 8, vCS + 12)); p("v_add_f32 v%d, v%d, v%d" % (vCS + 10, vCS + 10, vCS + 14))
    p("v_add_f32 v%d, v%d, v%d" % (vCS, vCS, vCS + 8)); p("v_add_f32 v%d, v%d, v%d" % (vCS + 1, vCS + 2, vCS + 10))
    p("v_lshlrev_b32 v10, 3, v1"); p("s_lshl_b32 s83, s%d, 9" % sW); p("v_add_u32 v10, s83, v10"); p("v_add_u32 v10, %d, v10" % CSQ_LDS)
    p("ds_write_b64 v10, %s" % vr(vCS, 2))

def g1_main(p, fill):
    ACC = G1_ACC; FR = 32
    def reads(g):
        s, jj = g // 4, g % 4
        slot = s % 4; hi = slot >= 2; so = (slot & 1) * 32768
        f = FR + 16 * (g & 1); out = []
        for fb in range(2):
            for rr in range(2):
                out.append("ds_read_b64_tr_b16 %s, v%d offset:%d" % (vr(f + 4 * fb + 2 * rr, 2), vWA + fb + (2 if hi else 0), so + jj * 4096 + rr * 1024))
        for tb in range(2):
            out.append("ds_read_b128 %s, v%d offset:%d" % (vr(f + 8 + 4 * tb, 4), vXA + jj + (4 if hi else 0), so + tb * 4096))
        return out
    def mfmas(g):
        f = FR + 16 * (g & 1); out = []
        for fb in range(2):
            for tb in range(2):
                a = ACC + 16 * (2 * fb + tb)
                out.append("v_mfma_f32_32x32x16_bf16 %s, %s, %s, %s" % (vr(a, 16), vr(f + 4 * fb, 4), vr(f + 8 + 4 * tb, 4), "0" if g == 0 else vr(a, 16)))
        return out
    for s in range(8):
        prewait, pre, units = fill[s][:3]
        tail = fill[s][3] if len(fill[s]) > 3 else []
        p.wait_tag("st%d" % s)
        prewait(p)
        p("s_barrier")
        stamp(p, "g1_st%d" % s)
        pre(p)
        dm = g1_dma_stage(s + 3) if (s + 3 < 8 and s >= 1) else []
        if s == 0: dm = g1_dma_stage(3)
        nm = 16 if s > 0 else 12
        di = ui = k = 0
        for jj in range(4):
            g = 4 * s + jj
            rd = reads(g)
            if g == 0:
                for t in rd: p(t)
                continue
            rm = OPT.get("rdmode", 0)
            if rm == 1:
                for r_ in rd: p(r_)
            for q, t in enumerate(mfmas(g - 1)):
                if not (OPT.get("x_nog1") and q >= 2): p(t)
                if rm == 0:
                    for r_ in rd[2 * q:2 * q + 2]: p(r_)
                if rm == 2:
                    for r_ in rd[3 * q:3 * q + 3]: p(r_)
                if rm == 3 and q == 0:
                    for r_ in rd: p(r_)
                k += 1
                while di < len(dm) and di * nm < k * len(dm):
                    emit(p, dm[di]); di += 1
                while ui < len(units) and ui * nm < k * len(units):
                    emit(p, [units[ui]]); ui += 1
        while di < len(dm): emit(p, dm[di]); di += 1
        while ui < len(units): emit(p, [units[ui]]); ui += 1
        emit(p, tail)
    for t in mfmas(31): p(t)

def g1_epilogue(p, extra):
    HF_ = 44
    srd(p, HF_, P_WS, SZ_HF, WS_HF)
    ACC = G1_ACC; TBL = 128
    p("v_lshrrev_b32 v10, 5, v1"); p("v_lshlrev_b32 v10, 4, v10")
    p("s_and_b32 s%d, s%d, 1" % (sT1, sW)); p("s_lshl_b32 s%d, s%d, 8" % (sT1, sT1))
    p("v_add_u32 v10, s%d, v10" % sT1); p("v_add_u32 v10, %d, v10" % TAB_LDS)
    for rq in range(4):
        p("ds_read_b128 %s, v10 offset:%d" % (vr(TBL + 4 * rq, 4), rq * 32))
        p("ds_read_b128 %s, v10 offset:%d" % (vr(TBL + 16 + 4 * rq, 4), 512 + rq * 32))
    p("s_lshr_b32 s%d, s%d, 1" % (sT1, sW)); p("s_lshl_b32 s%d, s%d, 1" % (sT1, sT1))
    p("s_lshl_b32 s%d, s%d, 2" % (sT0, sRB)); p("s_add_u32 s%d, s%d, s%d" % (sT0, sT0, sT1))
    p("s_mul_i32 s%d, s%d, 112" % (sT0, sT0)); p("s_lshl_b32 s%d, s%d, 3" % (sT1, sFT))
    p("s_add_u32 s%d, s%d, s%d" % (sT0, sT0, sT1))
    p("s_and_b32 s%d, s%d, 1" % (sT1, sW)); p("s_lshl_b32 s%d, s%d, 2" % (sT1, sT1))
    p("s_add_u32 s%d, s%d, s%d" % (sT0, sT0, sT1)); p("s_lshl_b32 s83, s%d, 10" % sT0)
    p("v_lshlrev_b32 v11, 4, v1"); p("v_add_u32 v12, %d, v11" % (112 * 1024))
    for tb in range(2): p("v_mul_f32 v%d, v%d, v%d" % (vST + 4 * tb, vST + 4 * tb, vST + 4 * tb + 1))
    main = []
    TB2 = 32
    for fb in range(2):
        tbl = TBL if fb == 0 else TB2
        for tb in range(2):
            a = ACC + 16 * (2 * fb + tb); mu = vST + 4 * tb
            PK = 160 + 8 * tb
            if fb == 0 and tb == 0:
                for rq in range(4):
                    main.append(("ds_read_b128 %s, v10 offset:%d" % (vr(TB2 + 4 * rq, 4), 128 + rq * 32), None))
                    main.append(("ds_read_b128 %s, v10 offset:%d" % (vr(TB2 + 16 + 4 * rq, 4), 512 + 128 + rq * 32), None))
            for r_ in range(0, 16 if not OPT.get("x_noepi") else 4, 4):
                t0, t1 = 176, 178
                for t, rr in ((t0, r_), (t1, r_ + 2)):
                    main.append(("v_pk_fma_f32 %s, %s, %s, %s op_sel_hi:[0,1,1] neg_lo:[1,0,0] neg_hi:[1,0,0]" % (vr(t, 2), vr(mu, 2), vr(tbl + rr, 2), vr(tbl + 16 + rr, 2)), None))
                for t, rr in ((t0, r_), (t1, r_ + 2)):
                    main.append(("v_pk_fma_f32 %s, %s, %s, %s op_sel:[0,1,0] op_sel_hi:[1,1,1]" % (vr(t, 2), vr(a + rr, 2), vr(mu, 2), vr(t, 2)), None))
                for t in (t0, t0 + 1, t1, t1 + 1): main.append(("v_max_f32 v%d, 0, v%d" % (t, t), None))
                for t in (t0, t1): main.append(("v_pk_mul_f32 %s, %s, %s" % (vr(t, 2), vr(t, 2), vr(t, 2)), None))
                for t, rr in ((t0, r_), (t1, r_ + 2)): main.append(("v_cvt_pk_bf16_f32 v%d, v%d, v%d" % (PK + (rr >> 1), t, t + 1), None))
            for q in range(2):
                main.append(("buffer_store_dwordx4 %s, v%d, s[%d:%d], s83 offen offset:%d sc1" % (vr(PK + 4 * q, 4), 11 + tb, HF_, HF_ + 3, (2 * fb + q) * 1024), "hst"))
    n = len(extra); k = 0
    i0 = int(len(main) * OPT.get("epi_start", 30) / 100.0)
    for i, it in enumerate(main):
        emit(p, [it])
        while i >= i0 and k < n and k * (len(main) - i0) < (i + 1 - i0) * n:
            emit(p, [extra[k]]); k += 1

def h_publish(p):
    p("s_lshl_b32 s%d, s%d, 1" % (sT0, sRB)); p("s_lshr_b32 s%d, s%d, 1" % (sT1, sW))
    p("s_add_u32 s%d, s%d, s%d" % (sT0, sT0, sT1)); p("s_mul_i32 s%d, s%d, 28" % (sT0, sT0))
    p("s_lshl_b32 s%d, s%d, 1" % (sT1, sFT)); p("s_add_u32 s%d, s%d, s%d" % (sT0, sT0, sT1))
    p("s_and_b32 s%d, s%d, 1" % (sT1, sW)); p("s_add_u32 s%d, s%d, s%d" % (sT0, sT0, sT1))
    p("s_lshl_b32 s%d, s%d, 7" % (sT0, sT0)); p("s_add_u32 s%d, s%d, %d" % (sT0, sT0, FL_FH))
    flag_store(p, sT0)

KVT2_, SSM_, DD_, ZT_ = 48, 44, 60, 60
CV_R, vDD = 220, 254
def conv_setup(p):
    srd(p, KVT2_, P_WS, SZ_KVT, WS_KVT); srd(p, SSM_, P_SSM, D * S * 2); srd(p, DD_, P_DD, D * 2)
    p("s_lshr_b32 s%d, s%d, 1" % (sT0, sW)); p("s_and_b32 s%d, s%d, 1" % (sC2, sW))
    p("s_lshl_b32 s%d, s%d, 6" % (sCH, sJ)); p("s_lshl_b32 s%d, s%d, 1" % (sT1, sR))
    p("s_add_u32 s%d, s%d, s%d" % (sCH, sCH, sT1)); p("s_add_u32 s%d, s%d, s%d" % (sCH, sCH, sT0))
    p("s_mul_i32 s%d, s%d, 21248" % (sCB, sT0)); p("s_add_u32 s%d, s%d, %d" % (sCB, sCB, CV0 + 256))
def conv_loads_regs(p):
    p("s_lshl_b32 s83, s%d, 12" % sCH); p("s_lshl_b32 s84, s%d, 11" % sC2); p("s_add_u32 s83, s83, s84")
    p("v_lshlrev_b32 v2, 4, v1")
    R = CV_R
    for sg in range(2):
        for k in range(3):
            p("buffer_load_dwordx4 %s, v2, s[%d:%d], s83 offen offset:%d sc1" % (vr(R + 12 * sg + 4 * k, 4), KVT2_, KVT2_ + 3, sg * 1024 + 4 * k), "cv")
    p("v_mov_b32 v4, 0"); p("s_lshl_b32 s84, s%d, 1" % sCH)
    p("buffer_load_ushort v%d, v4, s[%d:%d], s84 offen" % (vDD, DD_, DD_ + 3), "cv")
def conv_loads_lds(p):
    p("s_lshl_b32 s%d, s%d, 12" % (sT0, sCH)); p("s_lshl_b32 s%d, s%d, 11" % (sT1, sC2))
    p("s_add_u32 s%d, s%d, s%d" % (sT0, sT0, sT1))
    p("v_lshlrev_b32 v2, 4, v1")
    for sg in range(2):
        p("s_add_u32 s%d, s%d, s%d" % (sT2, sCB, sT1))
        p("s_add_u32 m0, s%d, %d" % (sT2, 16640 + 512 + sg * 1024))
        p("s_add_u32 s%d, s%d, %d" % (sT2, sT0, sg * 1024))
        p("buffer_load_dwordx4 v2, s[%d:%d], s%d offen lds" % (SSM_, SSM_ + 3, sT2), "cv")
    for i in range(4): p("v_mov_b32 v%d, 0" % (16 + i))
    p("v_lshrrev_b32 v5, 1, v1"); p("v_mul_u32_u24 v5, 4160, v5")
    p("v_and_b32 v6, 1, v1"); p("v_lshl_add_u32 v5, v6, 4, v5"); p("v_add_u32 v5, 4096, v5")
    p("v_add_u32 v6, 16640, v2")
    p("s_cmp_eq_u32 s%d, 0" % sC2)
    p("s_cselect_b32 s76, 0xff, -1")
    p("s_cselect_b64 vcc, -1, 0")
    p("v_cndmask_b32 v5, v6, v5, vcc")
    p("v_add_u32 v5, s%d, v5" % sCB)
    p("s_mov_b32 exec_lo, s76"); p("s_mov_b32 exec_hi, 0")
    p("ds_write_b128 v5, v[16:19]")
    p("s_mov_b64 exec, -1")

def conv_fill(p):
    R = CV_R
    p("v_mov_b32 v13, %d" % ZCNT_LDS); p("ds_write_b32 v13, v253")
    p("v_lshlrev_b32 v2, 4, v1"); p("v_mov_b32 v8, 0")
    p("s_lshl_b32 s77, s%d, 31" % sC2); p("s_mov_b32 s76, 0")
    last = R + 12
    for rg in (last + 7, last + 10, last + 11): p("v_cndmask_b32 v%d, v%d, v8, s[76:77]" % (rg, rg))
    p("s_lshl_b32 s%d, s%d, 11" % (sT1, sC2)); p("s_add_u32 s%d, s%d, s%d" % (sT1, sT1, sCB))
    p("v_add_u32 v5, s%d, v2" % sT1)
    for sg in range(2):
        r0, r1, r2 = R + 12 * sg, R + 12 * sg + 4, R + 12 * sg + 8
        c1, c3 = 16 + 8 * sg, 20 + 8 * sg
        p("ds_write_b128 v5, %s offset:%d" % (vr(r0, 4), sg * 1024))
        for i in range(4): p("v_alignbit_b32 v%d, v%d, v%d, 16" % (c1 + i, r1 + i, r0 + i))
        p("ds_write_b128 v5, %s offset:%d" % (vr(r1, 4), 2 * 4160 + sg * 1024))
        for i in range(4): p("v_alignbit_b32 v%d, v%d, v%d, 16" % (c3 + i, r2 + i, r1 + i))
        p("ds_write_b128 v5, %s offset:%d" % (vr(c1, 4), 4160 + sg * 1024))
        p("ds_write_b128 v5, %s offset:%d" % (vr(c3, 4), 3 * 4160 + sg * 1024))

def conv_main(p, extra_by_class):
    vA, vB = 12, 13
    p("v_and_b32 v6, 15, v1"); p("v_lshrrev_b32 v7, 4, v1")
    p("v_sub_u32 v14, 3, v6"); p("v_and_b32 v14, 3, v14")
    p("v_mul_u32_u24 v15, 4158, v14")
    p("v_lshlrev_b32 v14, 1, v6"); p("v_sub_u32 v15, v15, v14"); p("v_lshl_add_u32 v15, v7, 4, v15")
    p("s_lshl_b32 s%d, s%d, 8" % (sT1, sC2)); p("s_sub_u32 s%d, s%d, s%d" % (sT1, sCB, sT1))
    p("s_add_u32 s%d, s%d, 30" % (sT2, sT1)); p("v_add_u32 v%d, s%d, v15" % (vA, sT2))
    p("v_lshlrev_b32 v15, 5, v6"); p("v_lshl_add_u32 v15, v7, 4, v15")
    p("s_add_u32 s%d, s%d, %d" % (sT2, sT1, 16640 + 32)); p("v_add_u32 v%d, s%d, v15" % (vB, sT2))
    ACC = 64
    p.wait(lg=0)
    p("s_barrier")
    stamp(p, "conv_filled")
    FA, FB = 96, 160
    def reads(rl):
        st = rl & 1; out = []
        for x in range(8):
            oa = 64 * (63 - rl - 8 * x)
            out.append(("ds_read_b64 %s, v%d offset:%d" % (vr(FA + 32 * st + 4 * x, 2), vA, oa), None))
            out.append(("ds_read_b64 %s, v%d offset:%d" % (vr(FA + 32 * st + 4 * x + 2, 2), vA, oa + 8), None))
            out.append(("ds_read_b128 %s, v%d offset:%d" % (vr(FB + 32 * st + 4 * x, 4), vB, 64 * (7 - rl + 8 * x)), None))
        return out
    seen = set()
    def mf(rl):
        st = rl & 1; out = []
        pairs = sorted([(a, b) for a in range(8) for b in range(8) if a + b <= 7], key=lambda ab: (max(ab), ab))
        for a, b in pairs:
            c = vr(ACC + 4 * (a + b), 4)
            first = (a + b) not in seen; seen.add(a + b)
            out.append(("v_mfma_f32_16x16x32_bf16 %s, %s, %s, %s" % (c, vr(FA + 32 * st + 4 * a, 4), vr(FB + 32 * st + 4 * b, 4), "0" if first else c), None))
        return out
    for t in reads(0): p(*t)
    for rl in range(4):
        pre, fill = extra_by_class[rl]
        pre(p)
        nxt = (reads(rl + 1) if rl < 3 else [])
        m = mf(rl)
        if OPT.get("x_noconv"): m = m[:4]
        ni = fi = 0
        for i, t in enumerate(m):
            p(*t)
            while ni < len(nxt) and ni * 30 < (i + 1) * len(nxt): p(*nxt[ni]); ni += 1
            while fi < len(fill) and fi * 36 < (i + 1) * len(fill): emit(p, [fill[fi]]); fi += 1
    stamp(p, "conv_mma_done")

def conv_finish(p, name, extra):
    ACC = 64
    if not OPT.get("fin_pre", 1): conv_finish_addr(p)
    for q in range(4): p("ds_read_b64 %s, v16 offset:%d" % (vr(36 + 2 * q, 2), (3 - q) * 512))
    n1 = len(extra) // 2
    conv_finish_rest(p, name, extra, n1)
def conv_finish_addr(p):
    RB = RB_LDS
    srd(p, ZT_, P_WS, SZ_ZT, WS_ZT)
    p("v_lshlrev_b32 v2, 4, v1")
    p("s_lshl_b32 s%d, s%d, 12" % (sT1, sW))
    p("v_add_u32 v5, s%d, v2" % sT1); p("v_add_u32 v5, %d, v5" % RB)
    p("s_xor_b32 s%d, s%d, 1" % (sT1, sW)); p("s_lshl_b32 s%d, s%d, 12" % (sT1, sT1))
    p("v_add_u32 v14, s%d, v2" % sT1); p("v_add_u32 v14, %d, v14" % RB)
    p("v_lshlrev_b32 v15, 5, v6"); p("v_lshl_add_u32 v15, v7, 3, v15")
    p("s_lshl_b32 s%d, s%d, 11" % (sT1, sC2)); p("s_sub_u32 s%d, s%d, s%d" % (sT2, sCB, sT1))
    p("s_add_u32 s%d, s%d, %d" % (sT2, sT2, 4088 - 1536)); p("v_sub_u32 v16, s%d, v15" % sT2)
    p("s_lshl_b32 s84, s%d, 12" % sCH); p("s_add_u32 s84, s84, s%d" % sT1)
    p("v_lshlrev_b32 v%d, 16, v%d" % (vDD, vDD))
def conv_finish_rest(p, name, extra, n1):
    ACC = 64
    emit(p, extra[:n1])
    st = side_path_begin(p); hist = len(p.out)
    p("s_cmp_eq_u32 s%d, 0" % sC2)
    p("s_cbranch_scc0 %s_hi" % name)
    for variant in range(2):
        keep = ACC + 16 * variant; give = ACC + 16 * (1 - variant)
        if variant == 1:
            p("s_branch %s_cdone" % name)
            p.label("%s_hi" % name)
            side_path_end(p, st)
            p("s_nop 7")
        for q in range(4): p("ds_write_b128 v5, %s offset:%d" % (vr(give + 4 * q, 4), q * 1024))
        for q in range(4):
            a_ = keep + 4 * q; u = 36 + 2 * q
            for c, (src, hf) in enumerate(((u + 1, 1), (u + 1, 0), (u, 1), (u, 0))):
                unpack(p, 44 + (c & 1), src, hf)
                p("v_fmac_f32 v%d, v%d, v%d" % (a_ + c, 44 + (c & 1), vDD))
        p.wait(lg=0)
        p("s_barrier")
        for q in range(4): p("ds_read_b128 %s, v14 offset:%d" % (vr(20 + 4 * q, 4), q * 1024))
        for q in range(4):
            a_ = keep + 4 * q
            for c in range(4): p("v_add_f32 v%d, v%d, v%d" % (a_ + c, a_ + c, 20 + 4 * q + c))
            p("v_cvt_pk_bf16_f32 v%d, v%d, v%d" % (48 + 2 * q, a_, a_ + 1))
            p("v_cvt_pk_bf16_f32 v%d, v%d, v%d" % (49 + 2 * q, a_ + 2, a_ + 3))
    p.label("%s_cdone" % name)
    emit(p, extra[n1:])
def z_stores(p):
    for q in range(4):
        p("buffer_store_dwordx2 %s, v15, s[%d:%d], s84 offen offset:%d sc1" % (vr(48 + 2 * q, 2), ZT_, ZT_ + 3, q * 512), "zst")
ZCNT_LDS = 163832
def z_publish(p, name):
    p("v_mov_b32 v10, %d" % ZCNT_LDS); p("v_mov_b32 v11, 1")
    p("s_mov_b64 exec, 1")
    p("ds_add_rtn_u32 v11, v10, v11")
    p("s_mov_b64 exec, -1")
    p.wait(lg=0)
    p("v_readfirstlane_b32 s%d, v11" % sT0)
    p("s_cmp_eq_u32 s%d, 3" % sT0)
    p("s_cbranch_scc0 %s_nozp" % name)
    st = side_path_begin(p)
    p("s_lshl_b32 s%d, s%d, 5" % (sT0, sJ)); p("s_add_u32 s%d, s%d, s%d" % (sT0, sT0, sR))
    p("s_lshl_b32 s%d, s%d, 7" % (sT0, sT0)); p("s_add_u32 s%d, s%d, %d" % (sT0, sT0, FL_FZ))
    flag_store(p, sT0)
    side_path_end(p, st)
    p.label("%s_nozp" % name)

HF2_, W2_, Q2_, ZT2_, ST2_, B2_, OUT_ = 40, 8, 48, 52, 56, 64, 44
vH0, vH1, vD0, vD1 = 244, 245, 246, 247
vFH, vFHA = 248, 249
vTRA = 60
sWS = 75
NS = 28
STASH0 = 0
HB = 128
def g2_srd(p):
    srd(p, W2_, P_W2, F * D * 2)
    p("s_lshl_b32 s%d, s%d, 11" % (sM2, sW))
def g2_setup(p):
    if OPT.get("g2map", 0):
        p("s_lshr_b32 s%d, s%d, 1" % (sTok, sJ)); p("s_lshl_b32 s%d, s%d, 9" % (sTok, sTok))
        p("s_lshr_b32 s%d, s%d, 2" % (sT0, sR)); p("s_lshl_b32 s%d, s%d, 6" % (sT0, sT0))
        p("s_add_u32 s%d, s%d, s%d" % (sTok, sTok, sT0))
        p("s_and_b32 s%d, s%d, 1" % (sCh, sJ)); p("s_lshl_b32 s%d, s%d, 2" % (sCh, sCh)); p("s_and_b32 s%d, s%d, 3" % (sT0, sR))
        p("s_add_u32 s%d, s%d, s%d" % (sCh, sCh, sT0)); p("s_lshl_b32 s%d, s%d, 6" % (sCh, sCh))
    else:
        p("s_lshl_b32 s%d, s%d, 8" % (sTok, sJ))
        p("s_lshr_b32 s%d, s%d, 3" % (sT0, sR)); p("s_lshl_b32 s%d, s%d, 6" % (sT0, sT0))
        p("s_add_u32 s%d, s%d, s%d" % (sTok, sTok, sT0))
        p("s_add_u32 s%d, s%d, %d" % (sCh, sR, OPT.get("cbrot", 0))); p("s_and_b32 s%d, s%d, 7" % (sCh, sCh)); p("s_lshl_b32 s%d, s%d, 6" % (sCh, sCh))
    p("s_lshr_b32 s%d, s%d, 5" % (sT0, sTok)); p("s_mul_i32 s%d, s%d, 112" % (sT0, sT0))
    p("s_mul_i32 s%d, s%d, 28" % (sT1, sW))
    p("s_add_u32 s%d, s%d, s%d" % (sT0, sT0, sT1)); p("s_lshl_b32 s%d, s%d, 10" % (sHo, sT0))
    p("s_lshl_b32 s%d, s%d, 14" % (sWA, sT1)); p("s_lshl_b32 s%d, s%d, 1" % (sT0, sCh))
    p("s_add_u32 s%d, s%d, s%d" % (sWA, sWA, sT0))
    p("v_lshlrev_b32 v%d, 4, v1" % vH0)
    p("v_add_u32 v%d, %d, v%d" % (vH1, 112 * 1024, vH0))
    p("v_lshrrev_b32 v10, 3, v1"); p("v_and_b32 v11, 7, v1")
    p("v_lshrrev_b32 v12, 1, v10"); p("v_and_b32 v12, 1, v12"); p("v_lshlrev_b32 v12, 2, v12")
    p("v_xor_b32 v12, v12, v11"); p("v_lshlrev_b32 v12, 4, v12")
    p("v_lshl_add_u32 v%d, v10, 10, v12" % vD0)
    p("v_add_u32 v%d, %d, v%d" % (vD1, 8192 - 1024, vD0))
def g2_setup_tr(p):
    p("v_and_b32 v10, 15, v1"); p("v_lshrrev_b32 v11, 4, v1"); p("v_lshrrev_b32 v12, 1, v11"); p("v_and_b32 v11, 1, v11")
    p("v_lshrrev_b32 v13, 2, v10"); p("v_lshl_add_u32 v12, v12, 2, v13"); p("v_lshlrev_b32 v12, 7, v12")
    p("v_and_b32 v14, 3, v10"); p("v_lshrrev_b32 v15, 1, v14"); p("v_lshl_add_u32 v12, v15, 3, v12")
    p("v_and_b32 v14, 1, v14"); p("v_lshl_add_u32 v14, v14, 1, v11")
    p("v_lshrrev_b32 v15, 3, v10"); p("v_lshlrev_b32 v15, 2, v15")
    p("v_add_u32 v12, s%d, v12" % sM2)
    for cb in range(2):
        p("v_add_u32 v13, %d, v14" % (4 * cb)); p("v_xor_b32 v13, v13, v15")
        p("v_lshl_add_u32 v%d, v13, 4, v12" % (vTRA + cb))
        p("v_add_u32 v%d, 0x10000, v%d" % (vTRA + 2 + cb, vTRA + cb))
def w2_dma(step, slot):
    tag = "w%d" % step
    if OPT.get("x_now2") == 1 or (OPT.get("x_now2") == 2 and (step < 12 or step >= 24)): return [[("s_nop 0", None)]]
    return [[("s_add_u32 m0, s%d, %d" % (sM2, slot * 8192), None),
             ("s_add_u32 s%d, s%d, %d" % (sWS, sWA, step * 16384), None),
             ("buffer_load_dwordx4 v%d, s[%d:%d], s%d offen lds" % (vD0, W2_, W2_ + 3, sWS), tag),
             ("buffer_load_dwordx4 v%d, s[%d:%d], s%d offen offset:1024 lds" % (vD1, W2_, W2_ + 3, sWS), tag)]]
def tr_reads(slot, dst, kind):
    out = []
    for cb in range(2):
        for rr in range(2):
            hi = slot >= 8
            out.append(("ds_read_b64_tr_b16 %s, v%d offset:%d" % (vr(dst + 4 * cb + 2 * rr, 2, kind), vTRA + cb + (2 if hi else 0), (slot - 8 * hi) * 8192 + rr * 1024), None))
    return out
def stash_reads(step, slot): return tr_reads(slot, STASH0 + 8 * (step - 12), 'a')
ORD = list(range(12, 28)) + list(range(4, 12)) + list(range(0, 4))
def h_loads(s):
    slot = s % OPT["depth_h"]
    return [("s_add_u32 s7, s%d, %d" % (sHo, ORD[s] * 1024), None),
            ("buffer_load_dwordx4 %s, v%d, s[%d:%d], s7 offen sc1" % (ar(HB + 8 * slot, 4), vH0, HF2_, HF2_ + 3), "h%d" % s),
            ("buffer_load_dwordx4 %s, v%d, s[%d:%d], s7 offen sc1" % (ar(HB + 8 * slot + 4, 4), vH1, HF2_, HF2_ + 3), "h%d" % s)]
def fh_poll_issue(p):
    p("v_min_u32 v%d, 6, v1" % vFHA); p("v_lshlrev_b32 v%d, 7, v%d" % (vFHA, vFHA))
    p("s_lshr_b32 s83, s%d, 6" % sTok); p("s_mul_i32 s83, s83, 28"); p("s_mul_i32 s%d, s%d, 7" % (sT0, sW)); p("s_add_u32 s83, s83, s%d" % sT0)
    p("s_lshl_b32 s83, s83, 7"); p("s_add_u32 s83, s83, %d" % FL_FH)
    poll_issue(p, vFH, vFHA, 83, "fh")
def g2_h_start(p):
    DH = OPT["depth_h"]
    srd(p, HF2_, P_WS, SZ_HF, WS_HF)
    p.wait_tag("fh")
    poll_check(p, [vFH], [vFHA], [83])
    stamp(p, "g2_h_ready")
    for s in range(OPT.get("h_first", 2)):
        for t in h_loads(s): p(*t)
def h_touch(p):
    DH = OPT["depth_h"]
    n = (NS - DH) * 16 // 8
    p("s_and_b32 s%d, s%d, 7" % (sT0, sR)); p("s_mul_i32 s%d, s%d, %d" % (sT0, sT0, n))
    p("v_add_u32 v10, s%d, v1" % sT0)
    p("v_lshrrev_b32 v11, 4, v10"); p("v_and_b32 v12, 7, v10"); p("v_lshlrev_b32 v12, 7, v12")
    p("v_lshl_add_u32 v12, v11, 10, v12")
    p("v_bfe_u32 v11, v10, 3, 1"); p("v_mul_u32_u24 v11, %d, v11" % (112 * 1024)); p("v_add_u32 v12, v12, v11")
    if n > 32: p("s_mov_b32 exec_hi, 0x%x" % ((1 << (n - 32)) - 1))
    else: p("s_mov_b64 exec, 0x%x" % ((1 << n) - 1))
    p("buffer_load_dword v59, v12, s[%d:%d], s%d offen sc1" % (HF2_, HF2_ + 3, sHo), "touch3")
    p("s_mov_b64 exec, -1")

vST2, vB2 = 16, 20
vY, vOWN = 144, 176
vXq, vZq, vRED, vOUT = 6, 7, 8, 9
def g2_main(p, name, g2_units):
    DH = OPT["depth_h"]
    ACC = 64; FR = 32
    def ep_setup(p):
        srd(p, Q2_, P_Q, S * D * 2)
        srd(p, ZT2_, P_WS, SZ_ZT, WS_ZT); srd(p, ST2_, P_WS, SZ_ST, WS_ST); srd(p, B2_, P_B2, D * 2); srd(p, OUT_, P_OUT, S * D * 2)
    def ep_loads(p):
        p("v_lshrrev_b32 v10, 2, v1"); p("v_and_b32 v11, 3, v1")
        p("v_lshrrev_b32 v12, 2, v10"); p("v_xor_b32 v12, v12, v11")
        p("v_lshlrev_b32 v12, 4, v12"); p("v_lshl_add_u32 v13, v10, 10, v12")
        p("s_lshr_b32 s%d, s%d, 1" % (sT0, sW)); p("s_lshl_b32 s%d, s%d, 5" % (sT0, sT0)); p("s_add_u32 s%d, s%d, s%d" % (sT0, sT0, sTok))
        p("s_and_b32 s%d, s%d, 1" % (sT1, sW)); p("s_lshl_b32 s%d, s%d, 5" % (sT1, sT1)); p("s_add_u32 s%d, s%d, s%d" % (sT1, sT1, sCh))
        p("s_lshl_b32 s%d, s%d, 10" % (sXO, sT0)); p("s_lshl_b32 s%d, s%d, 1" % (sT2, sT1)); p("s_add_u32 s%d, s%d, s%d" % (sXO, sXO, sT2))
        p("s_lshl_b32 s%d, s%d, 11" % (sT3, sW))
        p("s_add_u32 m0, s%d, %d" % (sT3, XT))
        p("buffer_load_dwordx4 v13, s[%d:%d], s%d offen lds" % (Q2_, Q2_ + 3, sXO), "ep")
        p("s_add_u32 s78, s%d, 16384" % sXO)
        p("s_add_u32 m0, s%d, %d" % (sT3, XT + 1024))
        p("buffer_load_dwordx4 v13, s[%d:%d], s78 offen lds" % (Q2_, Q2_ + 3), "ep")
        p("s_lshl_b32 s%d, s%d, 4" % (sT0, sT0))
        p("v_and_b32 v14, 31, v1"); p("v_lshlrev_b32 v15, 4, v14")
        p("buffer_load_dwordx4 %s, v15, s[%d:%d], s%d offen sc1" % (vr(vST2, 4), ST2_, ST2_ + 3, sT0), "ep")
        p("v_lshrrev_b32 v15, 5, v1"); p("v_lshlrev_b32 v12, 5, v15")
        p("buffer_load_dwordx4 %s, v12, s[%d:%d], s%d offen" % (vr(vB2, 4), B2_, B2_ + 3, sT2), "ep")
        p("buffer_load_dwordx4 %s, v12, s[%d:%d], s%d offen offset:16" % (vr(vB2 + 4, 4), B2_, B2_ + 3, sT2), "ep")
        p("v_lshrrev_b32 v12, 2, v14"); p("v_and_b32 v12, 3, v12")
        p("v_lshlrev_b32 v15, 1, v15"); p("v_xor_b32 v15, v15, v12")
        p("v_lshlrev_b32 v15, 4, v15"); p("v_lshl_add_u32 v15, v14, 6, v15")
        p("v_add_u32 v15, s%d, v15" % sT3); p("v_add_u32 v%d, %d, v15" % (vXq, XT))
        p("v_lshrrev_b32 v15, 5, v1"); p("v_lshlrev_b32 v15, 5, v15"); p("v_lshl_add_u32 v%d, v14, 10, v15" % vOUT)
        p("v_add_u32 v%d, %d, v%d" % (vRED, RED, vH0))
    def z_loads(p):
        p("v_lshrrev_b32 v10, 2, v1"); p("v_and_b32 v11, 3, v1")
        p("v_lshlrev_b32 v12, 4, v11"); p("v_lshl_add_u32 v12, v10, 12, v12")
        p("s_and_b32 s%d, s%d, 1" % (sT1, sW)); p("s_lshl_b32 s%d, s%d, 5" % (sT1, sT1)); p("s_add_u32 s%d, s%d, s%d" % (sT1, sT1, sCh))
        p("s_lshl_b32 s%d, s%d, 12" % (sT0, sT1))
        p("s_lshr_b32 s%d, s%d, 1" % (sT1, sW)); p("s_lshl_b32 s%d, s%d, 5" % (sT1, sT1)); p("s_add_u32 s%d, s%d, s%d" % (sT1, sT1, sTok))
        p("s_lshl_b32 s%d, s%d, 1" % (sT1, sT1)); p("s_add_u32 s%d, s%d, s%d" % (sT0, sT0, sT1))
        p("buffer_load_dwordx4 %s, v12, s[%d:%d], s%d offen sc1" % (vr(128, 4), ZT2_, ZT2_ + 3, sT0), "z")
        p("s_add_u32 s%d, s%d, %d" % (sT0, sT0, 16 * 4096))
        p("buffer_load_dwordx4 %s, v12, s[%d:%d], s%d offen sc1" % (vr(132, 4), ZT2_, ZT2_ + 3, sT0), "z")
        p("v_lshrrev_b32 v12, 1, v10"); p("v_and_b32 v12, 3, v12"); p("v_xor_b32 v12, v12, v11")
        p("v_lshlrev_b32 v12, 4, v12"); p("v_lshl_add_u32 v12, v10, 6, v12")
        p("s_lshl_b32 s%d, s%d, 11" % (sT3, sW)); p("s_add_u32 s%d, s%d, %d" % (sT3, sT3, ZTT))
        p("v_add_u32 v%d, s%d, v12" % (vZq + 4, sT3))
        p("v_and_b32 v10, 15, v1"); p("v_lshrrev_b32 v12, 4, v1"); p("v_lshrrev_b32 v13, 1, v12"); p("v_and_b32 v12, 1, v12")
        p("v_lshrrev_b32 v14, 2, v10"); p("v_lshl_add_u32 v13, v13, 4, v14")
        p("v_and_b32 v15, 3, v10"); p("v_lshrrev_b32 v15, 1, v15"); p("v_lshl_add_u32 v15, v12, 1, v15")
        p("v_lshrrev_b32 v14, 1, v14"); p("v_xor_b32 v15, v15, v14")
        p("v_lshlrev_b32 v15, 4, v15"); p("v_lshl_add_u32 v15, v13, 6, v15")
        p("v_and_b32 v14, 1, v10"); p("v_lshl_add_u32 v15, v14, 3, v15")
        p("v_add_u32 v%d, s%d, v15" % (vZq, sT3))
        p("v_xor_b32 v5, 32, v%d" % vZq)
    def y_compute(p):
        XR_, ZR = 136, 164
        p("ds_write_b128 v%d, %s" % (vZq + 4, vr(128, 4))); p("ds_write_b128 v%d, %s offset:1024" % (vZq + 4, vr(132, 4)))
        p.wait_tag("ep")
        p("v_xor_b32 v10, 16, v%d" % vXq)
        p("ds_read_b128 %s, v%d" % (vr(XR_, 4), vXq)); p("ds_read_b128 %s, v10" % vr(XR_ + 4, 4))
        for m in range(4): p("ds_read_b64_tr_b16 %s, v%d offset:%d" % (vr(ZR + 2 * m, 2), vZq if m % 2 == 0 else 5, m * 256))
        mu, rs = vST2, vST2 + 2
        p("v_mul_f32 v%d, v%d, v%d" % (mu, mu, rs))
        for r_ in range(16):
            x, z, b = 48 + 3 * (r_ & 1), 49 + 3 * (r_ & 1), 50 + 3 * (r_ & 1)
            unpack(p, x, XR_ + (r_ >> 1), r_ & 1); unpack(p, z, ZR + (r_ >> 1), r_ & 1); unpack(p, b, vB2 + (r_ >> 1), r_ & 1)
            p("v_fma_f32 v%d, v%d, v%d, -v%d" % (vY + r_, x, rs, mu))
            p("v_add_f32 v%d, v%d, v%d" % (b, b, x))
            p("v_fma_f32 v%d, v%d, v%d, v%d" % (vY + r_, vY + r_, z, b))
    def reads(s): return [t for t, _ in tr_reads(ORD[s], FR + 8 * (s & 1), 'v')]
    def mfmas(s):
        slot = s % DH; out = []
        for cb in range(2):
            A = vr(FR + 8 * (s & 1) + 4 * cb, 4) if ORD[s] < 12 else ar(STASH0 + 8 * (ORD[s] - 12) + 4 * cb, 4)
            for tb in range(2):
                a = vr(ACC + 16 * (2 * tb + cb), 16)
                out.append("v_mfma_f32_32x32x16_bf16 %s, %s, %s, %s" % (a, A, ar(HB + 8 * slot + 4 * tb, 4), "0" if s == 0 else a))
        return out
    vFZ = 56
    def fz_issue(p):
        p("v_min_u32 v%d, 15, v1" % (vFZ + 2)); p("v_lshlrev_b32 v%d, 7, v%d" % (vFZ + 2, vFZ + 2))
        p("s_lshr_b32 s84, s%d, 6" % sCh); p("s_lshl_b32 s84, s84, 1"); p("s_and_b32 s83, s%d, 1" % sW); p("s_add_u32 s84, s84, s83")
        p("s_lshl_b32 s84, s84, 11"); p("s_add_u32 s84, s84, %d" % FL_FZ)
        poll_issue(p, vFZ, vFZ + 2, 84, "fz")
    def fz_check(p):
        p.wait_tag("fz"); poll_check(p, [vFZ], [vFZ + 2], [84])
    S_FZ, S_ZL, S_Y = OPT.get("s_fz", 14), OPT.get("s_zl", 20), OPT.get("s_y", 25)
    yl = rec(y_compute)
    third = (len(yl) + 2) // 3
    extras = {1: rec(ep_setup), 2: rec(ep_loads), S_FZ: rec(fz_issue), S_ZL: rec(z_loads),
              S_Y: yl[:third], S_Y + 1: yl[third:2 * third], S_Y + 2: yl[2 * third:]}
    for pos_, units_ in g2_units.items(): extras[pos_] = extras.get(pos_, []) + units_
    def step(s, ex):
        if s + 1 < NS and ORD[s + 1] < 12:
            p.wait_tag("w%d" % ORD[s + 1])
            for t in reads(s + 1): p(t)
        mf = mfmas(s)
        if OPT.get("x_nog2") and 8 <= s < 18: mf = ["s_nop 0"] * 4
        hl = h_loads(s + DH) if s + DH < NS else []
        if OPT.get("x_noh"): hl = []
        q4 = (len(ex) + 3) // 4
        for i in range(4):
            p(mf[i])
            if i == 2:
                for t in hl[0:2]: p(*t)
            if i == 3:
                for t in hl[2:3]: p(*t)
            emit(p, ex[i * q4:(i + 1) * q4])
    p.wait(lg=0)
    p("s_barrier")
    for s in range(S_ZL):
        if s in (0, 7, 13, 20): stamp(p, "g2_s%d" % s)
        step(s, extras.get(s, []))
        if s == DH:
            p.wait_tag("zst")
            z_publish(p, name)
    p.wait_tag("fz")
    p("v_cmp_ne_u32 vcc, s%d, v%d" % (sN, vFZ)); p("s_nop 4")
    p("s_cbranch_vccnz %s_zlate" % name)
    br = side_path_begin(p)
    for s in range(S_ZL, NS): step(s, extras.get(s, []))
    stamp(p, "g2_mma_done")
    g2_epilogue(p, name + "f", True)
    p("s_branch %s_fin" % name)
    p.label("%s_zlate" % name)
    side_path_end(p, br)
    for s in range(S_ZL, NS): step(s, [])
    g2_epilogue(p, name + "s", False)
    poll_issue(p, vFZ, vFZ + 2, 84, "fz2")
    p.wait(vm=0)
    poll_check(p, [vFZ], [vFZ + 2], [84])
    z_loads(p)
    y_compute(p)
    for r_ in range(16):
        p("v_add_f32 v%d, v%d, v%d" % (vY + r_, vY + r_, vOWN + r_))
    g2_store(p)
    p.wait(vm=63)
    p.label("%s_fin" % name)

OUTPOL = ["", " sc1", " nt", " sc0 sc1"]
def g2_store(p):
    PK = 160
    for r_ in range(16):
        if r_ & 1: p("v_cvt_pk_bf16_f32 v%d, v%d, v%d" % (PK + (r_ >> 1), vY + r_ - 1, vY + r_))
        if r_ == 7: p("buffer_store_dwordx4 %s, v%d, s[%d:%d], s%d offen%s" % (vr(PK, 4), vOUT, OUT_, OUT_ + 3, sXO, OUTPOL[OPT.get("outpol", 0)]))
    p("buffer_store_dwordx4 %s, v%d, s[%d:%d], s%d offen offset:16%s" % (vr(PK + 4, 4), vOUT, OUT_, OUT_ + 3, sXO, OUTPOL[OPT.get("outpol", 0)]))
def g2_epilogue(p, name, have_y):
    ACC = 64
    st = side_path_begin(p)
    for w in range(4):
        if w < 3:
            p("s_cmp_eq_u32 s%d, %d" % (sW, w))
            p("s_cbranch_scc0 %s_rw%d" % (name, w + 1))
        side_path_end(p, st)
        p("s_nop 7"); p("s_nop 3")
        for rel in range(1, 4):
            q = w ^ rel
            for rq in range(4):
                p("ds_write_b128 v%d, %s offset:%d" % (vRED, vr(ACC + 16 * q + 4 * rq, 4), q * 12288 + (rel - 1) * 4096 + rq * 1024))
        for i in range(16): p("v_mov_b32 v%d, v%d" % (vOWN + i, ACC + 16 * w + i))
        if w < 3:
            p("s_branch %s_rwd" % name)
            p.label("%s_rw%d" % (name, w + 1))
    p.label("%s_rwd" % name)
    p("s_mul_i32 s%d, s%d, 12288" % (sT0, sW)); p("v_add_u32 v10, s%d, v%d" % (sT0, vRED))
    p.wait(lg=0)
    p("s_barrier")
    if have_y: stamp(p, "g2_red_bar")
    for sl in range(3):
        for rq in range(4):
            p("ds_read_b128 %s, v10 offset:%d" % (vr(ACC + 16 * sl + 4 * rq, 4), sl * 4096 + rq * 1024))
    for r_ in range(16):
        p("v_add_f32 v%d, v%d, v%d" % (vOWN + r_, vOWN + r_, ACC + r_))
        p("v_add_f32 v%d, v%d, v%d" % (ACC + 16 + r_, ACC + 16 + r_, ACC + 32 + r_))
    for r_ in range(16): p("v_add_f32 v%d, v%d, v%d" % (vOWN + r_, vOWN + r_, ACC + 16 + r_))
    if have_y:
        for r_ in range(16): p("v_add_f32 v%d, v%d, v%d" % (vY + r_, vY + r_, vOWN + r_))
        g2_store(p)

def flat(l): return [x for y in l for x in y]
def gen(name):
    p = Prog()
    prof_reset()
    p("s_cmp_ge_u32 s2, 256")
    p("s_cbranch_scc1 %s_end" % name)
    stamp(p, "rt0", True); stamp(p, "t0")
    p("s_memrealtime s[86:87]")
    load_kernargs(p)
    p("v_and_b32 v1, 63, v0"); p("v_lshrrev_b32 v2, 6, v0")
    p("s_and_b32 s%d, s2, 7" % sJ); p("s_lshr_b32 s%d, s2, 3" % sR)
    p("v_readfirstlane_b32 s%d, v2" % sW)
    p("v_mov_b32 v253, 0")
    KN = "parallel_sum__ssm_conv_h3__dense_activation_squared_relu__prompt_kernel"
    pend = list(p.lg); p.lg = []
    if OPT.get("codetouch", 3) == 3: code_touch(p, KN)
    if OPT.get("hoist", 0): tile_indices(p); g1_dma_setup(p); g1_lds_setup(p); g2_setup(p)
    p_addr(p)
    p("s_lshl_b32 s%d, s2, 2" % sT0); p("s_add_u32 s78, s%d, s%d" % (sT0, sW))
    p.lg = pend
    p("s_waitcnt lgkmcnt(0)")
    stamp(p, "karg")
    if OPT.get("codetouch", 3) == 1: code_touch(p, KN)
    p_loads(p)
    if OPT.get("codetouch", 3) == 2: code_touch(p, KN)
    if not OPT.get("hoist", 0): tile_indices(p)
    tile_srds(p)
    touches_g1(p)
    srd(p, 92, P_DBG, 256)
    p("s_cmp_eq_u32 s78, %d" % (248 * 4))
    p("s_cbranch_scc0 %s_n0" % name)
    st = side_path_begin(p)
    p("v_mov_b32 v250, s86"); p("v_mov_b32 v251, 1")
    p("s_mov_b64 exec, 1")
    p("buffer_store_dwordx2 v[250:251], v253, s[92:95], 0 offen sc1")
    p("s_mov_b64 exec, -1")
    side_path_end(p, st)
    p.label("%s_n0" % name)
    after_loads = side_path_begin(p)
    p("s_cmp_ge_u32 s%d, 28" % sR)
    p("s_cbranch_scc1 %s_spare" % name)
    if not OPT.get("hoist", 0): g1_dma_setup(p)
    g1_rot_setup(p)
    for u in g1_dma_stage(0): emit(p, u)
    def common_srds(p):
        srd(p, FL_, P_WS, SZ_FLAG, WS_FLAG); srd(p, KVT_, P_WS, SZ_KVT, WS_KVT); srd(p, ST_, P_WS, SZ_ST, WS_ST); srd(p, CSP_, P_WS, SZ_CSP, WS_CSP)
    def b1_srd(p): srd(p, B1_, P_B1, F * 2)
    common_srds(p); b1_srd(p); g2_srd(p)
    if not OPT.get("hoist", 0): g1_lds_setup(p); g2_setup(p)
    stamp(p, "issued")
    KN = "parallel_sum__ssm_conv_h3__dense_activation_squared_relu__prompt_kernel"
    dm = g1_dma_stage(1) + g1_dma_stage(2)
    kv = rec(kv_compute)
    k = 0
    for i, it in enumerate(kv):
        emit(p, [it])
        while k < 16 and k * len(kv) < (i + 1) * 16: emit(p, dm[k]); k += 1
    while k < 16: emit(p, dm[k]); k += 1
    if OPT["touch"] == 2: touches_g1_late(p)
    stamp(p, "kv_done")
    none = lambda p: None
    lg0 = lambda p: p.wait(lg=0)
    def pre4(p):
        nonce_check(p); fk_publish(p, "g1")
    def b1_load(p):
        p("v_and_b32 v14, 127, v0"); p("v_lshlrev_b32 v14, 1, v14"); p("s_lshl_b32 s84, s%d, 8" % sFT)
        p("buffer_load_ushort v%d, v14, s[%d:%d], s84 offen" % (vB1, B1_, B1_ + 3), "tab")
    def tab_done(p):
        p.wait_tag("tab"); tab_check(p); tab_partial(p)
    def tab_final(p):
        p("v_and_b32 v10, 127, v0"); p("v_lshlrev_b32 v10, 2, v10"); p("v_add_u32 v11, %d, v10" % CSQ_LDS); p("v_add_u32 v10, %d, v10" % TAB_LDS)
        for i in range(4): p("ds_read_b32 v%d, v11 offset:%d" % (20 + i, i * 512))
        p("v_lshlrev_b32 v%d, 16, v%d" % (vB1, vB1))
        p("v_add_f32 v20, v20, v21"); p("v_add_f32 v22, v22, v23"); p("v_add_f32 v20, v20, v22")
        p("ds_write_b32 v10, v20"); p("ds_write_b32 v10, v%d offset:512" % vB1)
    def fk_issue(p):
        fk_addr(p, True); poll_issue(p, vPK, vPA, 85, "fk")
    def fk_check(p):
        p.wait_tag("fk"); poll_check(p, [vPK], [vPA], [85])
    A = [w2_dma(12 + i, i) for i in range(12)]
    B1 = [w2_dma(24 + i, i) for i in range(4)]
    B2 = [w2_dma(4 + i, 4 + i) for i in range(8)]
    C = [w2_dma(i, i) for i in range(4)]
    SCH = {1: dict(s5=A[0:4], s6=A[4:8], s7=A[8:12], epi=[], c1=B1 + B2[0:2], c2=B2[2:8], c3=[], fin=C, g2={}),
           2: dict(s5=A[0:2], s6=A[2:4], s7=A[4:6], epi=A[6:12], c1=B1, c2=B2[0:4], c3=B2[4:8], fin=[], g2={0: C[0], 3: C[1], 5: C[2], 7: C[3]}),
           3: dict(s5=A[0:3], s6=A[3:6], s7=A[6:9], epi=A[9:12], c1=B1 + B2[0:1], c2=B2[1:5], c3=B2[5:8], fin=C[0:2], g2={0: C[2], 3: C[3]}),
           4: dict(s5=A[0:4], s6=A[4:8], s7=A[8:12], epi=[], c1=B1, c2=B2[0:4], c3=B2[4:8], fin=[], g2={0: C[0], 3: C[1], 5: C[2], 7: C[3]}),
           }[OPT.get("sch", 1)]
    def late(p_items): return [p_items]
    fill = {0: (lg0, none, rec(kv_stores) + rec(nonce_issue)),
            1: (none, none, rec(w2_touch) if OPT["w2touch"] == 1 else []),
            2: (none, none, rec(conv_setup)),
            3: (lambda p: p.wait_tag("nonce"), pre4, []),
            4: (none, none, []),
            5: (none, none, rec(tab_loads) + rec(b1_load) + flat(SCH['s5'])),
            6: (none, none, rec(fk_issue) + flat(SCH['s6'][:len(SCH['s6']) // 2]) + [(tab_done, None)] + flat(SCH['s6'][len(SCH['s6']) // 2:])),
            7: (lg0, none, rec(tab_final) + flat(SCH['s7'][:len(SCH['s7']) // 2]) + [(fk_check, None)] + rec(conv_loads_regs) + flat(SCH['s7'][len(SCH['s7']) // 2:]))}
    if OPT.get("g2map", 0):
        np_ = OPT.get("th_parts", 2); t0_ = OPT.get("th_stage", 0)
        for i_ in range(np_):
            a_, b_, c_ = fill[t0_ + i_][:3]
            fill[t0_ + i_] = (a_, b_, c_, rec(w2_touch_half, i_, np_))
    elif OPT["w2touch"] == 6:
        np_ = OPT.get("ta_parts", 2); t0_ = OPT.get("ta_stage", 0); tb_ = OPT.get("tb_stage", 5)
        for i_ in range(np_):
            a_, b_, c_ = fill[t0_ + i_][:3]
            fill[t0_ + i_] = (a_, b_, c_, rec(w2_touch_a, i_, np_))
        a_, b_, c_ = fill[tb_][:3]
        fill[tb_] = (a_, b_, c_, (fill[tb_][3] if len(fill[tb_]) > 3 else []) + rec(w2_touch_b))
    elif OPT.get("plan", 1) == 2:
        ts = OPT.get("tstage", 5)
        fill[5] = (none, none, rec(tab_loads) + rec(b1_load) + rec(fk_issue))
        fill[6] = (none, none, [(tab_done, None)])
        fill[7] = (lg0, none, rec(tab_final) + [(fk_check, None)] + rec(conv_loads_regs))
        a_, b_, c_ = fill[ts]
        fill[ts] = (a_, b_, c_, rec(w2_touch))
    elif OPT["w2touch"] == 4:
        for st_ in range(7):
            a_, b_, c_ = fill[st_]
            fill[st_] = (a_, b_, c_, rec(w2_touch_part, st_))
    if OPT["w2touch"] == 5 and OPT.get("plan", 1) == 1 and not OPT.get("g2map", 0):
        for st_, (k_, n_) in enumerate(((0, 32), (2, 32), (4, 48))):
            a_, b_, c_ = fill[st_]
            fill[st_] = (a_, b_, c_, rec(w2_touch_part, k_, n_))
    if OPT.get("ssmtouch", 3):
        st_ = OPT.get("ssmtouch", 3)
        f_ = fill[st_]
        fill[st_] = (f_[0], f_[1], f_[2], (f_[3] if len(f_) > 3 else []) + rec(ssm_touch))
    g1_main(p, fill)
    stamp(p, "g1_mfma_end")
    p.wait(lg=0)
    p("s_barrier")
    conv_loads_lds(p)
    stamp(p, "g1_mma_done")
    FE = OPT.get("fill_epi", 1)
    epi_x = flat(SCH['epi'])
    if FE: epi_x = interleave(rec(conv_fill), epi_x, len(epi_x) / float(len(rec(conv_fill)))) if epi_x else rec(conv_fill)
    g1_epilogue(p, epi_x)
    p.wait_tag("cv")
    p.label("%s_cfill" % name)
    stamp(p, "g1_epi_done")
    g2_setup_tr(p)
    early = OPT.get("early_stash", 0)
    if early:
        p.wait_tag("w23")
        for t in flat([stash_reads(12 + i, i) for i in range(12)]): p(*t)
        B = flat([w2_dma(24 + i, i) for i in range(4)] + [w2_dma(4 + i, 4 + i) for i in range(8)])
        cf = rec(conv_fill)
        p.wait(lg=0)
        k = 0
        for i, it in enumerate(cf):
            emit(p, [it])
            while k < len(B) and k * len(cf) < (i + 1) * len(B): emit(p, [B[k]]); k += 1
    elif not FE:
        conv_fill(p)
    def c0(p):
        if not early: p.wait_tag("w17")
    def c1(p):
        p.wait_tag("hst")
        if not early: p.wait_tag("w23")
        p("s_cmp_ge_u32 s%d, 28" % sR)
        p("s_cbranch_scc1 %s_nohp" % name)
        st = side_path_begin(p)
        h_publish(p)
        side_path_end(p, st)
        p.label("%s_nohp" % name)
        if not early: p.wait(lg=0)
        stamp(p, "h_pub")
    def c2(p):
        if not early: p.wait(lg=0)
        else: p.wait_tag("w27")
    def c3(p):
        p.wait(lg=0)
        if not early: p.wait_tag("w27")
    if early:
        f0, f1 = [], []
        f2 = flat([stash_reads(24 + i, i) for i in range(4)])
        f3 = flat([w2_dma(i, i) for i in range(4)]) + rec(fh_poll_issue)
    else:
        f0 = flat([stash_reads(12 + i, i) for i in range(6)])
        f1 = interleave(flat([stash_reads(18 + i, 6 + i) for i in range(6)]), flat(SCH['c1']), len(SCH['c1']) / 24.0)
        f2 = flat(SCH['c2'])
        sr_ = flat([stash_reads(24 + i, i) for i in range(4)])
        if OPT.get("fh_early", 0):
            k_ = OPT["fh_early"]
            f3 = sr_[:k_] + rec(fh_poll_issue) + sr_[k_:]
        else:
            f3 = sr_ + rec(fh_poll_issue)
        if SCH['c3']: f3 = interleave(f3, flat(SCH['c3']), len(SCH['c3']) / float(len(f3)))
        if OPT.get("fin_pre", 1): f2 = f2 + rec(conv_finish_addr)
    conv_main(p, [(c0, f0), (c1, f1), (c2, f2), (c3, f3)])
    if not early:
        p.wait(lg=0)
        for u in flat(SCH['fin']): emit(p, u)
    g2_h_start(p)
    conv_finish(p, name, [t for s_ in range(OPT.get("h_first", 2), OPT["depth_h"]) for t in h_loads(s_)])
    stamp(p, "conv_done")
    if OPT["htouch"] == 1: h_touch(p)
    z_stores(p)
    if OPT["htouch"] == 2: h_touch(p)
    g2_main(p, name, {k_: [v_[0]] for k_, v_ in SCH['g2'].items()})
    stamp(p, "end")
    if common.PROF: p.wait(vm=0)
    stamp(p, "end_acked"); stamp(p, "rt1", True)
    prof_flush(p, sW)
    p("s_endpgm")
    p.label("%s_spare" % name)
    side_path_end(p, after_loads)
    sp_loads(p)
    if OPT["touch"] == 2: touches_g1_late(p)
    common_srds(p)
    kv_compute(p, 192, 200)
    p.wait(lg=0)
    p("s_barrier")
    kv_stores(p)
    nonce_issue(p)
    sp_stats(p)
    p.wait_tag("nonce"); nonce_check(p)
    sp_stats_store(p)
    sp_cs(p)
    p.wait(lg=0)
    p.wait_tag("kst")
    p("s_barrier")
    fk_publish(p, "sp")
    sp_cs_store(p)
    p.wait(lg=0)
    p("s_barrier")
    g2_srd(p)
    if not OPT.get("hoist", 0): g2_setup(p)
    if OPT.get("g2map", 0): w2_touch_half(p, 0, 1)
    elif OPT["w2touch"] == 6: w2_touch_a(p, 0, 1); w2_touch_b(p)
    elif OPT["w2touch"]: w2_touch(p)
    for u in flat(A): emit(p, u)
    conv_setup(p)
    fk_addr(p, True)
    poll_issue(p, vPK, vPA, 85, "poll")
    p.wait(vm=0, lg=0)
    poll_check(p, [vPK], [vPA], [85])
    conv_loads_regs(p)
    conv_loads_lds(p)
    p.wait(vm=0)
    if FE: conv_fill(p)
    p("s_branch %s_cfill" % name)
    p.label("%s_end" % name)
    p("s_endpgm")
    return p.text(), 512, 256
```

```python
from common import *
import common
from fused import (sN, sJ, sR, sW, sT0, sT1, sT2, sT3, FL_, unpack, flag_store, poll_issue, poll_check,
                   side_path_begin, side_path_end, nonce_issue, nonce_check, _uid)
OPT = dict(touch=0, htouch=0, nt=0, ntkv=0, depth_h=6, w2touch=5, s_fz=17, s_zl=21, g2map=1, th_stage=1)
def nt(): return " nt" if OPT["nt"] else ""
def ntkv(): return " nt" if (OPT["nt"] or OPT["ntkv"]) else ""

class Rec:
    def __init__(self): self.items = []; self.grp = None
    def __call__(self, txt, tag=None): (self.grp if self.grp is not None else self.items).append((txt, tag))
    def call(self, fn): (self.grp if self.grp is not None else self.items).append((fn, None))
    def wait(self, vm=None, lg=None): self.call(lambda p: p.wait(vm, lg))
    def wait_tag(self, tag): self.call(lambda p: p.wait_tag(tag))
    def begin(self): self.grp = []
    def end(self): self.items.append(self.grp); self.grp = None
def begin(p):
    if isinstance(p, Rec): p.begin()
def end(p):
    if isinstance(p, Rec): p.end()
def emit(p, items):
    for it in items:
        if isinstance(it, list): emit(p, it)
        elif callable(it[0]): it[0](p)
        else: p(it[0], it[1])
_srd0 = srd
def srd(p, dst, ptr, size, off=0):
    begin(p); _srd0(p, dst, ptr, size, off); end(p)
def rec(fn, *a):
    r = Rec(); fn(r, *a); return r.items

P_LDS, SK_LDS = 131072, 139264
TAB_LDS, CSQ_LDS = 157440, 158464
CV0 = 98304
RB_LDS = CV0 + 256 + 2 * 21248
XT, ZTT, RED = 98304, 106496, 114688
sROW, sRB, sFT = 72, 73, 74
sXo, sWo, sM = 80, 81, 82
sCH, sC2, sCB = 86, 87, 88
sTok, sCh, sHo = 89, 90, 91
sWA, sM2, sXO = 3, 17, 6
K_, V_, SK_, GQ_, GW1_ = 40, 44, 48, 52, 56
KVT_, ST_, CSP_ = 60, 64, 68

KR, VR, SKR, XR, CR = 16, 36, 44, 128, 136
vC, vRR = 3, 4
def p_addr(p):
    vA = 5
    p("v_and_b32 v11, 31, v1"); p("v_lshlrev_b32 v11, 4, v11")
    p("v_and_b32 v%d, 7, v1" % vC); p("v_lshrrev_b32 v%d, 3, v1" % vRR)
    p("s_lshl_b32 s%d, s%d, 6" % (sT0, sR)); p("s_lshl_b32 s%d, s%d, 4" % (sT1, sW))
    p("s_add_u32 s%d, s%d, s%d" % (sT0, sT0, sT1)); p("s_lshl_b32 s%d, s%d, 10" % (sT0, sT0))
    p("s_lshl_b32 s%d, s%d, 7" % (sT1, sJ)); p("s_add_u32 s%d, s%d, s%d" % (sT0, sT0, sT1))
    p("v_lshlrev_b32 v%d, 11, v%d" % (vA, vRR)); p("v_lshl_add_u32 v%d, v%d, 4, v%d" % (vA, vC, vA))
    p("v_add_u32 v%d, s%d, v%d" % (vA, sT0, vA))
    for i in range(5): p("v_add_u32 v%d, %d, v%d" % (6 + i, (i - 3) * 1024, vA))
    p("s_lshl_b32 s%d, s%d, 9" % (sT3, sJ))
def p_loads(p):
    vA = 5
    srd(p, K_, P_K, S * D * 2)
    for i in range(5): p("buffer_load_dwordx4 %s, v%d, s[%d:%d], 0 offen%s" % (vr(KR + 4 * i, 4), 6 + i, K_, K_ + 3, ntkv()))
    srd(p, V_, P_V, S * D * 2)
    p("buffer_load_dwordx4 %s, v%d, s[%d:%d], 0 offen%s" % (vr(VR, 4), vA, V_, V_ + 3, ntkv()))
    p("buffer_load_dwordx4 %s, v%d, s[%d:%d], 0 offen offset:1024%s" % (vr(VR + 4, 4), vA, V_, V_ + 3, ntkv()))
    srd(p, SK_, P_SK, D * 8)
    p("buffer_load_dwordx4 %s, v11, s[%d:%d], s%d offen" % (vr(SKR, 4), SK_, SK_ + 3, sT3))

def tile_srds(p):
    srd(p, GQ_, P_Q, S * D * 2); srd(p, GW1_, P_W1, D * F * 2)
def tile_indices(p):
    p("s_mul_i32 s%d, s%d, 37" % (sT0, sR)); p("s_lshr_b32 s%d, s%d, 8" % (sT0, sT0))
    p("s_mul_i32 s%d, s%d, 7" % (sT1, sT0)); p("s_sub_u32 s%d, s%d, s%d" % (sT1, sR, sT1))
    p("s_lshr_b32 s%d, s%d, 1" % (sT2, sJ)); p("s_lshl_b32 s%d, s%d, 2" % (sT2, sT2))
    p("s_add_u32 s%d, s%d, s%d" % (sRB, sT2, sT0))
    p("s_and_b32 s%d, s%d, 1" % (sT2, sJ)); p("s_mul_i32 s%d, s%d, 7" % (sT2, sT2))
    p("s_add_u32 s%d, s%d, s%d" % (sFT, sT2, sT1))

def touches_g1(p):
    if OPT["touch"] != 1: return
    p("s_lshl_b32 s%d, s%d, 2" % (sT2, sR)); p("s_add_u32 s%d, s%d, s%d" % (sT2, sT2, sW))
    p("v_lshlrev_b32 v9, 7, v1")
    p("s_lshr_b32 s%d, s%d, 1" % (sT0, sJ)); p("s_lshl_b32 s%d, s%d, 19" % (sT0, sT0))
    p("s_lshl_b32 s%d, s%d, 12" % (sT1, sT2)); p("s_add_u32 s%d, s%d, s%d" % (sT0, sT0, sT1))
    p("s_mov_b32 exec_hi, 0")
    p("buffer_load_dword v188, v9, s[%d:%d], s%d offen%s" % (GQ_, GQ_ + 3, sT0, nt()), "touch")
    p("s_mov_b64 exec, -1")
    p("v_mul_u32_u24 v10, 4682, v1"); p("v_lshrrev_b32 v10, 16, v10")
    p("v_mul_u32_u24 v11, 14, v10"); p("v_sub_u32 v11, v1, v11")
    p("v_mul_u32_u24 v10, 3584, v10"); p("v_lshl_add_u32 v10, v11, 7, v10")
    p("s_mul_i32 s%d, s%d, %d" % (sT0, sT2, 4 * 3584)); p("s_and_b32 s%d, s%d, 1" % (sT1, sJ))
    p("s_mul_i32 s%d, s%d, 1792" % (sT1, sT1)); p("s_add_u32 s%d, s%d, s%d" % (sT0, sT0, sT1))
    p("s_mov_b32 exec_hi, 0x00ffffff")
    p("buffer_load_dword v189, v10, s[%d:%d], s%d offen%s" % (GW1_, GW1_ + 3, sT0, nt()), "touch")
    p("s_mov_b64 exec, -1")

def touches_g1_late(p):
    p("s_lshl_b32 s83, s%d, 2" % sR); p("s_add_u32 s83, s83, s%d" % sW)
    p("v_mul_u32_u24 v8, 13108, v1"); p("v_lshrrev_b32 v8, 16, v8")
    p("v_mul_u32_u24 v9, 5, v8"); p("v_sub_u32 v9, v1, v9"); p("v_add_u32 v9, 3, v9")
    p("v_lshlrev_b32 v8, 10, v8"); p("v_lshl_add_u32 v8, v9, 7, v8")
    p("s_lshr_b32 s84, s%d, 1" % sJ); p("s_lshl_b32 s84, s84, 19"); p("s_lshl_b32 s75, s83, 12"); p("s_add_u32 s84, s84, s75")
    begin(p)
    p("s_mov_b64 exec, 0xfffff")
    p("buffer_load_dword v188, v8, s[%d:%d], s84 offen" % (GQ_, GQ_ + 3), "touch")
    p("s_mov_b64 exec, -1")
    end(p)
    p("s_mul_i32 s83, s83, 35"); p("v_add_u32 v8, s83, v1")
    p("v_mul_u32_u24 v9, 4682, v8"); p("v_lshrrev_b32 v9, 16, v9")
    p("v_mul_u32_u24 v10, 14, v9"); p("v_sub_u32 v10, v8, v10")
    p("v_add_u32 v9, 192, v9"); p("v_mul_u32_u24 v9, 3584, v9"); p("v_lshl_add_u32 v9, v10, 7, v9")
    p("s_and_b32 s84, s%d, 1" % sJ); p("s_mul_i32 s84, s84, 1792")
    begin(p)
    p("s_mov_b32 exec_hi, 0x7")
    p("buffer_load_dword v189, v9, s[%d:%d], s84 offen" % (GW1_, GW1_ + 3), "touch")
    p("s_mov_b64 exec, -1")
    end(p)
assert all((L * 4682) >> 16 == L // 14 for L in range(0, 1200)), "check"
def page_touch(p):
    p("s_mov_b32 s76, s%d" % P_WS); p("s_mov_b32 s77, s%d" % (P_WS + 1))
    p("s_mov_b32 s8, s76"); p("s_mov_b32 s9, s77"); p("s_mov_b32 s10, 0xF00000"); p("s_mov_b32 s11, 0x20000")
    p("v_lshlrev_b32 v14, 20, v1")
    p("s_mov_b64 exec, 0x7fff")
    p("buffer_load_dword v187, v14, s[8:11], 0 offen", "paget")
    p("s_mov_b64 exec, -1")
    srd(p, 8, P_OUT, S * D * 2)
    p("s_mov_b64 exec, 3")
    p("buffer_load_dword v185, v14, s[8:11], 0 offen", "paget")
    p("s_mov_b64 exec, -1")
def w2_touch(p):
    p("v_lshlrev_b32 v9, 7, v1")
    p("s_lshl_b32 s83, s%d, 2" % sR); p("s_add_u32 s83, s83, s%d" % sW); p("s_mul_i32 s83, s83, 14336")
    p("buffer_load_dword v190, v9, s[8:11], s83 offen", "touch2")
    p("s_add_u32 s83, s83, 8192")
    begin(p)
    p("s_mov_b32 exec_hi, 0xffff")
    p("buffer_load_dword v191, v9, s[8:11], s83 offen", "touch2")
    p("s_mov_b64 exec, -1")
    end(p)

def ssm_touch(p):
    p("v_lshlrev_b32 v9, 7, v1")
    p("s_lshl_b32 s83, s%d, 6" % sJ); p("s_lshl_b32 s84, s%d, 1" % sR); p("s_add_u32 s83, s83, s84"); p("s_lshl_b32 s83, s83, 12")
    p("s_lshl_b32 s84, s%d, 11" % sW); p("s_add_u32 s83, s83, s84")
    begin(p)
    p("s_mov_b64 exec, 0xffff")
    p("buffer_load_dword v191, v9, s[%d:%d], s83 offen%s" % (SSM_, SSM_ + 3, ntkv()), "touch4")
    p("s_mov_b64 exec, -1")
    end(p)
def w2_touch_part(p, k, n=16):
    p("v_lshlrev_b32 v9, 7, v1")
    p("s_lshl_b32 s83, s%d, 2" % sR); p("s_add_u32 s83, s83, s%d" % sW); p("s_mul_i32 s83, s83, 14336")
    if k: p("s_add_u32 s83, s83, %d" % (k * 16 * 128))
    begin(p)
    p("s_mov_b64 exec, 0x%x" % ((1 << n) - 1)) if n <= 16 else (p("s_mov_b32 exec_lo, 0x%x" % (((1 << min(n, 32)) - 1) & 0xffffffff)), p("s_mov_b32 exec_hi, 0x%x" % ((1 << max(n - 32, 0)) - 1)))
    p("buffer_load_dword v%d, v9, s[8:11], s83 offen%s" % ((186, 187, 190, 191)[k & 3], " nt" if OPT.get("ntw2") else ""), "touch2")
    p("s_mov_b64 exec, -1")
    end(p)
def w2_touch_half(p, part, nparts):
    n = 56 // nparts
    p("v_lshrrev_b32 v8, 2, v1"); p("v_and_b32 v9, 3, v1"); p("v_lshlrev_b32 v9, 7, v9"); p("v_lshl_add_u32 v9, v8, 10, v9")
    p("s_lshl_b32 s83, s%d, 2" % sR); p("s_add_u32 s83, s83, s%d" % sW); p("s_mul_i32 s83, s83, 14336")
    p("s_and_b32 s84, s%d, 1" % sJ); p("s_lshl_b32 s84, s84, 9"); p("s_add_u32 s83, s83, s84")
    if part: p("s_add_u32 s83, s83, %d" % (part * (n // 4) * 1024))
    begin(p)
    p("s_mov_b32 exec_lo, 0x%x" % (((1 << min(n, 32)) - 1) & 0xffffffff)); p("s_mov_b32 exec_hi, 0x%x" % ((1 << max(n - 32, 0)) - 1))
    p("buffer_load_dword v%d, v9, s[8:11], s83 offen" % (186 + (part & 1)), "touch2")
    p("s_mov_b64 exec, -1")
    end(p)
def w2_touch_a(p, part, nparts):
    n = 48 // nparts
    p("s_lshl_b32 s83, s%d, 2" % sR); p("s_add_u32 s83, s83, s%d" % sW)
    p("s_lshr_b32 s84, s83, 5"); p("s_mul_i32 s84, s84, 448"); p("s_and_b32 s83, s83, 31"); p("s_mul_i32 s83, s83, 6")
    p("s_add_u32 s83, s83, s84"); p("s_add_u32 s83, s83, 192"); p("s_lshl_b32 s83, s83, 10")
    if part: p("s_add_u32 s83, s83, %d" % (part * n * 128))
    p("v_lshlrev_b32 v9, 7, v1")
    begin(p)
    if n <= 32: p("s_mov_b64 exec, 0x%x" % ((1 << n) - 1)) if n <= 16 else (p("s_mov_b32 exec_lo, 0x%x" % ((1 << n) - 1)), p("s_mov_b32 exec_hi, 0"))
    else: p("s_mov_b32 exec_hi, 0x%x" % ((1 << (n - 32)) - 1))
    p("buffer_load_dword v%d, v9, s[8:11], s83 offen" % (186 + (part & 1)), "touch2")
    p("s_mov_b64 exec, -1")
    end(p)
def w2_touch_b(p):
    p("s_lshl_b32 s83, s%d, 2" % sR); p("s_add_u32 s83, s83, s%d" % sW)
    p("s_lshr_b32 s84, s83, 5"); p("s_mul_i32 s84, s84, 448"); p("s_and_b32 s83, s83, 31")
    begin(p); p("s_cmp_ge_u32 s83, 24"); p("s_cselect_b32 s75, 192, 0"); end(p)
    p("s_lshl_b32 s83, s83, 3"); p("s_add_u32 s83, s83, s75"); p("s_add_u32 s83, s83, s84"); p("s_lshl_b32 s83, s83, 10")
    p("v_lshlrev_b32 v9, 7, v1")
    p("buffer_load_dword v190, v9, s[8:11], s83 offen", "touch2")
def code_touch(p, kname):
    _uid[0] += 1; u = _uid[0]
    begin(p)
    p("s_getpc_b64 s[76:77]")
    p("Lct%d:" % u)
    p("s_sub_u32 s76, s76, Lct%d-%s" % (u, kname))
    p("s_subb_u32 s77, s77, 0")
    end(p)
    p("s_lshl_b32 s83, s%d, 2" % sR); p("s_add_u32 s83, s83, s%d" % sW)
    p("v_lshlrev_b32 v14, 7, v1"); p("v_add_u32 v14, s83, v14")
    p("v_lshlrev_b32 v14, 7, v14")
    p("v_min_u32 v14, %s_end-%s-4, v14" % (kname_end[0], kname))
    begin(p)
    p("v_mov_b32 v15, s77"); p("v_add_co_u32 v14, vcc, s76, v14"); p("s_nop 1"); p("v_addc_co_u32 v15, vcc, 0, v15, vcc")
    p("s_mov_b64 exec, 7")
    p("global_load_dword v186, v[14:15], off", "codet")
    p("s_mov_b64 exec, -1")
    end(p)
kname_end = ["fz"]

vKL, vKG0, vKG1 = 24, 25, 26
def kv_compute(p, RES=100, A=108):
    p("s_lshl_b32 s%d, s%d, 9" % (sT0, sW)); p("s_add_u32 s%d, s%d, %d" % (sT0, sT0, SK_LDS))
    p("v_and_b32 v11, 31, v1"); p("v_lshlrev_b32 v11, 4, v11"); p("v_add_u32 v11, s%d, v11" % sT0)
    p("v_lshlrev_b32 v2, 6, v%d" % vC); p("v_add_u32 v2, s%d, v2" % sT0)
    p("ds_write_b128 v11, %s" % vr(SKR, 4))
    p("s_lshl_b32 s%d, s%d, 3" % (sT0, sW)); p("s_sub_u32 s%d, 31, s%d" % (sT0, sT0))
    p("v_sub_u32 v15, s%d, v%d" % (sT0, vRR))
    p("v_lshrrev_b32 v6, 2, v15"); p("v_xor_b32 v6, v6, v%d" % vC)
    p("v_and_b32 v15, 3, v15"); p("v_lshlrev_b32 v15, 2, v15")
    p("v_lshl_add_u32 v15, v6, 4, v15"); p("v_lshl_add_u32 v15, v%d, 10, v15" % vC)
    p("v_add_u32 v15, %d, v15" % P_LDS)
    p.wait(lg=0)
    for i in range(4): p("ds_read_b128 %s, v2 offset:%d" % (vr(SKR + 4 * i, 4), 16 * i))
    p("s_mov_b32 s76, 0x05040100"); p("s_mov_b32 s77, 0x07060302")
    for e in range(8 if not OPT.get("x_nokv") else 1):
        dw, hf = e >> 1, e & 1
        sel = 76 + hf
        K = lambda i: KR + 4 * i + dw
        a = A + 8 * (e & 1)
        p("v_perm_b32 v%d, v%d, v%d, s%d" % (a + 0, K(2), K(3), sel))
        p("v_perm_b32 v%d, v%d, v%d, s%d" % (a + 1, K(0), K(1), sel))
        p("v_perm_b32 v%d, v%d, v%d, s%d" % (a + 2, K(3), K(4), sel))
        p("v_perm_b32 v%d, v%d, v%d, s%d" % (a + 3, K(1), K(2), sel))
        p("v_dot2_f32_bf16 v%d, v%d, v%d, 0" % (a + 4, a + 0, SKR + 2 * e))
        p("v_dot2_f32_bf16 v%d, v%d, v%d, 0" % (a + 5, a + 2, SKR + 2 * e))
        unpack(p, a + 6, VR + dw, hf); unpack(p, a + 7, VR + 4 + dw, hf)
        p("v_dot2_f32_bf16 v%d, v%d, v%d, v%d" % (a + 4, a + 1, SKR + 2 * e + 1, a + 4))
        p("v_dot2_f32_bf16 v%d, v%d, v%d, v%d" % (a + 5, a + 3, SKR + 2 * e + 1, a + 5))
        if e > 0:
            b = A + 8 * ((e - 1) & 1)
            p("v_mul_f32 v%d, v%d, v%d" % (b + 4, b + 4, b + 6)); p("v_mul_f32 v%d, v%d, v%d" % (b + 5, b + 5, b + 7))
            p("v_cvt_pk_bf16_f32 v%d, v%d, v%d" % (RES + e - 1, b + 5, b + 4))
            p("ds_write_b32 v15, v%d offset:%d" % (RES + e - 1, (e - 1) * 128))
    b = A + 8
    p("s_lshl_b32 s%d, s%d, 4" % (sT0, sW)); p("v_add_u32 v6, s%d, v%d" % (sT0, vRR))
    p("v_mul_f32 v%d, v%d, v%d" % (b + 4, b + 4, b + 6)); p("v_mul_f32 v%d, v%d, v%d" % (b + 5, b + 5, b + 7))
    p("v_cvt_pk_bf16_f32 v%d, v%d, v%d" % (RES + 7, b + 5, b + 4))
    p("ds_write_b32 v15, v%d offset:%d" % (RES + 7, 7 * 128))
    p("v_lshlrev_b32 v7, 7, v6"); p("v_lshl_add_u32 v7, v%d, 4, v7" % vC); p("v_add_u32 v%d, %d, v7" % (vKL, P_LDS))
    p("v_lshlrev_b32 v8, 12, v6"); p("s_lshl_b32 s%d, s%d, 1" % (sT1, sW))
    p("v_xor_b32 v9, s%d, v%d" % (sT1, vC)); p("v_lshl_add_u32 v%d, v9, 4, v8" % vKG0)
    p("s_add_u32 s%d, s%d, 1" % (sT1, sT1))
    p("v_xor_b32 v10, s%d, v%d" % (sT1, vC)); p("v_lshl_add_u32 v10, v10, 4, v8"); p("v_add_u32 v%d, 0x8000, v10" % vKG1)
def kv_stores(p):
    p("ds_read_b128 v[16:19], v%d" % vKL); p("ds_read_b128 v[20:23], v%d offset:1024" % vKL)
    p("s_lshl_b32 s83, s%d, 18" % sJ); p("s_lshl_b32 s84, s%d, 7" % sR)
    p("s_sub_u32 s83, s83, s84"); p("s_add_u32 s83, s83, 3968")
    p("buffer_store_dwordx4 v[16:19], v%d, s[%d:%d], s83 offen sc1" % (vKG0, KVT_, KVT_ + 3), "kst")
    p("buffer_store_dwordx4 v[20:23], v%d, s[%d:%d], s83 offen sc1" % (vKG1, KVT_, KVT_ + 3), "kst")

SX, SC_ = 128, 64
def sp_loads(p):
    p("s_sub_u32 s72, s%d, 28" % sR)
    p("s_lshr_b32 s%d, s%d, 1" % (sT0, sJ)); p("s_lshl_b32 s%d, s%d, 9" % (sT0, sT0))
    p("s_and_b32 s%d, s%d, 1" % (sT1, sJ)); p("s_lshl_b32 s%d, s%d, 2" % (sT1, sT1)); p("s_add_u32 s%d, s%d, s72" % (sT1, sT1))
    p("s_lshl_b32 s%d, s%d, 6" % (sT1, sT1)); p("s_add_u32 s%d, s%d, s%d" % (sT0, sT0, sT1))
    p("s_lshl_b32 s%d, s%d, 4" % (sT1, sW)); p("s_add_u32 s73, s%d, s%d" % (sT0, sT1))
    p("s_lshl_b32 s%d, s73, 10" % sT0)
    p("v_lshrrev_b32 v10, 3, v1"); p("v_and_b32 v11, 7, v1"); p("v_lshlrev_b32 v11, 4, v11"); p("v_lshl_add_u32 v10, v10, 10, v11")
    for g in range(2):
        for i in range(8):
            p("buffer_load_dwordx4 %s, v10, s[%d:%d], s%d offen offset:%d" % (vr(SX + 32 * g + 4 * i, 4), GQ_, GQ_ + 3, sT0, i * 128), "sx")
        if g == 0: p("s_add_u32 s%d, s%d, 8192" % (sT0, sT0))
    p("s_lshr_b32 s74, s%d, 1" % sJ); p("s_lshl_b32 s74, s74, 2"); p("s_add_u32 s74, s74, s72")
    p("s_lshl_b32 s%d, s74, 5" % sT0); p("s_lshl_b32 s%d, s%d, 3" % (sT1, sW)); p("s_add_u32 s%d, s%d, s%d" % (sT0, sT0, sT1))
    p("s_mul_i32 s%d, s%d, 3584" % (sT0, sT0)); p("s_and_b32 s%d, s%d, 1" % (sT1, sJ)); p("s_mul_i32 s%d, s%d, 1792" % (sT1, sT1))
    p("s_add_u32 s%d, s%d, s%d" % (sT0, sT0, sT1))
    p("v_lshlrev_b32 v12, 4, v1")
    for i in range(8):
        p("buffer_load_dwordx4 %s, v12, s[%d:%d], s%d offen" % (vr(SC_ + 8 * i, 4), GW1_, GW1_ + 3, sT0), "sc")
        p("buffer_load_dwordx4 %s, v12, s[%d:%d], s%d offen offset:1024" % (vr(SC_ + 8 * i + 4, 4), GW1_, GW1_ + 3, sT0), "sc")
        if i < 7: p("s_add_u32 s%d, s%d, 3584" % (sT0, sT0))
def sp_stats(p):
    T = 200
    p("s_mov_b32 s75, 0x3f803f80")
    for g in range(2):
        for h in range(2): p("v_mov_b32 v%d, 0" % (T + 4 * g + h)); p("v_mov_b32 v%d, 0" % (T + 8 + 2 * g + h))
    for i in range(8):
        for g in range(2):
            for d in range(4):
                r_ = SX + 32 * g + 4 * i + d
                aS, aQ = (T + 4 * g, T + 4 * g + 1) if d & 1 else (T + 8 + 2 * g, T + 9 + 2 * g)
                p("v_dot2_f32_bf16 v%d, v%d, s75, v%d" % (aS, r_, aS)); p("v_dot2_f32_bf16 v%d, v%d, v%d, v%d" % (aQ, r_, r_, aQ))
    for g in range(2):
        p("v_add_f32 v%d, v%d, v%d" % (T + 4 * g, T + 4 * g, T + 8 + 2 * g)); p("v_add_f32 v%d, v%d, v%d" % (T + 4 * g + 1, T + 4 * g + 1, T + 9 + 2 * g))
    for ctrl in ("quad_perm:[1,0,3,2] row_mask:0xf", "quad_perm:[2,3,0,1] row_mask:0xf", "row_half_mirror row_mask:0xf"):
        for q in (T, T + 1, T + 4, T + 5):
            p("v_add_f32_dpp v%d, v%d, v%d %s bank_mask:0xf" % (q, q, q, ctrl))
    for g in range(2):
        sS, sQ = T + 4 * g, T + 4 * g + 1
        p("v_mul_f32 v%d, 0x3b000000, v%d" % (sS, sS)); p("v_mul_f32 v%d, 0x3b000000, v%d" % (sQ, sQ))
    for g in range(2): p("v_fma_f32 v%d, -v%d, v%d, v%d" % (T + 4 * g + 1, T + 4 * g, T + 4 * g, T + 4 * g + 1))
    for g in range(2): p("v_max_f32 v%d, 0, v%d" % (T + 4 * g + 1, T + 4 * g + 1))
    for g in range(2): p("v_add_f32 v%d, 0x3727c5ac, v%d" % (T + 4 * g + 1, T + 4 * g + 1))
    for g in range(2): p("v_rsq_f32 v%d, v%d" % (T + 4 * g + 1, T + 4 * g + 1))
def sp_stats_store(p):
    T = 200
    for g in range(2): p("v_mov_b32 v%d, v%d" % (T + 4 * g + 2, T + 4 * g + 1))
    for q in (T + 1, T + 3, T + 5, T + 7): p("v_mov_b32 v%d, s%d" % (q, sN))
    p("v_lshrrev_b32 v10, 3, v1"); p("v_lshlrev_b32 v10, 4, v10")
    p("s_lshl_b32 s%d, s73, 4" % sT0)
    p("s_mov_b32 exec_lo, 0x01010101"); p("s_mov_b32 exec_hi, 0x01010101")
    p("buffer_store_dwordx4 %s, v10, s[%d:%d], s%d offen sc1" % (vr(T, 4), ST_, ST_ + 3, sT0), "pst")
    p("buffer_store_dwordx4 %s, v10, s[%d:%d], s%d offen offset:128 sc1" % (vr(T + 4, 4), ST_, ST_ + 3, sT0), "pst")
    p("s_mov_b64 exec, -1")
SPC_LDS = 0
def sp_cs(p):
    A = 216
    p("s_mov_b32 s76, 0x00003f80"); p("s_mov_b32 s77, 0x3f800000")
    for i in range(8):
        for part in range(2):
            for d in range(4):
                r_ = SC_ + 8 * i + 4 * part + d; a = A + 8 * part + 2 * d
                p("v_dot2_f32_bf16 v%d, v%d, s76, %s" % (a, r_, "0" if i == 0 else "v%d" % a))
                p("v_dot2_f32_bf16 v%d, v%d, s77, %s" % (a + 1, r_, "0" if i == 0 else "v%d" % (a + 1)))
    p("v_lshlrev_b32 v10, 5, v1"); p("s_lshl_b32 s%d, s%d, 12" % (sT0, sW)); p("v_add_u32 v10, s%d, v10" % sT0)
    for part in range(2):
        p("ds_write_b128 v10, %s offset:%d" % (vr(A + 8 * part, 4), SPC_LDS + part * 2048))
        p("ds_write_b128 v10, %s offset:%d" % (vr(A + 8 * part + 4, 4), SPC_LDS + part * 2048 + 16))
def sp_cs_store(p):
    p("v_lshlrev_b32 v10, 4, v0")
    for w in range(4): p("ds_read_b128 %s, v10 offset:%d" % (vr(64 + 4 * w, 4), SPC_LDS + w * 4096))
    for c in range(4):
        p("v_add_f32 v%d, v%d, v%d" % (64 + c, 64 + c, 68 + c)); p("v_add_f32 v%d, v%d, v%d" % (72 + c, 72 + c, 76 + c))
    for c in range(4): p("v_add_f32 v%d, v%d, v%d" % (80 + 2 * c, 64 + c, 72 + c)); p("v_mov_b32 v%d, s%d" % (81 + 2 * c, sN))
    p("s_mul_i32 s%d, s74, %d" % (sT0, 1792 * 8)); p("s_and_b32 s%d, s%d, 1" % (sT1, sJ)); p("s_mul_i32 s%d, s%d, %d" % (sT1, sT1, 896 * 8))
    p("s_add_u32 s%d, s%d, s%d" % (sT0, sT0, sT1))
    p("v_lshlrev_b32 v11, 5, v0")
    p("v_cmp_gt_u32 vcc, 224, v0"); p("s_nop 1"); p("v_cndmask_b32 v11, v253, v11, vcc"); p("v_mov_b32 v12, 0x7f000000")
    p("v_cndmask_b32 v11, v12, v11, vcc")
    p("buffer_store_dwordx4 v[80:83], v11, s[%d:%d], s%d offen sc1" % (CSP_, CSP_ + 3, sT0), "pst")
    p("buffer_store_dwordx4 v[84:87], v11, s[%d:%d], s%d offen offset:16 sc1" % (CSP_, CSP_ + 3, sT0), "pst")
def fk_publish(p, name):
    p("s_cmp_eq_u32 s%d, 0" % sW)
    p("s_cbranch_scc0 %s_nofk" % name)
    st = side_path_begin(p)
    p("s_lshl_b32 s%d, s%d, 5" % (sT0, sJ)); p("s_add_u32 s%d, s%d, s%d" % (sT0, sT0, sR))
    p("s_lshl_b32 s%d, s%d, 7" % (sT0, sT0))
    if FL_FK: p("s_add_u32 s%d, s%d, %d" % (sT0, sT0, FL_FK))
    flag_store(p, sT0)
    side_path_end(p, st)
    p.label("%s_nofk" % name)
vPK, vPA = 184, 185
def fk_addr(p, all_waves=False):
    p("v_min_u32 v%d, 31, v1" % vPA); p("v_lshlrev_b32 v%d, 7, v%d" % (vPA, vPA))
    if not all_waves:
        p("s_min_u32 s85, s%d, 1" % sW); p("s_sub_u32 s85, 1, s85"); p("v_mul_u32_u24 v%d, s85, v%d" % (vPA, vPA))
    p("s_lshl_b32 s85, s%d, 12" % sJ)
    if FL_FK: p("s_add_u32 s85, s85, %d" % FL_FK)

vX, vWd, vXA, vWA = 192, 196, 200, 208
G1_ACC = 64
vCS, vB1, vST = 128, 180, 212
B1_ = 40
def g1_dma_setup(p):
    p("v_lshrrev_b32 v10, 3, v1"); p("v_and_b32 v11, 7, v1"); p("v_lshrrev_b32 v12, 1, v10")
    for ii in range(4):
        p("v_add_u32 v13, %d, v12" % (4 * (ii & 1))); p("v_xor_b32 v13, v13, v11")
        p("v_lshlrev_b32 v13, 4, v13"); p("v_lshl_add_u32 v13, v10, 10, v13")
        p("v_add_u32 v%d, %d, v13" % (vX + ii, ii * 8192 - ii * 1024))
    p("v_lshrrev_b32 v10, 4, v1"); p("v_and_b32 v11, 15, v1"); p("v_lshlrev_b32 v12, 2, v10")
    p("v_xor_b32 v12, v12, v11"); p("v_lshlrev_b32 v12, 4, v12")
    p("v_mul_u32_u24 v13, 3584, v10"); p("v_add_u32 v13, v13, v12")
    for ii in range(4): p("v_add_u32 v%d, %d, v13" % (vWd + ii, ii * 4 * 3584 - ii * 1024))
    p("s_lshl_b32 s%d, s%d, 17" % (sXo, sRB)); p("s_lshl_b32 s%d, s%d, 15" % (sT0, sW))
    p("s_add_u32 s%d, s%d, s%d" % (sXo, sXo, sT0))
    p("s_mul_i32 s%d, s%d, %d" % (sWo, sW, 16 * 3584)); p("s_lshl_b32 s%d, s%d, 8" % (sT0, sFT))
    p("s_add_u32 s%d, s%d, s%d" % (sWo, sWo, sT0))
    p("s_lshl_b32 s%d, s%d, 12" % (sM, sW))
def g1_rot_setup(p):
    if not OPT.get("rot", 0): return
    p("s_mul_i32 s%d, s%d, 37" % (sT0, sR)); p("s_lshr_b32 s%d, s%d, 8" % (sT0, sT0))
    p("s_mul_i32 s%d, s%d, 5" % (sT1, sT0)); p("s_sub_u32 s%d, s%d, s%d" % (sT1, sR, sT1))
    p("s_mul_i32 s%d, s%d, %d" % (sT1, sT1, OPT["rot"])); p("s_and_b32 s%d, s%d, 7" % (sROT, sT1))
    p("s_mov_b32 s%d, s%d" % (sXb, sXo)); p("s_mov_b32 s%d, s%d" % (sWb, sWo))
    for it in rot_offsets(): p(it[0])
sROT, sXb, sWb = 72, 6, 7
def rot_offsets():
    return [("s_lshl_b32 s%d, s%d, 7" % (sT3, sROT), None), ("s_add_u32 s%d, s%d, s%d" % (sXo, sXb, sT3), None),
            ("s_mul_i32 s%d, s%d, %d" % (sT3, sROT, 64 * 3584), None), ("s_add_u32 s%d, s%d, s%d" % (sWo, sWb, sT3), None)]
def g1_dma_stage(s):
    out = []; slot = s % 4
    for ii in range(4):
        u = [("s_add_u32 m0, s%d, %d" % (sM, slot * 32768), None)] if ii == 0 else []
        out.append(u + [("buffer_load_dwordx4 v%d, s[%d:%d], s%d offen offset:%d lds" % (vX + ii, GQ_, GQ_ + 3, sXo, ii * 1024), "st%d" % s)])
    for ii in range(4):
        u = [("s_add_u32 m0, s%d, %d" % (sM, slot * 32768 + 16384), None)] if ii == 0 else []
        out.append(u + [("buffer_load_dwordx4 v%d, s[%d:%d], s%d offen offset:%d lds" % (vWd + ii, GW1_, GW1_ + 3, sWo, ii * 1024), "st%d" % s)])
    if OPT.get("rot", 0):
        out[-1] += [("s_add_u32 s%d, s%d, 1" % (sROT, sROT), None), ("s_and_b32 s%d, s%d, 7" % (sROT, sROT), None)] + rot_offsets()
    else:
        out[-1] += [("s_add_u32 s%d, s%d, 128" % (sXo, sXo), None), ("s_add_u32 s%d, s%d, %d" % (sWo, sWo, 64 * 3584), None)]
    return out
def g1_lds_setup(p):
    p("v_and_b32 v10, 31, v1"); p("v_lshrrev_b32 v11, 5, v1")
    p("v_lshrrev_b32 v12, 1, v10"); p("v_and_b32 v12, 7, v12"); p("v_xor_b32 v12, v12, v11")
    p("s_lshr_b32 s%d, s%d, 1" % (sT1, sW)); p("s_lshl_b32 s%d, s%d, 13" % (sT1, sT1))
    p("v_lshlrev_b32 v13, 7, v10"); p("v_add_u32 v13, s%d, v13" % sT1)
    for jj in range(4):
        p("v_xor_b32 v14, %d, v12" % (2 * jj))
        p("v_lshl_add_u32 v%d, v14, 4, v13" % (vXA + jj))
        p("v_add_u32 v%d, 0x10000, v%d" % (vXA + 4 + jj, vXA + jj))
    p("v_and_b32 v10, 15, v1"); p("v_lshrrev_b32 v11, 4, v1"); p("v_lshrrev_b32 v12, 1, v11")
    p("v_and_b32 v11, 1, v11"); p("v_lshrrev_b32 v13, 2, v10")
    p("v_lshl_add_u32 v12, v12, 3, v13"); p("v_lshlrev_b32 v12, 8, v12")
    p("v_and_b32 v14, 1, v10"); p("v_lshl_add_u32 v12, v14, 3, v12"); p("v_add_u32 v12, 16384, v12")
    p("v_and_b32 v14, 3, v10"); p("v_lshrrev_b32 v14, 1, v14"); p("v_lshl_add_u32 v14, v11, 1, v14")
    p("s_and_b32 s%d, s%d, 1" % (sT1, sW)); p("s_lshl_b32 s%d, s%d, 3" % (sT1, sT1))
    p("v_add_u32 v14, s%d, v14" % sT1); p("v_lshlrev_b32 v13, 2, v13")
    for fb in range(2):
        p("v_add_u32 v15, %d, v14" % (4 * fb)); p("v_xor_b32 v15, v15, v13")
        p("v_lshl_add_u32 v%d, v15, 4, v12" % (vWA + fb))
        p("v_add_u32 v%d, 0x10000, v%d" % (vWA + 2 + fb, vWA + fb))

def tab_loads(p):
    p("v_lshlrev_b32 v10, 4, v1")
    p("s_lshl_b32 s83, s%d, 2" % sW); p("s_mul_i32 s83, s83, %d" % (1792 * 8)); p("s_lshl_b32 s84, s%d, 10" % sFT); p("s_add_u32 s83, s83, s84")
    for i in range(4):
        p("buffer_load_dwordx4 %s, v10, s[%d:%d], s83 offen sc1" % (vr(vCS + 4 * i, 4), CSP_, CSP_ + 3), "tab")
        if i < 3: p("s_add_u32 s83, s83, %d" % (1792 * 8))
    p("s_lshr_b32 s84, s%d, 1" % sW); p("s_lshl_b32 s84, s84, 6")
    p("s_lshl_b32 s83, s%d, 7" % sRB); p("s_add_u32 s83, s83, s84"); p("s_lshl_b32 s83, s83, 4")
    p("v_and_b32 v12, 31, v1"); p("v_lshlrev_b32 v12, 4, v12")
    p("buffer_load_dwordx4 %s, v12, s[%d:%d], s83 offen sc1" % (vr(vST, 4), ST_, ST_ + 3), "tab")
    p("buffer_load_dwordx4 %s, v12, s[%d:%d], s83 offen offset:512 sc1" % (vr(vST + 4, 4), ST_, ST_ + 3), "tab")
def tab_check(p):
    _uid[0] += 1; u = _uid[0]
    def cmp():
        tags = [vCS + 4 * i + 1 for i in range(4)] + [vCS + 4 * i + 3 for i in range(4)] + [vST + 1, vST + 3, vST + 5, vST + 7]
        p("v_min3_u32 v10, v%d, v%d, v%d" % tuple(tags[0:3])); p("v_max3_u32 v11, v%d, v%d, v%d" % tuple(tags[0:3]))
        for i in range(3, 11, 2):
            p("v_min3_u32 v10, v10, v%d, v%d" % (tags[i], tags[i + 1])); p("v_max3_u32 v11, v11, v%d, v%d" % (tags[i], tags[i + 1]))
        p("v_min_u32 v10, v10, v%d" % tags[11]); p("v_max_u32 v11, v11, v%d" % tags[11])
        p("v_cmp_ne_u32 vcc, s%d, v10" % sN); p("v_cmp_ne_u32 s[76:77], s%d, v11" % sN)
        p("s_or_b64 vcc, vcc, s[76:77]"); p("s_nop 4")
    cmp()
    p("s_cbranch_vccz Lt%d_ok" % u)
    saved = (list(p.vm), list(p.lg))
    p("s_mov_b32 s79, 0")
    p.label("Lt%d_loop" % u)
    p("s_sleep 2")
    tab_loads(p)
    p.wait(vm=0)
    cmp()
    p("s_cbranch_vccz Lt%d_ok" % u)
    p("s_add_u32 s79, s79, 1"); p("s_cmp_lt_u32 s79, 0x40000"); p("s_cbranch_scc1 Lt%d_loop" % u)
    p.label("Lt%d_ok" % u)
    p.vm, p.lg = saved
def tab_partial(p):
    for tb in range(2): p("v_mov_b32 v%d, v%d" % (vST + 4 * tb + 1, vST + 4 * tb + 2))
    p("v_add_f32 v%d, v%d, v%d" % (vCS, vCS, vCS + 4)); p("v_add_f32 v%d, v%d, v%d" % (vCS + 2, vCS + 2, vCS + 6))
    p("v_add_f32 v%d, v%d, v%d" % (vCS + 8, vCS + 8, vCS + 12)); p("v_add_f32 v%d, v%d, v%d" % (vCS + 10, vCS + 10, vCS + 14))
    p("v_add_f32 v%d, v%d, v%d" % (vCS, vCS, vCS + 8)); p("v_add_f32 v%d, v%d, v%d" % (vCS + 1, vCS + 2, vCS + 10))
    p("v_lshlrev_b32 v10, 3, v1"); p("s_lshl_b32 s83, s%d, 9" % sW); p("v_add_u32 v10, s83, v10"); p("v_add_u32 v10, %d, v10" % CSQ_LDS)
    p("ds_write_b64 v10, %s" % vr(vCS, 2))

def g1_main(p, fill):
    ACC = G1_ACC; FR = 32
    def reads(g):
        s, jj = g // 4, g % 4
        slot = s % 4; hi = slot >= 2; so = (slot & 1) * 32768
        f = FR + 16 * (g & 1); out = []
        for fb in range(2):
            for rr in range(2):
                out.append("ds_read_b64_tr_b16 %s, v%d offset:%d" % (vr(f + 4 * fb + 2 * rr, 2), vWA + fb + (2 if hi else 0), so + jj * 4096 + rr * 1024))
        for tb in range(2):
            out.append("ds_read_b128 %s, v%d offset:%d" % (vr(f + 8 + 4 * tb, 4), vXA + jj + (4 if hi else 0), so + tb * 4096))
        return out
    def mfmas(g):
        f = FR + 16 * (g & 1); out = []
        for fb in range(2):
            for tb in range(2):
                a = ACC + 16 * (2 * fb + tb)
                out.append("v_mfma_f32_32x32x16_bf16 %s, %s, %s, %s" % (vr(a, 16), vr(f + 4 * fb, 4), vr(f + 8 + 4 * tb, 4), "0" if g == 0 else vr(a, 16)))
        return out
    for s in range(8):
        prewait, pre, units = fill[s][:3]
        tail = fill[s][3] if len(fill[s]) > 3 else []
        p.wait_tag("st%d" % s)
        prewait(p)
        p("s_barrier")
        stamp(p, "g1_st%d" % s)
        pre(p)
        dm = g1_dma_stage(s + 3) if (s + 3 < 8 and s >= 1) else []
        if s == 0: dm = g1_dma_stage(3)
        nm = 16 if s > 0 else 12
        di = ui = k = 0
        for jj in range(4):
            g = 4 * s + jj
            rd = reads(g)
            if g == 0:
                for t in rd: p(t)
                continue
            rm = OPT.get("rdmode", 0)
            if rm == 1:
                for r_ in rd: p(r_)
            for q, t in enumerate(mfmas(g - 1)):
                if not (OPT.get("x_nog1") and q >= 2): p(t)
                if rm == 0:
                    for r_ in rd[2 * q:2 * q + 2]: p(r_)
                if rm == 2:
                    for r_ in rd[3 * q:3 * q + 3]: p(r_)
                if rm == 3 and q == 0:
                    for r_ in rd: p(r_)
                k += 1
                while di < len(dm) and di * nm < k * len(dm):
                    emit(p, dm[di]); di += 1
                while ui < len(units) and ui * nm < k * len(units):
                    emit(p, [units[ui]]); ui += 1
        while di < len(dm): emit(p, dm[di]); di += 1
        while ui < len(units): emit(p, [units[ui]]); ui += 1
        emit(p, tail)
    for t in mfmas(31): p(t)

def g1_epilogue(p, extra):
    HF_ = 44
    srd(p, HF_, P_WS, SZ_HF, WS_HF)
    ACC = G1_ACC; TBL = 128
    p("v_lshrrev_b32 v10, 5, v1"); p("v_lshlrev_b32 v10, 4, v10")
    p("s_and_b32 s%d, s%d, 1" % (sT1, sW)); p("s_lshl_b32 s%d, s%d, 8" % (sT1, sT1))
    p("v_add_u32 v10, s%d, v10" % sT1); p("v_add_u32 v10, %d, v10" % TAB_LDS)
    for rq in range(4):
        p("ds_read_b128 %s, v10 offset:%d" % (vr(TBL + 4 * rq, 4), rq * 32))
        p("ds_read_b128 %s, v10 offset:%d" % (vr(TBL + 16 + 4 * rq, 4), 512 + rq * 32))
    p("s_lshr_b32 s%d, s%d, 1" % (sT1, sW)); p("s_lshl_b32 s%d, s%d, 1" % (sT1, sT1))
    p("s_lshl_b32 s%d, s%d, 2" % (sT0, sRB)); p("s_add_u32 s%d, s%d, s%d" % (sT0, sT0, sT1))
    p("s_mul_i32 s%d, s%d, 112" % (sT0, sT0)); p("s_lshl_b32 s%d, s%d, 3" % (sT1, sFT))
    p("s_add_u32 s%d, s%d, s%d" % (sT0, sT0, sT1))
    p("s_and_b32 s%d, s%d, 1" % (sT1, sW)); p("s_lshl_b32 s%d, s%d, 2" % (sT1, sT1))
    p("s_add_u32 s%d, s%d, s%d" % (sT0, sT0, sT1)); p("s_lshl_b32 s83, s%d, 10" % sT0)
    p("v_lshlrev_b32 v11, 4, v1"); p("v_add_u32 v12, %d, v11" % (112 * 1024))
    for tb in range(2): p("v_mul_f32 v%d, v%d, v%d" % (vST + 4 * tb, vST + 4 * tb, vST + 4 * tb + 1))
    main = []
    TB2 = 32
    for fb in range(2):
        tbl = TBL if fb == 0 else TB2
        for tb in range(2):
            a = ACC + 16 * (2 * fb + tb); mu = vST + 4 * tb
            PK = 160 + 8 * tb
            if fb == 0 and tb == 0:
                for rq in range(4):
                    main.append(("ds_read_b128 %s, v10 offset:%d" % (vr(TB2 + 4 * rq, 4), 128 + rq * 32), None))
                    main.append(("ds_read_b128 %s, v10 offset:%d" % (vr(TB2 + 16 + 4 * rq, 4), 512 + 128 + rq * 32), None))
            for r_ in range(0, 16 if not OPT.get("x_noepi") else 4, 4):
                t0, t1 = 176, 178
                for t, rr in ((t0, r_), (t1, r_ + 2)):
                    main.append(("v_pk_fma_f32 %s, %s, %s, %s op_sel_hi:[0,1,1] neg_lo:[1,0,0] neg_hi:[1,0,0]" % (vr(t, 2), vr(mu, 2), vr(tbl + rr, 2), vr(tbl + 16 + rr, 2)), None))
                for t, rr in ((t0, r_), (t1, r_ + 2)):
                    main.append(("v_pk_fma_f32 %s, %s, %s, %s op_sel:[0,1,0] op_sel_hi:[1,1,1]" % (vr(t, 2), vr(a + rr, 2), vr(mu, 2), vr(t, 2)), None))
                for t in (t0, t0 + 1, t1, t1 + 1): main.append(("v_max_f32 v%d, 0, v%d" % (t, t), None))
                for t in (t0, t1): main.append(("v_pk_mul_f32 %s, %s, %s" % (vr(t, 2), vr(t, 2), vr(t, 2)), None))
                for t, rr in ((t0, r_), (t1, r_ + 2)): main.append(("v_cvt_pk_bf16_f32 v%d, v%d, v%d" % (PK + (rr >> 1), t, t + 1), None))
            for q in range(2):
                main.append(("buffer_store_dwordx4 %s, v%d, s[%d:%d], s83 offen offset:%d sc1" % (vr(PK + 4 * q, 4), 11 + tb, HF_, HF_ + 3, (2 * fb + q) * 1024), "hst"))
    n = len(extra); k = 0
    i0 = int(len(main) * OPT.get("epi_start", 30) / 100.0)
    for i, it in enumerate(main):
        emit(p, [it])
        while i >= i0 and k < n and k * (len(main) - i0) < (i + 1 - i0) * n:
            emit(p, [extra[k]]); k += 1

def h_publish(p):
    p("s_lshl_b32 s%d, s%d, 1" % (sT0, sRB)); p("s_lshr_b32 s%d, s%d, 1" % (sT1, sW))
    p("s_add_u32 s%d, s%d, s%d" % (sT0, sT0, sT1)); p("s_mul_i32 s%d, s%d, 28" % (sT0, sT0))
    p("s_lshl_b32 s%d, s%d, 1" % (sT1, sFT)); p("s_add_u32 s%d, s%d, s%d" % (sT0, sT0, sT1))
    p("s_and_b32 s%d, s%d, 1" % (sT1, sW)); p("s_add_u32 s%d, s%d, s%d" % (sT0, sT0, sT1))
    p("s_lshl_b32 s%d, s%d, 7" % (sT0, sT0)); p("s_add_u32 s%d, s%d, %d" % (sT0, sT0, FL_FH))
    flag_store(p, sT0)

KVT2_, SSM_, DD_, ZT_ = 48, 44, 60, 60
CV_R, vDD = 220, 254
def conv_setup(p):
    srd(p, KVT2_, P_WS, SZ_KVT, WS_KVT); srd(p, SSM_, P_SSM, D * S * 2); srd(p, DD_, P_DD, D * 2)
    p("s_lshr_b32 s%d, s%d, 1" % (sT0, sW)); p("s_and_b32 s%d, s%d, 1" % (sC2, sW))
    p("s_lshl_b32 s%d, s%d, 6" % (sCH, sJ)); p("s_lshl_b32 s%d, s%d, 1" % (sT1, sR))
    p("s_add_u32 s%d, s%d, s%d" % (sCH, sCH, sT1)); p("s_add_u32 s%d, s%d, s%d" % (sCH, sCH, sT0))
    p("s_mul_i32 s%d, s%d, 21248" % (sCB, sT0)); p("s_add_u32 s%d, s%d, %d" % (sCB, sCB, CV0 + 256))
def conv_loads_regs(p):
    p("s_lshl_b32 s83, s%d, 12" % sCH); p("s_lshl_b32 s84, s%d, 11" % sC2); p("s_add_u32 s83, s83, s84")
    p("v_lshlrev_b32 v2, 4, v1")
    R = CV_R
    for sg in range(2):
        for k in range(3):
            p("buffer_load_dwordx4 %s, v2, s[%d:%d], s83 offen offset:%d sc1" % (vr(R + 12 * sg + 4 * k, 4), KVT2_, KVT2_ + 3, sg * 1024 + 4 * k), "cv")
    p("v_mov_b32 v4, 0"); p("s_lshl_b32 s84, s%d, 1" % sCH)
    p("buffer_load_ushort v%d, v4, s[%d:%d], s84 offen" % (vDD, DD_, DD_ + 3), "cv")
def conv_loads_lds(p):
    p("s_lshl_b32 s%d, s%d, 12" % (sT0, sCH)); p("s_lshl_b32 s%d, s%d, 11" % (sT1, sC2))
    p("s_add_u32 s%d, s%d, s%d" % (sT0, sT0, sT1))
    p("v_lshlrev_b32 v2, 4, v1")
    for sg in range(2):
        p("s_add_u32 s%d, s%d, s%d" % (sT2, sCB, sT1))
        p("s_add_u32 m0, s%d, %d" % (sT2, 16640 + 512 + sg * 1024))
        p("s_add_u32 s%d, s%d, %d" % (sT2, sT0, sg * 1024))
        p("buffer_load_dwordx4 v2, s[%d:%d], s%d offen lds" % (SSM_, SSM_ + 3, sT2), "cv")
    for i in range(4): p("v_mov_b32 v%d, 0" % (16 + i))
    p("v_lshrrev_b32 v5, 1, v1"); p("v_mul_u32_u24 v5, 4160, v5")
    p("v_and_b32 v6, 1, v1"); p("v_lshl_add_u32 v5, v6, 4, v5"); p("v_add_u32 v5, 4096, v5")
    p("v_add_u32 v6, 16640, v2")
    p("s_cmp_eq_u32 s%d, 0" % sC2)
    p("s_cselect_b32 s76, 0xff, -1")
    p("s_cselect_b64 vcc, -1, 0")
    p("v_cndmask_b32 v5, v6, v5, vcc")
    p("v_add_u32 v5, s%d, v5" % sCB)
    p("s_mov_b32 exec_lo, s76"); p("s_mov_b32 exec_hi, 0")
    p("ds_write_b128 v5, v[16:19]")
    p("s_mov_b64 exec, -1")

def conv_fill(p):
    R = CV_R
    p("v_mov_b32 v13, %d" % ZCNT_LDS); p("ds_write_b32 v13, v253")
    p("v_lshlrev_b32 v2, 4, v1"); p("v_mov_b32 v8, 0")
    p("s_lshl_b32 s77, s%d, 31" % sC2); p("s_mov_b32 s76, 0")
    last = R + 12
    for rg in (last + 7, last + 10, last + 11): p("v_cndmask_b32 v%d, v%d, v8, s[76:77]" % (rg, rg))
    p("s_lshl_b32 s%d, s%d, 11" % (sT1, sC2)); p("s_add_u32 s%d, s%d, s%d" % (sT1, sT1, sCB))
    p("v_add_u32 v5, s%d, v2" % sT1)
    for sg in range(2):
        r0, r1, r2 = R + 12 * sg, R + 12 * sg + 4, R + 12 * sg + 8
        c1, c3 = 16 + 8 * sg, 20 + 8 * sg
        p("ds_write_b128 v5, %s offset:%d" % (vr(r0, 4), sg * 1024))
        for i in range(4): p("v_alignbit_b32 v%d, v%d, v%d, 16" % (c1 + i, r1 + i, r0 + i))
        p("ds_write_b128 v5, %s offset:%d" % (vr(r1, 4), 2 * 4160 + sg * 1024))
        for i in range(4): p("v_alignbit_b32 v%d, v%d, v%d, 16" % (c3 + i, r2 + i, r1 + i))
        p("ds_write_b128 v5, %s offset:%d" % (vr(c1, 4), 4160 + sg * 1024))
        p("ds_write_b128 v5, %s offset:%d" % (vr(c3, 4), 3 * 4160 + sg * 1024))

def conv_main(p, extra_by_class):
    vA, vB = 12, 13
    p("v_and_b32 v6, 15, v1"); p("v_lshrrev_b32 v7, 4, v1")
    p("v_sub_u32 v14, 3, v6"); p("v_and_b32 v14, 3, v14")
    p("v_mul_u32_u24 v15, 4158, v14")
    p("v_lshlrev_b32 v14, 1, v6"); p("v_sub_u32 v15, v15, v14"); p("v_lshl_add_u32 v15, v7, 4, v15")
    p("s_lshl_b32 s%d, s%d, 8" % (sT1, sC2)); p("s_sub_u32 s%d, s%d, s%d" % (sT1, sCB, sT1))
    p("s_add_u32 s%d, s%d, 30" % (sT2, sT1)); p("v_add_u32 v%d, s%d, v15" % (vA, sT2))
    p("v_lshlrev_b32 v15, 5, v6"); p("v_lshl_add_u32 v15, v7, 4, v15")
    p("s_add_u32 s%d, s%d, %d" % (sT2, sT1, 16640 + 32)); p("v_add_u32 v%d, s%d, v15" % (vB, sT2))
    ACC = 64
    p.wait(lg=0)
    p("s_barrier")
    stamp(p, "conv_filled")
    FA, FB = 96, 160
    def reads(rl):
        st = rl & 1; out = []
        for x in range(8):
            oa = 64 * (63 - rl - 8 * x)
            out.append(("ds_read_b64 %s, v%d offset:%d" % (vr(FA + 32 * st + 4 * x, 2), vA, oa), None))
            out.append(("ds_read_b64 %s, v%d offset:%d" % (vr(FA + 32 * st + 4 * x + 2, 2), vA, oa + 8), None))
            out.append(("ds_read_b128 %s, v%d offset:%d" % (vr(FB + 32 * st + 4 * x, 4), vB, 64 * (7 - rl + 8 * x)), None))
        return out
    seen = set()
    def mf(rl):
        st = rl & 1; out = []
        pairs = sorted([(a, b) for a in range(8) for b in range(8) if a + b <= 7], key=lambda ab: (max(ab), ab))
        for a, b in pairs:
            c = vr(ACC + 4 * (a + b), 4)
            first = (a + b) not in seen; seen.add(a + b)
            out.append(("v_mfma_f32_16x16x32_bf16 %s, %s, %s, %s" % (c, vr(FA + 32 * st + 4 * a, 4), vr(FB + 32 * st + 4 * b, 4), "0" if first else c), None))
        return out
    for t in reads(0): p(*t)
    for rl in range(4):
        pre, fill = extra_by_class[rl]
        pre(p)
        nxt = (reads(rl + 1) if rl < 3 else [])
        m = mf(rl)
        if OPT.get("x_noconv"): m = m[:4]
        ni = fi = 0
        for i, t in enumerate(m):
            p(*t)
            while ni < len(nxt) and ni * 30 < (i + 1) * len(nxt): p(*nxt[ni]); ni += 1
            while fi < len(fill) and fi * 36 < (i + 1) * len(fill): emit(p, [fill[fi]]); fi += 1
    stamp(p, "conv_mma_done")

def conv_finish(p, name, extra):
    ACC = 64
    if not OPT.get("fin_pre", 1): conv_finish_addr(p)
    for q in range(4): p("ds_read_b64 %s, v16 offset:%d" % (vr(36 + 2 * q, 2), (3 - q) * 512))
    n1 = len(extra) // 2
    conv_finish_rest(p, name, extra, n1)
def conv_finish_addr(p):
    RB = RB_LDS
    srd(p, ZT_, P_WS, SZ_ZT, WS_ZT)
    p("v_lshlrev_b32 v2, 4, v1")
    p("s_lshl_b32 s%d, s%d, 12" % (sT1, sW))
    p("v_add_u32 v5, s%d, v2" % sT1); p("v_add_u32 v5, %d, v5" % RB)
    p("s_xor_b32 s%d, s%d, 1" % (sT1, sW)); p("s_lshl_b32 s%d, s%d, 12" % (sT1, sT1))
    p("v_add_u32 v14, s%d, v2" % sT1); p("v_add_u32 v14, %d, v14" % RB)
    p("v_lshlrev_b32 v15, 5, v6"); p("v_lshl_add_u32 v15, v7, 3, v15")
    p("s_lshl_b32 s%d, s%d, 11" % (sT1, sC2)); p("s_sub_u32 s%d, s%d, s%d" % (sT2, sCB, sT1))
    p("s_add_u32 s%d, s%d, %d" % (sT2, sT2, 4088 - 1536)); p("v_sub_u32 v16, s%d, v15" % sT2)
    p("s_lshl_b32 s84, s%d, 12" % sCH); p("s_add_u32 s84, s84, s%d" % sT1)
    p("v_lshlrev_b32 v%d, 16, v%d" % (vDD, vDD))
def conv_finish_rest(p, name, extra, n1):
    ACC = 64
    emit(p, extra[:n1])
    st = side_path_begin(p); hist = len(p.out)
    p("s_cmp_eq_u32 s%d, 0" % sC2)
    p("s_cbranch_scc0 %s_hi" % name)
    for variant in range(2):
        keep = ACC + 16 * variant; give = ACC + 16 * (1 - variant)
        if variant == 1:
            p("s_branch %s_cdone" % name)
            p.label("%s_hi" % name)
            side_path_end(p, st)
            p("s_nop 7")
        for q in range(4): p("ds_write_b128 v5, %s offset:%d" % (vr(give + 4 * q, 4), q * 1024))
        for q in range(4):
            a_ = keep + 4 * q; u = 36 + 2 * q
            for c, (src, hf) in enumerate(((u + 1, 1), (u + 1, 0), (u, 1), (u, 0))):
                unpack(p, 44 + (c & 1), src, hf)
                p("v_fmac_f32 v%d, v%d, v%d" % (a_ + c, 44 + (c & 1), vDD))
        p.wait(lg=0)
        p("s_barrier")
        for q in range(4): p("ds_read_b128 %s, v14 offset:%d" % (vr(20 + 4 * q, 4), q * 1024))
        for q in range(4):
            a_ = keep + 4 * q
            for c in range(4): p("v_add_f32 v%d, v%d, v%d" % (a_ + c, a_ + c, 20 + 4 * q + c))
            p("v_cvt_pk_bf16_f32 v%d, v%d, v%d" % (48 + 2 * q, a_, a_ + 1))
            p("v_cvt_pk_bf16_f32 v%d, v%d, v%d" % (49 + 2 * q, a_ + 2, a_ + 3))
    p.label("%s_cdone" % name)
    emit(p, extra[n1:])
def z_stores(p):
    for q in range(4):
        p("buffer_store_dwordx2 %s, v15, s[%d:%d], s84 offen offset:%d sc1" % (vr(48 + 2 * q, 2), ZT_, ZT_ + 3, q * 512), "zst")
ZCNT_LDS = 163832
def z_publish(p, name):
    p("v_mov_b32 v10, %d" % ZCNT_LDS); p("v_mov_b32 v11, 1")
    p("s_mov_b64 exec, 1")
    p("ds_add_rtn_u32 v11, v10, v11")
    p("s_mov_b64 exec, -1")
    p.wait(lg=0)
    p("v_readfirstlane_b32 s%d, v11" % sT0)
    p("s_cmp_eq_u32 s%d, 3" % sT0)
    p("s_cbranch_scc0 %s_nozp" % name)
    st = side_path_begin(p)
    p("s_lshl_b32 s%d, s%d, 5" % (sT0, sJ)); p("s_add_u32 s%d, s%d, s%d" % (sT0, sT0, sR))
    p("s_lshl_b32 s%d, s%d, 7" % (sT0, sT0)); p("s_add_u32 s%d, s%d, %d" % (sT0, sT0, FL_FZ))
    flag_store(p, sT0)
    side_path_end(p, st)
    p.label("%s_nozp" % name)

HF2_, W2_, Q2_, ZT2_, ST2_, B2_, OUT_ = 40, 8, 48, 52, 56, 64, 44
vH0, vH1, vD0, vD1 = 244, 245, 246, 247
vFH, vFHA = 248, 249
vTRA = 60
sWS = 75
NS = 28
STASH0 = 0
HB = 128
def g2_srd(p):
    srd(p, W2_, P_W2, F * D * 2)
    p("s_lshl_b32 s%d, s%d, 11" % (sM2, sW))
def g2_setup(p):
    if OPT.get("g2map", 0):
        p("s_lshr_b32 s%d, s%d, 1" % (sTok, sJ)); p("s_lshl_b32 s%d, s%d, 9" % (sTok, sTok))
        p("s_lshr_b32 s%d, s%d, 2" % (sT0, sR)); p("s_lshl_b32 s%d, s%d, 6" % (sT0, sT0))
        p("s_add_u32 s%d, s%d, s%d" % (sTok, sTok, sT0))
        p("s_and_b32 s%d, s%d, 1" % (sCh, sJ)); p("s_lshl_b32 s%d, s%d, 2" % (sCh, sCh)); p("s_and_b32 s%d, s%d, 3" % (sT0, sR))
        p("s_add_u32 s%d, s%d, s%d" % (sCh, sCh, sT0)); p("s_lshl_b32 s%d, s%d, 6" % (sCh, sCh))
    else:
        p("s_lshl_b32 s%d, s%d, 8" % (sTok, sJ))
        p("s_lshr_b32 s%d, s%d, 3" % (sT0, sR)); p("s_lshl_b32 s%d, s%d, 6" % (sT0, sT0))
        p("s_add_u32 s%d, s%d, s%d" % (sTok, sTok, sT0))
        p("s_add_u32 s%d, s%d, %d" % (sCh, sR, OPT.get("cbrot", 0))); p("s_and_b32 s%d, s%d, 7" % (sCh, sCh)); p("s_lshl_b32 s%d, s%d, 6" % (sCh, sCh))
    p("s_lshr_b32 s%d, s%d, 5" % (sT0, sTok)); p("s_mul_i32 s%d, s%d, 112" % (sT0, sT0))
    p("s_mul_i32 s%d, s%d, 28" % (sT1, sW))
    p("s_add_u32 s%d, s%d, s%d" % (sT0, sT0, sT1)); p("s_lshl_b32 s%d, s%d, 10" % (sHo, sT0))
    p("s_lshl_b32 s%d, s%d, 14" % (sWA, sT1)); p("s_lshl_b32 s%d, s%d, 1" % (sT0, sCh))
    p("s_add_u32 s%d, s%d, s%d" % (sWA, sWA, sT0))
    p("v_lshlrev_b32 v%d, 4, v1" % vH0)
    p("v_add_u32 v%d, %d, v%d" % (vH1, 112 * 1024, vH0))
    p("v_lshrrev_b32 v10, 3, v1"); p("v_and_b32 v11, 7, v1")
    p("v_lshrrev_b32 v12, 1, v10"); p("v_and_b32 v12, 1, v12"); p("v_lshlrev_b32 v12, 2, v12")
    p("v_xor_b32 v12, v12, v11"); p("v_lshlrev_b32 v12, 4, v12")
    p("v_lshl_add_u32 v%d, v10, 10, v12" % vD0)
    p("v_add_u32 v%d, %d, v%d" % (vD1, 8192 - 1024, vD0))
def g2_setup_tr(p):
    p("v_and_b32 v10, 15, v1"); p("v_lshrrev_b32 v11, 4, v1"); p("v_lshrrev_b32 v12, 1, v11"); p("v_and_b32 v11, 1, v11")
    p("v_lshrrev_b32 v13, 2, v10"); p("v_lshl_add_u32 v12, v12, 2, v13"); p("v_lshlrev_b32 v12, 7, v12")
    p("v_and_b32 v14, 3, v10"); p("v_lshrrev_b32 v15, 1, v14"); p("v_lshl_add_u32 v12, v15, 3, v12")
    p("v_and_b32 v14, 1, v14"); p("v_lshl_add_u32 v14, v14, 1, v11")
    p("v_lshrrev_b32 v15, 3, v10"); p("v_lshlrev_b32 v15, 2, v15")
    p("v_add_u32 v12, s%d, v12" % sM2)
    for cb in range(2):
        p("v_add_u32 v13, %d, v14" % (4 * cb)); p("v_xor_b32 v13, v13, v15")
        p("v_lshl_add_u32 v%d, v13, 4, v12" % (vTRA + cb))
        p("v_add_u32 v%d, 0x10000, v%d" % (vTRA + 2 + cb, vTRA + cb))
def w2_dma(step, slot):
    tag = "w%d" % step
    if OPT.get("x_now2") == 1 or (OPT.get("x_now2") == 2 and (step < 12 or step >= 24)): return [[("s_nop 0", None)]]
    return [[("s_add_u32 m0, s%d, %d" % (sM2, slot * 8192), None),
             ("s_add_u32 s%d, s%d, %d" % (sWS, sWA, step * 16384), None),
             ("buffer_load_dwordx4 v%d, s[%d:%d], s%d offen lds" % (vD0, W2_, W2_ + 3, sWS), tag),
             ("buffer_load_dwordx4 v%d, s[%d:%d], s%d offen offset:1024 lds" % (vD1, W2_, W2_ + 3, sWS), tag)]]
def tr_reads(slot, dst, kind):
    out = []
    for cb in range(2):
        for rr in range(2):
            hi = slot >= 8
            out.append(("ds_read_b64_tr_b16 %s, v%d offset:%d" % (vr(dst + 4 * cb + 2 * rr, 2, kind), vTRA + cb + (2 if hi else 0), (slot - 8 * hi) * 8192 + rr * 1024), None))
    return out
def stash_reads(step, slot): return tr_reads(slot, STASH0 + 8 * (step - 12), 'a')
ORD = list(range(12, 28)) + list(range(4, 12)) + list(range(0, 4))
def h_loads(s):
    slot = s % OPT["depth_h"]
    return [("s_add_u32 s7, s%d, %d" % (sHo, ORD[s] * 1024), None),
            ("buffer_load_dwordx4 %s, v%d, s[%d:%d], s7 offen sc1" % (ar(HB + 8 * slot, 4), vH0, HF2_, HF2_ + 3), "h%d" % s),
            ("buffer_load_dwordx4 %s, v%d, s[%d:%d], s7 offen sc1" % (ar(HB + 8 * slot + 4, 4), vH1, HF2_, HF2_ + 3), "h%d" % s)]
def fh_poll_issue(p):
    p("v_min_u32 v%d, 6, v1" % vFHA); p("v_lshlrev_b32 v%d, 7, v%d" % (vFHA, vFHA))
    p("s_lshr_b32 s83, s%d, 6" % sTok); p("s_mul_i32 s83, s83, 28"); p("s_mul_i32 s%d, s%d, 7" % (sT0, sW)); p("s_add_u32 s83, s83, s%d" % sT0)
    p("s_lshl_b32 s83, s83, 7"); p("s_add_u32 s83, s83, %d" % FL_FH)
    poll_issue(p, vFH, vFHA, 83, "fh")
def g2_h_start(p):
    DH = OPT["depth_h"]
    srd(p, HF2_, P_WS, SZ_HF, WS_HF)
    p.wait_tag("fh")
    poll_check(p, [vFH], [vFHA], [83])
    stamp(p, "g2_h_ready")
    for s in range(OPT.get("h_first", 2)):
        for t in h_loads(s): p(*t)
def h_touch(p):
    DH = OPT["depth_h"]
    n = (NS - DH) * 16 // 8
    p("s_and_b32 s%d, s%d, 7" % (sT0, sR)); p("s_mul_i32 s%d, s%d, %d" % (sT0, sT0, n))
    p("v_add_u32 v10, s%d, v1" % sT0)
    p("v_lshrrev_b32 v11, 4, v10"); p("v_and_b32 v12, 7, v10"); p("v_lshlrev_b32 v12, 7, v12")
    p("v_lshl_add_u32 v12, v11, 10, v12")
    p("v_bfe_u32 v11, v10, 3, 1"); p("v_mul_u32_u24 v11, %d, v11" % (112 * 1024)); p("v_add_u32 v12, v12, v11")
    if n > 32: p("s_mov_b32 exec_hi, 0x%x" % ((1 << (n - 32)) - 1))
    else: p("s_mov_b64 exec, 0x%x" % ((1 << n) - 1))
    p("buffer_load_dword v59, v12, s[%d:%d], s%d offen sc1" % (HF2_, HF2_ + 3, sHo), "touch3")
    p("s_mov_b64 exec, -1")

vST2, vB2 = 16, 20
vY, vOWN = 144, 176
vXq, vZq, vRED, vOUT = 6, 7, 8, 9
def g2_main(p, name, g2_units):
    DH = OPT["depth_h"]
    ACC = 64; FR = 32
    def ep_setup(p):
        srd(p, Q2_, P_Q, S * D * 2)
        srd(p, ZT2_, P_WS, SZ_ZT, WS_ZT); srd(p, ST2_, P_WS, SZ_ST, WS_ST); srd(p, B2_, P_B2, D * 2); srd(p, OUT_, P_OUT, S * D * 2)
    def ep_loads(p):
        p("v_lshrrev_b32 v10, 2, v1"); p("v_and_b32 v11, 3, v1")
        p("v_lshrrev_b32 v12, 2, v10"); p("v_xor_b32 v12, v12, v11")
        p("v_lshlrev_b32 v12, 4, v12"); p("v_lshl_add_u32 v13, v10, 10, v12")
        p("s_lshr_b32 s%d, s%d, 1" % (sT0, sW)); p("s_lshl_b32 s%d, s%d, 5" % (sT0, sT0)); p("s_add_u32 s%d, s%d, s%d" % (sT0, sT0, sTok))
        p("s_and_b32 s%d, s%d, 1" % (sT1, sW)); p("s_lshl_b32 s%d, s%d, 5" % (sT1, sT1)); p("s_add_u32 s%d, s%d, s%d" % (sT1, sT1, sCh))
        p("s_lshl_b32 s%d, s%d, 10" % (sXO, sT0)); p("s_lshl_b32 s%d, s%d, 1" % (sT2, sT1)); p("s_add_u32 s%d, s%d, s%d" % (sXO, sXO, sT2))
        p("s_lshl_b32 s%d, s%d, 11" % (sT3, sW))
        p("s_add_u32 m0, s%d, %d" % (sT3, XT))
        p("buffer_load_dwordx4 v13, s[%d:%d], s%d offen lds" % (Q2_, Q2_ + 3, sXO), "ep")
        p("s_add_u32 s78, s%d, 16384" % sXO)
        p("s_add_u32 m0, s%d, %d" % (sT3, XT + 1024))
        p("buffer_load_dwordx4 v13, s[%d:%d], s78 offen lds" % (Q2_, Q2_ + 3), "ep")
        p("s_lshl_b32 s%d, s%d, 4" % (sT0, sT0))
        p("v_and_b32 v14, 31, v1"); p("v_lshlrev_b32 v15, 4, v14")
        p("buffer_load_dwordx4 %s, v15, s[%d:%d], s%d offen sc1" % (vr(vST2, 4), ST2_, ST2_ + 3, sT0), "ep")
        p("v_lshrrev_b32 v15, 5, v1"); p("v_lshlrev_b32 v12, 5, v15")
        p("buffer_load_dwordx4 %s, v12, s[%d:%d], s%d offen" % (vr(vB2, 4), B2_, B2_ + 3, sT2), "ep")
        p("buffer_load_dwordx4 %s, v12, s[%d:%d], s%d offen offset:16" % (vr(vB2 + 4, 4), B2_, B2_ + 3, sT2), "ep")
        p("v_lshrrev_b32 v12, 2, v14"); p("v_and_b32 v12, 3, v12")
        p("v_lshlrev_b32 v15, 1, v15"); p("v_xor_b32 v15, v15, v12")
        p("v_lshlrev_b32 v15, 4, v15"); p("v_lshl_add_u32 v15, v14, 6, v15")
        p("v_add_u32 v15, s%d, v15" % sT3); p("v_add_u32 v%d, %d, v15" % (vXq, XT))
        p("v_lshrrev_b32 v15, 5, v1"); p("v_lshlrev_b32 v15, 5, v15"); p("v_lshl_add_u32 v%d, v14, 10, v15" % vOUT)
        p("v_add_u32 v%d, %d, v%d" % (vRED, RED, vH0))
    def z_loads(p):
        p("v_lshrrev_b32 v10, 2, v1"); p("v_and_b32 v11, 3, v1")
        p("v_lshlrev_b32 v12, 4, v11"); p("v_lshl_add_u32 v12, v10, 12, v12")
        p("s_and_b32 s%d, s%d, 1" % (sT1, sW)); p("s_lshl_b32 s%d, s%d, 5" % (sT1, sT1)); p("s_add_u32 s%d, s%d, s%d" % (sT1, sT1, sCh))
        p("s_lshl_b32 s%d, s%d, 12" % (sT0, sT1))
        p("s_lshr_b32 s%d, s%d, 1" % (sT1, sW)); p("s_lshl_b32 s%d, s%d, 5" % (sT1, sT1)); p("s_add_u32 s%d, s%d, s%d" % (sT1, sT1, sTok))
        p("s_lshl_b32 s%d, s%d, 1" % (sT1, sT1)); p("s_add_u32 s%d, s%d, s%d" % (sT0, sT0, sT1))
        p("buffer_load_dwordx4 %s, v12, s[%d:%d], s%d offen sc1" % (vr(128, 4), ZT2_, ZT2_ + 3, sT0), "z")
        p("s_add_u32 s%d, s%d, %d" % (sT0, sT0, 16 * 4096))
        p("buffer_load_dwordx4 %s, v12, s[%d:%d], s%d offen sc1" % (vr(132, 4), ZT2_, ZT2_ + 3, sT0), "z")
        p("v_lshrrev_b32 v12, 1, v10"); p("v_and_b32 v12, 3, v12"); p("v_xor_b32 v12, v12, v11")
        p("v_lshlrev_b32 v12, 4, v12"); p("v_lshl_add_u32 v12, v10, 6, v12")
        p("s_lshl_b32 s%d, s%d, 11" % (sT3, sW)); p("s_add_u32 s%d, s%d, %d" % (sT3, sT3, ZTT))
        p("v_add_u32 v%d, s%d, v12" % (vZq + 4, sT3))
        p("v_and_b32 v10, 15, v1"); p("v_lshrrev_b32 v12, 4, v1"); p("v_lshrrev_b32 v13, 1, v12"); p("v_and_b32 v12, 1, v12")
        p("v_lshrrev_b32 v14, 2, v10"); p("v_lshl_add_u32 v13, v13, 4, v14")
        p("v_and_b32 v15, 3, v10"); p("v_lshrrev_b32 v15, 1, v15"); p("v_lshl_add_u32 v15, v12, 1, v15")
        p("v_lshrrev_b32 v14, 1, v14"); p("v_xor_b32 v15, v15, v14")
        p("v_lshlrev_b32 v15, 4, v15"); p("v_lshl_add_u32 v15, v13, 6, v15")
        p("v_and_b32 v14, 1, v10"); p("v_lshl_add_u32 v15, v14, 3, v15")
        p("v_add_u32 v%d, s%d, v15" % (vZq, sT3))
        p("v_xor_b32 v5, 32, v%d" % vZq)
    def y_compute(p):
        XR_, ZR = 136, 164
        p("ds_write_b128 v%d, %s" % (vZq + 4, vr(128, 4))); p("ds_write_b128 v%d, %s offset:1024" % (vZq + 4, vr(132, 4)))
        p.wait_tag("ep")
        p("v_xor_b32 v10, 16, v%d" % vXq)
        p("ds_read_b128 %s, v%d" % (vr(XR_, 4), vXq)); p("ds_read_b128 %s, v10" % vr(XR_ + 4, 4))
        for m in range(4): p("ds_read_b64_tr_b16 %s, v%d offset:%d" % (vr(ZR + 2 * m, 2), vZq if m % 2 == 0 else 5, m * 256))
        mu, rs = vST2, vST2 + 2
        p("v_mul_f32 v%d, v%d, v%d" % (mu, mu, rs))
        for r_ in range(16):
            x, z, b = 48 + 3 * (r_ & 1), 49 + 3 * (r_ & 1), 50 + 3 * (r_ & 1)
            unpack(p, x, XR_ + (r_ >> 1), r_ & 1); unpack(p, z, ZR + (r_ >> 1), r_ & 1); unpack(p, b, vB2 + (r_ >> 1), r_ & 1)
            p("v_fma_f32 v%d, v%d, v%d, -v%d" % (vY + r_, x, rs, mu))
            p("v_add_f32 v%d, v%d, v%d" % (b, b, x))
            p("v_fma_f32 v%d, v%d, v%d, v%d" % (vY + r_, vY + r_, z, b))
    def reads(s): return [t for t, _ in tr_reads(ORD[s], FR + 8 * (s & 1), 'v')]
    def mfmas(s):
        slot = s % DH; out = []
        for cb in range(2):
            A = vr(FR + 8 * (s & 1) + 4 * cb, 4) if ORD[s] < 12 else ar(STASH0 + 8 * (ORD[s] - 12) + 4 * cb, 4)
            for tb in range(2):
                a = vr(ACC + 16 * (2 * tb + cb), 16)
                out.append("v_mfma_f32_32x32x16_bf16 %s, %s, %s, %s" % (a, A, ar(HB + 8 * slot + 4 * tb, 4), "0" if s == 0 else a))
        return out
    vFZ = 56
    def fz_issue(p):
        p("v_min_u32 v%d, 15, v1" % (vFZ + 2)); p("v_lshlrev_b32 v%d, 7, v%d" % (vFZ + 2, vFZ + 2))
        p("s_lshr_b32 s84, s%d, 6" % sCh); p("s_lshl_b32 s84, s84, 1"); p("s_and_b32 s83, s%d, 1" % sW); p("s_add_u32 s84, s84, s83")
        p("s_lshl_b32 s84, s84, 11"); p("s_add_u32 s84, s84, %d" % FL_FZ)
        poll_issue(p, vFZ, vFZ + 2, 84, "fz")
    def fz_check(p):
        p.wait_tag("fz"); poll_check(p, [vFZ], [vFZ + 2], [84])
    S_FZ, S_ZL, S_Y = OPT.get("s_fz", 14), OPT.get("s_zl", 20), OPT.get("s_y", 25)
    yl = rec(y_compute)
    third = (len(yl) + 2) // 3
    extras = {1: rec(ep_setup), 2: rec(ep_loads), S_FZ: rec(fz_issue), S_ZL: rec(z_loads),
              S_Y: yl[:third], S_Y + 1: yl[third:2 * third], S_Y + 2: yl[2 * third:]}
    for pos_, units_ in g2_units.items(): extras[pos_] = extras.get(pos_, []) + units_
    def step(s, ex):
        if s + 1 < NS and ORD[s + 1] < 12:
            p.wait_tag("w%d" % ORD[s + 1])
            for t in reads(s + 1): p(t)
        mf = mfmas(s)
        if OPT.get("x_nog2") and 8 <= s < 18: mf = ["s_nop 0"] * 4
        hl = h_loads(s + DH) if s + DH < NS else []
        if OPT.get("x_noh"): hl = []
        q4 = (len(ex) + 3) // 4
        for i in range(4):
            p(mf[i])
            if i == 2:
                for t in hl[0:2]: p(*t)
            if i == 3:
                for t in hl[2:3]: p(*t)
            emit(p, ex[i * q4:(i + 1) * q4])
    p.wait(lg=0)
    p("s_barrier")
    for s in range(S_ZL):
        if s in (0, 7, 13, 20): stamp(p, "g2_s%d" % s)
        step(s, extras.get(s, []))
        if s == DH:
            p.wait_tag("zst")
            z_publish(p, name)
    p.wait_tag("fz")
    p("v_cmp_ne_u32 vcc, s%d, v%d" % (sN, vFZ)); p("s_nop 4")
    p("s_cbranch_vccnz %s_zlate" % name)
    br = side_path_begin(p)
    for s in range(S_ZL, NS): step(s, extras.get(s, []))
    stamp(p, "g2_mma_done")
    g2_epilogue(p, name + "f", True)
    p("s_branch %s_fin" % name)
    p.label("%s_zlate" % name)
    side_path_end(p, br)
    for s in range(S_ZL, NS): step(s, [])
    g2_epilogue(p, name + "s", False)
    poll_issue(p, vFZ, vFZ + 2, 84, "fz2")
    p.wait(vm=0)
    poll_check(p, [vFZ], [vFZ + 2], [84])
    z_loads(p)
    y_compute(p)
    for r_ in range(16):
        p("v_add_f32 v%d, v%d, v%d" % (vY + r_, vY + r_, vOWN + r_))
    g2_store(p)
    p.wait(vm=63)
    p.label("%s_fin" % name)

OUTPOL = ["", " sc1", " nt", " sc0 sc1"]
def g2_store(p):
    PK = 160
    for r_ in range(16):
        if r_ & 1: p("v_cvt_pk_bf16_f32 v%d, v%d, v%d" % (PK + (r_ >> 1), vY + r_ - 1, vY + r_))
        if r_ == 7: p("buffer_store_dwordx4 %s, v%d, s[%d:%d], s%d offen%s" % (vr(PK, 4), vOUT, OUT_, OUT_ + 3, sXO, OUTPOL[OPT.get("outpol", 0)]))
    p("buffer_store_dwordx4 %s, v%d, s[%d:%d], s%d offen offset:16%s" % (vr(PK + 4, 4), vOUT, OUT_, OUT_ + 3, sXO, OUTPOL[OPT.get("outpol", 0)]))
def g2_epilogue(p, name, have_y):
    ACC = 64
    st = side_path_begin(p)
    for w in range(4):
        if w < 3:
            p("s_cmp_eq_u32 s%d, %d" % (sW, w))
            p("s_cbranch_scc0 %s_rw%d" % (name, w + 1))
        side_path_end(p, st)
        p("s_nop 7"); p("s_nop 3")
        for rel in range(1, 4):
            q = w ^ rel
            for rq in range(4):
                p("ds_write_b128 v%d, %s offset:%d" % (vRED, vr(ACC + 16 * q + 4 * rq, 4), q * 12288 + (rel - 1) * 4096 + rq * 1024))
        for i in range(16): p("v_mov_b32 v%d, v%d" % (vOWN + i, ACC + 16 * w + i))
        if w < 3:
            p("s_branch %s_rwd" % name)
            p.label("%s_rw%d" % (name, w + 1))
    p.label("%s_rwd" % name)
    p("s_mul_i32 s%d, s%d, 12288" % (sT0, sW)); p("v_add_u32 v10, s%d, v%d" % (sT0, vRED))
    p.wait(lg=0)
    p("s_barrier")
    if have_y: stamp(p, "g2_red_bar")
    for sl in range(3):
        for rq in range(4):
            p("ds_read_b128 %s, v10 offset:%d" % (vr(ACC + 16 * sl + 4 * rq, 4), sl * 4096 + rq * 1024))
    for r_ in range(16):
        p("v_add_f32 v%d, v%d, v%d" % (vOWN + r_, vOWN + r_, ACC + r_))
        p("v_add_f32 v%d, v%d, v%d" % (ACC + 16 + r_, ACC + 16 + r_, ACC + 32 + r_))
    for r_ in range(16): p("v_add_f32 v%d, v%d, v%d" % (vOWN + r_, vOWN + r_, ACC + 16 + r_))
    if have_y:
        for r_ in range(16): p("v_add_f32 v%d, v%d, v%d" % (vY + r_, vY + r_, vOWN + r_))
        g2_store(p)

def flat(l): return [x for y in l for x in y]
def gen(name):
    p = Prog()
    prof_reset()
    p("s_cmp_ge_u32 s2, 256")
    p("s_cbranch_scc1 %s_end" % name)
    stamp(p, "rt0", True); stamp(p, "t0")
    p("s_memrealtime s[86:87]")
    load_kernargs(p)
    p("v_and_b32 v1, 63, v0"); p("v_lshrrev_b32 v2, 6, v0")
    p("s_and_b32 s%d, s2, 7" % sJ); p("s_lshr_b32 s%d, s2, 3" % sR)
    p("v_readfirstlane_b32 s%d, v2" % sW)
    p("v_mov_b32 v253, 0")
    KN = "parallel_sum__ssm_conv_h3__dense_activation_squared_relu__prompt_kernel"
    pend = list(p.lg); p.lg = []
    if OPT.get("codetouch", 3) == 3: code_touch(p, KN)
    if OPT.get("hoist", 0): tile_indices(p); g1_dma_setup(p); g1_lds_setup(p); g2_setup(p)
    p_addr(p)
    p("s_lshl_b32 s%d, s2, 2" % sT0); p("s_add_u32 s78, s%d, s%d" % (sT0, sW))
    p.lg = pend
    p("s_waitcnt lgkmcnt(0)")
    stamp(p, "karg")
    if OPT.get("codetouch", 3) == 1: code_touch(p, KN)
    p_loads(p)
    if OPT.get("codetouch", 3) == 2: code_touch(p, KN)
    if OPT.get("pagetouch", 0): page_touch(p)
    if not OPT.get("hoist", 0): tile_indices(p)
    tile_srds(p)
    touches_g1(p)
    srd(p, 92, P_DBG, 256)
    p("s_cmp_eq_u32 s78, %d" % (248 * 4))
    p("s_cbranch_scc0 %s_n0" % name)
    st = side_path_begin(p)
    p("v_mov_b32 v250, s86"); p("v_mov_b32 v251, 1")
    p("s_mov_b64 exec, 1")
    p("buffer_store_dwordx2 v[250:251], v253, s[92:95], 0 offen sc1")
    p("s_mov_b64 exec, -1")
    side_path_end(p, st)
    p.label("%s_n0" % name)
    after_loads = side_path_begin(p)
    p("s_cmp_ge_u32 s%d, 28" % sR)
    p("s_cbranch_scc1 %s_spare" % name)
    if not OPT.get("hoist", 0): g1_dma_setup(p)
    g1_rot_setup(p)
    for u in g1_dma_stage(0): emit(p, u)
    def common_srds(p):
        srd(p, FL_, P_WS, SZ_FLAG, WS_FLAG); srd(p, KVT_, P_WS, SZ_KVT, WS_KVT); srd(p, ST_, P_WS, SZ_ST, WS_ST); srd(p, CSP_, P_WS, SZ_CSP, WS_CSP)
    def b1_srd(p): srd(p, B1_, P_B1, F * 2)
    common_srds(p); b1_srd(p); g2_srd(p)
    if not OPT.get("hoist", 0): g1_lds_setup(p); g2_setup(p)
    stamp(p, "issued")
    KN = "parallel_sum__ssm_conv_h3__dense_activation_squared_relu__prompt_kernel"
    dm = g1_dma_stage(1) + g1_dma_stage(2)
    kv = rec(kv_compute)
    k = 0
    for i, it in enumerate(kv):
        emit(p, [it])
        while k < 16 and k * len(kv) < (i + 1) * 16: emit(p, dm[k]); k += 1
    while k < 16: emit(p, dm[k]); k += 1
    if OPT["touch"] == 2: touches_g1_late(p)
    stamp(p, "kv_done")
    none = lambda p: None
    lg0 = lambda p: p.wait(lg=0)
    def pre4(p):
        nonce_check(p); fk_publish(p, "g1")
    def b1_load(p):
        p("v_and_b32 v14, 127, v0"); p("v_lshlrev_b32 v14, 1, v14"); p("s_lshl_b32 s84, s%d, 8" % sFT)
        p("buffer_load_ushort v%d, v14, s[%d:%d], s84 offen" % (vB1, B1_, B1_ + 3), "tab")
    def tab_done(p):
        p.wait_tag("tab"); tab_check(p); tab_partial(p)
    def tab_final(p):
        p("v_and_b32 v10, 127, v0"); p("v_lshlrev_b32 v10, 2, v10"); p("v_add_u32 v11, %d, v10" % CSQ_LDS); p("v_add_u32 v10, %d, v10" % TAB_LDS)
        for i in range(4): p("ds_read_b32 v%d, v11 offset:%d" % (20 + i, i * 512))
        p("v_lshlrev_b32 v%d, 16, v%d" % (vB1, vB1))
        p("v_add_f32 v20, v20, v21"); p("v_add_f32 v22, v22, v23"); p("v_add_f32 v20, v20, v22")
        p("ds_write_b32 v10, v20"); p("ds_write_b32 v10, v%d offset:512" % vB1)
    def fk_issue(p):
        fk_addr(p, True); poll_issue(p, vPK, vPA, 85, "fk")
    def fk_check(p):
        p.wait_tag("fk"); poll_check(p, [vPK], [vPA], [85])
    A = [w2_dma(12 + i, i) for i in range(12)]
    B1 = [w2_dma(24 + i, i) for i in range(4)]
    B2 = [w2_dma(4 + i, 4 + i) for i in range(8)]
    C = [w2_dma(i, i) for i in range(4)]
    SCH = {1: dict(s5=A[0:4], s6=A[4:8], s7=A[8:12], epi=[], c1=B1 + B2[0:2], c2=B2[2:8], c3=[], fin=C, g2={}),
           2: dict(s5=A[0:2], s6=A[2:4], s7=A[4:6], epi=A[6:12], c1=B1, c2=B2[0:4], c3=B2[4:8], fin=[], g2={0: C[0], 3: C[1], 5: C[2], 7: C[3]}),
           3: dict(s5=A[0:3], s6=A[3:6], s7=A[6:9], epi=A[9:12], c1=B1 + B2[0:1], c2=B2[1:5], c3=B2[5:8], fin=C[0:2], g2={0: C[2], 3: C[3]}),
           4: dict(s5=A[0:4], s6=A[4:8], s7=A[8:12], epi=[], c1=B1, c2=B2[0:4], c3=B2[4:8], fin=[], g2={0: C[0], 3: C[1], 5: C[2], 7: C[3]}),
           }[OPT.get("sch", 1)]
    def late(p_items): return [p_items]
    fill = {0: (lg0, none, rec(kv_stores) + rec(nonce_issue)),
            1: (none, none, rec(w2_touch) if OPT["w2touch"] == 1 else []),
            2: (none, none, rec(conv_setup)),
            3: (lambda p: p.wait_tag("nonce"), pre4, []),
            4: (none, none, []),
            5: (none, none, rec(tab_loads) + rec(b1_load) + flat(SCH['s5'])),
            6: (none, none, rec(fk_issue) + flat(SCH['s6'][:len(SCH['s6']) // 2]) + [(tab_done, None)] + flat(SCH['s6'][len(SCH['s6']) // 2:])),
            7: (lg0, none, rec(tab_final) + flat(SCH['s7'][:len(SCH['s7']) // 2]) + [(fk_check, None)] + rec(conv_loads_regs) + flat(SCH['s7'][len(SCH['s7']) // 2:]))}
    if OPT.get("g2map", 0):
        np_ = OPT.get("th_parts", 2); t0_ = OPT.get("th_stage", 0)
        for i_ in range(np_):
            a_, b_, c_ = fill[t0_ + i_][:3]
            fill[t0_ + i_] = (a_, b_, c_, rec(w2_touch_half, i_, np_))
    elif OPT["w2touch"] == 6:
        np_ = OPT.get("ta_parts", 2); t0_ = OPT.get("ta_stage", 0); tb_ = OPT.get("tb_stage", 5)
        for i_ in range(np_):
            a_, b_, c_ = fill[t0_ + i_][:3]
            fill[t0_ + i_] = (a_, b_, c_, rec(w2_touch_a, i_, np_))
        a_, b_, c_ = fill[tb_][:3]
        fill[tb_] = (a_, b_, c_, (fill[tb_][3] if len(fill[tb_]) > 3 else []) + rec(w2_touch_b))
    elif OPT.get("plan", 1) == 2:
        ts = OPT.get("tstage", 5)
        fill[5] = (none, none, rec(tab_loads) + rec(b1_load) + rec(fk_issue))
        fill[6] = (none, none, [(tab_done, None)])
        fill[7] = (lg0, none, rec(tab_final) + [(fk_check, None)] + rec(conv_loads_regs))
        a_, b_, c_ = fill[ts]
        fill[ts] = (a_, b_, c_, rec(w2_touch))
    elif OPT["w2touch"] == 4:
        for st_ in range(7):
            a_, b_, c_ = fill[st_]
            fill[st_] = (a_, b_, c_, rec(w2_touch_part, st_))
    if OPT["w2touch"] == 5 and OPT.get("plan", 1) == 1 and not OPT.get("g2map", 0):
        for st_, (k_, n_) in enumerate(((0, 32), (2, 32), (4, 48))):
            a_, b_, c_ = fill[st_]
            fill[st_] = (a_, b_, c_, rec(w2_touch_part, k_, n_))
    if OPT.get("ssmtouch", 3):
        st_ = OPT.get("ssmtouch", 3)
        f_ = fill[st_]
        fill[st_] = (f_[0], f_[1], f_[2], (f_[3] if len(f_) > 3 else []) + rec(ssm_touch))
    g1_main(p, fill)
    stamp(p, "g1_mfma_end")
    p.wait(lg=0)
    p("s_barrier")
    conv_loads_lds(p)
    stamp(p, "g1_mma_done")
    FE = OPT.get("fill_epi", 1)
    epi_x = flat(SCH['epi'])
    if FE: epi_x = interleave(rec(conv_fill), epi_x, len(epi_x) / float(len(rec(conv_fill)))) if epi_x else rec(conv_fill)
    g1_epilogue(p, epi_x)
    p.wait_tag("cv")
    p.label("%s_cfill" % name)
    stamp(p, "g1_epi_done")
    g2_setup_tr(p)
    early = OPT.get("early_stash", 0)
    if early:
        p.wait_tag("w23")
        for t in flat([stash_reads(12 + i, i) for i in range(12)]): p(*t)
        B = flat([w2_dma(24 + i, i) for i in range(4)] + [w2_dma(4 + i, 4 + i) for i in range(8)])
        cf = rec(conv_fill)
        p.wait(lg=0)
        k = 0
        for i, it in enumerate(cf):
            emit(p, [it])
            while k < len(B) and k * len(cf) < (i + 1) * len(B): emit(p, [B[k]]); k += 1
    elif not FE:
        conv_fill(p)
    def c0(p):
        if not early: p.wait_tag("w17")
    def c1(p):
        p.wait_tag("hst")
        if not early: p.wait_tag("w23")
        p("s_cmp_ge_u32 s%d, 28" % sR)
        p("s_cbranch_scc1 %s_nohp" % name)
        st = side_path_begin(p)
        h_publish(p)
        side_path_end(p, st)
        p.label("%s_nohp" % name)
        if not early: p.wait(lg=0)
        stamp(p, "h_pub")
    def c2(p):
        if not early: p.wait(lg=0)
        else: p.wait_tag("w27")
    def c3(p):
        p.wait(lg=0)
        if not early: p.wait_tag("w27")
    if early:
        f0, f1 = [], []
        f2 = flat([stash_reads(24 + i, i) for i in range(4)])
        f3 = flat([w2_dma(i, i) for i in range(4)]) + rec(fh_poll_issue)
    else:
        f0 = flat([stash_reads(12 + i, i) for i in range(6)])
        f1 = interleave(flat([stash_reads(18 + i, 6 + i) for i in range(6)]), flat(SCH['c1']), len(SCH['c1']) / 24.0)
        f2 = flat(SCH['c2'])
        sr_ = flat([stash_reads(24 + i, i) for i in range(4)])
        if OPT.get("fh_early", 0):
            k_ = OPT["fh_early"]
            f3 = sr_[:k_] + rec(fh_poll_issue) + sr_[k_:]
        else:
            f3 = sr_ + rec(fh_poll_issue)
        if SCH['c3']: f3 = interleave(f3, flat(SCH['c3']), len(SCH['c3']) / float(len(f3)))
        if OPT.get("fin_pre", 1): f2 = f2 + rec(conv_finish_addr)
    conv_main(p, [(c0, f0), (c1, f1), (c2, f2), (c3, f3)])
    if not early:
        p.wait(lg=0)
        for u in flat(SCH['fin']): emit(p, u)
    g2_h_start(p)
    conv_finish(p, name, [t for s_ in range(OPT.get("h_first", 2), OPT["depth_h"]) for t in h_loads(s_)])
    stamp(p, "conv_done")
    if OPT["htouch"] == 1: h_touch(p)
    z_stores(p)
    if OPT["htouch"] == 2: h_touch(p)
    g2_main(p, name, {k_: [v_[0]] for k_, v_ in SCH['g2'].items()})
    stamp(p, "end")
    if common.PROF: p.wait(vm=0)
    stamp(p, "end_acked"); stamp(p, "rt1", True)
    prof_flush(p, sW)
    p("s_endpgm")
    p.label("%s_spare" % name)
    side_path_end(p, after_loads)
    sp_loads(p)
    if OPT["touch"] == 2: touches_g1_late(p)
    common_srds(p)
    kv_compute(p, 192, 200)
    p.wait(lg=0)
    p("s_barrier")
    kv_stores(p)
    nonce_issue(p)
    sp_stats(p)
    p.wait_tag("nonce"); nonce_check(p)
    sp_stats_store(p)
    sp_cs(p)
    p.wait(lg=0)
    p.wait_tag("kst")
    p("s_barrier")
    fk_publish(p, "sp")
    sp_cs_store(p)
    p.wait(lg=0)
    p("s_barrier")
    g2_srd(p)
    if not OPT.get("hoist", 0): g2_setup(p)
    if OPT.get("g2map", 0): w2_touch_half(p, 0, 1)
    elif OPT["w2touch"] == 6: w2_touch_a(p, 0, 1); w2_touch_b(p)
    elif OPT["w2touch"]: w2_touch(p)
    for u in flat(A): emit(p, u)
    conv_setup(p)
    fk_addr(p, True)
    poll_issue(p, vPK, vPA, 85, "poll")
    p.wait(vm=0, lg=0)
    poll_check(p, [vPK], [vPA], [85])
    conv_loads_regs(p)
    conv_loads_lds(p)
    p.wait(vm=0)
    if FE: conv_fill(p)
    p("s_branch %s_cfill" % name)
    p.label("%s_end" % name)
    p("s_endpgm")
    return p.text(), 512, 256
```

```python
from common import *
import common
from fused import (sN, sJ, sR, sW, sT0, sT1, sT2, sT3, FL_, unpack, flag_store, poll_issue, poll_check,
                   side_path_begin, side_path_end, nonce_issue, nonce_check, _uid)
OPT = dict(touch=0, htouch=0, nt=0, ntkv=0, depth_h=6, w2touch=5, s_fz=17, s_zl=21, g2map=1, th_stage=1)
def nt(): return " nt" if OPT["nt"] else ""
def ntkv(): return " nt" if (OPT["nt"] or OPT["ntkv"]) else ""

class Rec:
    def __init__(self): self.items = []; self.grp = None
    def __call__(self, txt, tag=None): (self.grp if self.grp is not None else self.items).append((txt, tag))
    def call(self, fn): (self.grp if self.grp is not None else self.items).append((fn, None))
    def wait(self, vm=None, lg=None): self.call(lambda p: p.wait(vm, lg))
    def wait_tag(self, tag): self.call(lambda p: p.wait_tag(tag))
    def begin(self): self.grp = []
    def end(self): self.items.append(self.grp); self.grp = None
def begin(p):
    if isinstance(p, Rec): p.begin()
def end(p):
    if isinstance(p, Rec): p.end()
def emit(p, items):
    for it in items:
        if isinstance(it, list): emit(p, it)
        elif callable(it[0]): it[0](p)
        else: p(it[0], it[1])
_srd0 = srd
def srd(p, dst, ptr, size, off=0):
    begin(p); _srd0(p, dst, ptr, size, off); end(p)
def rec(fn, *a):
    r = Rec(); fn(r, *a); return r.items

P_LDS, SK_LDS = 131072, 139264
TAB_LDS, CSQ_LDS = 157440, 158464
CV0 = 98304
RB_LDS = CV0 + 256 + 2 * 21248
XT, ZTT, RED = 98304, 106496, 114688
sROW, sRB, sFT = 72, 73, 74
sXo, sWo, sM = 80, 81, 82
sCH, sC2, sCB = 86, 87, 88
sTok, sCh, sHo = 89, 90, 91
sWA, sM2, sXO = 3, 17, 6
K_, V_, SK_, GQ_, GW1_ = 40, 44, 48, 52, 56
KVT_, ST_, CSP_ = 60, 64, 68

KR, VR, SKR, XR, CR = 16, 36, 44, 128, 136
vC, vRR = 3, 4
def p_addr(p):
    vA = 5
    p("v_and_b32 v11, 31, v1"); p("v_lshlrev_b32 v11, 4, v11")
    p("v_and_b32 v%d, 7, v1" % vC); p("v_lshrrev_b32 v%d, 3, v1" % vRR)
    p("s_lshl_b32 s%d, s%d, 6" % (sT0, sR)); p("s_lshl_b32 s%d, s%d, 4" % (sT1, sW))
    p("s_add_u32 s%d, s%d, s%d" % (sT0, sT0, sT1)); p("s_lshl_b32 s%d, s%d, 10" % (sT0, sT0))
    p("s_lshl_b32 s%d, s%d, 7" % (sT1, sJ)); p("s_add_u32 s%d, s%d, s%d" % (sT0, sT0, sT1))
    p("v_lshlrev_b32 v%d, 11, v%d" % (vA, vRR)); p("v_lshl_add_u32 v%d, v%d, 4, v%d" % (vA, vC, vA))
    p("v_add_u32 v%d, s%d, v%d" % (vA, sT0, vA))
    for i in range(5): p("v_add_u32 v%d, %d, v%d" % (6 + i, (i - 3) * 1024, vA))
    p("s_lshl_b32 s%d, s%d, 9" % (sT3, sJ))
def p_loads(p):
    vA = 5
    srd(p, K_, P_K, S * D * 2)
    for i in range(5): p("buffer_load_dwordx4 %s, v%d, s[%d:%d], 0 offen%s" % (vr(KR + 4 * i, 4), 6 + i, K_, K_ + 3, ntkv()))
    srd(p, V_, P_V, S * D * 2)
    p("buffer_load_dwordx4 %s, v%d, s[%d:%d], 0 offen%s" % (vr(VR, 4), vA, V_, V_ + 3, ntkv()))
    p("buffer_load_dwordx4 %s, v%d, s[%d:%d], 0 offen offset:1024%s" % (vr(VR + 4, 4), vA, V_, V_ + 3, ntkv()))
    srd(p, SK_, P_SK, D * 8)
    p("buffer_load_dwordx4 %s, v11, s[%d:%d], s%d offen" % (vr(SKR, 4), SK_, SK_ + 3, sT3))

def tile_srds(p):
    srd(p, GQ_, P_Q, S * D * 2); srd(p, GW1_, P_W1, D * F * 2)
def tile_indices(p):
    p("s_mul_i32 s%d, s%d, 37" % (sT0, sR)); p("s_lshr_b32 s%d, s%d, 8" % (sT0, sT0))
    p("s_mul_i32 s%d, s%d, 7" % (sT1, sT0)); p("s_sub_u32 s%d, s%d, s%d" % (sT1, sR, sT1))
    p("s_lshr_b32 s%d, s%d, 1" % (sT2, sJ)); p("s_lshl_b32 s%d, s%d, 2" % (sT2, sT2))
    p("s_add_u32 s%d, s%d, s%d" % (sRB, sT2, sT0))
    p("s_and_b32 s%d, s%d, 1" % (sT2, sJ)); p("s_mul_i32 s%d, s%d, 7" % (sT2, sT2))
    p("s_add_u32 s%d, s%d, s%d" % (sFT, sT2, sT1))

def touches_g1(p):
    if OPT["touch"] != 1: return
    p("s_lshl_b32 s%d, s%d, 2" % (sT2, sR)); p("s_add_u32 s%d, s%d, s%d" % (sT2, sT2, sW))
    p("v_lshlrev_b32 v9, 7, v1")
    p("s_lshr_b32 s%d, s%d, 1" % (sT0, sJ)); p("s_lshl_b32 s%d, s%d, 19" % (sT0, sT0))
    p("s_lshl_b32 s%d, s%d, 12" % (sT1, sT2)); p("s_add_u32 s%d, s%d, s%d" % (sT0, sT0, sT1))
    p("s_mov_b32 exec_hi, 0")
    p("buffer_load_dword v188, v9, s[%d:%d], s%d offen%s" % (GQ_, GQ_ + 3, sT0, nt()), "touch")
    p("s_mov_b64 exec, -1")
    p("v_mul_u32_u24 v10, 4682, v1"); p("v_lshrrev_b32 v10, 16, v10")
    p("v_mul_u32_u24 v11, 14, v10"); p("v_sub_u32 v11, v1, v11")
    p("v_mul_u32_u24 v10, 3584, v10"); p("v_lshl_add_u32 v10, v11, 7, v10")
    p("s_mul_i32 s%d, s%d, %d" % (sT0, sT2, 4 * 3584)); p("s_and_b32 s%d, s%d, 1" % (sT1, sJ))
    p("s_mul_i32 s%d, s%d, 1792" % (sT1, sT1)); p("s_add_u32 s%d, s%d, s%d" % (sT0, sT0, sT1))
    p("s_mov_b32 exec_hi, 0x00ffffff")
    p("buffer_load_dword v189, v10, s[%d:%d], s%d offen%s" % (GW1_, GW1_ + 3, sT0, nt()), "touch")
    p("s_mov_b64 exec, -1")

def touches_g1_late(p):
    p("s_lshl_b32 s83, s%d, 2" % sR); p("s_add_u32 s83, s83, s%d" % sW)
    p("v_mul_u32_u24 v8, 13108, v1"); p("v_lshrrev_b32 v8, 16, v8")
    p("v_mul_u32_u24 v9, 5, v8"); p("v_sub_u32 v9, v1, v9"); p("v_add_u32 v9, 3, v9")
    p("v_lshlrev_b32 v8, 10, v8"); p("v_lshl_add_u32 v8, v9, 7, v8")
    p("s_lshr_b32 s84, s%d, 1" % sJ); p("s_lshl_b32 s84, s84, 19"); p("s_lshl_b32 s75, s83, 12"); p("s_add_u32 s84, s84, s75")
    begin(p)
    p("s_mov_b64 exec, 0xfffff")
    p("buffer_load_dword v188, v8, s[%d:%d], s84 offen" % (GQ_, GQ_ + 3), "touch")
    p("s_mov_b64 exec, -1")
    end(p)
    p("s_mul_i32 s83, s83, 35"); p("v_add_u32 v8, s83, v1")
    p("v_mul_u32_u24 v9, 4682, v8"); p("v_lshrrev_b32 v9, 16, v9")
    p("v_mul_u32_u24 v10, 14, v9"); p("v_sub_u32 v10, v8, v10")
    p("v_add_u32 v9, 192, v9"); p("v_mul_u32_u24 v9, 3584, v9"); p("v_lshl_add_u32 v9, v10, 7, v9")
    p("s_and_b32 s84, s%d, 1" % sJ); p("s_mul_i32 s84, s84, 1792")
    begin(p)
    p("s_mov_b32 exec_hi, 0x7")
    p("buffer_load_dword v189, v9, s[%d:%d], s84 offen" % (GW1_, GW1_ + 3), "touch")
    p("s_mov_b64 exec, -1")
    end(p)
assert all((L * 4682) >> 16 == L // 14 for L in range(0, 1200)), "check"
def page_touch(p):
    mode = OPT.get("pagetouch", 0)
    p("v_lshlrev_b32 v14, 20, v1")
    srd_plain = lambda ptr, size: (p("s_mov_b32 s8, s%d" % ptr), p("s_mov_b32 s9, s%d" % (ptr + 1)), p("s_mov_b32 s10, 0x%x" % size), p("s_mov_b32 s11, 0x20000"))
    def t(ptr, size, mask, dst):
        srd_plain(ptr, size)
        p("s_mov_b64 exec, 0x%x" % mask)
        p("buffer_load_dword v%d, v14, s[8:11], 0 offen" % dst, "paget")
        p("s_mov_b64 exec, -1")
    t(P_WS, 0xF00000, 0x7fff, 187)
    if mode in (2, 3): t(P_OUT, S * D * 2, 3, 185)
    if mode in (3, 4):
        t(P_SSM, D * S * 2, 3, 181); t(P_W2, F * D * 2, 3, 182); t(P_B1, F * 2, 1, 183); t(P_B2, D * 2, 1, 184); t(P_DD, D * 2, 1, 188)
def w2_touch(p):
    p("v_lshlrev_b32 v9, 7, v1")
    p("s_lshl_b32 s83, s%d, 2" % sR); p("s_add_u32 s83, s83, s%d" % sW); p("s_mul_i32 s83, s83, 14336")
    p("buffer_load_dword v190, v9, s[8:11], s83 offen", "touch2")
    p("s_add_u32 s83, s83, 8192")
    begin(p)
    p("s_mov_b32 exec_hi, 0xffff")
    p("buffer_load_dword v191, v9, s[8:11], s83 offen", "touch2")
    p("s_mov_b64 exec, -1")
    end(p)

def ssm_touch(p):
    p("v_lshlrev_b32 v9, 7, v1")
    p("s_lshl_b32 s83, s%d, 6" % sJ); p("s_lshl_b32 s84, s%d, 1" % sR); p("s_add_u32 s83, s83, s84"); p("s_lshl_b32 s83, s83, 12")
    p("s_lshl_b32 s84, s%d, 11" % sW); p("s_add_u32 s83, s83, s84")
    begin(p)
    p("s_mov_b64 exec, 0xffff")
    p("buffer_load_dword v191, v9, s[%d:%d], s83 offen%s" % (SSM_, SSM_ + 3, ntkv()), "touch4")
    p("s_mov_b64 exec, -1")
    end(p)
def w2_touch_part(p, k, n=16):
    p("v_lshlrev_b32 v9, 7, v1")
    p("s_lshl_b32 s83, s%d, 2" % sR); p("s_add_u32 s83, s83, s%d" % sW); p("s_mul_i32 s83, s83, 14336")
    if k: p("s_add_u32 s83, s83, %d" % (k * 16 * 128))
    begin(p)
    p("s_mov_b64 exec, 0x%x" % ((1 << n) - 1)) if n <= 16 else (p("s_mov_b32 exec_lo, 0x%x" % (((1 << min(n, 32)) - 1) & 0xffffffff)), p("s_mov_b32 exec_hi, 0x%x" % ((1 << max(n - 32, 0)) - 1)))
    p("buffer_load_dword v%d, v9, s[8:11], s83 offen%s" % ((186, 187, 190, 191)[k & 3], " nt" if OPT.get("ntw2") else ""), "touch2")
    p("s_mov_b64 exec, -1")
    end(p)
def w2_touch_half(p, part, nparts):
    n = 56 // nparts
    p("v_lshrrev_b32 v8, 2, v1"); p("v_and_b32 v9, 3, v1"); p("v_lshlrev_b32 v9, 7, v9"); p("v_lshl_add_u32 v9, v8, 10, v9")
    p("s_lshl_b32 s83, s%d, 2" % sR); p("s_add_u32 s83, s83, s%d" % sW); p("s_mul_i32 s83, s83, 14336")
    p("s_and_b32 s84, s%d, 1" % sJ); p("s_lshl_b32 s84, s84, 9"); p("s_add_u32 s83, s83, s84")
    if part: p("s_add_u32 s83, s83, %d" % (part * (n // 4) * 1024))
    begin(p)
    p("s_mov_b32 exec_lo, 0x%x" % (((1 << min(n, 32)) - 1) & 0xffffffff)); p("s_mov_b32 exec_hi, 0x%x" % ((1 << max(n - 32, 0)) - 1))
    p("buffer_load_dword v%d, v9, s[8:11], s83 offen" % (186 + (part & 1)), "touch2")
    p("s_mov_b64 exec, -1")
    end(p)
def w2_touch_a(p, part, nparts):
    n = 48 // nparts
    p("s_lshl_b32 s83, s%d, 2" % sR); p("s_add_u32 s83, s83, s%d" % sW)
    p("s_lshr_b32 s84, s83, 5"); p("s_mul_i32 s84, s84, 448"); p("s_and_b32 s83, s83, 31"); p("s_mul_i32 s83, s83, 6")
    p("s_add_u32 s83, s83, s84"); p("s_add_u32 s83, s83, 192"); p("s_lshl_b32 s83, s83, 10")
    if part: p("s_add_u32 s83, s83, %d" % (part * n * 128))
    p("v_lshlrev_b32 v9, 7, v1")
    begin(p)
    if n <= 32: p("s_mov_b64 exec, 0x%x" % ((1 << n) - 1)) if n <= 16 else (p("s_mov_b32 exec_lo, 0x%x" % ((1 << n) - 1)), p("s_mov_b32 exec_hi, 0"))
    else: p("s_mov_b32 exec_hi, 0x%x" % ((1 << (n - 32)) - 1))
    p("buffer_load_dword v%d, v9, s[8:11], s83 offen" % (186 + (part & 1)), "touch2")
    p("s_mov_b64 exec, -1")
    end(p)
def w2_touch_b(p):
    p("s_lshl_b32 s83, s%d, 2" % sR); p("s_add_u32 s83, s83, s%d" % sW)
    p("s_lshr_b32 s84, s83, 5"); p("s_mul_i32 s84, s84, 448"); p("s_and_b32 s83, s83, 31")
    begin(p); p("s_cmp_ge_u32 s83, 24"); p("s_cselect_b32 s75, 192, 0"); end(p)
    p("s_lshl_b32 s83, s83, 3"); p("s_add_u32 s83, s83, s75"); p("s_add_u32 s83, s83, s84"); p("s_lshl_b32 s83, s83, 10")
    p("v_lshlrev_b32 v9, 7, v1")
    p("buffer_load_dword v190, v9, s[8:11], s83 offen", "touch2")
def code_touch(p, kname):
    _uid[0] += 1; u = _uid[0]
    begin(p)
    p("s_getpc_b64 s[76:77]")
    p("Lct%d:" % u)
    p("s_sub_u32 s76, s76, Lct%d-%s" % (u, kname))
    p("s_subb_u32 s77, s77, 0")
    end(p)
    p("s_lshl_b32 s83, s%d, 2" % sR); p("s_add_u32 s83, s83, s%d" % sW)
    p("v_lshlrev_b32 v14, 7, v1"); p("v_add_u32 v14, s83, v14")
    p("v_lshlrev_b32 v14, 7, v14")
    p("v_min_u32 v14, %s_end-%s-4, v14" % (kname_end[0], kname))
    begin(p)
    p("v_mov_b32 v15, s77"); p("v_add_co_u32 v14, vcc, s76, v14"); p("s_nop 1"); p("v_addc_co_u32 v15, vcc, 0, v15, vcc")
    p("s_mov_b64 exec, 7")
    p("global_load_dword v186, v[14:15], off", "codet")
    p("s_mov_b64 exec, -1")
    end(p)
kname_end = ["fz"]

vKL, vKG0, vKG1 = 24, 25, 26
def kv_compute(p, RES=100, A=108):
    p("s_lshl_b32 s%d, s%d, 9" % (sT0, sW)); p("s_add_u32 s%d, s%d, %d" % (sT0, sT0, SK_LDS))
    p("v_and_b32 v11, 31, v1"); p("v_lshlrev_b32 v11, 4, v11"); p("v_add_u32 v11, s%d, v11" % sT0)
    p("v_lshlrev_b32 v2, 6, v%d" % vC); p("v_add_u32 v2, s%d, v2" % sT0)
    p("ds_write_b128 v11, %s" % vr(SKR, 4))
    p("s_lshl_b32 s%d, s%d, 3" % (sT0, sW)); p("s_sub_u32 s%d, 31, s%d" % (sT0, sT0))
    p("v_sub_u32 v15, s%d, v%d" % (sT0, vRR))
    p("v_lshrrev_b32 v6, 2, v15"); p("v_xor_b32 v6, v6, v%d" % vC)
    p("v_and_b32 v15, 3, v15"); p("v_lshlrev_b32 v15, 2, v15")
    p("v_lshl_add_u32 v15, v6, 4, v15"); p("v_lshl_add_u32 v15, v%d, 10, v15" % vC)
    p("v_add_u32 v15, %d, v15" % P_LDS)
    p.wait(lg=0)
    for i in range(4): p("ds_read_b128 %s, v2 offset:%d" % (vr(SKR + 4 * i, 4), 16 * i))
    p("s_mov_b32 s76, 0x05040100"); p("s_mov_b32 s77, 0x07060302")
    for e in range(8 if not OPT.get("x_nokv") else 1):
        dw, hf = e >> 1, e & 1
        sel = 76 + hf
        K = lambda i: KR + 4 * i + dw
        a = A + 8 * (e & 1)
        p("v_perm_b32 v%d, v%d, v%d, s%d" % (a + 0, K(2), K(3), sel))
        p("v_perm_b32 v%d, v%d, v%d, s%d" % (a + 1, K(0), K(1), sel))
        p("v_perm_b32 v%d, v%d, v%d, s%d" % (a + 2, K(3), K(4), sel))
        p("v_perm_b32 v%d, v%d, v%d, s%d" % (a + 3, K(1), K(2), sel))
        p("v_dot2_f32_bf16 v%d, v%d, v%d, 0" % (a + 4, a + 0, SKR + 2 * e))
        p("v_dot2_f32_bf16 v%d, v%d, v%d, 0" % (a + 5, a + 2, SKR + 2 * e))
        unpack(p, a + 6, VR + dw, hf); unpack(p, a + 7, VR + 4 + dw, hf)
        p("v_dot2_f32_bf16 v%d, v%d, v%d, v%d" % (a + 4, a + 1, SKR + 2 * e + 1, a + 4))
        p("v_dot2_f32_bf16 v%d, v%d, v%d, v%d" % (a + 5, a + 3, SKR + 2 * e + 1, a + 5))
        if e > 0:
            b = A + 8 * ((e - 1) & 1)
            p("v_mul_f32 v%d, v%d, v%d" % (b + 4, b + 4, b + 6)); p("v_mul_f32 v%d, v%d, v%d" % (b + 5, b + 5, b + 7))
            p("v_cvt_pk_bf16_f32 v%d, v%d, v%d" % (RES + e - 1, b + 5, b + 4))
            p("ds_write_b32 v15, v%d offset:%d" % (RES + e - 1, (e - 1) * 128))
    b = A + 8
    p("s_lshl_b32 s%d, s%d, 4" % (sT0, sW)); p("v_add_u32 v6, s%d, v%d" % (sT0, vRR))
    p("v_mul_f32 v%d, v%d, v%d" % (b + 4, b + 4, b + 6)); p("v_mul_f32 v%d, v%d, v%d" % (b + 5, b + 5, b + 7))
    p("v_cvt_pk_bf16_f32 v%d, v%d, v%d" % (RES + 7, b + 5, b + 4))
    p("ds_write_b32 v15, v%d offset:%d" % (RES + 7, 7 * 128))
    p("v_lshlrev_b32 v7, 7, v6"); p("v_lshl_add_u32 v7, v%d, 4, v7" % vC); p("v_add_u32 v%d, %d, v7" % (vKL, P_LDS))
    p("v_lshlrev_b32 v8, 12, v6"); p("s_lshl_b32 s%d, s%d, 1" % (sT1, sW))
    p("v_xor_b32 v9, s%d, v%d" % (sT1, vC)); p("v_lshl_add_u32 v%d, v9, 4, v8" % vKG0)
    p("s_add_u32 s%d, s%d, 1" % (sT1, sT1))
    p("v_xor_b32 v10, s%d, v%d" % (sT1, vC)); p("v_lshl_add_u32 v10, v10, 4, v8"); p("v_add_u32 v%d, 0x8000, v10" % vKG1)
def kv_stores(p):
    p("ds_read_b128 v[16:19], v%d" % vKL); p("ds_read_b128 v[20:23], v%d offset:1024" % vKL)
    p("s_lshl_b32 s83, s%d, 18" % sJ); p("s_lshl_b32 s84, s%d, 7" % sR)
    p("s_sub_u32 s83, s83, s84"); p("s_add_u32 s83, s83, 3968")
    p("buffer_store_dwordx4 v[16:19], v%d, s[%d:%d], s83 offen sc1" % (vKG0, KVT_, KVT_ + 3), "kst")
    p("buffer_store_dwordx4 v[20:23], v%d, s[%d:%d], s83 offen sc1" % (vKG1, KVT_, KVT_ + 3), "kst")

SX, SC_ = 128, 64
def sp_loads(p):
    p("s_sub_u32 s72, s%d, 28" % sR)
    p("s_lshr_b32 s%d, s%d, 1" % (sT0, sJ)); p("s_lshl_b32 s%d, s%d, 9" % (sT0, sT0))
    p("s_and_b32 s%d, s%d, 1" % (sT1, sJ)); p("s_lshl_b32 s%d, s%d, 2" % (sT1, sT1)); p("s_add_u32 s%d, s%d, s72" % (sT1, sT1))
    p("s_lshl_b32 s%d, s%d, 6" % (sT1, sT1)); p("s_add_u32 s%d, s%d, s%d" % (sT0, sT0, sT1))
    p("s_lshl_b32 s%d, s%d, 4" % (sT1, sW)); p("s_add_u32 s73, s%d, s%d" % (sT0, sT1))
    p("s_lshl_b32 s%d, s73, 10" % sT0)
    p("v_lshrrev_b32 v10, 3, v1"); p("v_and_b32 v11, 7, v1"); p("v_lshlrev_b32 v11, 4, v11"); p("v_lshl_add_u32 v10, v10, 10, v11")
    for g in range(2):
        for i in range(8):
            p("buffer_load_dwordx4 %s, v10, s[%d:%d], s%d offen offset:%d" % (vr(SX + 32 * g + 4 * i, 4), GQ_, GQ_ + 3, sT0, i * 128), "sx")
        if g == 0: p("s_add_u32 s%d, s%d, 8192" % (sT0, sT0))
    p("s_lshr_b32 s74, s%d, 1" % sJ); p("s_lshl_b32 s74, s74, 2"); p("s_add_u32 s74, s74, s72")
    p("s_lshl_b32 s%d, s74, 5" % sT0); p("s_lshl_b32 s%d, s%d, 3" % (sT1, sW)); p("s_add_u32 s%d, s%d, s%d" % (sT0, sT0, sT1))
    p("s_mul_i32 s%d, s%d, 3584" % (sT0, sT0)); p("s_and_b32 s%d, s%d, 1" % (sT1, sJ)); p("s_mul_i32 s%d, s%d, 1792" % (sT1, sT1))
    p("s_add_u32 s%d, s%d, s%d" % (sT0, sT0, sT1))
    p("v_lshlrev_b32 v12, 4, v1")
    for i in range(8):
        p("buffer_load_dwordx4 %s, v12, s[%d:%d], s%d offen" % (vr(SC_ + 8 * i, 4), GW1_, GW1_ + 3, sT0), "sc")
        p("buffer_load_dwordx4 %s, v12, s[%d:%d], s%d offen offset:1024" % (vr(SC_ + 8 * i + 4, 4), GW1_, GW1_ + 3, sT0), "sc")
        if i < 7: p("s_add_u32 s%d, s%d, 3584" % (sT0, sT0))
def sp_stats(p):
    T = 200
    p("s_mov_b32 s75, 0x3f803f80")
    for g in range(2):
        for h in range(2): p("v_mov_b32 v%d, 0" % (T + 4 * g + h)); p("v_mov_b32 v%d, 0" % (T + 8 + 2 * g + h))
    for i in range(8):
        for g in range(2):
            for d in range(4):
                r_ = SX + 32 * g + 4 * i + d
                aS, aQ = (T + 4 * g, T + 4 * g + 1) if d & 1 else (T + 8 + 2 * g, T + 9 + 2 * g)
                p("v_dot2_f32_bf16 v%d, v%d, s75, v%d" % (aS, r_, aS)); p("v_dot2_f32_bf16 v%d, v%d, v%d, v%d" % (aQ, r_, r_, aQ))
    for g in range(2):
        p("v_add_f32 v%d, v%d, v%d" % (T + 4 * g, T + 4 * g, T + 8 + 2 * g)); p("v_add_f32 v%d, v%d, v%d" % (T + 4 * g + 1, T + 4 * g + 1, T + 9 + 2 * g))
    for ctrl in ("quad_perm:[1,0,3,2] row_mask:0xf", "quad_perm:[2,3,0,1] row_mask:0xf", "row_half_mirror row_mask:0xf"):
        for q in (T, T + 1, T + 4, T + 5):
            p("v_add_f32_dpp v%d, v%d, v%d %s bank_mask:0xf" % (q, q, q, ctrl))
    for g in range(2):
        sS, sQ = T + 4 * g, T + 4 * g + 1
        p("v_mul_f32 v%d, 0x3b000000, v%d" % (sS, sS)); p("v_mul_f32 v%d, 0x3b000000, v%d" % (sQ, sQ))
    for g in range(2): p("v_fma_f32 v%d, -v%d, v%d, v%d" % (T + 4 * g + 1, T + 4 * g, T + 4 * g, T + 4 * g + 1))
    for g in range(2): p("v_max_f32 v%d, 0, v%d" % (T + 4 * g + 1, T + 4 * g + 1))
    for g in range(2): p("v_add_f32 v%d, 0x3727c5ac, v%d" % (T + 4 * g + 1, T + 4 * g + 1))
    for g in range(2): p("v_rsq_f32 v%d, v%d" % (T + 4 * g + 1, T + 4 * g + 1))
def sp_stats_store(p):
    T = 200
    for g in range(2): p("v_mov_b32 v%d, v%d" % (T + 4 * g + 2, T + 4 * g + 1))
    for q in (T + 1, T + 3, T + 5, T + 7): p("v_mov_b32 v%d, s%d" % (q, sN))
    p("v_lshrrev_b32 v10, 3, v1"); p("v_lshlrev_b32 v10, 4, v10")
    p("s_lshl_b32 s%d, s73, 4" % sT0)
    p("s_mov_b32 exec_lo, 0x01010101"); p("s_mov_b32 exec_hi, 0x01010101")
    p("buffer_store_dwordx4 %s, v10, s[%d:%d], s%d offen sc1" % (vr(T, 4), ST_, ST_ + 3, sT0), "pst")
    p("buffer_store_dwordx4 %s, v10, s[%d:%d], s%d offen offset:128 sc1" % (vr(T + 4, 4), ST_, ST_ + 3, sT0), "pst")
    p("s_mov_b64 exec, -1")
SPC_LDS = 0
def sp_cs(p):
    A = 216
    p("s_mov_b32 s76, 0x00003f80"); p("s_mov_b32 s77, 0x3f800000")
    for i in range(8):
        for part in range(2):
            for d in range(4):
                r_ = SC_ + 8 * i + 4 * part + d; a = A + 8 * part + 2 * d
                p("v_dot2_f32_bf16 v%d, v%d, s76, %s" % (a, r_, "0" if i == 0 else "v%d" % a))
                p("v_dot2_f32_bf16 v%d, v%d, s77, %s" % (a + 1, r_, "0" if i == 0 else "v%d" % (a + 1)))
    p("v_lshlrev_b32 v10, 5, v1"); p("s_lshl_b32 s%d, s%d, 12" % (sT0, sW)); p("v_add_u32 v10, s%d, v10" % sT0)
    for part in range(2):
        p("ds_write_b128 v10, %s offset:%d" % (vr(A + 8 * part, 4), SPC_LDS + part * 2048))
        p("ds_write_b128 v10, %s offset:%d" % (vr(A + 8 * part + 4, 4), SPC_LDS + part * 2048 + 16))
def sp_cs_store(p):
    p("v_lshlrev_b32 v10, 4, v0")
    for w in range(4): p("ds_read_b128 %s, v10 offset:%d" % (vr(64 + 4 * w, 4), SPC_LDS + w * 4096))
    for c in range(4):
        p("v_add_f32 v%d, v%d, v%d" % (64 + c, 64 + c, 68 + c)); p("v_add_f32 v%d, v%d, v%d" % (72 + c, 72 + c, 76 + c))
    for c in range(4): p("v_add_f32 v%d, v%d, v%d" % (80 + 2 * c, 64 + c, 72 + c)); p("v_mov_b32 v%d, s%d" % (81 + 2 * c, sN))
    p("s_mul_i32 s%d, s74, %d" % (sT0, 1792 * 8)); p("s_and_b32 s%d, s%d, 1" % (sT1, sJ)); p("s_mul_i32 s%d, s%d, %d" % (sT1, sT1, 896 * 8))
    p("s_add_u32 s%d, s%d, s%d" % (sT0, sT0, sT1))
    p("v_lshlrev_b32 v11, 5, v0")
    p("v_cmp_gt_u32 vcc, 224, v0"); p("s_nop 1"); p("v_cndmask_b32 v11, v253, v11, vcc"); p("v_mov_b32 v12, 0x7f000000")
    p("v_cndmask_b32 v11, v12, v11, vcc")
    p("buffer_store_dwordx4 v[80:83], v11, s[%d:%d], s%d offen sc1" % (CSP_, CSP_ + 3, sT0), "pst")
    p("buffer_store_dwordx4 v[84:87], v11, s[%d:%d], s%d offen offset:16 sc1" % (CSP_, CSP_ + 3, sT0), "pst")
def fk_publish(p, name):
    p("s_cmp_eq_u32 s%d, 0" % sW)
    p("s_cbranch_scc0 %s_nofk" % name)
    st = side_path_begin(p)
    p("s_lshl_b32 s%d, s%d, 5" % (sT0, sJ)); p("s_add_u32 s%d, s%d, s%d" % (sT0, sT0, sR))
    p("s_lshl_b32 s%d, s%d, 7" % (sT0, sT0))
    if FL_FK: p("s_add_u32 s%d, s%d, %d" % (sT0, sT0, FL_FK))
    flag_store(p, sT0)
    side_path_end(p, st)
    p.label("%s_nofk" % name)
vPK, vPA = 184, 185
def fk_addr(p, all_waves=False):
    p("v_min_u32 v%d, 31, v1" % vPA); p("v_lshlrev_b32 v%d, 7, v%d" % (vPA, vPA))
    if not all_waves:
        p("s_min_u32 s85, s%d, 1" % sW); p("s_sub_u32 s85, 1, s85"); p("v_mul_u32_u24 v%d, s85, v%d" % (vPA, vPA))
    p("s_lshl_b32 s85, s%d, 12" % sJ)
    if FL_FK: p("s_add_u32 s85, s85, %d" % FL_FK)

vX, vWd, vXA, vWA = 192, 196, 200, 208
G1_ACC = 64
vCS, vB1, vST = 128, 180, 212
B1_ = 40
def g1_dma_setup(p):
    p("v_lshrrev_b32 v10, 3, v1"); p("v_and_b32 v11, 7, v1"); p("v_lshrrev_b32 v12, 1, v10")
    for ii in range(4):
        p("v_add_u32 v13, %d, v12" % (4 * (ii & 1))); p("v_xor_b32 v13, v13, v11")
        p("v_lshlrev_b32 v13, 4, v13"); p("v_lshl_add_u32 v13, v10, 10, v13")
        p("v_add_u32 v%d, %d, v13" % (vX + ii, ii * 8192 - ii * 1024))
    p("v_lshrrev_b32 v10, 4, v1"); p("v_and_b32 v11, 15, v1"); p("v_lshlrev_b32 v12, 2, v10")
    p("v_xor_b32 v12, v12, v11"); p("v_lshlrev_b32 v12, 4, v12")
    p("v_mul_u32_u24 v13, 3584, v10"); p("v_add_u32 v13, v13, v12")
    for ii in range(4): p("v_add_u32 v%d, %d, v13" % (vWd + ii, ii * 4 * 3584 - ii * 1024))
    p("s_lshl_b32 s%d, s%d, 17" % (sXo, sRB)); p("s_lshl_b32 s%d, s%d, 15" % (sT0, sW))
    p("s_add_u32 s%d, s%d, s%d" % (sXo, sXo, sT0))
    p("s_mul_i32 s%d, s%d, %d" % (sWo, sW, 16 * 3584)); p("s_lshl_b32 s%d, s%d, 8" % (sT0, sFT))
    p("s_add_u32 s%d, s%d, s%d" % (sWo, sWo, sT0))
    p("s_lshl_b32 s%d, s%d, 12" % (sM, sW))
def g1_rot_setup(p):
    if not OPT.get("rot", 0): return
    p("s_mul_i32 s%d, s%d, 37" % (sT0, sR)); p("s_lshr_b32 s%d, s%d, 8" % (sT0, sT0))
    p("s_mul_i32 s%d, s%d, 5" % (sT1, sT0)); p("s_sub_u32 s%d, s%d, s%d" % (sT1, sR, sT1))
    p("s_mul_i32 s%d, s%d, %d" % (sT1, sT1, OPT["rot"])); p("s_and_b32 s%d, s%d, 7" % (sROT, sT1))
    p("s_mov_b32 s%d, s%d" % (sXb, sXo)); p("s_mov_b32 s%d, s%d" % (sWb, sWo))
    for it in rot_offsets(): p(it[0])
sROT, sXb, sWb = 72, 6, 7
def rot_offsets():
    return [("s_lshl_b32 s%d, s%d, 7" % (sT3, sROT), None), ("s_add_u32 s%d, s%d, s%d" % (sXo, sXb, sT3), None),
            ("s_mul_i32 s%d, s%d, %d" % (sT3, sROT, 64 * 3584), None), ("s_add_u32 s%d, s%d, s%d" % (sWo, sWb, sT3), None)]
def g1_dma_stage(s):
    out = []; slot = s % 4
    for ii in range(4):
        u = [("s_add_u32 m0, s%d, %d" % (sM, slot * 32768), None)] if ii == 0 else []
        out.append(u + [("buffer_load_dwordx4 v%d, s[%d:%d], s%d offen offset:%d lds" % (vX + ii, GQ_, GQ_ + 3, sXo, ii * 1024), "st%d" % s)])
    for ii in range(4):
        u = [("s_add_u32 m0, s%d, %d" % (sM, slot * 32768 + 16384), None)] if ii == 0 else []
        out.append(u + [("buffer_load_dwordx4 v%d, s[%d:%d], s%d offen offset:%d lds" % (vWd + ii, GW1_, GW1_ + 3, sWo, ii * 1024), "st%d" % s)])
    if OPT.get("rot", 0):
        out[-1] += [("s_add_u32 s%d, s%d, 1" % (sROT, sROT), None), ("s_and_b32 s%d, s%d, 7" % (sROT, sROT), None)] + rot_offsets()
    else:
        out[-1] += [("s_add_u32 s%d, s%d, 128" % (sXo, sXo), None), ("s_add_u32 s%d, s%d, %d" % (sWo, sWo, 64 * 3584), None)]
    return out
def g1_lds_setup(p):
    p("v_and_b32 v10, 31, v1"); p("v_lshrrev_b32 v11, 5, v1")
    p("v_lshrrev_b32 v12, 1, v10"); p("v_and_b32 v12, 7, v12"); p("v_xor_b32 v12, v12, v11")
    p("s_lshr_b32 s%d, s%d, 1" % (sT1, sW)); p("s_lshl_b32 s%d, s%d, 13" % (sT1, sT1))
    p("v_lshlrev_b32 v13, 7, v10"); p("v_add_u32 v13, s%d, v13" % sT1)
    for jj in range(4):
        p("v_xor_b32 v14, %d, v12" % (2 * jj))
        p("v_lshl_add_u32 v%d, v14, 4, v13" % (vXA + jj))
        p("v_add_u32 v%d, 0x10000, v%d" % (vXA + 4 + jj, vXA + jj))
    p("v_and_b32 v10, 15, v1"); p("v_lshrrev_b32 v11, 4, v1"); p("v_lshrrev_b32 v12, 1, v11")
    p("v_and_b32 v11, 1, v11"); p("v_lshrrev_b32 v13, 2, v10")
    p("v_lshl_add_u32 v12, v12, 3, v13"); p("v_lshlrev_b32 v12, 8, v12")
    p("v_and_b32 v14, 1, v10"); p("v_lshl_add_u32 v12, v14, 3, v12"); p("v_add_u32 v12, 16384, v12")
    p("v_and_b32 v14, 3, v10"); p("v_lshrrev_b32 v14, 1, v14"); p("v_lshl_add_u32 v14, v11, 1, v14")
    p("s_and_b32 s%d, s%d, 1" % (sT1, sW)); p("s_lshl_b32 s%d, s%d, 3" % (sT1, sT1))
    p("v_add_u32 v14, s%d, v14" % sT1); p("v_lshlrev_b32 v13, 2, v13")
    for fb in range(2):
        p("v_add_u32 v15, %d, v14" % (4 * fb)); p("v_xor_b32 v15, v15, v13")
        p("v_lshl_add_u32 v%d, v15, 4, v12" % (vWA + fb))
        p("v_add_u32 v%d, 0x10000, v%d" % (vWA + 2 + fb, vWA + fb))

def tab_loads(p):
    p("v_lshlrev_b32 v10, 4, v1")
    p("s_lshl_b32 s83, s%d, 2" % sW); p("s_mul_i32 s83, s83, %d" % (1792 * 8)); p("s_lshl_b32 s84, s%d, 10" % sFT); p("s_add_u32 s83, s83, s84")
    for i in range(4):
        p("buffer_load_dwordx4 %s, v10, s[%d:%d], s83 offen sc1" % (vr(vCS + 4 * i, 4), CSP_, CSP_ + 3), "tab")
        if i < 3: p("s_add_u32 s83, s83, %d" % (1792 * 8))
    p("s_lshr_b32 s84, s%d, 1" % sW); p("s_lshl_b32 s84, s84, 6")
    p("s_lshl_b32 s83, s%d, 7" % sRB); p("s_add_u32 s83, s83, s84"); p("s_lshl_b32 s83, s83, 4")
    p("v_and_b32 v12, 31, v1"); p("v_lshlrev_b32 v12, 4, v12")
    p("buffer_load_dwordx4 %s, v12, s[%d:%d], s83 offen sc1" % (vr(vST, 4), ST_, ST_ + 3), "tab")
    p("buffer_load_dwordx4 %s, v12, s[%d:%d], s83 offen offset:512 sc1" % (vr(vST + 4, 4), ST_, ST_ + 3), "tab")
def tab_check(p):
    _uid[0] += 1; u = _uid[0]
    def cmp():
        tags = [vCS + 4 * i + 1 for i in range(4)] + [vCS + 4 * i + 3 for i in range(4)] + [vST + 1, vST + 3, vST + 5, vST + 7]
        p("v_min3_u32 v10, v%d, v%d, v%d" % tuple(tags[0:3])); p("v_max3_u32 v11, v%d, v%d, v%d" % tuple(tags[0:3]))
        for i in range(3, 11, 2):
            p("v_min3_u32 v10, v10, v%d, v%d" % (tags[i], tags[i + 1])); p("v_max3_u32 v11, v11, v%d, v%d" % (tags[i], tags[i + 1]))
        p("v_min_u32 v10, v10, v%d" % tags[11]); p("v_max_u32 v11, v11, v%d" % tags[11])
        p("v_cmp_ne_u32 vcc, s%d, v10" % sN); p("v_cmp_ne_u32 s[76:77], s%d, v11" % sN)
        p("s_or_b64 vcc, vcc, s[76:77]"); p("s_nop 4")
    cmp()
    p("s_cbranch_vccz Lt%d_ok" % u)
    saved = (list(p.vm), list(p.lg))
    p("s_mov_b32 s79, 0")
    p.label("Lt%d_loop" % u)
    p("s_sleep 2")
    tab_loads(p)
    p.wait(vm=0)
    cmp()
    p("s_cbranch_vccz Lt%d_ok" % u)
    p("s_add_u32 s79, s79, 1"); p("s_cmp_lt_u32 s79, 0x40000"); p("s_cbranch_scc1 Lt%d_loop" % u)
    p.label("Lt%d_ok" % u)
    p.vm, p.lg = saved
def tab_partial(p):
    for tb in range(2): p("v_mov_b32 v%d, v%d" % (vST + 4 * tb + 1, vST + 4 * tb + 2))
    p("v_add_f32 v%d, v%d, v%d" % (vCS, vCS, vCS + 4)); p("v_add_f32 v%d, v%d, v%d" % (vCS + 2, vCS + 2, vCS + 6))
    p("v_add_f32 v%d, v%d, v%d" % (vCS + 8, vCS + 8, vCS + 12)); p("v_add_f32 v%d, v%d, v%d" % (vCS + 10, vCS + 10, vCS + 14))
    p("v_add_f32 v%d, v%d, v%d" % (vCS, vCS, vCS + 8)); p("v_add_f32 v%d, v%d, v%d" % (vCS + 1, vCS + 2, vCS + 10))
    p("v_lshlrev_b32 v10, 3, v1"); p("s_lshl_b32 s83, s%d, 9" % sW); p("v_add_u32 v10, s83, v10"); p("v_add_u32 v10, %d, v10" % CSQ_LDS)
    p("ds_write_b64 v10, %s" % vr(vCS, 2))

def g1_main(p, fill):
    ACC = G1_ACC; FR = 32
    def reads(g):
        s, jj = g // 4, g % 4
        slot = s % 4; hi = slot >= 2; so = (slot & 1) * 32768
        f = FR + 16 * (g & 1); out = []
        for fb in range(2):
            for rr in range(2):
                out.append("ds_read_b64_tr_b16 %s, v%d offset:%d" % (vr(f + 4 * fb + 2 * rr, 2), vWA + fb + (2 if hi else 0), so + jj * 4096 + rr * 1024))
        for tb in range(2):
            out.append("ds_read_b128 %s, v%d offset:%d" % (vr(f + 8 + 4 * tb, 4), vXA + jj + (4 if hi else 0), so + tb * 4096))
        return out
    def mfmas(g):
        f = FR + 16 * (g & 1); out = []
        for fb in range(2):
            for tb in range(2):
                a = ACC + 16 * (2 * fb + tb)
                out.append("v_mfma_f32_32x32x16_bf16 %s, %s, %s, %s" % (vr(a, 16), vr(f + 4 * fb, 4), vr(f + 8 + 4 * tb, 4), "0" if g == 0 else vr(a, 16)))
        return out
    for s in range(8):
        prewait, pre, units = fill[s][:3]
        tail = fill[s][3] if len(fill[s]) > 3 else []
        p.wait_tag("st%d" % s)
        prewait(p)
        p("s_barrier")
        stamp(p, "g1_st%d" % s)
        pre(p)
        dm = g1_dma_stage(s + 3) if (s + 3 < 8 and s >= 1) else []
        if s == 0: dm = g1_dma_stage(3)
        nm = 16 if s > 0 else 12
        di = ui = k = 0
        for jj in range(4):
            g = 4 * s + jj
            rd = reads(g)
            if g == 0:
                for t in rd: p(t)
                continue
            rm = OPT.get("rdmode", 0)
            if rm == 1:
                for r_ in rd: p(r_)
            for q, t in enumerate(mfmas(g - 1)):
                if not (OPT.get("x_nog1") and q >= 2): p(t)
                if rm == 0:
                    for r_ in rd[2 * q:2 * q + 2]: p(r_)
                if rm == 2:
                    for r_ in rd[3 * q:3 * q + 3]: p(r_)
                if rm == 3 and q == 0:
                    for r_ in rd: p(r_)
                k += 1
                while di < len(dm) and di * nm < k * len(dm):
                    emit(p, dm[di]); di += 1
                while ui < len(units) and ui * nm < k * len(units):
                    emit(p, [units[ui]]); ui += 1
        while di < len(dm): emit(p, dm[di]); di += 1
        while ui < len(units): emit(p, [units[ui]]); ui += 1
        emit(p, tail)
    for t in mfmas(31): p(t)

def g1_epilogue(p, extra):
    HF_ = 44
    srd(p, HF_, P_WS, SZ_HF, WS_HF)
    ACC = G1_ACC; TBL = 128
    p("v_lshrrev_b32 v10, 5, v1"); p("v_lshlrev_b32 v10, 4, v10")
    p("s_and_b32 s%d, s%d, 1" % (sT1, sW)); p("s_lshl_b32 s%d, s%d, 8" % (sT1, sT1))
    p("v_add_u32 v10, s%d, v10" % sT1); p("v_add_u32 v10, %d, v10" % TAB_LDS)
    for rq in range(4):
        p("ds_read_b128 %s, v10 offset:%d" % (vr(TBL + 4 * rq, 4), rq * 32))
        p("ds_read_b128 %s, v10 offset:%d" % (vr(TBL + 16 + 4 * rq, 4), 512 + rq * 32))
    p("s_lshr_b32 s%d, s%d, 1" % (sT1, sW)); p("s_lshl_b32 s%d, s%d, 1" % (sT1, sT1))
    p("s_lshl_b32 s%d, s%d, 2" % (sT0, sRB)); p("s_add_u32 s%d, s%d, s%d" % (sT0, sT0, sT1))
    p("s_mul_i32 s%d, s%d, 112" % (sT0, sT0)); p("s_lshl_b32 s%d, s%d, 3" % (sT1, sFT))
    p("s_add_u32 s%d, s%d, s%d" % (sT0, sT0, sT1))
    p("s_and_b32 s%d, s%d, 1" % (sT1, sW)); p("s_lshl_b32 s%d, s%d, 2" % (sT1, sT1))
    p("s_add_u32 s%d, s%d, s%d" % (sT0, sT0, sT1)); p("s_lshl_b32 s83, s%d, 10" % sT0)
    p("v_lshlrev_b32 v11, 4, v1"); p("v_add_u32 v12, %d, v11" % (112 * 1024))
    for tb in range(2): p("v_mul_f32 v%d, v%d, v%d" % (vST + 4 * tb, vST + 4 * tb, vST + 4 * tb + 1))
    main = []
    TB2 = 32
    for fb in range(2):
        tbl = TBL if fb == 0 else TB2
        for tb in range(2):
            a = ACC + 16 * (2 * fb + tb); mu = vST + 4 * tb
            PK = 160 + 8 * tb
            if fb == 0 and tb == 0:
                for rq in range(4):
                    main.append(("ds_read_b128 %s, v10 offset:%d" % (vr(TB2 + 4 * rq, 4), 128 + rq * 32), None))
                    main.append(("ds_read_b128 %s, v10 offset:%d" % (vr(TB2 + 16 + 4 * rq, 4), 512 + 128 + rq * 32), None))
            for r_ in range(0, 16 if not OPT.get("x_noepi") else 4, 4):
                t0, t1 = 176, 178
                for t, rr in ((t0, r_), (t1, r_ + 2)):
                    main.append(("v_pk_fma_f32 %s, %s, %s, %s op_sel_hi:[0,1,1] neg_lo:[1,0,0] neg_hi:[1,0,0]" % (vr(t, 2), vr(mu, 2), vr(tbl + rr, 2), vr(tbl + 16 + rr, 2)), None))
                for t, rr in ((t0, r_), (t1, r_ + 2)):
                    main.append(("v_pk_fma_f32 %s, %s, %s, %s op_sel:[0,1,0] op_sel_hi:[1,1,1]" % (vr(t, 2), vr(a + rr, 2), vr(mu, 2), vr(t, 2)), None))
                for t in (t0, t0 + 1, t1, t1 + 1): main.append(("v_max_f32 v%d, 0, v%d" % (t, t), None))
                for t in (t0, t1): main.append(("v_pk_mul_f32 %s, %s, %s" % (vr(t, 2), vr(t, 2), vr(t, 2)), None))
                for t, rr in ((t0, r_), (t1, r_ + 2)): main.append(("v_cvt_pk_bf16_f32 v%d, v%d, v%d" % (PK + (rr >> 1), t, t + 1), None))
            for q in range(2):
                main.append(("buffer_store_dwordx4 %s, v%d, s[%d:%d], s83 offen offset:%d sc1" % (vr(PK + 4 * q, 4), 11 + tb, HF_, HF_ + 3, (2 * fb + q) * 1024), "hst"))
    n = len(extra); k = 0
    i0 = int(len(main) * OPT.get("epi_start", 30) / 100.0)
    for i, it in enumerate(main):
        emit(p, [it])
        while i >= i0 and k < n and k * (len(main) - i0) < (i + 1 - i0) * n:
            emit(p, [extra[k]]); k += 1

def h_publish(p):
    p("s_lshl_b32 s%d, s%d, 1" % (sT0, sRB)); p("s_lshr_b32 s%d, s%d, 1" % (sT1, sW))
    p("s_add_u32 s%d, s%d, s%d" % (sT0, sT0, sT1)); p("s_mul_i32 s%d, s%d, 28" % (sT0, sT0))
    p("s_lshl_b32 s%d, s%d, 1" % (sT1, sFT)); p("s_add_u32 s%d, s%d, s%d" % (sT0, sT0, sT1))
    p("s_and_b32 s%d, s%d, 1" % (sT1, sW)); p("s_add_u32 s%d, s%d, s%d" % (sT0, sT0, sT1))
    p("s_lshl_b32 s%d, s%d, 7" % (sT0, sT0)); p("s_add_u32 s%d, s%d, %d" % (sT0, sT0, FL_FH))
    flag_store(p, sT0)

KVT2_, SSM_, DD_, ZT_ = 48, 44, 60, 60
CV_R, vDD = 220, 254
def conv_setup(p):
    srd(p, KVT2_, P_WS, SZ_KVT, WS_KVT); srd(p, SSM_, P_SSM, D * S * 2); srd(p, DD_, P_DD, D * 2)
    p("s_lshr_b32 s%d, s%d, 1" % (sT0, sW)); p("s_and_b32 s%d, s%d, 1" % (sC2, sW))
    p("s_lshl_b32 s%d, s%d, 6" % (sCH, sJ)); p("s_lshl_b32 s%d, s%d, 1" % (sT1, sR))
    p("s_add_u32 s%d, s%d, s%d" % (sCH, sCH, sT1)); p("s_add_u32 s%d, s%d, s%d" % (sCH, sCH, sT0))
    p("s_mul_i32 s%d, s%d, 21248" % (sCB, sT0)); p("s_add_u32 s%d, s%d, %d" % (sCB, sCB, CV0 + 256))
def conv_loads_regs(p):
    p("s_lshl_b32 s83, s%d, 12" % sCH); p("s_lshl_b32 s84, s%d, 11" % sC2); p("s_add_u32 s83, s83, s84")
    p("v_lshlrev_b32 v2, 4, v1")
    R = CV_R
    for sg in range(2):
        for k in range(3):
            p("buffer_load_dwordx4 %s, v2, s[%d:%d], s83 offen offset:%d sc1" % (vr(R + 12 * sg + 4 * k, 4), KVT2_, KVT2_ + 3, sg * 1024 + 4 * k), "cv")
    p("v_mov_b32 v4, 0"); p("s_lshl_b32 s84, s%d, 1" % sCH)
    p("buffer_load_ushort v%d, v4, s[%d:%d], s84 offen" % (vDD, DD_, DD_ + 3), "cv")
def conv_loads_lds(p):
    p("s_lshl_b32 s%d, s%d, 12" % (sT0, sCH)); p("s_lshl_b32 s%d, s%d, 11" % (sT1, sC2))
    p("s_add_u32 s%d, s%d, s%d" % (sT0, sT0, sT1))
    p("v_lshlrev_b32 v2, 4, v1")
    for sg in range(2):
        p("s_add_u32 s%d, s%d, s%d" % (sT2, sCB, sT1))
        p("s_add_u32 m0, s%d, %d" % (sT2, 16640 + 512 + sg * 1024))
        p("s_add_u32 s%d, s%d, %d" % (sT2, sT0, sg * 1024))
        p("buffer_load_dwordx4 v2, s[%d:%d], s%d offen lds" % (SSM_, SSM_ + 3, sT2), "cv")
    for i in range(4): p("v_mov_b32 v%d, 0" % (16 + i))
    p("v_lshrrev_b32 v5, 1, v1"); p("v_mul_u32_u24 v5, 4160, v5")
    p("v_and_b32 v6, 1, v1"); p("v_lshl_add_u32 v5, v6, 4, v5"); p("v_add_u32 v5, 4096, v5")
    p("v_add_u32 v6, 16640, v2")
    p("s_cmp_eq_u32 s%d, 0" % sC2)
    p("s_cselect_b32 s76, 0xff, -1")
    p("s_cselect_b64 vcc, -1, 0")
    p("v_cndmask_b32 v5, v6, v5, vcc")
    p("v_add_u32 v5, s%d, v5" % sCB)
    p("s_mov_b32 exec_lo, s76"); p("s_mov_b32 exec_hi, 0")
    p("ds_write_b128 v5, v[16:19]")
    p("s_mov_b64 exec, -1")

def conv_fill(p):
    R = CV_R
    p("v_mov_b32 v13, %d" % ZCNT_LDS); p("ds_write_b32 v13, v253")
    p("v_lshlrev_b32 v2, 4, v1"); p("v_mov_b32 v8, 0")
    p("s_lshl_b32 s77, s%d, 31" % sC2); p("s_mov_b32 s76, 0")
    last = R + 12
    for rg in (last + 7, last + 10, last + 11): p("v_cndmask_b32 v%d, v%d, v8, s[76:77]" % (rg, rg))
    p("s_lshl_b32 s%d, s%d, 11" % (sT1, sC2)); p("s_add_u32 s%d, s%d, s%d" % (sT1, sT1, sCB))
    p("v_add_u32 v5, s%d, v2" % sT1)
    for sg in range(2):
        r0, r1, r2 = R + 12 * sg, R + 12 * sg + 4, R + 12 * sg + 8
        c1, c3 = 16 + 8 * sg, 20 + 8 * sg
        p("ds_write_b128 v5, %s offset:%d" % (vr(r0, 4), sg * 1024))
        for i in range(4): p("v_alignbit_b32 v%d, v%d, v%d, 16" % (c1 + i, r1 + i, r0 + i))
        p("ds_write_b128 v5, %s offset:%d" % (vr(r1, 4), 2 * 4160 + sg * 1024))
        for i in range(4): p("v_alignbit_b32 v%d, v%d, v%d, 16" % (c3 + i, r2 + i, r1 + i))
        p("ds_write_b128 v5, %s offset:%d" % (vr(c1, 4), 4160 + sg * 1024))
        p("ds_write_b128 v5, %s offset:%d" % (vr(c3, 4), 3 * 4160 + sg * 1024))

def conv_main(p, extra_by_class):
    vA, vB = 12, 13
    p("v_and_b32 v6, 15, v1"); p("v_lshrrev_b32 v7, 4, v1")
    p("v_sub_u32 v14, 3, v6"); p("v_and_b32 v14, 3, v14")
    p("v_mul_u32_u24 v15, 4158, v14")
    p("v_lshlrev_b32 v14, 1, v6"); p("v_sub_u32 v15, v15, v14"); p("v_lshl_add_u32 v15, v7, 4, v15")
    p("s_lshl_b32 s%d, s%d, 8" % (sT1, sC2)); p("s_sub_u32 s%d, s%d, s%d" % (sT1, sCB, sT1))
    p("s_add_u32 s%d, s%d, 30" % (sT2, sT1)); p("v_add_u32 v%d, s%d, v15" % (vA, sT2))
    p("v_lshlrev_b32 v15, 5, v6"); p("v_lshl_add_u32 v15, v7, 4, v15")
    p("s_add_u32 s%d, s%d, %d" % (sT2, sT1, 16640 + 32)); p("v_add_u32 v%d, s%d, v15" % (vB, sT2))
    ACC = 64
    p.wait(lg=0)
    p("s_barrier")
    stamp(p, "conv_filled")
    FA, FB = 96, 160
    def reads(rl):
        st = rl & 1; out = []
        for x in range(8):
            oa = 64 * (63 - rl - 8 * x)
            out.append(("ds_read_b64 %s, v%d offset:%d" % (vr(FA + 32 * st + 4 * x, 2), vA, oa), None))
            out.append(("ds_read_b64 %s, v%d offset:%d" % (vr(FA + 32 * st + 4 * x + 2, 2), vA, oa + 8), None))
            out.append(("ds_read_b128 %s, v%d offset:%d" % (vr(FB + 32 * st + 4 * x, 4), vB, 64 * (7 - rl + 8 * x)), None))
        return out
    seen = set()
    def mf(rl):
        st = rl & 1; out = []
        pairs = sorted([(a, b) for a in range(8) for b in range(8) if a + b <= 7], key=lambda ab: (max(ab), ab))
        for a, b in pairs:
            c = vr(ACC + 4 * (a + b), 4)
            first = (a + b) not in seen; seen.add(a + b)
            out.append(("v_mfma_f32_16x16x32_bf16 %s, %s, %s, %s" % (c, vr(FA + 32 * st + 4 * a, 4), vr(FB + 32 * st + 4 * b, 4), "0" if first else c), None))
        return out
    for t in reads(0): p(*t)
    for rl in range(4):
        pre, fill = extra_by_class[rl]
        pre(p)
        nxt = (reads(rl + 1) if rl < 3 else [])
        m = mf(rl)
        if OPT.get("x_noconv"): m = m[:4]
        ni = fi = 0
        for i, t in enumerate(m):
            p(*t)
            while ni < len(nxt) and ni * 30 < (i + 1) * len(nxt): p(*nxt[ni]); ni += 1
            while fi < len(fill) and fi * 36 < (i + 1) * len(fill): emit(p, [fill[fi]]); fi += 1
    stamp(p, "conv_mma_done")

def conv_finish(p, name, extra):
    ACC = 64
    if not OPT.get("fin_pre", 1): conv_finish_addr(p)
    for q in range(4): p("ds_read_b64 %s, v16 offset:%d" % (vr(36 + 2 * q, 2), (3 - q) * 512))
    n1 = len(extra) // 2
    conv_finish_rest(p, name, extra, n1)
def conv_finish_addr(p):
    RB = RB_LDS
    srd(p, ZT_, P_WS, SZ_ZT, WS_ZT)
    p("v_lshlrev_b32 v2, 4, v1")
    p("s_lshl_b32 s%d, s%d, 12" % (sT1, sW))
    p("v_add_u32 v5, s%d, v2" % sT1); p("v_add_u32 v5, %d, v5" % RB)
    p("s_xor_b32 s%d, s%d, 1" % (sT1, sW)); p("s_lshl_b32 s%d, s%d, 12" % (sT1, sT1))
    p("v_add_u32 v14, s%d, v2" % sT1); p("v_add_u32 v14, %d, v14" % RB)
    p("v_lshlrev_b32 v15, 5, v6"); p("v_lshl_add_u32 v15, v7, 3, v15")
    p("s_lshl_b32 s%d, s%d, 11" % (sT1, sC2)); p("s_sub_u32 s%d, s%d, s%d" % (sT2, sCB, sT1))
    p("s_add_u32 s%d, s%d, %d" % (sT2, sT2, 4088 - 1536)); p("v_sub_u32 v16, s%d, v15" % sT2)
    p("s_lshl_b32 s84, s%d, 12" % sCH); p("s_add_u32 s84, s84, s%d" % sT1)
    p("v_lshlrev_b32 v%d, 16, v%d" % (vDD, vDD))
def conv_finish_rest(p, name, extra, n1):
    ACC = 64
    emit(p, extra[:n1])
    st = side_path_begin(p); hist = len(p.out)
    p("s_cmp_eq_u32 s%d, 0" % sC2)
    p("s_cbranch_scc0 %s_hi" % name)
    for variant in range(2):
        keep = ACC + 16 * variant; give = ACC + 16 * (1 - variant)
        if variant == 1:
            p("s_branch %s_cdone" % name)
            p.label("%s_hi" % name)
            side_path_end(p, st)
            p("s_nop 7")
        for q in range(4): p("ds_write_b128 v5, %s offset:%d" % (vr(give + 4 * q, 4), q * 1024))
        for q in range(4):
            a_ = keep + 4 * q; u = 36 + 2 * q
            for c, (src, hf) in enumerate(((u + 1, 1), (u + 1, 0), (u, 1), (u, 0))):
                unpack(p, 44 + (c & 1), src, hf)
                p("v_fmac_f32 v%d, v%d, v%d" % (a_ + c, 44 + (c & 1), vDD))
        p.wait(lg=0)
        p("s_barrier")
        for q in range(4): p("ds_read_b128 %s, v14 offset:%d" % (vr(20 + 4 * q, 4), q * 1024))
        for q in range(4):
            a_ = keep + 4 * q
            for c in range(4): p("v_add_f32 v%d, v%d, v%d" % (a_ + c, a_ + c, 20 + 4 * q + c))
            p("v_cvt_pk_bf16_f32 v%d, v%d, v%d" % (48 + 2 * q, a_, a_ + 1))
            p("v_cvt_pk_bf16_f32 v%d, v%d, v%d" % (49 + 2 * q, a_ + 2, a_ + 3))
    p.label("%s_cdone" % name)
    emit(p, extra[n1:])
def z_stores(p):
    for q in range(4):
        p("buffer_store_dwordx2 %s, v15, s[%d:%d], s84 offen offset:%d sc1" % (vr(48 + 2 * q, 2), ZT_, ZT_ + 3, q * 512), "zst")
ZCNT_LDS = 163832
def z_publish(p, name):
    p("v_mov_b32 v10, %d" % ZCNT_LDS); p("v_mov_b32 v11, 1")
    p("s_mov_b64 exec, 1")
    p("ds_add_rtn_u32 v11, v10, v11")
    p("s_mov_b64 exec, -1")
    p.wait(lg=0)
    p("v_readfirstlane_b32 s%d, v11" % sT0)
    p("s_cmp_eq_u32 s%d, 3" % sT0)
    p("s_cbranch_scc0 %s_nozp" % name)
    st = side_path_begin(p)
    p("s_lshl_b32 s%d, s%d, 5" % (sT0, sJ)); p("s_add_u32 s%d, s%d, s%d" % (sT0, sT0, sR))
    p("s_lshl_b32 s%d, s%d, 7" % (sT0, sT0)); p("s_add_u32 s%d, s%d, %d" % (sT0, sT0, FL_FZ))
    flag_store(p, sT0)
    side_path_end(p, st)
    p.label("%s_nozp" % name)

HF2_, W2_, Q2_, ZT2_, ST2_, B2_, OUT_ = 40, 8, 48, 52, 56, 64, 44
vH0, vH1, vD0, vD1 = 244, 245, 246, 247
vFH, vFHA = 248, 249
vTRA = 60
sWS = 75
NS = 28
STASH0 = 0
HB = 128
def g2_srd(p):
    srd(p, W2_, P_W2, F * D * 2)
    p("s_lshl_b32 s%d, s%d, 11" % (sM2, sW))
def g2_setup(p):
    if OPT.get("g2map", 0):
        p("s_lshr_b32 s%d, s%d, 1" % (sTok, sJ)); p("s_lshl_b32 s%d, s%d, 9" % (sTok, sTok))
        p("s_lshr_b32 s%d, s%d, 2" % (sT0, sR)); p("s_lshl_b32 s%d, s%d, 6" % (sT0, sT0))
        p("s_add_u32 s%d, s%d, s%d" % (sTok, sTok, sT0))
        p("s_and_b32 s%d, s%d, 1" % (sCh, sJ)); p("s_lshl_b32 s%d, s%d, 2" % (sCh, sCh)); p("s_and_b32 s%d, s%d, 3" % (sT0, sR))
        p("s_add_u32 s%d, s%d, s%d" % (sCh, sCh, sT0)); p("s_lshl_b32 s%d, s%d, 6" % (sCh, sCh))
    else:
        p("s_lshl_b32 s%d, s%d, 8" % (sTok, sJ))
        p("s_lshr_b32 s%d, s%d, 3" % (sT0, sR)); p("s_lshl_b32 s%d, s%d, 6" % (sT0, sT0))
        p("s_add_u32 s%d, s%d, s%d" % (sTok, sTok, sT0))
        p("s_add_u32 s%d, s%d, %d" % (sCh, sR, OPT.get("cbrot", 0))); p("s_and_b32 s%d, s%d, 7" % (sCh, sCh)); p("s_lshl_b32 s%d, s%d, 6" % (sCh, sCh))
    p("s_lshr_b32 s%d, s%d, 5" % (sT0, sTok)); p("s_mul_i32 s%d, s%d, 112" % (sT0, sT0))
    p("s_mul_i32 s%d, s%d, 28" % (sT1, sW))
    p("s_add_u32 s%d, s%d, s%d" % (sT0, sT0, sT1)); p("s_lshl_b32 s%d, s%d, 10" % (sHo, sT0))
    p("s_lshl_b32 s%d, s%d, 14" % (sWA, sT1)); p("s_lshl_b32 s%d, s%d, 1" % (sT0, sCh))
    p("s_add_u32 s%d, s%d, s%d" % (sWA, sWA, sT0))
    p("v_lshlrev_b32 v%d, 4, v1" % vH0)
    p("v_add_u32 v%d, %d, v%d" % (vH1, 112 * 1024, vH0))
    p("v_lshrrev_b32 v10, 3, v1"); p("v_and_b32 v11, 7, v1")
    p("v_lshrrev_b32 v12, 1, v10"); p("v_and_b32 v12, 1, v12"); p("v_lshlrev_b32 v12, 2, v12")
    p("v_xor_b32 v12, v12, v11"); p("v_lshlrev_b32 v12, 4, v12")
    p("v_lshl_add_u32 v%d, v10, 10, v12" % vD0)
    p("v_add_u32 v%d, %d, v%d" % (vD1, 8192 - 1024, vD0))
def g2_setup_tr(p):
    p("v_and_b32 v10, 15, v1"); p("v_lshrrev_b32 v11, 4, v1"); p("v_lshrrev_b32 v12, 1, v11"); p("v_and_b32 v11, 1, v11")
    p("v_lshrrev_b32 v13, 2, v10"); p("v_lshl_add_u32 v12, v12, 2, v13"); p("v_lshlrev_b32 v12, 7, v12")
    p("v_and_b32 v14, 3, v10"); p("v_lshrrev_b32 v15, 1, v14"); p("v_lshl_add_u32 v12, v15, 3, v12")
    p("v_and_b32 v14, 1, v14"); p("v_lshl_add_u32 v14, v14, 1, v11")
    p("v_lshrrev_b32 v15, 3, v10"); p("v_lshlrev_b32 v15, 2, v15")
    p("v_add_u32 v12, s%d, v12" % sM2)
    for cb in range(2):
        p("v_add_u32 v13, %d, v14" % (4 * cb)); p("v_xor_b32 v13, v13, v15")
        p("v_lshl_add_u32 v%d, v13, 4, v12" % (vTRA + cb))
        p("v_add_u32 v%d, 0x10000, v%d" % (vTRA + 2 + cb, vTRA + cb))
def w2_dma(step, slot):
    tag = "w%d" % step
    if OPT.get("x_now2") == 1 or (OPT.get("x_now2") == 2 and (step < 12 or step >= 24)): return [[("s_nop 0", None)]]
    return [[("s_add_u32 m0, s%d, %d" % (sM2, slot * 8192), None),
             ("s_add_u32 s%d, s%d, %d" % (sWS, sWA, step * 16384), None),
             ("buffer_load_dwordx4 v%d, s[%d:%d], s%d offen lds" % (vD0, W2_, W2_ + 3, sWS), tag),
             ("buffer_load_dwordx4 v%d, s[%d:%d], s%d offen offset:1024 lds" % (vD1, W2_, W2_ + 3, sWS), tag)]]
def tr_reads(slot, dst, kind):
    out = []
    for cb in range(2):
        for rr in range(2):
            hi = slot >= 8
            out.append(("ds_read_b64_tr_b16 %s, v%d offset:%d" % (vr(dst + 4 * cb + 2 * rr, 2, kind), vTRA + cb + (2 if hi else 0), (slot - 8 * hi) * 8192 + rr * 1024), None))
    return out
def stash_reads(step, slot): return tr_reads(slot, STASH0 + 8 * (step - 12), 'a')
ORD = list(range(12, 28)) + list(range(4, 12)) + list(range(0, 4))
def h_loads(s):
    slot = s % OPT["depth_h"]
    return [("s_add_u32 s7, s%d, %d" % (sHo, ORD[s] * 1024), None),
            ("buffer_load_dwordx4 %s, v%d, s[%d:%d], s7 offen sc1" % (ar(HB + 8 * slot, 4), vH0, HF2_, HF2_ + 3), "h%d" % s),
            ("buffer_load_dwordx4 %s, v%d, s[%d:%d], s7 offen sc1" % (ar(HB + 8 * slot + 4, 4), vH1, HF2_, HF2_ + 3), "h%d" % s)]
def fh_poll_issue(p):
    p("v_min_u32 v%d, 6, v1" % vFHA); p("v_lshlrev_b32 v%d, 7, v%d" % (vFHA, vFHA))
    p("s_lshr_b32 s83, s%d, 6" % sTok); p("s_mul_i32 s83, s83, 28"); p("s_mul_i32 s%d, s%d, 7" % (sT0, sW)); p("s_add_u32 s83, s83, s%d" % sT0)
    p("s_lshl_b32 s83, s83, 7"); p("s_add_u32 s83, s83, %d" % FL_FH)
    poll_issue(p, vFH, vFHA, 83, "fh")
def g2_h_start(p):
    DH = OPT["depth_h"]
    srd(p, HF2_, P_WS, SZ_HF, WS_HF)
    p.wait_tag("fh")
    poll_check(p, [vFH], [vFHA], [83])
    stamp(p, "g2_h_ready")
    for s in range(OPT.get("h_first", 2)):
        for t in h_loads(s): p(*t)
def h_touch(p):
    DH = OPT["depth_h"]
    n = (NS - DH) * 16 // 8
    p("s_and_b32 s%d, s%d, 7" % (sT0, sR)); p("s_mul_i32 s%d, s%d, %d" % (sT0, sT0, n))
    p("v_add_u32 v10, s%d, v1" % sT0)
    p("v_lshrrev_b32 v11, 4, v10"); p("v_and_b32 v12, 7, v10"); p("v_lshlrev_b32 v12, 7, v12")
    p("v_lshl_add_u32 v12, v11, 10, v12")
    p("v_bfe_u32 v11, v10, 3, 1"); p("v_mul_u32_u24 v11, %d, v11" % (112 * 1024)); p("v_add_u32 v12, v12, v11")
    if n > 32: p("s_mov_b32 exec_hi, 0x%x" % ((1 << (n - 32)) - 1))
    else: p("s_mov_b64 exec, 0x%x" % ((1 << n) - 1))
    p("buffer_load_dword v59, v12, s[%d:%d], s%d offen sc1" % (HF2_, HF2_ + 3, sHo), "touch3")
    p("s_mov_b64 exec, -1")

vST2, vB2 = 16, 20
vY, vOWN = 144, 176
vXq, vZq, vRED, vOUT = 6, 7, 8, 9
def g2_main(p, name, g2_units):
    DH = OPT["depth_h"]
    ACC = 64; FR = 32
    def ep_setup(p):
        srd(p, Q2_, P_Q, S * D * 2)
        srd(p, ZT2_, P_WS, SZ_ZT, WS_ZT); srd(p, ST2_, P_WS, SZ_ST, WS_ST); srd(p, B2_, P_B2, D * 2); srd(p, OUT_, P_OUT, S * D * 2)
    def ep_loads(p):
        p("v_lshrrev_b32 v10, 2, v1"); p("v_and_b32 v11, 3, v1")
        p("v_lshrrev_b32 v12, 2, v10"); p("v_xor_b32 v12, v12, v11")
        p("v_lshlrev_b32 v12, 4, v12"); p("v_lshl_add_u32 v13, v10, 10, v12")
        p("s_lshr_b32 s%d, s%d, 1" % (sT0, sW)); p("s_lshl_b32 s%d, s%d, 5" % (sT0, sT0)); p("s_add_u32 s%d, s%d, s%d" % (sT0, sT0, sTok))
        p("s_and_b32 s%d, s%d, 1" % (sT1, sW)); p("s_lshl_b32 s%d, s%d, 5" % (sT1, sT1)); p("s_add_u32 s%d, s%d, s%d" % (sT1, sT1, sCh))
        p("s_lshl_b32 s%d, s%d, 10" % (sXO, sT0)); p("s_lshl_b32 s%d, s%d, 1" % (sT2, sT1)); p("s_add_u32 s%d, s%d, s%d" % (sXO, sXO, sT2))
        p("s_lshl_b32 s%d, s%d, 11" % (sT3, sW))
        p("s_add_u32 m0, s%d, %d" % (sT3, XT))
        p("buffer_load_dwordx4 v13, s[%d:%d], s%d offen lds" % (Q2_, Q2_ + 3, sXO), "ep")
        p("s_add_u32 s78, s%d, 16384" % sXO)
        p("s_add_u32 m0, s%d, %d" % (sT3, XT + 1024))
        p("buffer_load_dwordx4 v13, s[%d:%d], s78 offen lds" % (Q2_, Q2_ + 3), "ep")
        p("s_lshl_b32 s%d, s%d, 4" % (sT0, sT0))
        p("v_and_b32 v14, 31, v1"); p("v_lshlrev_b32 v15, 4, v14")
        p("buffer_load_dwordx4 %s, v15, s[%d:%d], s%d offen sc1" % (vr(vST2, 4), ST2_, ST2_ + 3, sT0), "ep")
        p("v_lshrrev_b32 v15, 5, v1"); p("v_lshlrev_b32 v12, 5, v15")
        p("buffer_load_dwordx4 %s, v12, s[%d:%d], s%d offen" % (vr(vB2, 4), B2_, B2_ + 3, sT2), "ep")
        p("buffer_load_dwordx4 %s, v12, s[%d:%d], s%d offen offset:16" % (vr(vB2 + 4, 4), B2_, B2_ + 3, sT2), "ep")
        p("v_lshrrev_b32 v12, 2, v14"); p("v_and_b32 v12, 3, v12")
        p("v_lshlrev_b32 v15, 1, v15"); p("v_xor_b32 v15, v15, v12")
        p("v_lshlrev_b32 v15, 4, v15"); p("v_lshl_add_u32 v15, v14, 6, v15")
        p("v_add_u32 v15, s%d, v15" % sT3); p("v_add_u32 v%d, %d, v15" % (vXq, XT))
        p("v_lshrrev_b32 v15, 5, v1"); p("v_lshlrev_b32 v15, 5, v15"); p("v_lshl_add_u32 v%d, v14, 10, v15" % vOUT)
        p("v_add_u32 v%d, %d, v%d" % (vRED, RED, vH0))
    def z_loads(p):
        p("v_lshrrev_b32 v10, 2, v1"); p("v_and_b32 v11, 3, v1")
        p("v_lshlrev_b32 v12, 4, v11"); p("v_lshl_add_u32 v12, v10, 12, v12")
        p("s_and_b32 s%d, s%d, 1" % (sT1, sW)); p("s_lshl_b32 s%d, s%d, 5" % (sT1, sT1)); p("s_add_u32 s%d, s%d, s%d" % (sT1, sT1, sCh))
        p("s_lshl_b32 s%d, s%d, 12" % (sT0, sT1))
        p("s_lshr_b32 s%d, s%d, 1" % (sT1, sW)); p("s_lshl_b32 s%d, s%d, 5" % (sT1, sT1)); p("s_add_u32 s%d, s%d, s%d" % (sT1, sT1, sTok))
        p("s_lshl_b32 s%d, s%d, 1" % (sT1, sT1)); p("s_add_u32 s%d, s%d, s%d" % (sT0, sT0, sT1))
        p("buffer_load_dwordx4 %s, v12, s[%d:%d], s%d offen sc1" % (vr(128, 4), ZT2_, ZT2_ + 3, sT0), "z")
        p("s_add_u32 s%d, s%d, %d" % (sT0, sT0, 16 * 4096))
        p("buffer_load_dwordx4 %s, v12, s[%d:%d], s%d offen sc1" % (vr(132, 4), ZT2_, ZT2_ + 3, sT0), "z")
        p("v_lshrrev_b32 v12, 1, v10"); p("v_and_b32 v12, 3, v12"); p("v_xor_b32 v12, v12, v11")
        p("v_lshlrev_b32 v12, 4, v12"); p("v_lshl_add_u32 v12, v10, 6, v12")
        p("s_lshl_b32 s%d, s%d, 11" % (sT3, sW)); p("s_add_u32 s%d, s%d, %d" % (sT3, sT3, ZTT))
        p("v_add_u32 v%d, s%d, v12" % (vZq + 4, sT3))
        p("v_and_b32 v10, 15, v1"); p("v_lshrrev_b32 v12, 4, v1"); p("v_lshrrev_b32 v13, 1, v12"); p("v_and_b32 v12, 1, v12")
        p("v_lshrrev_b32 v14, 2, v10"); p("v_lshl_add_u32 v13, v13, 4, v14")
        p("v_and_b32 v15, 3, v10"); p("v_lshrrev_b32 v15, 1, v15"); p("v_lshl_add_u32 v15, v12, 1, v15")
        p("v_lshrrev_b32 v14, 1, v14"); p("v_xor_b32 v15, v15, v14")
        p("v_lshlrev_b32 v15, 4, v15"); p("v_lshl_add_u32 v15, v13, 6, v15")
        p("v_and_b32 v14, 1, v10"); p("v_lshl_add_u32 v15, v14, 3, v15")
        p("v_add_u32 v%d, s%d, v15" % (vZq, sT3))
        p("v_xor_b32 v5, 32, v%d" % vZq)
    def y_compute(p):
        XR_, ZR = 136, 164
        p("ds_write_b128 v%d, %s" % (vZq + 4, vr(128, 4))); p("ds_write_b128 v%d, %s offset:1024" % (vZq + 4, vr(132, 4)))
        p.wait_tag("ep")
        p("v_xor_b32 v10, 16, v%d" % vXq)
        p("ds_read_b128 %s, v%d" % (vr(XR_, 4), vXq)); p("ds_read_b128 %s, v10" % vr(XR_ + 4, 4))
        for m in range(4): p("ds_read_b64_tr_b16 %s, v%d offset:%d" % (vr(ZR + 2 * m, 2), vZq if m % 2 == 0 else 5, m * 256))
        mu, rs = vST2, vST2 + 2
        p("v_mul_f32 v%d, v%d, v%d" % (mu, mu, rs))
        for r_ in range(16):
            x, z, b = 48 + 3 * (r_ & 1), 49 + 3 * (r_ & 1), 50 + 3 * (r_ & 1)
            unpack(p, x, XR_ + (r_ >> 1), r_ & 1); unpack(p, z, ZR + (r_ >> 1), r_ & 1); unpack(p, b, vB2 + (r_ >> 1), r_ & 1)
            p("v_fma_f32 v%d, v%d, v%d, -v%d" % (vY + r_, x, rs, mu))
            p("v_add_f32 v%d, v%d, v%d" % (b, b, x))
            p("v_fma_f32 v%d, v%d, v%d, v%d" % (vY + r_, vY + r_, z, b))
    def reads(s): return [t for t, _ in tr_reads(ORD[s], FR + 8 * (s & 1), 'v')]
    def mfmas(s):
        slot = s % DH; out = []
        for cb in range(2):
            A = vr(FR + 8 * (s & 1) + 4 * cb, 4) if ORD[s] < 12 else ar(STASH0 + 8 * (ORD[s] - 12) + 4 * cb, 4)
            for tb in range(2):
                a = vr(ACC + 16 * (2 * tb + cb), 16)
                out.append("v_mfma_f32_32x32x16_bf16 %s, %s, %s, %s" % (a, A, ar(HB + 8 * slot + 4 * tb, 4), "0" if s == 0 else a))
        return out
    vFZ = 56
    def fz_issue(p):
        p("v_min_u32 v%d, 15, v1" % (vFZ + 2)); p("v_lshlrev_b32 v%d, 7, v%d" % (vFZ + 2, vFZ + 2))
        p("s_lshr_b32 s84, s%d, 6" % sCh); p("s_lshl_b32 s84, s84, 1"); p("s_and_b32 s83, s%d, 1" % sW); p("s_add_u32 s84, s84, s83")
        p("s_lshl_b32 s84, s84, 11"); p("s_add_u32 s84, s84, %d" % FL_FZ)
        poll_issue(p, vFZ, vFZ + 2, 84, "fz")
    def fz_check(p):
        p.wait_tag("fz"); poll_check(p, [vFZ], [vFZ + 2], [84])
    S_FZ, S_ZL, S_Y = OPT.get("s_fz", 14), OPT.get("s_zl", 20), OPT.get("s_y", 25)
    yl = rec(y_compute)
    third = (len(yl) + 2) // 3
    extras = {1: rec(ep_setup), 2: rec(ep_loads), S_FZ: rec(fz_issue), S_ZL: rec(z_loads),
              S_Y: yl[:third], S_Y + 1: yl[third:2 * third], S_Y + 2: yl[2 * third:]}
    for pos_, units_ in g2_units.items(): extras[pos_] = extras.get(pos_, []) + units_
    def step(s, ex):
        if s + 1 < NS and ORD[s + 1] < 12:
            p.wait_tag("w%d" % ORD[s + 1])
            for t in reads(s + 1): p(t)
        mf = mfmas(s)
        if OPT.get("x_nog2") and 8 <= s < 18: mf = ["s_nop 0"] * 4
        hl = h_loads(s + DH) if s + DH < NS else []
        if OPT.get("x_noh"): hl = []
        q4 = (len(ex) + 3) // 4
        for i in range(4):
            p(mf[i])
            if i == 2:
                for t in hl[0:2]: p(*t)
            if i == 3:
                for t in hl[2:3]: p(*t)
            emit(p, ex[i * q4:(i + 1) * q4])
    p.wait(lg=0)
    p("s_barrier")
    for s in range(S_ZL):
        if s in (0, 7, 13, 20): stamp(p, "g2_s%d" % s)
        step(s, extras.get(s, []))
        if s == DH:
            p.wait_tag("zst")
            z_publish(p, name)
    p.wait_tag("fz")
    p("v_cmp_ne_u32 vcc, s%d, v%d" % (sN, vFZ)); p("s_nop 4")
    p("s_cbranch_vccnz %s_zlate" % name)
    br = side_path_begin(p)
    for s in range(S_ZL, NS): step(s, extras.get(s, []))
    stamp(p, "g2_mma_done")
    g2_epilogue(p, name + "f", True)
    p("s_branch %s_fin" % name)
    p.label("%s_zlate" % name)
    side_path_end(p, br)
    for s in range(S_ZL, NS): step(s, [])
    g2_epilogue(p, name + "s", False)
    poll_issue(p, vFZ, vFZ + 2, 84, "fz2")
    p.wait(vm=0)
    poll_check(p, [vFZ], [vFZ + 2], [84])
    z_loads(p)
    y_compute(p)
    for r_ in range(16):
        p("v_add_f32 v%d, v%d, v%d" % (vY + r_, vY + r_, vOWN + r_))
    g2_store(p)
    p.wait(vm=63)
    p.label("%s_fin" % name)

OUTPOL = ["", " sc1", " nt", " sc0 sc1"]
def g2_store(p):
    PK = 160
    for r_ in range(16):
        if r_ & 1: p("v_cvt_pk_bf16_f32 v%d, v%d, v%d" % (PK + (r_ >> 1), vY + r_ - 1, vY + r_))
        if r_ == 7: p("buffer_store_dwordx4 %s, v%d, s[%d:%d], s%d offen%s" % (vr(PK, 4), vOUT, OUT_, OUT_ + 3, sXO, OUTPOL[OPT.get("outpol", 0)]))
    p("buffer_store_dwordx4 %s, v%d, s[%d:%d], s%d offen offset:16%s" % (vr(PK + 4, 4), vOUT, OUT_, OUT_ + 3, sXO, OUTPOL[OPT.get("outpol", 0)]))
def g2_epilogue(p, name, have_y):
    ACC = 64
    st = side_path_begin(p)
    for w in range(4):
        if w < 3:
            p("s_cmp_eq_u32 s%d, %d" % (sW, w))
            p("s_cbranch_scc0 %s_rw%d" % (name, w + 1))
        side_path_end(p, st)
        p("s_nop 7"); p("s_nop 3")
        for rel in range(1, 4):
            q = w ^ rel
            for rq in range(4):
                p("ds_write_b128 v%d, %s offset:%d" % (vRED, vr(ACC + 16 * q + 4 * rq, 4), q * 12288 + (rel - 1) * 4096 + rq * 1024))
        for i in range(16): p("v_mov_b32 v%d, v%d" % (vOWN + i, ACC + 16 * w + i))
        if w < 3:
            p("s_branch %s_rwd" % name)
            p.label("%s_rw%d" % (name, w + 1))
    p.label("%s_rwd" % name)
    p("s_mul_i32 s%d, s%d, 12288" % (sT0, sW)); p("v_add_u32 v10, s%d, v%d" % (sT0, vRED))
    p.wait(lg=0)
    p("s_barrier")
    if have_y: stamp(p, "g2_red_bar")
    for sl in range(3):
        for rq in range(4):
            p("ds_read_b128 %s, v10 offset:%d" % (vr(ACC + 16 * sl + 4 * rq, 4), sl * 4096 + rq * 1024))
    for r_ in range(16):
        p("v_add_f32 v%d, v%d, v%d" % (vOWN + r_, vOWN + r_, ACC + r_))
        p("v_add_f32 v%d, v%d, v%d" % (ACC + 16 + r_, ACC + 16 + r_, ACC + 32 + r_))
    for r_ in range(16): p("v_add_f32 v%d, v%d, v%d" % (vOWN + r_, vOWN + r_, ACC + 16 + r_))
    if have_y:
        for r_ in range(16): p("v_add_f32 v%d, v%d, v%d" % (vY + r_, vY + r_, vOWN + r_))
        g2_store(p)

def flat(l): return [x for y in l for x in y]
def gen(name):
    p = Prog()
    prof_reset()
    p("s_cmp_ge_u32 s2, 256")
    p("s_cbranch_scc1 %s_end" % name)
    stamp(p, "rt0", True); stamp(p, "t0")
    p("s_memrealtime s[86:87]")
    load_kernargs(p)
    p("v_and_b32 v1, 63, v0"); p("v_lshrrev_b32 v2, 6, v0")
    p("s_and_b32 s%d, s2, 7" % sJ); p("s_lshr_b32 s%d, s2, 3" % sR)
    p("v_readfirstlane_b32 s%d, v2" % sW)
    p("v_mov_b32 v253, 0")
    KN = "parallel_sum__ssm_conv_h3__dense_activation_squared_relu__prompt_kernel"
    pend = list(p.lg); p.lg = []
    if OPT.get("codetouch", 3) == 3: code_touch(p, KN)
    if OPT.get("hoist", 0): tile_indices(p); g1_dma_setup(p); g1_lds_setup(p); g2_setup(p)
    p_addr(p)
    p("s_lshl_b32 s%d, s2, 2" % sT0); p("s_add_u32 s78, s%d, s%d" % (sT0, sW))
    p.lg = pend
    p("s_waitcnt lgkmcnt(0)")
    stamp(p, "karg")
    if OPT.get("codetouch", 3) == 1: code_touch(p, KN)
    p_loads(p)
    if OPT.get("codetouch", 3) == 2: code_touch(p, KN)
    if OPT.get("pagetouch", 0): page_touch(p)
    if not OPT.get("hoist", 0): tile_indices(p)
    tile_srds(p)
    touches_g1(p)
    srd(p, 92, P_DBG, 256)
    p("s_cmp_eq_u32 s78, %d" % (248 * 4))
    p("s_cbranch_scc0 %s_n0" % name)
    st = side_path_begin(p)
    p("v_mov_b32 v250, s86"); p("v_mov_b32 v251, 1")
    p("s_mov_b64 exec, 1")
    p("buffer_store_dwordx2 v[250:251], v253, s[92:95], 0 offen sc1")
    p("s_mov_b64 exec, -1")
    side_path_end(p, st)
    p.label("%s_n0" % name)
    after_loads = side_path_begin(p)
    p("s_cmp_ge_u32 s%d, 28" % sR)
    p("s_cbranch_scc1 %s_spare" % name)
    if not OPT.get("hoist", 0): g1_dma_setup(p)
    g1_rot_setup(p)
    for u in g1_dma_stage(0): emit(p, u)
    def common_srds(p):
        srd(p, FL_, P_WS, SZ_FLAG, WS_FLAG); srd(p, KVT_, P_WS, SZ_KVT, WS_KVT); srd(p, ST_, P_WS, SZ_ST, WS_ST); srd(p, CSP_, P_WS, SZ_CSP, WS_CSP)
    def b1_srd(p): srd(p, B1_, P_B1, F * 2)
    common_srds(p); b1_srd(p); g2_srd(p)
    if not OPT.get("hoist", 0): g1_lds_setup(p); g2_setup(p)
    stamp(p, "issued")
    KN = "parallel_sum__ssm_conv_h3__dense_activation_squared_relu__prompt_kernel"
    dm = g1_dma_stage(1) + g1_dma_stage(2)
    kv = rec(kv_compute)
    k = 0
    for i, it in enumerate(kv):
        emit(p, [it])
        while k < 16 and k * len(kv) < (i + 1) * 16: emit(p, dm[k]); k += 1
    while k < 16: emit(p, dm[k]); k += 1
    if OPT["touch"] == 2: touches_g1_late(p)
    stamp(p, "kv_done")
    none = lambda p: None
    lg0 = lambda p: p.wait(lg=0)
    def pre4(p):
        nonce_check(p); fk_publish(p, "g1")
    def b1_load(p):
        p("v_and_b32 v14, 127, v0"); p("v_lshlrev_b32 v14, 1, v14"); p("s_lshl_b32 s84, s%d, 8" % sFT)
        p("buffer_load_ushort v%d, v14, s[%d:%d], s84 offen" % (vB1, B1_, B1_ + 3), "tab")
    def tab_done(p):
        p.wait_tag("tab"); tab_check(p); tab_partial(p)
    def tab_final(p):
        p("v_and_b32 v10, 127, v0"); p("v_lshlrev_b32 v10, 2, v10"); p("v_add_u32 v11, %d, v10" % CSQ_LDS); p("v_add_u32 v10, %d, v10" % TAB_LDS)
        for i in range(4): p("ds_read_b32 v%d, v11 offset:%d" % (20 + i, i * 512))
        p("v_lshlrev_b32 v%d, 16, v%d" % (vB1, vB1))
        p("v_add_f32 v20, v20, v21"); p("v_add_f32 v22, v22, v23"); p("v_add_f32 v20, v20, v22")
        p("ds_write_b32 v10, v20"); p("ds_write_b32 v10, v%d offset:512" % vB1)
    def fk_issue(p):
        fk_addr(p, True); poll_issue(p, vPK, vPA, 85, "fk")
    def fk_check(p):
        p.wait_tag("fk"); poll_check(p, [vPK], [vPA], [85])
    A = [w2_dma(12 + i, i) for i in range(12)]
    B1 = [w2_dma(24 + i, i) for i in range(4)]
    B2 = [w2_dma(4 + i, 4 + i) for i in range(8)]
    C = [w2_dma(i, i) for i in range(4)]
    SCH = {1: dict(s5=A[0:4], s6=A[4:8], s7=A[8:12], epi=[], c1=B1 + B2[0:2], c2=B2[2:8], c3=[], fin=C, g2={}),
           2: dict(s5=A[0:2], s6=A[2:4], s7=A[4:6], epi=A[6:12], c1=B1, c2=B2[0:4], c3=B2[4:8], fin=[], g2={0: C[0], 3: C[1], 5: C[2], 7: C[3]}),
           3: dict(s5=A[0:3], s6=A[3:6], s7=A[6:9], epi=A[9:12], c1=B1 + B2[0:1], c2=B2[1:5], c3=B2[5:8], fin=C[0:2], g2={0: C[2], 3: C[3]}),
           4: dict(s5=A[0:4], s6=A[4:8], s7=A[8:12], epi=[], c1=B1, c2=B2[0:4], c3=B2[4:8], fin=[], g2={0: C[0], 3: C[1], 5: C[2], 7: C[3]}),
           }[OPT.get("sch", 1)]
    def late(p_items): return [p_items]
    fill = {0: (lg0, none, rec(kv_stores) + rec(nonce_issue)),
            1: (none, none, rec(w2_touch) if OPT["w2touch"] == 1 else []),
            2: (none, none, rec(conv_setup)),
            3: (lambda p: p.wait_tag("nonce"), pre4, []),
            4: (none, none, []),
            5: (none, none, rec(tab_loads) + rec(b1_load) + flat(SCH['s5'])),
            6: (none, none, rec(fk_issue) + flat(SCH['s6'][:len(SCH['s6']) // 2]) + [(tab_done, None)] + flat(SCH['s6'][len(SCH['s6']) // 2:])),
            7: (lg0, none, rec(tab_final) + flat(SCH['s7'][:len(SCH['s7']) // 2]) + [(fk_check, None)] + rec(conv_loads_regs) + flat(SCH['s7'][len(SCH['s7']) // 2:]))}
    if OPT.get("g2map", 0):
        np_ = OPT.get("th_parts", 2); t0_ = OPT.get("th_stage", 0)
        for i_ in range(np_):
            a_, b_, c_ = fill[t0_ + i_][:3]
            fill[t0_ + i_] = (a_, b_, c_, rec(w2_touch_half, i_, np_))
    elif OPT["w2touch"] == 6:
        np_ = OPT.get("ta_parts", 2); t0_ = OPT.get("ta_stage", 0); tb_ = OPT.get("tb_stage", 5)
        for i_ in range(np_):
            a_, b_, c_ = fill[t0_ + i_][:3]
            fill[t0_ + i_] = (a_, b_, c_, rec(w2_touch_a, i_, np_))
        a_, b_, c_ = fill[tb_][:3]
        fill[tb_] = (a_, b_, c_, (fill[tb_][3] if len(fill[tb_]) > 3 else []) + rec(w2_touch_b))
    elif OPT.get("plan", 1) == 2:
        ts = OPT.get("tstage", 5)
        fill[5] = (none, none, rec(tab_loads) + rec(b1_load) + rec(fk_issue))
        fill[6] = (none, none, [(tab_done, None)])
        fill[7] = (lg0, none, rec(tab_final) + [(fk_check, None)] + rec(conv_loads_regs))
        a_, b_, c_ = fill[ts]
        fill[ts] = (a_, b_, c_, rec(w2_touch))
    elif OPT["w2touch"] == 4:
        for st_ in range(7):
            a_, b_, c_ = fill[st_]
            fill[st_] = (a_, b_, c_, rec(w2_touch_part, st_))
    if OPT["w2touch"] == 5 and OPT.get("plan", 1) == 1 and not OPT.get("g2map", 0):
        for st_, (k_, n_) in enumerate(((0, 32), (2, 32), (4, 48))):
            a_, b_, c_ = fill[st_]
            fill[st_] = (a_, b_, c_, rec(w2_touch_part, k_, n_))
    if OPT.get("ssmtouch", 3):
        st_ = OPT.get("ssmtouch", 3)
        f_ = fill[st_]
        fill[st_] = (f_[0], f_[1], f_[2], (f_[3] if len(f_) > 3 else []) + rec(ssm_touch))
    g1_main(p, fill)
    stamp(p, "g1_mfma_end")
    p.wait(lg=0)
    p("s_barrier")
    conv_loads_lds(p)
    stamp(p, "g1_mma_done")
    FE = OPT.get("fill_epi", 1)
    epi_x = flat(SCH['epi'])
    if FE: epi_x = interleave(rec(conv_fill), epi_x, len(epi_x) / float(len(rec(conv_fill)))) if epi_x else rec(conv_fill)
    g1_epilogue(p, epi_x)
    p.wait_tag("cv")
    p.label("%s_cfill" % name)
    stamp(p, "g1_epi_done")
    g2_setup_tr(p)
    early = OPT.get("early_stash", 0)
    if early:
        p.wait_tag("w23")
        for t in flat([stash_reads(12 + i, i) for i in range(12)]): p(*t)
        B = flat([w2_dma(24 + i, i) for i in range(4)] + [w2_dma(4 + i, 4 + i) for i in range(8)])
        cf = rec(conv_fill)
        p.wait(lg=0)
        k = 0
        for i, it in enumerate(cf):
            emit(p, [it])
            while k < len(B) and k * len(cf) < (i + 1) * len(B): emit(p, [B[k]]); k += 1
    elif not FE:
        conv_fill(p)
    def c0(p):
        if not early: p.wait_tag("w17")
    def c1(p):
        p.wait_tag("hst")
        if not early: p.wait_tag("w23")
        p("s_cmp_ge_u32 s%d, 28" % sR)
        p("s_cbranch_scc1 %s_nohp" % name)
        st = side_path_begin(p)
        h_publish(p)
        side_path_end(p, st)
        p.label("%s_nohp" % name)
        if not early: p.wait(lg=0)
        stamp(p, "h_pub")
    def c2(p):
        if not early: p.wait(lg=0)
        else: p.wait_tag("w27")
    def c3(p):
        p.wait(lg=0)
        if not early: p.wait_tag("w27")
    if early:
        f0, f1 = [], []
        f2 = flat([stash_reads(24 + i, i) for i in range(4)])
        f3 = flat([w2_dma(i, i) for i in range(4)]) + rec(fh_poll_issue)
    else:
        f0 = flat([stash_reads(12 + i, i) for i in range(6)])
        f1 = interleave(flat([stash_reads(18 + i, 6 + i) for i in range(6)]), flat(SCH['c1']), len(SCH['c1']) / 24.0)
        f2 = flat(SCH['c2'])
        sr_ = flat([stash_reads(24 + i, i) for i in range(4)])
        if OPT.get("fh_early", 0):
            k_ = OPT["fh_early"]
            f3 = sr_[:k_] + rec(fh_poll_issue) + sr_[k_:]
        else:
            f3 = sr_ + rec(fh_poll_issue)
        if SCH['c3']: f3 = interleave(f3, flat(SCH['c3']), len(SCH['c3']) / float(len(f3)))
        if OPT.get("fin_pre", 1): f2 = f2 + rec(conv_finish_addr)
    conv_main(p, [(c0, f0), (c1, f1), (c2, f2), (c3, f3)])
    if not early:
        p.wait(lg=0)
        for u in flat(SCH['fin']): emit(p, u)
    g2_h_start(p)
    conv_finish(p, name, [t for s_ in range(OPT.get("h_first", 2), OPT["depth_h"]) for t in h_loads(s_)])
    stamp(p, "conv_done")
    if OPT["htouch"] == 1: h_touch(p)
    z_stores(p)
    if OPT["htouch"] == 2: h_touch(p)
    g2_main(p, name, {k_: [v_[0]] for k_, v_ in SCH['g2'].items()})
    stamp(p, "end")
    if common.PROF: p.wait(vm=0)
    stamp(p, "end_acked"); stamp(p, "rt1", True)
    prof_flush(p, sW)
    p("s_endpgm")
    p.label("%s_spare" % name)
    side_path_end(p, after_loads)
    sp_loads(p)
    if OPT["touch"] == 2: touches_g1_late(p)
    common_srds(p)
    kv_compute(p, 192, 200)
    p.wait(lg=0)
    p("s_barrier")
    kv_stores(p)
    nonce_issue(p)
    sp_stats(p)
    p.wait_tag("nonce"); nonce_check(p)
    sp_stats_store(p)
    sp_cs(p)
    p.wait(lg=0)
    p.wait_tag("kst")
    p("s_barrier")
    fk_publish(p, "sp")
    sp_cs_store(p)
    p.wait(lg=0)
    p("s_barrier")
    g2_srd(p)
    if not OPT.get("hoist", 0): g2_setup(p)
    if OPT.get("g2map", 0): w2_touch_half(p, 0, 1)
    elif OPT["w2touch"] == 6: w2_touch_a(p, 0, 1); w2_touch_b(p)
    elif OPT["w2touch"]: w2_touch(p)
    for u in flat(A): emit(p, u)
    conv_setup(p)
    fk_addr(p, True)
    poll_issue(p, vPK, vPA, 85, "poll")
    p.wait(vm=0, lg=0)
    poll_check(p, [vPK], [vPA], [85])
    conv_loads_regs(p)
    conv_loads_lds(p)
    p.wait(vm=0)
    if FE: conv_fill(p)
    p("s_branch %s_cfill" % name)
    p.label("%s_end" % name)
    p("s_endpgm")
    return p.text(), 512, 256
```
